```python
import torch

def _softmax(x, axis=-1):
    return torch.softmax(x, dim=axis)

def _gelu(x):
    return torch.nn.functional.gelu(x, approximate='tanh')

def _silu(x):
    return torch.nn.functional.silu(x)

def _sigmoid(x):
    return torch.sigmoid(x)

def _layernorm(x, axis=-1, eps=1e-05):
    m = x.mean(dim=axis, keepdim=True)
    v = x.var(dim=axis, keepdim=True, unbiased=False)
    return (x - m) / torch.sqrt(v + eps)

def _scatter_add(tgt, idx, src, axis=0):
    return tgt.clone().index_add_(axis, idx, src)

def _segment_sum(src, seg, n):
    out = torch.zeros((n,) + src.shape[1:], dtype=src.dtype)
    return out.index_add_(0, seg, src)

def _pad(x, pw):
    flat = tuple((v for pair in reversed(pw) for v in pair))
    return torch.nn.functional.pad(x, flat)
kernel_name = 'adaLN_cond__gqa_block_cached__mixer_channel_mlp__decode'

def setup_inputs():

    _w = lambda a: (lambda t: t.to(torch.bfloat16) if t.is_floating_point() else t)(torch.as_tensor(a))

    def _A_setup():
        B, Sq, D = (2, 1, 512)
        Hq, Hkv, Sk, Dh = (32, 8, 8192, 128)
        assert Hq % Hkv == 0, (Hq, Hkv)
        return {'x': _w((lambda *s: torch.randn(*s, dtype=torch.bfloat16) * 0.1)(B, Sq, D)), 'k_cache': _w((lambda *s: torch.randn(*s, dtype=torch.bfloat16) * 0.8)(B, Hkv, Sk, Dh)), 'v_cache': _w((lambda *s: torch.randn(*s, dtype=torch.bfloat16) * 0.8)(B, Hkv, Sk, Dh)), 'wq': _w((lambda *s: torch.randn(*s, dtype=torch.bfloat16) * 0.8)(D, Hq * Dh) * D ** (-0.5)), 'wo': _w((lambda *s: torch.randn(*s, dtype=torch.bfloat16) * 0.8)(Hq * Dh, D) * (Hq * Dh) ** (-0.5))}
    _A_in = _A_setup()

    def _B_setup():
        B, S, D, F = (2, 1, 512, 1792)
        return {'x': _w((lambda *s: torch.randn(*s, dtype=torch.bfloat16) * 0.1)(B, S, D)), 'w1': _w((lambda *s: torch.randn(*s, dtype=torch.bfloat16) * 3.2)(D, F) * D ** (-0.5)), 'b1': _w((lambda *s: torch.randn(*s, dtype=torch.bfloat16) * 3.2)(F)), 'w2': _w((lambda *s: torch.randn(*s, dtype=torch.bfloat16) * 3.2)(F, D) * F ** (-0.5)), 'b2': _w((lambda *s: torch.randn(*s, dtype=torch.bfloat16) * 3.2)(D))}
    _B_in = _B_setup()
    return {'A_x': _A_in['x'], 'A_k_cache': _A_in['k_cache'], 'A_v_cache': _A_in['v_cache'], 'A_wq': _A_in['wq'], 'A_wo': _A_in['wo'], 'B_x': _B_in['x'], 'B_w1': _B_in['w1'], 'B_b1': _B_in['b1'], 'B_w2': _B_in['w2'], 'B_b2': _B_in['b2'], 'c': _w((lambda *s: torch.randn(*s, dtype=torch.bfloat16) * 0.4)(2, 512) * 8.0), 'w_mod': _w((lambda *s: torch.randn(*s, dtype=torch.bfloat16) * 0.4)(512, 6 * 512) * 512 ** (-0.5) * 8.0)}

def reference(A_x, A_k_cache, A_v_cache, A_wq, A_wo, B_x, B_w1, B_b1, B_w2, B_b2, c, w_mod):

    def _A_ref(x, k_cache, v_cache, wq, wo):
        B, Sq, D = x.shape
        Hq, Dh = (32, 128)
        Hkv = k_cache.shape[1]
        rep = Hq // Hkv
        q = (lambda x, *d: x.permute(*d))((x @ wq).reshape(B, Sq, Hq, Dh), 0, 2, 1, 3)
        k = (lambda x, n, axis: torch.repeat_interleave(x, n, dim=axis))(k_cache, rep, axis=1)
        v = (lambda x, n, axis: torch.repeat_interleave(x, n, dim=axis))(v_cache, rep, axis=1)
        scores = torch.einsum('bhqd,bhkd->bhqk', q, k) * Dh ** (-0.5)
        p = _softmax(scores, axis=-1)
        o = torch.einsum('bhqk,bhkd->bhqd', p, v)
        return (lambda x, *d: x.permute(*d))(o, 0, 2, 1, 3).reshape(B, Sq, Hq * Dh) @ wo

    def _B_ref(x, w1, b1, w2, b2):
        y = _layernorm(x, axis=-1)
        h = _gelu(torch.einsum('bsd,df->bsf', y, w1) + b1)
        return torch.einsum('bsf,fd->bsd', h, w2) + b2
    x = A_x
    mod = (_silu(c) @ w_mod).reshape(c.shape[0], 6, 1, -1)
    sa, ca, ga, sb, cb, gb = (mod[:, 0].clone(), mod[:, 1].clone(), mod[:, 2].clone(), mod[:, 3].clone(), mod[:, 4].clone(), mod[:, 5].clone())
    h = _layernorm(x, axis=-1) * (1 + ca) + sa
    x = x + ga * _A_ref(h, A_k_cache, A_v_cache, A_wq, A_wo)
    h = _layernorm(x, axis=-1) * (1 + cb) + sb
    x = x + gb * _B_ref(h, B_w1, B_b1, B_w2, B_b2)
    return x
```

```python
import re
TRANS = ('v_exp_f32','v_log_f32','v_rcp_f32','v_rsq_f32','v_sqrt_f32','v_sin_f32','v_cos_f32')
def parse_regs(tok):
    tok = tok.strip()
    tok = tok.lstrip('-')
    m = re.fullmatch(r'abs\((.*)\)', tok)
    if m: tok = m.group(1)
    m = re.fullmatch(r'([vsa])(\d+)', tok)
    if m: return {(m.group(1), int(m.group(2)))}
    m = re.fullmatch(r'([vsa])\[(\d+):(\d+)\]', tok)
    if m: return {(m.group(1), i) for i in range(int(m.group(2)), int(m.group(3)) + 1)}
    if tok == 'vcc': return {('s', 106), ('s', 107)}
    if tok == 'vcc_lo': return {('s', 106)}
    if tok == 'vcc_hi': return {('s', 107)}
    if tok == 'exec': return {('s', 126), ('s', 127)}
    if tok == 'm0': return {('s', 124)}
    return set()

class Ins:
    def __init__(self, text):
        self.text = text
        t = text.split(';')[0].strip()
        self.label = t.endswith(':')
        self.directive = t.startswith('.')
        self.empty = (t == '')
        self.op = ''
        self.wr = set(); self.rd = set()
        self.states = 0
        if self.label or self.directive or self.empty: return
        parts = t.split(None, 1)
        op = parts[0]; self.op = op
        rest = parts[1] if len(parts) > 1 else ''
        ops = []; depth = 0; cur = ''
        for ch in rest:
            if ch in '[(': depth += 1
            if ch in '])': depth -= 1
            if ch == ',' and depth == 0: ops.append(cur); cur = ''
            else: cur += ch
        ops.append(cur)
        toks = []
        for o in ops:
            o = o.strip()
            if o: toks.append(o.split()[0])
        self.mods = rest
        self.states = 1
        if op == 's_nop': self.states = int(rest.strip(), 0) + 1
        R = [parse_regs(x) for x in toks]
        self.valu = op.startswith('v_') and not op.startswith('v_mfma')
        self.mfma = op.startswith('v_mfma')
        self.trans = any(op.startswith(x) for x in TRANS)
        self.dpp = '_dpp' in op or 'quad_perm' in rest or 'row_ror' in rest or 'row_shr' in rest or 'row_shl' in rest
        self.perml = op.startswith('v_permlane')
        self.rdlane = op.startswith('v_readlane') or op.startswith('v_readfirstlane')
        self.ds = op.startswith('ds_')
        self.vmem = op.startswith('buffer_') or op.startswith('global_')
        self.salu = op.startswith('s_')
        self.ldsdma = self.vmem and re.search(r'\blds\b', rest) is not None
        self.A = self.B = self.C = set()
        if self.mfma:
            self.wr = R[0]; self.A = R[1]; self.B = R[2]; self.C = R[3]; self.rd = R[1] | R[2] | R[3]
        elif self.valu:
            if self.perml:
                self.wr = R[0] | R[1]; self.rd = R[0] | R[1]
            else:
                self.wr = set(R[0])
                srcs = R[1:]
                if op.startswith(('v_add_co', 'v_sub_co', 'v_addc_co', 'v_subb_co')):
                    self.wr |= R[1]; srcs = R[2:]
                for s in srcs: self.rd |= s
                if op.startswith(('v_fmac', 'v_dot2c', 'v_writelane')): self.rd |= R[0]
                if 'bank_mask' in rest and not ('bank_mask:0xf' in rest and 'row_mask:0xf' in rest): self.rd |= R[0]
                if op.startswith('v_cndmask') and len(R) == 3: self.rd |= parse_regs('vcc')
        elif self.ds:
            if op.startswith(('ds_read', 'ds_bpermute', 'ds_swizzle', 'ds_permute')):
                self.ldwr = R[0]
                for s in R[1:]: self.rd |= s
            else:
                for s in R: self.rd |= s
        elif self.vmem:
            if '_load' in op and not self.ldsdma:
                self.ldwr = R[0]
                for s in R[1:]: self.rd |= s
            else:
                for s in R: self.rd |= s
            self.widestore = ('store_dwordx4' in op or 'store_dwordx3' in op)
            if self.widestore:
                self.sdata = R[0] if op.startswith('buffer') else R[1]
        elif self.salu:
            if op.startswith(('s_cmp', 's_waitcnt', 's_barrier', 's_branch', 's_cbranch', 's_sleep', 's_endpgm', 's_setprio', 's_nop')):
                for s in R: self.rd |= s
            else:
                if R: self.wr = set(R[0])
                for s in R[1:]: self.rd |= s

def isv(s): return {r for r in s if r[0] in 'va'}
def iss(s): return {r for r in s if r[0] == 's'}

def need(p, c):
    n = 0
    if p.valu:
        vw = isv(p.wr); sw = iss(p.wr)
        if c.mfma and vw & c.rd: n = max(n, 2)
        if c.valu and c.dpp and vw & c.rd: n = max(n, 2)
        if c.valu and c.perml and vw & c.rd: n = max(n, 2)
        if c.valu and c.rdlane and vw & c.rd: n = max(n, 1)
        if p.trans and c.valu and vw & c.rd: n = max(n, 1)
        if p.trans and (c.ds or c.vmem) and vw & c.rd: n = max(n, 1)
        if sw:
            if c.valu and sw & c.rd: n = max(n, 4 if c.rdlane or c.op.startswith('v_writelane') else 2)
            if c.mfma and sw & c.rd: n = max(n, 2)
            if c.vmem and sw & c.rd: n = max(n, 5)
            if c.salu and sw & c.rd and not c.op.startswith('s_cbranch'): n = max(n, 1)
        if ('sdwa' in p.op or 'op_sel' in p.mods) and c.valu and vw & (c.rd | c.wr): n = max(n, 1)
    if p.mfma:
        d = p.wr
        if c.mfma:
            if d & (c.A | c.B): n = max(n, 8)
            if d & c.C and d != c.C: n = max(n, 6)
        if c.valu and d & (c.rd | c.wr): n = max(n, 8)
        if (c.ds or c.vmem) and d & (c.rd | getattr(c, 'ldwr', set())): n = max(n, 8)
        if c.valu and isv(p.C) & c.wr: n = max(n, 3)
    if p.salu and ('s', 124) in p.wr and c.ldsdma: n = max(n, 1)
    if p.vmem and getattr(p, 'widestore', False) and c.valu and p.sdata & c.wr: n = max(n, 2)
    return n

class Asm:
    def __init__(self): self.lines = []
    def __call__(self, text):
        for l in text.split('\n'):
            l = l.strip()
            if l: self.lines.append(l)
    def finalize(self):
        out = []; hist = []
        nops = 0
        for l in self.lines:
            i = Ins(l)
            if i.label or i.directive or i.empty:
                out.append(l); continue
            dist = 0; req = 0
            for p in reversed(hist):
                r = need(p, i) - dist
                if r > req: req = r
                dist += p.states
                if dist >= 12: break
            if req > 0:
                n = Ins(f's_nop {req-1}')
                hist.append(n); out.append(f'    s_nop {req-1}'); nops += 1
            hist.append(i); out.append('    ' + l)
            if i.op in ('s_branch', 's_endpgm'): hist = []
        return '\n'.join(out)
```

```python
NAME='adaLN_cond__gqa_block_cached__mixer_channel_mlp__decode_kernel'
HDR = open('adaLN_cond__gqa_block_cached__mixer_channel_mlp__decode.s.ref').read().split('.amdgcn_target')[0]
def wrap(body, grid, block, lds, vgpr, sgpr=96, agpr=0):
    hdr = HDR.replace('grid=(4,1,1) block=(256,1,1) lds=0', f'grid=({grid},1,1) block=({block},1,1) lds={lds}')
    acc = (vgpr + 3) // 4 * 4
    return hdr + f'''.amdgcn_target "amdgcn-amd-amdhsa--gfx950"
.text
.globl {NAME}
.p2align 8
.type {NAME},@function
{NAME}:
{body}
.section .rodata,"a"
.p2align 6
.amdhsa_kernel {NAME}
  .amdhsa_next_free_vgpr {acc + agpr if agpr else vgpr}
  .amdhsa_next_free_sgpr {sgpr}
  .amdhsa_accum_offset {acc}
  .amdhsa_group_segment_fixed_size 0
  .amdhsa_kernarg_size 120
  .amdhsa_user_sgpr_count 2
  .amdhsa_user_sgpr_kernarg_segment_ptr 1
  .amdhsa_system_sgpr_workgroup_id_x 1
.end_amdhsa_kernel
'''
```

```python
import sys, math, struct
from asmlib import *
from gen_common import *

class Cfg:
    stamps = False
    NT = 'nt'
    warm = True
cfg = Cfg()

MOD=0; QO=0x3000; LSE=0x7000; WOUT=0x8000; MOUT=0xC000; OP=0x30000; STMP=0x80000; WS_SZ=0x100000
NP0 = 80
KW=36864; PREG=147456; ZERO=153600; ST=154176; SCR=0; LDS_TOTAL=154624
R0=0; R1=65536; ACT=131072; ACT3=133376; HID=140288; STAT=140672; STAT2=140736; STAT3=140800; X1=141312
LIMIT = 200000
LOG2E = 1.4426950408889634
def f2u(x): return '0x%08x' % struct.unpack('<I', struct.pack('<f', x))[0]

def gen():
    a = Asm()
    uid = [0]
    def lab(p):
        uid[0] += 1; return f'L_{p}_{uid[0]}'
    def stamp(i):
        if cfg.stamps: a(f's_memrealtime s[{64+2*i}:{65+2*i}]')
    def stamps_out(n, base_slot):
        if not cfg.stamps: return
        a('s_waitcnt lgkmcnt(0)')
        a('s_mov_b64 exec, 1')
        a(f's_lshl_b32 s60, s2, 7\ns_add_u32 s60, s60, {STMP + base_slot*8}')
        a('v_mov_b32 v2, 0')
        for i in range(n):
            a(f'v_mov_b32 v4, s{64+2*i}\nv_mov_b32 v5, s{65+2*i}')
            a(f'buffer_store_dwordx2 v[4:5], v2, s[16:19], s60 offen offset:{8*i}')
        a('s_waitcnt vmcnt(0)')
    def srd(d, lo, hi, size):
        a(f's_mov_b32 s{d}, {lo}\ns_mov_b32 s{d+1}, {hi}\ns_mov_b32 s{d+2}, {size}\ns_mov_b32 s{d+3}, 0x20000')
    def p0_load(va, vd):
        a(f'v_and_b32 {va}, 3, v1\nv_lshlrev_b32 {va}, 2, {va}\nglobal_load_dword {vd}, {va}, s[12:13] sc1')
    def p0_check(va, vd):
        l = lab('p0'); d = lab('p0d')
        a('s_mov_b32 s30, 0')
        a(f'{l}:')
        a(f'v_cmp_eq_u32 vcc, 0, {vd}')
        a(f's_cbranch_vccz {d}')
        a(f'global_load_dword {vd}, {va}, s[12:13] sc1')
        a('s_add_u32 s30, s30, 1\ns_waitcnt vmcnt(0)')
        a(f's_cmp_lt_u32 s30, {LIMIT}\ns_cbranch_scc1 {l}')
        a(f'{d}:')
    def chk(regs, tmp):
        rs = list(regs)
        if len(rs) == 1: m = rs[0]
        else:
            m = tmp; first = True
            while rs:
                if first:
                    if len(rs) >= 3: a(f'v_max3_u32 v{tmp}, v{rs[0]}, v{rs[1]}, v{rs[2]}'); rs = rs[3:]
                    else: a(f'v_max_u32 v{tmp}, v{rs[0]}, v{rs[1]}'); rs = rs[2:]
                    first = False
                elif len(rs) >= 2: a(f'v_max3_u32 v{tmp}, v{tmp}, v{rs[0]}, v{rs[1]}'); rs = rs[2:]
                else: a(f'v_max_u32 v{tmp}, v{tmp}, v{rs[0]}'); rs = rs[1:]
        a(f'v_cmp_eq_u32 vcc, -1, v{m}')
    def vpoll(loads, regs, tmp, sleep=0, first_issued=False):
        l = lab('vp'); d = lab('vd'); w = lab('vw')
        a('s_mov_b32 s30, 0')
        if first_issued: a(f's_branch {w}')
        a(f'{l}:')
        for x in loads: a(x)
        if first_issued: a(f'{w}:')
        a('s_add_u32 s30, s30, 1')
        a('s_waitcnt vmcnt(0)')
        chk(regs, tmp)
        a(f's_cbranch_vccz {d}')
        if sleep: a(f's_sleep {sleep}')
        a(f's_cmp_lt_u32 s30, {LIMIT}\ns_cbranch_scc1 {l}')
        a(f'{d}:')
    def dma_u1_setup(RS):
        a('v_bfe_u32 v10, v1, 4, 1\nv_and_b32 v12, 7, v1\nv_xor_b32 v10, v10, v12')
        a('s_and_b32 s27, s4, 4\nv_xor_b32 v10, s27, v10')
        a(f'v_lshrrev_b32 v2, 3, v1\nv_mul_u32_u24 v2, {RS}, v2\nv_xor_b32 v12, 2, v10')
        a('v_lshl_add_u32 v12, v12, 4, v2\nv_lshl_add_u32 v2, v10, 4, v2')
    def dma_u1(lo, hi, size, RS, sbase, region, setup=True):
        if setup: dma_u1_setup(RS)
        srd(20, lo, hi, size)
        a(f's_mul_i32 s27, s4, {64*RS}\ns_add_u32 s27, s27, {sbase}')
        a(f's_lshl_b32 s28, s4, 13')
        if region: a(f's_add_u32 s28, s28, {region}')
        for i in range(8):
            a('s_mov_b32 m0, s28')
            if i < 7: a('s_add_u32 s28, s28, 1024')
            a(f'buffer_load_dwordx4 v{12 if i & 1 else 2}, s[20:23], s27 offen {cfg.NT} lds')
            if i < 7: a(f's_add_u32 s27, s27, {8*RS}')

    a('s_cmp_ge_u32 s2, 256\ns_cbranch_scc1 L_end')
    stamp(0)
    a('v_lshrrev_b32 v1, 6, v0')
    a('s_load_dwordx4 s[12:15], s[0:1], 104')
    a('s_cmp_lt_u32 s2, 80')
    a('v_readfirstlane_b32 s4, v1')
    a('v_and_b32 v1, 63, v0')
    a('s_cbranch_scc0 L_stream')
    a('s_cmp_lt_u32 s4, 8\ns_cbranch_scc1 L_hmain')
    a('s_cmp_ge_u32 s2, 4\ns_cbranch_scc1 L_spare')
    a('s_cmp_lg_u32 s4, 8\ns_cbranch_scc1 L_spare')
    a('v_mov_b32 v4, -1\nv_mov_b32 v5, -1\nv_mov_b32 v6, -1\nv_mov_b32 v7, -1')
    a('s_mul_i32 s6, s2, 7168\nv_lshlrev_b32 v2, 4, v1\nv_add_u32 v2, s6, v2\nv_add_u32 v3, 4096, v2')
    a('s_lshl_b32 s6, s2, 2\nv_mov_b32 v8, s6\nv_mov_b32 v9, 1')
    a('s_waitcnt lgkmcnt(0)')
    for i in range(7):
        a(f'global_store_dwordx4 v{2 + (i >> 2)}, v[4:7], s[14:15] offset:{1024*(i & 3)} sc1')
    a('s_waitcnt vmcnt(0)')
    a('s_mov_b64 exec, 1\nglobal_store_dword v8, v9, s[12:13] sc1')
    a('s_endpgm')
    a('L_hmain:')
    a('s_cmp_lt_u32 s2, 16\ns_cselect_b32 s6, 88, 24')
    a('s_load_dwordx2 s[20:21], s[0:1], s6')
    a('s_mov_b32 s7, 8192\ns_cselect_b32 s7, 6144, s7')
    a('s_cselect_b32 s25, 0, 16\ns_sub_u32 s25, s2, s25')
    a('v_bfe_u32 v10, v1, 4, 1\nv_and_b32 v12, 7, v1\nv_xor_b32 v10, v10, v12')
    a('s_and_b32 s27, s4, 4\nv_xor_b32 v10, s27, v10')
    a('v_lshrrev_b32 v2, 3, v1\nv_mul_u32_u24 v2, s7, v2\nv_xor_b32 v12, 2, v10')
    a('v_lshl_add_u32 v12, v12, 4, v2\nv_lshl_add_u32 v2, v10, 4, v2')
    a('s_lshl_b32 s22, s7, 9\ns_mov_b32 s23, 0x20000')
    a('s_mul_i32 s27, s4, s7\ns_lshl_b32 s27, s27, 6\ns_lshl_b32 s6, s25, 7\ns_add_u32 s27, s27, s6')
    a('s_lshl_b32 s28, s4, 13\ns_lshl_b32 s7, s7, 3\ns_mov_b32 s29, 0')
    a('s_waitcnt lgkmcnt(0)')
    a('L_hdma:')
    a('s_mov_b32 m0, s28\ns_add_u32 s28, s28, 1024')
    a(f'buffer_load_dwordx4 v2, s[20:23], s27 offen {cfg.NT} lds')
    a('s_add_u32 s27, s27, s7\ns_mov_b32 m0, s28\ns_add_u32 s28, s28, 1024')
    a(f'buffer_load_dwordx4 v12, s[20:23], s27 offen {cfg.NT} lds')
    a('s_add_u32 s27, s27, s7\ns_add_u32 s29, s29, 1\ns_cmp_lt_u32 s29, 4\ns_cbranch_scc1 L_hdma')
    a('s_branch L_helper')
    a('L_stream:')
    a('s_load_dwordx4 s[8:11], s[0:1], 8')
    a('s_sub_u32 s6, s2, 80')
    a('s_and_b32 s24, s6, 15\ns_lshr_b32 s25, s6, 4')
    a('s_mul_i32 s6, s25, 23\ns_sub_u32 s7, s25, 8\ns_max_i32 s7, s7, 0\ns_add_u32 s6, s6, s7')
    a('s_lshl_b32 s6, s6, 13\ns_lshl_b32 s7, s24, 21\ns_add_u32 s6, s6, s7')
    a(f's_mov_b32 s22, {23*8192}\ns_cmp_ge_u32 s25, 8\ns_cselect_b32 s22, {24*8192}, s22')
    a('s_mov_b32 s23, 0x20000')
    a('s_cmp_ge_u32 s4, 4\ns_cbranch_scc1 L_vwave')
    a('v_lshrrev_b32 v7, 4, v1')
    a('v_and_b32 v15, 15, v1')
    a('v_lshlrev_b32 v6, 2, v7\nv_xor_b32 v6, v6, v15')
    a('v_lshlrev_b32 v8, 8, v7')
    a('v_lshl_add_u32 v2, v6, 4, v8')
    for t in (1, 2, 3): a(f'v_xor_b32 v{2+t}, {16*t}, v2')
    a(f's_mul_i32 s27, s4, 49152\ns_mul_i32 s28, s4, {KW}')
    a('s_waitcnt lgkmcnt(0)')
    a('s_add_u32 s20, s8, s6\ns_addc_u32 s21, s9, 0')
    a('s_mov_b32 s29, 0\nv_and_b32 v158, 3, v1\nv_lshlrev_b32 v158, 2, v158')
    a('L_kdma:')
    a('s_mov_b32 m0, s28')
    a('s_add_u32 s28, s28, 4096\ns_add_u32 s29, s29, 1')
    for t in range(4):
        a(f'buffer_load_dwordx4 v{2+t}, s[20:23], s27 offen offset:{1024*t} {cfg.NT} lds')
    a('s_add_u32 s27, s27, 4096')
    a('s_cmp_lg_u32 s29, 6\ns_cbranch_scc1 L_kd2')
    a('global_load_dword v159, v158, s[12:13] sc1')
    a('L_kd2:')
    a('s_cmp_lt_u32 s29, 9\ns_cbranch_scc1 L_kdma')
    a('v_and_b32 v6, 3, v15\nv_lshlrev_b32 v6, 2, v6\nv_lshrrev_b32 v9, 2, v15\nv_add_u32 v6, v6, v9')
    a('v_lshlrev_b32 v10, 8, v6')
    a('v_lshl_add_u32 v6, v7, 4, v10')
    for gi in range(3):
        for s in range(4):
            r = 96 + 16*gi + 4*s
            a(f'buffer_load_dwordx4 v[{r}:{r+3}], v6, s[20:23], s27 offen offset:{64*s} {cfg.NT}')
        if gi < 2: a('s_add_u32 s27, s27, 4096')
    srd(16, 's14', 's15', WS_SZ)
    a(f's_lshl_b32 s26, s24, 14\ns_lshl_b32 s6, s25, 10\ns_add_u32 s26, s26, s6\ns_lshl_b32 s6, s4, 8\ns_add_u32 s26, s26, s6\ns_add_u32 s26, s26, {OP}')
    a('v_mov_b32 v156, -1\nv_lshlrev_b32 v157, 2, v1')
    a('buffer_store_dword v156, v157, s[16:19], s26 offen sc1')
    a('s_lshr_b32 s6, s24, 3\ns_lshl_b32 s6, s6, 4')
    a('v_and_b32 v12, 3, v15\nv_lshlrev_b32 v12, 9, v12\nv_lshl_add_u32 v12, v7, 5, v12\nv_add_u32 v12, s6, v12')
    a(f's_and_b32 s7, s24, 7\ns_lshl_b32 s6, s7, 11\ns_add_u32 s27, s6, {QO}')
    a('s_waitcnt vmcnt(25)')
    p0_check('v158', 'v159')
    qloads = [f'buffer_load_dwordx4 v[{16+4*s}:{19+4*s}], v12, s[16:19], s27 offen offset:{128*s} sc1' for s in range(4)]
    for x in qloads: a(x)
    stamp(1)
    a('s_barrier')
    a(f's_mul_i32 s28, s4, {KW}')
    a('v_and_b32 v11, 3, v15\nv_xor_b32 v11, v11, v7')
    a('v_lshl_add_u32 v11, v9, 2, v11')
    a('v_lshl_add_u32 v11, v11, 4, v10\nv_add_u32 v8, s28, v11')
    for s in (1, 2, 3): a(f'v_xor_b32 v{8+s}, {64*s}, v8')
    a(f's_mul_i32 s6, s4, 1536\ns_add_u32 s6, s6, {PREG}')
    a('v_lshrrev_b32 v13, 3, v15\nv_lshlrev_b32 v13, 8, v13')
    a('v_and_b32 v14, 3, v15\nv_lshl_add_u32 v13, v14, 6, v13\nv_lshl_add_u32 v13, v7, 4, v13')
    a('v_bfe_u32 v14, v15, 2, 1\nv_lshl_add_u32 v13, v14, 3, v13\nv_add_u32 v13, s6, v13')
    for u in range(4):
        a(f's_mov_b32 s{34+2*u}, {0x000F000F << (4*u):#x}\ns_mov_b32 s{35+2*u}, {0x000F000F << (4*u):#x}')
    a('s_cmp_lt_u32 s25, 8\ns_cselect_b32 s6, 0xff00ff00, 0\ns_cmp_eq_u32 s4, 3\ns_cselect_b32 s42, s6, 0\ns_mov_b32 s43, s42')
    stamp(2)
    vpoll(qloads, range(16, 32), 160, first_issued=True)
    stamp(3)
    order = [(u, dd) for u in range(4) for dd in range(3)]
    ldsg = [4*dd+u for (u, dd) in order if 4*dd+u < 9]
    def kread(k):
        gi = ldsg[k]; buf = 64 + 16*(k & 1)
        for s in range(4):
            a(f'ds_read_b128 v[{buf+4*s}:{buf+4*s+3}], v{8+s} offset:{4096*gi}')
    kread(0)
    k = 0
    for (u, dd) in order:
        gi = 4*dd + u
        mq = 32 + 16*(u & 1)
        if u == 0 and dd == 0:
            for r in range(16): a(f'v_cndmask_b32 v{mq+r}, 0, v{16+r}, s[{34+2*u}:{35+2*u}]')
        if gi < 9:
            src = 64 + 16*(k & 1)
            if k + 1 < len(ldsg):
                kread(k + 1); a('s_waitcnt lgkmcnt(4)')
            else:
                a('s_waitcnt lgkmcnt(0)')
            k += 1
        else:
            src = 96 + 16*(gi - 9)
        D = 144 + 4*dd
        for s in range(4):
            c = '0' if (u == 0 and s == 0) else f'v[{D}:{D+3}]'
            a(f'v_mfma_f32_16x16x32_bf16 v[{D}:{D+3}], v[{src+4*s}:{src+4*s+3}], v[{mq+4*s}:{mq+4*s+3}], {c}')
            if u < 3 and dd < 2:
                mq2 = 32 + 16*((u+1) & 1)
                for r in (8*dd + 2*s, 8*dd + 2*s + 1):
                    a(f'v_cndmask_b32 v{mq2+r}, 0, v{16+r}, s[{36+2*u}:{37+2*u}]')
    a('v_mov_b32 v160, 0xff800000')
    for r in range(4): a(f'v_cndmask_b32 v{152+r}, v{152+r}, v160, s[42:43]')
    a('v_max3_f32 v156, v144, v145, v146\nv_max3_f32 v157, v147, v148, v149')
    a('v_max3_f32 v158, v150, v151, v152\nv_max3_f32 v159, v153, v154, v155')
    a('v_max3_f32 v156, v156, v157, v158\nv_max_f32 v156, v156, v159')
    def xreduce(op, r, t):
        a(f'{op}_dpp v{r}, v{r}, v{r} row_ror:4 row_mask:0xf bank_mask:0xf')
        a(f'{op}_dpp v{r}, v{r}, v{r} row_ror:8 row_mask:0xf bank_mask:0xf')
        a(f'v_mov_b32 v{t}, v{r}\nv_permlane16_swap_b32 v{r}, v{t}\n{op} v{r}, v{r}, v{t}')
        a(f'v_mov_b32 v{t}, v{r}\nv_permlane32_swap_b32 v{r}, v{t}\n{op} v{r}, v{r}, v{t}')
    xreduce('v_max_f32', 156, 157)
    a(f's_mov_b32 s6, {f2u(128**-0.5 * LOG2E)}')
    a('v_mul_f32 v158, s6, v156')
    for r in range(12): a(f'v_fma_f32 v{144+r}, v{144+r}, s6, -v158')
    for r in range(12): a(f'v_exp_f32 v{144+r}, v{144+r}')
    for dd in range(3):
        D = 144 + 4*dd
        a(f'v_cvt_pk_bf16_f32 v{32+2*dd}, v{D}, v{D+1}\nv_cvt_pk_bf16_f32 v{33+2*dd}, v{D+2}, v{D+3}')
        a(f'ds_write_b64 v13, v[{32+2*dd}:{33+2*dd}] offset:{512*dd}')
    a('v_add_f32 v159, v144, v145')
    for r in range(2, 12): a(f'v_add_f32 v159, v159, v{144+r}')
    xreduce('v_add_f32', 159, 157)
    a(f's_lshl_b32 s6, s4, 5\ns_add_u32 s6, s6, {ST}')
    a('v_lshl_add_u32 v14, v1, 3, s6')
    a('s_mov_b64 exec, 15\nds_write_b64 v14, v[158:159]\ns_mov_b64 exec, -1')
    a('s_waitcnt lgkmcnt(0)')
    stamp(4)
    a('s_barrier')
    stamp(5)
    a(f's_lshl_b32 s6, s4, 3\ns_add_u32 s6, s6, {ST}\nv_mov_b32 v14, s6')
    for w in range(4): a(f'ds_read_b64 v[{16+2*w}:{17+2*w}], v14 offset:{32*w}')
    a('v_lshrrev_b32 v2, 2, v1\nv_lshrrev_b32 v3, 4, v1\nv_add_u32 v3, v3, v1\nv_and_b32 v3, 3, v3')
    a('v_lshlrev_b32 v2, 5, v2\nv_lshl_add_u32 v2, v3, 3, v2')
    a(f's_lshl_b32 s6, s4, 9\ns_add_u32 s6, s6, {SCR}\nv_add_u32 v2, s6, v2')
    a('s_waitcnt lgkmcnt(0)')
    a('v_max3_f32 v24, v16, v18, v20\nv_max_f32 v24, v24, v22')
    for w in range(4): a(f'v_sub_f32 v{25+w}, v{16+2*w}, v24')
    for w in range(4): a(f'v_exp_f32 v{25+w}, v{25+w}')
    a('v_mul_f32 v29, v25, v17\nv_fmac_f32 v29, v26, v19\nv_fmac_f32 v29, v27, v21\nv_fmac_f32 v29, v28, v23')
    a('v_log_f32 v30, v29\nv_rcp_f32 v31, v29')
    a('v_add_f32 v30, v30, v24')
    a(f's_lshl_b32 s6, s24, 8\ns_lshl_b32 s7, s25, 4\ns_add_u32 s6, s6, s7\ns_lshl_b32 s7, s4, 2\ns_add_u32 s6, s6, s7\ns_add_u32 s6, s6, {LSE}')
    a('v_mov_b32 v3, 0')
    a('s_mov_b64 exec, 1\nbuffer_store_dword v30, v3, s[16:19], s6 offen sc1\ns_mov_b64 exec, -1')
    for w in range(4): a(f'v_mul_f32 v{32+2*w}, v{25+w}, v31\nv_mul_f32 v{33+2*w}, v{25+w}, v31')
    a('v_lshlrev_b32 v3, 2, v1')
    a('s_barrier')
    stamp(6)
    for v in range(8): a(f'ds_read_b64 v[{48+2*v}:{49+2*v}], v2 offset:{2048*v}')
    for v in range(8):
        a(f's_waitcnt lgkmcnt({7-v})')
        g = 32 + 2*(v >> 1)
        if v < 2: a(f'v_pk_mul_f32 v[{40+2*v}:{41+2*v}], v[{48+2*v}:{49+2*v}], v[{g}:{g+1}]')
        else: a(f'v_pk_fma_f32 v[{40+2*(v&1)}:{41+2*(v&1)}], v[{48+2*v}:{49+2*v}], v[{g}:{g+1}], v[{40+2*(v&1)}:{41+2*(v&1)}]')
    a('v_pk_add_f32 v[40:41], v[40:41], v[42:43]')
    a('v_cvt_pk_bf16_f32 v40, v40, v41')
    a('buffer_store_dword v40, v3, s[16:19], s26 offen sc1')
    stamp(7)
    if cfg.stamps:
        a('s_cmp_lg_u32 s4, 0\ns_cbranch_scc1 L_end')
        stamps_out(8, 0)
    a('s_endpgm')

    a('L_vwave:')
    a('s_sub_u32 s4, s4, 4')
    a('v_lshlrev_b32 v2, 4, v1')
    a(f'v_mov_b32 v16, 0\nv_mov_b32 v17, 0\nv_mov_b32 v18, 0\nv_mov_b32 v19, 0\nv_add_u32 v9, {ZERO}, v2')
    a('s_mov_b32 exec_lo, -1\ns_mov_b32 exec_hi, 3\nds_write_b128 v9, v[16:19]\ns_mov_b64 exec, -1')
    a(f's_mul_i32 s7, s4, 768\ns_add_u32 s7, s7, {PREG}')
    a('v_and_b32 v9, 3, v1\nv_lshlrev_b32 v9, 6, v9\nv_lshrrev_b32 v10, 4, v1\nv_lshl_add_u32 v9, v10, 4, v9\nv_add_u32 v9, s7, v9')
    a(f'v_mov_b32 v11, {ZERO}')
    for x in range(4):
        a(f's_mov_b32 s34, {0x000F000F << (4*x):#x}\ns_mov_b32 s35, s34')
        a(f'v_cndmask_b32 v{3+x}, v11, v9, s[34:35]')
    a('v_and_b32 v7, 15, v1\nv_lshrrev_b32 v8, 2, v7\nv_add_u32 v8, v8, v10\nv_and_b32 v8, 3, v8')
    a('v_lshlrev_b32 v7, 5, v7\nv_lshl_add_u32 v7, v8, 3, v7')
    a(f's_lshl_b32 s7, s4, 11\ns_add_u32 s7, s7, {SCR}\nv_add_u32 v7, s7, v7\nv_add_u32 v8, 1024, v7')
    a('s_mov_b32 s36, 0x05040100\ns_mov_b32 s37, 0x07060302')
    a('s_mul_i32 s27, s4, 24576')
    a('s_waitcnt lgkmcnt(0)')
    a('s_add_u32 s20, s10, s6\ns_addc_u32 s21, s11, 0')
    if cfg.stamps: srd(16, 's14', 's15', WS_SZ)
    a('s_barrier')
    stamp(1)
    for i in range(24):
        r = 72 + 4*i
        a(f'buffer_load_dwordx4 v[{r}:{r+3}], v2, s[20:23], s27 offen offset:{1024*(i&3)} {cfg.NT}')
        if (i & 3) == 3 and i < 23: a('s_add_u32 s27, s27, 4096')
    stamp(2)
    a('s_barrier')
    stamp(3)
    def pread(t):
        buf = 40 + 16*(t & 1)
        for x in range(4): a(f'ds_read_b128 v[{buf+4*x}:{buf+4*x+3}], v{3+x} offset:{256*t}')
    pread(0); pread(1)
    for t in range(3):
        a(f's_waitcnt vmcnt({16-8*t})')
        if t == 2: stamp(4)
        vb = 72 + 32*t; pb = 40 + 16*(t & 1)
        for j in range(8):
            tb = 24 + 4*(j & 3)
            sel = 's37' if (j & 1) else 's36'
            for tt in range(4):
                a(f'v_perm_b32 v{tb+tt}, v{vb + 4*(2*tt+1) + (j>>1)}, v{vb + 4*(2*tt) + (j>>1)}, {sel}')
            if j == 0: a('s_waitcnt lgkmcnt(4)' if t == 0 else 's_waitcnt lgkmcnt(0)')
            if j > 0:
                jj = j - 1; tb2 = 24 + 4*(jj & 3); acc = 16 + 4*(jj & 1); x = jj >> 1
                c = '0' if (t == 0 and jj < 2) else f'v[{acc}:{acc+3}]'
                a(f'v_mfma_f32_16x16x32_bf16 v[{acc}:{acc+3}], v[{pb+4*x}:{pb+4*x+3}], v[{tb2}:{tb2+3}], {c}')
        a(f'v_mfma_f32_16x16x32_bf16 v[20:23], v[{pb+12}:{pb+15}], v[36:39], v[20:23]')
        if t == 0: pread(2)
    for r in range(4):
        ad = 7 + (r >> 1); o = 128*(r & 1)
        a(f'ds_write2_b32 v{ad}, v{16+r}, v{20+r} offset0:{o} offset1:{o+1}')
    a('s_waitcnt lgkmcnt(0)')
    stamp(5)
    a('s_barrier')
    if cfg.stamps:
        a('s_cmp_lg_u32 s4, 0\ns_cbranch_scc1 L_end')
        stamps_out(6, 8)
    a('s_endpgm')

    a('L_spare:')
    a('s_cmp_eq_u32 s4, 9\ns_cbranch_scc1 L_cwarm')
    a('s_cmp_lg_u32 s4, 8\ns_cbranch_scc1 L_end')
    a('s_cmp_lt_u32 s2, 16\ns_cbranch_scc1 L_end')
    a('s_sub_u32 s25, s2, 16')
    a('v_mov_b32 v4, -1\nv_mov_b32 v5, -1\nv_mov_b32 v6, -1\nv_mov_b32 v7, -1')
    a(f's_lshl_b32 s6, s25, 8\ns_add_u32 s6, s6, {WOUT}\nv_lshlrev_b32 v2, 2, v1\nv_add_u32 v2, s6, v2')
    a(f's_lshl_b32 s6, s25, 5\ns_add_u32 s6, s6, {LSE}\nv_lshrrev_b32 v3, 3, v1\nv_lshlrev_b32 v3, 11, v3\nv_and_b32 v8, 7, v1\nv_lshl_add_u32 v3, v8, 2, v3\nv_add_u32 v3, s6, v3')
    a(f's_lshl_b32 s6, s25, 12\ns_add_u32 s6, s6, {MOUT}\nv_lshlrev_b32 v8, 4, v1\nv_add_u32 v8, s6, v8')
    a('s_waitcnt lgkmcnt(0)')
    a('global_store_dword v2, v4, s[14:15] sc1')
    a('s_mov_b64 exec, 0xffff\nglobal_store_dword v3, v4, s[14:15] sc1\ns_mov_b64 exec, -1')
    a('s_cmp_ge_u32 s25, 28\ns_cbranch_scc1 L_sp2')
    for i in range(4): a(f'global_store_dwordx4 v8, v[4:7], s[14:15] offset:{1024*i} sc1')
    a('L_sp2:')
    a('s_waitcnt vmcnt(0)')
    a('s_endpgm')
    a('L_cwarm:')
    if cfg.warm:
        a('s_getpc_b64 s[8:9]\nL_pc:\ns_sub_u32 s8, s8, L_pc-L_stream\ns_subb_u32 s9, s9, 0')
        a('v_lshlrev_b32 v2, 6, v1')
        a('s_mov_b32 s10, L_end-L_stream\ns_mov_b32 s11, 0x20000')
        for i in range(4): a(f's_mov_b32 s6, {4096*i}\nbuffer_load_dword v{4+i}, v2, s[8:11], s6 offen')
        a('s_waitcnt vmcnt(0)')
    a('s_endpgm')

    AT=136; DD=32; Z=36; T=37; F0=40; F1=72; F2=104
    a('L_helper:')
    a('s_load_dwordx2 s[44:45], s[0:1], 0')
    a('s_load_dwordx2 s[50:51], s[0:1], 32')
    a('s_load_dwordx4 s[52:55], s[0:1], 80')
    a('s_lshr_b32 s3, s2, 3\ns_and_b32 s5, s2, 7')
    a('v_lshrrev_b32 v10, 3, v1\nv_and_b32 v11, 3, v1\nv_lshlrev_b32 v11, 1, v11\nv_lshl_add_u32 v10, v10, 3, v11')
    a('v_bfe_u32 v11, v1, 2, 1')
    a('s_lshl_b32 s6, s4, 6\nv_add_u32 v12, s6, v10')
    a('v_lshlrev_b32 v6, 1, v12\nv_lshl_add_u32 v6, v11, 10, v6')
    a(f'v_lshlrev_b32 v9, 2, v12\nv_lshl_add_u32 v9, v11, 11, v9\nv_add_u32 v9, {X1}, v9')
    a(f's_lshr_b32 s6, s4, 2\ns_mul_i32 s6, s6, 576\ns_and_b32 s7, s4, 3\ns_lshl_b32 s7, s7, 7\ns_add_u32 s6, s6, s7\ns_add_u32 s6, s6, {ACT}')
    a('v_mul_u32_u24 v7, 1152, v11\nv_lshl_add_u32 v7, v10, 1, v7\nv_add_u32 v7, s6, v7')
    a('v_lshrrev_b32 v13, 3, v1\nv_lshlrev_b32 v13, 2, v13\nv_lshl_add_u32 v13, v11, 5, v13')
    a(f'v_add_u32 v13, {STAT}, v13')
    a('v_lshrrev_b32 v10, 4, v1\nv_bfe_u32 v11, v1, 2, 2\nv_lshl_add_u32 v3, v10, 3, v11')
    a('v_bfe_u32 v11, v1, 1, 1\nv_lshl_add_u32 v3, v11, 8, v3\nv_lshlrev_b32 v3, 7, v3')
    a('v_bfe_u32 v12, v1, 3, 2\nv_lshl_add_u32 v12, v11, 2, v12\nv_xor_b32 v12, s4, v12\nv_lshl_add_u32 v3, v12, 4, v3')
    a('v_and_b32 v12, 1, v1\nv_lshl_add_u32 v3, v12, 3, v3')
    a(f'v_lshl_add_u32 v4, v12, 1, v11\nv_mul_u32_u24 v4, 576, v4\nv_lshl_add_u32 v4, v10, 4, v4\nv_add_u32 v4, {ACT}, v4')
    a('v_lshlrev_b32 v5, 2, v0')
    a('v_lshrrev_b32 v8, 1, v1\nv_lshlrev_b32 v8, 2, v8\ns_lshl_b32 s6, s4, 5\nv_add_u32 v8, s6, v8')
    a(f'v_mov_b32 v16, 0\nv_lshlrev_b32 v10, 2, v1\nv_add_u32 v10, {STAT}, v10')
    a('s_mov_b32 exec_lo, -1\ns_mov_b32 exec_hi, 0xffff\nds_write_b32 v10, v16\ns_mov_b64 exec, -1')
    a('s_waitcnt lgkmcnt(0)')
    srd(16, 's14', 's15', WS_SZ)

    def tr_u1(F, region):
        if region: a(f'v_add_u32 v10, {region}, v3')
        ad = 'v10' if region else 'v3'
        for s in range(8):
            for hh in range(2):
                a(f'ds_read_b64_tr_b16 v[{F+4*s+2*hh}:{F+4*s+2*hh+1}], {ad} offset:{4096*s + 512*hh}')
    def gemv(F, ad='v4', fill=(), off=0):
        fill = list(fill)
        for s in range(8): a(f'ds_read_b128 v[{AT+4*s}:{AT+4*s+3}], {ad} offset:{64*s+off}')
        per = (len(fill) + 6) // 7
        for s in range(8):
            a(f's_waitcnt lgkmcnt({7-s})')
            c = '0' if s == 0 else f'v[{DD}:{DD+3}]'
            a(f'v_mfma_f32_16x16x32_bf16 v[{DD}:{DD+3}], v[{AT+4*s}:{AT+4*s+3}], v[{F+4*s}:{F+4*s+3}], {c}')
            for _ in range(per):
                if fill: a(fill.pop(0))
        for x in fill: a(x)
    def fold():
        a(f'v_add_f32_dpp v{Z}, v{DD+2}, v{DD} row_ror:8 row_mask:0xf bank_mask:0x3')
        a(f'v_add_f32_dpp v{Z}, v{DD+1}, v{DD+3} row_ror:8 row_mask:0xf bank_mask:0xc')
    def publish(z, voff, soff, srdn=16, flags='sc1'):
        a(f'v_mov_b32_dpp v{T}, v{z} quad_perm:[1,1,3,3] row_mask:0xf bank_mask:0xf')
        a(f's_mov_b64 exec, 0x5555')
        a(f'v_cvt_pk_bf16_f32 v{T}, v{z}, v{T}')
        a(f'buffer_store_dword v{T}, {voff}, s[{srdn}:{srdn+3}], {soff} offen {flags}\ns_mov_b64 exec, -1')
    def unpack(lo, hi, src):
        a(f'v_lshlrev_b32 v{lo}, 16, v{src}\nv_and_b32 v{hi}, 0xffff0000, v{src}')
    def red6(vals, off, TT):
        r01, r23, r45, z = TT
        for r, (e, o) in zip((r01, r23, r45), ((vals[0], vals[1]), (vals[2], vals[3]), (vals[4], vals[5]))):
            a(f'v_add_f32_dpp v{r}, v{e}, v{e} row_ror:8 row_mask:0xf bank_mask:0x3')
        for r, (e, o) in zip((r01, r23, r45), ((vals[0], vals[1]), (vals[2], vals[3]), (vals[4], vals[5]))):
            a(f'v_add_f32_dpp v{r}, v{o}, v{o} row_ror:8 row_mask:0xf bank_mask:0xc')
        a(f'v_permlane16_swap_b32 v{r01}, v{r23}\nv_permlane16_swap_b32 v{r45}, v{z}')
        a(f'v_add_f32 v{r01}, v{r01}, v{r23}\nv_add_f32 v{r45}, v{r45}, v{z}')
        a(f'v_permlane32_swap_b32 v{r01}, v{r45}\nv_add_f32 v{r01}, v{r01}, v{r45}')
        a(f'v_add_f32_dpp v{r01}, v{r01}, v{r01} quad_perm:[1,0,3,2] row_mask:0xf bank_mask:0xf')
        a(f'v_add_f32_dpp v{r01}, v{r01}, v{r01} quad_perm:[2,3,0,1] row_mask:0xf bank_mask:0xf')
        a(f's_mov_b32 exec_lo, 0x11111111\ns_mov_b32 exec_hi, 0x1111\nds_add_f32 v13, v{r01} offset:{off}\ns_mov_b64 exec, -1')

    a('s_cmp_ge_u32 s2, 16\ns_cbranch_scc1 L_bhelp')
    a('global_load_dword v16, v6, s[52:53]')
    p0_load('v14', 'v15')
    stamp(1)
    a('s_waitcnt vmcnt(0)')
    stamp(2)
    unpack(18, 19, 16)
    a(f's_mov_b32 s6, {f2u(-LOG2E)}')
    a('v_mul_f32 v20, s6, v18\nv_mul_f32 v21, s6, v19\nv_exp_f32 v20, v20\nv_exp_f32 v21, v21')
    a('v_add_f32 v20, 1.0, v20\nv_add_f32 v21, 1.0, v21\nv_rcp_f32 v20, v20\nv_rcp_f32 v21, v21')
    a('v_mul_f32 v18, v18, v20\nv_mul_f32 v19, v19, v21\nv_cvt_pk_bf16_f32 v18, v18, v19')
    a('ds_write_b32 v7, v18')
    p0_check('v14', 'v15')
    a('s_waitcnt lgkmcnt(0)\ns_barrier')
    tr_u1(F0, R0)
    gemv(F0); fold()
    a(f's_lshl_b32 s6, s2, 8')
    publish(Z, 'v8', 's6')
    stamp(3)
    a('s_lshl_b32 s24, s2, 8\ns_add_u32 s24, s24, 2048')
    dma_u1('s54', 's55', 512*6144, 6144, 's24', R1)
    a('s_barrier')
    a('s_add_u32 s24, s24, 128')
    dma_u1('s54', 's55', 512*6144, 6144, 's24', R0, setup=False)
    for k, reg in ((0, R1), (1, R0)):
        a(f's_waitcnt vmcnt({8 if k == 0 else 1})\ns_barrier')
        tr_u1(F0, reg)
        gemv(F0); fold()
        a(f's_lshl_b32 s6, s2, 9\ns_add_u32 s6, s6, {(16+k)*256}')
        publish(Z, 'v8', 's6')
    stamp(4)
    if cfg.stamps:
        a('s_cmp_lg_u32 s4, 0\ns_cbranch_scc1 L_end')
        stamps_out(5, 0)
    a('s_endpgm')

    a('L_bhelp:')
    a('s_lshr_b32 s26, s25, 3')
    a('global_load_dword v16, v6, s[44:45]')
    a('s_load_dwordx8 s[52:59], s[0:1], 48')
    a('s_load_dwordx2 s[46:47], s[0:1], 96')
    a('s_lshl_b32 s24, s26, 19\ns_lshl_b32 s6, s5, 7\ns_add_u32 s24, s24, s6')
    dma_u1('s50', 's51', 4096*1024, 1024, 's24', R1)
    p0_load('v22', 'v23')
    a(f's_lshl_b32 s29, s25, 8\ns_add_u32 s29, s29, {WOUT}')
    stamp(1)
    a('s_waitcnt vmcnt(9)')
    unpack(14, 15, 16)
    a('v_add_f32 v18, v14, v15\nv_mul_f32 v19, v14, v14\nv_fmac_f32 v19, v15, v15')
    a('s_barrier')
    red6([18, 19, 18, 19, 18, 19], STAT2 - STAT, (24, 25, 26, 27))
    tr_u1(F1, R0)
    a('s_waitcnt vmcnt(0) lgkmcnt(0)')
    stamp(2)
    p0_check('v22', 'v23')
    mloads = ['buffer_load_dword v16, v5, s[16:19], 0 offen sc1', 'buffer_load_dword v17, v5, s[16:19], 0 offen offset:2048 sc1']
    for x in mloads: a(x)
    a('s_barrier')
    a(f'v_bfe_u32 v10, v1, 2, 1\nv_lshlrev_b32 v10, 5, v10\nv_add_u32 v10, {STAT2}, v10')
    a('ds_read_b64 v[18:19], v10')
    tr_u1(F0, R1)
    a('s_waitcnt lgkmcnt(0)')
    a(f's_mov_b32 s6, {f2u(1/512)}\ns_mov_b32 s7, {f2u(1e-5)}')
    a('v_mul_f32 v18, s6, v18\nv_mul_f32 v19, s6, v19\nv_fma_f32 v19, -v18, v18, v19\nv_add_f32 v19, s7, v19\nv_rsq_f32 v19, v19')
    a('v_sub_f32 v20, v14, v18\nv_sub_f32 v21, v15, v18\nv_mul_f32 v20, v20, v19\nv_mul_f32 v21, v21, v19')
    stamp(3)
    vpoll(mloads, [16, 17], 22, first_issued=True)
    stamp(4)
    unpack(22, 23, 16); unpack(24, 25, 17)
    a('v_add_f32 v24, 1.0, v24\nv_add_f32 v25, 1.0, v25\nv_fma_f32 v20, v20, v24, v22\nv_fma_f32 v21, v21, v25, v23')
    a('v_cvt_pk_bf16_f32 v20, v20, v21\nds_write_b32 v7, v20\ns_waitcnt lgkmcnt(0)\ns_barrier')
    gemv(F1); fold()
    a(f's_lshl_b32 s6, s25, 8\ns_add_u32 s6, s6, {QO}')
    publish(Z, 'v8', 's6')
    stamp(5)
    a('s_cmp_ge_u32 s25, 28\ns_cbranch_scc1 L_qchk')
    a('s_lshl_b32 s24, s25, 7')
    dma_u1('s52', 's53', 512*3584, 3584, 's24', R0)
    srd(20, 's56', 's57', 1792*1024)
    a('s_and_b32 s6, s4, 1\ns_lshl_b32 s6, s6, 7\nv_lshlrev_b32 v2, 4, v1\nv_xor_b32 v2, s6, v2')
    a('v_xor_b32 v10, 32, v2\nv_xor_b32 v11, 64, v2\nv_xor_b32 v12, 96, v2')
    a(f's_lshl_b32 s27, s25, 16\ns_lshl_b32 s28, s4, 13\ns_add_u32 s27, s27, s28\ns_add_u32 s28, s28, {R1}')
    for hh in range(2):
        a('s_mov_b32 m0, s28')
        for i in range(4): a(f'buffer_load_dwordx4 v{(2,10,11,12)[i]}, s[20:23], s27 offen offset:{1024*i} {cfg.NT} lds')
        if hh == 0: a('s_add_u32 s27, s27, 4096\ns_add_u32 s28, s28, 4096')
    stamp(6)
    a('v_and_b32 v10, 7, v1\nv_lshlrev_b32 v10, 1, v10')
    a('s_and_b32 s6, s25, 7\ns_lshl_b32 s6, s6, 7\ns_lshl_b32 s7, s4, 4\ns_add_u32 s6, s6, s7')
    a('v_add_u32 v11, s6, v10\nglobal_load_ushort v39, v11, s[58:59]')
    a('s_lshl_b32 s6, s25, 7\ns_add_u32 s6, s6, s7')
    a('v_add_u32 v11, s6, v10\nglobal_load_ushort v25, v11, s[54:55]')
    a('v_bfe_u32 v11, v1, 1, 3\nv_lshlrev_b32 v11, 2, v11')
    a(f's_and_b32 s6, s25, 7\ns_lshl_b32 s6, s6, 8\ns_lshl_b32 s7, s4, 5\ns_add_u32 s6, s6, s7\ns_add_u32 s7, s6, {40*256}')
    a(f's_mov_b32 s6, {16*256}\ns_mov_b32 s27, {32*256}')
    vpoll([f'buffer_load_dword v{AT}, v5, s[16:19], s6 offen sc1', f'buffer_load_dword v{AT+1}, v5, s[16:19], s6 offen offset:2048 sc1',
           f'buffer_load_dword v{AT+2}, v5, s[16:19], s27 offen sc1', 'buffer_load_dword v38, v11, s[16:19], s7 offen sc1'],
          [AT, AT+1, AT+2, 38], AT+3, sleep=1)
    a('s_barrier')
    stamp(7)
    tr_u1(F1, R0)
    a('v_lshrrev_b32 v10, 4, v1\nv_bfe_u32 v11, v1, 2, 2\nv_lshl_add_u32 v10, v10, 3, v11\nv_lshlrev_b32 v10, 10, v10')
    a(f'v_and_b32 v11, 3, v1\nv_lshl_add_u32 v10, v11, 3, v10\nv_add_u32 v10, {R1}, v10')
    a('v_bfe_u32 v11, v1, 2, 3\nv_lshlrev_b32 v11, 5, v11\ns_lshl_b32 s6, s4, 7\nv_xor_b32 v11, s6, v11')
    for cg in range(4):
        a(f'v_xor_b32 v12, {32*cg}, v11\nv_add_u32 v{DD+cg}, v10, v12')
    for cg in range(4):
        for s in range(2):
            for hh in range(2):
                r = F2 + (cg*2 + s)*4 + 2*hh
                a(f'ds_read_b64_tr_b16 v[{r}:{r+1}], v{DD+cg} offset:{32768*s + 4096*hh}')
    a('v_and_b32 v10, 1, v1\nv_cmp_eq_u32 vcc, 1, v10\nv_lshlrev_b32 v10, 16, v38\nv_and_b32 v38, 0xffff0000, v38\nv_cndmask_b32 v38, v10, v38, vcc')
    a('v_lshlrev_b32 v39, 16, v39\nv_lshlrev_b32 v25, 16, v25')
    unpack(16, 17, AT); unpack(20, 21, AT+1); unpack(18, 19, AT+2)
    a(f'v_add_f32 v18, 1.0, v18\nv_add_f32 v19, 1.0, v19\nv_cvt_pk_bf16_f32 v{AT+2}, v18, v19')
    unpack(18, 19, AT+2)
    a(f'v_mov_b32 v{AT+3}, 0x3f803f80')
    a(f'ds_write_b32 v7, v{AT+2} offset:{ACT3-ACT}\nds_write_b32 v7, v{AT+1} offset:{ACT3-ACT+2304}\nds_write_b32 v7, v{AT+3} offset:{ACT3-ACT+4608}')
    t = AT + 4
    a(f'v_add_f32 v{t}, v18, v19\nv_mul_f32 v{t+1}, v18, v18\nv_fmac_f32 v{t+1}, v19, v19')
    a(f'v_mul_f32 v{t+2}, v18, v20\nv_fmac_f32 v{t+2}, v19, v21\nv_add_f32 v{t+3}, v20, v21')
    a(f'v_mul_f32 v{t+4}, v20, v20\nv_fmac_f32 v{t+4}, v21, v21')
    red6([t, t+1, t+2, t+3, t+4, t+4], STAT3 - STAT, (t+6, t+7, t+8, t+9))
    a('s_waitcnt lgkmcnt(0)\ns_barrier')
    a(f'v_bfe_u32 v10, v1, 2, 2\nv_min_u32 v10, 2, v10\nv_mul_u32_u24 v10, 2304, v10\nv_add_u32 v10, v10, v4\nv_add_u32 v10, {ACT3-ACT}, v10')
    gemv(F1, 'v10'); fold()
    a(f's_lshl_b32 s6, s4, 8\ns_add_u32 s6, s6, {X1}\nv_lshl_add_u32 v10, v1, 2, s6\nds_write_b32 v10, v{Z}')
    a('v_and_b32 v10, 15, v1\nv_lshl_add_u32 v10, v10, 2, s6\ns_waitcnt lgkmcnt(0)')
    a('ds_read_b32 v22, v10\nds_read_b32 v23, v10 offset:64\nds_read_b32 v24, v10 offset:128')
    a(f'v_bfe_u32 v10, v1, 3, 1\nv_lshlrev_b32 v10, 5, v10\nv_add_u32 v10, {STAT3}, v10')
    a('ds_read_b128 v[26:29], v10\nds_read_b32 v30, v10 offset:16')
    a('s_waitcnt lgkmcnt(0)\ns_barrier')
    stamp(8)

    a('L_qchk:')
    for k in range(4): a(f's_mov_b32 s{60+k}, {QO + 4096*k}')
    vpoll([f'buffer_load_dword v{AT+k}, v5, s[16:19], s{60+(k>>1)} offen offset:{2048*(k&1)} sc1' for k in range(8)], [AT+k for k in range(8)], AT+8, sleep=1)
    a('s_barrier')
    a('L_wstage:')
    a('s_lshr_b32 s6, s4, 2\ns_and_b32 s7, s4, 3')
    a('s_lshl_b32 s24, s6, 3\ns_add_u32 s24, s24, s26')
    a(f's_lshl_b32 s27, s24, 8\ns_lshl_b32 s28, s7, 2\ns_add_u32 s27, s27, s28\ns_add_u32 s27, s27, {LSE}')
    a(f's_lshl_b32 s60, s24, 14\ns_lshl_b32 s28, s7, 8\ns_add_u32 s60, s60, s28\ns_add_u32 s60, s60, {OP}')
    a('s_add_u32 s61, s60, 4096\ns_add_u32 s62, s60, 8192')
    a(f's_lshr_b32 s28, s4, 1\ns_mul_i32 s28, s28, 576\ns_and_b32 s7, s7, 1\ns_lshl_b32 s7, s7, 8\ns_add_u32 s28, s28, s7\ns_add_u32 s28, s28, {ACT}')
    a('v_lshlrev_b32 v2, 2, v1\nv_add_u32 v31, s28, v2')
    a(f'v_lshlrev_b32 v10, 4, v1\nv_mov_b32 v{AT}, 0xff800000')
    a('s_mov_b64 exec, 0x7ff')
    vpoll([f'buffer_load_dword v{AT}, v10, s[16:19], s27 offen sc1'], [AT], None, sleep=1)
    a('s_mov_b64 exec, -1')
    stamp(9)
    a(f'v_mov_b32 v{AT+1}, v{AT}')
    for r in (1, 2, 4, 8): a(f'v_max_f32_dpp v{AT+1}, v{AT+1}, v{AT+1} row_ror:{r} row_mask:0xf bank_mask:0xf')
    a(f'v_sub_f32 v{AT}, v{AT}, v{AT+1}\nv_exp_f32 v{AT}, v{AT}\nv_mov_b32 v{AT+1}, v{AT}')
    for r in (1, 2, 4, 8): a(f'v_add_f32_dpp v{AT+1}, v{AT+1}, v{AT+1} row_ror:{r} row_mask:0xf bank_mask:0xf')
    a(f'v_rcp_f32 v{AT+1}, v{AT+1}\nv_mul_f32 v{AT}, v{AT}, v{AT+1}')
    for c in range(11): a(f'v_readlane_b32 s{34+c}, v{AT}, {c}')
    vpoll([f'buffer_load_dword v{AT+c}, v2, s[16:19], s{60+(c>>2)} offen offset:{1024*(c&3)} sc1' for c in range(11)], [AT+c for c in range(11)], AT+12)
    stamp(10)
    if cfg.stamps: a('s_memtime s[76:77]')
    acc = AT + 20
    for c in range(11):
        tq = AT + 12 + 2*(c & 3)
        unpack(tq, tq+1, AT+c)
        sp = 34 + (c & ~1)
        mod = 'op_sel_hi:[1,0,1]' if (c & 1) == 0 else 'op_sel:[0,1,0] op_sel_hi:[1,1,1]'
        mod2 = 'op_sel_hi:[1,0]' if (c & 1) == 0 else 'op_sel:[0,1] op_sel_hi:[1,1]'
        ac = acc + 2*(c & 1)
        if c < 2: a(f'v_pk_mul_f32 v[{ac}:{ac+1}], v[{tq}:{tq+1}], s[{sp}:{sp+1}] {mod2}')
        else: a(f'v_pk_fma_f32 v[{ac}:{ac+1}], v[{tq}:{tq+1}], s[{sp}:{sp+1}], v[{ac}:{ac+1}] {mod}')
    a(f'v_pk_add_f32 v[{acc}:{acc+1}], v[{acc}:{acc+1}], v[{acc+2}:{acc+3}]')
    a(f'v_cvt_pk_bf16_f32 v{acc}, v{acc}, v{acc+1}\nds_write_b32 v31, v{acc}\ns_waitcnt lgkmcnt(0)\ns_barrier')
    gemv(F0); fold()
    publish(Z, 'v8', 's29')
    stamp(11)
    if cfg.stamps: a('s_memtime s[78:79]\ns_waitcnt lgkmcnt(0)\ns_sub_u32 s78, s78, s76\ns_add_u32 s78, s78, s64\ns_mov_b32 s79, s65')
    a('s_cmp_ge_u32 s25, 28\ns_cbranch_scc1 L_hdone')

    a(f'v_bfe_u32 v10, v1, 3, 1\nv_lshlrev_b32 v40, 5, v10\nv_add_u32 v40, {STAT}, v40')
    a(f'v_and_b32 v11, 7, v1\nv_mul_u32_u24 v41, 192, v10\nv_lshl_add_u32 v41, v11, 1, v41\ns_lshl_b32 s6, s4, 4\ns_add_u32 s6, s6, {HID}\nv_add_u32 v41, s6, v41')
    a(f'v_and_b32 v12, 1, v1\nv_mul_u32_u24 v42, 192, v12\nv_lshrrev_b32 v12, 4, v1\nv_lshl_add_u32 v42, v12, 4, v42\nv_add_u32 v42, {HID}, v42')
    a('v_lshlrev_b32 v43, 3, v0')
    a('s_and_b32 s6, s25, 7\ns_lshl_b32 s6, s6, 6\ns_lshl_b32 s7, s4, 3\ns_add_u32 s6, s6, s7\nv_add_u32 v11, s6, v11')
    a('v_lshrrev_b32 v12, 3, v1\nv_lshlrev_b32 v44, 12, v12\nv_lshl_add_u32 v44, v11, 3, v44')
    a('v_add_u32 v45, 0x8000, v44\nv_add_u32 v46, 0x10000, v44\nv_add_u32 v47, 0x18000, v44')
    a(f'v_lshlrev_b32 v48, 11, v10\nv_lshl_add_u32 v48, v11, 2, v48\nv_add_u32 v48, {X1}, v48')
    a('v_lshlrev_b32 v49, 10, v10\nv_lshl_add_u32 v49, v11, 1, v49')
    a(f's_add_u32 s20, s14, {MOUT}\ns_addc_u32 s21, s15, 0\ns_mov_b32 s22, {28*4096}\ns_mov_b32 s23, 0x20000')
    a(f's_lshl_b32 s24, s25, 12')
    a('s_mov_b32 s34, 0xffff0000\ns_mov_b32 s35, 0\ns_mov_b32 s36, 0\ns_mov_b32 s37, 0xffff\ns_mov_b32 s38, 0\ns_mov_b32 s39, 0xffff0000')
    a(f's_mov_b32 s40, {f2u(1/512)}\ns_mov_b32 s41, {f2u(1e-5)}\ns_mov_b32 s42, {f2u(0.044715)}\ns_mov_b32 s43, {f2u(-2*math.sqrt(2/math.pi)*LOG2E)}')
    a(f's_mov_b32 s60, {WOUT}\ns_mov_b32 s61, {WOUT+4096}\ns_mov_b32 s62, {WOUT+8192}\ns_mov_b32 s63, {WOUT+12288}')
    a('v_mov_b32 v50, 0x3f80\nv_mov_b32 v51, 0x3f800000')
    vpoll([f'buffer_load_dword v{AT+k}, v5, s[16:19], s{60+(k>>1)} offen offset:{2048*(k&1)} sc1' for k in range(8)], [AT+k for k in range(8)], AT+8)
    stamp(12)
    s0, s1 = AT+10, AT+11
    a(f'v_dot2_f32_bf16 v{s0}, v{AT}, v50, 0\nv_dot2_f32_bf16 v{s1}, v{AT}, v51, 0')
    for k in range(1, 8): a(f'v_dot2_f32_bf16 v{s0}, v{AT+k}, v50, v{s0}\nv_dot2_f32_bf16 v{s1}, v{AT+k}, v51, v{s1}')
    a('s_nop 2')
    x0, x1, a0, a1 = AT+12, AT+13, AT+14, AT+15
    a(f'v_fma_f32 v{x0}, v16, v{s0}, v14\nv_fma_f32 v{x1}, v17, v{s1}, v15')
    a(f'v_mul_f32 v{a0}, v{x0}, v18\nv_mul_f32 v{a1}, v{x1}, v19')
    a(f'v_cvt_pk_bf16_f32 v{AT}, v{a0}, v{a1}\nds_write_b32 v7, v{AT} offset:{ACT3-ACT}\nds_write_b64 v9, v[{x0}:{x1}]')
    t = AT + 16
    a(f'v_add_f32 v{t}, v{x0}, v{x1}\nv_mul_f32 v{t+1}, v{x0}, v{x0}\nv_add_f32 v{t+2}, v{a0}, v{a1}\nv_mul_f32 v{t+3}, v{a0}, v{a0}')
    a(f'v_mul_f32 v{t+4}, v{a0}, v18\nv_mul_f32 v{t+5}, v{a0}, v20')
    a(f'v_fmac_f32 v{t+1}, v{x1}, v{x1}\nv_fmac_f32 v{t+3}, v{a1}, v{a1}\nv_fmac_f32 v{t+4}, v{a1}, v19\nv_fmac_f32 v{t+5}, v{a1}, v21')
    red6([t, t+1, t+2, t+3, t+4, t+5], 0, (t+6, t+7, t+8, t+9))
    a('s_waitcnt lgkmcnt(0)\ns_barrier')
    a('ds_read_b128 v[52:55], v40\nds_read_b64 v[56:57], v40 offset:16')
    fill = [
        'v_mul_f32 v52, s40, v52', 'v_mul_f32 v53, s40, v53', 'v_fma_f32 v53, -v52, v52, v53', 'v_add_f32 v53, s41, v53',
        'v_rsq_f32 v53, v53', 'v_fma_f32 v54, -v52, v26, v54', 'v_fma_f32 v58, v52, v27, -v56', 'v_sub_f32 v58, v58, v56',
        'v_fma_f32 v55, v52, v58, v55', 'v_fma_f32 v57, -v52, v28, v57', 'v_fma_f32 v54, v53, v54, v29', 'v_mul_f32 v55, v53, v55',
        'v_add_f32 v57, v57, v57', 'v_add_f32 v55, v55, v57', 'v_fma_f32 v55, v53, v55, v30', 'v_mul_f32 v54, s40, v54',
        'v_mul_f32 v55, s40, v55', 'v_fma_f32 v55, -v54, v54, v55', 'v_add_f32 v55, s41, v55', 'v_rsq_f32 v55, v55',
        'v_mul_f32 v52, v52, v53', 'v_fma_f32 v56, -v54, v24, v23', 'v_fma_f32 v56, -v52, v22, v56', 'v_mul_f32 v53, v53, v55',
        'v_fma_f32 v56, v56, v55, v25',
    ]
    gemv(F1, 'v4', fill, ACT3-ACT); fold()
    a(f'v_fma_f32 v{Z}, v{Z}, v53, v56')
    a(f'v_mul_f32 v{T}, v{Z}, v{Z}\nv_fma_f32 v{T}, v{T}, s42, 1.0\nv_mul_f32 v{T}, v{T}, v{Z}\nv_mul_f32 v{T}, s43, v{T}')
    a(f'v_exp_f32 v{T}, v{T}\nv_add_f32 v{T}, 1.0, v{T}\nv_rcp_f32 v{T}, v{T}\nv_mul_f32 v{T}, v{T}, v{Z}')
    a(f'v_cvt_pk_bf16_f32 v{T}, v{T}, v{T}')
    a(f's_mov_b64 exec, 0xffff\nds_write_b16 v41, v{T}\ns_mov_b64 exec, -1')
    a('s_waitcnt lgkmcnt(0)\ns_barrier')
    a(f'ds_read_b128 v[{AT}:{AT+3}], v42\nds_read_b128 v[{AT+4}:{AT+7}], v42 offset:64')
    a(f'ds_read_b32 v52, v48')
    for s in range(2):
        a(f's_waitcnt lgkmcnt({2-s})')
        for cg in range(4):
            ac = AT + 8 + 4*cg; fr = F2 + (cg*2 + s)*4
            c = '0' if s == 0 else f'v[{ac}:{ac+3}]'
            a(f'v_mfma_f32_16x16x32_bf16 v[{ac}:{ac+3}], v[{AT+4*s}:{AT+4*s+3}], v[{fr}:{fr+3}], {c}')
    y = AT + 24
    for r in range(2): a(f'v_cndmask_b32 v{y+r}, v{AT+8+r}, v{AT+12+r}, s[34:35]')
    for r in range(2): a(f'v_cndmask_b32 v{y+r}, v{y+r}, v{AT+16+r}, s[36:37]')
    for r in range(2): a(f'v_cndmask_b32 v{y+r}, v{y+r}, v{AT+20+r}, s[38:39]')
    a(f'buffer_store_dwordx2 v[{y}:{y+1}], v43, s[20:23], s24 offen sc1')
    stamp(13)
    a('s_cmp_ge_u32 s25, 8\ns_cbranch_scc1 L_hdone')
    srd(24, 's46', 's47', 2048)
    vpoll([f'buffer_load_dwordx2 v[{AT+2*i}:{AT+2*i+1}], v{44+i}, s[20:23], 0 offen sc1' for i in range(4)], [AT+k for k in range(8)], AT+8)
    stamp(14)
    a(f'v_pk_add_f32 v[{AT}:{AT+1}], v[{AT}:{AT+1}], v[{AT+2}:{AT+3}]\nv_pk_add_f32 v[{AT+4}:{AT+5}], v[{AT+4}:{AT+5}], v[{AT+6}:{AT+7}]')
    a(f'v_pk_add_f32 v[{AT}:{AT+1}], v[{AT}:{AT+1}], v[{AT+4}:{AT+5}]')
    a(f'v_add_f32_dpp v{Z}, v{AT}, v{AT} row_ror:8 row_mask:0xf bank_mask:0x3')
    a(f'v_add_f32_dpp v{Z}, v{AT+1}, v{AT+1} row_ror:8 row_mask:0xf bank_mask:0xc')
    a(f'v_mov_b32 v{T}, v{Z}\nv_permlane16_swap_b32 v{Z}, v{T}\nv_add_f32 v{Z}, v{Z}, v{T}')
    a(f'v_mov_b32 v{T}, v{Z}\nv_permlane32_swap_b32 v{Z}, v{T}\nv_add_f32 v{Z}, v{Z}, v{T}')
    a(f's_waitcnt lgkmcnt(0)\nv_add_f32 v{Z}, v{Z}, v39\nv_fma_f32 v{Z}, v38, v{Z}, v52')
    publish(Z, 'v49', '0', 24, '')
    stamp(15)
    a('L_hdone:')
    if cfg.stamps:
        a('s_cmp_lg_u32 s4, 0\ns_cbranch_scc1 L_end')
        stamps_out(16, 0)
    a('L_end:')
    a('s_endpgm')
    return wrap(a.finalize(), 256, 768, LDS_TOTAL, 168, sgpr=100)

if __name__ == '__main__':
    out = sys.argv[1]
    for o in sys.argv[2:]:
        k, v = o.split('=')
        setattr(cfg, k, eval(v))
    open(out, 'w').write(gen())
```

```python
import sys, math, struct
from asmlib import *
from gen_common import *

class Cfg:
    stamps = False
    NT = 'nt'
    warm = True
cfg = Cfg()

MOD=0; QO=0x3000; LSE=0x7000; WOUT=0x8000; MOUT=0xC000; OP=0x30000; STMP=0x80000; WS_SZ=0x100000
NP0 = 80
KW=36864; PREG=147456; ZERO=153600; ST=154176; SCR=0; LDS_TOTAL=154624
R0=0; R1=65536; ACT=131072; ACT3=133376; HID=140288; STAT=140672; STAT2=140736; STAT3=140800; X1=141312
LIMIT = 200000
LOG2E = 1.4426950408889634
def f2u(x): return '0x%08x' % struct.unpack('<I', struct.pack('<f', x))[0]

def gen():
    a = Asm()
    uid = [0]
    def lab(p):
        uid[0] += 1; return f'L_{p}_{uid[0]}'
    def stamp(i):
        if cfg.stamps: a(f's_memrealtime s[{64+2*i}:{65+2*i}]')
    def stamps_out(n, base_slot):
        if not cfg.stamps: return
        a('s_waitcnt lgkmcnt(0)')
        a('s_mov_b64 exec, 1')
        a(f's_lshl_b32 s60, s2, 7\ns_add_u32 s60, s60, {STMP + base_slot*8}')
        a('v_mov_b32 v2, 0')
        for i in range(n):
            a(f'v_mov_b32 v4, s{64+2*i}\nv_mov_b32 v5, s{65+2*i}')
            a(f'buffer_store_dwordx2 v[4:5], v2, s[16:19], s60 offen offset:{8*i}')
        a('s_waitcnt vmcnt(0)')
    def srd(d, lo, hi, size):
        a(f's_mov_b32 s{d}, {lo}\ns_mov_b32 s{d+1}, {hi}\ns_mov_b32 s{d+2}, {size}\ns_mov_b32 s{d+3}, 0x20000')
    def p0_load(va, vd):
        a(f'v_and_b32 {va}, 3, v1\nv_lshlrev_b32 {va}, 2, {va}\nglobal_load_dword {vd}, {va}, s[12:13] sc1')
    def p0_check(va, vd):
        l = lab('p0'); d = lab('p0d')
        a('s_mov_b32 s30, 0')
        a(f'{l}:')
        a(f'v_cmp_eq_u32 vcc, 0, {vd}')
        a(f's_cbranch_vccz {d}')
        a(f'global_load_dword {vd}, {va}, s[12:13] sc1')
        a('s_add_u32 s30, s30, 1\ns_waitcnt vmcnt(0)')
        a(f's_cmp_lt_u32 s30, {LIMIT}\ns_cbranch_scc1 {l}')
        a(f'{d}:')
    def chk(regs, tmp):
        rs = list(regs)
        if len(rs) == 1: m = rs[0]
        else:
            m = tmp; first = True
            while rs:
                if first:
                    if len(rs) >= 3: a(f'v_max3_u32 v{tmp}, v{rs[0]}, v{rs[1]}, v{rs[2]}'); rs = rs[3:]
                    else: a(f'v_max_u32 v{tmp}, v{rs[0]}, v{rs[1]}'); rs = rs[2:]
                    first = False
                elif len(rs) >= 2: a(f'v_max3_u32 v{tmp}, v{tmp}, v{rs[0]}, v{rs[1]}'); rs = rs[2:]
                else: a(f'v_max_u32 v{tmp}, v{tmp}, v{rs[0]}'); rs = rs[1:]
        a(f'v_cmp_eq_u32 vcc, -1, v{m}')
    def vpoll(loads, regs, tmp, sleep=0, first_issued=False):
        l = lab('vp'); d = lab('vd'); w = lab('vw')
        a('s_mov_b32 s30, 0')
        if first_issued: a(f's_branch {w}')
        a(f'{l}:')
        for x in loads: a(x)
        if first_issued: a(f'{w}:')
        a('s_add_u32 s30, s30, 1')
        a('s_waitcnt vmcnt(0)')
        chk(regs, tmp)
        a(f's_cbranch_vccz {d}')
        if sleep: a(f's_sleep {sleep}')
        a(f's_cmp_lt_u32 s30, {LIMIT}\ns_cbranch_scc1 {l}')
        a(f'{d}:')
    def dma_u1_setup(RS):
        a('v_bfe_u32 v10, v1, 4, 1\nv_and_b32 v12, 7, v1\nv_xor_b32 v10, v10, v12')
        a('s_and_b32 s27, s4, 4\nv_xor_b32 v10, s27, v10')
        a(f'v_lshrrev_b32 v2, 3, v1\nv_mul_u32_u24 v2, {RS}, v2\nv_xor_b32 v12, 2, v10')
        a('v_lshl_add_u32 v12, v12, 4, v2\nv_lshl_add_u32 v2, v10, 4, v2')
    def dma_u1(lo, hi, size, RS, sbase, region, setup=True):
        if setup: dma_u1_setup(RS)
        srd(20, lo, hi, size)
        a(f's_mul_i32 s27, s4, {64*RS}\ns_add_u32 s27, s27, {sbase}')
        a(f's_lshl_b32 s28, s4, 13')
        if region: a(f's_add_u32 s28, s28, {region}')
        for i in range(8):
            a('s_mov_b32 m0, s28')
            if i < 7: a('s_add_u32 s28, s28, 1024')
            a(f'buffer_load_dwordx4 v{12 if i & 1 else 2}, s[20:23], s27 offen {cfg.NT} lds')
            if i < 7: a(f's_add_u32 s27, s27, {8*RS}')

    a('s_cmp_ge_u32 s2, 256\ns_cbranch_scc1 L_end')
    stamp(0)
    a('v_lshrrev_b32 v1, 6, v0')
    a('s_load_dwordx4 s[12:15], s[0:1], 104')
    a('s_cmp_lt_u32 s2, 80')
    a('v_readfirstlane_b32 s4, v1')
    a('v_and_b32 v1, 63, v0')
    a('s_cbranch_scc0 L_stream')
    a('s_cmp_lt_u32 s4, 8\ns_cbranch_scc1 L_hmain')
    a('s_cmp_ge_u32 s2, 4\ns_cbranch_scc1 L_spare')
    a('s_cmp_lg_u32 s4, 8\ns_cbranch_scc1 L_spare')
    a('v_mov_b32 v4, -1\nv_mov_b32 v5, -1\nv_mov_b32 v6, -1\nv_mov_b32 v7, -1')
    a('s_mul_i32 s6, s2, 7168\nv_lshlrev_b32 v2, 4, v1\nv_add_u32 v2, s6, v2\nv_add_u32 v3, 4096, v2')
    a('s_lshl_b32 s6, s2, 2\nv_mov_b32 v8, s6\nv_mov_b32 v9, 1')
    a('s_waitcnt lgkmcnt(0)')
    for i in range(7):
        a(f'global_store_dwordx4 v{2 + (i >> 2)}, v[4:7], s[14:15] offset:{1024*(i & 3)} sc1')
    a('s_waitcnt vmcnt(0)')
    a('s_mov_b64 exec, 1\nglobal_store_dword v8, v9, s[12:13] sc1')
    a('s_endpgm')
    a('L_hmain:')
    a('s_cmp_lt_u32 s2, 16\ns_cselect_b32 s6, 88, 24')
    a('s_load_dwordx2 s[20:21], s[0:1], s6')
    a('s_mov_b32 s7, 8192\ns_cselect_b32 s7, 6144, s7')
    a('s_cselect_b32 s25, 0, 16\ns_sub_u32 s25, s2, s25')
    a('v_bfe_u32 v10, v1, 4, 1\nv_and_b32 v12, 7, v1\nv_xor_b32 v10, v10, v12')
    a('s_and_b32 s27, s4, 4\nv_xor_b32 v10, s27, v10')
    a('v_lshrrev_b32 v2, 3, v1\nv_mul_u32_u24 v2, s7, v2\nv_xor_b32 v12, 2, v10')
    a('v_lshl_add_u32 v12, v12, 4, v2\nv_lshl_add_u32 v2, v10, 4, v2')
    a('s_lshl_b32 s22, s7, 9\ns_mov_b32 s23, 0x20000')
    a('s_mul_i32 s27, s4, s7\ns_lshl_b32 s27, s27, 6\ns_lshl_b32 s6, s25, 7\ns_add_u32 s27, s27, s6')
    a('s_lshl_b32 s28, s4, 13\ns_lshl_b32 s7, s7, 3\ns_mov_b32 s29, 0')
    a('s_waitcnt lgkmcnt(0)')
    a('L_hdma:')
    a('s_mov_b32 m0, s28\ns_add_u32 s28, s28, 1024')
    a(f'buffer_load_dwordx4 v2, s[20:23], s27 offen {cfg.NT} lds')
    a('s_add_u32 s27, s27, s7\ns_mov_b32 m0, s28\ns_add_u32 s28, s28, 1024')
    a(f'buffer_load_dwordx4 v12, s[20:23], s27 offen {cfg.NT} lds')
    a('s_add_u32 s27, s27, s7\ns_add_u32 s29, s29, 1\ns_cmp_lt_u32 s29, 4\ns_cbranch_scc1 L_hdma')
    a('s_branch L_helper')
    a('L_stream:')
    a('s_load_dwordx4 s[8:11], s[0:1], 8')
    a('s_sub_u32 s6, s2, 80')
    a('s_and_b32 s24, s6, 15\ns_lshr_b32 s25, s6, 4')
    a('s_mul_i32 s6, s25, 23\ns_sub_u32 s7, s25, 8\ns_max_i32 s7, s7, 0\ns_add_u32 s6, s6, s7')
    a('s_lshl_b32 s6, s6, 13\ns_lshl_b32 s7, s24, 21\ns_add_u32 s6, s6, s7')
    a(f's_mov_b32 s22, {23*8192}\ns_cmp_ge_u32 s25, 8\ns_cselect_b32 s22, {24*8192}, s22')
    a('s_mov_b32 s23, 0x20000')
    a('s_cmp_ge_u32 s4, 4\ns_cbranch_scc1 L_vwave')
    a('v_lshrrev_b32 v7, 4, v1')
    a('v_and_b32 v15, 15, v1')
    a('v_lshlrev_b32 v6, 2, v7\nv_xor_b32 v6, v6, v15')
    a('v_lshlrev_b32 v8, 8, v7')
    a('v_lshl_add_u32 v2, v6, 4, v8')
    for t in (1, 2, 3): a(f'v_xor_b32 v{2+t}, {16*t}, v2')
    a(f's_mul_i32 s27, s4, 49152\ns_mul_i32 s28, s4, {KW}')
    a('s_waitcnt lgkmcnt(0)')
    a('s_add_u32 s20, s8, s6\ns_addc_u32 s21, s9, 0')
    a('s_mov_b32 s29, 0\nv_and_b32 v158, 3, v1\nv_lshlrev_b32 v158, 2, v158')
    a('L_kdma:')
    a('s_mov_b32 m0, s28')
    a('s_add_u32 s28, s28, 4096\ns_add_u32 s29, s29, 1')
    for t in range(4):
        a(f'buffer_load_dwordx4 v{2+t}, s[20:23], s27 offen offset:{1024*t} {cfg.NT} lds')
    a('s_add_u32 s27, s27, 4096')
    a('s_cmp_lg_u32 s29, 6\ns_cbranch_scc1 L_kd2')
    a('global_load_dword v159, v158, s[12:13] sc1')
    a('L_kd2:')
    a('s_cmp_lt_u32 s29, 9\ns_cbranch_scc1 L_kdma')
    a('v_and_b32 v6, 3, v15\nv_lshlrev_b32 v6, 2, v6\nv_lshrrev_b32 v9, 2, v15\nv_add_u32 v6, v6, v9')
    a('v_lshlrev_b32 v10, 8, v6')
    a('v_lshl_add_u32 v6, v7, 4, v10')
    for gi in range(3):
        for s in range(4):
            r = 96 + 16*gi + 4*s
            a(f'buffer_load_dwordx4 v[{r}:{r+3}], v6, s[20:23], s27 offen offset:{64*s} {cfg.NT}')
        if gi < 2: a('s_add_u32 s27, s27, 4096')
    srd(16, 's14', 's15', WS_SZ)
    a(f's_lshl_b32 s26, s24, 14\ns_lshl_b32 s6, s25, 10\ns_add_u32 s26, s26, s6\ns_lshl_b32 s6, s4, 8\ns_add_u32 s26, s26, s6\ns_add_u32 s26, s26, {OP}')
    a('v_mov_b32 v156, -1\nv_lshlrev_b32 v157, 2, v1')
    a('buffer_store_dword v156, v157, s[16:19], s26 offen sc1')
    a('s_lshr_b32 s6, s24, 3\ns_lshl_b32 s6, s6, 4')
    a('v_and_b32 v12, 3, v15\nv_lshlrev_b32 v12, 9, v12\nv_lshl_add_u32 v12, v7, 5, v12\nv_add_u32 v12, s6, v12')
    a(f's_and_b32 s7, s24, 7\ns_lshl_b32 s6, s7, 11\ns_add_u32 s27, s6, {QO}')
    a('s_waitcnt vmcnt(25)')
    p0_check('v158', 'v159')
    qloads = [f'buffer_load_dwordx4 v[{16+4*s}:{19+4*s}], v12, s[16:19], s27 offen offset:{128*s} sc1' for s in range(4)]
    for x in qloads: a(x)
    stamp(1)
    a('s_barrier')
    a(f's_mul_i32 s28, s4, {KW}')
    a('v_and_b32 v11, 3, v15\nv_xor_b32 v11, v11, v7')
    a('v_lshl_add_u32 v11, v9, 2, v11')
    a('v_lshl_add_u32 v11, v11, 4, v10\nv_add_u32 v8, s28, v11')
    for s in (1, 2, 3): a(f'v_xor_b32 v{8+s}, {64*s}, v8')
    a(f's_mul_i32 s6, s4, 1536\ns_add_u32 s6, s6, {PREG}')
    a('v_lshrrev_b32 v13, 3, v15\nv_lshlrev_b32 v13, 8, v13')
    a('v_and_b32 v14, 3, v15\nv_lshl_add_u32 v13, v14, 6, v13\nv_lshl_add_u32 v13, v7, 4, v13')
    a('v_bfe_u32 v14, v15, 2, 1\nv_lshl_add_u32 v13, v14, 3, v13\nv_add_u32 v13, s6, v13')
    for u in range(4):
        a(f's_mov_b32 s{34+2*u}, {0x000F000F << (4*u):#x}\ns_mov_b32 s{35+2*u}, {0x000F000F << (4*u):#x}')
    a('s_cmp_lt_u32 s25, 8\ns_cselect_b32 s6, 0xff00ff00, 0\ns_cmp_eq_u32 s4, 3\ns_cselect_b32 s42, s6, 0\ns_mov_b32 s43, s42')
    stamp(2)
    vpoll(qloads, range(16, 32), 160, first_issued=True)
    stamp(3)
    order = [(u, dd) for u in range(4) for dd in range(3)]
    ldsg = [4*dd+u for (u, dd) in order if 4*dd+u < 9]
    def kread(k):
        gi = ldsg[k]; buf = 64 + 16*(k & 1)
        for s in range(4):
            a(f'ds_read_b128 v[{buf+4*s}:{buf+4*s+3}], v{8+s} offset:{4096*gi}')
    kread(0)
    k = 0
    for (u, dd) in order:
        gi = 4*dd + u
        mq = 32 + 16*(u & 1)
        if u == 0 and dd == 0:
            for r in range(16): a(f'v_cndmask_b32 v{mq+r}, 0, v{16+r}, s[{34+2*u}:{35+2*u}]')
        if gi < 9:
            src = 64 + 16*(k & 1)
            if k + 1 < len(ldsg):
                kread(k + 1); a('s_waitcnt lgkmcnt(4)')
            else:
                a('s_waitcnt lgkmcnt(0)')
            k += 1
        else:
            src = 96 + 16*(gi - 9)
        D = 144 + 4*dd
        for s in range(4):
            c = '0' if (u == 0 and s == 0) else f'v[{D}:{D+3}]'
            a(f'v_mfma_f32_16x16x32_bf16 v[{D}:{D+3}], v[{src+4*s}:{src+4*s+3}], v[{mq+4*s}:{mq+4*s+3}], {c}')
            if u < 3 and dd < 2:
                mq2 = 32 + 16*((u+1) & 1)
                for r in (8*dd + 2*s, 8*dd + 2*s + 1):
                    a(f'v_cndmask_b32 v{mq2+r}, 0, v{16+r}, s[{36+2*u}:{37+2*u}]')
    a('v_mov_b32 v160, 0xff800000')
    for r in range(4): a(f'v_cndmask_b32 v{152+r}, v{152+r}, v160, s[42:43]')
    a('v_max3_f32 v156, v144, v145, v146\nv_max3_f32 v157, v147, v148, v149')
    a('v_max3_f32 v158, v150, v151, v152\nv_max3_f32 v159, v153, v154, v155')
    a('v_max3_f32 v156, v156, v157, v158\nv_max_f32 v156, v156, v159')
    def xreduce(op, r, t):
        a(f'{op}_dpp v{r}, v{r}, v{r} row_ror:4 row_mask:0xf bank_mask:0xf')
        a(f'{op}_dpp v{r}, v{r}, v{r} row_ror:8 row_mask:0xf bank_mask:0xf')
        a(f'v_mov_b32 v{t}, v{r}\nv_permlane16_swap_b32 v{r}, v{t}\n{op} v{r}, v{r}, v{t}')
        a(f'v_mov_b32 v{t}, v{r}\nv_permlane32_swap_b32 v{r}, v{t}\n{op} v{r}, v{r}, v{t}')
    xreduce('v_max_f32', 156, 157)
    a(f's_mov_b32 s6, {f2u(128**-0.5 * LOG2E)}')
    a('v_mul_f32 v158, s6, v156')
    for r in range(12): a(f'v_fma_f32 v{144+r}, v{144+r}, s6, -v158')
    for r in range(12): a(f'v_exp_f32 v{144+r}, v{144+r}')
    for dd in range(3):
        D = 144 + 4*dd
        a(f'v_cvt_pk_bf16_f32 v{32+2*dd}, v{D}, v{D+1}\nv_cvt_pk_bf16_f32 v{33+2*dd}, v{D+2}, v{D+3}')
        a(f'ds_write_b64 v13, v[{32+2*dd}:{33+2*dd}] offset:{512*dd}')
    a('v_add_f32 v159, v144, v145')
    for r in range(2, 12): a(f'v_add_f32 v159, v159, v{144+r}')
    xreduce('v_add_f32', 159, 157)
    a(f's_lshl_b32 s6, s4, 5\ns_add_u32 s6, s6, {ST}')
    a('v_lshl_add_u32 v14, v1, 3, s6')
    a('s_mov_b64 exec, 15\nds_write_b64 v14, v[158:159]\ns_mov_b64 exec, -1')
    a('s_waitcnt lgkmcnt(0)')
    stamp(4)
    a('s_barrier')
    stamp(5)
    a(f's_lshl_b32 s6, s4, 3\ns_add_u32 s6, s6, {ST}\nv_mov_b32 v14, s6')
    for w in range(4): a(f'ds_read_b64 v[{16+2*w}:{17+2*w}], v14 offset:{32*w}')
    a('v_lshrrev_b32 v2, 2, v1\nv_lshrrev_b32 v3, 4, v1\nv_add_u32 v3, v3, v1\nv_and_b32 v3, 3, v3')
    a('v_lshlrev_b32 v2, 5, v2\nv_lshl_add_u32 v2, v3, 3, v2')
    a(f's_lshl_b32 s6, s4, 9\ns_add_u32 s6, s6, {SCR}\nv_add_u32 v2, s6, v2')
    a('s_waitcnt lgkmcnt(0)')
    a('v_max3_f32 v24, v16, v18, v20\nv_max_f32 v24, v24, v22')
    for w in range(4): a(f'v_sub_f32 v{25+w}, v{16+2*w}, v24')
    for w in range(4): a(f'v_exp_f32 v{25+w}, v{25+w}')
    a('v_mul_f32 v29, v25, v17\nv_fmac_f32 v29, v26, v19\nv_fmac_f32 v29, v27, v21\nv_fmac_f32 v29, v28, v23')
    a('v_log_f32 v30, v29\nv_rcp_f32 v31, v29')
    a('v_add_f32 v30, v30, v24')
    a(f's_lshl_b32 s6, s24, 8\ns_lshl_b32 s7, s25, 4\ns_add_u32 s6, s6, s7\ns_lshl_b32 s7, s4, 2\ns_add_u32 s6, s6, s7\ns_add_u32 s6, s6, {LSE}')
    a('v_mov_b32 v3, 0')
    a('s_mov_b64 exec, 1\nbuffer_store_dword v30, v3, s[16:19], s6 offen sc1\ns_mov_b64 exec, -1')
    for w in range(4): a(f'v_mul_f32 v{32+2*w}, v{25+w}, v31\nv_mul_f32 v{33+2*w}, v{25+w}, v31')
    a('v_lshlrev_b32 v3, 2, v1')
    a('s_barrier')
    stamp(6)
    for v in range(8): a(f'ds_read_b64 v[{48+2*v}:{49+2*v}], v2 offset:{2048*v}')
    for v in range(8):
        a(f's_waitcnt lgkmcnt({7-v})')
        g = 32 + 2*(v >> 1)
        if v < 2: a(f'v_pk_mul_f32 v[{40+2*v}:{41+2*v}], v[{48+2*v}:{49+2*v}], v[{g}:{g+1}]')
        else: a(f'v_pk_fma_f32 v[{40+2*(v&1)}:{41+2*(v&1)}], v[{48+2*v}:{49+2*v}], v[{g}:{g+1}], v[{40+2*(v&1)}:{41+2*(v&1)}]')
    a('v_pk_add_f32 v[40:41], v[40:41], v[42:43]')
    a('v_cvt_pk_bf16_f32 v40, v40, v41')
    a('buffer_store_dword v40, v3, s[16:19], s26 offen sc1')
    stamp(7)
    if cfg.stamps:
        a('s_cmp_lg_u32 s4, 0\ns_cbranch_scc1 L_end')
        stamps_out(8, 0)
    a('s_endpgm')

    a('L_vwave:')
    a('s_sub_u32 s4, s4, 4')
    a('v_lshlrev_b32 v2, 4, v1')
    a(f'v_mov_b32 v16, 0\nv_mov_b32 v17, 0\nv_mov_b32 v18, 0\nv_mov_b32 v19, 0\nv_add_u32 v9, {ZERO}, v2')
    a('s_mov_b32 exec_lo, -1\ns_mov_b32 exec_hi, 3\nds_write_b128 v9, v[16:19]\ns_mov_b64 exec, -1')
    a(f's_mul_i32 s7, s4, 768\ns_add_u32 s7, s7, {PREG}')
    a('v_and_b32 v9, 3, v1\nv_lshlrev_b32 v9, 6, v9\nv_lshrrev_b32 v10, 4, v1\nv_lshl_add_u32 v9, v10, 4, v9\nv_add_u32 v9, s7, v9')
    a(f'v_mov_b32 v11, {ZERO}')
    for x in range(4):
        a(f's_mov_b32 s34, {0x000F000F << (4*x):#x}\ns_mov_b32 s35, s34')
        a(f'v_cndmask_b32 v{3+x}, v11, v9, s[34:35]')
    a('v_and_b32 v7, 15, v1\nv_lshrrev_b32 v8, 2, v7\nv_add_u32 v8, v8, v10\nv_and_b32 v8, 3, v8')
    a('v_lshlrev_b32 v7, 5, v7\nv_lshl_add_u32 v7, v8, 3, v7')
    a(f's_lshl_b32 s7, s4, 11\ns_add_u32 s7, s7, {SCR}\nv_add_u32 v7, s7, v7\nv_add_u32 v8, 1024, v7')
    a('s_mov_b32 s36, 0x05040100\ns_mov_b32 s37, 0x07060302')
    a('s_mul_i32 s27, s4, 24576')
    a('s_waitcnt lgkmcnt(0)')
    a('s_add_u32 s20, s10, s6\ns_addc_u32 s21, s11, 0')
    if cfg.stamps: srd(16, 's14', 's15', WS_SZ)
    a('s_barrier')
    stamp(1)
    for i in range(24):
        r = 72 + 4*i
        a(f'buffer_load_dwordx4 v[{r}:{r+3}], v2, s[20:23], s27 offen offset:{1024*(i&3)} {cfg.NT}')
        if (i & 3) == 3 and i < 23: a('s_add_u32 s27, s27, 4096')
    stamp(2)
    a('s_barrier')
    stamp(3)
    def pread(t):
        buf = 40 + 16*(t & 1)
        for x in range(4): a(f'ds_read_b128 v[{buf+4*x}:{buf+4*x+3}], v{3+x} offset:{256*t}')
    pread(0); pread(1)
    for t in range(3):
        a(f's_waitcnt vmcnt({16-8*t})')
        if t == 2: stamp(4)
        vb = 72 + 32*t; pb = 40 + 16*(t & 1)
        for j in range(8):
            tb = 24 + 4*(j & 3)
            sel = 's37' if (j & 1) else 's36'
            for tt in range(4):
                a(f'v_perm_b32 v{tb+tt}, v{vb + 4*(2*tt+1) + (j>>1)}, v{vb + 4*(2*tt) + (j>>1)}, {sel}')
            if j == 0: a('s_waitcnt lgkmcnt(4)' if t == 0 else 's_waitcnt lgkmcnt(0)')
            if j > 0:
                jj = j - 1; tb2 = 24 + 4*(jj & 3); acc = 16 + 4*(jj & 1); x = jj >> 1
                c = '0' if (t == 0 and jj < 2) else f'v[{acc}:{acc+3}]'
                a(f'v_mfma_f32_16x16x32_bf16 v[{acc}:{acc+3}], v[{pb+4*x}:{pb+4*x+3}], v[{tb2}:{tb2+3}], {c}')
        a(f'v_mfma_f32_16x16x32_bf16 v[20:23], v[{pb+12}:{pb+15}], v[36:39], v[20:23]')
        if t == 0: pread(2)
    for r in range(4):
        ad = 7 + (r >> 1); o = 128*(r & 1)
        a(f'ds_write2_b32 v{ad}, v{16+r}, v{20+r} offset0:{o} offset1:{o+1}')
    a('s_waitcnt lgkmcnt(0)')
    stamp(5)
    a('s_barrier')
    if cfg.stamps:
        a('s_cmp_lg_u32 s4, 0\ns_cbranch_scc1 L_end')
        stamps_out(6, 8)
    a('s_endpgm')

    a('L_spare:')
    a('s_cmp_eq_u32 s4, 9\ns_cbranch_scc1 L_cwarm')
    a('s_cmp_lg_u32 s4, 8\ns_cbranch_scc1 L_end')
    a('s_cmp_lt_u32 s2, 16\ns_cbranch_scc1 L_end')
    a('s_sub_u32 s25, s2, 16')
    a('v_mov_b32 v4, -1\nv_mov_b32 v5, -1\nv_mov_b32 v6, -1\nv_mov_b32 v7, -1')
    a(f's_lshl_b32 s6, s25, 8\ns_add_u32 s6, s6, {WOUT}\nv_lshlrev_b32 v2, 2, v1\nv_add_u32 v2, s6, v2')
    a(f's_lshl_b32 s6, s25, 5\ns_add_u32 s6, s6, {LSE}\nv_lshrrev_b32 v3, 3, v1\nv_lshlrev_b32 v3, 11, v3\nv_and_b32 v8, 7, v1\nv_lshl_add_u32 v3, v8, 2, v3\nv_add_u32 v3, s6, v3')
    a(f's_lshl_b32 s6, s25, 12\ns_add_u32 s6, s6, {MOUT}\nv_lshlrev_b32 v8, 4, v1\nv_add_u32 v8, s6, v8')
    a('s_waitcnt lgkmcnt(0)')
    a('global_store_dword v2, v4, s[14:15] sc1')
    a('s_mov_b64 exec, 0xffff\nglobal_store_dword v3, v4, s[14:15] sc1\ns_mov_b64 exec, -1')
    a('s_cmp_ge_u32 s25, 28\ns_cbranch_scc1 L_sp2')
    for i in range(4): a(f'global_store_dwordx4 v8, v[4:7], s[14:15] offset:{1024*i} sc1')
    a('L_sp2:')
    a('s_waitcnt vmcnt(0)')
    a('s_endpgm')
    a('L_cwarm:')
    if cfg.warm:
        a('s_getpc_b64 s[8:9]\nL_pc:\ns_sub_u32 s8, s8, L_pc-L_stream\ns_subb_u32 s9, s9, 0')
        a('v_lshlrev_b32 v2, 6, v1')
        a('s_mov_b32 s10, L_end-L_stream\ns_mov_b32 s11, 0x20000')
        for i in range(4): a(f's_mov_b32 s6, {4096*i}\nbuffer_load_dword v{4+i}, v2, s[8:11], s6 offen')
        a('s_waitcnt vmcnt(0)')
    a('s_endpgm')

    AT=136; DD=32; Z=36; T=37; F0=40; F1=72; F2=104
    a('L_helper:')
    a('s_load_dwordx2 s[44:45], s[0:1], 0')
    a('s_load_dwordx2 s[50:51], s[0:1], 32')
    a('s_load_dwordx4 s[52:55], s[0:1], 80')
    a('s_lshr_b32 s3, s2, 3\ns_and_b32 s5, s2, 7')
    a('v_lshrrev_b32 v10, 3, v1\nv_and_b32 v11, 3, v1\nv_lshlrev_b32 v11, 1, v11\nv_lshl_add_u32 v10, v10, 3, v11')
    a('v_bfe_u32 v11, v1, 2, 1')
    a('s_lshl_b32 s6, s4, 6\nv_add_u32 v12, s6, v10')
    a('v_lshlrev_b32 v6, 1, v12\nv_lshl_add_u32 v6, v11, 10, v6')
    a(f'v_lshlrev_b32 v9, 2, v12\nv_lshl_add_u32 v9, v11, 11, v9\nv_add_u32 v9, {X1}, v9')
    a(f's_lshr_b32 s6, s4, 2\ns_mul_i32 s6, s6, 576\ns_and_b32 s7, s4, 3\ns_lshl_b32 s7, s7, 7\ns_add_u32 s6, s6, s7\ns_add_u32 s6, s6, {ACT}')
    a('v_mul_u32_u24 v7, 1152, v11\nv_lshl_add_u32 v7, v10, 1, v7\nv_add_u32 v7, s6, v7')
    a('v_lshrrev_b32 v13, 3, v1\nv_lshlrev_b32 v13, 2, v13\nv_lshl_add_u32 v13, v11, 5, v13')
    a(f'v_add_u32 v13, {STAT}, v13')
    a('v_lshrrev_b32 v10, 4, v1\nv_bfe_u32 v11, v1, 2, 2\nv_lshl_add_u32 v3, v10, 3, v11')
    a('v_bfe_u32 v11, v1, 1, 1\nv_lshl_add_u32 v3, v11, 8, v3\nv_lshlrev_b32 v3, 7, v3')
    a('v_bfe_u32 v12, v1, 3, 2\nv_lshl_add_u32 v12, v11, 2, v12\nv_xor_b32 v12, s4, v12\nv_lshl_add_u32 v3, v12, 4, v3')
    a('v_and_b32 v12, 1, v1\nv_lshl_add_u32 v3, v12, 3, v3')
    a(f'v_lshl_add_u32 v4, v12, 1, v11\nv_mul_u32_u24 v4, 576, v4\nv_lshl_add_u32 v4, v10, 4, v4\nv_add_u32 v4, {ACT}, v4')
    a('v_lshlrev_b32 v5, 2, v0')
    a('v_lshrrev_b32 v8, 1, v1\nv_lshlrev_b32 v8, 2, v8\ns_lshl_b32 s6, s4, 5\nv_add_u32 v8, s6, v8')
    a(f'v_mov_b32 v16, 0\nv_lshlrev_b32 v10, 2, v1\nv_add_u32 v10, {STAT}, v10')
    a('s_mov_b32 exec_lo, -1\ns_mov_b32 exec_hi, 0xffff\nds_write_b32 v10, v16\ns_mov_b64 exec, -1')
    a('s_waitcnt lgkmcnt(0)')
    srd(16, 's14', 's15', WS_SZ)

    def tr_u1(F, region):
        if region: a(f'v_add_u32 v10, {region}, v3')
        ad = 'v10' if region else 'v3'
        for s in range(8):
            for hh in range(2):
                a(f'ds_read_b64_tr_b16 v[{F+4*s+2*hh}:{F+4*s+2*hh+1}], {ad} offset:{4096*s + 512*hh}')
    def gemv(F, ad='v4', fill=(), off=0):
        fill = list(fill)
        for s in range(8): a(f'ds_read_b128 v[{AT+4*s}:{AT+4*s+3}], {ad} offset:{64*s+off}')
        per = (len(fill) + 6) // 7
        for s in range(8):
            a(f's_waitcnt lgkmcnt({7-s})')
            c = '0' if s == 0 else f'v[{DD}:{DD+3}]'
            a(f'v_mfma_f32_16x16x32_bf16 v[{DD}:{DD+3}], v[{AT+4*s}:{AT+4*s+3}], v[{F+4*s}:{F+4*s+3}], {c}')
            for _ in range(per):
                if fill: a(fill.pop(0))
        for x in fill: a(x)
    def fold():
        a(f'v_add_f32_dpp v{Z}, v{DD+2}, v{DD} row_ror:8 row_mask:0xf bank_mask:0x3')
        a(f'v_add_f32_dpp v{Z}, v{DD+1}, v{DD+3} row_ror:8 row_mask:0xf bank_mask:0xc')
    def publish(z, voff, soff, srdn=16, flags='sc1'):
        a(f'v_mov_b32_dpp v{T}, v{z} quad_perm:[1,1,3,3] row_mask:0xf bank_mask:0xf')
        a(f's_mov_b64 exec, 0x5555')
        a(f'v_cvt_pk_bf16_f32 v{T}, v{z}, v{T}')
        a(f'buffer_store_dword v{T}, {voff}, s[{srdn}:{srdn+3}], {soff} offen {flags}\ns_mov_b64 exec, -1')
    def unpack(lo, hi, src):
        a(f'v_lshlrev_b32 v{lo}, 16, v{src}\nv_and_b32 v{hi}, 0xffff0000, v{src}')
    def red6(vals, off, TT):
        r01, r23, r45, z = TT
        for r, (e, o) in zip((r01, r23, r45), ((vals[0], vals[1]), (vals[2], vals[3]), (vals[4], vals[5]))):
            a(f'v_add_f32_dpp v{r}, v{e}, v{e} row_ror:8 row_mask:0xf bank_mask:0x3')
        for r, (e, o) in zip((r01, r23, r45), ((vals[0], vals[1]), (vals[2], vals[3]), (vals[4], vals[5]))):
            a(f'v_add_f32_dpp v{r}, v{o}, v{o} row_ror:8 row_mask:0xf bank_mask:0xc')
        a(f'v_permlane16_swap_b32 v{r01}, v{r23}\nv_permlane16_swap_b32 v{r45}, v{z}')
        a(f'v_add_f32 v{r01}, v{r01}, v{r23}\nv_add_f32 v{r45}, v{r45}, v{z}')
        a(f'v_permlane32_swap_b32 v{r01}, v{r45}\nv_add_f32 v{r01}, v{r01}, v{r45}')
        a(f'v_add_f32_dpp v{r01}, v{r01}, v{r01} quad_perm:[1,0,3,2] row_mask:0xf bank_mask:0xf')
        a(f'v_add_f32_dpp v{r01}, v{r01}, v{r01} quad_perm:[2,3,0,1] row_mask:0xf bank_mask:0xf')
        a(f's_mov_b32 exec_lo, 0x11111111\ns_mov_b32 exec_hi, 0x1111\nds_add_f32 v13, v{r01} offset:{off}\ns_mov_b64 exec, -1')

    a('s_cmp_ge_u32 s2, 16\ns_cbranch_scc1 L_bhelp')
    a('global_load_dword v16, v6, s[52:53]')
    p0_load('v14', 'v15')
    stamp(1)
    a('s_waitcnt vmcnt(0)')
    stamp(2)
    unpack(18, 19, 16)
    a(f's_mov_b32 s6, {f2u(-LOG2E)}')
    a('v_mul_f32 v20, s6, v18\nv_mul_f32 v21, s6, v19\nv_exp_f32 v20, v20\nv_exp_f32 v21, v21')
    a('v_add_f32 v20, 1.0, v20\nv_add_f32 v21, 1.0, v21\nv_rcp_f32 v20, v20\nv_rcp_f32 v21, v21')
    a('v_mul_f32 v18, v18, v20\nv_mul_f32 v19, v19, v21\nv_cvt_pk_bf16_f32 v18, v18, v19')
    a('ds_write_b32 v7, v18')
    p0_check('v14', 'v15')
    a('s_waitcnt lgkmcnt(0)\ns_barrier')
    tr_u1(F0, R0)
    gemv(F0); fold()
    a(f's_lshl_b32 s6, s2, 8')
    publish(Z, 'v8', 's6')
    stamp(3)
    a('s_lshl_b32 s24, s2, 8\ns_add_u32 s24, s24, 2048')
    dma_u1('s54', 's55', 512*6144, 6144, 's24', R1)
    a('s_barrier')
    a('s_add_u32 s24, s24, 128')
    dma_u1('s54', 's55', 512*6144, 6144, 's24', R0, setup=False)
    for k, reg in ((0, R1), (1, R0)):
        a(f's_waitcnt vmcnt({8 if k == 0 else 1})\ns_barrier')
        tr_u1(F0, reg)
        gemv(F0); fold()
        a(f's_lshl_b32 s6, s2, 9\ns_add_u32 s6, s6, {(16+k)*256}')
        publish(Z, 'v8', 's6')
    stamp(4)
    if cfg.stamps:
        a('s_cmp_lg_u32 s4, 0\ns_cbranch_scc1 L_end')
        stamps_out(5, 0)
    a('s_endpgm')

    a('L_bhelp:')
    a('s_lshr_b32 s26, s25, 3')
    a('global_load_dword v16, v6, s[44:45]')
    a('s_load_dwordx8 s[52:59], s[0:1], 48')
    a('s_load_dwordx2 s[46:47], s[0:1], 96')
    a('s_lshl_b32 s24, s26, 19\ns_lshl_b32 s6, s5, 7\ns_add_u32 s24, s24, s6')
    dma_u1('s50', 's51', 4096*1024, 1024, 's24', R1)
    p0_load('v22', 'v23')
    a(f's_lshl_b32 s29, s25, 8\ns_add_u32 s29, s29, {WOUT}')
    stamp(1)
    a('s_waitcnt vmcnt(9)')
    unpack(14, 15, 16)
    a('v_add_f32 v18, v14, v15\nv_mul_f32 v19, v14, v14\nv_fmac_f32 v19, v15, v15')
    a('s_barrier')
    red6([18, 19, 18, 19, 18, 19], STAT2 - STAT, (24, 25, 26, 27))
    tr_u1(F1, R0)
    a('s_waitcnt vmcnt(0) lgkmcnt(0)')
    stamp(2)
    p0_check('v22', 'v23')
    mloads = ['buffer_load_dword v16, v5, s[16:19], 0 offen sc1', 'buffer_load_dword v17, v5, s[16:19], 0 offen offset:2048 sc1']
    for x in mloads: a(x)
    a('s_barrier')
    a(f'v_bfe_u32 v10, v1, 2, 1\nv_lshlrev_b32 v10, 5, v10\nv_add_u32 v10, {STAT2}, v10')
    a('ds_read_b64 v[18:19], v10')
    tr_u1(F0, R1)
    a('s_waitcnt lgkmcnt(0)')
    a(f's_mov_b32 s6, {f2u(1/512)}\ns_mov_b32 s7, {f2u(1e-5)}')
    a('v_mul_f32 v18, s6, v18\nv_mul_f32 v19, s6, v19\nv_fma_f32 v19, -v18, v18, v19\nv_add_f32 v19, s7, v19\nv_rsq_f32 v19, v19')
    a('v_sub_f32 v20, v14, v18\nv_sub_f32 v21, v15, v18\nv_mul_f32 v20, v20, v19\nv_mul_f32 v21, v21, v19')
    stamp(3)
    vpoll(mloads, [16, 17], 22, first_issued=True)
    stamp(4)
    unpack(22, 23, 16); unpack(24, 25, 17)
    a('v_add_f32 v24, 1.0, v24\nv_add_f32 v25, 1.0, v25\nv_fma_f32 v20, v20, v24, v22\nv_fma_f32 v21, v21, v25, v23')
    a('v_cvt_pk_bf16_f32 v20, v20, v21\nds_write_b32 v7, v20\ns_waitcnt lgkmcnt(0)\ns_barrier')
    gemv(F1); fold()
    a(f's_lshl_b32 s6, s25, 8\ns_add_u32 s6, s6, {QO}')
    publish(Z, 'v8', 's6')
    stamp(5)
    a('s_cmp_ge_u32 s25, 28\ns_cbranch_scc1 L_qchk')
    a('s_lshl_b32 s24, s25, 7')
    dma_u1('s52', 's53', 512*3584, 3584, 's24', R0)
    srd(20, 's56', 's57', 1792*1024)
    a('s_and_b32 s6, s4, 1\ns_lshl_b32 s6, s6, 7\nv_lshlrev_b32 v2, 4, v1\nv_xor_b32 v2, s6, v2')
    a('v_xor_b32 v10, 32, v2\nv_xor_b32 v11, 64, v2\nv_xor_b32 v12, 96, v2')
    a(f's_lshl_b32 s27, s25, 16\ns_lshl_b32 s28, s4, 13\ns_add_u32 s27, s27, s28\ns_add_u32 s28, s28, {R1}')
    for hh in range(2):
        a('s_mov_b32 m0, s28')
        for i in range(4): a(f'buffer_load_dwordx4 v{(2,10,11,12)[i]}, s[20:23], s27 offen offset:{1024*i} {cfg.NT} lds')
        if hh == 0: a('s_add_u32 s27, s27, 4096\ns_add_u32 s28, s28, 4096')
    stamp(6)
    a('v_and_b32 v10, 7, v1\nv_lshlrev_b32 v10, 1, v10')
    a('s_and_b32 s6, s25, 7\ns_lshl_b32 s6, s6, 7\ns_lshl_b32 s7, s4, 4\ns_add_u32 s6, s6, s7')
    a('v_add_u32 v11, s6, v10\nglobal_load_ushort v39, v11, s[58:59]')
    a('s_lshl_b32 s6, s25, 7\ns_add_u32 s6, s6, s7')
    a('v_add_u32 v11, s6, v10\nglobal_load_ushort v25, v11, s[54:55]')
    a('v_bfe_u32 v11, v1, 1, 3\nv_lshlrev_b32 v11, 2, v11')
    a(f's_and_b32 s6, s25, 7\ns_lshl_b32 s6, s6, 8\ns_lshl_b32 s7, s4, 5\ns_add_u32 s6, s6, s7\ns_add_u32 s7, s6, {40*256}')
    a(f's_mov_b32 s6, {16*256}\ns_mov_b32 s27, {32*256}')
    vpoll([f'buffer_load_dword v{AT}, v5, s[16:19], s6 offen sc1', f'buffer_load_dword v{AT+1}, v5, s[16:19], s6 offen offset:2048 sc1',
           f'buffer_load_dword v{AT+2}, v5, s[16:19], s27 offen sc1', 'buffer_load_dword v38, v11, s[16:19], s7 offen sc1'],
          [AT, AT+1, AT+2, 38], AT+3, sleep=1)
    a('s_barrier')
    stamp(7)
    tr_u1(F1, R0)
    a('v_lshrrev_b32 v10, 4, v1\nv_bfe_u32 v11, v1, 2, 2\nv_lshl_add_u32 v10, v10, 3, v11\nv_lshlrev_b32 v10, 10, v10')
    a(f'v_and_b32 v11, 3, v1\nv_lshl_add_u32 v10, v11, 3, v10\nv_add_u32 v10, {R1}, v10')
    a('v_bfe_u32 v11, v1, 2, 3\nv_lshlrev_b32 v11, 5, v11\ns_lshl_b32 s6, s4, 7\nv_xor_b32 v11, s6, v11')
    for cg in range(4):
        a(f'v_xor_b32 v12, {32*cg}, v11\nv_add_u32 v{DD+cg}, v10, v12')
    for cg in range(4):
        for s in range(2):
            for hh in range(2):
                r = F2 + (cg*2 + s)*4 + 2*hh
                a(f'ds_read_b64_tr_b16 v[{r}:{r+1}], v{DD+cg} offset:{32768*s + 4096*hh}')
    a('v_and_b32 v10, 1, v1\nv_cmp_eq_u32 vcc, 1, v10\nv_lshlrev_b32 v10, 16, v38\nv_and_b32 v38, 0xffff0000, v38\nv_cndmask_b32 v38, v10, v38, vcc')
    a('v_lshlrev_b32 v39, 16, v39\nv_lshlrev_b32 v25, 16, v25')
    unpack(16, 17, AT); unpack(20, 21, AT+1); unpack(18, 19, AT+2)
    a(f'v_add_f32 v18, 1.0, v18\nv_add_f32 v19, 1.0, v19\nv_cvt_pk_bf16_f32 v{AT+2}, v18, v19')
    unpack(18, 19, AT+2)
    a(f'v_mov_b32 v{AT+3}, 0x3f803f80')
    a(f'ds_write_b32 v7, v{AT+2} offset:{ACT3-ACT}\nds_write_b32 v7, v{AT+1} offset:{ACT3-ACT+2304}\nds_write_b32 v7, v{AT+3} offset:{ACT3-ACT+4608}')
    t = AT + 4
    a(f'v_add_f32 v{t}, v18, v19\nv_mul_f32 v{t+1}, v18, v18\nv_fmac_f32 v{t+1}, v19, v19')
    a(f'v_mul_f32 v{t+2}, v18, v20\nv_fmac_f32 v{t+2}, v19, v21\nv_add_f32 v{t+3}, v20, v21')
    a(f'v_mul_f32 v{t+4}, v20, v20\nv_fmac_f32 v{t+4}, v21, v21')
    red6([t, t+1, t+2, t+3, t+4, t+4], STAT3 - STAT, (t+6, t+7, t+8, t+9))
    a('s_waitcnt lgkmcnt(0)\ns_barrier')
    a(f'v_bfe_u32 v10, v1, 2, 2\nv_min_u32 v10, 2, v10\nv_mul_u32_u24 v10, 2304, v10\nv_add_u32 v10, v10, v4\nv_add_u32 v10, {ACT3-ACT}, v10')
    gemv(F1, 'v10'); fold()
    a(f's_lshl_b32 s6, s4, 8\ns_add_u32 s6, s6, {X1}\nv_lshl_add_u32 v10, v1, 2, s6\nds_write_b32 v10, v{Z}')
    a('v_and_b32 v10, 15, v1\nv_lshl_add_u32 v10, v10, 2, s6\ns_waitcnt lgkmcnt(0)')
    a('ds_read_b32 v22, v10\nds_read_b32 v23, v10 offset:64\nds_read_b32 v24, v10 offset:128')
    a(f'v_bfe_u32 v10, v1, 3, 1\nv_lshlrev_b32 v10, 5, v10\nv_add_u32 v10, {STAT3}, v10')
    a('ds_read_b128 v[26:29], v10\nds_read_b32 v30, v10 offset:16')
    a('s_waitcnt lgkmcnt(0)\ns_barrier')
    stamp(8)

    a('L_qchk:')
    for k in range(4): a(f's_mov_b32 s{60+k}, {QO + 4096*k}')
    vpoll([f'buffer_load_dword v{AT+k}, v5, s[16:19], s{60+(k>>1)} offen offset:{2048*(k&1)} sc1' for k in range(8)], [AT+k for k in range(8)], AT+8, sleep=1)
    a('s_barrier')
    a('L_wstage:')
    a('s_lshr_b32 s6, s4, 2\ns_and_b32 s7, s4, 3')
    a('s_lshl_b32 s24, s6, 3\ns_add_u32 s24, s24, s26')
    a(f's_lshl_b32 s27, s24, 8\ns_lshl_b32 s28, s7, 2\ns_add_u32 s27, s27, s28\ns_add_u32 s27, s27, {LSE}')
    a(f's_lshl_b32 s60, s24, 14\ns_lshl_b32 s28, s7, 8\ns_add_u32 s60, s60, s28\ns_add_u32 s60, s60, {OP}')
    a('s_add_u32 s61, s60, 4096\ns_add_u32 s62, s60, 8192')
    a(f's_lshr_b32 s28, s4, 1\ns_mul_i32 s28, s28, 576\ns_and_b32 s7, s7, 1\ns_lshl_b32 s7, s7, 8\ns_add_u32 s28, s28, s7\ns_add_u32 s28, s28, {ACT}')
    a('v_lshlrev_b32 v2, 2, v1\nv_add_u32 v31, s28, v2')
    a(f'v_lshlrev_b32 v10, 4, v1\nv_mov_b32 v{AT}, 0xff800000')
    a('s_mov_b64 exec, 0x7ff')
    vpoll([f'buffer_load_dword v{AT}, v10, s[16:19], s27 offen sc1'], [AT], None, sleep=1)
    a('s_mov_b64 exec, -1')
    stamp(9)
    a(f'v_mov_b32 v{AT+1}, v{AT}')
    for r in (1, 2, 4, 8): a(f'v_max_f32_dpp v{AT+1}, v{AT+1}, v{AT+1} row_ror:{r} row_mask:0xf bank_mask:0xf')
    a(f'v_sub_f32 v{AT}, v{AT}, v{AT+1}\nv_exp_f32 v{AT}, v{AT}\nv_mov_b32 v{AT+1}, v{AT}')
    for r in (1, 2, 4, 8): a(f'v_add_f32_dpp v{AT+1}, v{AT+1}, v{AT+1} row_ror:{r} row_mask:0xf bank_mask:0xf')
    a(f'v_rcp_f32 v{AT+1}, v{AT+1}\nv_mul_f32 v{AT}, v{AT}, v{AT+1}')
    for c in range(11): a(f'v_readlane_b32 s{34+c}, v{AT}, {c}')
    vpoll([f'buffer_load_dword v{AT+c}, v2, s[16:19], s{60+(c>>2)} offen offset:{1024*(c&3)} sc1' for c in range(11)], [AT+c for c in range(11)], AT+12)
    stamp(10)
    if cfg.stamps: a('s_memtime s[76:77]')
    acc = AT + 20
    for c in range(11):
        tq = AT + 12 + 2*(c & 3)
        unpack(tq, tq+1, AT+c)
        sp = 34 + (c & ~1)
        mod = 'op_sel_hi:[1,0,1]' if (c & 1) == 0 else 'op_sel:[0,1,0] op_sel_hi:[1,1,1]'
        mod2 = 'op_sel_hi:[1,0]' if (c & 1) == 0 else 'op_sel:[0,1] op_sel_hi:[1,1]'
        ac = acc + 2*(c & 1)
        if c < 2: a(f'v_pk_mul_f32 v[{ac}:{ac+1}], v[{tq}:{tq+1}], s[{sp}:{sp+1}] {mod2}')
        else: a(f'v_pk_fma_f32 v[{ac}:{ac+1}], v[{tq}:{tq+1}], s[{sp}:{sp+1}], v[{ac}:{ac+1}] {mod}')
    a(f'v_pk_add_f32 v[{acc}:{acc+1}], v[{acc}:{acc+1}], v[{acc+2}:{acc+3}]')
    a(f'v_cvt_pk_bf16_f32 v{acc}, v{acc}, v{acc+1}\nds_write_b32 v31, v{acc}\ns_waitcnt lgkmcnt(0)\ns_barrier')
    gemv(F0); fold()
    publish(Z, 'v8', 's29')
    stamp(11)
    if cfg.stamps: a('s_memtime s[78:79]\ns_waitcnt lgkmcnt(0)\ns_sub_u32 s78, s78, s76\ns_add_u32 s78, s78, s64\ns_mov_b32 s79, s65')
    a('s_cmp_ge_u32 s25, 28\ns_cbranch_scc1 L_hdone')

    a(f'v_bfe_u32 v10, v1, 3, 1\nv_lshlrev_b32 v40, 5, v10\nv_add_u32 v40, {STAT}, v40')
    a(f'v_and_b32 v11, 7, v1\nv_mul_u32_u24 v41, 192, v10\nv_lshl_add_u32 v41, v11, 1, v41\ns_lshl_b32 s6, s4, 4\ns_add_u32 s6, s6, {HID}\nv_add_u32 v41, s6, v41')
    a(f'v_and_b32 v12, 1, v1\nv_mul_u32_u24 v42, 192, v12\nv_lshrrev_b32 v12, 4, v1\nv_lshl_add_u32 v42, v12, 4, v42\nv_add_u32 v42, {HID}, v42')
    a('v_lshlrev_b32 v43, 3, v0')
    a('s_and_b32 s6, s25, 7\ns_lshl_b32 s6, s6, 6\ns_lshl_b32 s7, s4, 3\ns_add_u32 s6, s6, s7\nv_add_u32 v11, s6, v11')
    a('v_lshrrev_b32 v12, 3, v1\nv_lshlrev_b32 v44, 12, v12\nv_lshl_add_u32 v44, v11, 3, v44')
    a('v_add_u32 v45, 0x8000, v44\nv_add_u32 v46, 0x10000, v44\nv_add_u32 v47, 0x18000, v44')
    a(f'v_lshlrev_b32 v48, 11, v10\nv_lshl_add_u32 v48, v11, 2, v48\nv_add_u32 v48, {X1}, v48')
    a('v_lshlrev_b32 v49, 10, v10\nv_lshl_add_u32 v49, v11, 1, v49')
    a(f's_add_u32 s20, s14, {MOUT}\ns_addc_u32 s21, s15, 0\ns_mov_b32 s22, {28*4096}\ns_mov_b32 s23, 0x20000')
    a(f's_lshl_b32 s24, s25, 12')
    a('s_mov_b32 s34, 0xffff0000\ns_mov_b32 s35, 0\ns_mov_b32 s36, 0\ns_mov_b32 s37, 0xffff\ns_mov_b32 s38, 0\ns_mov_b32 s39, 0xffff0000')
    a(f's_mov_b32 s40, {f2u(1/512)}\ns_mov_b32 s41, {f2u(1e-5)}\ns_mov_b32 s42, {f2u(0.044715)}\ns_mov_b32 s43, {f2u(-2*math.sqrt(2/math.pi)*LOG2E)}')
    a(f's_mov_b32 s60, {WOUT}\ns_mov_b32 s61, {WOUT+4096}\ns_mov_b32 s62, {WOUT+8192}\ns_mov_b32 s63, {WOUT+12288}')
    a('v_mov_b32 v50, 0x3f80\nv_mov_b32 v51, 0x3f800000')
    vpoll([f'buffer_load_dword v{AT+k}, v5, s[16:19], s{60+(k>>1)} offen offset:{2048*(k&1)} sc1' for k in range(8)], [AT+k for k in range(8)], AT+8)
    stamp(12)
    s0, s1 = AT+10, AT+11
    a(f'v_dot2_f32_bf16 v{s0}, v{AT}, v50, 0\nv_dot2_f32_bf16 v{s1}, v{AT}, v51, 0')
    for k in range(1, 8): a(f'v_dot2_f32_bf16 v{s0}, v{AT+k}, v50, v{s0}\nv_dot2_f32_bf16 v{s1}, v{AT+k}, v51, v{s1}')
    a('s_nop 2')
    x0, x1, a0, a1 = AT+12, AT+13, AT+14, AT+15
    a(f'v_fma_f32 v{x0}, v16, v{s0}, v14\nv_fma_f32 v{x1}, v17, v{s1}, v15')
    a(f'v_mul_f32 v{a0}, v{x0}, v18\nv_mul_f32 v{a1}, v{x1}, v19')
    a(f'v_cvt_pk_bf16_f32 v{AT}, v{a0}, v{a1}\nds_write_b32 v7, v{AT} offset:{ACT3-ACT}\nds_write_b64 v9, v[{x0}:{x1}]')
    t = AT + 16
    a(f'v_add_f32 v{t}, v{x0}, v{x1}\nv_mul_f32 v{t+1}, v{x0}, v{x0}\nv_add_f32 v{t+2}, v{a0}, v{a1}\nv_mul_f32 v{t+3}, v{a0}, v{a0}')
    a(f'v_mul_f32 v{t+4}, v{a0}, v18\nv_mul_f32 v{t+5}, v{a0}, v20')
    a(f'v_fmac_f32 v{t+1}, v{x1}, v{x1}\nv_fmac_f32 v{t+3}, v{a1}, v{a1}\nv_fmac_f32 v{t+4}, v{a1}, v19\nv_fmac_f32 v{t+5}, v{a1}, v21')
    red6([t, t+1, t+2, t+3, t+4, t+5], 0, (t+6, t+7, t+8, t+9))
    a('s_waitcnt lgkmcnt(0)\ns_barrier')
    a('ds_read_b128 v[52:55], v40\nds_read_b64 v[56:57], v40 offset:16')
    fill = [
        'v_mul_f32 v52, s40, v52', 'v_mul_f32 v53, s40, v53', 'v_fma_f32 v53, -v52, v52, v53', 'v_add_f32 v53, s41, v53',
        'v_rsq_f32 v53, v53', 'v_fma_f32 v54, -v52, v26, v54', 'v_fma_f32 v58, v52, v27, -v56', 'v_sub_f32 v58, v58, v56',
        'v_fma_f32 v55, v52, v58, v55', 'v_fma_f32 v57, -v52, v28, v57', 'v_fma_f32 v54, v53, v54, v29', 'v_mul_f32 v55, v53, v55',
        'v_add_f32 v57, v57, v57', 'v_add_f32 v55, v55, v57', 'v_fma_f32 v55, v53, v55, v30', 'v_mul_f32 v54, s40, v54',
        'v_mul_f32 v55, s40, v55', 'v_fma_f32 v55, -v54, v54, v55', 'v_add_f32 v55, s41, v55', 'v_rsq_f32 v55, v55',
        'v_mul_f32 v52, v52, v53', 'v_fma_f32 v56, -v54, v24, v23', 'v_fma_f32 v56, -v52, v22, v56', 'v_mul_f32 v53, v53, v55',
        'v_fma_f32 v56, v56, v55, v25',
    ]
    gemv(F1, 'v4', fill, ACT3-ACT); fold()
    a(f'v_fma_f32 v{Z}, v{Z}, v53, v56')
    a(f'v_mul_f32 v{T}, v{Z}, v{Z}\nv_fma_f32 v{T}, v{T}, s42, 1.0\nv_mul_f32 v{T}, v{T}, v{Z}\nv_mul_f32 v{T}, s43, v{T}')
    a(f'v_exp_f32 v{T}, v{T}\nv_add_f32 v{T}, 1.0, v{T}\nv_rcp_f32 v{T}, v{T}\nv_mul_f32 v{T}, v{T}, v{Z}')
    a(f'v_cvt_pk_bf16_f32 v{T}, v{T}, v{T}')
    a(f's_mov_b64 exec, 0xffff\nds_write_b16 v41, v{T}\ns_mov_b64 exec, -1')
    a('s_waitcnt lgkmcnt(0)\ns_barrier')
    a(f'ds_read_b128 v[{AT}:{AT+3}], v42\nds_read_b128 v[{AT+4}:{AT+7}], v42 offset:64')
    a(f'ds_read_b32 v52, v48')
    for s in range(2):
        a(f's_waitcnt lgkmcnt({2-s})')
        for cg in range(4):
            ac = AT + 8 + 4*cg; fr = F2 + (cg*2 + s)*4
            c = '0' if s == 0 else f'v[{ac}:{ac+3}]'
            a(f'v_mfma_f32_16x16x32_bf16 v[{ac}:{ac+3}], v[{AT+4*s}:{AT+4*s+3}], v[{fr}:{fr+3}], {c}')
    y = AT + 24
    for r in range(2): a(f'v_cndmask_b32 v{y+r}, v{AT+8+r}, v{AT+12+r}, s[34:35]')
    for r in range(2): a(f'v_cndmask_b32 v{y+r}, v{y+r}, v{AT+16+r}, s[36:37]')
    for r in range(2): a(f'v_cndmask_b32 v{y+r}, v{y+r}, v{AT+20+r}, s[38:39]')
    a(f'buffer_store_dwordx2 v[{y}:{y+1}], v43, s[20:23], s24 offen sc1')
    stamp(13)
    a('s_cmp_ge_u32 s25, 8\ns_cbranch_scc1 L_hdone')
    srd(24, 's46', 's47', 2048)
    vpoll([f'buffer_load_dwordx2 v[{AT+2*i}:{AT+2*i+1}], v{44+i}, s[20:23], 0 offen sc1' for i in range(4)], [AT+k for k in range(8)], AT+8)
    stamp(14)
    a(f'v_pk_add_f32 v[{AT}:{AT+1}], v[{AT}:{AT+1}], v[{AT+2}:{AT+3}]\nv_pk_add_f32 v[{AT+4}:{AT+5}], v[{AT+4}:{AT+5}], v[{AT+6}:{AT+7}]')
    a(f'v_pk_add_f32 v[{AT}:{AT+1}], v[{AT}:{AT+1}], v[{AT+4}:{AT+5}]')
    a(f'v_add_f32_dpp v{Z}, v{AT}, v{AT} row_ror:8 row_mask:0xf bank_mask:0x3')
    a(f'v_add_f32_dpp v{Z}, v{AT+1}, v{AT+1} row_ror:8 row_mask:0xf bank_mask:0xc')
    a(f'v_mov_b32 v{T}, v{Z}\nv_permlane16_swap_b32 v{Z}, v{T}\nv_add_f32 v{Z}, v{Z}, v{T}')
    a(f'v_mov_b32 v{T}, v{Z}\nv_permlane32_swap_b32 v{Z}, v{T}\nv_add_f32 v{Z}, v{Z}, v{T}')
    a(f's_waitcnt lgkmcnt(0)\nv_add_f32 v{Z}, v{Z}, v39\nv_fma_f32 v{Z}, v38, v{Z}, v52')
    publish(Z, 'v49', '0', 24, '')
    stamp(15)
    a('L_hdone:')
    if cfg.stamps:
        a('s_cmp_lg_u32 s4, 0\ns_cbranch_scc1 L_end')
        stamps_out(16, 0)
        a('s_cmp_lg_u32 s2, 16\ns_cbranch_scc1 L_end')
        for n, i in enumerate((1, 2, 3, 4, 5, 8, 9, 10, 11, 12, 13, 15)):
            a(f's_sub_u32 s60, s{64+2*i}, s64\nv_mov_b32 v4, s60\nglobal_store_dword v2, v4, s[12:13] offset:{16+4*n}')
        a('s_waitcnt vmcnt(0)')
    a('L_end:')
    a('s_endpgm')
    return wrap(a.finalize(), 256, 768, LDS_TOTAL, 168, sgpr=100)

if __name__ == '__main__':
    out = sys.argv[1]
    for o in sys.argv[2:]:
        k, v = o.split('=')
        setattr(cfg, k, eval(v))
    open(out, 'w').write(gen())
```

```python
import sys, math, struct
from asmlib import *
from gen_common import *

class Cfg:
    stamps = False
    NT = 'nt'
    warm = True
    prio = True
    slp = 2
    qslp = 4
    thS = 4
    thV = 3
    pre = 2
    touch = True
    apre = 0
    fast = True
cfg = Cfg()

MODA=0; MODB=0x8000; QO=0x10000; XID=0x18000; EPO=0x1A800; WOUT=0x1C000; MOUT=0x24000; OP=0x40000; STMP=0x80000; LSE=0x90000; WS_SZ=0x100000
NCH = 12
KW=36864; PREG=147456; ZERO=153600; ST=154176; QL=154368; QF=155392; SCR=0; LDS_TOTAL=155648
R0=0; R1=65536; ACT=131072; ACTC=133376; ACTM=135680; TS=2336; HID=145024; STAT=145408; STAT2=145472; STAT3=145536; X1=145664
LIMIT = 200000
LOG2E = 1.4426950408889634
def f2u(x): return '0x%08x' % struct.unpack('<I', struct.pack('<f', x))[0]

def gen():
    a = Asm()
    uid = [0]
    def lab(p):
        uid[0] += 1; return f'L_{p}_{uid[0]}'
    def stamp(i):
        if cfg.stamps: a(f's_memrealtime s[{64+2*i}:{65+2*i}]')
    def stamps_out(n, base_slot):
        if not cfg.stamps: return
        a('s_waitcnt lgkmcnt(0)')
        a('s_mov_b64 exec, 1')
        a(f's_lshl_b32 s60, s2, 7\ns_add_u32 s60, s60, {STMP + base_slot*8}')
        a('v_mov_b32 v2, 0')
        for i in range(n):
            a(f'v_mov_b32 v4, s{64+2*i}\nv_mov_b32 v5, s{65+2*i}')
            a(f'buffer_store_dwordx2 v[4:5], v2, s[16:19], s60 offen offset:{8*i}')
        a('s_waitcnt vmcnt(0)')
    def srd(d, lo, hi, size):
        a(f's_mov_b32 s{d}, {lo}\ns_mov_b32 s{d+1}, {hi}\ns_mov_b32 s{d+2}, {size}\ns_mov_b32 s{d+3}, 0x20000')
    def epoch_load():
        a(f's_load_dword s33, s[14:15], {EPO}')
    def epoch_tag():
        a('s_mul_i32 s33, s33, 0x9E3779B1\ns_add_u32 s33, s33, 0x85EBCA6B')
    def red3(op, regs, tmp):
        rs = list(regs)
        if len(rs) == 1: return rs[0]
        first = True
        while rs:
            if first:
                if len(rs) >= 3: a(f'v_{op}3_u32 v{tmp}, v{rs[0]}, v{rs[1]}, v{rs[2]}'); rs = rs[3:]
                else: a(f'v_{op}_u32 v{tmp}, v{rs[0]}, v{rs[1]}'); rs = rs[2:]
                first = False
            elif len(rs) >= 2: a(f'v_{op}3_u32 v{tmp}, v{tmp}, v{rs[0]}, v{rs[1]}'); rs = rs[2:]
            else: a(f'v_{op}_u32 v{tmp}, v{tmp}, v{rs[0]}'); rs = rs[1:]
        return tmp
    def vpoll(loads, regs, tmp, sleep=0, first_issued=False, tags=False, dbg=None, first_cnt=0):
        l = lab('vp'); d = lab('vd'); w = lab('vw')
        a('s_mov_b32 s30, 0')
        if first_issued: a(f's_waitcnt vmcnt({first_cnt})\ns_branch {w}')
        a(f'{l}:')
        for x in loads: a(x)
        a('s_add_u32 s30, s30, 1')
        a('s_waitcnt vmcnt(0)')
        if first_issued: a(f'{w}:')
        if dbg is not None and cfg.stamps:
            p, q_, n_ = dbg
            a(f's_mov_b64 s[{64+2*p}:{65+2*p}], s[{64+2*q_}:{65+2*q_}]')
            stamp(q_); a('s_waitcnt lgkmcnt(0)')
            a(f's_add_u32 s{64+2*n_}, s64, s30\ns_mov_b32 s{65+2*n_}, s65')
        if tags:
            m = red3('max', regs, tmp)
            if len(list(regs)) > 1:
                n = red3('min', regs, tmp + 1)
                a(f'v_cmp_ne_u32 vcc, s33, v{m}\nv_cmp_ne_u32 s[34:35], s33, v{n}\ns_or_b64 vcc, vcc, s[34:35]')
            else:
                a(f'v_cmp_ne_u32 vcc, s33, v{m}')
        else:
            m = red3('max', regs, tmp)
            a(f'v_cmp_eq_u32 vcc, -1, v{m}')
        a(f's_cbranch_vccz {d}')
        if sleep: a(f's_sleep {sleep}')
        a(f's_cmp_lt_u32 s30, {LIMIT}\ns_cbranch_scc1 {l}')
        a(f'{d}:')
    def dma_u1(lo, hi, size, RS, sbase, region, setup=True, i0=0, i1=8):
        if setup:
            a('v_bfe_u32 v10, v1, 4, 1\nv_and_b32 v12, 7, v1\nv_xor_b32 v10, v10, v12')
            a('s_and_b32 s27, s4, 4\nv_xor_b32 v10, s27, v10')
            a(f'v_lshrrev_b32 v2, 3, v1\nv_mul_u32_u24 v2, {RS}, v2\nv_xor_b32 v12, 2, v10')
            a('v_lshl_add_u32 v12, v12, 4, v2\nv_lshl_add_u32 v2, v10, 4, v2')
        srd(20, lo, hi, size)
        a(f's_mul_i32 s27, s4, {64*RS}\ns_add_u32 s27, s27, {sbase}')
        if i0: a(f's_add_u32 s27, s27, {8*RS*i0}')
        a(f's_lshl_b32 s28, s4, 13')
        if region + i0: a(f's_add_u32 s28, s28, {region + 1024*i0}')
        for i in range(i0, i1):
            a('s_mov_b32 m0, s28')
            if i < i1-1: a('s_add_u32 s28, s28, 1024')
            a(f'buffer_load_dwordx4 v{12 if i & 1 else 2}, s[20:23], s27 offen {cfg.NT} lds')
            if i < i1-1: a(f's_add_u32 s27, s27, {8*RS}')

    def dma_w(i0, i1, setup=True):
        if setup:
            a('s_and_b32 s6, s4, 1\ns_lshl_b32 s6, s6, 6\ns_and_b32 s7, s4, 4\ns_lshl_b32 s7, s7, 5\ns_or_b32 s6, s6, s7')
            a('v_lshlrev_b32 v2, 4, v1\nv_and_b32 v2, 0x1f0, v2\nv_and_b32 v10, 32, v1\nv_xor_b32 v2, v2, v10\nv_xor_b32 v2, s6, v2\nv_lshl_add_u32 v2, v10, 5, v2')
        srd(20, 's50', 's51', 4096*1024)
        a(f's_lshl_b32 s27, s4, 11\ns_add_u32 s27, s27, s24\ns_add_u32 s27, s27, {16384*i0}')
        a(f's_lshl_b32 s28, s4, 10\ns_add_u32 s28, s28, {8192*i0}')
        for i in range(i0, i1):
            a('s_mov_b32 m0, s28')
            if i < i1-1: a('s_add_u32 s28, s28, 8192')
            a(f'buffer_load_dwordx4 v2, s[20:23], s27 offen {cfg.NT} lds')
            if i < i1-1: a('s_add_u32 s27, s27, 16384')
    a('s_cmp_ge_u32 s2, 256\ns_cbranch_scc1 L_end')
    stamp(0)
    a('v_lshrrev_b32 v1, 6, v0')
    a('s_load_dwordx4 s[12:15], s[0:1], 104')
    a('s_lshr_b32 s3, s2, 3\ns_and_b32 s5, s2, 7')
    a('v_readfirstlane_b32 s4, v1')
    a('v_and_b32 v1, 63, v0')
    if cfg.warm:
        a('s_lshr_b32 s6, s2, 4\ns_xor_b32 s7, s4, 11\ns_or_b32 s6, s6, s7\ns_cbranch_scc1 L_nw')
        a('s_getpc_b64 s[8:9]\nL_pc:\nv_lshlrev_b32 v2, 7, v1')
        a('s_mov_b32 s10, L_end-L_pc\ns_mov_b32 s11, 0x20000\ns_mov_b32 s6, 8192')
        a('buffer_load_dword v4, v2, s[8:11], 0 offen\nbuffer_load_dword v5, v2, s[8:11], s6 offen')
        a('s_endpgm')
        a('L_nw:')
    a('s_cmp_eq_u32 s5, 0\ns_cbranch_scc1 L_hearly')
    a('s_mul_i32 s3, s3, 7\ns_add_u32 s3, s3, s5\ns_sub_u32 s3, s3, 1')
    a('s_cmp_ge_u32 s3, 32\ns_cbranch_scc1 L_stream')
    a('L_hearly:')
    a('s_cmp_ge_u32 s4, 8\ns_cbranch_scc1 L_spare')
    a('s_cmp_eq_u32 s5, 0')
    a('s_cselect_b32 s6, 88, 24')
    a('s_load_dwordx2 s[20:21], s[0:1], s6')
    a('s_mov_b32 s7, 8192\ns_cselect_b32 s7, 6144, s7')
    a('s_cselect_b32 s29, 2, 4')
    a('s_cselect_b32 s24, 5, 6')
    a('s_lshl_b32 s22, s7, 9')
    a('s_lshl_b32 s25, s3, 8')
    a('s_lshr_b32 s26, s3, 1\ns_lshl_b32 s26, s26, 7\ns_and_b32 s27, s3, 1\ns_mul_i32 s27, s27, 256*6144\ns_add_u32 s26, s26, s27')
    a('s_cmp_eq_u32 s5, 0\ns_cselect_b32 s25, s26, s25')
    a('v_bfe_u32 v10, v1, 4, 1\nv_and_b32 v12, 7, v1\nv_xor_b32 v10, v10, v12')
    a('s_and_b32 s27, s4, 4\nv_xor_b32 v10, s27, v10')
    a('v_lshrrev_b32 v2, 3, v1\nv_mul_u32_u24 v2, s7, v2\nv_xor_b32 v12, 2, v10')
    a('v_lshl_add_u32 v12, v12, 4, v2\nv_lshl_add_u32 v2, v10, 4, v2')
    a('s_mov_b32 s23, 0x20000')
    a('s_lshl_b32 s6, s4, s24\ns_mul_i32 s27, s6, s7\ns_add_u32 s27, s27, s25')
    a('s_lshl_b32 s28, s6, 7\ns_lshl_b32 s7, s7, 3')
    a('s_waitcnt lgkmcnt(0)')
    a('L_hdma:')
    a('s_mov_b32 m0, s28\ns_add_u32 s28, s28, 1024')
    a(f'buffer_load_dwordx4 v2, s[20:23], s27 offen {cfg.NT} lds')
    a('s_add_u32 s27, s27, s7\ns_mov_b32 m0, s28\ns_add_u32 s28, s28, 1024')
    a(f'buffer_load_dwordx4 v12, s[20:23], s27 offen {cfg.NT} lds')
    a('s_add_u32 s27, s27, s7\ns_sub_u32 s29, s29, 1\ns_cmp_lg_u32 s29, 0\ns_cbranch_scc1 L_hdma')
    a('s_branch L_helper')
    a('L_stream:')
    a('s_load_dwordx4 s[8:11], s[0:1], 8')
    a('s_sub_u32 s6, s3, 32')
    a('s_and_b32 s24, s6, 15\ns_lshr_b32 s25, s6, 4')
    a('s_mul_i32 s6, s25, 21\ns_sub_u32 s7, s25, 8\ns_max_i32 s7, s7, 0\ns_add_u32 s6, s6, s7')
    a('s_lshl_b32 s6, s6, 13\ns_lshl_b32 s7, s24, 21\ns_add_u32 s6, s6, s7')
    a(f's_mov_b32 s22, {21*8192}\ns_cmp_ge_u32 s25, 8\ns_cselect_b32 s22, {22*8192}, s22')
    a('s_mov_b32 s23, 0x20000')
    a('s_cmp_ge_u32 s4, 4\ns_cbranch_scc1 L_vwave')
    if cfg.prio: a('s_setprio 3')
    a('v_lshrrev_b32 v7, 4, v1')
    a('v_and_b32 v15, 15, v1')
    a('v_lshlrev_b32 v6, 2, v7\nv_xor_b32 v6, v6, v15')
    a('v_lshlrev_b32 v8, 8, v7')
    a('v_lshl_add_u32 v2, v6, 4, v8')
    for t in (1, 2, 3): a(f'v_xor_b32 v{2+t}, {16*t}, v2')
    a(f's_mul_i32 s27, s4, 49152\ns_mul_i32 s28, s4, {KW}')
    a('s_waitcnt lgkmcnt(0)')
    a('s_add_u32 s20, s8, s6\ns_addc_u32 s21, s9, 0')
    a('s_mov_b32 s29, 0')
    a('L_kdma:')
    a('s_mov_b32 m0, s28')
    a('s_add_u32 s28, s28, 4096\ns_add_u32 s29, s29, 1')
    for t in range(4):
        a(f'buffer_load_dwordx4 v{2+t}, s[20:23], s27 offen offset:{1024*t} {cfg.NT} lds')
        if cfg.thS < 63: a(f's_waitcnt vmcnt({cfg.thS})')
    a('s_add_u32 s27, s27, 4096')
    a('s_cmp_lt_u32 s29, 9\ns_cbranch_scc1 L_kdma')
    epoch_load()
    a('v_and_b32 v6, 3, v15\nv_lshlrev_b32 v6, 2, v6\nv_lshrrev_b32 v9, 2, v15\nv_add_u32 v6, v6, v9')
    a('v_lshlrev_b32 v10, 8, v6')
    a('v_lshl_add_u32 v6, v7, 4, v10')
    for gi in range(3):
        for s in range(4):
            r = 96 + 16*gi + 4*s
            a(f'buffer_load_dwordx4 v[{r}:{r+3}], v6, s[20:23], s27 offen offset:{64*s} {cfg.NT}')
            if cfg.thS < 63 and 4*gi + s < 11: a(f's_waitcnt vmcnt({cfg.thS})')
        if gi < 2: a('s_add_u32 s27, s27, 4096')
    srd(16, 's14', 's15', WS_SZ)
    a(f's_lshl_b32 s26, s24, 14\ns_lshl_b32 s6, s25, 10\ns_add_u32 s26, s26, s6\ns_lshl_b32 s6, s4, 8\ns_add_u32 s26, s26, s6\ns_add_u32 s26, s26, {OP}')
    a('v_mov_b32 v156, -1\nv_lshlrev_b32 v157, 2, v1')
    a('buffer_store_dword v156, v157, s[16:19], s26 offen sc1')
    a(f's_and_b32 s7, s24, 7\ns_lshl_b32 s6, s7, 12\ns_lshr_b32 s7, s24, 3\ns_lshl_b32 s7, s7, 11\ns_add_u32 s27, s6, s7\ns_add_u32 s27, s27, {QO}')
    a('v_lshlrev_b32 v12, 4, v1')
    qloads = [f'buffer_load_dwordx4 v[{32+4*k}:{35+4*k}], v12, s[16:19], s27 offen offset:{1024*k} sc1' for k in range(2)]
    a('s_cmp_lg_u32 s4, 0\ns_cbranch_scc1 L_nq1')
    for x in qloads: a(x)
    a('L_nq1:')
    stamp(1)
    a('s_barrier')
    a(f's_mul_i32 s28, s4, {KW}')
    a('v_and_b32 v11, 3, v15\nv_xor_b32 v11, v11, v7')
    a('v_lshl_add_u32 v11, v9, 2, v11')
    a('v_lshl_add_u32 v11, v11, 4, v10\nv_add_u32 v8, s28, v11')
    for s in (1, 2, 3): a(f'v_xor_b32 v{8+s}, {64*s}, v8')
    a(f's_mul_i32 s6, s4, 1536\ns_add_u32 s6, s6, {PREG}')
    a('v_lshrrev_b32 v13, 3, v15\nv_lshlrev_b32 v13, 8, v13')
    a('v_and_b32 v14, 3, v15\nv_lshl_add_u32 v13, v14, 6, v13\nv_lshl_add_u32 v13, v7, 4, v13')
    a('v_bfe_u32 v14, v15, 2, 1\nv_lshl_add_u32 v13, v14, 3, v13\nv_add_u32 v13, s6, v13')
    for u in range(4):
        a(f's_mov_b32 s{36+2*u}, {0x000F000F << (4*u):#x}\ns_mov_b32 s{37+2*u}, {0x000F000F << (4*u):#x}')
    a('s_cmp_lt_u32 s25, 8\ns_cselect_b32 s6, 0xff00ff00, 0\ns_cmp_eq_u32 s4, 3\ns_cselect_b32 s44, s6, 0\ns_cselect_b32 s46, -1, 0\ns_mov_b32 s45, s44\ns_mov_b32 s47, s46')
    a('s_waitcnt lgkmcnt(0)')
    epoch_tag()
    stamp(2)
    a(f'v_mov_b32 v14, {QF}')
    a('s_cmp_lg_u32 s4, 0\ns_cbranch_scc1 L_nq2')
    vpoll(qloads, [33, 35, 37, 39], 160, first_issued=True, tags=True, sleep=cfg.qslp, dbg=(1, 2, 5))
    a(f'v_lshlrev_b32 v12, 3, v1\nv_add_u32 v12, {QL}, v12\nv_mov_b32 v16, 1')
    a('ds_write2_b32 v12, v32, v34 offset0:0 offset1:1\nds_write2_b32 v12, v36, v38 offset0:128 offset1:129')
    a('s_waitcnt lgkmcnt(0)\nds_write_b32 v14, v16')
    a('s_branch L_nq3')
    a('L_nq2:')
    a('s_mov_b32 s30, 0')
    a('L_qspin:')
    a('ds_read_b32 v16, v14\ns_add_u32 s30, s30, 1\ns_waitcnt lgkmcnt(0)')
    a('v_cmp_ne_u32 vcc, 1, v16\ns_cbranch_vccz L_nq3')
    a(f's_sleep 1\ns_cmp_lt_u32 s30, {LIMIT*8}\ns_cbranch_scc1 L_qspin')
    a('L_nq3:')
    a(f'v_and_b32 v12, 3, v15\nv_lshlrev_b32 v12, 8, v12\nv_lshl_add_u32 v12, v7, 4, v12\nv_add_u32 v12, {QL}, v12')
    for k in range(4): a(f'ds_read_b128 v[{16+4*k}:{19+4*k}], v12 offset:{64*k}')
    a('s_waitcnt vmcnt(0) lgkmcnt(0)')
    stamp(3)
    order = [(u, dd) for u in range(4) for dd in range(3)]
    ldsg = [4*dd+u for (u, dd) in order if 4*dd+u < 9]
    def kread(k):
        gi = ldsg[k]; buf = 64 + 16*(k & 1)
        for s in range(4):
            a(f'ds_read_b128 v[{buf+4*s}:{buf+4*s+3}], v{8+s} offset:{4096*gi}')
    kread(0)
    k = 0
    for (u, dd) in order:
        gi = 4*dd + u
        mq = 32 + 16*(u & 1)
        if u == 0 and dd == 0:
            for r in range(16): a(f'v_cndmask_b32 v{mq+r}, 0, v{16+r}, s[36:37]')
        if gi < 9:
            src = 64 + 16*(k & 1)
            if k + 1 < len(ldsg):
                kread(k + 1); a('s_waitcnt lgkmcnt(4)')
            else:
                a('s_waitcnt lgkmcnt(0)')
            k += 1
        else:
            src = 96 + 16*(gi - 9)
        D = 144 + 4*dd
        for s in range(4):
            c = '0' if (u == 0 and s == 0) else f'v[{D}:{D+3}]'
            a(f'v_mfma_f32_16x16x32_bf16 v[{D}:{D+3}], v[{src+4*s}:{src+4*s+3}], v[{mq+4*s}:{mq+4*s+3}], {c}')
            if u < 3 and dd < 2:
                mq2 = 32 + 16*((u+1) & 1)
                for r in (8*dd + 2*s, 8*dd + 2*s + 1):
                    a(f'v_cndmask_b32 v{mq2+r}, 0, v{16+r}, s[{38+2*u}:{39+2*u}]')
    a('v_mov_b32 v160, 0xff800000')
    for r in range(4): a(f'v_cndmask_b32 v{148+r}, v{148+r}, v160, s[44:45]')
    for r in range(4): a(f'v_cndmask_b32 v{152+r}, v{152+r}, v160, s[46:47]')
    a('v_max3_f32 v156, v144, v145, v146\nv_max3_f32 v157, v147, v148, v149')
    a('v_max3_f32 v158, v150, v151, v152\nv_max3_f32 v159, v153, v154, v155')
    a('v_max3_f32 v156, v156, v157, v158\nv_max_f32 v156, v156, v159')
    def xreduce(op, r, t):
        a(f'{op}_dpp v{r}, v{r}, v{r} row_ror:4 row_mask:0xf bank_mask:0xf')
        a(f'{op}_dpp v{r}, v{r}, v{r} row_ror:8 row_mask:0xf bank_mask:0xf')
        a(f'v_mov_b32 v{t}, v{r}\nv_permlane16_swap_b32 v{r}, v{t}\n{op} v{r}, v{r}, v{t}')
        a(f'v_mov_b32 v{t}, v{r}\nv_permlane32_swap_b32 v{r}, v{t}\n{op} v{r}, v{r}, v{t}')
    xreduce('v_max_f32', 156, 157)
    a(f's_mov_b32 s6, {f2u(128**-0.5 * LOG2E)}')
    a('v_mul_f32 v158, s6, v156')
    for r in range(12): a(f'v_fma_f32 v{144+r}, v{144+r}, s6, -v158')
    for r in range(12): a(f'v_exp_f32 v{144+r}, v{144+r}')
    for dd in range(3):
        D = 144 + 4*dd
        a(f'v_cvt_pk_bf16_f32 v{32+2*dd}, v{D}, v{D+1}\nv_cvt_pk_bf16_f32 v{33+2*dd}, v{D+2}, v{D+3}')
        a(f'ds_write_b64 v13, v[{32+2*dd}:{33+2*dd}] offset:{512*dd}')
    a('v_add_f32 v159, v144, v145')
    for r in range(2, 12): a(f'v_add_f32 v159, v159, v{144+r}')
    xreduce('v_add_f32', 159, 157)
    a(f's_lshl_b32 s6, s4, 5\ns_add_u32 s6, s6, {ST}')
    a('v_lshl_add_u32 v14, v1, 3, s6')
    a('s_mov_b64 exec, 15\nds_write_b64 v14, v[158:159]\ns_mov_b64 exec, -1')
    a('s_waitcnt lgkmcnt(0)')
    stamp(4)
    a('s_barrier')
    a(f'v_and_b32 v14, 3, v1\nv_lshlrev_b32 v14, 3, v14\nv_add_u32 v14, {ST}, v14')
    for w in range(4): a(f'ds_read_b64 v[{16+2*w}:{17+2*w}], v14 offset:{32*w}')
    a('v_lshrrev_b32 v2, 2, v1\nv_lshrrev_b32 v3, 4, v1\nv_add_u32 v3, v3, v1\nv_and_b32 v3, 3, v3')
    a('v_lshlrev_b32 v2, 5, v2\nv_lshl_add_u32 v2, v3, 3, v2')
    a(f's_lshl_b32 s6, s4, 9\ns_add_u32 s6, s6, {SCR}\nv_add_u32 v2, s6, v2')
    a('s_waitcnt lgkmcnt(0)')
    a('v_max3_f32 v24, v16, v18, v20\nv_max_f32 v24, v24, v22')
    for w in range(4): a(f'v_sub_f32 v{25+w}, v{16+2*w}, v24')
    for w in range(4): a(f'v_exp_f32 v{25+w}, v{25+w}')
    a('v_mul_f32 v29, v25, v17\nv_fmac_f32 v29, v26, v19\nv_fmac_f32 v29, v27, v21\nv_fmac_f32 v29, v28, v23')
    a('v_log_f32 v30, v29\nv_rcp_f32 v29, v29\nv_mov_b32 v31, s33')
    a('v_add_f32 v30, v30, v24')
    a(f's_lshl_b32 s6, s24, 11\ns_lshl_b32 s7, s25, 7\ns_add_u32 s6, s6, s7\ns_add_u32 s6, s6, {LSE}')
    a('v_lshlrev_b32 v3, 3, v1')
    a('s_cmp_eq_u32 s4, 0\ns_cselect_b32 exec_lo, 0xffff, 0\ns_mov_b32 exec_hi, 0\ns_cbranch_execz L_nlse')
    a('buffer_store_dwordx2 v[30:31], v3, s[16:19], s6 offen sc1')
    a('L_nlse:')
    a('s_mov_b64 exec, -1')
    for w in range(4): a(f'v_mul_f32 v{32+w}, v{25+w}, v29')
    for w in range(4): a(f'v_readlane_b32 s{36+w}, v{32+w}, s4')
    a('v_lshlrev_b32 v3, 2, v1')
    a('s_barrier')
    stamp(6)
    for v in range(8): a(f'ds_read_b64 v[{48+2*v}:{49+2*v}], v2 offset:{2048*v}')
    for v in range(8):
        a(f's_waitcnt lgkmcnt({7-v})')
        w = v >> 1; sp = 36 + (w & ~1)
        mod = 'op_sel_hi:[1,0,1]' if (w & 1) == 0 else 'op_sel:[0,1,0] op_sel_hi:[1,1,1]'
        mod2 = 'op_sel_hi:[1,0]' if (w & 1) == 0 else 'op_sel:[0,1] op_sel_hi:[1,1]'
        if v < 2: a(f'v_pk_mul_f32 v[{40+2*v}:{41+2*v}], v[{48+2*v}:{49+2*v}], s[{sp}:{sp+1}] {mod2}')
        else: a(f'v_pk_fma_f32 v[{40+2*(v&1)}:{41+2*(v&1)}], v[{48+2*v}:{49+2*v}], s[{sp}:{sp+1}], v[{40+2*(v&1)}:{41+2*(v&1)}] {mod}')
    a('v_pk_add_f32 v[40:41], v[40:41], v[42:43]')
    a('v_cvt_pk_bf16_f32 v40, v40, v41')
    a('buffer_store_dword v40, v3, s[16:19], s26 offen sc1')
    stamp(7)
    if cfg.stamps:
        a('s_cmp_lg_u32 s4, 0\ns_cbranch_scc1 L_end')
        stamps_out(8, 0)
    a('s_endpgm')

    a('L_vwave:')
    a('s_sub_u32 s4, s4, 4')
    a('v_lshlrev_b32 v2, 4, v1')
    a(f'v_mov_b32 v16, 0\nv_mov_b32 v17, 0\nv_mov_b32 v18, 0\nv_mov_b32 v19, 0\nv_add_u32 v9, {ZERO}, v2')
    a('s_mov_b32 exec_lo, -1\ns_mov_b32 exec_hi, 3\nds_write_b128 v9, v[16:19]\ns_mov_b64 exec, -1')
    a(f'v_mov_b32 v9, {QF}\nds_write_b32 v9, v16')
    a(f's_mul_i32 s7, s4, 768\ns_add_u32 s7, s7, {PREG}')
    a('v_and_b32 v9, 3, v1\nv_lshlrev_b32 v9, 6, v9\nv_lshrrev_b32 v10, 4, v1\nv_lshl_add_u32 v9, v10, 4, v9\nv_add_u32 v9, s7, v9')
    a(f'v_mov_b32 v11, {ZERO}')
    for x in range(4):
        a(f's_mov_b32 s34, {0x000F000F << (4*x):#x}\ns_mov_b32 s35, s34')
        a(f'v_cndmask_b32 v{3+x}, v11, v9, s[34:35]')
    a('v_and_b32 v7, 15, v1\nv_lshrrev_b32 v8, 2, v7\nv_add_u32 v8, v8, v10\nv_and_b32 v8, 3, v8')
    a('v_lshlrev_b32 v7, 5, v7\nv_lshl_add_u32 v7, v8, 3, v7')
    a(f's_lshl_b32 s7, s4, 11\ns_add_u32 s7, s7, {SCR}\nv_add_u32 v7, s7, v7\nv_add_u32 v8, 1024, v7')
    a('s_mov_b32 s36, 0x05040100\ns_mov_b32 s37, 0x07060302')
    a('s_mul_i32 s27, s4, 24576')
    a('s_waitcnt lgkmcnt(0)')
    a('s_add_u32 s20, s10, s6\ns_addc_u32 s21, s11, 0')
    if cfg.stamps: srd(16, 's14', 's15', WS_SZ)
    a('s_barrier')
    stamp(1)
    for i in range(24):
        r = 72 + 4*i
        a(f'buffer_load_dwordx4 v[{r}:{r+3}], v2, s[20:23], s27 offen offset:{1024*(i&3)} {cfg.NT}')
        if cfg.thV < 63 and cfg.thV <= i < 23: a(f's_waitcnt vmcnt({cfg.thV})')
        if (i & 3) == 3 and i < 23: a('s_add_u32 s27, s27, 4096')
    stamp(2)
    a('s_barrier')
    stamp(3)
    def pread(t):
        buf = 40 + 16*(t & 1)
        for x in range(4): a(f'ds_read_b128 v[{buf+4*x}:{buf+4*x+3}], v{3+x} offset:{256*t}')
    pread(0); pread(1)
    for t in range(3):
        a(f's_waitcnt vmcnt({16-8*t})')
        if t == 2: stamp(4)
        vb = 72 + 32*t; pb = 40 + 16*(t & 1)
        for j in range(8):
            tb = 24 + 4*(j & 3)
            sel = 's37' if (j & 1) else 's36'
            for tt in range(4):
                a(f'v_perm_b32 v{tb+tt}, v{vb + 4*(2*tt+1) + (j>>1)}, v{vb + 4*(2*tt) + (j>>1)}, {sel}')
            if j == 0: a('s_waitcnt lgkmcnt(4)' if t == 0 else 's_waitcnt lgkmcnt(0)')
            if j > 0:
                jj = j - 1; tb2 = 24 + 4*(jj & 3); acc = 16 + 4*(jj & 1); x = jj >> 1
                c = '0' if (t == 0 and jj < 2) else f'v[{acc}:{acc+3}]'
                a(f'v_mfma_f32_16x16x32_bf16 v[{acc}:{acc+3}], v[{pb+4*x}:{pb+4*x+3}], v[{tb2}:{tb2+3}], {c}')
        a(f'v_mfma_f32_16x16x32_bf16 v[20:23], v[{pb+12}:{pb+15}], v[36:39], v[20:23]')
        if t == 0: pread(2)
    for r in range(4):
        ad = 7 + (r >> 1); o = 128*(r & 1)
        a(f'ds_write2_b32 v{ad}, v{16+r}, v{20+r} offset0:{o} offset1:{o+1}')
    a('s_waitcnt lgkmcnt(0)')
    stamp(5)
    a('s_barrier')
    if cfg.stamps:
        a('s_cmp_lg_u32 s4, 0\ns_cbranch_scc1 L_end')
        stamps_out(6, 8)
    a('s_endpgm')

    a('L_spare:')
    a('s_cmp_lg_u32 s5, 0\ns_cbranch_scc1 L_end')
    a('s_cmp_lg_u32 s4, 8\ns_cbranch_scc1 L_end')
    a('v_mov_b32 v4, -1\nv_mov_b32 v5, -1\nv_mov_b32 v6, -1\nv_mov_b32 v7, -1')
    a(f's_lshl_b32 s6, s3, 10\ns_add_u32 s6, s6, {WOUT}\nv_lshlrev_b32 v2, 4, v1\nv_add_u32 v2, s6, v2')
    a(f's_lshl_b32 s6, s3, 12\ns_add_u32 s6, s6, {MOUT}\nv_lshlrev_b32 v8, 4, v1\nv_add_u32 v8, s6, v8')
    a('s_waitcnt lgkmcnt(0)')
    a('global_store_dwordx4 v2, v[4:7], s[14:15] sc1')
    a('s_cmp_ge_u32 s3, 28\ns_cbranch_scc1 L_sp2')
    for i in range(4): a(f'global_store_dwordx4 v8, v[4:7], s[14:15] offset:{1024*i} sc1')
    a('L_sp2:')
    a('s_waitcnt vmcnt(0)')
    a('s_endpgm')

    AT=136; DD=32; Z=36; T=38; ZT=37; F0=40; F1=72; F2=104
    a('L_helper:')
    epoch_load()
    a('s_load_dwordx2 s[44:45], s[0:1], 0')
    a('s_load_dwordx4 s[48:51], s[0:1], 24')
    a('s_load_dwordx4 s[52:55], s[0:1], 80')
    a('v_lshrrev_b32 v10, 3, v1\nv_and_b32 v11, 3, v1\nv_lshlrev_b32 v11, 1, v11\nv_lshl_add_u32 v10, v10, 3, v11')
    a('v_bfe_u32 v11, v1, 2, 1')
    a('s_lshl_b32 s6, s4, 6\nv_add_u32 v12, s6, v10')
    a('v_lshlrev_b32 v6, 1, v12\nv_lshl_add_u32 v6, v11, 10, v6')
    a(f'v_lshlrev_b32 v9, 2, v12\nv_lshl_add_u32 v9, v11, 11, v9\nv_add_u32 v9, {X1}, v9')
    a(f's_lshr_b32 s6, s4, 2\ns_mul_i32 s6, s6, 576\ns_and_b32 s7, s4, 3\ns_lshl_b32 s7, s7, 7\ns_add_u32 s6, s6, s7\ns_add_u32 s6, s6, {ACT}')
    a('v_mul_u32_u24 v7, 1152, v11\nv_lshl_add_u32 v7, v10, 1, v7\nv_add_u32 v7, s6, v7')
    a('v_lshrrev_b32 v13, 3, v1\nv_lshlrev_b32 v13, 2, v13\nv_lshl_add_u32 v13, v11, 5, v13')
    a(f'v_add_u32 v13, {STAT}, v13')
    a('s_waitcnt lgkmcnt(0)')
    srd(16, 's14', 's15', WS_SZ)
    epoch_tag()
    a('global_load_dword v17, v6, s[52:53]')
    a('global_load_dword v16, v6, s[44:45]')
    a('s_cmp_eq_u32 s5, 0\ns_cbranch_scc1 L_t2')
    a('s_add_u32 s24, s25, 128')
    dma_u1('s48', 's49', 512*8192, 8192, 's24', R1)
    a('s_branch L_h2')
    a('L_t2:')
    a('s_lshr_b32 s26, s3, 1\ns_lshl_b32 s24, s26, 18\ns_and_b32 s6, s3, 1\ns_lshl_b32 s6, s6, 9\ns_add_u32 s24, s24, s6')
    dma_w(8, 8 + cfg.pre)
    a('L_h2:')
    a('v_lshrrev_b32 v10, 4, v1\nv_bfe_u32 v11, v1, 2, 2\nv_lshl_add_u32 v3, v10, 3, v11')
    a('v_bfe_u32 v11, v1, 1, 1\nv_lshl_add_u32 v3, v11, 8, v3\nv_lshlrev_b32 v3, 7, v3')
    a('v_bfe_u32 v12, v1, 3, 2\nv_lshl_add_u32 v12, v11, 2, v12\nv_xor_b32 v12, s4, v12\nv_lshl_add_u32 v3, v12, 4, v3')
    a('v_and_b32 v12, 1, v1\nv_lshl_add_u32 v3, v12, 3, v3')
    a(f'v_lshl_add_u32 v4, v12, 1, v11\nv_mul_u32_u24 v4, 576, v4\nv_lshl_add_u32 v4, v10, 4, v4\nv_add_u32 v4, {ACT}, v4')
    a('v_lshlrev_b32 v5, 3, v0')
    a('s_lshl_b32 s6, s4, 7\nv_lshl_add_u32 v8, v1, 3, s6\nv_lshlrev_b32 v28, 4, v0')
    a(f'v_mov_b32 v18, 0\nv_lshlrev_b32 v10, 2, v1\nv_add_u32 v10, {STAT}, v10\nv_mov_b32 v{T+1}, s33\nv_mov_b32 v{ZT}, s33')
    a('s_mov_b32 exec_lo, -1\ns_mov_b32 exec_hi, 0xffff\nds_write_b32 v10, v18\ns_mov_b64 exec, -1')

    def tr_u1(F, region, steps=8, ad=None):
        if ad is None:
            if region: a(f'v_add_u32 v10, {region}, v3')
            ad = 'v10' if region else 'v3'
        for s in range(steps):
            for hh in range(2):
                a(f'ds_read_b64_tr_b16 v[{F+4*s+2*hh}:{F+4*s+2*hh+1}], {ad} offset:{4096*s + 512*hh}')
    def gemv(Fs, ad='v4', fill=(), off=0, steps=8, Ds=None):
        if isinstance(Fs, int): Fs = [Fs]
        if Ds is None: Ds = [DD]
        fill = list(fill)
        for s in range(steps): a(f'ds_read_b128 v[{AT+4*s}:{AT+4*s+3}], {ad} offset:{64*s+off}')
        per = (len(fill) + steps - 2) // (steps - 1)
        for s in range(steps):
            a(f's_waitcnt lgkmcnt({steps-1-s})')
            for F, D in zip(Fs, Ds):
                c = '0' if s == 0 else f'v[{D}:{D+3}]'
                a(f'v_mfma_f32_16x16x32_bf16 v[{D}:{D+3}], v[{AT+4*s}:{AT+4*s+3}], v[{F+4*s}:{F+4*s+3}], {c}')
            for _ in range(per):
                if fill: a(fill.pop(0))
        for x in fill: a(x)
    def fold(D=DD, z=Z):
        a(f'v_add_f32_dpp v{z}, v{D+2}, v{D} row_ror:8 row_mask:0xf bank_mask:0x3')
        a(f'v_add_f32_dpp v{z}, v{D+1}, v{D+3} row_ror:8 row_mask:0xf bank_mask:0xc')
    def publish_tag(z, soff):
        a(f's_mov_b64 exec, 0xffff\nbuffer_store_dwordx2 v[{Z}:{Z+1}], v8, s[16:19], {soff} offen sc1\ns_mov_b64 exec, -1')
    def store2(text):
        if not cfg.fast: a(text + ' sc1'); return
        l = lab('fs'); d = lab('fd')
        a(f's_cbranch_scc1 {l}')
        a(text + ' sc1'); a(f's_branch {d}')
        a(f'{l}:'); a(text); a(f'{d}:')
    def unpack(lo, hi, src):
        a(f'v_lshlrev_b32 v{lo}, 16, v{src}\nv_and_b32 v{hi}, 0xffff0000, v{src}')
    def red6(vals, off, TT):
        r01, r23, r45, z = TT
        for r, (e, o) in zip((r01, r23, r45), ((vals[0], vals[1]), (vals[2], vals[3]), (vals[4], vals[5]))):
            a(f'v_add_f32_dpp v{r}, v{e}, v{e} row_ror:8 row_mask:0xf bank_mask:0x3')
        for r, (e, o) in zip((r01, r23, r45), ((vals[0], vals[1]), (vals[2], vals[3]), (vals[4], vals[5]))):
            a(f'v_add_f32_dpp v{r}, v{o}, v{o} row_ror:8 row_mask:0xf bank_mask:0xc')
        a(f'v_permlane16_swap_b32 v{r01}, v{r23}\nv_permlane16_swap_b32 v{r45}, v{z}')
        a(f'v_add_f32 v{r01}, v{r01}, v{r23}\nv_add_f32 v{r45}, v{r45}, v{z}')
        a(f'v_permlane32_swap_b32 v{r01}, v{r45}\nv_add_f32 v{r01}, v{r01}, v{r45}')
        a(f'v_add_f32_dpp v{r01}, v{r01}, v{r01} quad_perm:[1,0,3,2] row_mask:0xf bank_mask:0xf')
        a(f'v_add_f32_dpp v{r01}, v{r01}, v{r01} quad_perm:[2,3,0,1] row_mask:0xf bank_mask:0xf')
        a(f's_mov_b32 exec_lo, 0x11111111\ns_mov_b32 exec_hi, 0x1111\nds_add_f32 v13, v{r01} offset:{off}\ns_mov_b64 exec, -1')

    stamp(1)
    def silu():
        unpack(18, 19, 17)
        a(f's_mov_b32 s6, {f2u(-LOG2E)}')
        a('v_mul_f32 v20, s6, v18\nv_mul_f32 v21, s6, v19\nv_exp_f32 v20, v20\nv_exp_f32 v21, v21')
        a('v_add_f32 v20, 1.0, v20\nv_add_f32 v21, 1.0, v21\nv_rcp_f32 v20, v20\nv_rcp_f32 v21, v21')
        a('v_mul_f32 v18, v18, v20\nv_mul_f32 v19, v19, v21\nv_cvt_pk_bf16_f32 v18, v18, v19')
        a(f'ds_write_b32 v7, v18 offset:{ACTC-ACT}')
        unpack(14, 15, 16)
    a('s_cmp_eq_u32 s5, 0\ns_cbranch_scc1 L_tail')
    mloads = [f'buffer_load_dwordx4 v[{AT+4*k}:{AT+4*k+3}], v28, s[16:19], s{60+k} offen sc1' for k in range(4)]
    for k in range(4): a(f's_mov_b32 s{60+k}, {MODA + 8192*k}')
    for x in mloads: a(x)
    a('s_waitcnt vmcnt(12)')
    stamp(2)
    silu()
    a('v_add_f32 v18, v14, v15\nv_mul_f32 v19, v14, v14\nv_fmac_f32 v19, v15, v15')
    a('s_waitcnt lgkmcnt(0)\ns_barrier')
    red6([18, 19, 18, 19, 18, 19], STAT2 - STAT, (24, 25, 26, 27))
    tr_u1(F0, R0)
    a('s_waitcnt lgkmcnt(0)\ns_barrier')
    stamp(3)
    a('s_lshl_b32 s24, s3, 7\ns_add_u32 s24, s24, 2048')
    if cfg.apre: dma_u1('s54', 's55', 512*6144, 6144, 's24', R0, i1=cfg.apre)
    a(f'v_bfe_u32 v10, v1, 2, 1\nv_lshlrev_b32 v10, 5, v10\nv_add_u32 v10, {STAT2}, v10')
    a('ds_read_b64 v[18:19], v10\ns_waitcnt lgkmcnt(0)')
    a(f's_mov_b32 s6, {f2u(1/512)}\ns_mov_b32 s7, {f2u(1e-5)}')
    a('v_mul_f32 v18, s6, v18\nv_mul_f32 v19, s6, v19\nv_fma_f32 v19, -v18, v18, v19\nv_add_f32 v19, s7, v19\nv_rsq_f32 v19, v19')
    a('v_sub_f32 v20, v14, v18\nv_sub_f32 v21, v15, v18\nv_mul_f32 v20, v20, v19\nv_mul_f32 v21, v21, v19')
    a('v_bfe_u32 v30, v1, 1, 2\nv_lshlrev_b32 v30, 3, v30\nv_bfe_u32 v11, v1, 3, 1\nv_lshl_add_u32 v30, v11, 9, v30\nv_bfe_u32 v11, v1, 4, 1\nv_lshl_add_u32 v30, v11, 8, v30')
    a(f's_lshl_b32 s6, s4, 5\ns_add_u32 s6, s6, {X1}\nv_add_u32 v30, s6, v30')
    a(f'v_lshlrev_b32 v31, 4, v1\nv_add_u32 v29, {X1}, v31\nv_lshrrev_b32 v11, 5, v1\nv_mul_u32_u24 v11, 1536, v11\nv_add_u32 v31, v31, v11')
    vpoll(mloads, range(AT+1, AT+16, 2), 22, first_issued=True, tags=True, sleep=cfg.slp, first_cnt=cfg.apre)
    stamp(4)
    a(f'v_add_f32 v22, v{AT}, v{AT+8}\nv_add_f32 v23, v{AT+2}, v{AT+10}\nv_add_f32 v24, v{AT+4}, v{AT+12}\nv_add_f32 v25, v{AT+6}, v{AT+14}')
    a('v_add_f32 v24, 1.0, v24\nv_add_f32 v25, 1.0, v25\nv_fma_f32 v20, v20, v24, v22\nv_fma_f32 v21, v21, v25, v23')
    a('v_cvt_pk_bf16_f32 v20, v20, v21\nds_write_b32 v7, v20\ns_waitcnt lgkmcnt(0)\ns_barrier')
    stamp(5)
    tr_u1(F1, R1)
    gemv([F0, F1], Ds=[DD, 24])
    a(f'v_add_f32_dpp v{Z}, v{DD+2}, v{DD} row_ror:8 row_mask:0x1 bank_mask:0x3')
    a(f'v_add_f32_dpp v{Z}, v{DD+1}, v{DD+3} row_ror:8 row_mask:0x1 bank_mask:0xc')
    a(f'v_add_f32_dpp v{Z}, v26, v24 row_ror:8 row_mask:0x2 bank_mask:0x3')
    a(f'v_add_f32_dpp v{Z}, v25, v27 row_ror:8 row_mask:0x2 bank_mask:0xc')
    a(f'v_mov_b32_dpp v{T}, v{Z} quad_perm:[1,1,3,3] row_mask:0xf bank_mask:0xf')
    a(f's_mov_b64 exec, 0x55555555')
    a(f'v_cvt_pk_bf16_f32 v{T}, v{Z}, v{T}')
    a(f'ds_write_b64 v30, v[{T}:{T+1}]\ns_mov_b64 exec, -1')
    a('s_waitcnt lgkmcnt(0)\ns_barrier')
    a('s_cmp_lg_u32 s4, 0\ns_cbranch_scc1 L_nqp')
    a(f's_lshr_b32 s6, s3, 2\ns_lshl_b32 s6, s6, 12\ns_and_b32 s7, s3, 3\ns_lshl_b32 s7, s7, 9\ns_add_u32 s6, s6, s7\ns_add_u32 s6, s6, {QO}')
    a('ds_read_b128 v[24:27], v29\ns_waitcnt lgkmcnt(0)')
    a('buffer_store_dwordx4 v[24:27], v31, s[16:19], s6 offen sc1')
    a('L_nqp:')
    stamp(6)
    dma_u1('s54', 's55', 512*6144, 6144, 's24', R0, i0=cfg.apre)
    a('s_waitcnt vmcnt(0)\ns_barrier')
    tr_u1(F0, R0)
    gemv(F0, off=ACTC-ACT); fold()
    a(f's_lshl_b32 s6, s3, 10\ns_add_u32 s6, s6, {MODB}')
    publish_tag(Z, 's6')
    stamp(7)
    if cfg.stamps:
        a('s_cmp_lg_u32 s4, 0\ns_cbranch_scc1 L_end')
        stamps_out(8, 0)
    a('s_endpgm')

    a('L_tail:')
    a(f's_waitcnt vmcnt({cfg.pre})')
    stamp(2)
    silu()
    a('s_load_dwordx8 s[52:59], s[0:1], 48')
    a('s_load_dwordx2 s[46:47], s[0:1], 96')
    a('v_bfe_u32 v11, v1, 1, 1\nv_lshlrev_b32 v10, 14, v11\nv_sub_u32 v10, v3, v10')
    a('v_mul_u32_u24 v11, 320, v11\nv_sub_u32 v11, v4, v11\ns_and_b32 s6, s3, 1\ns_mul_i32 s6, s6, 576\nv_add_u32 v11, s6, v11')
    a('s_waitcnt lgkmcnt(0)\ns_barrier')
    tr_u1(F0, R0, 4, 'v10')
    gemv(F0, 'v11', off=ACTC-ACT, steps=4); fold()
    a('s_and_b32 s6, s3, 1\ns_lshl_b32 s6, s6, 14\ns_lshr_b32 s7, s3, 1\ns_lshl_b32 s7, s7, 10\ns_add_u32 s6, s6, s7')
    publish_tag(Z, 's6')
    stamp(3)
    dma_w(8 + cfg.pre, 16, setup=False)
    a('s_barrier')
    dma_w(0, 8, setup=False)
    a('v_lshrrev_b32 v10, 4, v1\nv_bfe_u32 v11, v1, 2, 2\nv_lshl_add_u32 v10, v10, 3, v11\nv_lshlrev_b32 v10, 9, v10')
    a('v_and_b32 v11, 3, v1\nv_lshl_add_u32 v10, v11, 3, v10')
    a('v_bfe_u32 v11, v1, 2, 3\nv_lshlrev_b32 v11, 5, v11\ns_lshl_b32 s6, s4, 6\nv_xor_b32 v11, s6, v11')
    a('v_add_u32 v22, v10, v11\nv_xor_b32 v11, 32, v11\nv_add_u32 v30, v10, v11')
    def tr_w(half):
        for cg, ad in ((0, 22), (1, 30)):
            if half: a(f'v_add_u32 v{10+cg}, {R1}, v{ad}')
            for s_ in range(4):
                for hh in range(2):
                    r = (F0, F1)[cg] + 4*(4*half + s_) + 2*hh
                    a(f'ds_read_b64_tr_b16 v[{r}:{r+1}], v{10+cg if half else ad} offset:{16384*s_ + 2048*hh}')
    a(f's_getreg_b32 s6, hwreg(HW_REG_XCC_ID)\ns_and_b32 s31, s6, 15\nv_mov_b32 v{T}, s31')
    a(f's_lshl_b32 s6, s3, 7\ns_add_u32 s6, s6, {XID}\nv_lshlrev_b32 v10, 3, v1')
    a('s_cmp_eq_u32 s4, 0\ns_cselect_b32 exec_lo, 0xffff, 0\ns_mov_b32 exec_hi, 0\ns_cbranch_execz L_nxid')
    a(f'buffer_store_dwordx2 v[{T}:{T+1}], v10, s[16:19], s6 offen sc1')
    a('L_nxid:')
    a('s_mov_b64 exec, -1')
    a('s_waitcnt vmcnt(8)\ns_barrier')
    stamp(4)
    tr_w(1)
    a('s_waitcnt lgkmcnt(0)\ns_barrier')
    a('s_cmp_ge_u32 s3, 28\ns_cbranch_scc1 L_nom1')
    a('s_lshl_b32 s24, s3, 7')
    dma_u1('s52', 's53', 512*3584, 3584, 's24', R1)
    stamp(5)
    a('s_waitcnt vmcnt(8)\ns_branch L_m1d')
    a('L_nom1:')
    a('s_waitcnt vmcnt(0)')
    a('L_m1d:')
    a('s_barrier')
    tr_w(0)
    a('s_waitcnt lgkmcnt(0)\ns_barrier')
    stamp(7)
    a('s_cmp_ge_u32 s3, 28\ns_cbranch_scc1 L_nom2')
    srd(20, 's56', 's57', 1792*1024)
    a('s_and_b32 s6, s4, 1\ns_lshl_b32 s6, s6, 7\nv_lshlrev_b32 v2, 4, v1\nv_xor_b32 v2, s6, v2')
    a('v_xor_b32 v10, 32, v2\nv_xor_b32 v11, 64, v2\nv_xor_b32 v12, 96, v2')
    a(f's_lshl_b32 s27, s3, 16\ns_lshl_b32 s28, s4, 13\ns_add_u32 s27, s27, s28')
    for hh in range(2):
        a('s_mov_b32 m0, s28')
        for i in range(4): a(f'buffer_load_dwordx4 v{(2,10,11,12)[i]}, s[20:23], s27 offen offset:{1024*i} {cfg.NT} lds')
        if hh == 0: a('s_add_u32 s27, s27, 4096\ns_add_u32 s28, s28, 4096')
    stamp(6)
    if cfg.touch:
        a(f's_lshl_b32 s6, s3, 12\ns_add_u32 s6, s6, {MOUT}\nbuffer_load_dwordx2 v[{DD}:{DD+1}], v5, s[16:19], s6 offen sc1')
    a('v_and_b32 v10, 7, v1\nv_lshlrev_b32 v10, 1, v10')
    a('s_and_b32 s6, s3, 7\ns_lshl_b32 s6, s6, 7\ns_lshl_b32 s7, s4, 4\ns_add_u32 s6, s6, s7')
    a('v_add_u32 v11, s6, v10\nglobal_load_ushort v24, v11, s[58:59]')
    a('s_lshl_b32 s6, s3, 7\ns_add_u32 s6, s6, s7')
    a('v_add_u32 v11, s6, v10\nglobal_load_ushort v25, v11, s[54:55]')
    a('L_nom2:')
    if cfg.touch:
        a(f's_lshl_b32 s6, s3, 10\ns_add_u32 s6, s6, {WOUT}\nv_lshlrev_b32 v10, 4, v1\nbuffer_load_dword v{DD+2}, v10, s[16:19], s6 offen sc1')
    a(f'v_and_b32 v10, 31, v1\nv_lshlrev_b32 v10, 7, v10\ns_mov_b32 s6, {XID}')
    vpoll([f'buffer_load_dwordx2 v[{AT}:{AT+1}], v10, s[16:19], s6 offen sc1'], [AT+1], None, sleep=cfg.slp, tags=True)
    a(f'v_cmp_ne_u32 vcc, s31, v{AT}\ns_cmp_eq_u64 vcc, 0\ns_cselect_b32 s32, 1, 0')
    a('s_cmp_ge_u32 s3, 28\ns_cbranch_scc1 L_wst')
    a('s_barrier')
    tr_u1(F2, R1)
    a('v_and_b32 v11, 15, v1\nv_lshlrev_b32 v11, 3, v11')
    a(f's_and_b32 s6, s3, 7\ns_lshl_b32 s6, s6, 10\ns_lshl_b32 s7, s4, 7\ns_add_u32 s6, s6, s7\ns_add_u32 s63, s6, {MODB + 24*1024}')
    for k in range(3): a(f's_mov_b32 s{60+k}, {MODB + 8192*k}')
    a('v_lshlrev_b32 v24, 16, v24\nv_lshlrev_b32 v25, 16, v25')
    a(f'v_mov_b32 v{AT+15}, 0x3f803f80\nds_write_b32 v7, v{AT+15} offset:{ACTM-ACT+3*TS}')
    stamp(1)
    vpoll([f'buffer_load_dwordx4 v[{AT+4*k}:{AT+4*k+3}], v28, s[16:19], s{60+k} offen sc1' for k in range(3)] +
          [f'buffer_load_dwordx2 v[{AT+12}:{AT+13}], v11, s[16:19], s63 offen sc1'], range(AT+1, AT+14, 2), AT+14, sleep=cfg.slp, tags=True)
    stamp(8)
    a(f'v_mov_b32 v23, v{AT+12}\nv_mov_b32 v16, v{AT}\nv_mov_b32 v17, v{AT+2}')
    a(f'v_add_f32 v18, 1.0, v{AT+8}\nv_add_f32 v19, 1.0, v{AT+10}\nv_cvt_pk_bf16_f32 v{AT+1}, v{AT+4}, v{AT+6}\nv_cvt_pk_bf16_f32 v{AT+3}, v18, v19')
    unpack(18, 19, AT+3); unpack(20, 21, AT+1)
    a(f'ds_write_b32 v7, v{AT+3} offset:{ACTM-ACT+TS}\nds_write_b32 v7, v{AT+1} offset:{ACTM-ACT+2*TS}')
    t = AT + 16
    a(f'v_add_f32 v{t}, v18, v19\nv_mul_f32 v{t+1}, v18, v18\nv_fmac_f32 v{t+1}, v19, v19')
    a(f'v_mul_f32 v{t+2}, v18, v20\nv_fmac_f32 v{t+2}, v19, v21\nv_add_f32 v{t+3}, v20, v21')
    a(f'v_mul_f32 v{t+4}, v20, v20\nv_fmac_f32 v{t+4}, v21, v21')
    red6([t, t+1, t+2, t+3, t+4, t+4], STAT3 - STAT, (t+6, t+7, t+8, t+9))
    a('L_wst:')
    a('s_lshr_b32 s6, s4, 2\ns_lshl_b32 s24, s6, 3\ns_lshr_b32 s7, s26, 1\ns_add_u32 s24, s24, s7')
    a('s_and_b32 s7, s26, 1\ns_lshl_b32 s7, s7, 1\ns_bfe_u32 s28, s4, 0x10001\ns_add_u32 s7, s7, s28')
    a(f's_lshl_b32 s27, s24, 11\ns_lshl_b32 s29, s7, 3\ns_add_u32 s27, s27, s29\ns_add_u32 s27, s27, {LSE}')
    a(f's_lshl_b32 s60, s24, 14\ns_lshl_b32 s29, s7, 8\ns_add_u32 s60, s60, s29\ns_and_b32 s29, s4, 1\ns_lshl_b32 s29, s29, 7\ns_add_u32 s60, s60, s29\ns_add_u32 s60, s60, {OP}')
    a('s_add_u32 s61, s60, 4096')
    a(f's_mul_i32 s6, s6, 576\ns_and_b32 s29, s4, 3\ns_lshl_b32 s29, s29, 7\ns_add_u32 s6, s6, s29\ns_add_u32 s6, s6, {ACT}')
    a('s_mov_b32 s62, 6144\nv_and_b32 v2, 31, v1\nv_lshlrev_b32 v2, 2, v2\nv_add_u32 v31, s6, v2\nv_lshrrev_b32 v10, 5, v1\nv_mad_u32_u24 v2, v10, s62, v2')
    a(f's_lshl_b32 s29, s3, 10\ns_add_u32 s29, s29, {WOUT}')
    a(f'v_and_b32 v22, 1, v1\nv_mul_u32_u24 v22, 576, v22\nv_lshrrev_b32 v11, 4, v1\nv_lshl_add_u32 v22, v11, 4, v22\nv_add_u32 v22, {ACT}, v22')
    a('v_bfe_u32 v8, v1, 1, 2\nv_lshlrev_b32 v8, 2, v8\nv_bfe_u32 v11, v1, 4, 1\nv_lshl_add_u32 v8, v11, 4, v8\nv_bfe_u32 v11, v1, 3, 1\nv_lshl_add_u32 v8, v11, 5, v8')
    a('v_lshl_add_u32 v8, v10, 6, v8\ns_lshl_b32 s6, s4, 7\nv_add_u32 v8, s6, v8')
    a(f'v_lshlrev_b32 v10, 7, v1\nv_mov_b32 v{AT}, 0xff800000')
    stamp(9)
    a(f's_mov_b64 exec, {(1 << NCH) - 1:#x}')
    vpoll([f'buffer_load_dwordx2 v[{AT}:{AT+1}], v10, s[16:19], s27 offen sc1'], [AT+1], None, sleep=cfg.slp, tags=True)
    a('s_mov_b64 exec, -1')
    a(f'v_mov_b32 v{AT+1}, v{AT}')
    for r in (1, 2, 4, 8): a(f'v_max_f32_dpp v{AT+1}, v{AT+1}, v{AT+1} row_ror:{r} row_mask:0xf bank_mask:0xf')
    a(f'v_sub_f32 v{AT}, v{AT}, v{AT+1}\nv_exp_f32 v{AT}, v{AT}\nv_mov_b32 v{AT+1}, v{AT}')
    for r in (1, 2, 4, 8): a(f'v_add_f32_dpp v{AT+1}, v{AT+1}, v{AT+1} row_ror:{r} row_mask:0xf bank_mask:0xf')
    a(f'v_rcp_f32 v{AT+1}, v{AT+1}\nv_mul_f32 v{AT}, v{AT}, v{AT+1}')
    a('v_lshrrev_b32 v10, 5, v1\nv_mul_u32_u24 v10, 24, v10')
    for i in range(6):
        a(f'ds_bpermute_b32 v{AT+24+i}, v10, v{AT} offset:{4*i}')
    a('s_waitcnt lgkmcnt(0)')
    vpoll([f'buffer_load_dword v{AT+c}, v2, s[16:19], s{60+(c>>2)} offen offset:{1024*(c&3)} sc1' for c in range(6)], [AT+c for c in range(6)], AT+12)
    stamp(10)
    acc = AT + 20
    for c in range(6):
        tq = AT + 8 + 2*c
        unpack(tq, tq+1, AT+c)
    for c in range(6):
        tq = AT + 8 + 2*c; wp = AT + 24 + (c & ~1)
        mod = 'op_sel_hi:[1,0,1]' if (c & 1) == 0 else 'op_sel:[0,1,0] op_sel_hi:[1,1,1]'
        mod2 = 'op_sel_hi:[1,0]' if (c & 1) == 0 else 'op_sel:[0,1] op_sel_hi:[1,1]'
        ac = acc + 2*(c & 1)
        if c < 2: a(f'v_pk_mul_f32 v[{ac}:{ac+1}], v[{tq}:{tq+1}], v[{wp}:{wp+1}] {mod2}')
        else: a(f'v_pk_fma_f32 v[{ac}:{ac+1}], v[{tq}:{tq+1}], v[{wp}:{wp+1}], v[{ac}:{ac+1}] {mod}')
    a(f'v_pk_add_f32 v[{acc}:{acc+1}], v[{acc}:{acc+1}], v[{acc+2}:{acc+3}]')
    a(f'v_permlane32_swap_b32 v{acc}, v{acc+1}')
    a(f'v_add_f32 v{acc}, v{acc}, v{acc+1}')
    a(f'v_mov_b32 v{acc+1}, v{acc}\nv_permlane32_swap_b32 v{acc}, v{acc+1}')
    a(f's_mov_b64 exec, 0xffffffff\nv_cvt_pk_bf16_f32 v{acc}, v{acc}, v{acc+1}\nds_write_b32 v31, v{acc}\ns_mov_b64 exec, -1\ns_waitcnt lgkmcnt(0)\ns_barrier')
    gemv([F0, F1], 'v22', Ds=[DD, Z])
    a(f'v_mov_b32_dpp v10, v{DD} quad_perm:[0,1,2,3] row_mask:0x1 bank_mask:0xf')
    a(f'v_mov_b32_dpp v10, v{DD+1} quad_perm:[0,1,2,3] row_mask:0x2 bank_mask:0xf')
    a(f'v_mov_b32_dpp v10, v{Z} quad_perm:[0,1,2,3] row_mask:0x4 bank_mask:0xf')
    a(f'v_mov_b32_dpp v10, v{Z+1} quad_perm:[0,1,2,3] row_mask:0x8 bank_mask:0xf')
    a('s_cmp_lg_u32 s32, 0')
    a('v_mov_b32_dpp v11, v10 quad_perm:[1,1,3,3] row_mask:0xf bank_mask:0xf')
    a('s_mov_b32 exec_lo, 0x55555555\ns_mov_b32 exec_hi, 0x55555555')
    a('v_cvt_pk_bf16_f32 v11, v10, v11')
    store2('buffer_store_dword v11, v8, s[16:19], s29 offen')
    a('s_mov_b64 exec, -1')
    stamp(11)
    a('s_cmp_ge_u32 s3, 28\ns_cbranch_scc1 L_hdone')

    a('v_lshrrev_b32 v10, 4, v1\nv_bfe_u32 v11, v1, 2, 2\nv_lshl_add_u32 v10, v10, 3, v11\nv_lshlrev_b32 v10, 10, v10')
    a(f'v_and_b32 v11, 3, v1\nv_lshl_add_u32 v10, v11, 3, v10')
    a('v_bfe_u32 v11, v1, 2, 3\nv_lshlrev_b32 v11, 5, v11\ns_lshl_b32 s6, s4, 7\nv_xor_b32 v11, s6, v11')
    for cg in range(4):
        a(f'v_xor_b32 v12, {32*cg}, v11\nv_add_u32 v{60+cg}, v10, v12')
    for cg in range(4):
        for s in range(2):
            for hh in range(2):
                r = F1 + (cg*2 + s)*4 + 2*hh
                a(f'ds_read_b64_tr_b16 v[{r}:{r+1}], v{60+cg} offset:{32768*s + 4096*hh}')
    a(f's_mov_b32 s60, {WOUT}\ns_mov_b32 s61, {WOUT+4096}\ns_mov_b32 s62, {WOUT+8192}\ns_mov_b32 s63, {WOUT+12288}')
    a('v_lshlrev_b32 v59, 2, v0\nv_add_u32 v58, 0x4000, v59')
    wloads = [f'buffer_load_dword v{AT+k}, v{59 - (k >> 3)}, s[16:19], s{60+((k>>1)&3)} offen offset:{2048*(k&1)} sc1' for k in range(16)]
    for x in wloads: a(x)
    a(f'v_bfe_u32 v10, v1, 3, 1\nv_lshlrev_b32 v40, 5, v10\nv_add_u32 v40, {STAT}, v40')
    a(f'ds_read_b128 v[26:29], v40 offset:{STAT3-STAT}\nds_read_b32 v30, v40 offset:{STAT3-STAT+16}')
    a(f'v_and_b32 v11, 7, v1\nv_mul_u32_u24 v41, 192, v10\nv_lshl_add_u32 v41, v11, 1, v41\ns_lshl_b32 s6, s4, 4\ns_add_u32 s6, s6, {HID}\nv_add_u32 v41, s6, v41')
    a(f'v_and_b32 v12, 1, v1\nv_mul_u32_u24 v42, 192, v12\nv_lshrrev_b32 v12, 4, v1\nv_lshl_add_u32 v42, v12, 4, v42\nv_add_u32 v42, {HID}, v42')
    a(f'v_bfe_u32 v43, v1, 2, 2\nv_mul_u32_u24 v43, {TS}, v43\nv_add_u32 v43, v43, v4')
    a('s_and_b32 s6, s3, 7\ns_lshl_b32 s6, s6, 6\ns_lshl_b32 s7, s4, 3\ns_add_u32 s6, s6, s7\nv_add_u32 v11, s6, v11')
    a('v_lshrrev_b32 v12, 3, v1\nv_lshlrev_b32 v44, 12, v12\nv_lshl_add_u32 v44, v11, 3, v44')
    a('v_add_u32 v45, 0x8000, v44\nv_add_u32 v46, 0x10000, v44\nv_add_u32 v47, 0x18000, v44')
    a(f'v_lshlrev_b32 v48, 11, v10\nv_lshl_add_u32 v48, v11, 2, v48\nv_add_u32 v48, {X1}, v48')
    a('v_lshlrev_b32 v49, 10, v10\nv_lshl_add_u32 v49, v11, 1, v49')
    a(f's_add_u32 s20, s14, {MOUT}\ns_addc_u32 s21, s15, 0\ns_mov_b32 s22, {28*4096}\ns_mov_b32 s23, 0x20000')
    a(f's_lshl_b32 s24, s3, 12')
    a('s_mov_b32 s36, 0xffff0000\ns_mov_b32 s37, 0\ns_mov_b32 s38, 0\ns_mov_b32 s39, 0xffff\ns_mov_b32 s44, 0\ns_mov_b32 s45, 0xffff0000')
    a(f's_mov_b32 s40, {f2u(1/512)}\ns_mov_b32 s41, {f2u(1e-5)}\ns_mov_b32 s42, {f2u(0.044715)}\ns_mov_b32 s43, {f2u(-2*math.sqrt(2/math.pi)*LOG2E)}')
    a('v_mov_b32 v50, 0x3f80\nv_mov_b32 v51, 0x3f800000')
    vpoll(wloads, [AT+k for k in range(16)], AT+16, first_issued=True)
    stamp(12)
    s0, s1 = AT+16, AT+17
    for k in range(16):
        o = 2*(k & 1)
        c0 = '0' if k < 2 else f'v{s0+o}'; c1 = '0' if k < 2 else f'v{s1+o}'
        a(f'v_dot2_f32_bf16 v{s0+o}, v{AT+k}, v50, {c0}\nv_dot2_f32_bf16 v{s1+o}, v{AT+k}, v51, {c1}')
    a('s_nop 2')
    a(f'v_pk_add_f32 v[{s0}:{s1}], v[{s0}:{s1}], v[{s0+2}:{s1+2}]')
    x0, x1, a0, a1 = AT+12, AT+13, AT+14, AT+15
    a(f'v_fma_f32 v{x0}, v16, v{s0}, v14\nv_fma_f32 v{x1}, v17, v{s1}, v15')
    a(f'v_mul_f32 v{a0}, v{x0}, v18\nv_mul_f32 v{a1}, v{x1}, v19')
    a(f'v_cvt_pk_bf16_f32 v{AT}, v{a0}, v{a1}\nds_write_b32 v7, v{AT} offset:{ACTM-ACT}\nds_write_b64 v9, v[{x0}:{x1}]')
    t = AT + 20
    a(f'v_add_f32 v{t}, v{x0}, v{x1}\nv_mul_f32 v{t+1}, v{x0}, v{x0}\nv_add_f32 v{t+2}, v{a0}, v{a1}\nv_mul_f32 v{t+3}, v{a0}, v{a0}')
    a(f'v_mul_f32 v{t+4}, v{a0}, v18\nv_mul_f32 v{t+5}, v{a0}, v20')
    a(f'v_fmac_f32 v{t+1}, v{x1}, v{x1}\nv_fmac_f32 v{t+3}, v{a1}, v{a1}\nv_fmac_f32 v{t+4}, v{a1}, v19\nv_fmac_f32 v{t+5}, v{a1}, v21')
    red6([t, t+1, t+2, t+3, t+4, t+5], 0, (t+6, t+7, t+8, t+9))
    a('s_waitcnt lgkmcnt(0)\ns_barrier')
    a('ds_read_b128 v[52:55], v40\nds_read_b64 v[56:57], v40 offset:16')
    fill = [
        'v_mul_f32 v52, s40, v52', 'v_mul_f32 v53, s40, v53', 'v_fma_f32 v53, -v52, v52, v53', 'v_add_f32 v53, s41, v53',
        'v_rsq_f32 v53, v53', 'v_fma_f32 v54, -v52, v26, v54', 'v_fma_f32 v58, v52, v27, -v56', 'v_sub_f32 v58, v58, v56',
        'v_fma_f32 v55, v52, v58, v55', 'v_fma_f32 v57, -v52, v28, v57', 'v_fma_f32 v54, v53, v54, v29', 'v_mul_f32 v55, v53, v55',
        'v_add_f32 v57, v57, v57', 'v_add_f32 v55, v55, v57', 'v_fma_f32 v55, v53, v55, v30', 'v_mul_f32 v54, s40, v54',
        'v_mul_f32 v55, s40, v55', 'v_fma_f32 v55, -v54, v54, v55', 'v_add_f32 v55, s41, v55', 'v_rsq_f32 v55, v55',
        'v_mul_f32 v53, v53, v55', 'v_mul_f32 v52, -v52, v53', 'v_mul_f32 v54, -v54, v55',
        'v_cndmask_b32 v53, v53, v52, s[36:37]', 'v_cndmask_b32 v53, v53, v55, s[38:39]', 'v_cndmask_b32 v53, v53, v54, s[44:45]',
    ]
    gemv(F2, 'v43', fill, ACTM-ACT); fold()
    a(f'v_mul_f32 v{Z}, v{Z}, v53')
    a(f'v_mov_b32 v{T}, v{Z}\nv_permlane16_swap_b32 v{Z}, v{T}\nv_add_f32 v{Z}, v{Z}, v{T}')
    a(f'v_mov_b32 v{T}, v{Z}\nv_permlane32_swap_b32 v{Z}, v{T}\nv_add3_u32 v10, v10, v10, v10' if False else f'v_mov_b32 v{T}, v{Z}\nv_permlane32_swap_b32 v{Z}, v{T}')
    a(f'v_add_f32 v{Z}, v{Z}, v25\nv_add_f32 v{Z}, v{Z}, v{T}')
    a(f'v_mul_f32 v{T}, v{Z}, v{Z}\nv_fma_f32 v{T}, v{T}, s42, 1.0\nv_mul_f32 v{T}, v{T}, v{Z}\nv_mul_f32 v{T}, s43, v{T}')
    a(f'v_exp_f32 v{T}, v{T}\nv_add_f32 v{T}, 1.0, v{T}\nv_rcp_f32 v{T}, v{T}\nv_mul_f32 v{T}, v{T}, v{Z}')
    a(f'v_cvt_pk_bf16_f32 v{T}, v{T}, v{T}')
    a(f's_mov_b64 exec, 0xffff\nds_write_b16 v41, v{T}\ns_mov_b64 exec, -1')
    a('s_waitcnt lgkmcnt(0)\ns_barrier')
    a(f'ds_read_b128 v[{AT}:{AT+3}], v42\nds_read_b128 v[{AT+4}:{AT+7}], v42 offset:64')
    a(f'ds_read_b32 v52, v48')
    for s in range(2):
        a(f's_waitcnt lgkmcnt({2-s})')
        for cg in range(4):
            ac = AT + 8 + 4*cg; fr = F1 + (cg*2 + s)*4
            c = '0' if s == 0 else f'v[{ac}:{ac+3}]'
            a(f'v_mfma_f32_16x16x32_bf16 v[{ac}:{ac+3}], v[{AT+4*s}:{AT+4*s+3}], v[{fr}:{fr+3}], {c}')
    y = AT + 24
    a('s_cmp_lg_u32 s32, 0')
    for r in range(2): a(f'v_cndmask_b32 v{y+r}, v{AT+8+r}, v{AT+12+r}, s[36:37]')
    for r in range(2): a(f'v_cndmask_b32 v{y+r}, v{y+r}, v{AT+16+r}, s[38:39]')
    for r in range(2): a(f'v_cndmask_b32 v{y+r}, v{y+r}, v{AT+20+r}, s[44:45]')
    store2(f'buffer_store_dwordx2 v[{y}:{y+1}], v5, s[20:23], s24 offen')
    stamp(13)
    a('s_cmp_ge_u32 s3, 8\ns_cbranch_scc1 L_hdone')
    srd(24, 's46', 's47', 2048)
    vpoll([f'buffer_load_dwordx2 v[{AT+2*i}:{AT+2*i+1}], v{44+i}, s[20:23], 0 offen sc1' for i in range(4)], [AT+k for k in range(8)], AT+8)
    stamp(14)
    a(f'v_pk_add_f32 v[{AT}:{AT+1}], v[{AT}:{AT+1}], v[{AT+2}:{AT+3}]\nv_pk_add_f32 v[{AT+4}:{AT+5}], v[{AT+4}:{AT+5}], v[{AT+6}:{AT+7}]')
    a(f'v_pk_add_f32 v[{AT}:{AT+1}], v[{AT}:{AT+1}], v[{AT+4}:{AT+5}]')
    a(f'v_add_f32_dpp v{Z}, v{AT}, v{AT} row_ror:8 row_mask:0xf bank_mask:0x3')
    a(f'v_add_f32_dpp v{Z}, v{AT+1}, v{AT+1} row_ror:8 row_mask:0xf bank_mask:0xc')
    a(f'v_mov_b32 v{T}, v{Z}\nv_permlane16_swap_b32 v{Z}, v{T}\nv_add_f32 v{Z}, v{Z}, v{T}')
    a(f'v_mov_b32 v{T}, v{Z}\nv_permlane32_swap_b32 v{Z}, v{T}\nv_add_f32 v{Z}, v{Z}, v{T}')
    a(f's_waitcnt lgkmcnt(0)\nv_add_f32 v{Z}, v{Z}, v24\nv_fma_f32 v{Z}, v23, v{Z}, v52')
    a(f'v_mov_b32_dpp v{T}, v{Z} quad_perm:[1,1,3,3] row_mask:0xf bank_mask:0xf')
    a(f's_mov_b64 exec, 0x5555')
    a(f'v_cvt_pk_bf16_f32 v{T}, v{Z}, v{T}')
    a(f'buffer_store_dword v{T}, v49, s[24:27], 0 offen')
    a('s_or_b32 s6, s3, s4\ns_cmp_lg_u32 s6, 0\ns_cbranch_scc1 L_noep')
    a(f's_mov_b64 exec, 1\nv_mov_b32 v10, {EPO}\nv_mov_b32 v11, s33\nbuffer_store_dword v11, v10, s[16:19], 0 offen')
    a('L_noep:')
    a('s_mov_b64 exec, -1')
    stamp(15)
    a('L_hdone:')
    if cfg.stamps:
        a('s_cmp_lg_u32 s4, 0\ns_cbranch_scc1 L_end')
        stamps_out(16, 0)
        a('s_cmp_lg_u32 s2, 0\ns_cbranch_scc1 L_end')
        for n, i in enumerate((1, 4, 7, 8, 9, 10, 11, 12, 13, 14, 15)):
            a(f's_sub_u32 s60, s{64+2*i}, s64\nv_mov_b32 v4, s60\nglobal_store_dword v2, v4, s[12:13] offset:{16+4*n}')
        a('v_mov_b32 v4, s32\nglobal_store_dword v2, v4, s[12:13]')
        a('s_waitcnt vmcnt(0)')
    a('L_end:')
    a('s_endpgm')
    return wrap(a.finalize(), 256, 768, LDS_TOTAL, 168, sgpr=100)

if __name__ == '__main__':
    out = sys.argv[1]
    for o in sys.argv[2:]:
        k, v = o.split('=')
        setattr(cfg, k, eval(v))
    open(out, 'w').write(gen())
```

```python
import sys, math, struct
from asmlib import *
from gen_common import *

class Cfg:
    stamps = False
    NT = 'nt'
    warm = True
    prio = True
    slp = 2
    qslp = 4
    thS = 4
    thV = 3
    pre = 2
    touch = True
    diag = None
    T0 = 1900
    apre = 0
    fast = True
cfg = Cfg()

MODA=0; MODB=0x8000; QO=0x10000; XID=0x18000; EPO=0x1A800; WOUT=0x1C000; MOUT=0x24000; OP=0x40000; STMP=0x80000; LSE=0x90000; WS_SZ=0x100000
NCH = 12
KW=36864; PREG=147456; ZERO=153600; ST=154176; QL=154368; QF=155392; SCR=0; LDS_TOTAL=155648
R0=0; R1=65536; ACT=131072; ACTC=133376; ACTM=135680; TS=2336; HID=145024; STAT=145408; STAT2=145472; STAT3=145536; X1=145664
LIMIT = 200000
LOG2E = 1.4426950408889634
def f2u(x): return '0x%08x' % struct.unpack('<I', struct.pack('<f', x))[0]

def gen():
    a = Asm()
    uid = [0]
    def lab(p):
        uid[0] += 1; return f'L_{p}_{uid[0]}'
    def stamp(i):
        if cfg.stamps: a(f's_memrealtime s[{64+2*i}:{65+2*i}]')
    def stamps_out(n, base_slot):
        if not cfg.stamps: return
        a('s_waitcnt lgkmcnt(0)')
        a('s_mov_b64 exec, 1')
        a(f's_lshl_b32 s60, s2, 7\ns_add_u32 s60, s60, {STMP + base_slot*8}')
        a('v_mov_b32 v2, 0')
        for i in range(n):
            a(f'v_mov_b32 v4, s{64+2*i}\nv_mov_b32 v5, s{65+2*i}')
            a(f'buffer_store_dwordx2 v[4:5], v2, s[16:19], s60 offen offset:{8*i}')
        a('s_waitcnt vmcnt(0)')
    def srd(d, lo, hi, size):
        a(f's_mov_b32 s{d}, {lo}\ns_mov_b32 s{d+1}, {hi}\ns_mov_b32 s{d+2}, {size}\ns_mov_b32 s{d+3}, 0x20000')
    def epoch_load():
        a(f's_load_dword s33, s[14:15], {EPO}')
    def epoch_tag():
        a('s_mul_i32 s33, s33, 0x9E3779B1\ns_add_u32 s33, s33, 0x85EBCA6B')
    def red3(op, regs, tmp):
        rs = list(regs)
        if len(rs) == 1: return rs[0]
        first = True
        while rs:
            if first:
                if len(rs) >= 3: a(f'v_{op}3_u32 v{tmp}, v{rs[0]}, v{rs[1]}, v{rs[2]}'); rs = rs[3:]
                else: a(f'v_{op}_u32 v{tmp}, v{rs[0]}, v{rs[1]}'); rs = rs[2:]
                first = False
            elif len(rs) >= 2: a(f'v_{op}3_u32 v{tmp}, v{tmp}, v{rs[0]}, v{rs[1]}'); rs = rs[2:]
            else: a(f'v_{op}_u32 v{tmp}, v{tmp}, v{rs[0]}'); rs = rs[1:]
        return tmp
    def vpoll(loads, regs, tmp, sleep=0, first_issued=False, tags=False, dbg=None, first_cnt=0):
        l = lab('vp'); d = lab('vd'); w = lab('vw')
        a('s_mov_b32 s30, 0')
        if first_issued: a(f's_waitcnt vmcnt({first_cnt})\ns_branch {w}')
        a(f'{l}:')
        for x in loads: a(x)
        a('s_add_u32 s30, s30, 1')
        a('s_waitcnt vmcnt(0)')
        if first_issued: a(f'{w}:')
        if dbg is not None and cfg.stamps:
            p, q_, n_ = dbg
            a(f's_mov_b64 s[{64+2*p}:{65+2*p}], s[{64+2*q_}:{65+2*q_}]')
            stamp(q_); a('s_waitcnt lgkmcnt(0)')
            a(f's_add_u32 s{64+2*n_}, s64, s30\ns_mov_b32 s{65+2*n_}, s65')
        if tags:
            m = red3('max', regs, tmp)
            if len(list(regs)) > 1:
                n = red3('min', regs, tmp + 1)
                a(f'v_cmp_ne_u32 vcc, s33, v{m}\nv_cmp_ne_u32 s[34:35], s33, v{n}\ns_or_b64 vcc, vcc, s[34:35]')
            else:
                a(f'v_cmp_ne_u32 vcc, s33, v{m}')
        else:
            m = red3('max', regs, tmp)
            a(f'v_cmp_eq_u32 vcc, -1, v{m}')
        a(f's_cbranch_vccz {d}')
        if sleep: a(f's_sleep {sleep}')
        a(f's_cmp_lt_u32 s30, {LIMIT}\ns_cbranch_scc1 {l}')
        a(f'{d}:')
    def dma_u1(lo, hi, size, RS, sbase, region, setup=True, i0=0, i1=8):
        if setup:
            a('v_bfe_u32 v10, v1, 4, 1\nv_and_b32 v12, 7, v1\nv_xor_b32 v10, v10, v12')
            a('s_and_b32 s27, s4, 4\nv_xor_b32 v10, s27, v10')
            a(f'v_lshrrev_b32 v2, 3, v1\nv_mul_u32_u24 v2, {RS}, v2\nv_xor_b32 v12, 2, v10')
            a('v_lshl_add_u32 v12, v12, 4, v2\nv_lshl_add_u32 v2, v10, 4, v2')
        srd(20, lo, hi, size)
        a(f's_mul_i32 s27, s4, {64*RS}\ns_add_u32 s27, s27, {sbase}')
        if i0: a(f's_add_u32 s27, s27, {8*RS*i0}')
        a(f's_lshl_b32 s28, s4, 13')
        if region + i0: a(f's_add_u32 s28, s28, {region + 1024*i0}')
        for i in range(i0, i1):
            a('s_mov_b32 m0, s28')
            if i < i1-1: a('s_add_u32 s28, s28, 1024')
            a(f'buffer_load_dwordx4 v{12 if i & 1 else 2}, s[20:23], s27 offen {cfg.NT} lds')
            if i < i1-1: a(f's_add_u32 s27, s27, {8*RS}')

    def dma_w(i0, i1, setup=True):
        if setup:
            a('s_and_b32 s6, s4, 1\ns_lshl_b32 s6, s6, 6\ns_and_b32 s7, s4, 4\ns_lshl_b32 s7, s7, 5\ns_or_b32 s6, s6, s7')
            a('v_lshlrev_b32 v2, 4, v1\nv_and_b32 v2, 0x1f0, v2\nv_and_b32 v10, 32, v1\nv_xor_b32 v2, v2, v10\nv_xor_b32 v2, s6, v2\nv_lshl_add_u32 v2, v10, 5, v2')
        srd(20, 's50', 's51', 4096*1024)
        a(f's_lshl_b32 s27, s4, 11\ns_add_u32 s27, s27, s24\ns_add_u32 s27, s27, {16384*i0}')
        a(f's_lshl_b32 s28, s4, 10\ns_add_u32 s28, s28, {8192*i0}')
        for i in range(i0, i1):
            a('s_mov_b32 m0, s28')
            if i < i1-1: a('s_add_u32 s28, s28, 8192')
            a(f'buffer_load_dwordx4 v2, s[20:23], s27 offen {cfg.NT} lds')
            if i < i1-1: a('s_add_u32 s27, s27, 16384')
    a('s_cmp_ge_u32 s2, 256\ns_cbranch_scc1 L_end')
    stamp(0)
    a('v_lshrrev_b32 v1, 6, v0')
    a('s_load_dwordx4 s[12:15], s[0:1], 104')
    a('s_lshr_b32 s3, s2, 3\ns_and_b32 s5, s2, 7')
    a('v_readfirstlane_b32 s4, v1')
    a('v_and_b32 v1, 63, v0')
    if cfg.warm:
        a('s_lshr_b32 s6, s2, 4\ns_xor_b32 s7, s4, 11\ns_or_b32 s6, s6, s7\ns_cbranch_scc1 L_nw')
        a('s_getpc_b64 s[8:9]\nL_pc:\nv_lshlrev_b32 v2, 7, v1')
        a('s_mov_b32 s10, L_end-L_pc\ns_mov_b32 s11, 0x20000\ns_mov_b32 s6, 8192')
        a('buffer_load_dword v4, v2, s[8:11], 0 offen\nbuffer_load_dword v5, v2, s[8:11], s6 offen')
        a('s_endpgm')
        a('L_nw:')
    a('s_cmp_eq_u32 s5, 0\ns_cbranch_scc1 L_hearly')
    a('s_mul_i32 s3, s3, 7\ns_add_u32 s3, s3, s5\ns_sub_u32 s3, s3, 1')
    a('s_cmp_ge_u32 s3, 32\ns_cbranch_scc1 L_stream')
    a('L_hearly:')
    a('s_cmp_ge_u32 s4, 8\ns_cbranch_scc1 L_spare')
    a('s_cmp_eq_u32 s5, 0')
    a('s_cselect_b32 s6, 88, 24')
    a('s_load_dwordx2 s[20:21], s[0:1], s6')
    a('s_mov_b32 s7, 8192\ns_cselect_b32 s7, 6144, s7')
    a('s_cselect_b32 s29, 2, 4')
    a('s_cselect_b32 s24, 5, 6')
    a('s_lshl_b32 s22, s7, 9')
    a('s_lshl_b32 s25, s3, 8')
    a('s_lshr_b32 s26, s3, 1\ns_lshl_b32 s26, s26, 7\ns_and_b32 s27, s3, 1\ns_mul_i32 s27, s27, 256*6144\ns_add_u32 s26, s26, s27')
    a('s_cmp_eq_u32 s5, 0\ns_cselect_b32 s25, s26, s25')
    a('v_bfe_u32 v10, v1, 4, 1\nv_and_b32 v12, 7, v1\nv_xor_b32 v10, v10, v12')
    a('s_and_b32 s27, s4, 4\nv_xor_b32 v10, s27, v10')
    a('v_lshrrev_b32 v2, 3, v1\nv_mul_u32_u24 v2, s7, v2\nv_xor_b32 v12, 2, v10')
    a('v_lshl_add_u32 v12, v12, 4, v2\nv_lshl_add_u32 v2, v10, 4, v2')
    a('s_mov_b32 s23, 0x20000')
    a('s_lshl_b32 s6, s4, s24\ns_mul_i32 s27, s6, s7\ns_add_u32 s27, s27, s25')
    a('s_lshl_b32 s28, s6, 7\ns_lshl_b32 s7, s7, 3')
    a('s_waitcnt lgkmcnt(0)')
    a('L_hdma:')
    a('s_mov_b32 m0, s28\ns_add_u32 s28, s28, 1024')
    a(f'buffer_load_dwordx4 v2, s[20:23], s27 offen {cfg.NT} lds')
    a('s_add_u32 s27, s27, s7\ns_mov_b32 m0, s28\ns_add_u32 s28, s28, 1024')
    a(f'buffer_load_dwordx4 v12, s[20:23], s27 offen {cfg.NT} lds')
    a('s_add_u32 s27, s27, s7\ns_sub_u32 s29, s29, 1\ns_cmp_lg_u32 s29, 0\ns_cbranch_scc1 L_hdma')
    a('s_branch L_helper')
    a('L_stream:')
    a('s_load_dwordx4 s[8:11], s[0:1], 8')
    a('s_sub_u32 s6, s3, 32')
    a('s_and_b32 s24, s6, 15\ns_lshr_b32 s25, s6, 4')
    a('s_mul_i32 s6, s25, 21\ns_sub_u32 s7, s25, 8\ns_max_i32 s7, s7, 0\ns_add_u32 s6, s6, s7')
    a('s_lshl_b32 s6, s6, 13\ns_lshl_b32 s7, s24, 21\ns_add_u32 s6, s6, s7')
    a(f's_mov_b32 s22, {21*8192}\ns_cmp_ge_u32 s25, 8\ns_cselect_b32 s22, {22*8192}, s22')
    a('s_mov_b32 s23, 0x20000')
    a('s_cmp_ge_u32 s4, 4\ns_cbranch_scc1 L_vwave')
    if cfg.prio: a('s_setprio 3')
    a('v_lshrrev_b32 v7, 4, v1')
    a('v_and_b32 v15, 15, v1')
    a('v_lshlrev_b32 v6, 2, v7\nv_xor_b32 v6, v6, v15')
    a('v_lshlrev_b32 v8, 8, v7')
    a('v_lshl_add_u32 v2, v6, 4, v8')
    for t in (1, 2, 3): a(f'v_xor_b32 v{2+t}, {16*t}, v2')
    a(f's_mul_i32 s27, s4, 49152\ns_mul_i32 s28, s4, {KW}')
    a('s_waitcnt lgkmcnt(0)')
    a('s_add_u32 s20, s8, s6\ns_addc_u32 s21, s9, 0')
    a('s_mov_b32 s29, 0')
    a('L_kdma:')
    a('s_mov_b32 m0, s28')
    a('s_add_u32 s28, s28, 4096\ns_add_u32 s29, s29, 1')
    for t in range(4):
        a(f'buffer_load_dwordx4 v{2+t}, s[20:23], s27 offen offset:{1024*t} {cfg.NT} lds')
        if cfg.thS < 63: a(f's_waitcnt vmcnt({cfg.thS})')
    a('s_add_u32 s27, s27, 4096')
    a('s_cmp_lt_u32 s29, 9\ns_cbranch_scc1 L_kdma')
    epoch_load()
    a('v_and_b32 v6, 3, v15\nv_lshlrev_b32 v6, 2, v6\nv_lshrrev_b32 v9, 2, v15\nv_add_u32 v6, v6, v9')
    a('v_lshlrev_b32 v10, 8, v6')
    a('v_lshl_add_u32 v6, v7, 4, v10')
    for gi in range(3):
        for s in range(4):
            r = 96 + 16*gi + 4*s
            a(f'buffer_load_dwordx4 v[{r}:{r+3}], v6, s[20:23], s27 offen offset:{64*s} {cfg.NT}')
            if cfg.thS < 63 and 4*gi + s < 11: a(f's_waitcnt vmcnt({cfg.thS})')
        if gi < 2: a('s_add_u32 s27, s27, 4096')
    srd(16, 's14', 's15', WS_SZ)
    a(f's_lshl_b32 s26, s24, 14\ns_lshl_b32 s6, s25, 10\ns_add_u32 s26, s26, s6\ns_lshl_b32 s6, s4, 8\ns_add_u32 s26, s26, s6\ns_add_u32 s26, s26, {OP}')
    a('v_mov_b32 v156, -1\nv_lshlrev_b32 v157, 2, v1')
    a('buffer_store_dword v156, v157, s[16:19], s26 offen sc1')
    a(f's_and_b32 s7, s24, 7\ns_lshl_b32 s6, s7, 12\ns_lshr_b32 s7, s24, 3\ns_lshl_b32 s7, s7, 11\ns_add_u32 s27, s6, s7\ns_add_u32 s27, s27, {QO}')
    a('v_lshlrev_b32 v12, 4, v1')
    qloads = [f'buffer_load_dwordx4 v[{32+4*k}:{35+4*k}], v12, s[16:19], s27 offen offset:{1024*k} sc1' for k in range(2)]
    a('s_cmp_lg_u32 s4, 0\ns_cbranch_scc1 L_nq1')
    for x in qloads: a(x)
    a('L_nq1:')
    stamp(1)
    a('s_barrier')
    a(f's_mul_i32 s28, s4, {KW}')
    a('v_and_b32 v11, 3, v15\nv_xor_b32 v11, v11, v7')
    a('v_lshl_add_u32 v11, v9, 2, v11')
    a('v_lshl_add_u32 v11, v11, 4, v10\nv_add_u32 v8, s28, v11')
    for s in (1, 2, 3): a(f'v_xor_b32 v{8+s}, {64*s}, v8')
    a(f's_mul_i32 s6, s4, 1536\ns_add_u32 s6, s6, {PREG}')
    a('v_lshrrev_b32 v13, 3, v15\nv_lshlrev_b32 v13, 8, v13')
    a('v_and_b32 v14, 3, v15\nv_lshl_add_u32 v13, v14, 6, v13\nv_lshl_add_u32 v13, v7, 4, v13')
    a('v_bfe_u32 v14, v15, 2, 1\nv_lshl_add_u32 v13, v14, 3, v13\nv_add_u32 v13, s6, v13')
    for u in range(4):
        a(f's_mov_b32 s{36+2*u}, {0x000F000F << (4*u):#x}\ns_mov_b32 s{37+2*u}, {0x000F000F << (4*u):#x}')
    a('s_cmp_lt_u32 s25, 8\ns_cselect_b32 s6, 0xff00ff00, 0\ns_cmp_eq_u32 s4, 3\ns_cselect_b32 s44, s6, 0\ns_cselect_b32 s46, -1, 0\ns_mov_b32 s45, s44\ns_mov_b32 s47, s46')
    a('s_waitcnt lgkmcnt(0)')
    epoch_tag()
    stamp(2)
    a(f'v_mov_b32 v14, {QF}')
    a('s_cmp_lg_u32 s4, 0\ns_cbranch_scc1 L_nq2')
    vpoll(qloads, [33, 35, 37, 39], 160, first_issued=True, tags=True, sleep=cfg.qslp, dbg=(1, 2, 5))
    a(f'v_lshlrev_b32 v12, 3, v1\nv_add_u32 v12, {QL}, v12\nv_mov_b32 v16, 1')
    a('ds_write2_b32 v12, v32, v34 offset0:0 offset1:1\nds_write2_b32 v12, v36, v38 offset0:128 offset1:129')
    a('s_waitcnt lgkmcnt(0)\nds_write_b32 v14, v16')
    a('s_branch L_nq3')
    a('L_nq2:')
    a('s_mov_b32 s30, 0')
    a('L_qspin:')
    a('ds_read_b32 v16, v14\ns_add_u32 s30, s30, 1\ns_waitcnt lgkmcnt(0)')
    a('v_cmp_ne_u32 vcc, 1, v16\ns_cbranch_vccz L_nq3')
    a(f's_sleep 1\ns_cmp_lt_u32 s30, {LIMIT*8}\ns_cbranch_scc1 L_qspin')
    a('L_nq3:')
    a(f'v_and_b32 v12, 3, v15\nv_lshlrev_b32 v12, 8, v12\nv_lshl_add_u32 v12, v7, 4, v12\nv_add_u32 v12, {QL}, v12')
    for k in range(4): a(f'ds_read_b128 v[{16+4*k}:{19+4*k}], v12 offset:{64*k}')
    a('s_waitcnt vmcnt(0) lgkmcnt(0)')
    stamp(3)
    order = [(u, dd) for u in range(4) for dd in range(3)]
    ldsg = [4*dd+u for (u, dd) in order if 4*dd+u < 9]
    def kread(k):
        gi = ldsg[k]; buf = 64 + 16*(k & 1)
        for s in range(4):
            a(f'ds_read_b128 v[{buf+4*s}:{buf+4*s+3}], v{8+s} offset:{4096*gi}')
    kread(0)
    k = 0
    for (u, dd) in order:
        gi = 4*dd + u
        mq = 32 + 16*(u & 1)
        if u == 0 and dd == 0:
            for r in range(16): a(f'v_cndmask_b32 v{mq+r}, 0, v{16+r}, s[36:37]')
        if gi < 9:
            src = 64 + 16*(k & 1)
            if k + 1 < len(ldsg):
                kread(k + 1); a('s_waitcnt lgkmcnt(4)')
            else:
                a('s_waitcnt lgkmcnt(0)')
            k += 1
        else:
            src = 96 + 16*(gi - 9)
        D = 144 + 4*dd
        for s in range(4):
            c = '0' if (u == 0 and s == 0) else f'v[{D}:{D+3}]'
            a(f'v_mfma_f32_16x16x32_bf16 v[{D}:{D+3}], v[{src+4*s}:{src+4*s+3}], v[{mq+4*s}:{mq+4*s+3}], {c}')
            if u < 3 and dd < 2:
                mq2 = 32 + 16*((u+1) & 1)
                for r in (8*dd + 2*s, 8*dd + 2*s + 1):
                    a(f'v_cndmask_b32 v{mq2+r}, 0, v{16+r}, s[{38+2*u}:{39+2*u}]')
    a('v_mov_b32 v160, 0xff800000')
    for r in range(4): a(f'v_cndmask_b32 v{148+r}, v{148+r}, v160, s[44:45]')
    for r in range(4): a(f'v_cndmask_b32 v{152+r}, v{152+r}, v160, s[46:47]')
    a('v_max3_f32 v156, v144, v145, v146\nv_max3_f32 v157, v147, v148, v149')
    a('v_max3_f32 v158, v150, v151, v152\nv_max3_f32 v159, v153, v154, v155')
    a('v_max3_f32 v156, v156, v157, v158\nv_max_f32 v156, v156, v159')
    def xreduce(op, r, t):
        a(f'{op}_dpp v{r}, v{r}, v{r} row_ror:4 row_mask:0xf bank_mask:0xf')
        a(f'{op}_dpp v{r}, v{r}, v{r} row_ror:8 row_mask:0xf bank_mask:0xf')
        a(f'v_mov_b32 v{t}, v{r}\nv_permlane16_swap_b32 v{r}, v{t}\n{op} v{r}, v{r}, v{t}')
        a(f'v_mov_b32 v{t}, v{r}\nv_permlane32_swap_b32 v{r}, v{t}\n{op} v{r}, v{r}, v{t}')
    xreduce('v_max_f32', 156, 157)
    a(f's_mov_b32 s6, {f2u(128**-0.5 * LOG2E)}')
    a('v_mul_f32 v158, s6, v156')
    for r in range(12): a(f'v_fma_f32 v{144+r}, v{144+r}, s6, -v158')
    for r in range(12): a(f'v_exp_f32 v{144+r}, v{144+r}')
    for dd in range(3):
        D = 144 + 4*dd
        a(f'v_cvt_pk_bf16_f32 v{32+2*dd}, v{D}, v{D+1}\nv_cvt_pk_bf16_f32 v{33+2*dd}, v{D+2}, v{D+3}')
        a(f'ds_write_b64 v13, v[{32+2*dd}:{33+2*dd}] offset:{512*dd}')
    a('v_add_f32 v159, v144, v145')
    for r in range(2, 12): a(f'v_add_f32 v159, v159, v{144+r}')
    xreduce('v_add_f32', 159, 157)
    a(f's_lshl_b32 s6, s4, 5\ns_add_u32 s6, s6, {ST}')
    a('v_lshl_add_u32 v14, v1, 3, s6')
    a('s_mov_b64 exec, 15\nds_write_b64 v14, v[158:159]\ns_mov_b64 exec, -1')
    a('s_waitcnt lgkmcnt(0)')
    stamp(4)
    a('s_barrier')
    a(f'v_and_b32 v14, 3, v1\nv_lshlrev_b32 v14, 3, v14\nv_add_u32 v14, {ST}, v14')
    for w in range(4): a(f'ds_read_b64 v[{16+2*w}:{17+2*w}], v14 offset:{32*w}')
    a('v_lshrrev_b32 v2, 2, v1\nv_lshrrev_b32 v3, 4, v1\nv_add_u32 v3, v3, v1\nv_and_b32 v3, 3, v3')
    a('v_lshlrev_b32 v2, 5, v2\nv_lshl_add_u32 v2, v3, 3, v2')
    a(f's_lshl_b32 s6, s4, 9\ns_add_u32 s6, s6, {SCR}\nv_add_u32 v2, s6, v2')
    a('s_waitcnt lgkmcnt(0)')
    a('v_max3_f32 v24, v16, v18, v20\nv_max_f32 v24, v24, v22')
    for w in range(4): a(f'v_sub_f32 v{25+w}, v{16+2*w}, v24')
    for w in range(4): a(f'v_exp_f32 v{25+w}, v{25+w}')
    a('v_mul_f32 v29, v25, v17\nv_fmac_f32 v29, v26, v19\nv_fmac_f32 v29, v27, v21\nv_fmac_f32 v29, v28, v23')
    a('v_log_f32 v30, v29\nv_rcp_f32 v29, v29\nv_mov_b32 v31, s33')
    a('v_add_f32 v30, v30, v24')
    a(f's_lshl_b32 s6, s24, 11\ns_lshl_b32 s7, s25, 7\ns_add_u32 s6, s6, s7\ns_add_u32 s6, s6, {LSE}')
    a('v_lshlrev_b32 v3, 3, v1')
    a('s_cmp_eq_u32 s4, 0\ns_cselect_b32 exec_lo, 0xffff, 0\ns_mov_b32 exec_hi, 0\ns_cbranch_execz L_nlse')
    a('buffer_store_dwordx2 v[30:31], v3, s[16:19], s6 offen sc1')
    a('L_nlse:')
    a('s_mov_b64 exec, -1')
    for w in range(4): a(f'v_mul_f32 v{32+w}, v{25+w}, v29')
    for w in range(4): a(f'v_readlane_b32 s{36+w}, v{32+w}, s4')
    a('v_lshlrev_b32 v3, 2, v1')
    a('s_barrier')
    stamp(6)
    for v in range(8): a(f'ds_read_b64 v[{48+2*v}:{49+2*v}], v2 offset:{2048*v}')
    for v in range(8):
        a(f's_waitcnt lgkmcnt({7-v})')
        w = v >> 1; sp = 36 + (w & ~1)
        mod = 'op_sel_hi:[1,0,1]' if (w & 1) == 0 else 'op_sel:[0,1,0] op_sel_hi:[1,1,1]'
        mod2 = 'op_sel_hi:[1,0]' if (w & 1) == 0 else 'op_sel:[0,1] op_sel_hi:[1,1]'
        if v < 2: a(f'v_pk_mul_f32 v[{40+2*v}:{41+2*v}], v[{48+2*v}:{49+2*v}], s[{sp}:{sp+1}] {mod2}')
        else: a(f'v_pk_fma_f32 v[{40+2*(v&1)}:{41+2*(v&1)}], v[{48+2*v}:{49+2*v}], s[{sp}:{sp+1}], v[{40+2*(v&1)}:{41+2*(v&1)}] {mod}')
    a('v_pk_add_f32 v[40:41], v[40:41], v[42:43]')
    a('v_cvt_pk_bf16_f32 v40, v40, v41')
    a('buffer_store_dword v40, v3, s[16:19], s26 offen sc1')
    stamp(7)
    if cfg.stamps:
        a('s_cmp_lg_u32 s4, 0\ns_cbranch_scc1 L_end')
        stamps_out(8, 0)
    a('s_endpgm')

    a('L_vwave:')
    a('s_sub_u32 s4, s4, 4')
    a('v_lshlrev_b32 v2, 4, v1')
    a(f'v_mov_b32 v16, 0\nv_mov_b32 v17, 0\nv_mov_b32 v18, 0\nv_mov_b32 v19, 0\nv_add_u32 v9, {ZERO}, v2')
    a('s_mov_b32 exec_lo, -1\ns_mov_b32 exec_hi, 3\nds_write_b128 v9, v[16:19]\ns_mov_b64 exec, -1')
    a(f'v_mov_b32 v9, {QF}\nds_write_b32 v9, v16')
    a(f's_mul_i32 s7, s4, 768\ns_add_u32 s7, s7, {PREG}')
    a('v_and_b32 v9, 3, v1\nv_lshlrev_b32 v9, 6, v9\nv_lshrrev_b32 v10, 4, v1\nv_lshl_add_u32 v9, v10, 4, v9\nv_add_u32 v9, s7, v9')
    a(f'v_mov_b32 v11, {ZERO}')
    for x in range(4):
        a(f's_mov_b32 s34, {0x000F000F << (4*x):#x}\ns_mov_b32 s35, s34')
        a(f'v_cndmask_b32 v{3+x}, v11, v9, s[34:35]')
    a('v_and_b32 v7, 15, v1\nv_lshrrev_b32 v8, 2, v7\nv_add_u32 v8, v8, v10\nv_and_b32 v8, 3, v8')
    a('v_lshlrev_b32 v7, 5, v7\nv_lshl_add_u32 v7, v8, 3, v7')
    a(f's_lshl_b32 s7, s4, 11\ns_add_u32 s7, s7, {SCR}\nv_add_u32 v7, s7, v7\nv_add_u32 v8, 1024, v7')
    a('s_mov_b32 s36, 0x05040100\ns_mov_b32 s37, 0x07060302')
    a('s_mul_i32 s27, s4, 24576')
    a('s_waitcnt lgkmcnt(0)')
    a('s_add_u32 s20, s10, s6\ns_addc_u32 s21, s11, 0')
    if cfg.stamps: srd(16, 's14', 's15', WS_SZ)
    a('s_barrier')
    stamp(1)
    for i in range(24):
        r = 72 + 4*i
        a(f'buffer_load_dwordx4 v[{r}:{r+3}], v2, s[20:23], s27 offen offset:{1024*(i&3)} {cfg.NT}')
        if cfg.thV < 63 and cfg.thV <= i < 23: a(f's_waitcnt vmcnt({cfg.thV})')
        if (i & 3) == 3 and i < 23: a('s_add_u32 s27, s27, 4096')
    stamp(2)
    a('s_barrier')
    stamp(3)
    def pread(t):
        buf = 40 + 16*(t & 1)
        for x in range(4): a(f'ds_read_b128 v[{buf+4*x}:{buf+4*x+3}], v{3+x} offset:{256*t}')
    pread(0); pread(1)
    for t in range(3):
        a(f's_waitcnt vmcnt({16-8*t})')
        if t == 2: stamp(4)
        vb = 72 + 32*t; pb = 40 + 16*(t & 1)
        for j in range(8):
            tb = 24 + 4*(j & 3)
            sel = 's37' if (j & 1) else 's36'
            for tt in range(4):
                a(f'v_perm_b32 v{tb+tt}, v{vb + 4*(2*tt+1) + (j>>1)}, v{vb + 4*(2*tt) + (j>>1)}, {sel}')
            if j == 0: a('s_waitcnt lgkmcnt(4)' if t == 0 else 's_waitcnt lgkmcnt(0)')
            if j > 0:
                jj = j - 1; tb2 = 24 + 4*(jj & 3); acc = 16 + 4*(jj & 1); x = jj >> 1
                c = '0' if (t == 0 and jj < 2) else f'v[{acc}:{acc+3}]'
                a(f'v_mfma_f32_16x16x32_bf16 v[{acc}:{acc+3}], v[{pb+4*x}:{pb+4*x+3}], v[{tb2}:{tb2+3}], {c}')
        a(f'v_mfma_f32_16x16x32_bf16 v[20:23], v[{pb+12}:{pb+15}], v[36:39], v[20:23]')
        if t == 0: pread(2)
    for r in range(4):
        ad = 7 + (r >> 1); o = 128*(r & 1)
        a(f'ds_write2_b32 v{ad}, v{16+r}, v{20+r} offset0:{o} offset1:{o+1}')
    a('s_waitcnt lgkmcnt(0)')
    stamp(5)
    a('s_barrier')
    if cfg.stamps:
        a('s_cmp_lg_u32 s4, 0\ns_cbranch_scc1 L_end')
        stamps_out(6, 8)
    a('s_endpgm')

    a('L_spare:')
    a('s_cmp_lg_u32 s5, 0\ns_cbranch_scc1 L_end')
    a('s_cmp_lg_u32 s4, 8\ns_cbranch_scc1 L_end')
    a('v_mov_b32 v4, -1\nv_mov_b32 v5, -1\nv_mov_b32 v6, -1\nv_mov_b32 v7, -1')
    a(f's_lshl_b32 s6, s3, 10\ns_add_u32 s6, s6, {WOUT}\nv_lshlrev_b32 v2, 4, v1\nv_add_u32 v2, s6, v2')
    a(f's_lshl_b32 s6, s3, 12\ns_add_u32 s6, s6, {MOUT}\nv_lshlrev_b32 v8, 4, v1\nv_add_u32 v8, s6, v8')
    a('s_waitcnt lgkmcnt(0)')
    a('global_store_dwordx4 v2, v[4:7], s[14:15] sc1')
    a('s_cmp_ge_u32 s3, 28\ns_cbranch_scc1 L_sp2')
    for i in range(4): a(f'global_store_dwordx4 v8, v[4:7], s[14:15] offset:{1024*i} sc1')
    a('L_sp2:')
    a('s_waitcnt vmcnt(0)')
    a('s_endpgm')

    AT=136; DD=32; Z=36; T=38; ZT=37; F0=40; F1=72; F2=104
    a('L_helper:')
    epoch_load()
    if cfg.diag is not None: a(f's_load_dword s96, s[14:15], {XID+4}\ns_load_dword s97, s[14:15], {EPO}')
    a('s_load_dwordx2 s[44:45], s[0:1], 0')
    a('s_load_dwordx4 s[48:51], s[0:1], 24')
    a('s_load_dwordx4 s[52:55], s[0:1], 80')
    a('v_lshrrev_b32 v10, 3, v1\nv_and_b32 v11, 3, v1\nv_lshlrev_b32 v11, 1, v11\nv_lshl_add_u32 v10, v10, 3, v11')
    a('v_bfe_u32 v11, v1, 2, 1')
    a('s_lshl_b32 s6, s4, 6\nv_add_u32 v12, s6, v10')
    a('v_lshlrev_b32 v6, 1, v12\nv_lshl_add_u32 v6, v11, 10, v6')
    a(f'v_lshlrev_b32 v9, 2, v12\nv_lshl_add_u32 v9, v11, 11, v9\nv_add_u32 v9, {X1}, v9')
    a(f's_lshr_b32 s6, s4, 2\ns_mul_i32 s6, s6, 576\ns_and_b32 s7, s4, 3\ns_lshl_b32 s7, s7, 7\ns_add_u32 s6, s6, s7\ns_add_u32 s6, s6, {ACT}')
    a('v_mul_u32_u24 v7, 1152, v11\nv_lshl_add_u32 v7, v10, 1, v7\nv_add_u32 v7, s6, v7')
    a('v_lshrrev_b32 v13, 3, v1\nv_lshlrev_b32 v13, 2, v13\nv_lshl_add_u32 v13, v11, 5, v13')
    a(f'v_add_u32 v13, {STAT}, v13')
    a('s_waitcnt lgkmcnt(0)')
    srd(16, 's14', 's15', WS_SZ)
    epoch_tag()
    a('global_load_dword v17, v6, s[52:53]')
    a('global_load_dword v16, v6, s[44:45]')
    a('s_cmp_eq_u32 s5, 0\ns_cbranch_scc1 L_t2')
    a('s_add_u32 s24, s25, 128')
    dma_u1('s48', 's49', 512*8192, 8192, 's24', R1)
    a('s_branch L_h2')
    a('L_t2:')
    a('s_lshr_b32 s26, s3, 1\ns_lshl_b32 s24, s26, 18\ns_and_b32 s6, s3, 1\ns_lshl_b32 s6, s6, 9\ns_add_u32 s24, s24, s6')
    dma_w(8, 8 + cfg.pre)
    a('L_h2:')
    a('v_lshrrev_b32 v10, 4, v1\nv_bfe_u32 v11, v1, 2, 2\nv_lshl_add_u32 v3, v10, 3, v11')
    a('v_bfe_u32 v11, v1, 1, 1\nv_lshl_add_u32 v3, v11, 8, v3\nv_lshlrev_b32 v3, 7, v3')
    a('v_bfe_u32 v12, v1, 3, 2\nv_lshl_add_u32 v12, v11, 2, v12\nv_xor_b32 v12, s4, v12\nv_lshl_add_u32 v3, v12, 4, v3')
    a('v_and_b32 v12, 1, v1\nv_lshl_add_u32 v3, v12, 3, v3')
    a(f'v_lshl_add_u32 v4, v12, 1, v11\nv_mul_u32_u24 v4, 576, v4\nv_lshl_add_u32 v4, v10, 4, v4\nv_add_u32 v4, {ACT}, v4')
    a('v_lshlrev_b32 v5, 3, v0')
    a('s_lshl_b32 s6, s4, 7\nv_lshl_add_u32 v8, v1, 3, s6\nv_lshlrev_b32 v28, 4, v0')
    a(f'v_mov_b32 v18, 0\nv_lshlrev_b32 v10, 2, v1\nv_add_u32 v10, {STAT}, v10\nv_mov_b32 v{T+1}, s33\nv_mov_b32 v{ZT}, s33')
    a('s_mov_b32 exec_lo, -1\ns_mov_b32 exec_hi, 0xffff\nds_write_b32 v10, v18\ns_mov_b64 exec, -1')

    def tr_u1(F, region, steps=8, ad=None):
        if ad is None:
            if region: a(f'v_add_u32 v10, {region}, v3')
            ad = 'v10' if region else 'v3'
        for s in range(steps):
            for hh in range(2):
                a(f'ds_read_b64_tr_b16 v[{F+4*s+2*hh}:{F+4*s+2*hh+1}], {ad} offset:{4096*s + 512*hh}')
    def gemv(Fs, ad='v4', fill=(), off=0, steps=8, Ds=None):
        if isinstance(Fs, int): Fs = [Fs]
        if Ds is None: Ds = [DD]
        fill = list(fill)
        for s in range(steps): a(f'ds_read_b128 v[{AT+4*s}:{AT+4*s+3}], {ad} offset:{64*s+off}')
        per = (len(fill) + steps - 2) // (steps - 1)
        for s in range(steps):
            a(f's_waitcnt lgkmcnt({steps-1-s})')
            for F, D in zip(Fs, Ds):
                c = '0' if s == 0 else f'v[{D}:{D+3}]'
                a(f'v_mfma_f32_16x16x32_bf16 v[{D}:{D+3}], v[{AT+4*s}:{AT+4*s+3}], v[{F+4*s}:{F+4*s+3}], {c}')
            for _ in range(per):
                if fill: a(fill.pop(0))
        for x in fill: a(x)
    def fold(D=DD, z=Z):
        a(f'v_add_f32_dpp v{z}, v{D+2}, v{D} row_ror:8 row_mask:0xf bank_mask:0x3')
        a(f'v_add_f32_dpp v{z}, v{D+1}, v{D+3} row_ror:8 row_mask:0xf bank_mask:0xc')
    def publish_tag(z, soff):
        a(f's_mov_b64 exec, 0xffff\nbuffer_store_dwordx2 v[{Z}:{Z+1}], v8, s[16:19], {soff} offen sc1\ns_mov_b64 exec, -1')
    def store2(text):
        if not cfg.fast: a(text + ' sc1'); return
        l = lab('fs'); d = lab('fd')
        a(f's_cbranch_scc1 {l}')
        a(text + ' sc1'); a(f's_branch {d}')
        a(f'{l}:'); a(text); a(f'{d}:')
    def unpack(lo, hi, src):
        a(f'v_lshlrev_b32 v{lo}, 16, v{src}\nv_and_b32 v{hi}, 0xffff0000, v{src}')
    def red6(vals, off, TT):
        r01, r23, r45, z = TT
        for r, (e, o) in zip((r01, r23, r45), ((vals[0], vals[1]), (vals[2], vals[3]), (vals[4], vals[5]))):
            a(f'v_add_f32_dpp v{r}, v{e}, v{e} row_ror:8 row_mask:0xf bank_mask:0x3')
        for r, (e, o) in zip((r01, r23, r45), ((vals[0], vals[1]), (vals[2], vals[3]), (vals[4], vals[5]))):
            a(f'v_add_f32_dpp v{r}, v{o}, v{o} row_ror:8 row_mask:0xf bank_mask:0xc')
        a(f'v_permlane16_swap_b32 v{r01}, v{r23}\nv_permlane16_swap_b32 v{r45}, v{z}')
        a(f'v_add_f32 v{r01}, v{r01}, v{r23}\nv_add_f32 v{r45}, v{r45}, v{z}')
        a(f'v_permlane32_swap_b32 v{r01}, v{r45}\nv_add_f32 v{r01}, v{r01}, v{r45}')
        a(f'v_add_f32_dpp v{r01}, v{r01}, v{r01} quad_perm:[1,0,3,2] row_mask:0xf bank_mask:0xf')
        a(f'v_add_f32_dpp v{r01}, v{r01}, v{r01} quad_perm:[2,3,0,1] row_mask:0xf bank_mask:0xf')
        a(f's_mov_b32 exec_lo, 0x11111111\ns_mov_b32 exec_hi, 0x1111\nds_add_f32 v13, v{r01} offset:{off}\ns_mov_b64 exec, -1')

    stamp(1)
    def silu():
        unpack(18, 19, 17)
        a(f's_mov_b32 s6, {f2u(-LOG2E)}')
        a('v_mul_f32 v20, s6, v18\nv_mul_f32 v21, s6, v19\nv_exp_f32 v20, v20\nv_exp_f32 v21, v21')
        a('v_add_f32 v20, 1.0, v20\nv_add_f32 v21, 1.0, v21\nv_rcp_f32 v20, v20\nv_rcp_f32 v21, v21')
        a('v_mul_f32 v18, v18, v20\nv_mul_f32 v19, v19, v21\nv_cvt_pk_bf16_f32 v18, v18, v19')
        a(f'ds_write_b32 v7, v18 offset:{ACTC-ACT}')
        unpack(14, 15, 16)
    a('s_cmp_eq_u32 s5, 0\ns_cbranch_scc1 L_tail')
    mloads = [f'buffer_load_dwordx4 v[{AT+4*k}:{AT+4*k+3}], v28, s[16:19], s{60+k} offen sc1' for k in range(4)]
    for k in range(4): a(f's_mov_b32 s{60+k}, {MODA + 8192*k}')
    for x in mloads: a(x)
    a('s_waitcnt vmcnt(12)')
    stamp(2)
    silu()
    a('v_add_f32 v18, v14, v15\nv_mul_f32 v19, v14, v14\nv_fmac_f32 v19, v15, v15')
    a('s_waitcnt lgkmcnt(0)\ns_barrier')
    red6([18, 19, 18, 19, 18, 19], STAT2 - STAT, (24, 25, 26, 27))
    tr_u1(F0, R0)
    a('s_waitcnt lgkmcnt(0)\ns_barrier')
    stamp(3)
    a('s_lshl_b32 s24, s3, 7\ns_add_u32 s24, s24, 2048')
    if cfg.apre: dma_u1('s54', 's55', 512*6144, 6144, 's24', R0, i1=cfg.apre)
    a(f'v_bfe_u32 v10, v1, 2, 1\nv_lshlrev_b32 v10, 5, v10\nv_add_u32 v10, {STAT2}, v10')
    a('ds_read_b64 v[18:19], v10\ns_waitcnt lgkmcnt(0)')
    a(f's_mov_b32 s6, {f2u(1/512)}\ns_mov_b32 s7, {f2u(1e-5)}')
    a('v_mul_f32 v18, s6, v18\nv_mul_f32 v19, s6, v19\nv_fma_f32 v19, -v18, v18, v19\nv_add_f32 v19, s7, v19\nv_rsq_f32 v19, v19')
    a('v_sub_f32 v20, v14, v18\nv_sub_f32 v21, v15, v18\nv_mul_f32 v20, v20, v19\nv_mul_f32 v21, v21, v19')
    a('v_bfe_u32 v30, v1, 1, 2\nv_lshlrev_b32 v30, 3, v30\nv_bfe_u32 v11, v1, 3, 1\nv_lshl_add_u32 v30, v11, 9, v30\nv_bfe_u32 v11, v1, 4, 1\nv_lshl_add_u32 v30, v11, 8, v30')
    a(f's_lshl_b32 s6, s4, 5\ns_add_u32 s6, s6, {X1}\nv_add_u32 v30, s6, v30')
    a(f'v_lshlrev_b32 v31, 4, v1\nv_add_u32 v29, {X1}, v31\nv_lshrrev_b32 v11, 5, v1\nv_mul_u32_u24 v11, 1536, v11\nv_add_u32 v31, v31, v11')
    vpoll(mloads, range(AT+1, AT+16, 2), 22, first_issued=True, tags=True, sleep=cfg.slp, first_cnt=cfg.apre)
    stamp(4)
    a(f'v_add_f32 v22, v{AT}, v{AT+8}\nv_add_f32 v23, v{AT+2}, v{AT+10}\nv_add_f32 v24, v{AT+4}, v{AT+12}\nv_add_f32 v25, v{AT+6}, v{AT+14}')
    a('v_add_f32 v24, 1.0, v24\nv_add_f32 v25, 1.0, v25\nv_fma_f32 v20, v20, v24, v22\nv_fma_f32 v21, v21, v25, v23')
    a('v_cvt_pk_bf16_f32 v20, v20, v21\nds_write_b32 v7, v20\ns_waitcnt lgkmcnt(0)\ns_barrier')
    stamp(5)
    tr_u1(F1, R1)
    gemv([F0, F1], Ds=[DD, 24])
    a(f'v_add_f32_dpp v{Z}, v{DD+2}, v{DD} row_ror:8 row_mask:0x1 bank_mask:0x3')
    a(f'v_add_f32_dpp v{Z}, v{DD+1}, v{DD+3} row_ror:8 row_mask:0x1 bank_mask:0xc')
    a(f'v_add_f32_dpp v{Z}, v26, v24 row_ror:8 row_mask:0x2 bank_mask:0x3')
    a(f'v_add_f32_dpp v{Z}, v25, v27 row_ror:8 row_mask:0x2 bank_mask:0xc')
    a(f'v_mov_b32_dpp v{T}, v{Z} quad_perm:[1,1,3,3] row_mask:0xf bank_mask:0xf')
    a(f's_mov_b64 exec, 0x55555555')
    a(f'v_cvt_pk_bf16_f32 v{T}, v{Z}, v{T}')
    a(f'ds_write_b64 v30, v[{T}:{T+1}]\ns_mov_b64 exec, -1')
    a('s_waitcnt lgkmcnt(0)\ns_barrier')
    a('s_cmp_lg_u32 s4, 0\ns_cbranch_scc1 L_nqp')
    a(f's_lshr_b32 s6, s3, 2\ns_lshl_b32 s6, s6, 12\ns_and_b32 s7, s3, 3\ns_lshl_b32 s7, s7, 9\ns_add_u32 s6, s6, s7\ns_add_u32 s6, s6, {QO}')
    a('ds_read_b128 v[24:27], v29\ns_waitcnt lgkmcnt(0)')
    a('buffer_store_dwordx4 v[24:27], v31, s[16:19], s6 offen sc1')
    a('L_nqp:')
    stamp(6)
    dma_u1('s54', 's55', 512*6144, 6144, 's24', R0, i0=cfg.apre)
    a('s_waitcnt vmcnt(0)\ns_barrier')
    tr_u1(F0, R0)
    gemv(F0, off=ACTC-ACT); fold()
    a(f's_lshl_b32 s6, s3, 10\ns_add_u32 s6, s6, {MODB}')
    publish_tag(Z, 's6')
    stamp(7)
    if cfg.stamps:
        a('s_cmp_lg_u32 s4, 0\ns_cbranch_scc1 L_end')
        stamps_out(8, 0)
    a('s_endpgm')

    a('L_tail:')
    a(f's_waitcnt vmcnt({cfg.pre})')
    stamp(2)
    silu()
    a('s_load_dwordx8 s[52:59], s[0:1], 48')
    a('s_load_dwordx2 s[46:47], s[0:1], 96')
    a('v_bfe_u32 v11, v1, 1, 1\nv_lshlrev_b32 v10, 14, v11\nv_sub_u32 v10, v3, v10')
    a('v_mul_u32_u24 v11, 320, v11\nv_sub_u32 v11, v4, v11\ns_and_b32 s6, s3, 1\ns_mul_i32 s6, s6, 576\nv_add_u32 v11, s6, v11')
    a('s_waitcnt lgkmcnt(0)\ns_barrier')
    tr_u1(F0, R0, 4, 'v10')
    gemv(F0, 'v11', off=ACTC-ACT, steps=4); fold()
    a('s_and_b32 s6, s3, 1\ns_lshl_b32 s6, s6, 14\ns_lshr_b32 s7, s3, 1\ns_lshl_b32 s7, s7, 10\ns_add_u32 s6, s6, s7')
    publish_tag(Z, 's6')
    stamp(3)
    dma_w(8 + cfg.pre, 16, setup=False)
    a('s_barrier')
    dma_w(0, 8, setup=False)
    a('v_lshrrev_b32 v10, 4, v1\nv_bfe_u32 v11, v1, 2, 2\nv_lshl_add_u32 v10, v10, 3, v11\nv_lshlrev_b32 v10, 9, v10')
    a('v_and_b32 v11, 3, v1\nv_lshl_add_u32 v10, v11, 3, v10')
    a('v_bfe_u32 v11, v1, 2, 3\nv_lshlrev_b32 v11, 5, v11\ns_lshl_b32 s6, s4, 6\nv_xor_b32 v11, s6, v11')
    a('v_add_u32 v22, v10, v11\nv_xor_b32 v11, 32, v11\nv_add_u32 v30, v10, v11')
    def tr_w(half):
        for cg, ad in ((0, 22), (1, 30)):
            if half: a(f'v_add_u32 v{10+cg}, {R1}, v{ad}')
            for s_ in range(4):
                for hh in range(2):
                    r = (F0, F1)[cg] + 4*(4*half + s_) + 2*hh
                    a(f'ds_read_b64_tr_b16 v[{r}:{r+1}], v{10+cg if half else ad} offset:{16384*s_ + 2048*hh}')
    a(f's_getreg_b32 s6, hwreg(HW_REG_XCC_ID)\ns_and_b32 s31, s6, 15\nv_mov_b32 v{T}, s31')
    a(f's_lshl_b32 s6, s3, 7\ns_add_u32 s6, s6, {XID}\nv_lshlrev_b32 v10, 3, v1')
    a('s_cmp_eq_u32 s4, 0\ns_cselect_b32 exec_lo, 0xffff, 0\ns_mov_b32 exec_hi, 0\ns_cbranch_execz L_nxid')
    a(f'buffer_store_dwordx2 v[{T}:{T+1}], v10, s[16:19], s6 offen sc1')
    a('L_nxid:')
    a('s_mov_b64 exec, -1')
    a('s_waitcnt vmcnt(8)\ns_barrier')
    stamp(4)
    tr_w(1)
    a('s_waitcnt lgkmcnt(0)\ns_barrier')
    a('s_cmp_ge_u32 s3, 28\ns_cbranch_scc1 L_nom1')
    a('s_lshl_b32 s24, s3, 7')
    dma_u1('s52', 's53', 512*3584, 3584, 's24', R1)
    stamp(5)
    a('s_waitcnt vmcnt(8)\ns_branch L_m1d')
    a('L_nom1:')
    a('s_waitcnt vmcnt(0)')
    a('L_m1d:')
    a('s_barrier')
    tr_w(0)
    a('s_waitcnt lgkmcnt(0)\ns_barrier')
    stamp(7)
    a('s_cmp_ge_u32 s3, 28\ns_cbranch_scc1 L_nom2')
    srd(20, 's56', 's57', 1792*1024)
    a('s_and_b32 s6, s4, 1\ns_lshl_b32 s6, s6, 7\nv_lshlrev_b32 v2, 4, v1\nv_xor_b32 v2, s6, v2')
    a('v_xor_b32 v10, 32, v2\nv_xor_b32 v11, 64, v2\nv_xor_b32 v12, 96, v2')
    a(f's_lshl_b32 s27, s3, 16\ns_lshl_b32 s28, s4, 13\ns_add_u32 s27, s27, s28')
    for hh in range(2):
        a('s_mov_b32 m0, s28')
        for i in range(4): a(f'buffer_load_dwordx4 v{(2,10,11,12)[i]}, s[20:23], s27 offen offset:{1024*i} {cfg.NT} lds')
        if hh == 0: a('s_add_u32 s27, s27, 4096\ns_add_u32 s28, s28, 4096')
    stamp(6)
    if cfg.touch:
        a(f's_lshl_b32 s6, s3, 12\ns_add_u32 s6, s6, {MOUT}\nbuffer_load_dwordx2 v[{DD}:{DD+1}], v5, s[16:19], s6 offen sc1')
    a('v_and_b32 v10, 7, v1\nv_lshlrev_b32 v10, 1, v10')
    a('s_and_b32 s6, s3, 7\ns_lshl_b32 s6, s6, 7\ns_lshl_b32 s7, s4, 4\ns_add_u32 s6, s6, s7')
    a('v_add_u32 v11, s6, v10\nglobal_load_ushort v24, v11, s[58:59]')
    a('s_lshl_b32 s6, s3, 7\ns_add_u32 s6, s6, s7')
    a('v_add_u32 v11, s6, v10\nglobal_load_ushort v25, v11, s[54:55]')
    a('L_nom2:')
    if cfg.touch:
        a(f's_lshl_b32 s6, s3, 10\ns_add_u32 s6, s6, {WOUT}\nv_lshlrev_b32 v10, 4, v1\nbuffer_load_dword v{DD+2}, v10, s[16:19], s6 offen sc1')
    a(f'v_and_b32 v10, 31, v1\nv_lshlrev_b32 v10, 7, v10\ns_mov_b32 s6, {XID}')
    vpoll([f'buffer_load_dwordx2 v[{AT}:{AT+1}], v10, s[16:19], s6 offen sc1'], [AT+1], None, sleep=cfg.slp, tags=True)
    a(f'v_cmp_ne_u32 vcc, s31, v{AT}\ns_cmp_eq_u64 vcc, 0\ns_cselect_b32 s32, 1, 0')
    a('s_cmp_ge_u32 s3, 28\ns_cbranch_scc1 L_wst')
    a('s_barrier')
    tr_u1(F2, R1)
    a('v_and_b32 v11, 15, v1\nv_lshlrev_b32 v11, 3, v11')
    a(f's_and_b32 s6, s3, 7\ns_lshl_b32 s6, s6, 10\ns_lshl_b32 s7, s4, 7\ns_add_u32 s6, s6, s7\ns_add_u32 s63, s6, {MODB + 24*1024}')
    for k in range(3): a(f's_mov_b32 s{60+k}, {MODB + 8192*k}')
    a('v_lshlrev_b32 v24, 16, v24\nv_lshlrev_b32 v25, 16, v25')
    a(f'v_mov_b32 v{AT+15}, 0x3f803f80\nds_write_b32 v7, v{AT+15} offset:{ACTM-ACT+3*TS}')
    stamp(1)
    vpoll([f'buffer_load_dwordx4 v[{AT+4*k}:{AT+4*k+3}], v28, s[16:19], s{60+k} offen sc1' for k in range(3)] +
          [f'buffer_load_dwordx2 v[{AT+12}:{AT+13}], v11, s[16:19], s63 offen sc1'], range(AT+1, AT+14, 2), AT+14, sleep=cfg.slp, tags=True)
    stamp(8)
    a(f'v_mov_b32 v23, v{AT+12}\nv_mov_b32 v16, v{AT}\nv_mov_b32 v17, v{AT+2}')
    a(f'v_add_f32 v18, 1.0, v{AT+8}\nv_add_f32 v19, 1.0, v{AT+10}\nv_cvt_pk_bf16_f32 v{AT+1}, v{AT+4}, v{AT+6}\nv_cvt_pk_bf16_f32 v{AT+3}, v18, v19')
    unpack(18, 19, AT+3); unpack(20, 21, AT+1)
    a(f'ds_write_b32 v7, v{AT+3} offset:{ACTM-ACT+TS}\nds_write_b32 v7, v{AT+1} offset:{ACTM-ACT+2*TS}')
    t = AT + 16
    a(f'v_add_f32 v{t}, v18, v19\nv_mul_f32 v{t+1}, v18, v18\nv_fmac_f32 v{t+1}, v19, v19')
    a(f'v_mul_f32 v{t+2}, v18, v20\nv_fmac_f32 v{t+2}, v19, v21\nv_add_f32 v{t+3}, v20, v21')
    a(f'v_mul_f32 v{t+4}, v20, v20\nv_fmac_f32 v{t+4}, v21, v21')
    red6([t, t+1, t+2, t+3, t+4, t+4], STAT3 - STAT, (t+6, t+7, t+8, t+9))
    a('L_wst:')
    a('s_lshr_b32 s6, s4, 2\ns_lshl_b32 s24, s6, 3\ns_lshr_b32 s7, s26, 1\ns_add_u32 s24, s24, s7')
    a('s_and_b32 s7, s26, 1\ns_lshl_b32 s7, s7, 1\ns_bfe_u32 s28, s4, 0x10001\ns_add_u32 s7, s7, s28')
    a(f's_lshl_b32 s27, s24, 11\ns_lshl_b32 s29, s7, 3\ns_add_u32 s27, s27, s29\ns_add_u32 s27, s27, {LSE}')
    a(f's_lshl_b32 s60, s24, 14\ns_lshl_b32 s29, s7, 8\ns_add_u32 s60, s60, s29\ns_and_b32 s29, s4, 1\ns_lshl_b32 s29, s29, 7\ns_add_u32 s60, s60, s29\ns_add_u32 s60, s60, {OP}')
    a('s_add_u32 s61, s60, 4096')
    a(f's_mul_i32 s6, s6, 576\ns_and_b32 s29, s4, 3\ns_lshl_b32 s29, s29, 7\ns_add_u32 s6, s6, s29\ns_add_u32 s6, s6, {ACT}')
    a('s_mov_b32 s62, 6144\nv_and_b32 v2, 31, v1\nv_lshlrev_b32 v2, 2, v2\nv_add_u32 v31, s6, v2\nv_lshrrev_b32 v10, 5, v1\nv_mad_u32_u24 v2, v10, s62, v2')
    a(f's_lshl_b32 s29, s3, 10\ns_add_u32 s29, s29, {WOUT}')
    a(f'v_and_b32 v22, 1, v1\nv_mul_u32_u24 v22, 576, v22\nv_lshrrev_b32 v11, 4, v1\nv_lshl_add_u32 v22, v11, 4, v22\nv_add_u32 v22, {ACT}, v22')
    a('v_bfe_u32 v8, v1, 1, 2\nv_lshlrev_b32 v8, 2, v8\nv_bfe_u32 v11, v1, 4, 1\nv_lshl_add_u32 v8, v11, 4, v8\nv_bfe_u32 v11, v1, 3, 1\nv_lshl_add_u32 v8, v11, 5, v8')
    a('v_lshl_add_u32 v8, v10, 6, v8\ns_lshl_b32 s6, s4, 7\nv_add_u32 v8, s6, v8')
    a(f'v_lshlrev_b32 v10, 7, v1\nv_mov_b32 v{AT}, 0xff800000')
    stamp(9)
    a(f's_mov_b64 exec, {(1 << NCH) - 1:#x}')
    vpoll([f'buffer_load_dwordx2 v[{AT}:{AT+1}], v10, s[16:19], s27 offen sc1'], [AT+1], None, sleep=cfg.slp, tags=True)
    a('s_mov_b64 exec, -1')
    a(f'v_mov_b32 v{AT+1}, v{AT}')
    for r in (1, 2, 4, 8): a(f'v_max_f32_dpp v{AT+1}, v{AT+1}, v{AT+1} row_ror:{r} row_mask:0xf bank_mask:0xf')
    a(f'v_sub_f32 v{AT}, v{AT}, v{AT+1}\nv_exp_f32 v{AT}, v{AT}\nv_mov_b32 v{AT+1}, v{AT}')
    for r in (1, 2, 4, 8): a(f'v_add_f32_dpp v{AT+1}, v{AT+1}, v{AT+1} row_ror:{r} row_mask:0xf bank_mask:0xf')
    a(f'v_rcp_f32 v{AT+1}, v{AT+1}\nv_mul_f32 v{AT}, v{AT}, v{AT+1}')
    a('v_lshrrev_b32 v10, 5, v1\nv_mul_u32_u24 v10, 24, v10')
    for i in range(6):
        a(f'ds_bpermute_b32 v{AT+24+i}, v10, v{AT} offset:{4*i}')
    a('s_waitcnt lgkmcnt(0)')
    vpoll([f'buffer_load_dword v{AT+c}, v2, s[16:19], s{60+(c>>2)} offen offset:{1024*(c&3)} sc1' for c in range(6)], [AT+c for c in range(6)], AT+12)
    stamp(10)
    acc = AT + 20
    for c in range(6):
        tq = AT + 8 + 2*c
        unpack(tq, tq+1, AT+c)
    for c in range(6):
        tq = AT + 8 + 2*c; wp = AT + 24 + (c & ~1)
        mod = 'op_sel_hi:[1,0,1]' if (c & 1) == 0 else 'op_sel:[0,1,0] op_sel_hi:[1,1,1]'
        mod2 = 'op_sel_hi:[1,0]' if (c & 1) == 0 else 'op_sel:[0,1] op_sel_hi:[1,1]'
        ac = acc + 2*(c & 1)
        if c < 2: a(f'v_pk_mul_f32 v[{ac}:{ac+1}], v[{tq}:{tq+1}], v[{wp}:{wp+1}] {mod2}')
        else: a(f'v_pk_fma_f32 v[{ac}:{ac+1}], v[{tq}:{tq+1}], v[{wp}:{wp+1}], v[{ac}:{ac+1}] {mod}')
    a(f'v_pk_add_f32 v[{acc}:{acc+1}], v[{acc}:{acc+1}], v[{acc+2}:{acc+3}]')
    a(f'v_permlane32_swap_b32 v{acc}, v{acc+1}')
    a(f'v_add_f32 v{acc}, v{acc}, v{acc+1}')
    a(f'v_mov_b32 v{acc+1}, v{acc}\nv_permlane32_swap_b32 v{acc}, v{acc+1}')
    a(f's_mov_b64 exec, 0xffffffff\nv_cvt_pk_bf16_f32 v{acc}, v{acc}, v{acc+1}\nds_write_b32 v31, v{acc}\ns_mov_b64 exec, -1\ns_waitcnt lgkmcnt(0)\ns_barrier')
    gemv([F0, F1], 'v22', Ds=[DD, Z])
    a(f'v_mov_b32_dpp v10, v{DD} quad_perm:[0,1,2,3] row_mask:0x1 bank_mask:0xf')
    a(f'v_mov_b32_dpp v10, v{DD+1} quad_perm:[0,1,2,3] row_mask:0x2 bank_mask:0xf')
    a(f'v_mov_b32_dpp v10, v{Z} quad_perm:[0,1,2,3] row_mask:0x4 bank_mask:0xf')
    a(f'v_mov_b32_dpp v10, v{Z+1} quad_perm:[0,1,2,3] row_mask:0x8 bank_mask:0xf')
    a('s_cmp_lg_u32 s32, 0')
    a('v_mov_b32_dpp v11, v10 quad_perm:[1,1,3,3] row_mask:0xf bank_mask:0xf')
    a('s_mov_b32 exec_lo, 0x55555555\ns_mov_b32 exec_hi, 0x55555555')
    a('v_cvt_pk_bf16_f32 v11, v10, v11')
    store2('buffer_store_dword v11, v8, s[16:19], s29 offen')
    a('s_mov_b64 exec, -1')
    stamp(11)
    a('s_cmp_ge_u32 s3, 28\ns_cbranch_scc1 L_hdone')

    a('v_lshrrev_b32 v10, 4, v1\nv_bfe_u32 v11, v1, 2, 2\nv_lshl_add_u32 v10, v10, 3, v11\nv_lshlrev_b32 v10, 10, v10')
    a(f'v_and_b32 v11, 3, v1\nv_lshl_add_u32 v10, v11, 3, v10')
    a('v_bfe_u32 v11, v1, 2, 3\nv_lshlrev_b32 v11, 5, v11\ns_lshl_b32 s6, s4, 7\nv_xor_b32 v11, s6, v11')
    for cg in range(4):
        a(f'v_xor_b32 v12, {32*cg}, v11\nv_add_u32 v{60+cg}, v10, v12')
    for cg in range(4):
        for s in range(2):
            for hh in range(2):
                r = F1 + (cg*2 + s)*4 + 2*hh
                a(f'ds_read_b64_tr_b16 v[{r}:{r+1}], v{60+cg} offset:{32768*s + 4096*hh}')
    a(f's_mov_b32 s60, {WOUT}\ns_mov_b32 s61, {WOUT+4096}\ns_mov_b32 s62, {WOUT+8192}\ns_mov_b32 s63, {WOUT+12288}')
    a('v_lshlrev_b32 v59, 2, v0\nv_add_u32 v58, 0x4000, v59')
    wloads = [f'buffer_load_dword v{AT+k}, v{59 - (k >> 3)}, s[16:19], s{60+((k>>1)&3)} offen offset:{2048*(k&1)} sc1' for k in range(16)]
    for x in wloads: a(x)
    a(f'v_bfe_u32 v10, v1, 3, 1\nv_lshlrev_b32 v40, 5, v10\nv_add_u32 v40, {STAT}, v40')
    a(f'ds_read_b128 v[26:29], v40 offset:{STAT3-STAT}\nds_read_b32 v30, v40 offset:{STAT3-STAT+16}')
    a(f'v_and_b32 v11, 7, v1\nv_mul_u32_u24 v41, 192, v10\nv_lshl_add_u32 v41, v11, 1, v41\ns_lshl_b32 s6, s4, 4\ns_add_u32 s6, s6, {HID}\nv_add_u32 v41, s6, v41')
    a(f'v_and_b32 v12, 1, v1\nv_mul_u32_u24 v42, 192, v12\nv_lshrrev_b32 v12, 4, v1\nv_lshl_add_u32 v42, v12, 4, v42\nv_add_u32 v42, {HID}, v42')
    a(f'v_bfe_u32 v43, v1, 2, 2\nv_mul_u32_u24 v43, {TS}, v43\nv_add_u32 v43, v43, v4')
    a('s_and_b32 s6, s3, 7\ns_lshl_b32 s6, s6, 6\ns_lshl_b32 s7, s4, 3\ns_add_u32 s6, s6, s7\nv_add_u32 v11, s6, v11')
    a('v_lshrrev_b32 v12, 3, v1\nv_lshlrev_b32 v44, 12, v12\nv_lshl_add_u32 v44, v11, 3, v44')
    a('v_add_u32 v45, 0x8000, v44\nv_add_u32 v46, 0x10000, v44\nv_add_u32 v47, 0x18000, v44')
    a(f'v_lshlrev_b32 v48, 11, v10\nv_lshl_add_u32 v48, v11, 2, v48\nv_add_u32 v48, {X1}, v48')
    a('v_lshlrev_b32 v49, 10, v10\nv_lshl_add_u32 v49, v11, 1, v49')
    a(f's_add_u32 s20, s14, {MOUT}\ns_addc_u32 s21, s15, 0\ns_mov_b32 s22, {28*4096}\ns_mov_b32 s23, 0x20000')
    a(f's_lshl_b32 s24, s3, 12')
    a('s_mov_b32 s36, 0xffff0000\ns_mov_b32 s37, 0\ns_mov_b32 s38, 0\ns_mov_b32 s39, 0xffff\ns_mov_b32 s44, 0\ns_mov_b32 s45, 0xffff0000')
    a(f's_mov_b32 s40, {f2u(1/512)}\ns_mov_b32 s41, {f2u(1e-5)}\ns_mov_b32 s42, {f2u(0.044715)}\ns_mov_b32 s43, {f2u(-2*math.sqrt(2/math.pi)*LOG2E)}')
    a('v_mov_b32 v50, 0x3f80\nv_mov_b32 v51, 0x3f800000')
    vpoll(wloads, [AT+k for k in range(16)], AT+16, first_issued=True)
    stamp(12)
    s0, s1 = AT+16, AT+17
    for k in range(16):
        o = 2*(k & 1)
        c0 = '0' if k < 2 else f'v{s0+o}'; c1 = '0' if k < 2 else f'v{s1+o}'
        a(f'v_dot2_f32_bf16 v{s0+o}, v{AT+k}, v50, {c0}\nv_dot2_f32_bf16 v{s1+o}, v{AT+k}, v51, {c1}')
    a('s_nop 2')
    a(f'v_pk_add_f32 v[{s0}:{s1}], v[{s0}:{s1}], v[{s0+2}:{s1+2}]')
    x0, x1, a0, a1 = AT+12, AT+13, AT+14, AT+15
    a(f'v_fma_f32 v{x0}, v16, v{s0}, v14\nv_fma_f32 v{x1}, v17, v{s1}, v15')
    a(f'v_mul_f32 v{a0}, v{x0}, v18\nv_mul_f32 v{a1}, v{x1}, v19')
    a(f'v_cvt_pk_bf16_f32 v{AT}, v{a0}, v{a1}\nds_write_b32 v7, v{AT} offset:{ACTM-ACT}\nds_write_b64 v9, v[{x0}:{x1}]')
    t = AT + 20
    a(f'v_add_f32 v{t}, v{x0}, v{x1}\nv_mul_f32 v{t+1}, v{x0}, v{x0}\nv_add_f32 v{t+2}, v{a0}, v{a1}\nv_mul_f32 v{t+3}, v{a0}, v{a0}')
    a(f'v_mul_f32 v{t+4}, v{a0}, v18\nv_mul_f32 v{t+5}, v{a0}, v20')
    a(f'v_fmac_f32 v{t+1}, v{x1}, v{x1}\nv_fmac_f32 v{t+3}, v{a1}, v{a1}\nv_fmac_f32 v{t+4}, v{a1}, v19\nv_fmac_f32 v{t+5}, v{a1}, v21')
    red6([t, t+1, t+2, t+3, t+4, t+5], 0, (t+6, t+7, t+8, t+9))
    a('s_waitcnt lgkmcnt(0)\ns_barrier')
    a('ds_read_b128 v[52:55], v40\nds_read_b64 v[56:57], v40 offset:16')
    fill = [
        'v_mul_f32 v52, s40, v52', 'v_mul_f32 v53, s40, v53', 'v_fma_f32 v53, -v52, v52, v53', 'v_add_f32 v53, s41, v53',
        'v_rsq_f32 v53, v53', 'v_fma_f32 v54, -v52, v26, v54', 'v_fma_f32 v58, v52, v27, -v56', 'v_sub_f32 v58, v58, v56',
        'v_fma_f32 v55, v52, v58, v55', 'v_fma_f32 v57, -v52, v28, v57', 'v_fma_f32 v54, v53, v54, v29', 'v_mul_f32 v55, v53, v55',
        'v_add_f32 v57, v57, v57', 'v_add_f32 v55, v55, v57', 'v_fma_f32 v55, v53, v55, v30', 'v_mul_f32 v54, s40, v54',
        'v_mul_f32 v55, s40, v55', 'v_fma_f32 v55, -v54, v54, v55', 'v_add_f32 v55, s41, v55', 'v_rsq_f32 v55, v55',
        'v_mul_f32 v53, v53, v55', 'v_mul_f32 v52, -v52, v53', 'v_mul_f32 v54, -v54, v55',
        'v_cndmask_b32 v53, v53, v52, s[36:37]', 'v_cndmask_b32 v53, v53, v55, s[38:39]', 'v_cndmask_b32 v53, v53, v54, s[44:45]',
    ]
    gemv(F2, 'v43', fill, ACTM-ACT); fold()
    a(f'v_mul_f32 v{Z}, v{Z}, v53')
    a(f'v_mov_b32 v{T}, v{Z}\nv_permlane16_swap_b32 v{Z}, v{T}\nv_add_f32 v{Z}, v{Z}, v{T}')
    a(f'v_mov_b32 v{T}, v{Z}\nv_permlane32_swap_b32 v{Z}, v{T}\nv_add3_u32 v10, v10, v10, v10' if False else f'v_mov_b32 v{T}, v{Z}\nv_permlane32_swap_b32 v{Z}, v{T}')
    a(f'v_add_f32 v{Z}, v{Z}, v25\nv_add_f32 v{Z}, v{Z}, v{T}')
    a(f'v_mul_f32 v{T}, v{Z}, v{Z}\nv_fma_f32 v{T}, v{T}, s42, 1.0\nv_mul_f32 v{T}, v{T}, v{Z}\nv_mul_f32 v{T}, s43, v{T}')
    a(f'v_exp_f32 v{T}, v{T}\nv_add_f32 v{T}, 1.0, v{T}\nv_rcp_f32 v{T}, v{T}\nv_mul_f32 v{T}, v{T}, v{Z}')
    a(f'v_cvt_pk_bf16_f32 v{T}, v{T}, v{T}')
    a(f's_mov_b64 exec, 0xffff\nds_write_b16 v41, v{T}\ns_mov_b64 exec, -1')
    a('s_waitcnt lgkmcnt(0)\ns_barrier')
    a(f'ds_read_b128 v[{AT}:{AT+3}], v42\nds_read_b128 v[{AT+4}:{AT+7}], v42 offset:64')
    a(f'ds_read_b32 v52, v48')
    for s in range(2):
        a(f's_waitcnt lgkmcnt({2-s})')
        for cg in range(4):
            ac = AT + 8 + 4*cg; fr = F1 + (cg*2 + s)*4
            c = '0' if s == 0 else f'v[{ac}:{ac+3}]'
            a(f'v_mfma_f32_16x16x32_bf16 v[{ac}:{ac+3}], v[{AT+4*s}:{AT+4*s+3}], v[{fr}:{fr+3}], {c}')
    y = AT + 24
    a('s_cmp_lg_u32 s32, 0')
    for r in range(2): a(f'v_cndmask_b32 v{y+r}, v{AT+8+r}, v{AT+12+r}, s[36:37]')
    for r in range(2): a(f'v_cndmask_b32 v{y+r}, v{y+r}, v{AT+16+r}, s[38:39]')
    for r in range(2): a(f'v_cndmask_b32 v{y+r}, v{y+r}, v{AT+20+r}, s[44:45]')
    store2(f'buffer_store_dwordx2 v[{y}:{y+1}], v5, s[20:23], s24 offen')
    stamp(13)
    a('s_cmp_ge_u32 s3, 8\ns_cbranch_scc1 L_hdone')
    srd(24, 's46', 's47', 2048)
    vpoll([f'buffer_load_dwordx2 v[{AT+2*i}:{AT+2*i+1}], v{44+i}, s[20:23], 0 offen sc1' for i in range(4)], [AT+k for k in range(8)], AT+8)
    stamp(14)
    a(f'v_pk_add_f32 v[{AT}:{AT+1}], v[{AT}:{AT+1}], v[{AT+2}:{AT+3}]\nv_pk_add_f32 v[{AT+4}:{AT+5}], v[{AT+4}:{AT+5}], v[{AT+6}:{AT+7}]')
    a(f'v_pk_add_f32 v[{AT}:{AT+1}], v[{AT}:{AT+1}], v[{AT+4}:{AT+5}]')
    a(f'v_add_f32_dpp v{Z}, v{AT}, v{AT} row_ror:8 row_mask:0xf bank_mask:0x3')
    a(f'v_add_f32_dpp v{Z}, v{AT+1}, v{AT+1} row_ror:8 row_mask:0xf bank_mask:0xc')
    a(f'v_mov_b32 v{T}, v{Z}\nv_permlane16_swap_b32 v{Z}, v{T}\nv_add_f32 v{Z}, v{Z}, v{T}')
    a(f'v_mov_b32 v{T}, v{Z}\nv_permlane32_swap_b32 v{Z}, v{T}\nv_add_f32 v{Z}, v{Z}, v{T}')
    a(f's_waitcnt lgkmcnt(0)\nv_add_f32 v{Z}, v{Z}, v24\nv_fma_f32 v{Z}, v23, v{Z}, v52')
    if cfg.diag is not None:
        a('s_or_b32 s6, s3, s4\ns_cmp_lg_u32 s6, 0\ns_cbranch_scc1 L_ndiag')
        a('s_memrealtime s[94:95]\ns_waitcnt lgkmcnt(0)\ns_sub_u32 s6, s94, s64')
        a(f's_cmp_lt_u32 s6, {cfg.T0}\ns_cbranch_scc1 L_ndiag\ns_cmp_eq_u32 s96, s97\ns_cbranch_scc1 L_ndiag\ns_cmp_eq_u32 s32, 0\ns_cbranch_scc1 L_ndiag')
        a(f's_sub_u32 s6, s{64+2*cfg.diag}, s64\nv_cvt_f32_u32 v10, s6\ns_mov_b64 exec, 1\nv_add_f32 v{Z}, v{Z}, v10\ns_mov_b64 exec, -1')
        a('L_ndiag:')
    a(f'v_mov_b32_dpp v{T}, v{Z} quad_perm:[1,1,3,3] row_mask:0xf bank_mask:0xf')
    a(f's_mov_b64 exec, 0x5555')
    a(f'v_cvt_pk_bf16_f32 v{T}, v{Z}, v{T}')
    a(f'buffer_store_dword v{T}, v49, s[24:27], 0 offen')
    a('s_or_b32 s6, s3, s4\ns_cmp_lg_u32 s6, 0\ns_cbranch_scc1 L_noep')
    a(f's_mov_b64 exec, 1\nv_mov_b32 v10, {EPO}\nv_mov_b32 v11, s33\nbuffer_store_dword v11, v10, s[16:19], 0 offen')
    a('L_noep:')
    a('s_mov_b64 exec, -1')
    stamp(15)
    a('L_hdone:')
    if cfg.stamps:
        a('s_cmp_lg_u32 s4, 0\ns_cbranch_scc1 L_end')
        stamps_out(16, 0)
        a('s_cmp_lg_u32 s2, 0\ns_cbranch_scc1 L_end')
        for n, i in enumerate((1, 4, 7, 8, 9, 10, 11, 12, 13, 14, 15)):
            a(f's_sub_u32 s60, s{64+2*i}, s64\nv_mov_b32 v4, s60\nglobal_store_dword v2, v4, s[12:13] offset:{16+4*n}')
        a('v_mov_b32 v4, s32\nglobal_store_dword v2, v4, s[12:13]')
        a('s_waitcnt vmcnt(0)')
    a('L_end:')
    a('s_endpgm')
    return wrap(a.finalize(), 256, 768, LDS_TOTAL, 168, sgpr=100)

if __name__ == '__main__':
    out = sys.argv[1]
    for o in sys.argv[2:]:
        k, v = o.split('=')
        setattr(cfg, k, eval(v))
    open(out, 'w').write(gen())
```

```python
import re
TRANS = ('v_exp_f32','v_log_f32','v_rcp_f32','v_rsq_f32','v_sqrt_f32','v_sin_f32','v_cos_f32')
def parse_regs(tok):
    tok = tok.strip()
    tok = tok.lstrip('-')
    m = re.fullmatch(r'abs\((.*)\)', tok)
    if m: tok = m.group(1)
    m = re.fullmatch(r'([vsa])(\d+)', tok)
    if m: return {(m.group(1), int(m.group(2)))}
    m = re.fullmatch(r'([vsa])\[(\d+):(\d+)\]', tok)
    if m: return {(m.group(1), i) for i in range(int(m.group(2)), int(m.group(3)) + 1)}
    if tok == 'vcc': return {('s', 106), ('s', 107)}
    if tok == 'vcc_lo': return {('s', 106)}
    if tok == 'vcc_hi': return {('s', 107)}
    if tok == 'exec': return {('s', 126), ('s', 127)}
    if tok == 'm0': return {('s', 124)}
    return set()

class Ins:
    def __init__(self, text):
        self.text = text
        t = text.split(';')[0].strip()
        self.label = t.endswith(':')
        self.directive = t.startswith('.')
        self.empty = (t == '')
        self.op = ''
        self.wr = set(); self.rd = set()
        self.states = 0
        if self.label or self.directive or self.empty: return
        parts = t.split(None, 1)
        op = parts[0]; self.op = op
        rest = parts[1] if len(parts) > 1 else ''
        ops = []; depth = 0; cur = ''
        for ch in rest:
            if ch in '[(': depth += 1
            if ch in '])': depth -= 1
            if ch == ',' and depth == 0: ops.append(cur); cur = ''
            else: cur += ch
        ops.append(cur)
        toks = []
        for o in ops:
            o = o.strip()
            if o: toks.append(o.split()[0])
        self.mods = rest
        self.states = 1
        if op == 's_nop': self.states = int(rest.strip(), 0) + 1
        R = [parse_regs(x) for x in toks]
        self.valu = op.startswith('v_') and not op.startswith(('v_mfma', 'v_smfmac'))
        self.mfma = op.startswith(('v_mfma', 'v_smfmac'))
        self.trans = any(op.startswith(x) for x in TRANS)
        self.dpp = '_dpp' in op or 'quad_perm' in rest or 'row_ror' in rest or 'row_shr' in rest or 'row_shl' in rest
        self.perml = op.startswith('v_permlane')
        self.rdlane = op.startswith('v_readlane') or op.startswith('v_readfirstlane')
        self.ds = op.startswith('ds_')
        self.vmem = op.startswith('buffer_') or op.startswith('global_')
        self.salu = op.startswith('s_')
        self.ldsdma = self.vmem and re.search(r'\blds\b', rest) is not None
        self.A = self.B = self.C = set()
        if op.startswith('v_smfmac'):
            self.wr = R[0]; self.A = R[1] | R[3]; self.B = R[2]; self.C = R[0]; self.rd = R[0] | R[1] | R[2] | R[3]
        elif self.mfma:
            self.wr = R[0]; self.A = R[1]; self.B = R[2]; self.C = R[3]; self.rd = R[1] | R[2] | R[3]
        elif self.valu:
            if self.perml:
                self.wr = R[0] | R[1]; self.rd = R[0] | R[1]
            else:
                self.wr = set(R[0])
                srcs = R[1:]
                if op.startswith(('v_add_co', 'v_sub_co', 'v_addc_co', 'v_subb_co')):
                    self.wr |= R[1]; srcs = R[2:]
                for s in srcs: self.rd |= s
                if op.startswith(('v_fmac', 'v_dot2c', 'v_writelane')): self.rd |= R[0]
                if op.startswith('v_cndmask') and len(R) == 3: self.rd |= parse_regs('vcc')
        elif self.ds:
            if op.startswith(('ds_read', 'ds_bpermute', 'ds_swizzle', 'ds_permute')):
                self.ldwr = R[0]
                for s in R[1:]: self.rd |= s
            else:
                for s in R: self.rd |= s
        elif self.vmem:
            if '_load' in op and not self.ldsdma:
                self.ldwr = R[0]
                for s in R[1:]: self.rd |= s
            else:
                for s in R: self.rd |= s
            self.widestore = ('store_dwordx4' in op or 'store_dwordx3' in op)
            if self.widestore:
                self.sdata = R[0] if op.startswith('buffer') else R[1]
        elif self.salu:
            if op.startswith(('s_cmp', 's_waitcnt', 's_barrier', 's_branch', 's_cbranch', 's_sleep', 's_endpgm', 's_setprio', 's_nop')):
                for s in R: self.rd |= s
            else:
                if R: self.wr = set(R[0])
                for s in R[1:]: self.rd |= s

def isv(s): return {r for r in s if r[0] in 'va'}
def iss(s): return {r for r in s if r[0] == 's'}

def need(p, c):
    n = 0
    if p.valu:
        vw = isv(p.wr); sw = iss(p.wr)
        if c.mfma and vw & c.rd: n = max(n, 2)
        if c.valu and c.dpp and vw & c.rd: n = max(n, 2)
        if c.valu and c.perml and vw & c.rd: n = max(n, 2)
        if c.valu and c.rdlane and vw & c.rd: n = max(n, 1)
        if p.trans and c.valu and vw & c.rd: n = max(n, 1)
        if p.trans and (c.ds or c.vmem) and vw & c.rd: n = max(n, 1)
        if sw:
            if c.valu and sw & c.rd: n = max(n, 4 if c.rdlane or c.op.startswith('v_writelane') else 2)
            if c.mfma and sw & c.rd: n = max(n, 2)
            if c.vmem and sw & c.rd: n = max(n, 5)
            if c.salu and sw & c.rd and not c.op.startswith('s_cbranch'): n = max(n, 1)
        if ('sdwa' in p.op or 'op_sel' in p.mods) and c.valu and vw & (c.rd | c.wr): n = max(n, 1)
    if p.mfma:
        d = p.wr
        if c.mfma:
            if d & (c.A | c.B): n = max(n, 8)
            if d & c.C and d != c.C: n = max(n, 6)
        if c.valu and d & (c.rd | c.wr): n = max(n, 8)
        if (c.ds or c.vmem) and d & (c.rd | getattr(c, 'ldwr', set())): n = max(n, 8)
        if c.valu and isv(p.C) & c.wr: n = max(n, 3)
    if p.salu and ('s', 124) in p.wr and c.ldsdma: n = max(n, 1)
    if p.vmem and getattr(p, 'widestore', False) and c.valu and p.sdata & c.wr: n = max(n, 2)
    return n

class Asm:
    def __init__(self): self.lines = []
    def __call__(self, text):
        for l in text.split('\n'):
            l = l.strip()
            if l: self.lines.append(l)
    def finalize(self):
        out = []; hist = []
        nops = 0
        for l in self.lines:
            i = Ins(l)
            if i.label or i.directive or i.empty:
                out.append(l); continue
            dist = 0; req = 0
            for p in reversed(hist):
                r = need(p, i) - dist
                if r > req: req = r
                dist += p.states
                if dist >= 12: break
            if req > 0:
                n = Ins(f's_nop {req-1}')
                hist.append(n); out.append(f'    s_nop {req-1}'); nops += 1
            hist.append(i); out.append('    ' + l)
            if i.op in ('s_branch', 's_endpgm'): hist = []
        return '\n'.join(out)
```

```python
import sys, math, struct
from asmlib import *
from gen_common import *

class Cfg:
    stamps = False
    NT = 'nt'
    warm = True
    prio = True
    slp = 2
    qslp = 4
    thS = 63
    thV = 63
    pre = 3
    touch = True
    diag = None
    fine = False
    sw = 0
    mp = 2
    nth = 23
    T0 = 1900
    gate = 0
    apre = 0
    fast = True
cfg = Cfg()

MODA=0; MODB=0x8000; QO=0x10000; XID=0x18000; EPO=0x1A800; WOUT=0x1C000; MOUT=0x24000; OP=0x40000; STMP=0x80000; LSE=0x90000; WS_SZ=0x100000
NCH = 12
KW=36864; PREG=147456; ZERO=153600; ST=154176; QL=154368; QF=155392; SCR=0; LDS_TOTAL=155648
R0=0; R1=65536; ACT=131072; ACTC=133376; ACTM=135680; TS=2336; HID=145024; STAT=145408; STAT2=145472; STAT3=145536; X1=145664; AS=149760
LIMIT = 200000
LOG2E = 1.4426950408889634
def f2u(x): return '0x%08x' % struct.unpack('<I', struct.pack('<f', x))[0]

def gen():
    a = Asm()
    uid = [0]
    def lab(p):
        uid[0] += 1; return f'L_{p}_{uid[0]}'
    def stamp(i):
        if cfg.stamps: a(f's_memrealtime s[{64+2*i}:{65+2*i}]')
    def fst(i):
        if cfg.fine: stamp(i)
    def stamps_out(n, base_slot):
        if not cfg.stamps: return
        a('s_waitcnt lgkmcnt(0)')
        a('s_mov_b64 exec, 1')
        a(f's_lshl_b32 s60, s2, 7\ns_add_u32 s60, s60, {STMP + base_slot*8}')
        a('v_mov_b32 v2, 0')
        for i in range(n):
            a(f'v_mov_b32 v4, s{64+2*i}\nv_mov_b32 v5, s{65+2*i}')
            a(f'buffer_store_dwordx2 v[4:5], v2, s[16:19], s60 offen offset:{8*i}')
        a('s_waitcnt vmcnt(0)')
    def srd(d, lo, hi, size):
        a(f's_mov_b32 s{d}, {lo}\ns_mov_b32 s{d+1}, {hi}\ns_mov_b32 s{d+2}, {size}\ns_mov_b32 s{d+3}, 0x20000')
    def epoch_load():
        a(f's_load_dword s33, s[14:15], {EPO}')
    def epoch_tag():
        a('s_mul_i32 s33, s33, 0x9E3779B1\ns_add_u32 s33, s33, 0x85EBCA6B')
    def red3(op, regs, tmp):
        rs = list(regs)
        if len(rs) == 1: return rs[0]
        first = True
        while rs:
            if first:
                if len(rs) >= 3: a(f'v_{op}3_u32 v{tmp}, v{rs[0]}, v{rs[1]}, v{rs[2]}'); rs = rs[3:]
                else: a(f'v_{op}_u32 v{tmp}, v{rs[0]}, v{rs[1]}'); rs = rs[2:]
                first = False
            elif len(rs) >= 2: a(f'v_{op}3_u32 v{tmp}, v{tmp}, v{rs[0]}, v{rs[1]}'); rs = rs[2:]
            else: a(f'v_{op}_u32 v{tmp}, v{tmp}, v{rs[0]}'); rs = rs[1:]
        return tmp
    def vpoll(loads, regs, tmp, sleep=0, first_issued=False, tags=False, dbg=None, first_cnt=0):
        l = lab('vp'); d = lab('vd'); w = lab('vw')
        a('s_mov_b32 s30, 0')
        if first_issued: a(f's_waitcnt vmcnt({first_cnt})\ns_branch {w}')
        a(f'{l}:')
        for x in loads: a(x)
        a('s_add_u32 s30, s30, 1')
        a('s_waitcnt vmcnt(0)')
        if first_issued: a(f'{w}:')
        if dbg is not None and cfg.stamps:
            p, q_, n_ = dbg
            a(f's_mov_b64 s[{64+2*p}:{65+2*p}], s[{64+2*q_}:{65+2*q_}]')
            stamp(q_); a('s_waitcnt lgkmcnt(0)')
            a(f's_add_u32 s{64+2*n_}, s64, s30\ns_mov_b32 s{65+2*n_}, s65')
        if tags:
            m = red3('max', regs, tmp)
            if len(list(regs)) > 1:
                n = red3('min', regs, tmp + 1)
                a(f'v_cmp_ne_u32 vcc, s33, v{m}\nv_cmp_ne_u32 s[34:35], s33, v{n}\ns_or_b64 vcc, vcc, s[34:35]')
            else:
                a(f'v_cmp_ne_u32 vcc, s33, v{m}')
        else:
            m = red3('max', regs, tmp)
            a(f'v_cmp_eq_u32 vcc, -1, v{m}')
        a(f's_cbranch_vccz {d}')
        if sleep: a(f's_sleep {sleep}')
        a(f's_cmp_lt_u32 s30, {LIMIT}\ns_cbranch_scc1 {l}')
        a(f'{d}:')
    def mpoll(items, tmp, first_issued=False):
        l = lab('mp'); d = lab('md')
        a('s_mov_b32 s30, 0')
        if not first_issued:
            for ld, regs in items: a(ld)
        a(f'{l}:')
        a('s_waitcnt vmcnt(0)')
        ms = []
        for k, (ld, regs) in enumerate(items):
            ms.append(red3('max', regs, tmp + k))
        for k, m in enumerate(ms):
            a(f'v_cmp_eq_u32 s[{48+2*k}:{49+2*k}], -1, v{m}')
        n = len(items)
        if n == 1:
            a('s_cmp_eq_u64 s[48:49], 0\ns_cbranch_scc1 ' + d)
        else:
            a('s_or_b64 s[34:35], s[48:49], s[50:51]')
            for k in range(2, n): a(f's_or_b64 s[34:35], s[34:35], s[{48+2*k}:{49+2*k}]')
            a(f's_cbranch_scc0 {d}')
        for k, (ld, regs) in enumerate(items):
            a(f's_mov_b64 exec, s[{48+2*k}:{49+2*k}]')
            a(ld)
        a('s_mov_b64 exec, -1')
        a(f's_add_u32 s30, s30, 1\ns_cmp_lt_u32 s30, {LIMIT}\ns_cbranch_scc1 {l}')
        a('s_waitcnt vmcnt(0)')
        a(f'{d}:')
    def dma_u1(lo, hi, size, RS, sbase, region, setup=True, i0=0, i1=8):
        if setup:
            a('v_bfe_u32 v10, v1, 4, 1\nv_and_b32 v12, 7, v1\nv_xor_b32 v10, v10, v12')
            a('s_and_b32 s27, s4, 4\nv_xor_b32 v10, s27, v10')
            a(f'v_lshrrev_b32 v2, 3, v1\nv_mul_u32_u24 v2, {RS}, v2\nv_xor_b32 v12, 2, v10')
            a('v_lshl_add_u32 v12, v12, 4, v2\nv_lshl_add_u32 v2, v10, 4, v2')
        srd(20, lo, hi, size)
        a(f's_mul_i32 s27, s4, {64*RS}\ns_add_u32 s27, s27, {sbase}')
        if i0: a(f's_add_u32 s27, s27, {8*RS*i0}')
        a(f's_lshl_b32 s28, s4, 13')
        if region + i0: a(f's_add_u32 s28, s28, {region + 1024*i0}')
        for i in range(i0, i1):
            a('s_mov_b32 m0, s28')
            if i < i1-1: a('s_add_u32 s28, s28, 1024')
            a(f'buffer_load_dwordx4 v{12 if i & 1 else 2}, s[20:23], s27 offen {cfg.NT} lds')
            if i < i1-1: a(f's_add_u32 s27, s27, {8*RS}')

    def dma_w(i0, i1, setup=True):
        if setup:
            a('s_and_b32 s6, s4, 1\ns_lshl_b32 s6, s6, 6\ns_and_b32 s7, s4, 4\ns_lshl_b32 s7, s7, 5\ns_or_b32 s6, s6, s7')
            a('v_lshlrev_b32 v2, 4, v1\nv_and_b32 v2, 0x1f0, v2\nv_and_b32 v10, 32, v1\nv_xor_b32 v2, v2, v10\nv_xor_b32 v2, s6, v2\nv_lshl_add_u32 v2, v10, 5, v2')
        srd(20, 's50', 's51', 4096*1024)
        a(f's_lshl_b32 s27, s4, 11\ns_add_u32 s27, s27, s24\ns_add_u32 s27, s27, {16384*i0}')
        a(f's_lshl_b32 s28, s4, 10\ns_add_u32 s28, s28, {8192*i0}')
        for i in range(i0, i1):
            a('s_mov_b32 m0, s28')
            if i < i1-1: a('s_add_u32 s28, s28, 8192')
            a(f'buffer_load_dwordx4 v2, s[20:23], s27 offen {cfg.NT} lds')
            if i < i1-1: a('s_add_u32 s27, s27, 16384')
    a('s_cmp_ge_u32 s2, 256\ns_cbranch_scc1 L_end')
    stamp(0)
    a('v_lshrrev_b32 v1, 6, v0')
    a('s_load_dwordx4 s[12:15], s[0:1], 104')
    a('s_lshr_b32 s3, s2, 3\ns_and_b32 s5, s2, 7')
    a('v_readfirstlane_b32 s4, v1')
    a('v_and_b32 v1, 63, v0')
    if cfg.warm:
        a('s_lshr_b32 s6, s2, 4\ns_xor_b32 s7, s4, 11\ns_or_b32 s6, s6, s7\ns_cbranch_scc1 L_nw')
        a('s_getpc_b64 s[8:9]\nL_pc:\nv_lshlrev_b32 v2, 7, v1')
        a('s_mov_b32 s10, L_end-L_pc\ns_mov_b32 s11, 0x20000\ns_mov_b32 s6, 8192')
        a('buffer_load_dword v4, v2, s[8:11], 0 offen\nbuffer_load_dword v5, v2, s[8:11], s6 offen')
        a('s_endpgm')
        a('L_nw:')
    a('s_cmp_eq_u32 s5, 0\ns_cbranch_scc1 L_hearly')
    a('s_mul_i32 s3, s3, 7\ns_add_u32 s3, s3, s5\ns_sub_u32 s3, s3, 1')
    a('s_cmp_ge_u32 s3, 32\ns_cbranch_scc1 L_stream')
    a('L_hearly:')
    a('s_cmp_ge_u32 s4, 8\ns_cbranch_scc1 L_spare')
    a('s_cmp_eq_u32 s5, 0')
    a('s_cselect_b32 s6, 88, 24')
    a('s_load_dwordx2 s[20:21], s[0:1], s6')
    a('s_mov_b32 s7, 8192\ns_cselect_b32 s7, 6144, s7')
    a('s_cselect_b32 s29, 2, 4')
    a('s_cselect_b32 s24, 5, 6')
    a('s_lshl_b32 s22, s7, 9')
    a('s_lshl_b32 s25, s3, 8')
    a('s_lshr_b32 s26, s3, 1\ns_lshl_b32 s26, s26, 7\ns_and_b32 s27, s3, 1\ns_mul_i32 s27, s27, 256*6144\ns_add_u32 s26, s26, s27')
    a('s_cmp_eq_u32 s5, 0\ns_cselect_b32 s25, s26, s25')
    a('v_bfe_u32 v10, v1, 4, 1\nv_and_b32 v12, 7, v1\nv_xor_b32 v10, v10, v12')
    a('s_and_b32 s27, s4, 4\nv_xor_b32 v10, s27, v10')
    a('v_lshrrev_b32 v2, 3, v1\nv_mul_u32_u24 v2, s7, v2\nv_xor_b32 v12, 2, v10')
    a('v_lshl_add_u32 v12, v12, 4, v2\nv_lshl_add_u32 v2, v10, 4, v2')
    a('s_mov_b32 s23, 0x20000')
    a('s_lshl_b32 s6, s4, s24\ns_mul_i32 s27, s6, s7\ns_add_u32 s27, s27, s25')
    a('s_lshl_b32 s28, s6, 7\ns_lshl_b32 s7, s7, 3')
    a('s_waitcnt lgkmcnt(0)')
    a('L_hdma:')
    a('s_mov_b32 m0, s28\ns_add_u32 s28, s28, 1024')
    a(f'buffer_load_dwordx4 v2, s[20:23], s27 offen {cfg.NT} lds')
    a('s_add_u32 s27, s27, s7\ns_mov_b32 m0, s28\ns_add_u32 s28, s28, 1024')
    a(f'buffer_load_dwordx4 v12, s[20:23], s27 offen {cfg.NT} lds')
    a('s_add_u32 s27, s27, s7\ns_sub_u32 s29, s29, 1\ns_cmp_lg_u32 s29, 0\ns_cbranch_scc1 L_hdma')
    a('s_branch L_helper')
    a('L_stream:')
    a('s_load_dwordx4 s[8:11], s[0:1], 8')
    a('s_sub_u32 s6, s3, 32')
    a('s_and_b32 s24, s6, 15\ns_lshr_b32 s25, s6, 4')
    a('s_mul_i32 s6, s25, 21\ns_sub_u32 s7, s25, 8\ns_max_i32 s7, s7, 0\ns_add_u32 s6, s6, s7')
    a('s_lshl_b32 s6, s6, 13\ns_lshl_b32 s7, s24, 21\ns_add_u32 s6, s6, s7')
    a(f's_mov_b32 s22, {21*8192}\ns_cmp_ge_u32 s25, 8\ns_cselect_b32 s22, {22*8192}, s22')
    a('s_mov_b32 s23, 0x20000')
    a('s_cmp_ge_u32 s4, 4\ns_cbranch_scc1 L_vwave')
    if cfg.prio: a('s_setprio 3')
    a('v_lshrrev_b32 v7, 4, v1')
    a('v_and_b32 v15, 15, v1')
    a('v_lshlrev_b32 v6, 2, v7\nv_xor_b32 v6, v6, v15')
    a('v_lshlrev_b32 v8, 8, v7')
    a('v_lshl_add_u32 v2, v6, 4, v8')
    for t in (1, 2, 3): a(f'v_xor_b32 v{2+t}, {16*t}, v2')
    a(f's_mul_i32 s27, s4, 49152\ns_mul_i32 s28, s4, {KW}')
    a('s_waitcnt lgkmcnt(0)')
    a('s_add_u32 s20, s8, s6\ns_addc_u32 s21, s9, 0')
    a('s_mov_b32 s29, 0')
    a('L_kdma:')
    a('s_mov_b32 m0, s28')
    a('s_add_u32 s28, s28, 4096\ns_add_u32 s29, s29, 1')
    for t in range(4):
        a(f'buffer_load_dwordx4 v{2+t}, s[20:23], s27 offen offset:{1024*t} {cfg.NT} lds')
        if cfg.thS < 63: a(f's_waitcnt vmcnt({cfg.thS})')
    a('s_add_u32 s27, s27, 4096')
    a('s_cmp_lt_u32 s29, 9\ns_cbranch_scc1 L_kdma')
    epoch_load()
    a('v_and_b32 v6, 3, v15\nv_lshlrev_b32 v6, 2, v6\nv_lshrrev_b32 v9, 2, v15\nv_add_u32 v6, v6, v9')
    a('v_lshlrev_b32 v10, 8, v6')
    a('v_lshl_add_u32 v6, v7, 4, v10')
    for gi in range(3):
        for s in range(4):
            r = 96 + 16*gi + 4*s
            a(f'buffer_load_dwordx4 v[{r}:{r+3}], v6, s[20:23], s27 offen offset:{64*s} {cfg.NT}')
            if cfg.thS < 63 and 4*gi + s < 11: a(f's_waitcnt vmcnt({cfg.thS})')
        if gi < 2: a('s_add_u32 s27, s27, 4096')
    srd(16, 's14', 's15', WS_SZ)
    a(f's_lshl_b32 s26, s24, 14\ns_lshl_b32 s6, s25, 10\ns_add_u32 s26, s26, s6\ns_lshl_b32 s6, s4, 8\ns_add_u32 s26, s26, s6\ns_add_u32 s26, s26, {OP}')
    a('v_mov_b32 v156, -1\nv_lshlrev_b32 v157, 2, v1')
    a('buffer_store_dword v156, v157, s[16:19], s26 offen sc1')
    a(f's_and_b32 s7, s24, 7\ns_lshl_b32 s6, s7, 12\ns_lshr_b32 s7, s24, 3\ns_lshl_b32 s7, s7, 11\ns_add_u32 s27, s6, s7\ns_add_u32 s27, s27, {QO}')
    a('v_lshlrev_b32 v12, 4, v1')
    qloads = [f'buffer_load_dwordx4 v[{32+4*k}:{35+4*k}], v12, s[16:19], s27 offen offset:{1024*k} sc1' for k in range(2)]
    a('s_cmp_lg_u32 s4, 0\ns_cbranch_scc1 L_nq1')
    for x in qloads: a(x)
    a('L_nq1:')
    stamp(1)
    a('s_barrier')
    a(f's_mul_i32 s28, s4, {KW}')
    a('v_and_b32 v11, 3, v15\nv_xor_b32 v11, v11, v7')
    a('v_lshl_add_u32 v11, v9, 2, v11')
    a('v_lshl_add_u32 v11, v11, 4, v10\nv_add_u32 v8, s28, v11')
    for s in (1, 2, 3): a(f'v_xor_b32 v{8+s}, {64*s}, v8')
    a(f's_mul_i32 s6, s4, 1536\ns_add_u32 s6, s6, {PREG}')
    a('v_lshrrev_b32 v13, 3, v15\nv_lshlrev_b32 v13, 8, v13')
    a('v_and_b32 v14, 3, v15\nv_lshl_add_u32 v13, v14, 6, v13\nv_lshl_add_u32 v13, v7, 4, v13')
    a('v_bfe_u32 v14, v15, 2, 1\nv_lshl_add_u32 v13, v14, 3, v13\nv_add_u32 v13, s6, v13')
    for u in range(4):
        a(f's_mov_b32 s{36+2*u}, {0x000F000F << (4*u):#x}\ns_mov_b32 s{37+2*u}, {0x000F000F << (4*u):#x}')
    a('s_cmp_lt_u32 s25, 8\ns_cselect_b32 s6, 0xff00ff00, 0\ns_cmp_eq_u32 s4, 3\ns_cselect_b32 s44, s6, 0\ns_cselect_b32 s46, -1, 0\ns_mov_b32 s45, s44\ns_mov_b32 s47, s46')
    a('s_waitcnt lgkmcnt(0)')
    epoch_tag()
    stamp(2)
    a(f'v_mov_b32 v14, {QF}')
    a('s_cmp_lg_u32 s4, 0\ns_cbranch_scc1 L_nq2')
    vpoll(qloads, [33, 35, 37, 39], 160, first_issued=True, tags=True, sleep=cfg.qslp, dbg=(1, 2, 5))
    a(f'v_lshlrev_b32 v12, 3, v1\nv_add_u32 v12, {QL}, v12\nv_mov_b32 v16, 1')
    a('ds_write2_b32 v12, v32, v34 offset0:0 offset1:1\nds_write2_b32 v12, v36, v38 offset0:128 offset1:129')
    a('s_waitcnt lgkmcnt(0)\nds_write_b32 v14, v16')
    a('s_branch L_nq3')
    a('L_nq2:')
    a('s_mov_b32 s30, 0')
    a('L_qspin:')
    a('ds_read_b32 v16, v14\ns_add_u32 s30, s30, 1\ns_waitcnt lgkmcnt(0)')
    a('v_cmp_ne_u32 vcc, 1, v16\ns_cbranch_vccz L_nq3')
    a(f's_sleep 1\ns_cmp_lt_u32 s30, {LIMIT*8}\ns_cbranch_scc1 L_qspin')
    a('L_nq3:')
    a(f'v_and_b32 v12, 3, v15\nv_lshlrev_b32 v12, 8, v12\nv_lshl_add_u32 v12, v7, 4, v12\nv_add_u32 v12, {QL}, v12')
    for k in range(4): a(f'ds_read_b128 v[{16+4*k}:{19+4*k}], v12 offset:{64*k}')
    a('s_waitcnt vmcnt(0) lgkmcnt(0)')
    stamp(3)
    order = [(u, dd) for u in range(4) for dd in range(3)]
    ldsg = [4*dd+u for (u, dd) in order if 4*dd+u < 9]
    def kread(k):
        gi = ldsg[k]; buf = 64 + 16*(k & 1)
        for s in range(4):
            a(f'ds_read_b128 v[{buf+4*s}:{buf+4*s+3}], v{8+s} offset:{4096*gi}')
    kread(0)
    k = 0
    for (u, dd) in order:
        gi = 4*dd + u
        mq = 32 + 16*(u & 1)
        if u == 0 and dd == 0:
            for r in range(16): a(f'v_cndmask_b32 v{mq+r}, 0, v{16+r}, s[36:37]')
        if gi < 9:
            src = 64 + 16*(k & 1)
            if k + 1 < len(ldsg):
                kread(k + 1); a('s_waitcnt lgkmcnt(4)')
            else:
                a('s_waitcnt lgkmcnt(0)')
            k += 1
        else:
            src = 96 + 16*(gi - 9)
        D = 144 + 4*dd
        for s in range(4):
            c = '0' if (u == 0 and s == 0) else f'v[{D}:{D+3}]'
            a(f'v_mfma_f32_16x16x32_bf16 v[{D}:{D+3}], v[{src+4*s}:{src+4*s+3}], v[{mq+4*s}:{mq+4*s+3}], {c}')
            if u < 3 and dd < 2:
                mq2 = 32 + 16*((u+1) & 1)
                for r in (8*dd + 2*s, 8*dd + 2*s + 1):
                    a(f'v_cndmask_b32 v{mq2+r}, 0, v{16+r}, s[{38+2*u}:{39+2*u}]')
    a('v_mov_b32 v160, 0xff800000')
    for r in range(4): a(f'v_cndmask_b32 v{148+r}, v{148+r}, v160, s[44:45]')
    for r in range(4): a(f'v_cndmask_b32 v{152+r}, v{152+r}, v160, s[46:47]')
    a('v_max3_f32 v156, v144, v145, v146\nv_max3_f32 v157, v147, v148, v149')
    a('v_max3_f32 v158, v150, v151, v152\nv_max3_f32 v159, v153, v154, v155')
    a('v_max3_f32 v156, v156, v157, v158\nv_max_f32 v156, v156, v159')
    def xreduce(op, r, t):
        a(f'{op}_dpp v{r}, v{r}, v{r} row_ror:4 row_mask:0xf bank_mask:0xf')
        a(f'{op}_dpp v{r}, v{r}, v{r} row_ror:8 row_mask:0xf bank_mask:0xf')
        a(f'v_mov_b32 v{t}, v{r}\nv_permlane16_swap_b32 v{r}, v{t}\n{op} v{r}, v{r}, v{t}')
        a(f'v_mov_b32 v{t}, v{r}\nv_permlane32_swap_b32 v{r}, v{t}\n{op} v{r}, v{r}, v{t}')
    xreduce('v_max_f32', 156, 157)
    a(f's_mov_b32 s6, {f2u(128**-0.5 * LOG2E)}')
    a('v_mul_f32 v158, s6, v156')
    for r in range(12): a(f'v_fma_f32 v{144+r}, v{144+r}, s6, -v158')
    for r in range(12): a(f'v_exp_f32 v{144+r}, v{144+r}')
    for dd in range(3):
        D = 144 + 4*dd
        a(f'v_cvt_pk_bf16_f32 v{32+2*dd}, v{D}, v{D+1}\nv_cvt_pk_bf16_f32 v{33+2*dd}, v{D+2}, v{D+3}')
        a(f'ds_write_b64 v13, v[{32+2*dd}:{33+2*dd}] offset:{512*dd}')
    a('v_add_f32 v159, v144, v145')
    for r in range(2, 12): a(f'v_add_f32 v159, v159, v{144+r}')
    xreduce('v_add_f32', 159, 157)
    a(f's_lshl_b32 s6, s4, 5\ns_add_u32 s6, s6, {ST}')
    a('v_lshl_add_u32 v14, v1, 3, s6')
    a('s_mov_b64 exec, 15\nds_write_b64 v14, v[158:159]\ns_mov_b64 exec, -1')
    a('s_waitcnt lgkmcnt(0)')
    stamp(4)
    a('s_barrier')
    a(f'v_and_b32 v14, 3, v1\nv_lshlrev_b32 v14, 3, v14\nv_add_u32 v14, {ST}, v14')
    for w in range(4): a(f'ds_read_b64 v[{16+2*w}:{17+2*w}], v14 offset:{32*w}')
    a('v_lshrrev_b32 v2, 2, v1\nv_lshrrev_b32 v3, 4, v1\nv_add_u32 v3, v3, v1\nv_and_b32 v3, 3, v3')
    a('v_lshlrev_b32 v2, 5, v2\nv_lshl_add_u32 v2, v3, 3, v2')
    a(f's_lshl_b32 s6, s4, 9\ns_add_u32 s6, s6, {SCR}\nv_add_u32 v2, s6, v2')
    a('s_waitcnt lgkmcnt(0)')
    a('v_max3_f32 v24, v16, v18, v20\nv_max_f32 v24, v24, v22')
    for w in range(4): a(f'v_sub_f32 v{25+w}, v{16+2*w}, v24')
    for w in range(4): a(f'v_exp_f32 v{25+w}, v{25+w}')
    a('v_mul_f32 v29, v25, v17\nv_fmac_f32 v29, v26, v19\nv_fmac_f32 v29, v27, v21\nv_fmac_f32 v29, v28, v23')
    a('v_log_f32 v30, v29\nv_rcp_f32 v29, v29\nv_mov_b32 v31, s33')
    a('v_add_f32 v30, v30, v24')
    a(f's_lshl_b32 s6, s24, 11\ns_lshl_b32 s7, s25, 7\ns_add_u32 s6, s6, s7\ns_add_u32 s6, s6, {LSE}')
    a('v_lshlrev_b32 v3, 3, v1')
    a('s_cmp_eq_u32 s4, 0\ns_cselect_b32 exec_lo, 0xffff, 0\ns_mov_b32 exec_hi, 0\ns_cbranch_execz L_nlse')
    a('buffer_store_dwordx2 v[30:31], v3, s[16:19], s6 offen sc1')
    a('L_nlse:')
    a('s_mov_b64 exec, -1')
    for w in range(4): a(f'v_mul_f32 v{32+w}, v{25+w}, v29')
    for w in range(4): a(f'v_readlane_b32 s{36+w}, v{32+w}, s4')
    a('v_lshlrev_b32 v3, 2, v1')
    a('s_barrier')
    stamp(6)
    for v in range(8): a(f'ds_read_b64 v[{48+2*v}:{49+2*v}], v2 offset:{2048*v}')
    for v in range(8):
        a(f's_waitcnt lgkmcnt({7-v})')
        w = v >> 1; sp = 36 + (w & ~1)
        mod = 'op_sel_hi:[1,0,1]' if (w & 1) == 0 else 'op_sel:[0,1,0] op_sel_hi:[1,1,1]'
        mod2 = 'op_sel_hi:[1,0]' if (w & 1) == 0 else 'op_sel:[0,1] op_sel_hi:[1,1]'
        if v < 2: a(f'v_pk_mul_f32 v[{40+2*v}:{41+2*v}], v[{48+2*v}:{49+2*v}], s[{sp}:{sp+1}] {mod2}')
        else: a(f'v_pk_fma_f32 v[{40+2*(v&1)}:{41+2*(v&1)}], v[{48+2*v}:{49+2*v}], s[{sp}:{sp+1}], v[{40+2*(v&1)}:{41+2*(v&1)}] {mod}')
    a('v_pk_add_f32 v[40:41], v[40:41], v[42:43]')
    a('v_cvt_pk_bf16_f32 v40, v40, v41')
    a('buffer_store_dword v40, v3, s[16:19], s26 offen sc1')
    stamp(7)
    if cfg.stamps:
        a('s_cmp_lg_u32 s4, 0\ns_cbranch_scc1 L_end')
        stamps_out(8, 0)
    a('s_endpgm')

    a('L_vwave:')
    a('s_sub_u32 s4, s4, 4')
    a('v_lshlrev_b32 v2, 4, v1')
    a(f'v_mov_b32 v16, 0\nv_mov_b32 v17, 0\nv_mov_b32 v18, 0\nv_mov_b32 v19, 0\nv_add_u32 v9, {ZERO}, v2')
    a('s_mov_b32 exec_lo, -1\ns_mov_b32 exec_hi, 3\nds_write_b128 v9, v[16:19]\ns_mov_b64 exec, -1')
    a(f'v_mov_b32 v9, {QF}\nds_write_b32 v9, v16')
    a(f's_mul_i32 s7, s4, 768\ns_add_u32 s7, s7, {PREG}')
    a('v_and_b32 v9, 3, v1\nv_lshlrev_b32 v9, 6, v9\nv_lshrrev_b32 v10, 4, v1\nv_lshl_add_u32 v9, v10, 4, v9\nv_add_u32 v9, s7, v9')
    a(f'v_mov_b32 v11, {ZERO}')
    for x in range(4):
        a(f's_mov_b32 s34, {0x000F000F << (4*x):#x}\ns_mov_b32 s35, s34')
        a(f'v_cndmask_b32 v{3+x}, v11, v9, s[34:35]')
    a('v_and_b32 v7, 15, v1\nv_lshrrev_b32 v8, 2, v7\nv_add_u32 v8, v8, v10\nv_and_b32 v8, 3, v8')
    a('v_lshlrev_b32 v7, 5, v7\nv_lshl_add_u32 v7, v8, 3, v7')
    a(f's_lshl_b32 s7, s4, 11\ns_add_u32 s7, s7, {SCR}\nv_add_u32 v7, s7, v7\nv_add_u32 v8, 1024, v7')
    a('s_mov_b32 s36, 0x05040100\ns_mov_b32 s37, 0x07060302')
    a('s_mul_i32 s27, s4, 24576')
    a('s_waitcnt lgkmcnt(0)')
    a('s_add_u32 s20, s10, s6\ns_addc_u32 s21, s11, 0')
    if cfg.stamps: srd(16, 's14', 's15', WS_SZ)
    a('s_barrier')
    stamp(1)
    for i in range(24):
        r = 72 + 4*i
        a(f'buffer_load_dwordx4 v[{r}:{r+3}], v2, s[20:23], s27 offen offset:{1024*(i&3)} {cfg.NT}')
        if cfg.thV < 63 and cfg.thV <= i < cfg.nth: a(f's_waitcnt vmcnt({cfg.thV})')
        if (i & 3) == 3 and i < 23: a('s_add_u32 s27, s27, 4096')
    stamp(2)
    a('s_barrier')
    stamp(3)
    def pread(t):
        buf = 40 + 16*(t & 1)
        for x in range(4): a(f'ds_read_b128 v[{buf+4*x}:{buf+4*x+3}], v{3+x} offset:{256*t}')
    pread(0); pread(1)
    for t in range(3):
        a(f's_waitcnt vmcnt({16-8*t})')
        if t == 2: stamp(4)
        vb = 72 + 32*t; pb = 40 + 16*(t & 1)
        for j in range(8):
            tb = 24 + 4*(j & 3)
            sel = 's37' if (j & 1) else 's36'
            for tt in range(4):
                a(f'v_perm_b32 v{tb+tt}, v{vb + 4*(2*tt+1) + (j>>1)}, v{vb + 4*(2*tt) + (j>>1)}, {sel}')
            if j == 0: a('s_waitcnt lgkmcnt(4)' if t == 0 else 's_waitcnt lgkmcnt(0)')
            if j > 0:
                jj = j - 1; tb2 = 24 + 4*(jj & 3); acc = 16 + 4*(jj & 1); x = jj >> 1
                c = '0' if (t == 0 and jj < 2) else f'v[{acc}:{acc+3}]'
                a(f'v_mfma_f32_16x16x32_bf16 v[{acc}:{acc+3}], v[{pb+4*x}:{pb+4*x+3}], v[{tb2}:{tb2+3}], {c}')
        a(f'v_mfma_f32_16x16x32_bf16 v[20:23], v[{pb+12}:{pb+15}], v[36:39], v[20:23]')
        if t == 0: pread(2)
    for r in range(4):
        ad = 7 + (r >> 1); o = 128*(r & 1)
        a(f'ds_write2_b32 v{ad}, v{16+r}, v{20+r} offset0:{o} offset1:{o+1}')
    a('s_waitcnt lgkmcnt(0)')
    stamp(5)
    a('s_barrier')
    if cfg.stamps:
        a('s_cmp_lg_u32 s4, 0\ns_cbranch_scc1 L_end')
        stamps_out(6, 8)
    a('s_endpgm')

    a('L_spare:')
    a('s_cmp_lg_u32 s5, 0\ns_cbranch_scc1 L_end')
    a('s_cmp_lg_u32 s4, 8\ns_cbranch_scc1 L_end')
    a('v_mov_b32 v4, -1\nv_mov_b32 v5, -1\nv_mov_b32 v6, -1\nv_mov_b32 v7, -1')
    a(f's_lshl_b32 s6, s3, 10\ns_add_u32 s6, s6, {WOUT}\nv_lshlrev_b32 v2, 4, v1\nv_add_u32 v2, s6, v2')
    a(f's_lshl_b32 s6, s3, 12\ns_add_u32 s6, s6, {MOUT}\nv_lshlrev_b32 v8, 4, v1\nv_add_u32 v8, s6, v8')
    a('s_waitcnt lgkmcnt(0)')
    a('global_store_dwordx4 v2, v[4:7], s[14:15] sc1')
    a('s_cmp_ge_u32 s3, 28\ns_cbranch_scc1 L_sp2')
    for i in range(4): a(f'global_store_dwordx4 v8, v[4:7], s[14:15] offset:{1024*i} sc1')
    a('L_sp2:')
    a('s_waitcnt vmcnt(0)')
    a('s_endpgm')

    AT=136; DD=32; Z=36; T=38; ZT=37; F0=40; F1=72; F2=104
    a('L_helper:')
    epoch_load()
    if cfg.diag is not None: a(f's_load_dword s96, s[14:15], {XID+4}\ns_load_dword s97, s[14:15], {EPO}')
    a('s_load_dwordx2 s[44:45], s[0:1], 0')
    a('s_load_dwordx4 s[48:51], s[0:1], 24')
    a('s_load_dwordx4 s[52:55], s[0:1], 80')
    a('v_lshrrev_b32 v10, 3, v1\nv_and_b32 v11, 3, v1\nv_lshlrev_b32 v11, 1, v11\nv_lshl_add_u32 v10, v10, 3, v11')
    a('v_bfe_u32 v11, v1, 2, 1')
    a('s_lshl_b32 s6, s4, 6\nv_add_u32 v12, s6, v10')
    a('v_lshlrev_b32 v6, 1, v12\nv_lshl_add_u32 v6, v11, 10, v6')
    a(f'v_lshlrev_b32 v9, 2, v12\nv_lshl_add_u32 v9, v11, 11, v9\nv_add_u32 v9, {X1}, v9')
    a(f's_lshr_b32 s6, s4, 2\ns_mul_i32 s6, s6, 576\ns_and_b32 s7, s4, 3\ns_lshl_b32 s7, s7, 7\ns_add_u32 s6, s6, s7\ns_add_u32 s6, s6, {ACT}')
    a('v_mul_u32_u24 v7, 1152, v11\nv_lshl_add_u32 v7, v10, 1, v7\nv_add_u32 v7, s6, v7')
    a('v_lshrrev_b32 v13, 3, v1\nv_lshlrev_b32 v13, 2, v13\nv_lshl_add_u32 v13, v11, 5, v13')
    a(f'v_add_u32 v13, {STAT}, v13')
    a('s_waitcnt lgkmcnt(0)')
    srd(16, 's14', 's15', WS_SZ)
    epoch_tag()
    a('global_load_dword v17, v6, s[52:53]')
    a('global_load_dword v16, v6, s[44:45]')
    a('s_cmp_eq_u32 s5, 0\ns_cbranch_scc1 L_t2')
    a('s_add_u32 s24, s25, 128')
    dma_u1('s48', 's49', 512*8192, 8192, 's24', R1)
    a('s_branch L_h2')
    a('L_t2:')
    a('s_lshr_b32 s26, s3, 1\ns_lshl_b32 s24, s26, 18\ns_and_b32 s6, s3, 1\ns_lshl_b32 s6, s6, 9\ns_add_u32 s24, s24, s6')
    dma_w(8, 8 + cfg.pre)
    a('L_h2:')
    a('v_lshrrev_b32 v10, 4, v1\nv_bfe_u32 v11, v1, 2, 2\nv_lshl_add_u32 v3, v10, 3, v11')
    a('v_bfe_u32 v11, v1, 1, 1\nv_lshl_add_u32 v3, v11, 8, v3\nv_lshlrev_b32 v3, 7, v3')
    a('v_bfe_u32 v12, v1, 3, 2\nv_lshl_add_u32 v12, v11, 2, v12\nv_xor_b32 v12, s4, v12\nv_lshl_add_u32 v3, v12, 4, v3')
    a('v_and_b32 v12, 1, v1\nv_lshl_add_u32 v3, v12, 3, v3')
    a(f'v_lshl_add_u32 v4, v12, 1, v11\nv_mul_u32_u24 v4, 576, v4\nv_lshl_add_u32 v4, v10, 4, v4\nv_add_u32 v4, {ACT}, v4')
    a('v_lshlrev_b32 v5, 3, v0')
    a('s_lshl_b32 s6, s4, 7\nv_lshl_add_u32 v8, v1, 3, s6\nv_lshlrev_b32 v28, 4, v0')
    a(f'v_mov_b32 v18, 0\nv_lshlrev_b32 v10, 2, v1\nv_add_u32 v10, {STAT}, v10\nv_mov_b32 v{T+1}, s33\nv_mov_b32 v{ZT}, s33')
    a('s_mov_b32 exec_lo, -1\ns_mov_b32 exec_hi, 0xffff\nds_write_b32 v10, v18\ns_mov_b64 exec, -1')

    def tr_u1(F, region, steps=8, ad=None):
        if ad is None:
            if region: a(f'v_add_u32 v10, {region}, v3')
            ad = 'v10' if region else 'v3'
        for s in range(steps):
            for hh in range(2):
                a(f'ds_read_b64_tr_b16 v[{F+4*s+2*hh}:{F+4*s+2*hh+1}], {ad} offset:{4096*s + 512*hh}')
    def gemv(Fs, ad='v4', fill=(), off=0, steps=8, Ds=None):
        if isinstance(Fs, int): Fs = [Fs]
        if Ds is None: Ds = [DD]
        fill = list(fill)
        for s in range(steps): a(f'ds_read_b128 v[{AT+4*s}:{AT+4*s+3}], {ad} offset:{64*s+off}')
        per = (len(fill) + steps - 2) // (steps - 1)
        for s in range(steps):
            a(f's_waitcnt lgkmcnt({steps-1-s})')
            for F, D in zip(Fs, Ds):
                c = '0' if s == 0 else f'v[{D}:{D+3}]'
                a(f'v_mfma_f32_16x16x32_bf16 v[{D}:{D+3}], v[{AT+4*s}:{AT+4*s+3}], v[{F+4*s}:{F+4*s+3}], {c}')
            for _ in range(per):
                if fill: a(fill.pop(0))
        for x in fill: a(x)
    def sgemv(Fs, Ds, ad, idx, off=0, fill=(), steps=4, pre=0):
        fill = list(fill)
        for s in range(steps): a(f'ds_read_b128 v[{AT+4*s}:{AT+4*s+3}], {ad} offset:{64*s+off}')
        per = len(fill) // steps
        for s in range(steps):
            a(f's_waitcnt lgkmcnt({steps-1-s})')
            for F, D in zip(Fs, Ds):
                a(f'v_smfmac_f32_16x16x64_bf16 v[{D}:{D+3}], v[{AT+4*s}:{AT+4*s+3}], v[{F+8*s}:{F+8*s+7}], {idx}')
            for _ in range(per):
                if fill: a(fill.pop(0))
        for x in fill: a(x)
    def fold(D=DD, z=Z):
        a(f'v_add_f32_dpp v{z}, v{D+2}, v{D} row_ror:8 row_mask:0xf bank_mask:0x3')
        a(f'v_add_f32_dpp v{z}, v{D+1}, v{D+3} row_ror:8 row_mask:0xf bank_mask:0xc')
    def publish_tag(z, soff):
        a(f's_mov_b64 exec, 0xffff\nbuffer_store_dwordx2 v[{Z}:{Z+1}], v8, s[16:19], {soff} offen sc1\ns_mov_b64 exec, -1')
    def store2(text):
        if not cfg.fast: a(text + ' sc1'); return
        l = lab('fs'); d = lab('fd')
        a(f's_cbranch_scc1 {l}')
        a(text + ' sc1'); a(f's_branch {d}')
        a(f'{l}:'); a(text); a(f'{d}:')
    def unpack(lo, hi, src):
        a(f'v_lshlrev_b32 v{lo}, 16, v{src}\nv_and_b32 v{hi}, 0xffff0000, v{src}')
    def red6(vals, off, TT):
        r01, r23, r45, z = TT
        for r, (e, o) in zip((r01, r23, r45), ((vals[0], vals[1]), (vals[2], vals[3]), (vals[4], vals[5]))):
            a(f'v_add_f32_dpp v{r}, v{e}, v{e} row_ror:8 row_mask:0xf bank_mask:0x3')
        for r, (e, o) in zip((r01, r23, r45), ((vals[0], vals[1]), (vals[2], vals[3]), (vals[4], vals[5]))):
            a(f'v_add_f32_dpp v{r}, v{o}, v{o} row_ror:8 row_mask:0xf bank_mask:0xc')
        a(f'v_permlane16_swap_b32 v{r01}, v{r23}\nv_permlane16_swap_b32 v{r45}, v{z}')
        a(f'v_add_f32 v{r01}, v{r01}, v{r23}\nv_add_f32 v{r45}, v{r45}, v{z}')
        a(f'v_permlane32_swap_b32 v{r01}, v{r45}\nv_add_f32 v{r01}, v{r01}, v{r45}')
        a(f'v_add_f32_dpp v{r01}, v{r01}, v{r01} quad_perm:[1,0,3,2] row_mask:0xf bank_mask:0xf')
        a(f'v_add_f32_dpp v{r01}, v{r01}, v{r01} quad_perm:[2,3,0,1] row_mask:0xf bank_mask:0xf')
        a(f's_mov_b32 exec_lo, 0x11111111\ns_mov_b32 exec_hi, 0x1111\nds_add_f32 v13, v{r01} offset:{off}\ns_mov_b64 exec, -1')

    stamp(1)
    def silu():
        unpack(18, 19, 17)
        a(f's_mov_b32 s6, {f2u(-LOG2E)}')
        a('v_mul_f32 v20, s6, v18\nv_mul_f32 v21, s6, v19\nv_exp_f32 v20, v20\nv_exp_f32 v21, v21')
        a('v_add_f32 v20, 1.0, v20\nv_add_f32 v21, 1.0, v21\nv_rcp_f32 v20, v20\nv_rcp_f32 v21, v21')
        a('v_mul_f32 v18, v18, v20\nv_mul_f32 v19, v19, v21\nv_cvt_pk_bf16_f32 v18, v18, v19')
        a(f'ds_write_b32 v7, v18 offset:{ACTC-ACT}')
        unpack(14, 15, 16)
    a('s_cmp_eq_u32 s5, 0\ns_cbranch_scc1 L_tail')
    mloads = [f'buffer_load_dwordx4 v[{AT+4*k}:{AT+4*k+3}], v28, s[16:19], s{60+k} offen sc1' for k in range(4)]
    for k in range(4): a(f's_mov_b32 s{60+k}, {MODA + 8192*k}')
    for x in mloads: a(x)
    a('s_waitcnt vmcnt(12)')
    stamp(2)
    silu()
    a('v_add_f32 v18, v14, v15\nv_mul_f32 v19, v14, v14\nv_fmac_f32 v19, v15, v15')
    a('s_waitcnt lgkmcnt(0)\ns_barrier')
    red6([18, 19, 18, 19, 18, 19], STAT2 - STAT, (24, 25, 26, 27))
    tr_u1(F0, R0)
    a('s_waitcnt lgkmcnt(0)\ns_barrier')
    stamp(3)
    a('s_lshl_b32 s24, s3, 7\ns_add_u32 s24, s24, 2048')
    if cfg.apre: dma_u1('s54', 's55', 512*6144, 6144, 's24', R0, i1=cfg.apre)
    a(f'v_bfe_u32 v10, v1, 2, 1\nv_lshlrev_b32 v10, 5, v10\nv_add_u32 v10, {STAT2}, v10')
    a('ds_read_b64 v[18:19], v10\ns_waitcnt lgkmcnt(0)')
    a(f's_mov_b32 s6, {f2u(1/512)}\ns_mov_b32 s7, {f2u(1e-5)}')
    a('v_mul_f32 v18, s6, v18\nv_mul_f32 v19, s6, v19\nv_fma_f32 v19, -v18, v18, v19\nv_add_f32 v19, s7, v19\nv_rsq_f32 v19, v19')
    a('v_sub_f32 v20, v14, v18\nv_sub_f32 v21, v15, v18\nv_mul_f32 v20, v20, v19\nv_mul_f32 v21, v21, v19')
    a('v_bfe_u32 v30, v1, 1, 2\nv_lshlrev_b32 v30, 3, v30\nv_bfe_u32 v11, v1, 3, 1\nv_lshl_add_u32 v30, v11, 9, v30\nv_bfe_u32 v11, v1, 4, 1\nv_lshl_add_u32 v30, v11, 8, v30')
    a(f's_lshl_b32 s6, s4, 5\ns_add_u32 s6, s6, {X1}\nv_add_u32 v30, s6, v30')
    a(f'v_lshlrev_b32 v31, 4, v1\nv_add_u32 v29, {X1}, v31\nv_lshrrev_b32 v11, 5, v1\nv_mul_u32_u24 v11, 1536, v11\nv_add_u32 v31, v31, v11')
    vpoll(mloads, range(AT+1, AT+16, 2), 22, first_issued=True, tags=True, sleep=cfg.slp, first_cnt=cfg.apre)
    stamp(4)
    a(f'v_add_f32 v22, v{AT}, v{AT+8}\nv_add_f32 v23, v{AT+2}, v{AT+10}\nv_add_f32 v24, v{AT+4}, v{AT+12}\nv_add_f32 v25, v{AT+6}, v{AT+14}')
    a('v_add_f32 v24, 1.0, v24\nv_add_f32 v25, 1.0, v25\nv_fma_f32 v20, v20, v24, v22\nv_fma_f32 v21, v21, v25, v23')
    a('v_cvt_pk_bf16_f32 v20, v20, v21\nds_write_b32 v7, v20\ns_waitcnt lgkmcnt(0)\ns_barrier')
    stamp(5)
    tr_u1(F1, R1)
    gemv([F0, F1], Ds=[DD, 24])
    a(f'v_add_f32_dpp v{Z}, v{DD+2}, v{DD} row_ror:8 row_mask:0x1 bank_mask:0x3')
    a(f'v_add_f32_dpp v{Z}, v{DD+1}, v{DD+3} row_ror:8 row_mask:0x1 bank_mask:0xc')
    a(f'v_add_f32_dpp v{Z}, v26, v24 row_ror:8 row_mask:0x2 bank_mask:0x3')
    a(f'v_add_f32_dpp v{Z}, v25, v27 row_ror:8 row_mask:0x2 bank_mask:0xc')
    a(f'v_mov_b32_dpp v{T}, v{Z} quad_perm:[1,1,3,3] row_mask:0xf bank_mask:0xf')
    a(f's_mov_b64 exec, 0x55555555')
    a(f'v_cvt_pk_bf16_f32 v{T}, v{Z}, v{T}')
    a(f'ds_write_b64 v30, v[{T}:{T+1}]\ns_mov_b64 exec, -1')
    a('s_waitcnt lgkmcnt(0)\ns_barrier')
    a('s_cmp_lg_u32 s4, 0\ns_cbranch_scc1 L_nqp')
    a(f's_lshr_b32 s6, s3, 2\ns_lshl_b32 s6, s6, 12\ns_and_b32 s7, s3, 3\ns_lshl_b32 s7, s7, 9\ns_add_u32 s6, s6, s7\ns_add_u32 s6, s6, {QO}')
    a('ds_read_b128 v[24:27], v29\ns_waitcnt lgkmcnt(0)')
    a('buffer_store_dwordx4 v[24:27], v31, s[16:19], s6 offen sc1')
    a('L_nqp:')
    stamp(6)
    dma_u1('s54', 's55', 512*6144, 6144, 's24', R0, i0=cfg.apre)
    a('s_waitcnt vmcnt(0)\ns_barrier')
    tr_u1(F0, R0)
    gemv(F0, off=ACTC-ACT); fold()
    a(f's_lshl_b32 s6, s3, 10\ns_add_u32 s6, s6, {MODB}')
    publish_tag(Z, 's6')
    stamp(7)
    if cfg.stamps:
        a('s_cmp_lg_u32 s4, 0\ns_cbranch_scc1 L_end')
        stamps_out(8, 0)
    a('s_endpgm')

    a('L_tail:')
    a(f's_waitcnt vmcnt({cfg.pre})')
    stamp(2)
    silu()
    a('s_load_dwordx8 s[52:59], s[0:1], 48')
    a('s_load_dwordx2 s[46:47], s[0:1], 96')
    a('v_bfe_u32 v11, v1, 1, 1\nv_lshlrev_b32 v10, 14, v11\nv_sub_u32 v10, v3, v10')
    a('v_mul_u32_u24 v11, 320, v11\nv_sub_u32 v11, v4, v11\ns_and_b32 s6, s3, 1\ns_mul_i32 s6, s6, 576\nv_add_u32 v11, s6, v11')
    a('s_waitcnt lgkmcnt(0)\ns_barrier')
    tr_u1(F0, R0, 4, 'v10')
    gemv(F0, 'v11', off=ACTC-ACT, steps=4); fold()
    a('s_and_b32 s6, s3, 1\ns_lshl_b32 s6, s6, 14\ns_lshr_b32 s7, s3, 1\ns_lshl_b32 s7, s7, 10\ns_add_u32 s6, s6, s7')
    publish_tag(Z, 's6')
    stamp(3)
    dma_w(8 + cfg.pre, 16, setup=False)
    a('s_barrier')
    dma_w(0, 8, setup=False)
    a('v_lshrrev_b32 v10, 4, v1\nv_bfe_u32 v11, v1, 2, 2\nv_lshl_add_u32 v10, v10, 3, v11\nv_lshlrev_b32 v10, 9, v10')
    a('v_and_b32 v11, 3, v1\nv_lshl_add_u32 v10, v11, 3, v10')
    a('v_bfe_u32 v11, v1, 2, 3\nv_lshlrev_b32 v11, 5, v11\ns_lshl_b32 s6, s4, 6\nv_xor_b32 v11, s6, v11')
    a('v_add_u32 v22, v10, v11\nv_xor_b32 v11, 32, v11\nv_add_u32 v30, v10, v11')
    def tr_w(half):
        for cg, ad in ((0, 22), (1, 30)):
            if half: a(f'v_add_u32 v{10+cg}, {R1}, v{ad}')
            for s_ in range(4):
                for hh in range(2):
                    r = (F0, F1)[cg] + 4*(4*half + s_) + 2*hh
                    a(f'ds_read_b64_tr_b16 v[{r}:{r+1}], v{10+cg if half else ad} offset:{16384*s_ + 2048*hh}')
    a(f's_getreg_b32 s6, hwreg(HW_REG_XCC_ID)\ns_and_b32 s31, s6, 15\nv_mov_b32 v{T}, s31')
    a(f's_lshl_b32 s6, s3, 7\ns_add_u32 s6, s6, {XID}\nv_lshlrev_b32 v10, 3, v1')
    a('s_cmp_eq_u32 s4, 0\ns_cselect_b32 exec_lo, 0xffff, 0\ns_mov_b32 exec_hi, 0\ns_cbranch_execz L_nxid')
    a(f'buffer_store_dwordx2 v[{T}:{T+1}], v10, s[16:19], s6 offen sc1')
    a('L_nxid:')
    a('s_mov_b64 exec, -1')
    a('s_waitcnt vmcnt(8)\ns_barrier')
    stamp(4)
    tr_w(1)
    a('s_waitcnt lgkmcnt(0)\ns_barrier')
    a('s_cmp_ge_u32 s3, 28\ns_cbranch_scc1 L_nom1')
    a('s_lshl_b32 s24, s3, 7')
    dma_u1('s52', 's53', 512*3584, 3584, 's24', R1)
    stamp(5)
    a('s_waitcnt vmcnt(8)\ns_branch L_m1d')
    a('L_nom1:')
    a('s_waitcnt vmcnt(0)')
    a('L_m1d:')
    a('s_barrier')
    tr_w(0)
    a('s_waitcnt lgkmcnt(0)\ns_barrier')
    stamp(7)
    a('s_cmp_ge_u32 s3, 28\ns_cbranch_scc1 L_nom2')
    srd(20, 's56', 's57', 1792*1024)
    a('s_and_b32 s6, s4, 1\ns_lshl_b32 s6, s6, 7\nv_lshlrev_b32 v2, 4, v1\nv_xor_b32 v2, s6, v2')
    a('v_xor_b32 v10, 32, v2\nv_xor_b32 v11, 64, v2\nv_xor_b32 v12, 96, v2')
    a(f's_lshl_b32 s27, s3, 16\ns_lshl_b32 s28, s4, 13\ns_add_u32 s27, s27, s28')
    for hh in range(2):
        a('s_mov_b32 m0, s28')
        for i in range(4): a(f'buffer_load_dwordx4 v{(2,10,11,12)[i]}, s[20:23], s27 offen offset:{1024*i} {cfg.NT} lds')
        if hh == 0: a('s_add_u32 s27, s27, 4096\ns_add_u32 s28, s28, 4096')
    stamp(6)
    if cfg.touch:
        a(f's_lshl_b32 s6, s3, 12\ns_add_u32 s6, s6, {MOUT}\nbuffer_load_dwordx2 v[{DD}:{DD+1}], v5, s[16:19], s6 offen sc1')
    a('v_and_b32 v10, 7, v1\nv_lshlrev_b32 v10, 1, v10')
    a('s_and_b32 s6, s3, 15\ns_lshl_b32 s6, s6, 5\ns_lshl_b32 s7, s4, 2\ns_add_u32 s6, s6, s7')
    a('v_and_b32 v11, 1, v1\nv_lshl_add_u32 v11, v11, 1, s6\nv_bfe_u32 v12, v1, 4, 1\nv_add_u32 v23, v11, v12')
    a('v_lshlrev_b32 v11, 1, v23\nglobal_load_ushort v24, v11, s[58:59]')
    a('s_lshl_b32 s6, s3, 7\ns_lshl_b32 s7, s4, 4\ns_add_u32 s6, s6, s7')
    a('v_add_u32 v11, s6, v10\nglobal_load_ushort v25, v11, s[54:55]')
    a('L_nom2:')
    if cfg.touch:
        a(f's_lshl_b32 s6, s3, 10\ns_add_u32 s6, s6, {WOUT}\nv_lshlrev_b32 v10, 4, v1\nbuffer_load_dword v{DD+2}, v10, s[16:19], s6 offen sc1')
    a(f'v_and_b32 v10, 31, v1\nv_lshlrev_b32 v10, 7, v10\ns_mov_b32 s6, {XID}')
    vpoll([f'buffer_load_dwordx2 v[{AT}:{AT+1}], v10, s[16:19], s6 offen sc1'], [AT+1], None, sleep=cfg.slp, tags=True)
    a(f'v_cmp_ne_u32 vcc, s31, v{AT}\ns_cmp_eq_u64 vcc, 0\ns_cselect_b32 s32, 1, 0')
    a('s_cmp_ge_u32 s3, 28\ns_cbranch_scc1 L_wst')
    a('s_barrier')
    tr_u1(F2, R1)
    a('v_lshrrev_b32 v11, 3, v23\nv_lshlrev_b32 v11, 7, v11\nv_and_b32 v12, 7, v23\nv_lshl_add_u32 v11, v12, 3, v11\nv_bfe_u32 v12, v1, 3, 1\nv_lshl_add_u32 v11, v12, 6, v11')
    a(f's_mov_b32 s63, {MODB + 24*1024}')
    for k in range(3): a(f's_mov_b32 s{60+k}, {MODB + 8192*k}')
    a('v_lshlrev_b32 v24, 16, v24\nv_lshlrev_b32 v25, 16, v25')
    a(f'v_mov_b32 v{AT+15}, 0x3f803f80\nds_write_b32 v7, v{AT+15} offset:{ACTM-ACT+3*TS}')
    stamp(1)
    vpoll([f'buffer_load_dwordx4 v[{AT+4*k}:{AT+4*k+3}], v28, s[16:19], s{60+k} offen sc1' for k in range(3)] +
          [f'buffer_load_dwordx2 v[{AT+12}:{AT+13}], v11, s[16:19], s63 offen sc1'], range(AT+1, AT+14, 2), AT+14, sleep=cfg.slp, tags=True)
    stamp(8)
    a(f'v_mov_b32 v23, v{AT+12}\nv_mov_b32 v16, v{AT}\nv_mov_b32 v17, v{AT+2}')
    a(f'v_add_f32 v18, 1.0, v{AT+8}\nv_add_f32 v19, 1.0, v{AT+10}\nv_cvt_pk_bf16_f32 v{AT+1}, v{AT+4}, v{AT+6}\nv_cvt_pk_bf16_f32 v{AT+3}, v18, v19')
    unpack(18, 19, AT+3); unpack(20, 21, AT+1)
    a(f'ds_write_b32 v7, v{AT+3} offset:{ACTM-ACT+TS}\nds_write_b32 v7, v{AT+1} offset:{ACTM-ACT+2*TS}')
    t = AT + 16
    a(f'v_add_f32 v{t}, v18, v19\nv_mul_f32 v{t+1}, v18, v18\nv_fmac_f32 v{t+1}, v19, v19')
    a(f'v_mul_f32 v{t+2}, v18, v20\nv_fmac_f32 v{t+2}, v19, v21\nv_add_f32 v{t+3}, v20, v21')
    a(f'v_mul_f32 v{t+4}, v20, v20\nv_fmac_f32 v{t+4}, v21, v21')
    red6([t, t+1, t+2, t+3, t+4, t+4], STAT3 - STAT, (t+6, t+7, t+8, t+9))
    a(f'v_bfe_u32 v10, v1, 2, 2\nv_mul_u32_u24 v10, {TS}, v10\nv_add_u32 v10, v10, v4')
    a('s_waitcnt lgkmcnt(0)\ns_barrier')
    gemv(F2, 'v10', off=ACTM-ACT); fold()
    a(f'v_mov_b32 v26, v{Z}\nv_permlane16_swap_b32 v{Z}, v26')
    a(f'v_mov_b32 v27, v{Z}\nv_mov_b32 v28, v26\nv_permlane32_swap_b32 v{Z}, v27\nv_permlane32_swap_b32 v26, v28')
    a('L_wst:')
    a('s_lshr_b32 s6, s4, 2\ns_lshl_b32 s24, s6, 3\ns_lshr_b32 s7, s26, 1\ns_add_u32 s24, s24, s7')
    a('s_and_b32 s7, s26, 1\ns_lshl_b32 s7, s7, 1\ns_bfe_u32 s28, s4, 0x10001\ns_add_u32 s7, s7, s28')
    a(f's_lshl_b32 s27, s24, 11\ns_lshl_b32 s29, s7, 3\ns_add_u32 s27, s27, s29\ns_add_u32 s27, s27, {LSE}')
    a(f's_lshl_b32 s60, s24, 14\ns_lshl_b32 s29, s7, 8\ns_add_u32 s60, s60, s29\ns_and_b32 s29, s4, 1\ns_lshl_b32 s29, s29, 7\ns_add_u32 s60, s60, s29\ns_add_u32 s60, s60, {OP}')
    a('s_add_u32 s61, s60, 4096')
    a(f's_mul_i32 s6, s6, 1152\ns_and_b32 s29, s4, 3\ns_lshl_b32 s29, s29, 6\ns_add_u32 s6, s6, s29\ns_add_u32 s6, s6, {ACT}')
    a('v_and_b32 v31, 1, v1\nv_mul_u32_u24 v31, 576, v31\nv_bfe_u32 v10, v1, 1, 4\nv_lshl_add_u32 v31, v10, 2, v31\nv_add_u32 v31, s6, v31')
    a('s_mov_b32 s62, 6144\nv_and_b32 v2, 31, v1\nv_lshlrev_b32 v2, 2, v2\nv_lshrrev_b32 v10, 5, v1\nv_mad_u32_u24 v2, v10, s62, v2')
    a(f's_lshl_b32 s29, s3, 10\ns_add_u32 s29, s29, {WOUT}')
    a('v_and_b32 v11, 2, v1\nv_cmp_eq_u32 vcc, 0, v11\nv_mov_b32 v11, 0xeeee\nv_mov_b32 v22, 0x4444\nv_cndmask_b32 v22, v11, v22, vcc')
    for r in range(8): a(f'v_mov_b32 v{DD+r}, 0')
    a('v_bfe_u32 v8, v1, 1, 2\nv_lshlrev_b32 v8, 4, v8\nv_bfe_u32 v11, v1, 4, 1\nv_lshl_add_u32 v8, v11, 6, v8\nv_bfe_u32 v11, v1, 3, 1\nv_lshl_add_u32 v8, v11, 7, v8')
    a('v_lshl_add_u32 v8, v10, 2, v8\ns_lshr_b32 s6, s4, 1\ns_lshl_b32 s6, s6, 8\ns_and_b32 s7, s4, 1\ns_lshl_b32 s7, s7, 3\ns_add_u32 s6, s6, s7\nv_add_u32 v8, s6, v8')
    a(f'v_lshlrev_b32 v10, 7, v1\nv_mov_b32 v{AT}, 0xff800000')
    stamp(9)
    a(f's_mov_b64 exec, {(1 << NCH) - 1:#x}')
    vpoll([f'buffer_load_dwordx2 v[{AT}:{AT+1}], v10, s[16:19], s27 offen sc1'], [AT+1], None, sleep=cfg.slp, tags=True)
    a('s_mov_b64 exec, -1')
    a(f'v_mov_b32 v{AT+1}, v{AT}')
    for r in (1, 2, 4, 8): a(f'v_max_f32_dpp v{AT+1}, v{AT+1}, v{AT+1} row_ror:{r} row_mask:0xf bank_mask:0xf')
    a(f'v_sub_f32 v{AT}, v{AT}, v{AT+1}\nv_exp_f32 v{AT}, v{AT}\nv_mov_b32 v{AT+1}, v{AT}')
    for r in (1, 2, 4, 8): a(f'v_add_f32_dpp v{AT+1}, v{AT+1}, v{AT+1} row_ror:{r} row_mask:0xf bank_mask:0xf')
    a(f'v_rcp_f32 v{AT+1}, v{AT+1}\nv_mul_f32 v{AT}, v{AT}, v{AT+1}')
    a('v_lshrrev_b32 v10, 5, v1\nv_mul_u32_u24 v10, 24, v10')
    for i in range(6):
        a(f'ds_bpermute_b32 v{AT+24+i}, v10, v{AT} offset:{4*i}')
    a('s_waitcnt lgkmcnt(0)')
    wl = [f'buffer_load_dword v{AT+c}, v2, s[16:19], s{60+(c>>2)} offen offset:{1024*(c&3)} sc1' for c in range(6)]
    if cfg.mp & 1: mpoll([(wl[c], [AT+c]) for c in range(6)], AT+12)
    else: vpoll(wl, [AT+c for c in range(6)], AT+12)
    stamp(10)
    acc = AT + 20
    for c in range(6):
        tq = AT + 8 + 2*c
        unpack(tq, tq+1, AT+c)
    for c in range(6):
        tq = AT + 8 + 2*c; wp = AT + 24 + (c & ~1)
        mod = 'op_sel_hi:[1,0,1]' if (c & 1) == 0 else 'op_sel:[0,1,0] op_sel_hi:[1,1,1]'
        mod2 = 'op_sel_hi:[1,0]' if (c & 1) == 0 else 'op_sel:[0,1] op_sel_hi:[1,1]'
        ac = acc + 2*(c & 1)
        if c < 2: a(f'v_pk_mul_f32 v[{ac}:{ac+1}], v[{tq}:{tq+1}], v[{wp}:{wp+1}] {mod2}')
        else: a(f'v_pk_fma_f32 v[{ac}:{ac+1}], v[{tq}:{tq+1}], v[{wp}:{wp+1}], v[{ac}:{ac+1}] {mod}')
    a(f'v_pk_add_f32 v[{acc}:{acc+1}], v[{acc}:{acc+1}], v[{acc+2}:{acc+3}]')
    a(f'v_permlane32_swap_b32 v{acc}, v{acc+1}')
    a(f'v_add_f32 v{acc}, v{acc}, v{acc+1}')
    a(f'v_mov_b32 v{acc+1}, v{acc}\nv_permlane32_swap_b32 v{acc}, v{acc+1}')
    a(f's_mov_b64 exec, 0xffffffff\nv_cvt_pk_bf16_f32 v{acc}, v{acc}, v{acc+1}\nds_write_b32 v31, v{acc}\ns_mov_b64 exec, -1')
    fst(7)
    a('s_waitcnt lgkmcnt(0)\ns_barrier')
    fst(8)
    sgemv([F0, F1], [DD, Z], 'v4', 'v22')
    a(f'v_add_f32_dpp v10, v{DD}, v{DD+2} quad_perm:[0,1,2,3] row_mask:0x1 bank_mask:0xf')
    a(f'v_add_f32_dpp v10, v{DD+1}, v{DD+3} quad_perm:[0,1,2,3] row_mask:0x2 bank_mask:0xf')
    a(f'v_add_f32_dpp v10, v{Z}, v{Z+2} quad_perm:[0,1,2,3] row_mask:0x4 bank_mask:0xf')
    a(f'v_add_f32_dpp v10, v{Z+1}, v{Z+3} quad_perm:[0,1,2,3] row_mask:0x8 bank_mask:0xf')
    a('s_cmp_lg_u32 s32, 0')
    a('v_mov_b32_dpp v11, v10 quad_perm:[1,1,3,3] row_mask:0xf bank_mask:0xf')
    a('s_mov_b32 exec_lo, 0x55555555\ns_mov_b32 exec_hi, 0x55555555')
    a('v_cvt_pk_bf16_f32 v11, v10, v11')
    store2('buffer_store_dword v11, v8, s[16:19], s29 offen')
    a('s_mov_b64 exec, -1')
    stamp(11)
    a('s_cmp_ge_u32 s3, 28\ns_cbranch_scc1 L_hdone')

    a('v_lshrrev_b32 v10, 4, v1\nv_bfe_u32 v11, v1, 2, 2\nv_lshl_add_u32 v10, v10, 3, v11\nv_lshlrev_b32 v10, 10, v10')
    a(f'v_and_b32 v11, 3, v1\nv_lshl_add_u32 v10, v11, 3, v10')
    a('v_bfe_u32 v11, v1, 2, 3\nv_lshlrev_b32 v11, 5, v11\ns_lshl_b32 s6, s4, 7\nv_xor_b32 v11, s6, v11')
    for cg in range(4):
        a(f'v_xor_b32 v12, {32*cg}, v11\nv_add_u32 v{60+cg}, v10, v12')
    for cg in range(4):
        for s in range(2):
            for hh in range(2):
                r = F1 + (cg*2 + s)*4 + 2*hh
                a(f'ds_read_b64_tr_b16 v[{r}:{r+1}], v{60+cg} offset:{32768*s + 4096*hh}')
    a(f's_lshl_b32 s60, s4, 8\ns_add_u32 s60, s60, {WOUT}\ns_add_u32 s61, s60, 4096')
    a('v_and_b32 v59, 15, v1\nv_lshlrev_b32 v59, 4, v59\nv_lshrrev_b32 v58, 4, v1\nv_lshl_add_u32 v59, v58, 13, v59')
    wloads = [f'buffer_load_dwordx4 v[{AT+4*k}:{AT+4*k+3}], v59, s[16:19], s{60+(k>>1)} offen offset:{2048*(k&1)} sc1' for k in range(4)]
    for x in wloads: a(x)
    a(f'v_bfe_u32 v10, v1, 3, 1\nv_lshlrev_b32 v40, 5, v10\nv_add_u32 v40, {STAT}, v40')
    a(f'ds_read_b128 v[68:71], v40 offset:{STAT3-STAT}\nds_read_b32 v30, v40 offset:{STAT3-STAT+16}')
    a('v_bfe_u32 v11, v1, 1, 1\nv_lshl_add_u32 v41, v10, 1, v11\nv_lshlrev_b32 v41, 6, v41\nv_and_b32 v12, 4, v1\nv_add_u32 v41, v41, v12')
    a(f'v_and_b32 v12, 1, v1\nv_lshl_add_u32 v41, v12, 1, v41\ns_lshl_b32 s6, s4, 3\ns_add_u32 s6, s6, {HID}\nv_add_u32 v41, s6, v41')
    a(f'v_lshl_add_u32 v42, v12, 1, v11\nv_lshlrev_b32 v42, 6, v42\nv_and_b32 v45, 48, v1\nv_add_u32 v42, v42, v45\nv_add_u32 v42, {HID}, v42')
    a(f'v_and_b32 v43, 7, v1\nv_mul_u32_u24 v43, 288, v43\nv_add_u32 v43, v43, v45\nv_add_u32 v43, {AS}, v43')
    a('v_bfe_u32 v46, v1, 2, 1\nv_lshl_add_u32 v46, v12, 2, v46\nv_mul_u32_u24 v46, 288, v46\nv_lshl_add_u32 v46, v11, 2, v46\nv_lshrrev_b32 v11, 3, v1\nv_lshl_add_u32 v46, v11, 3, v46')
    a(f's_lshr_b32 s6, s4, 2\ns_mul_i32 s6, s6, 576\ns_and_b32 s7, s4, 3\ns_lshl_b32 s7, s7, 6\ns_add_u32 s6, s6, s7\ns_add_u32 s6, s6, {AS}\nv_add_u32 v46, s6, v46')
    a('v_and_b32 v11, 4, v1\nv_cmp_eq_u32 vcc, 0, v11\nv_mov_b32 v11, 0xeeee\nv_mov_b32 v47, 0x4444\nv_cndmask_b32 v47, v11, v47, vcc')
    for r in range(4): a(f'v_mov_b32 v{DD+r}, 0')
    a('s_and_b32 s6, s3, 15\ns_lshl_b32 s6, s6, 5\ns_lshl_b32 s7, s4, 2\ns_add_u32 s6, s6, s7')
    a('v_and_b32 v11, 1, v1\nv_lshl_add_u32 v11, v11, 1, s6')
    a('v_lshrrev_b32 v12, 1, v1\nv_lshlrev_b32 v44, 12, v12\nv_lshl_add_u32 v44, v11, 3, v44')
    a('v_bfe_u32 v12, v1, 4, 1\nv_add_u32 v11, v11, v12')
    a(f'v_lshlrev_b32 v48, 11, v10\nv_lshl_add_u32 v48, v11, 2, v48\nv_add_u32 v48, {X1}, v48')
    a('v_lshlrev_b32 v49, 10, v10\nv_lshl_add_u32 v49, v11, 1, v49')
    a(f's_add_u32 s20, s14, {MOUT}\ns_addc_u32 s21, s15, 0\ns_mov_b32 s22, {28*4096}\ns_mov_b32 s23, 0x20000')
    a(f's_lshl_b32 s24, s3, 12')
    a(f's_mov_b32 s40, {f2u(1/512)}\ns_mov_b32 s41, {f2u(1e-5)}\ns_mov_b32 s42, {f2u(0.044715)}\ns_mov_b32 s43, {f2u(-2*math.sqrt(2/math.pi)*LOG2E)}')
    a('v_and_b32 v50, 1, v1\nv_lshlrev_b32 v50, 4, v50\nv_mov_b32 v51, 0x3f80\nv_lshlrev_b32 v50, v50, v51\nv_bfe_u32 v51, v1, 2, 2')
    for i in range(4): a(f'v_cmp_eq_u32 vcc, {i}, v51\nv_cndmask_b32 v{64+i}, 0, v50, vcc')
    a('s_waitcnt lgkmcnt(0)')
    a(f's_mov_b32 s44, {f2u(-2/512)}\ns_mov_b32 s45, {f2u(2/512)}\nv_mov_b32 v61, s41')
    a('v_mul_f32 v68, s40, v68\nv_mul_f32 v69, s40, v69\nv_mul_f32 v70, s45, v70\nv_mul_f32 v71, s40, v71\nv_fma_f32 v30, v30, s40, v61')
    if cfg.mp & 2: mpoll([(wloads[k], range(AT+4*k, AT+4*k+4)) for k in range(4)], AT+20, first_issued=True)
    else: vpoll(wloads, [AT+k for k in range(16)], AT+20, first_issued=True)
    stamp(12)
    V = AT + 16
    for k in range(4):
        c0 = '0' if k == 0 else f'v[{V}:{V+3}]'
        a(f'v_mfma_f32_16x16x32_bf16 v[{V}:{V+3}], v[64:67], v[{AT+4*k}:{AT+4*k+3}], {c0}')
    s0, s1 = V, V+1
    x0, x1, a0, a1 = AT+12, AT+13, AT+14, AT+15
    a(f'v_fma_f32 v{x0}, v16, v{s0}, v14\nv_fma_f32 v{x1}, v17, v{s1}, v15')
    a(f'v_mul_f32 v{a0}, v{x0}, v18\nv_mul_f32 v{a1}, v{x1}, v19')
    a(f'v_cvt_pk_bf16_f32 v{AT}, v{a0}, v{a1}\nds_write_b32 v46, v{AT}\nds_write_b64 v9, v[{x0}:{x1}]')
    fst(1)
    t = AT + 20
    a(f'v_add_f32 v{t}, v{x0}, v{x1}\nv_mul_f32 v{t+1}, v{x0}, v{x0}\nv_add_f32 v{t+2}, v{a0}, v{a1}\nv_mul_f32 v{t+3}, v{a0}, v{a0}')
    a(f'v_mul_f32 v{t+4}, v{a0}, v18\nv_mul_f32 v{t+5}, v{a0}, v20')
    a(f'v_fmac_f32 v{t+1}, v{x1}, v{x1}\nv_fmac_f32 v{t+3}, v{a1}, v{a1}\nv_fmac_f32 v{t+4}, v{a1}, v19\nv_fmac_f32 v{t+5}, v{a1}, v21')
    red6([t, t+1, t+2, t+3, t+4, t+5], 0, (t+6, t+7, t+8, t+9))
    fst(2)
    a('s_waitcnt lgkmcnt(0)')
    fst(9)
    a('s_barrier')
    fst(3)
    a('ds_read_b128 v[52:55], v40\nds_read_b64 v[56:57], v40 offset:16')
    fill = [
        'v_mul_f32 v52, s40, v52',
        'v_fma_f32 v53, v53, s40, v61',
        'v_mul_f32 v56, s44, v56',
        'v_fma_f32 v53, -v52, v52, v53',
        'v_mul_f32 v54, s40, v54',
        'v_fma_f32 v56, v52, v69, v56',
        'v_rsq_f32 v53, v53',
        'v_mul_f32 v55, s40, v55',
        'v_mul_f32 v57, s45, v57',
        'v_fma_f32 v54, -v52, v68, v54',
        'v_fma_f32 v55, v52, v56, v55',
        'v_fma_f32 v57, -v52, v70, v57',
        'v_fma_f32 v55, v53, v55, v57',
        'v_fma_f32 v54, v53, v54, v71',
        'v_mul_f32 v52, v52, v53',
        'v_fma_f32 v55, v53, v55, v30',
        'v_fma_f32 v56, -v52, v26, v27',
        'v_fma_f32 v55, -v54, v54, v55',
        'v_fma_f32 v56, -v54, v28, v56',
        'v_rsq_f32 v55, v55',
    ]
    zf = [f'v_mov_b32 v{AT+16+r}, 0' for r in range(16)]
    sgemv([F2], [DD], 'v43', 'v47', fill=fill + zf[:3]); fold()
    a(f'v_mov_b32 v{T}, v{Z}\n{zf[3]}\n{zf[4]}\nv_permlane16_swap_b32 v{Z}, v{T}\nv_add_f32 v{Z}, v{Z}, v{T}')
    fst(4)
    ge = [f'v_fma_f32 v{Z}, v{Z}, v53, v56', f'v_fma_f32 v{Z}, v{Z}, v55, v25', f'v_mul_f32 v{T}, v{Z}, v{Z}', f'v_mul_f32 v{T+1}, s43, v{Z}',
          f'v_fma_f32 v{T}, v{T}, s42, 1.0', f'v_mul_f32 v{T}, v{T}, v{T+1}', f'v_exp_f32 v{T}, v{T}', f'v_add_f32 v{T}, 1.0, v{T}',
          f'v_rcp_f32 v{T}, v{T}', f'v_mul_f32 v{T}, v{T}, v{Z}', f'v_cvt_pk_bf16_f32 v{T}, v{T}, v{T}']
    for x, z_ in zip(ge, zf[5:]): a(x + '\n' + z_)
    a(f's_mov_b64 exec, 0xffff\nds_write_b16 v41, v{T}\ns_mov_b64 exec, -1')
    fst(5)
    a('s_waitcnt lgkmcnt(0)\ns_barrier')
    fst(6)
    a(f'ds_read_b128 v[{AT}:{AT+3}], v42')
    a(f'ds_read_b32 v52, v48')
    a(f's_waitcnt lgkmcnt(1)')
    for cg in range(4):
        ac = AT + 16 + 4*cg; fr = F1 + cg*8
        a(f'v_smfmac_f32_16x16x64_bf16 v[{ac}:{ac+3}], v[{AT}:{AT+3}], v[{fr}:{fr+7}], v22')
    y = AT + 8
    a('s_cmp_lg_u32 s32, 0')
    for cg in range(4):
        ac = AT + 16 + 4*cg
        for r in range(2): a(f'v_add_f32_dpp v{y+r}, v{ac+r}, v{ac+2+r} quad_perm:[0,1,2,3] row_mask:{1 << cg:#x} bank_mask:0xf')
    store2(f'buffer_store_dwordx2 v[{y}:{y+1}], v5, s[20:23], s24 offen')
    stamp(13)
    a('s_cmp_ge_u32 s3, 16\ns_cbranch_scc1 L_hdone')
    fl = [f'buffer_load_dwordx4 v[{AT}:{AT+3}], v44, s[20:23], 0 offen sc1']
    a(fl[0])
    srd(24, 's46', 's47', 2048)
    a('s_waitcnt lgkmcnt(0)\nv_fma_f32 v52, v23, v24, v52')
    if cfg.mp & 4: mpoll([(fl[0], range(AT, AT+4))], AT+8, first_issued=True)
    else: vpoll(fl, [AT+k for k in range(4)], AT+8, first_issued=True)
    stamp(14)
    a(f'v_add_f32_dpp v{Z}, v{AT}, v{AT} row_ror:8 row_mask:0xf bank_mask:0x3')
    a(f'v_add_f32_dpp v{T}, v{AT+2}, v{AT+2} row_ror:8 row_mask:0xf bank_mask:0x3')
    a(f'v_add_f32_dpp v{Z}, v{AT+1}, v{AT+1} row_ror:8 row_mask:0xf bank_mask:0xc')
    a(f'v_add_f32_dpp v{T}, v{AT+3}, v{AT+3} row_ror:8 row_mask:0xf bank_mask:0xc')
    a(f'v_permlane16_swap_b32 v{Z}, v{T}\nv_add_f32 v{Z}, v{Z}, v{T}')
    a(f'v_mov_b32 v{T}, v{Z}\nv_permlane32_swap_b32 v{Z}, v{T}\nv_add_f32 v{Z}, v{Z}, v{T}')
    a(f'v_add_f32_dpp v{Z}, v{Z}, v{Z} quad_perm:[2,3,0,1] row_mask:0xf bank_mask:0xf')
    a(f'v_add_f32_dpp v{Z}, v{Z}, v{Z} row_shl:4 row_mask:0xf bank_mask:0x5')
    a(f'v_fma_f32 v{Z}, v23, v{Z}, v52')
    if cfg.diag is not None:
        a('s_or_b32 s6, s3, s4\ns_cmp_lg_u32 s6, 0\ns_cbranch_scc1 L_ndiag')
        a('s_memrealtime s[94:95]\ns_waitcnt lgkmcnt(0)\ns_sub_u32 s6, s94, s64')
        a(f's_cmp_lt_u32 s6, {cfg.T0}\ns_cbranch_scc1 L_ndiag\ns_cmp_eq_u32 s96, s97\ns_cbranch_scc1 L_ndiag\ns_cmp_eq_u32 s32, {cfg.gate}\ns_cbranch_scc1 L_ndiag')
        a(f's_sub_u32 s6, s{64+2*cfg.diag}, s64\nv_cvt_f32_u32 v10, s6\ns_mov_b64 exec, 1\nv_add_f32 v{Z}, v{Z}, v10\ns_mov_b64 exec, -1')
        a('L_ndiag:')
    a(f's_mov_b64 exec, 0x03030303')
    a(f'v_cvt_pk_bf16_f32 v{T}, v{Z}, v{Z}')
    a(f'buffer_store_short v{T}, v49, s[24:27], 0 offen')
    a('s_or_b32 s6, s3, s4\ns_cmp_lg_u32 s6, 0\ns_cbranch_scc1 L_noep')
    a(f's_mov_b64 exec, 1\nv_mov_b32 v10, {EPO}\nv_mov_b32 v11, s33\nbuffer_store_dword v11, v10, s[16:19], 0 offen')
    a('L_noep:')
    a('s_mov_b64 exec, -1')
    stamp(15)
    a('L_hdone:')
    if cfg.stamps:
        a(f's_cmp_lg_u32 s4, {cfg.sw}\ns_cbranch_scc1 L_end')
        stamps_out(16, 0)
        a('s_cmp_lg_u32 s2, 0\ns_cbranch_scc1 L_end')
        for n, i in enumerate((1, 4, 7, 8, 9, 10, 11, 12, 13, 14, 15)):
            a(f's_sub_u32 s60, s{64+2*i}, s64\nv_mov_b32 v4, s60\nglobal_store_dword v2, v4, s[12:13] offset:{16+4*n}')
        a('v_mov_b32 v4, s32\nglobal_store_dword v2, v4, s[12:13]')
        a('s_waitcnt vmcnt(0)')
    a('L_end:')
    a('s_endpgm')
    return wrap(a.finalize(), 256, 768, LDS_TOTAL, 168, sgpr=100)

if __name__ == '__main__':
    out = sys.argv[1]
    for o in sys.argv[2:]:
        k, v = o.split('=')
        setattr(cfg, k, eval(v))
    open(out, 'w').write(gen())
```

```python
import sys, math, struct
from asmlib import *
from gen_common import *

class Cfg:
    stamps = False
    NT = 'nt'
    warm = True
    prio = True
    slp = 2
    qslp = 4
    thS = 63
    thV = 63
    pre = 3
    touch = True
    diag = None
    fine = False
    sw = 0
    mp = 2
    enc = 0
    nth = 23
    T0 = 1900
    gate = 0
    apre = 0
    fast = True
cfg = Cfg()

MODA=0; MODB=0x8000; QO=0x10000; XID=0x18000; EPO=0x1A800; WOUT=0x1C000; MOUT=0x24000; OP=0x40000; STMP=0x80000; LSE=0x90000; WS_SZ=0x100000
NCH = 12
KW=36864; PREG=147456; ZERO=153600; ST=154176; QL=154368; QF=155392; SCR=0; LDS_TOTAL=155648
R0=0; R1=65536; ACT=131072; ACTC=133376; ACTM=135680; TS=2336; HID=145024; STAT=145408; STAT2=145472; STAT3=145536; X1=145664; AS=149760
LIMIT = 200000
LOG2E = 1.4426950408889634
def f2u(x): return '0x%08x' % struct.unpack('<I', struct.pack('<f', x))[0]

def gen():
    a = Asm()
    uid = [0]
    def lab(p):
        uid[0] += 1; return f'L_{p}_{uid[0]}'
    def stamp(i):
        if cfg.stamps: a(f's_memrealtime s[{64+2*i}:{65+2*i}]')
    def fst(i):
        if cfg.fine: stamp(i)
    def stamps_out(n, base_slot):
        if not cfg.stamps: return
        a('s_waitcnt lgkmcnt(0)')
        a('s_mov_b64 exec, 1')
        a(f's_lshl_b32 s60, s2, 7\ns_add_u32 s60, s60, {STMP + base_slot*8}')
        a('v_mov_b32 v2, 0')
        for i in range(n):
            a(f'v_mov_b32 v4, s{64+2*i}\nv_mov_b32 v5, s{65+2*i}')
            a(f'buffer_store_dwordx2 v[4:5], v2, s[16:19], s60 offen offset:{8*i}')
        a('s_waitcnt vmcnt(0)')
    def srd(d, lo, hi, size):
        a(f's_mov_b32 s{d}, {lo}\ns_mov_b32 s{d+1}, {hi}\ns_mov_b32 s{d+2}, {size}\ns_mov_b32 s{d+3}, 0x20000')
    def epoch_load():
        a(f's_load_dword s33, s[14:15], {EPO}')
    def epoch_tag():
        a('s_mul_i32 s33, s33, 0x9E3779B1\ns_add_u32 s33, s33, 0x85EBCA6B')
    def red3(op, regs, tmp):
        rs = list(regs)
        if len(rs) == 1: return rs[0]
        first = True
        while rs:
            if first:
                if len(rs) >= 3: a(f'v_{op}3_u32 v{tmp}, v{rs[0]}, v{rs[1]}, v{rs[2]}'); rs = rs[3:]
                else: a(f'v_{op}_u32 v{tmp}, v{rs[0]}, v{rs[1]}'); rs = rs[2:]
                first = False
            elif len(rs) >= 2: a(f'v_{op}3_u32 v{tmp}, v{tmp}, v{rs[0]}, v{rs[1]}'); rs = rs[2:]
            else: a(f'v_{op}_u32 v{tmp}, v{tmp}, v{rs[0]}'); rs = rs[1:]
        return tmp
    def vpoll(loads, regs, tmp, sleep=0, first_issued=False, tags=False, dbg=None, first_cnt=0):
        l = lab('vp'); d = lab('vd'); w = lab('vw')
        a('s_mov_b32 s30, 0')
        if first_issued: a(f's_waitcnt vmcnt({first_cnt})\ns_branch {w}')
        a(f'{l}:')
        for x in loads: a(x)
        a('s_add_u32 s30, s30, 1')
        a('s_waitcnt vmcnt(0)')
        if first_issued: a(f'{w}:')
        if dbg is not None and cfg.stamps:
            p, q_, n_ = dbg
            a(f's_mov_b64 s[{64+2*p}:{65+2*p}], s[{64+2*q_}:{65+2*q_}]')
            stamp(q_); a('s_waitcnt lgkmcnt(0)')
            a(f's_add_u32 s{64+2*n_}, s64, s30\ns_mov_b32 s{65+2*n_}, s65')
        if tags:
            m = red3('max', regs, tmp)
            if len(list(regs)) > 1:
                n = red3('min', regs, tmp + 1)
                a(f'v_cmp_ne_u32 vcc, s33, v{m}\nv_cmp_ne_u32 s[34:35], s33, v{n}\ns_or_b64 vcc, vcc, s[34:35]')
            else:
                a(f'v_cmp_ne_u32 vcc, s33, v{m}')
        else:
            m = red3('max', regs, tmp)
            a(f'v_cmp_eq_u32 vcc, -1, v{m}')
        a(f's_cbranch_vccz {d}')
        if sleep: a(f's_sleep {sleep}')
        a(f's_cmp_lt_u32 s30, {LIMIT}\ns_cbranch_scc1 {l}')
        a(f'{d}:')
    def mpoll(items, tmp, first_issued=False):
        l = lab('mp'); d = lab('md')
        a('s_mov_b32 s30, 0')
        if not first_issued:
            for ld, regs in items: a(ld)
        a(f'{l}:')
        a('s_waitcnt vmcnt(0)')
        ms = []
        for k, (ld, regs) in enumerate(items):
            ms.append(red3('max', regs, tmp + k))
        for k, m in enumerate(ms):
            a(f'v_cmp_eq_u32 s[{48+2*k}:{49+2*k}], -1, v{m}')
        n = len(items)
        if n == 1:
            a('s_cmp_eq_u64 s[48:49], 0\ns_cbranch_scc1 ' + d)
        else:
            a('s_or_b64 s[34:35], s[48:49], s[50:51]')
            for k in range(2, n): a(f's_or_b64 s[34:35], s[34:35], s[{48+2*k}:{49+2*k}]')
            a(f's_cbranch_scc0 {d}')
        for k, (ld, regs) in enumerate(items):
            a(f's_mov_b64 exec, s[{48+2*k}:{49+2*k}]')
            a(ld)
        a('s_mov_b64 exec, -1')
        a(f's_add_u32 s30, s30, 1\ns_cmp_lt_u32 s30, {LIMIT}\ns_cbranch_scc1 {l}')
        a('s_waitcnt vmcnt(0)')
        a(f'{d}:')
    def dma_u1(lo, hi, size, RS, sbase, region, setup=True, i0=0, i1=8):
        if setup:
            a('v_bfe_u32 v10, v1, 4, 1\nv_and_b32 v12, 7, v1\nv_xor_b32 v10, v10, v12')
            a('s_and_b32 s27, s4, 4\nv_xor_b32 v10, s27, v10')
            a(f'v_lshrrev_b32 v2, 3, v1\nv_mul_u32_u24 v2, {RS}, v2\nv_xor_b32 v12, 2, v10')
            a('v_lshl_add_u32 v12, v12, 4, v2\nv_lshl_add_u32 v2, v10, 4, v2')
        srd(20, lo, hi, size)
        a(f's_mul_i32 s27, s4, {64*RS}\ns_add_u32 s27, s27, {sbase}')
        if i0: a(f's_add_u32 s27, s27, {8*RS*i0}')
        a(f's_lshl_b32 s28, s4, 13')
        if region + i0: a(f's_add_u32 s28, s28, {region + 1024*i0}')
        for i in range(i0, i1):
            a('s_mov_b32 m0, s28')
            if i < i1-1: a('s_add_u32 s28, s28, 1024')
            a(f'buffer_load_dwordx4 v{12 if i & 1 else 2}, s[20:23], s27 offen {cfg.NT} lds')
            if i < i1-1: a(f's_add_u32 s27, s27, {8*RS}')

    def dma_w(i0, i1, setup=True):
        if setup:
            a('s_and_b32 s6, s4, 1\ns_lshl_b32 s6, s6, 6\ns_and_b32 s7, s4, 4\ns_lshl_b32 s7, s7, 5\ns_or_b32 s6, s6, s7')
            a('v_lshlrev_b32 v2, 4, v1\nv_and_b32 v2, 0x1f0, v2\nv_and_b32 v10, 32, v1\nv_xor_b32 v2, v2, v10\nv_xor_b32 v2, s6, v2\nv_lshl_add_u32 v2, v10, 5, v2')
        srd(20, 's50', 's51', 4096*1024)
        a(f's_lshl_b32 s27, s4, 11\ns_add_u32 s27, s27, s24\ns_add_u32 s27, s27, {16384*i0}')
        a(f's_lshl_b32 s28, s4, 10\ns_add_u32 s28, s28, {8192*i0}')
        for i in range(i0, i1):
            a('s_mov_b32 m0, s28')
            if i < i1-1: a('s_add_u32 s28, s28, 8192')
            a(f'buffer_load_dwordx4 v2, s[20:23], s27 offen {cfg.NT} lds')
            if i < i1-1: a('s_add_u32 s27, s27, 16384')
    a('s_cmp_ge_u32 s2, 256\ns_cbranch_scc1 L_end')
    stamp(0)
    a('v_lshrrev_b32 v1, 6, v0')
    a('s_load_dwordx4 s[12:15], s[0:1], 104')
    a('s_lshr_b32 s3, s2, 3\ns_and_b32 s5, s2, 7')
    a('v_readfirstlane_b32 s4, v1')
    a('v_and_b32 v1, 63, v0')
    if cfg.warm:
        a('s_lshr_b32 s6, s2, 4\ns_xor_b32 s7, s4, 11\ns_or_b32 s6, s6, s7\ns_cbranch_scc1 L_nw')
        a('s_getpc_b64 s[8:9]\nL_pc:\nv_lshlrev_b32 v2, 7, v1')
        a('s_mov_b32 s10, L_end-L_pc\ns_mov_b32 s11, 0x20000\ns_mov_b32 s6, 8192')
        a('buffer_load_dword v4, v2, s[8:11], 0 offen\nbuffer_load_dword v5, v2, s[8:11], s6 offen')
        a('s_endpgm')
        a('L_nw:')
    a('s_cmp_eq_u32 s5, 0\ns_cbranch_scc1 L_hearly')
    a('s_mul_i32 s3, s3, 7\ns_add_u32 s3, s3, s5\ns_sub_u32 s3, s3, 1')
    a('s_cmp_ge_u32 s3, 32\ns_cbranch_scc1 L_stream')
    a('L_hearly:')
    a('s_cmp_ge_u32 s4, 8\ns_cbranch_scc1 L_spare')
    a('s_cmp_eq_u32 s5, 0')
    a('s_cselect_b32 s6, 88, 24')
    a('s_load_dwordx2 s[20:21], s[0:1], s6')
    a('s_mov_b32 s7, 8192\ns_cselect_b32 s7, 6144, s7')
    a('s_cselect_b32 s29, 2, 4')
    a('s_cselect_b32 s24, 5, 6')
    a('s_lshl_b32 s22, s7, 9')
    a('s_lshl_b32 s25, s3, 8')
    a('s_lshr_b32 s26, s3, 1\ns_lshl_b32 s26, s26, 7\ns_and_b32 s27, s3, 1\ns_mul_i32 s27, s27, 256*6144\ns_add_u32 s26, s26, s27')
    a('s_cmp_eq_u32 s5, 0\ns_cselect_b32 s25, s26, s25')
    a('v_bfe_u32 v10, v1, 4, 1\nv_and_b32 v12, 7, v1\nv_xor_b32 v10, v10, v12')
    a('s_and_b32 s27, s4, 4\nv_xor_b32 v10, s27, v10')
    a('v_lshrrev_b32 v2, 3, v1\nv_mul_u32_u24 v2, s7, v2\nv_xor_b32 v12, 2, v10')
    a('v_lshl_add_u32 v12, v12, 4, v2\nv_lshl_add_u32 v2, v10, 4, v2')
    a('s_mov_b32 s23, 0x20000')
    a('s_lshl_b32 s6, s4, s24\ns_mul_i32 s27, s6, s7\ns_add_u32 s27, s27, s25')
    a('s_lshl_b32 s28, s6, 7\ns_lshl_b32 s7, s7, 3')
    a('s_waitcnt lgkmcnt(0)')
    a('L_hdma:')
    a('s_mov_b32 m0, s28\ns_add_u32 s28, s28, 1024')
    a(f'buffer_load_dwordx4 v2, s[20:23], s27 offen {cfg.NT} lds')
    a('s_add_u32 s27, s27, s7\ns_mov_b32 m0, s28\ns_add_u32 s28, s28, 1024')
    a(f'buffer_load_dwordx4 v12, s[20:23], s27 offen {cfg.NT} lds')
    a('s_add_u32 s27, s27, s7\ns_sub_u32 s29, s29, 1\ns_cmp_lg_u32 s29, 0\ns_cbranch_scc1 L_hdma')
    a('s_branch L_helper')
    a('L_stream:')
    a('s_load_dwordx4 s[8:11], s[0:1], 8')
    a('s_sub_u32 s6, s3, 32')
    a('s_and_b32 s24, s6, 15\ns_lshr_b32 s25, s6, 4')
    a('s_mul_i32 s6, s25, 21\ns_sub_u32 s7, s25, 8\ns_max_i32 s7, s7, 0\ns_add_u32 s6, s6, s7')
    a('s_lshl_b32 s6, s6, 13\ns_lshl_b32 s7, s24, 21\ns_add_u32 s6, s6, s7')
    a(f's_mov_b32 s22, {21*8192}\ns_cmp_ge_u32 s25, 8\ns_cselect_b32 s22, {22*8192}, s22')
    a('s_mov_b32 s23, 0x20000')
    a('s_cmp_ge_u32 s4, 4\ns_cbranch_scc1 L_vwave')
    if cfg.prio: a('s_setprio 3')
    a('v_lshrrev_b32 v7, 4, v1')
    a('v_and_b32 v15, 15, v1')
    a('v_lshlrev_b32 v6, 2, v7\nv_xor_b32 v6, v6, v15')
    a('v_lshlrev_b32 v8, 8, v7')
    a('v_lshl_add_u32 v2, v6, 4, v8')
    for t in (1, 2, 3): a(f'v_xor_b32 v{2+t}, {16*t}, v2')
    a(f's_mul_i32 s27, s4, 49152\ns_mul_i32 s28, s4, {KW}')
    a('s_waitcnt lgkmcnt(0)')
    a('s_add_u32 s20, s8, s6\ns_addc_u32 s21, s9, 0')
    a('s_mov_b32 s29, 0')
    a('L_kdma:')
    a('s_mov_b32 m0, s28')
    a('s_add_u32 s28, s28, 4096\ns_add_u32 s29, s29, 1')
    for t in range(4):
        a(f'buffer_load_dwordx4 v{2+t}, s[20:23], s27 offen offset:{1024*t} {cfg.NT} lds')
        if cfg.thS < 63: a(f's_waitcnt vmcnt({cfg.thS})')
    a('s_add_u32 s27, s27, 4096')
    a('s_cmp_lt_u32 s29, 9\ns_cbranch_scc1 L_kdma')
    epoch_load()
    a('v_and_b32 v6, 3, v15\nv_lshlrev_b32 v6, 2, v6\nv_lshrrev_b32 v9, 2, v15\nv_add_u32 v6, v6, v9')
    a('v_lshlrev_b32 v10, 8, v6')
    a('v_lshl_add_u32 v6, v7, 4, v10')
    for gi in range(3):
        for s in range(4):
            r = 96 + 16*gi + 4*s
            a(f'buffer_load_dwordx4 v[{r}:{r+3}], v6, s[20:23], s27 offen offset:{64*s} {cfg.NT}')
            if cfg.thS < 63 and 4*gi + s < 11: a(f's_waitcnt vmcnt({cfg.thS})')
        if gi < 2: a('s_add_u32 s27, s27, 4096')
    srd(16, 's14', 's15', WS_SZ)
    a(f's_lshl_b32 s26, s24, 14\ns_lshl_b32 s6, s25, 10\ns_add_u32 s26, s26, s6\ns_lshl_b32 s6, s4, 8\ns_add_u32 s26, s26, s6\ns_add_u32 s26, s26, {OP}')
    a('v_mov_b32 v156, -1\nv_lshlrev_b32 v157, 2, v1')
    a('buffer_store_dword v156, v157, s[16:19], s26 offen sc1')
    a(f's_and_b32 s7, s24, 7\ns_lshl_b32 s6, s7, 12\ns_lshr_b32 s7, s24, 3\ns_lshl_b32 s7, s7, 11\ns_add_u32 s27, s6, s7\ns_add_u32 s27, s27, {QO}')
    a('v_lshlrev_b32 v12, 4, v1')
    qloads = [f'buffer_load_dwordx4 v[{32+4*k}:{35+4*k}], v12, s[16:19], s27 offen offset:{1024*k} sc1' for k in range(2)]
    a('s_cmp_lg_u32 s4, 0\ns_cbranch_scc1 L_nq1')
    for x in qloads: a(x)
    a('L_nq1:')
    stamp(1)
    a('s_barrier')
    a(f's_mul_i32 s28, s4, {KW}')
    a('v_and_b32 v11, 3, v15\nv_xor_b32 v11, v11, v7')
    a('v_lshl_add_u32 v11, v9, 2, v11')
    a('v_lshl_add_u32 v11, v11, 4, v10\nv_add_u32 v8, s28, v11')
    for s in (1, 2, 3): a(f'v_xor_b32 v{8+s}, {64*s}, v8')
    a(f's_mul_i32 s6, s4, 1536\ns_add_u32 s6, s6, {PREG}')
    a('v_lshrrev_b32 v13, 3, v15\nv_lshlrev_b32 v13, 8, v13')
    a('v_and_b32 v14, 3, v15\nv_lshl_add_u32 v13, v14, 6, v13\nv_lshl_add_u32 v13, v7, 4, v13')
    a('v_bfe_u32 v14, v15, 2, 1\nv_lshl_add_u32 v13, v14, 3, v13\nv_add_u32 v13, s6, v13')
    for u in range(4):
        a(f's_mov_b32 s{36+2*u}, {0x000F000F << (4*u):#x}\ns_mov_b32 s{37+2*u}, {0x000F000F << (4*u):#x}')
    a('s_cmp_lt_u32 s25, 8\ns_cselect_b32 s6, 0xff00ff00, 0\ns_cmp_eq_u32 s4, 3\ns_cselect_b32 s44, s6, 0\ns_cselect_b32 s46, -1, 0\ns_mov_b32 s45, s44\ns_mov_b32 s47, s46')
    a('s_waitcnt lgkmcnt(0)')
    epoch_tag()
    stamp(2)
    a(f'v_mov_b32 v14, {QF}')
    a('s_cmp_lg_u32 s4, 0\ns_cbranch_scc1 L_nq2')
    vpoll(qloads, [33, 35, 37, 39], 160, first_issued=True, tags=True, sleep=cfg.qslp, dbg=(1, 2, 5))
    a(f'v_lshlrev_b32 v12, 3, v1\nv_add_u32 v12, {QL}, v12\nv_mov_b32 v16, 1')
    a('ds_write2_b32 v12, v32, v34 offset0:0 offset1:1\nds_write2_b32 v12, v36, v38 offset0:128 offset1:129')
    a('s_waitcnt lgkmcnt(0)\nds_write_b32 v14, v16')
    a('s_branch L_nq3')
    a('L_nq2:')
    a('s_mov_b32 s30, 0')
    a('L_qspin:')
    a('ds_read_b32 v16, v14\ns_add_u32 s30, s30, 1\ns_waitcnt lgkmcnt(0)')
    a('v_cmp_ne_u32 vcc, 1, v16\ns_cbranch_vccz L_nq3')
    a(f's_sleep 1\ns_cmp_lt_u32 s30, {LIMIT*8}\ns_cbranch_scc1 L_qspin')
    a('L_nq3:')
    a(f'v_and_b32 v12, 3, v15\nv_lshlrev_b32 v12, 8, v12\nv_lshl_add_u32 v12, v7, 4, v12\nv_add_u32 v12, {QL}, v12')
    for k in range(4): a(f'ds_read_b128 v[{16+4*k}:{19+4*k}], v12 offset:{64*k}')
    a('s_waitcnt vmcnt(0) lgkmcnt(0)')
    stamp(3)
    order = [(u, dd) for u in range(4) for dd in range(3)]
    ldsg = [4*dd+u for (u, dd) in order if 4*dd+u < 9]
    def kread(k):
        gi = ldsg[k]; buf = 64 + 16*(k & 1)
        for s in range(4):
            a(f'ds_read_b128 v[{buf+4*s}:{buf+4*s+3}], v{8+s} offset:{4096*gi}')
    kread(0)
    k = 0
    for (u, dd) in order:
        gi = 4*dd + u
        mq = 32 + 16*(u & 1)
        if u == 0 and dd == 0:
            for r in range(16): a(f'v_cndmask_b32 v{mq+r}, 0, v{16+r}, s[36:37]')
        if gi < 9:
            src = 64 + 16*(k & 1)
            if k + 1 < len(ldsg):
                kread(k + 1); a('s_waitcnt lgkmcnt(4)')
            else:
                a('s_waitcnt lgkmcnt(0)')
            k += 1
        else:
            src = 96 + 16*(gi - 9)
        D = 144 + 4*dd
        for s in range(4):
            c = '0' if (u == 0 and s == 0) else f'v[{D}:{D+3}]'
            a(f'v_mfma_f32_16x16x32_bf16 v[{D}:{D+3}], v[{src+4*s}:{src+4*s+3}], v[{mq+4*s}:{mq+4*s+3}], {c}')
            if u < 3 and dd < 2:
                mq2 = 32 + 16*((u+1) & 1)
                for r in (8*dd + 2*s, 8*dd + 2*s + 1):
                    a(f'v_cndmask_b32 v{mq2+r}, 0, v{16+r}, s[{38+2*u}:{39+2*u}]')
    a('v_mov_b32 v160, 0xff800000')
    for r in range(4): a(f'v_cndmask_b32 v{148+r}, v{148+r}, v160, s[44:45]')
    for r in range(4): a(f'v_cndmask_b32 v{152+r}, v{152+r}, v160, s[46:47]')
    a('v_max3_f32 v156, v144, v145, v146\nv_max3_f32 v157, v147, v148, v149')
    a('v_max3_f32 v158, v150, v151, v152\nv_max3_f32 v159, v153, v154, v155')
    a('v_max3_f32 v156, v156, v157, v158\nv_max_f32 v156, v156, v159')
    def xreduce(op, r, t):
        a(f'{op}_dpp v{r}, v{r}, v{r} row_ror:4 row_mask:0xf bank_mask:0xf')
        a(f'{op}_dpp v{r}, v{r}, v{r} row_ror:8 row_mask:0xf bank_mask:0xf')
        a(f'v_mov_b32 v{t}, v{r}\nv_permlane16_swap_b32 v{r}, v{t}\n{op} v{r}, v{r}, v{t}')
        a(f'v_mov_b32 v{t}, v{r}\nv_permlane32_swap_b32 v{r}, v{t}\n{op} v{r}, v{r}, v{t}')
    xreduce('v_max_f32', 156, 157)
    a(f's_mov_b32 s6, {f2u(128**-0.5 * LOG2E)}')
    a('v_mul_f32 v158, s6, v156')
    for r in range(12): a(f'v_fma_f32 v{144+r}, v{144+r}, s6, -v158')
    for r in range(12): a(f'v_exp_f32 v{144+r}, v{144+r}')
    for dd in range(3):
        D = 144 + 4*dd
        a(f'v_cvt_pk_bf16_f32 v{32+2*dd}, v{D}, v{D+1}\nv_cvt_pk_bf16_f32 v{33+2*dd}, v{D+2}, v{D+3}')
        a(f'ds_write_b64 v13, v[{32+2*dd}:{33+2*dd}] offset:{512*dd}')
    a('v_add_f32 v159, v144, v145')
    for r in range(2, 12): a(f'v_add_f32 v159, v159, v{144+r}')
    xreduce('v_add_f32', 159, 157)
    a(f's_lshl_b32 s6, s4, 5\ns_add_u32 s6, s6, {ST}')
    a('v_lshl_add_u32 v14, v1, 3, s6')
    a('s_mov_b64 exec, 15\nds_write_b64 v14, v[158:159]\ns_mov_b64 exec, -1')
    a('s_waitcnt lgkmcnt(0)')
    stamp(4)
    a('s_barrier')
    a(f'v_and_b32 v14, 3, v1\nv_lshlrev_b32 v14, 3, v14\nv_add_u32 v14, {ST}, v14')
    for w in range(4): a(f'ds_read_b64 v[{16+2*w}:{17+2*w}], v14 offset:{32*w}')
    a('v_lshrrev_b32 v2, 2, v1\nv_lshrrev_b32 v3, 4, v1\nv_add_u32 v3, v3, v1\nv_and_b32 v3, 3, v3')
    a('v_lshlrev_b32 v2, 5, v2\nv_lshl_add_u32 v2, v3, 3, v2')
    a(f's_lshl_b32 s6, s4, 9\ns_add_u32 s6, s6, {SCR}\nv_add_u32 v2, s6, v2')
    a('s_waitcnt lgkmcnt(0)')
    a('v_max3_f32 v24, v16, v18, v20\nv_max_f32 v24, v24, v22')
    for w in range(4): a(f'v_sub_f32 v{25+w}, v{16+2*w}, v24')
    for w in range(4): a(f'v_exp_f32 v{25+w}, v{25+w}')
    a('v_mul_f32 v29, v25, v17\nv_fmac_f32 v29, v26, v19\nv_fmac_f32 v29, v27, v21\nv_fmac_f32 v29, v28, v23')
    a('v_log_f32 v30, v29\nv_rcp_f32 v29, v29\nv_mov_b32 v31, s33')
    a('v_add_f32 v30, v30, v24')
    a(f's_lshl_b32 s6, s24, 11\ns_lshl_b32 s7, s25, 7\ns_add_u32 s6, s6, s7\ns_add_u32 s6, s6, {LSE}')
    a('v_lshlrev_b32 v3, 3, v1')
    a('s_cmp_eq_u32 s4, 0\ns_cselect_b32 exec_lo, 0xffff, 0\ns_mov_b32 exec_hi, 0\ns_cbranch_execz L_nlse')
    a('buffer_store_dwordx2 v[30:31], v3, s[16:19], s6 offen sc1')
    a('L_nlse:')
    a('s_mov_b64 exec, -1')
    for w in range(4): a(f'v_mul_f32 v{32+w}, v{25+w}, v29')
    for w in range(4): a(f'v_readlane_b32 s{36+w}, v{32+w}, s4')
    a('v_lshlrev_b32 v3, 2, v1')
    a('s_barrier')
    stamp(6)
    for v in range(8): a(f'ds_read_b64 v[{48+2*v}:{49+2*v}], v2 offset:{2048*v}')
    for v in range(8):
        a(f's_waitcnt lgkmcnt({7-v})')
        w = v >> 1; sp = 36 + (w & ~1)
        mod = 'op_sel_hi:[1,0,1]' if (w & 1) == 0 else 'op_sel:[0,1,0] op_sel_hi:[1,1,1]'
        mod2 = 'op_sel_hi:[1,0]' if (w & 1) == 0 else 'op_sel:[0,1] op_sel_hi:[1,1]'
        if v < 2: a(f'v_pk_mul_f32 v[{40+2*v}:{41+2*v}], v[{48+2*v}:{49+2*v}], s[{sp}:{sp+1}] {mod2}')
        else: a(f'v_pk_fma_f32 v[{40+2*(v&1)}:{41+2*(v&1)}], v[{48+2*v}:{49+2*v}], s[{sp}:{sp+1}], v[{40+2*(v&1)}:{41+2*(v&1)}] {mod}')
    a('v_pk_add_f32 v[40:41], v[40:41], v[42:43]')
    a('v_cvt_pk_bf16_f32 v40, v40, v41')
    a('buffer_store_dword v40, v3, s[16:19], s26 offen sc1')
    stamp(7)
    if cfg.stamps:
        a('s_cmp_lg_u32 s4, 0\ns_cbranch_scc1 L_end')
        stamps_out(8, 0)
    a('s_endpgm')

    a('L_vwave:')
    a('s_sub_u32 s4, s4, 4')
    a('v_lshlrev_b32 v2, 4, v1')
    a(f'v_mov_b32 v16, 0\nv_mov_b32 v17, 0\nv_mov_b32 v18, 0\nv_mov_b32 v19, 0\nv_add_u32 v9, {ZERO}, v2')
    a('s_mov_b32 exec_lo, -1\ns_mov_b32 exec_hi, 3\nds_write_b128 v9, v[16:19]\ns_mov_b64 exec, -1')
    a(f'v_mov_b32 v9, {QF}\nds_write_b32 v9, v16')
    a(f's_mul_i32 s7, s4, 768\ns_add_u32 s7, s7, {PREG}')
    a('v_and_b32 v9, 3, v1\nv_lshlrev_b32 v9, 6, v9\nv_lshrrev_b32 v10, 4, v1\nv_lshl_add_u32 v9, v10, 4, v9\nv_add_u32 v9, s7, v9')
    a(f'v_mov_b32 v11, {ZERO}')
    for x in range(4):
        a(f's_mov_b32 s34, {0x000F000F << (4*x):#x}\ns_mov_b32 s35, s34')
        a(f'v_cndmask_b32 v{3+x}, v11, v9, s[34:35]')
    a('v_and_b32 v7, 15, v1\nv_lshrrev_b32 v8, 2, v7\nv_add_u32 v8, v8, v10\nv_and_b32 v8, 3, v8')
    a('v_lshlrev_b32 v7, 5, v7\nv_lshl_add_u32 v7, v8, 3, v7')
    a(f's_lshl_b32 s7, s4, 11\ns_add_u32 s7, s7, {SCR}\nv_add_u32 v7, s7, v7\nv_add_u32 v8, 1024, v7')
    a('s_mov_b32 s36, 0x05040100\ns_mov_b32 s37, 0x07060302')
    a('s_mul_i32 s27, s4, 24576')
    a('s_waitcnt lgkmcnt(0)')
    a('s_add_u32 s20, s10, s6\ns_addc_u32 s21, s11, 0')
    if cfg.stamps: srd(16, 's14', 's15', WS_SZ)
    a('s_barrier')
    stamp(1)
    for i in range(24):
        r = 72 + 4*i
        a(f'buffer_load_dwordx4 v[{r}:{r+3}], v2, s[20:23], s27 offen offset:{1024*(i&3)} {cfg.NT}')
        if cfg.thV < 63 and cfg.thV <= i < cfg.nth: a(f's_waitcnt vmcnt({cfg.thV})')
        if (i & 3) == 3 and i < 23: a('s_add_u32 s27, s27, 4096')
    stamp(2)
    a('s_barrier')
    stamp(3)
    def pread(t):
        buf = 40 + 16*(t & 1)
        for x in range(4): a(f'ds_read_b128 v[{buf+4*x}:{buf+4*x+3}], v{3+x} offset:{256*t}')
    pread(0); pread(1)
    for t in range(3):
        a(f's_waitcnt vmcnt({16-8*t})')
        if t == 2: stamp(4)
        vb = 72 + 32*t; pb = 40 + 16*(t & 1)
        for j in range(8):
            tb = 24 + 4*(j & 3)
            sel = 's37' if (j & 1) else 's36'
            for tt in range(4):
                a(f'v_perm_b32 v{tb+tt}, v{vb + 4*(2*tt+1) + (j>>1)}, v{vb + 4*(2*tt) + (j>>1)}, {sel}')
            if j == 0: a('s_waitcnt lgkmcnt(4)' if t == 0 else 's_waitcnt lgkmcnt(0)')
            if j > 0:
                jj = j - 1; tb2 = 24 + 4*(jj & 3); acc = 16 + 4*(jj & 1); x = jj >> 1
                c = '0' if (t == 0 and jj < 2) else f'v[{acc}:{acc+3}]'
                a(f'v_mfma_f32_16x16x32_bf16 v[{acc}:{acc+3}], v[{pb+4*x}:{pb+4*x+3}], v[{tb2}:{tb2+3}], {c}')
        a(f'v_mfma_f32_16x16x32_bf16 v[20:23], v[{pb+12}:{pb+15}], v[36:39], v[20:23]')
        if t == 0: pread(2)
    for r in range(4):
        ad = 7 + (r >> 1); o = 128*(r & 1)
        a(f'ds_write2_b32 v{ad}, v{16+r}, v{20+r} offset0:{o} offset1:{o+1}')
    a('s_waitcnt lgkmcnt(0)')
    stamp(5)
    a('s_barrier')
    if cfg.stamps:
        a('s_cmp_lg_u32 s4, 0\ns_cbranch_scc1 L_end')
        stamps_out(6, 8)
    a('s_endpgm')

    a('L_spare:')
    a('s_cmp_lg_u32 s5, 0\ns_cbranch_scc1 L_end')
    a('s_cmp_lg_u32 s4, 8\ns_cbranch_scc1 L_end')
    a('v_mov_b32 v4, -1\nv_mov_b32 v5, -1\nv_mov_b32 v6, -1\nv_mov_b32 v7, -1')
    a(f's_lshl_b32 s6, s3, 10\ns_add_u32 s6, s6, {WOUT}\nv_lshlrev_b32 v2, 4, v1\nv_add_u32 v2, s6, v2')
    a(f's_lshl_b32 s6, s3, 12\ns_add_u32 s6, s6, {MOUT}\nv_lshlrev_b32 v8, 4, v1\nv_add_u32 v8, s6, v8')
    a('s_waitcnt lgkmcnt(0)')
    a('global_store_dwordx4 v2, v[4:7], s[14:15] sc1')
    a('s_cmp_ge_u32 s3, 28\ns_cbranch_scc1 L_sp2')
    for i in range(4): a(f'global_store_dwordx4 v8, v[4:7], s[14:15] offset:{1024*i} sc1')
    a('L_sp2:')
    a('s_waitcnt vmcnt(0)')
    a('s_endpgm')

    AT=136; DD=32; Z=36; T=38; ZT=37; F0=40; F1=72; F2=104
    a('L_helper:')
    epoch_load()
    if cfg.diag is not None: a(f's_load_dword s96, s[14:15], {XID+4}\ns_load_dword s97, s[14:15], {EPO}')
    a('s_load_dwordx2 s[44:45], s[0:1], 0')
    a('s_load_dwordx4 s[48:51], s[0:1], 24')
    a('s_load_dwordx4 s[52:55], s[0:1], 80')
    a('v_lshrrev_b32 v10, 3, v1\nv_and_b32 v11, 3, v1\nv_lshlrev_b32 v11, 1, v11\nv_lshl_add_u32 v10, v10, 3, v11')
    a('v_bfe_u32 v11, v1, 2, 1')
    a('s_lshl_b32 s6, s4, 6\nv_add_u32 v12, s6, v10')
    a('v_lshlrev_b32 v6, 1, v12\nv_lshl_add_u32 v6, v11, 10, v6')
    a(f'v_lshlrev_b32 v9, 2, v12\nv_lshl_add_u32 v9, v11, 11, v9\nv_add_u32 v9, {X1}, v9')
    a(f's_lshr_b32 s6, s4, 2\ns_mul_i32 s6, s6, 576\ns_and_b32 s7, s4, 3\ns_lshl_b32 s7, s7, 7\ns_add_u32 s6, s6, s7\ns_add_u32 s6, s6, {ACT}')
    a('v_mul_u32_u24 v7, 1152, v11\nv_lshl_add_u32 v7, v10, 1, v7\nv_add_u32 v7, s6, v7')
    a('v_lshrrev_b32 v13, 3, v1\nv_lshlrev_b32 v13, 2, v13\nv_lshl_add_u32 v13, v11, 5, v13')
    a(f'v_add_u32 v13, {STAT}, v13')
    a('s_waitcnt lgkmcnt(0)')
    srd(16, 's14', 's15', WS_SZ)
    epoch_tag()
    a('global_load_dword v17, v6, s[52:53]')
    a('global_load_dword v16, v6, s[44:45]')
    a('s_cmp_eq_u32 s5, 0\ns_cbranch_scc1 L_t2')
    a('s_add_u32 s24, s25, 128')
    dma_u1('s48', 's49', 512*8192, 8192, 's24', R1)
    a('s_branch L_h2')
    a('L_t2:')
    a('s_lshr_b32 s26, s3, 1\ns_lshl_b32 s24, s26, 18\ns_and_b32 s6, s3, 1\ns_lshl_b32 s6, s6, 9\ns_add_u32 s24, s24, s6')
    dma_w(8, 8 + cfg.pre)
    a('L_h2:')
    a('v_lshrrev_b32 v10, 4, v1\nv_bfe_u32 v11, v1, 2, 2\nv_lshl_add_u32 v3, v10, 3, v11')
    a('v_bfe_u32 v11, v1, 1, 1\nv_lshl_add_u32 v3, v11, 8, v3\nv_lshlrev_b32 v3, 7, v3')
    a('v_bfe_u32 v12, v1, 3, 2\nv_lshl_add_u32 v12, v11, 2, v12\nv_xor_b32 v12, s4, v12\nv_lshl_add_u32 v3, v12, 4, v3')
    a('v_and_b32 v12, 1, v1\nv_lshl_add_u32 v3, v12, 3, v3')
    a(f'v_lshl_add_u32 v4, v12, 1, v11\nv_mul_u32_u24 v4, 576, v4\nv_lshl_add_u32 v4, v10, 4, v4\nv_add_u32 v4, {ACT}, v4')
    a('v_lshlrev_b32 v5, 3, v0')
    a('s_lshl_b32 s6, s4, 7\nv_lshl_add_u32 v8, v1, 3, s6\nv_lshlrev_b32 v28, 4, v0')
    a(f'v_mov_b32 v18, 0\nv_lshlrev_b32 v10, 2, v1\nv_add_u32 v10, {STAT}, v10\nv_mov_b32 v{T+1}, s33\nv_mov_b32 v{ZT}, s33')
    a('s_mov_b32 exec_lo, -1\ns_mov_b32 exec_hi, 0xffff\nds_write_b32 v10, v18\ns_mov_b64 exec, -1')

    def tr_u1(F, region, steps=8, ad=None):
        if ad is None:
            if region: a(f'v_add_u32 v10, {region}, v3')
            ad = 'v10' if region else 'v3'
        for s in range(steps):
            for hh in range(2):
                a(f'ds_read_b64_tr_b16 v[{F+4*s+2*hh}:{F+4*s+2*hh+1}], {ad} offset:{4096*s + 512*hh}')
    def gemv(Fs, ad='v4', fill=(), off=0, steps=8, Ds=None):
        if isinstance(Fs, int): Fs = [Fs]
        if Ds is None: Ds = [DD]
        fill = list(fill)
        for s in range(steps): a(f'ds_read_b128 v[{AT+4*s}:{AT+4*s+3}], {ad} offset:{64*s+off}')
        per = (len(fill) + steps - 2) // (steps - 1)
        for s in range(steps):
            a(f's_waitcnt lgkmcnt({steps-1-s})')
            for F, D in zip(Fs, Ds):
                c = '0' if s == 0 else f'v[{D}:{D+3}]'
                a(f'v_mfma_f32_16x16x32_bf16 v[{D}:{D+3}], v[{AT+4*s}:{AT+4*s+3}], v[{F+4*s}:{F+4*s+3}], {c}')
            for _ in range(per):
                if fill: a(fill.pop(0))
        for x in fill: a(x)
    def sgemv(Fs, Ds, ad, idx, off=0, fill=(), steps=4, pre=0):
        fill = list(fill)
        for s in range(steps): a(f'ds_read_b128 v[{AT+4*s}:{AT+4*s+3}], {ad} offset:{64*s+off}')
        per = len(fill) // steps
        for s in range(steps):
            a(f's_waitcnt lgkmcnt({steps-1-s})')
            for F, D in zip(Fs, Ds):
                a(f'v_smfmac_f32_16x16x64_bf16 v[{D}:{D+3}], v[{AT+4*s}:{AT+4*s+3}], v[{F+8*s}:{F+8*s+7}], {idx}')
            for _ in range(per):
                if fill: a(fill.pop(0))
        for x in fill: a(x)
    def fold(D=DD, z=Z):
        a(f'v_add_f32_dpp v{z}, v{D+2}, v{D} row_ror:8 row_mask:0xf bank_mask:0x3')
        a(f'v_add_f32_dpp v{z}, v{D+1}, v{D+3} row_ror:8 row_mask:0xf bank_mask:0xc')
    def publish_tag(z, soff):
        a(f's_mov_b64 exec, 0xffff\nbuffer_store_dwordx2 v[{Z}:{Z+1}], v8, s[16:19], {soff} offen sc1\ns_mov_b64 exec, -1')
    def store2(text):
        if not cfg.fast: a(text + ' sc1'); return
        l = lab('fs'); d = lab('fd')
        a(f's_cbranch_scc1 {l}')
        a(text + ' sc1'); a(f's_branch {d}')
        a(f'{l}:'); a(text); a(f'{d}:')
    def unpack(lo, hi, src):
        a(f'v_lshlrev_b32 v{lo}, 16, v{src}\nv_and_b32 v{hi}, 0xffff0000, v{src}')
    def red6(vals, off, TT):
        r01, r23, r45, z = TT
        for r, (e, o) in zip((r01, r23, r45), ((vals[0], vals[1]), (vals[2], vals[3]), (vals[4], vals[5]))):
            a(f'v_add_f32_dpp v{r}, v{e}, v{e} row_ror:8 row_mask:0xf bank_mask:0x3')
        for r, (e, o) in zip((r01, r23, r45), ((vals[0], vals[1]), (vals[2], vals[3]), (vals[4], vals[5]))):
            a(f'v_add_f32_dpp v{r}, v{o}, v{o} row_ror:8 row_mask:0xf bank_mask:0xc')
        a(f'v_permlane16_swap_b32 v{r01}, v{r23}\nv_permlane16_swap_b32 v{r45}, v{z}')
        a(f'v_add_f32 v{r01}, v{r01}, v{r23}\nv_add_f32 v{r45}, v{r45}, v{z}')
        a(f'v_permlane32_swap_b32 v{r01}, v{r45}\nv_add_f32 v{r01}, v{r01}, v{r45}')
        a(f'v_add_f32_dpp v{r01}, v{r01}, v{r01} quad_perm:[1,0,3,2] row_mask:0xf bank_mask:0xf')
        a(f'v_add_f32_dpp v{r01}, v{r01}, v{r01} quad_perm:[2,3,0,1] row_mask:0xf bank_mask:0xf')
        a(f's_mov_b32 exec_lo, 0x11111111\ns_mov_b32 exec_hi, 0x1111\nds_add_f32 v13, v{r01} offset:{off}\ns_mov_b64 exec, -1')

    stamp(1)
    def silu():
        unpack(18, 19, 17)
        a(f's_mov_b32 s6, {f2u(-LOG2E)}')
        a('v_mul_f32 v20, s6, v18\nv_mul_f32 v21, s6, v19\nv_exp_f32 v20, v20\nv_exp_f32 v21, v21')
        a('v_add_f32 v20, 1.0, v20\nv_add_f32 v21, 1.0, v21\nv_rcp_f32 v20, v20\nv_rcp_f32 v21, v21')
        a('v_mul_f32 v18, v18, v20\nv_mul_f32 v19, v19, v21\nv_cvt_pk_bf16_f32 v18, v18, v19')
        a(f'ds_write_b32 v7, v18 offset:{ACTC-ACT}')
        unpack(14, 15, 16)
    a('s_cmp_eq_u32 s5, 0\ns_cbranch_scc1 L_tail')
    mloads = [f'buffer_load_dwordx4 v[{AT+4*k}:{AT+4*k+3}], v28, s[16:19], s{60+k} offen sc1' for k in range(4)]
    for k in range(4): a(f's_mov_b32 s{60+k}, {MODA + 8192*k}')
    for x in mloads: a(x)
    a('s_waitcnt vmcnt(12)')
    stamp(2)
    silu()
    a('v_add_f32 v18, v14, v15\nv_mul_f32 v19, v14, v14\nv_fmac_f32 v19, v15, v15')
    a('s_waitcnt lgkmcnt(0)\ns_barrier')
    red6([18, 19, 18, 19, 18, 19], STAT2 - STAT, (24, 25, 26, 27))
    tr_u1(F0, R0)
    a('s_waitcnt lgkmcnt(0)\ns_barrier')
    stamp(3)
    a('s_lshl_b32 s24, s3, 7\ns_add_u32 s24, s24, 2048')
    if cfg.apre: dma_u1('s54', 's55', 512*6144, 6144, 's24', R0, i1=cfg.apre)
    a(f'v_bfe_u32 v10, v1, 2, 1\nv_lshlrev_b32 v10, 5, v10\nv_add_u32 v10, {STAT2}, v10')
    a('ds_read_b64 v[18:19], v10\ns_waitcnt lgkmcnt(0)')
    a(f's_mov_b32 s6, {f2u(1/512)}\ns_mov_b32 s7, {f2u(1e-5)}')
    a('v_mul_f32 v18, s6, v18\nv_mul_f32 v19, s6, v19\nv_fma_f32 v19, -v18, v18, v19\nv_add_f32 v19, s7, v19\nv_rsq_f32 v19, v19')
    a('v_sub_f32 v20, v14, v18\nv_sub_f32 v21, v15, v18\nv_mul_f32 v20, v20, v19\nv_mul_f32 v21, v21, v19')
    a('v_bfe_u32 v30, v1, 1, 2\nv_lshlrev_b32 v30, 3, v30\nv_bfe_u32 v11, v1, 3, 1\nv_lshl_add_u32 v30, v11, 9, v30\nv_bfe_u32 v11, v1, 4, 1\nv_lshl_add_u32 v30, v11, 8, v30')
    a(f's_lshl_b32 s6, s4, 5\ns_add_u32 s6, s6, {X1}\nv_add_u32 v30, s6, v30')
    a(f'v_lshlrev_b32 v31, 4, v1\nv_add_u32 v29, {X1}, v31\nv_lshrrev_b32 v11, 5, v1\nv_mul_u32_u24 v11, 1536, v11\nv_add_u32 v31, v31, v11')
    vpoll(mloads, range(AT+1, AT+16, 2), 22, first_issued=True, tags=True, sleep=cfg.slp, first_cnt=cfg.apre)
    stamp(4)
    a(f'v_add_f32 v22, v{AT}, v{AT+8}\nv_add_f32 v23, v{AT+2}, v{AT+10}\nv_add_f32 v24, v{AT+4}, v{AT+12}\nv_add_f32 v25, v{AT+6}, v{AT+14}')
    a('v_add_f32 v24, 1.0, v24\nv_add_f32 v25, 1.0, v25\nv_fma_f32 v20, v20, v24, v22\nv_fma_f32 v21, v21, v25, v23')
    a('v_cvt_pk_bf16_f32 v20, v20, v21\nds_write_b32 v7, v20\ns_waitcnt lgkmcnt(0)\ns_barrier')
    stamp(5)
    tr_u1(F1, R1)
    gemv([F0, F1], Ds=[DD, 24])
    a(f'v_add_f32_dpp v{Z}, v{DD+2}, v{DD} row_ror:8 row_mask:0x1 bank_mask:0x3')
    a(f'v_add_f32_dpp v{Z}, v{DD+1}, v{DD+3} row_ror:8 row_mask:0x1 bank_mask:0xc')
    a(f'v_add_f32_dpp v{Z}, v26, v24 row_ror:8 row_mask:0x2 bank_mask:0x3')
    a(f'v_add_f32_dpp v{Z}, v25, v27 row_ror:8 row_mask:0x2 bank_mask:0xc')
    a(f'v_mov_b32_dpp v{T}, v{Z} quad_perm:[1,1,3,3] row_mask:0xf bank_mask:0xf')
    a(f's_mov_b64 exec, 0x55555555')
    a(f'v_cvt_pk_bf16_f32 v{T}, v{Z}, v{T}')
    a(f'ds_write_b64 v30, v[{T}:{T+1}]\ns_mov_b64 exec, -1')
    a('s_waitcnt lgkmcnt(0)\ns_barrier')
    a('s_cmp_lg_u32 s4, 0\ns_cbranch_scc1 L_nqp')
    a(f's_lshr_b32 s6, s3, 2\ns_lshl_b32 s6, s6, 12\ns_and_b32 s7, s3, 3\ns_lshl_b32 s7, s7, 9\ns_add_u32 s6, s6, s7\ns_add_u32 s6, s6, {QO}')
    a('ds_read_b128 v[24:27], v29\ns_waitcnt lgkmcnt(0)')
    a('buffer_store_dwordx4 v[24:27], v31, s[16:19], s6 offen sc1')
    a('L_nqp:')
    stamp(6)
    dma_u1('s54', 's55', 512*6144, 6144, 's24', R0, i0=cfg.apre)
    a('s_waitcnt vmcnt(0)\ns_barrier')
    tr_u1(F0, R0)
    gemv(F0, off=ACTC-ACT); fold()
    a(f's_lshl_b32 s6, s3, 10\ns_add_u32 s6, s6, {MODB}')
    publish_tag(Z, 's6')
    stamp(7)
    if cfg.stamps:
        a('s_cmp_lg_u32 s4, 0\ns_cbranch_scc1 L_end')
        stamps_out(8, 0)
    a('s_endpgm')

    a('L_tail:')
    a(f's_waitcnt vmcnt({cfg.pre})')
    stamp(2)
    silu()
    a('s_load_dwordx8 s[52:59], s[0:1], 48')
    a('s_load_dwordx2 s[46:47], s[0:1], 96')
    a('v_bfe_u32 v11, v1, 1, 1\nv_lshlrev_b32 v10, 14, v11\nv_sub_u32 v10, v3, v10')
    a('v_mul_u32_u24 v11, 320, v11\nv_sub_u32 v11, v4, v11\ns_and_b32 s6, s3, 1\ns_mul_i32 s6, s6, 576\nv_add_u32 v11, s6, v11')
    a('s_waitcnt lgkmcnt(0)\ns_barrier')
    tr_u1(F0, R0, 4, 'v10')
    gemv(F0, 'v11', off=ACTC-ACT, steps=4); fold()
    a('s_and_b32 s6, s3, 1\ns_lshl_b32 s6, s6, 14\ns_lshr_b32 s7, s3, 1\ns_lshl_b32 s7, s7, 10\ns_add_u32 s6, s6, s7')
    publish_tag(Z, 's6')
    stamp(3)
    dma_w(8 + cfg.pre, 16, setup=False)
    a('s_barrier')
    dma_w(0, 8, setup=False)
    a('v_lshrrev_b32 v10, 4, v1\nv_bfe_u32 v11, v1, 2, 2\nv_lshl_add_u32 v10, v10, 3, v11\nv_lshlrev_b32 v10, 9, v10')
    a('v_and_b32 v11, 3, v1\nv_lshl_add_u32 v10, v11, 3, v10')
    a('v_bfe_u32 v11, v1, 2, 3\nv_lshlrev_b32 v11, 5, v11\ns_lshl_b32 s6, s4, 6\nv_xor_b32 v11, s6, v11')
    a('v_add_u32 v22, v10, v11\nv_xor_b32 v11, 32, v11\nv_add_u32 v30, v10, v11')
    def tr_w(half):
        for cg, ad in ((0, 22), (1, 30)):
            if half: a(f'v_add_u32 v{10+cg}, {R1}, v{ad}')
            for s_ in range(4):
                for hh in range(2):
                    r = (F0, F1)[cg] + 4*(4*half + s_) + 2*hh
                    a(f'ds_read_b64_tr_b16 v[{r}:{r+1}], v{10+cg if half else ad} offset:{16384*s_ + 2048*hh}')
    a(f's_getreg_b32 s6, hwreg(HW_REG_XCC_ID)\ns_and_b32 s31, s6, 15\nv_mov_b32 v{T}, s31')
    a(f's_lshl_b32 s6, s3, 7\ns_add_u32 s6, s6, {XID}\nv_lshlrev_b32 v10, 3, v1')
    a('s_cmp_eq_u32 s4, 0\ns_cselect_b32 exec_lo, 0xffff, 0\ns_mov_b32 exec_hi, 0\ns_cbranch_execz L_nxid')
    a(f'buffer_store_dwordx2 v[{T}:{T+1}], v10, s[16:19], s6 offen sc1')
    a('L_nxid:')
    a('s_mov_b64 exec, -1')
    a('s_waitcnt vmcnt(8)\ns_barrier')
    stamp(4)
    tr_w(1)
    a('s_waitcnt lgkmcnt(0)\ns_barrier')
    a('s_cmp_ge_u32 s3, 28\ns_cbranch_scc1 L_nom1')
    a('s_lshl_b32 s24, s3, 7')
    dma_u1('s52', 's53', 512*3584, 3584, 's24', R1)
    stamp(5)
    a('s_waitcnt vmcnt(8)\ns_branch L_m1d')
    a('L_nom1:')
    a('s_waitcnt vmcnt(0)')
    a('L_m1d:')
    a('s_barrier')
    tr_w(0)
    a('s_waitcnt lgkmcnt(0)\ns_barrier')
    stamp(7)
    a('s_cmp_ge_u32 s3, 28\ns_cbranch_scc1 L_nom2')
    srd(20, 's56', 's57', 1792*1024)
    a('s_and_b32 s6, s4, 1\ns_lshl_b32 s6, s6, 7\nv_lshlrev_b32 v2, 4, v1\nv_xor_b32 v2, s6, v2')
    a('v_xor_b32 v10, 32, v2\nv_xor_b32 v11, 64, v2\nv_xor_b32 v12, 96, v2')
    a(f's_lshl_b32 s27, s3, 16\ns_lshl_b32 s28, s4, 13\ns_add_u32 s27, s27, s28')
    for hh in range(2):
        a('s_mov_b32 m0, s28')
        for i in range(4): a(f'buffer_load_dwordx4 v{(2,10,11,12)[i]}, s[20:23], s27 offen offset:{1024*i} {cfg.NT} lds')
        if hh == 0: a('s_add_u32 s27, s27, 4096\ns_add_u32 s28, s28, 4096')
    stamp(6)
    if cfg.touch:
        a(f's_lshl_b32 s6, s3, 12\ns_add_u32 s6, s6, {MOUT}\nbuffer_load_dwordx2 v[{DD}:{DD+1}], v5, s[16:19], s6 offen sc1')
    a('v_and_b32 v10, 7, v1\nv_lshlrev_b32 v10, 1, v10')
    a('s_and_b32 s6, s3, 15\ns_lshl_b32 s6, s6, 5\ns_lshl_b32 s7, s4, 2\ns_add_u32 s6, s6, s7')
    a('v_and_b32 v11, 1, v1\nv_lshl_add_u32 v11, v11, 1, s6\nv_bfe_u32 v12, v1, 4, 1\nv_add_u32 v23, v11, v12')
    a('v_lshlrev_b32 v11, 1, v23\nglobal_load_ushort v24, v11, s[58:59]')
    a('s_lshl_b32 s6, s3, 7\ns_lshl_b32 s7, s4, 4\ns_add_u32 s6, s6, s7')
    a('v_add_u32 v11, s6, v10\nglobal_load_ushort v25, v11, s[54:55]')
    a('L_nom2:')
    if cfg.touch:
        a(f's_lshl_b32 s6, s3, 10\ns_add_u32 s6, s6, {WOUT}\nv_lshlrev_b32 v10, 4, v1\nbuffer_load_dword v{DD+2}, v10, s[16:19], s6 offen sc1')
    a(f'v_and_b32 v10, 31, v1\nv_lshlrev_b32 v10, 7, v10\ns_mov_b32 s6, {XID}')
    vpoll([f'buffer_load_dwordx2 v[{AT}:{AT+1}], v10, s[16:19], s6 offen sc1'], [AT+1], None, sleep=cfg.slp, tags=True)
    a(f'v_cmp_ne_u32 vcc, s31, v{AT}\ns_cmp_eq_u64 vcc, 0\ns_cselect_b32 s32, 1, 0')
    a('s_cmp_ge_u32 s3, 28\ns_cbranch_scc1 L_wst')
    a('s_barrier')
    tr_u1(F2, R1)
    a('v_lshrrev_b32 v11, 3, v23\nv_lshlrev_b32 v11, 7, v11\nv_and_b32 v12, 7, v23\nv_lshl_add_u32 v11, v12, 3, v11\nv_bfe_u32 v12, v1, 3, 1\nv_lshl_add_u32 v11, v12, 6, v11')
    a(f's_mov_b32 s63, {MODB + 24*1024}')
    for k in range(3): a(f's_mov_b32 s{60+k}, {MODB + 8192*k}')
    a('v_lshlrev_b32 v24, 16, v24\nv_lshlrev_b32 v25, 16, v25')
    a(f'v_mov_b32 v{AT+15}, 0x3f803f80\nds_write_b32 v7, v{AT+15} offset:{ACTM-ACT+3*TS}')
    stamp(1)
    vpoll([f'buffer_load_dwordx4 v[{AT+4*k}:{AT+4*k+3}], v28, s[16:19], s{60+k} offen sc1' for k in range(3)] +
          [f'buffer_load_dwordx2 v[{AT+12}:{AT+13}], v11, s[16:19], s63 offen sc1'], range(AT+1, AT+14, 2), AT+14, sleep=cfg.slp, tags=True)
    stamp(8)
    a(f'v_mov_b32 v23, v{AT+12}\nv_mov_b32 v16, v{AT}\nv_mov_b32 v17, v{AT+2}')
    a(f'v_add_f32 v18, 1.0, v{AT+8}\nv_add_f32 v19, 1.0, v{AT+10}\nv_cvt_pk_bf16_f32 v{AT+1}, v{AT+4}, v{AT+6}\nv_cvt_pk_bf16_f32 v{AT+3}, v18, v19')
    unpack(18, 19, AT+3); unpack(20, 21, AT+1)
    a(f'ds_write_b32 v7, v{AT+3} offset:{ACTM-ACT+TS}\nds_write_b32 v7, v{AT+1} offset:{ACTM-ACT+2*TS}')
    t = AT + 16
    a(f'v_add_f32 v{t}, v18, v19\nv_mul_f32 v{t+1}, v18, v18\nv_fmac_f32 v{t+1}, v19, v19')
    a(f'v_mul_f32 v{t+2}, v18, v20\nv_fmac_f32 v{t+2}, v19, v21\nv_add_f32 v{t+3}, v20, v21')
    a(f'v_mul_f32 v{t+4}, v20, v20\nv_fmac_f32 v{t+4}, v21, v21')
    red6([t, t+1, t+2, t+3, t+4, t+4], STAT3 - STAT, (t+6, t+7, t+8, t+9))
    a(f'v_bfe_u32 v10, v1, 2, 2\nv_mul_u32_u24 v10, {TS}, v10\nv_add_u32 v10, v10, v4')
    a('s_waitcnt lgkmcnt(0)\ns_barrier')
    gemv(F2, 'v10', off=ACTM-ACT); fold()
    a(f'v_mov_b32 v26, v{Z}\nv_permlane16_swap_b32 v{Z}, v26')
    a(f'v_mov_b32 v27, v{Z}\nv_mov_b32 v28, v26\nv_permlane32_swap_b32 v{Z}, v27\nv_permlane32_swap_b32 v26, v28')
    a('L_wst:')
    a('s_lshr_b32 s6, s4, 2\ns_lshl_b32 s24, s6, 3\ns_lshr_b32 s7, s26, 1\ns_add_u32 s24, s24, s7')
    a('s_and_b32 s7, s26, 1\ns_lshl_b32 s7, s7, 1\ns_bfe_u32 s28, s4, 0x10001\ns_add_u32 s7, s7, s28')
    a(f's_lshl_b32 s27, s24, 11\ns_lshl_b32 s29, s7, 3\ns_add_u32 s27, s27, s29\ns_add_u32 s27, s27, {LSE}')
    a(f's_lshl_b32 s60, s24, 14\ns_lshl_b32 s29, s7, 8\ns_add_u32 s60, s60, s29\ns_and_b32 s29, s4, 1\ns_lshl_b32 s29, s29, 7\ns_add_u32 s60, s60, s29\ns_add_u32 s60, s60, {OP}')
    a('s_add_u32 s61, s60, 4096')
    a(f's_mul_i32 s6, s6, 1152\ns_and_b32 s29, s4, 3\ns_lshl_b32 s29, s29, 6\ns_add_u32 s6, s6, s29\ns_add_u32 s6, s6, {ACT}')
    a('v_and_b32 v31, 1, v1\nv_mul_u32_u24 v31, 576, v31\nv_bfe_u32 v10, v1, 1, 4\nv_lshl_add_u32 v31, v10, 2, v31\nv_add_u32 v31, s6, v31')
    a('s_mov_b32 s62, 6144\nv_and_b32 v2, 31, v1\nv_lshlrev_b32 v2, 2, v2\nv_lshrrev_b32 v10, 5, v1\nv_mad_u32_u24 v2, v10, s62, v2')
    a(f's_lshl_b32 s29, s3, 10\ns_add_u32 s29, s29, {WOUT}')
    a('v_and_b32 v11, 2, v1\nv_cmp_eq_u32 vcc, 0, v11\nv_mov_b32 v11, 0xeeee\nv_mov_b32 v22, 0x4444\nv_cndmask_b32 v22, v11, v22, vcc')
    for r in range(8): a(f'v_mov_b32 v{DD+r}, 0')
    a('v_bfe_u32 v8, v1, 1, 2\nv_lshlrev_b32 v8, 4, v8\nv_bfe_u32 v11, v1, 4, 1\nv_lshl_add_u32 v8, v11, 6, v8\nv_bfe_u32 v11, v1, 3, 1\nv_lshl_add_u32 v8, v11, 7, v8')
    a('v_lshl_add_u32 v8, v10, 2, v8\ns_lshr_b32 s6, s4, 1\ns_lshl_b32 s6, s6, 8\ns_and_b32 s7, s4, 1\ns_lshl_b32 s7, s7, 3\ns_add_u32 s6, s6, s7\nv_add_u32 v8, s6, v8')
    a(f'v_lshlrev_b32 v10, 7, v1\nv_mov_b32 v{AT}, 0xff800000')
    stamp(9)
    a(f's_mov_b64 exec, {(1 << NCH) - 1:#x}')
    vpoll([f'buffer_load_dwordx2 v[{AT}:{AT+1}], v10, s[16:19], s27 offen sc1'], [AT+1], None, sleep=cfg.slp, tags=True)
    a('s_mov_b64 exec, -1')
    a(f'v_mov_b32 v{AT+1}, v{AT}')
    for r in (1, 2, 4, 8): a(f'v_max_f32_dpp v{AT+1}, v{AT+1}, v{AT+1} row_ror:{r} row_mask:0xf bank_mask:0xf')
    a(f'v_sub_f32 v{AT}, v{AT}, v{AT+1}\nv_exp_f32 v{AT}, v{AT}\nv_mov_b32 v{AT+1}, v{AT}')
    for r in (1, 2, 4, 8): a(f'v_add_f32_dpp v{AT+1}, v{AT+1}, v{AT+1} row_ror:{r} row_mask:0xf bank_mask:0xf')
    a(f'v_rcp_f32 v{AT+1}, v{AT+1}\nv_mul_f32 v{AT}, v{AT}, v{AT+1}')
    a('v_lshrrev_b32 v10, 5, v1\nv_mul_u32_u24 v10, 24, v10')
    for i in range(6):
        a(f'ds_bpermute_b32 v{AT+24+i}, v10, v{AT} offset:{4*i}')
    a('s_waitcnt lgkmcnt(0)')
    wl = [f'buffer_load_dword v{AT+c}, v2, s[16:19], s{60+(c>>2)} offen offset:{1024*(c&3)} sc1' for c in range(6)]
    if cfg.mp & 1: mpoll([(wl[c], [AT+c]) for c in range(6)], AT+12)
    else: vpoll(wl, [AT+c for c in range(6)], AT+12)
    stamp(10)
    acc = AT + 20
    for c in range(6):
        tq = AT + 8 + 2*c
        unpack(tq, tq+1, AT+c)
    for c in range(6):
        tq = AT + 8 + 2*c; wp = AT + 24 + (c & ~1)
        mod = 'op_sel_hi:[1,0,1]' if (c & 1) == 0 else 'op_sel:[0,1,0] op_sel_hi:[1,1,1]'
        mod2 = 'op_sel_hi:[1,0]' if (c & 1) == 0 else 'op_sel:[0,1] op_sel_hi:[1,1]'
        ac = acc + 2*(c & 1)
        if c < 2: a(f'v_pk_mul_f32 v[{ac}:{ac+1}], v[{tq}:{tq+1}], v[{wp}:{wp+1}] {mod2}')
        else: a(f'v_pk_fma_f32 v[{ac}:{ac+1}], v[{tq}:{tq+1}], v[{wp}:{wp+1}], v[{ac}:{ac+1}] {mod}')
    a(f'v_pk_add_f32 v[{acc}:{acc+1}], v[{acc}:{acc+1}], v[{acc+2}:{acc+3}]')
    a(f'v_permlane32_swap_b32 v{acc}, v{acc+1}')
    a(f'v_add_f32 v{acc}, v{acc}, v{acc+1}')
    a(f'v_mov_b32 v{acc+1}, v{acc}\nv_permlane32_swap_b32 v{acc}, v{acc+1}')
    a(f's_mov_b64 exec, 0xffffffff\nv_cvt_pk_bf16_f32 v{acc}, v{acc}, v{acc+1}\nds_write_b32 v31, v{acc}\ns_mov_b64 exec, -1')
    fst(7)
    a('s_waitcnt lgkmcnt(0)\ns_barrier')
    fst(8)
    sgemv([F0, F1], [DD, Z], 'v4', 'v22')
    a(f'v_add_f32_dpp v10, v{DD}, v{DD+2} quad_perm:[0,1,2,3] row_mask:0x1 bank_mask:0xf')
    a(f'v_add_f32_dpp v10, v{DD+1}, v{DD+3} quad_perm:[0,1,2,3] row_mask:0x2 bank_mask:0xf')
    a(f'v_add_f32_dpp v10, v{Z}, v{Z+2} quad_perm:[0,1,2,3] row_mask:0x4 bank_mask:0xf')
    a(f'v_add_f32_dpp v10, v{Z+1}, v{Z+3} quad_perm:[0,1,2,3] row_mask:0x8 bank_mask:0xf')
    a('s_cmp_lg_u32 s32, 0')
    a('v_mov_b32_dpp v11, v10 quad_perm:[1,1,3,3] row_mask:0xf bank_mask:0xf')
    a('s_mov_b32 exec_lo, 0x55555555\ns_mov_b32 exec_hi, 0x55555555')
    a('v_cvt_pk_bf16_f32 v11, v10, v11')
    store2('buffer_store_dword v11, v8, s[16:19], s29 offen')
    a('s_mov_b64 exec, -1')
    stamp(11)
    a('s_cmp_ge_u32 s3, 28\ns_cbranch_scc1 L_hdone')

    a('v_lshrrev_b32 v10, 4, v1\nv_bfe_u32 v11, v1, 2, 2\nv_lshl_add_u32 v10, v10, 3, v11\nv_lshlrev_b32 v10, 10, v10')
    a(f'v_and_b32 v11, 3, v1\nv_lshl_add_u32 v10, v11, 3, v10')
    a('v_bfe_u32 v11, v1, 2, 3\nv_lshlrev_b32 v11, 5, v11\ns_lshl_b32 s6, s4, 7\nv_xor_b32 v11, s6, v11')
    for cg in range(4):
        a(f'v_xor_b32 v12, {32*cg}, v11\nv_add_u32 v{60+cg}, v10, v12')
    for cg in range(4):
        for s in range(2):
            for hh in range(2):
                r = F1 + (cg*2 + s)*4 + 2*hh
                a(f'ds_read_b64_tr_b16 v[{r}:{r+1}], v{60+cg} offset:{32768*s + 4096*hh}')
    a(f's_lshl_b32 s60, s4, 8\ns_add_u32 s60, s60, {WOUT}\ns_add_u32 s61, s60, 4096')
    a('v_and_b32 v59, 15, v1\nv_lshlrev_b32 v59, 4, v59\nv_lshrrev_b32 v58, 4, v1\nv_lshl_add_u32 v59, v58, 13, v59')
    wloads = [f'buffer_load_dwordx4 v[{AT+4*k}:{AT+4*k+3}], v59, s[16:19], s{60+(k>>1)} offen offset:{2048*(k&1)} sc1' for k in range(4)]
    for x in wloads: a(x)
    a(f'v_bfe_u32 v10, v1, 3, 1\nv_lshlrev_b32 v40, 5, v10\nv_add_u32 v40, {STAT}, v40')
    a(f'ds_read_b128 v[68:71], v40 offset:{STAT3-STAT}\nds_read_b32 v30, v40 offset:{STAT3-STAT+16}')
    a('v_bfe_u32 v11, v1, 1, 1\nv_lshl_add_u32 v41, v10, 1, v11\nv_lshlrev_b32 v41, 6, v41\nv_and_b32 v12, 4, v1\nv_add_u32 v41, v41, v12')
    a(f'v_and_b32 v12, 1, v1\nv_lshl_add_u32 v41, v12, 1, v41\ns_lshl_b32 s6, s4, 3\ns_add_u32 s6, s6, {HID}\nv_add_u32 v41, s6, v41')
    a(f'v_lshl_add_u32 v42, v12, 1, v11\nv_lshlrev_b32 v42, 6, v42\nv_and_b32 v45, 48, v1\nv_add_u32 v42, v42, v45\nv_add_u32 v42, {HID}, v42')
    a(f'v_and_b32 v43, 7, v1\nv_mul_u32_u24 v43, 288, v43\nv_add_u32 v43, v43, v45\nv_add_u32 v43, {AS}, v43')
    a('v_bfe_u32 v46, v1, 2, 1\nv_lshl_add_u32 v46, v12, 2, v46\nv_mul_u32_u24 v46, 288, v46\nv_lshl_add_u32 v46, v11, 2, v46\nv_lshrrev_b32 v11, 3, v1\nv_lshl_add_u32 v46, v11, 3, v46')
    a(f's_lshr_b32 s6, s4, 2\ns_mul_i32 s6, s6, 576\ns_and_b32 s7, s4, 3\ns_lshl_b32 s7, s7, 6\ns_add_u32 s6, s6, s7\ns_add_u32 s6, s6, {AS}\nv_add_u32 v46, s6, v46')
    a('v_and_b32 v11, 4, v1\nv_cmp_eq_u32 vcc, 0, v11\nv_mov_b32 v11, 0xeeee\nv_mov_b32 v47, 0x4444\nv_cndmask_b32 v47, v11, v47, vcc')
    for r in range(4): a(f'v_mov_b32 v{DD+r}, 0')
    a('s_and_b32 s6, s3, 15\ns_lshl_b32 s6, s6, 5\ns_lshl_b32 s7, s4, 2\ns_add_u32 s6, s6, s7')
    a('v_and_b32 v11, 1, v1\nv_lshl_add_u32 v11, v11, 1, s6')
    a('v_lshrrev_b32 v12, 1, v1\nv_lshlrev_b32 v44, 12, v12\nv_lshl_add_u32 v44, v11, 3, v44')
    a('v_bfe_u32 v12, v1, 4, 1\nv_add_u32 v11, v11, v12')
    a(f'v_lshlrev_b32 v48, 11, v10\nv_lshl_add_u32 v48, v11, 2, v48\nv_add_u32 v48, {X1}, v48')
    a('v_lshlrev_b32 v49, 10, v10\nv_lshl_add_u32 v49, v11, 1, v49')
    a(f's_add_u32 s20, s14, {MOUT}\ns_addc_u32 s21, s15, 0\ns_mov_b32 s22, {28*4096}\ns_mov_b32 s23, 0x20000')
    a(f's_lshl_b32 s24, s3, 12')
    a(f's_mov_b32 s40, {f2u(1/512)}\ns_mov_b32 s41, {f2u(1e-5)}\ns_mov_b32 s42, {f2u(0.044715)}\ns_mov_b32 s43, {f2u(-2*math.sqrt(2/math.pi)*LOG2E)}')
    a('v_and_b32 v50, 1, v1\nv_lshlrev_b32 v50, 4, v50\nv_mov_b32 v51, 0x3f80\nv_lshlrev_b32 v50, v50, v51\nv_bfe_u32 v51, v1, 2, 2')
    for i in range(4): a(f'v_cmp_eq_u32 vcc, {i}, v51\nv_cndmask_b32 v{64+i}, 0, v50, vcc')
    a('s_waitcnt lgkmcnt(0)')
    a(f's_mov_b32 s44, {f2u(-2/512)}\ns_mov_b32 s45, {f2u(2/512)}\nv_mov_b32 v61, s41')
    a('v_mul_f32 v68, s40, v68\nv_mul_f32 v69, s40, v69\nv_mul_f32 v70, s45, v70\nv_mul_f32 v71, s40, v71\nv_fma_f32 v30, v30, s40, v61')
    if cfg.mp & 2: mpoll([(wloads[k], range(AT+4*k, AT+4*k+4)) for k in range(4)], AT+20, first_issued=True)
    else: vpoll(wloads, [AT+k for k in range(16)], AT+20, first_issued=True)
    stamp(12)
    V = AT + 16
    for k in range(4):
        c0 = '0' if k == 0 else f'v[{V}:{V+3}]'
        a(f'v_mfma_f32_16x16x32_bf16 v[{V}:{V+3}], v[64:67], v[{AT+4*k}:{AT+4*k+3}], {c0}')
    s0, s1 = V, V+1
    x0, x1, a0, a1 = AT+12, AT+13, AT+14, AT+15
    a(f'v_fma_f32 v{x0}, v16, v{s0}, v14\nv_fma_f32 v{x1}, v17, v{s1}, v15')
    a(f'v_mul_f32 v{a0}, v{x0}, v18\nv_mul_f32 v{a1}, v{x1}, v19')
    a(f'v_cvt_pk_bf16_f32 v{AT}, v{a0}, v{a1}\nds_write_b32 v46, v{AT}\nds_write_b64 v9, v[{x0}:{x1}]')
    fst(1)
    t = AT + 20
    a(f'v_add_f32 v{t}, v{x0}, v{x1}\nv_mul_f32 v{t+1}, v{x0}, v{x0}\nv_add_f32 v{t+2}, v{a0}, v{a1}\nv_mul_f32 v{t+3}, v{a0}, v{a0}')
    a(f'v_mul_f32 v{t+4}, v{a0}, v18\nv_mul_f32 v{t+5}, v{a0}, v20')
    a(f'v_fmac_f32 v{t+1}, v{x1}, v{x1}\nv_fmac_f32 v{t+3}, v{a1}, v{a1}\nv_fmac_f32 v{t+4}, v{a1}, v19\nv_fmac_f32 v{t+5}, v{a1}, v21')
    red6([t, t+1, t+2, t+3, t+4, t+5], 0, (t+6, t+7, t+8, t+9))
    fst(2)
    a('s_waitcnt lgkmcnt(0)')
    fst(9)
    a('s_barrier')
    fst(3)
    a('ds_read_b128 v[52:55], v40\nds_read_b64 v[56:57], v40 offset:16')
    fill = [
        'v_mul_f32 v52, s40, v52',
        'v_fma_f32 v53, v53, s40, v61',
        'v_mul_f32 v56, s44, v56',
        'v_fma_f32 v53, -v52, v52, v53',
        'v_mul_f32 v54, s40, v54',
        'v_fma_f32 v56, v52, v69, v56',
        'v_rsq_f32 v53, v53',
        'v_mul_f32 v55, s40, v55',
        'v_mul_f32 v57, s45, v57',
        'v_fma_f32 v54, -v52, v68, v54',
        'v_fma_f32 v55, v52, v56, v55',
        'v_fma_f32 v57, -v52, v70, v57',
        'v_fma_f32 v55, v53, v55, v57',
        'v_fma_f32 v54, v53, v54, v71',
        'v_mul_f32 v52, v52, v53',
        'v_fma_f32 v55, v53, v55, v30',
        'v_fma_f32 v56, -v52, v26, v27',
        'v_fma_f32 v55, -v54, v54, v55',
        'v_fma_f32 v56, -v54, v28, v56',
        'v_rsq_f32 v55, v55',
    ]
    zf = [f'v_mov_b32 v{AT+16+r}, 0' for r in range(16)]
    sgemv([F2], [DD], 'v43', 'v47', fill=fill + zf[:3]); fold()
    a(f'v_mov_b32 v{T}, v{Z}\n{zf[3]}\n{zf[4]}\nv_permlane16_swap_b32 v{Z}, v{T}\nv_add_f32 v{Z}, v{Z}, v{T}')
    fst(4)
    ge = [f'v_fma_f32 v{Z}, v{Z}, v53, v56', f'v_fma_f32 v{Z}, v{Z}, v55, v25', f'v_mul_f32 v{T}, v{Z}, v{Z}', f'v_mul_f32 v{T+1}, s43, v{Z}',
          f'v_fma_f32 v{T}, v{T}, s42, 1.0', f'v_mul_f32 v{T}, v{T}, v{T+1}', f'v_exp_f32 v{T}, v{T}', f'v_add_f32 v{T}, 1.0, v{T}',
          f'v_rcp_f32 v{T}, v{T}', f'v_mul_f32 v{T}, v{T}, v{Z}', f'v_cvt_pk_bf16_f32 v{T}, v{T}, v{T}']
    for x, z_ in zip(ge, zf[5:]): a(x + '\n' + z_)
    a(f's_mov_b64 exec, 0xffff\nds_write_b16 v41, v{T}\ns_mov_b64 exec, -1')
    fst(5)
    a('s_waitcnt lgkmcnt(0)\ns_barrier')
    fst(6)
    a(f'ds_read_b128 v[{AT}:{AT+3}], v42')
    a(f'ds_read_b32 v52, v48')
    a(f's_waitcnt lgkmcnt(1)')
    for cg in range(4):
        ac = AT + 16 + 4*cg; fr = F1 + cg*8
        a(f'v_smfmac_f32_16x16x64_bf16 v[{ac}:{ac+3}], v[{AT}:{AT+3}], v[{fr}:{fr+7}], v22')
    y = AT + 8
    a('s_cmp_lg_u32 s32, 0')
    for cg in range(4):
        ac = AT + 16 + 4*cg
        for r in range(2): a(f'v_add_f32_dpp v{y+r}, v{ac+r}, v{ac+2+r} quad_perm:[0,1,2,3] row_mask:{1 << cg:#x} bank_mask:0xf')
    store2(f'buffer_store_dwordx2 v[{y}:{y+1}], v5, s[20:23], s24 offen')
    stamp(13)
    a('s_cmp_ge_u32 s3, 16\ns_cbranch_scc1 L_hdone')
    fl = [f'buffer_load_dwordx4 v[{AT}:{AT+3}], v44, s[20:23], 0 offen sc1']
    a(fl[0])
    srd(24, 's46', 's47', 2048)
    a('s_waitcnt lgkmcnt(0)\nv_fma_f32 v52, v23, v24, v52')
    if cfg.mp & 4: mpoll([(fl[0], range(AT, AT+4))], AT+8, first_issued=True)
    else: vpoll(fl, [AT+k for k in range(4)], AT+8, first_issued=True)
    stamp(14)
    a(f'v_add_f32_dpp v{Z}, v{AT}, v{AT} row_ror:8 row_mask:0xf bank_mask:0x3')
    a(f'v_add_f32_dpp v{T}, v{AT+2}, v{AT+2} row_ror:8 row_mask:0xf bank_mask:0x3')
    a(f'v_add_f32_dpp v{Z}, v{AT+1}, v{AT+1} row_ror:8 row_mask:0xf bank_mask:0xc')
    a(f'v_add_f32_dpp v{T}, v{AT+3}, v{AT+3} row_ror:8 row_mask:0xf bank_mask:0xc')
    a(f'v_permlane16_swap_b32 v{Z}, v{T}\nv_add_f32 v{Z}, v{Z}, v{T}')
    a(f'v_mov_b32 v{T}, v{Z}\nv_permlane32_swap_b32 v{Z}, v{T}\nv_add_f32 v{Z}, v{Z}, v{T}')
    a(f'v_add_f32_dpp v{Z}, v{Z}, v{Z} quad_perm:[2,3,0,1] row_mask:0xf bank_mask:0xf')
    a(f'v_add_f32_dpp v{Z}, v{Z}, v{Z} row_shl:4 row_mask:0xf bank_mask:0x5')
    a(f'v_fma_f32 v{Z}, v23, v{Z}, v52')
    if cfg.diag is not None:
        a('s_or_b32 s6, s3, s4\ns_cmp_lg_u32 s6, 0\ns_cbranch_scc1 L_ndiag')
        a('s_memrealtime s[94:95]\ns_waitcnt lgkmcnt(0)\ns_sub_u32 s6, s94, s64')
        a(f's_cmp_lt_u32 s6, {cfg.T0}\ns_cbranch_scc1 L_ndiag\ns_cmp_eq_u32 s96, s97\ns_cbranch_scc1 L_ndiag\ns_cmp_eq_u32 s32, {cfg.gate}\ns_cbranch_scc1 L_ndiag')
        a(f's_sub_u32 s6, s{64+2*cfg.diag}, s64\nv_cvt_f32_u32 v10, s6\ns_mov_b64 exec, 1\nv_add_f32 v{Z}, v{Z}, v10\ns_mov_b64 exec, -1')
        a('L_ndiag:')
    if cfg.enc:
        a('s_or_b32 s6, s3, s4\ns_cmp_lg_u32 s6, 0\ns_cbranch_scc1 L_nenc')
        a(f's_memrealtime s[94:95]\ns_waitcnt lgkmcnt(0)\ns_sub_u32 s6, s94, s64\ns_sub_u32 s7, s{64+2*cfg.enc}, s64')
        a('v_mov_b32 v10, s6\nv_mov_b32 v11, s7\nv_and_b32 v12, 8, v1\nv_cmp_eq_u32 vcc, 0, v12\nv_cndmask_b32 v10, v11, v10, vcc')
        a('v_and_b32 v11, 1, v1\nv_lshlrev_b32 v11, 1, v11\nv_bfe_u32 v12, v1, 4, 1\nv_add_u32 v11, v11, v12\nv_mul_u32_u24 v11, 3, v11')
        a(f'v_lshrrev_b32 v10, v11, v10\nv_and_b32 v10, 7, v10\nv_cvt_f32_u32 v10, v10\nv_add_f32 v{Z}, v{Z}, v10')
        a('L_nenc:')
    a(f's_mov_b64 exec, 0x03030303')
    a(f'v_cvt_pk_bf16_f32 v{T}, v{Z}, v{Z}')
    a(f'buffer_store_short v{T}, v49, s[24:27], 0 offen')
    a('s_or_b32 s6, s3, s4\ns_cmp_lg_u32 s6, 0\ns_cbranch_scc1 L_noep')
    a(f's_mov_b64 exec, 1\nv_mov_b32 v10, {EPO}\nv_mov_b32 v11, s33\nbuffer_store_dword v11, v10, s[16:19], 0 offen')
    a('L_noep:')
    a('s_mov_b64 exec, -1')
    stamp(15)
    a('L_hdone:')
    if cfg.stamps:
        a(f's_cmp_lg_u32 s4, {cfg.sw}\ns_cbranch_scc1 L_end')
        stamps_out(16, 0)
        a('s_cmp_lg_u32 s2, 0\ns_cbranch_scc1 L_end')
        for n, i in enumerate((1, 4, 7, 8, 9, 10, 11, 12, 13, 14, 15)):
            a(f's_sub_u32 s60, s{64+2*i}, s64\nv_mov_b32 v4, s60\nglobal_store_dword v2, v4, s[12:13] offset:{16+4*n}')
        a('v_mov_b32 v4, s32\nglobal_store_dword v2, v4, s[12:13]')
        a('s_waitcnt vmcnt(0)')
    a('L_end:')
    a('s_endpgm')
    return wrap(a.finalize(), 256, 768, LDS_TOTAL, 168, sgpr=100)

if __name__ == '__main__':
    out = sys.argv[1]
    for o in sys.argv[2:]:
        k, v = o.split('=')
        setattr(cfg, k, eval(v))
    open(out, 'w').write(gen())
```

```python
import sys, math, struct
from asmlib import *
from gen_common import *

class Cfg:
    stamps = False
    NT = 'nt'
    warm = True
    prio = True
    slp = 2
    qslp = 4
    thS = 63
    thV = 63
    pre = 3
    touch = True
    diag = None
    fine = False
    sw = 0
    mp = 2
    enc = 0
    dirty = 0
    nth = 23
    T0 = 1900
    gate = 0
    apre = 0
    fast = True
cfg = Cfg()

MODA=0; MODB=0x8000; QO=0x10000; XID=0x18000; EPO=0x1A800; WOUT=0x1C000; MOUT=0x24000; OP=0x40000; STMP=0x80000; LSE=0x90000; WS_SZ=0x100000
NCH = 12
KW=36864; PREG=147456; ZERO=153600; ST=154176; QL=154368; QF=155392; SCR=0; LDS_TOTAL=155648
R0=0; R1=65536; ACT=131072; ACTC=133376; ACTM=135680; TS=2336; HID=145024; STAT=145408; STAT2=145472; STAT3=145536; X1=145664; AS=149760
LIMIT = 200000
LOG2E = 1.4426950408889634
def f2u(x): return '0x%08x' % struct.unpack('<I', struct.pack('<f', x))[0]

def gen():
    a = Asm()
    uid = [0]
    def lab(p):
        uid[0] += 1; return f'L_{p}_{uid[0]}'
    def stamp(i):
        if cfg.stamps: a(f's_memrealtime s[{64+2*i}:{65+2*i}]')
    def fst(i):
        if cfg.fine: stamp(i)
    def stamps_out(n, base_slot):
        if not cfg.stamps: return
        a('s_waitcnt lgkmcnt(0)')
        a('s_mov_b64 exec, 1')
        a(f's_lshl_b32 s60, s2, 7\ns_add_u32 s60, s60, {STMP + base_slot*8}')
        a('v_mov_b32 v2, 0')
        for i in range(n):
            a(f'v_mov_b32 v4, s{64+2*i}\nv_mov_b32 v5, s{65+2*i}')
            a(f'buffer_store_dwordx2 v[4:5], v2, s[16:19], s60 offen offset:{8*i}')
        a('s_waitcnt vmcnt(0)')
    def srd(d, lo, hi, size):
        a(f's_mov_b32 s{d}, {lo}\ns_mov_b32 s{d+1}, {hi}\ns_mov_b32 s{d+2}, {size}\ns_mov_b32 s{d+3}, 0x20000')
    def epoch_load():
        a(f's_load_dword s33, s[14:15], {EPO}')
    def epoch_tag():
        a('s_mul_i32 s33, s33, 0x9E3779B1\ns_add_u32 s33, s33, 0x85EBCA6B')
    def red3(op, regs, tmp):
        rs = list(regs)
        if len(rs) == 1: return rs[0]
        first = True
        while rs:
            if first:
                if len(rs) >= 3: a(f'v_{op}3_u32 v{tmp}, v{rs[0]}, v{rs[1]}, v{rs[2]}'); rs = rs[3:]
                else: a(f'v_{op}_u32 v{tmp}, v{rs[0]}, v{rs[1]}'); rs = rs[2:]
                first = False
            elif len(rs) >= 2: a(f'v_{op}3_u32 v{tmp}, v{tmp}, v{rs[0]}, v{rs[1]}'); rs = rs[2:]
            else: a(f'v_{op}_u32 v{tmp}, v{tmp}, v{rs[0]}'); rs = rs[1:]
        return tmp
    def vpoll(loads, regs, tmp, sleep=0, first_issued=False, tags=False, dbg=None, first_cnt=0):
        l = lab('vp'); d = lab('vd'); w = lab('vw')
        a('s_mov_b32 s30, 0')
        if first_issued: a(f's_waitcnt vmcnt({first_cnt})\ns_branch {w}')
        a(f'{l}:')
        for x in loads: a(x)
        a('s_add_u32 s30, s30, 1')
        a('s_waitcnt vmcnt(0)')
        if first_issued: a(f'{w}:')
        if dbg is not None and cfg.stamps:
            p, q_, n_ = dbg
            a(f's_mov_b64 s[{64+2*p}:{65+2*p}], s[{64+2*q_}:{65+2*q_}]')
            stamp(q_); a('s_waitcnt lgkmcnt(0)')
            a(f's_add_u32 s{64+2*n_}, s64, s30\ns_mov_b32 s{65+2*n_}, s65')
        if tags:
            m = red3('max', regs, tmp)
            if len(list(regs)) > 1:
                n = red3('min', regs, tmp + 1)
                a(f'v_cmp_ne_u32 vcc, s33, v{m}\nv_cmp_ne_u32 s[34:35], s33, v{n}\ns_or_b64 vcc, vcc, s[34:35]')
            else:
                a(f'v_cmp_ne_u32 vcc, s33, v{m}')
        else:
            m = red3('max', regs, tmp)
            a(f'v_cmp_eq_u32 vcc, -1, v{m}')
        a(f's_cbranch_vccz {d}')
        if sleep: a(f's_sleep {sleep}')
        a(f's_cmp_lt_u32 s30, {LIMIT}\ns_cbranch_scc1 {l}')
        a(f'{d}:')
    def mpoll(items, tmp, first_issued=False):
        l = lab('mp'); d = lab('md')
        a('s_mov_b32 s30, 0')
        if not first_issued:
            for ld, regs in items: a(ld)
        a(f'{l}:')
        a('s_waitcnt vmcnt(0)')
        ms = []
        for k, (ld, regs) in enumerate(items):
            ms.append(red3('max', regs, tmp + k))
        for k, m in enumerate(ms):
            a(f'v_cmp_eq_u32 s[{48+2*k}:{49+2*k}], -1, v{m}')
        n = len(items)
        if n == 1:
            a('s_cmp_eq_u64 s[48:49], 0\ns_cbranch_scc1 ' + d)
        else:
            a('s_or_b64 s[34:35], s[48:49], s[50:51]')
            for k in range(2, n): a(f's_or_b64 s[34:35], s[34:35], s[{48+2*k}:{49+2*k}]')
            a(f's_cbranch_scc0 {d}')
        for k, (ld, regs) in enumerate(items):
            a(f's_mov_b64 exec, s[{48+2*k}:{49+2*k}]')
            a(ld)
        a('s_mov_b64 exec, -1')
        a(f's_add_u32 s30, s30, 1\ns_cmp_lt_u32 s30, {LIMIT}\ns_cbranch_scc1 {l}')
        a('s_waitcnt vmcnt(0)')
        a(f'{d}:')
    def dma_u1(lo, hi, size, RS, sbase, region, setup=True, i0=0, i1=8):
        if setup:
            a('v_bfe_u32 v10, v1, 4, 1\nv_and_b32 v12, 7, v1\nv_xor_b32 v10, v10, v12')
            a('s_and_b32 s27, s4, 4\nv_xor_b32 v10, s27, v10')
            a(f'v_lshrrev_b32 v2, 3, v1\nv_mul_u32_u24 v2, {RS}, v2\nv_xor_b32 v12, 2, v10')
            a('v_lshl_add_u32 v12, v12, 4, v2\nv_lshl_add_u32 v2, v10, 4, v2')
        srd(20, lo, hi, size)
        a(f's_mul_i32 s27, s4, {64*RS}\ns_add_u32 s27, s27, {sbase}')
        if i0: a(f's_add_u32 s27, s27, {8*RS*i0}')
        a(f's_lshl_b32 s28, s4, 13')
        if region + i0: a(f's_add_u32 s28, s28, {region + 1024*i0}')
        for i in range(i0, i1):
            a('s_mov_b32 m0, s28')
            if i < i1-1: a('s_add_u32 s28, s28, 1024')
            a(f'buffer_load_dwordx4 v{12 if i & 1 else 2}, s[20:23], s27 offen {cfg.NT} lds')
            if i < i1-1: a(f's_add_u32 s27, s27, {8*RS}')

    def dma_w(i0, i1, setup=True):
        if setup:
            a('s_and_b32 s6, s4, 1\ns_lshl_b32 s6, s6, 6\ns_and_b32 s7, s4, 4\ns_lshl_b32 s7, s7, 5\ns_or_b32 s6, s6, s7')
            a('v_lshlrev_b32 v2, 4, v1\nv_and_b32 v2, 0x1f0, v2\nv_and_b32 v10, 32, v1\nv_xor_b32 v2, v2, v10\nv_xor_b32 v2, s6, v2\nv_lshl_add_u32 v2, v10, 5, v2')
        srd(20, 's50', 's51', 4096*1024)
        a(f's_lshl_b32 s27, s4, 11\ns_add_u32 s27, s27, s24\ns_add_u32 s27, s27, {16384*i0}')
        a(f's_lshl_b32 s28, s4, 10\ns_add_u32 s28, s28, {8192*i0}')
        for i in range(i0, i1):
            a('s_mov_b32 m0, s28')
            if i < i1-1: a('s_add_u32 s28, s28, 8192')
            a(f'buffer_load_dwordx4 v2, s[20:23], s27 offen {cfg.NT} lds')
            if i < i1-1: a('s_add_u32 s27, s27, 16384')
    a('s_cmp_ge_u32 s2, 256\ns_cbranch_scc1 L_end')
    stamp(0)
    a('v_lshrrev_b32 v1, 6, v0')
    a('s_load_dwordx4 s[12:15], s[0:1], 104')
    a('s_lshr_b32 s3, s2, 3\ns_and_b32 s5, s2, 7')
    a('v_readfirstlane_b32 s4, v1')
    a('v_and_b32 v1, 63, v0')
    if cfg.warm:
        a('s_lshr_b32 s6, s2, 4\ns_xor_b32 s7, s4, 11\ns_or_b32 s6, s6, s7\ns_cbranch_scc1 L_nw')
        a('s_getpc_b64 s[8:9]\nL_pc:\nv_lshlrev_b32 v2, 7, v1')
        a('s_mov_b32 s10, L_end-L_pc\ns_mov_b32 s11, 0x20000\ns_mov_b32 s6, 8192')
        a('buffer_load_dword v4, v2, s[8:11], 0 offen\nbuffer_load_dword v5, v2, s[8:11], s6 offen')
        a('s_endpgm')
        a('L_nw:')
    a('s_cmp_eq_u32 s5, 0\ns_cbranch_scc1 L_hearly')
    a('s_mul_i32 s3, s3, 7\ns_add_u32 s3, s3, s5\ns_sub_u32 s3, s3, 1')
    a('s_cmp_ge_u32 s3, 32\ns_cbranch_scc1 L_stream')
    a('L_hearly:')
    a('s_cmp_ge_u32 s4, 8\ns_cbranch_scc1 L_spare')
    a('s_cmp_eq_u32 s5, 0')
    a('s_cselect_b32 s6, 88, 24')
    a('s_load_dwordx2 s[20:21], s[0:1], s6')
    a('s_mov_b32 s7, 8192\ns_cselect_b32 s7, 6144, s7')
    a('s_cselect_b32 s29, 2, 4')
    a('s_cselect_b32 s24, 5, 6')
    a('s_lshl_b32 s22, s7, 9')
    a('s_lshl_b32 s25, s3, 8')
    a('s_lshr_b32 s26, s3, 1\ns_lshl_b32 s26, s26, 7\ns_and_b32 s27, s3, 1\ns_mul_i32 s27, s27, 256*6144\ns_add_u32 s26, s26, s27')
    a('s_cmp_eq_u32 s5, 0\ns_cselect_b32 s25, s26, s25')
    a('v_bfe_u32 v10, v1, 4, 1\nv_and_b32 v12, 7, v1\nv_xor_b32 v10, v10, v12')
    a('s_and_b32 s27, s4, 4\nv_xor_b32 v10, s27, v10')
    a('v_lshrrev_b32 v2, 3, v1\nv_mul_u32_u24 v2, s7, v2\nv_xor_b32 v12, 2, v10')
    a('v_lshl_add_u32 v12, v12, 4, v2\nv_lshl_add_u32 v2, v10, 4, v2')
    a('s_mov_b32 s23, 0x20000')
    a('s_lshl_b32 s6, s4, s24\ns_mul_i32 s27, s6, s7\ns_add_u32 s27, s27, s25')
    a('s_lshl_b32 s28, s6, 7\ns_lshl_b32 s7, s7, 3')
    a('s_waitcnt lgkmcnt(0)')
    a('L_hdma:')
    a('s_mov_b32 m0, s28\ns_add_u32 s28, s28, 1024')
    a(f'buffer_load_dwordx4 v2, s[20:23], s27 offen {cfg.NT} lds')
    a('s_add_u32 s27, s27, s7\ns_mov_b32 m0, s28\ns_add_u32 s28, s28, 1024')
    a(f'buffer_load_dwordx4 v12, s[20:23], s27 offen {cfg.NT} lds')
    a('s_add_u32 s27, s27, s7\ns_sub_u32 s29, s29, 1\ns_cmp_lg_u32 s29, 0\ns_cbranch_scc1 L_hdma')
    a('s_branch L_helper')
    a('L_stream:')
    a('s_load_dwordx4 s[8:11], s[0:1], 8')
    a('s_sub_u32 s6, s3, 32')
    a('s_and_b32 s24, s6, 15\ns_lshr_b32 s25, s6, 4')
    a('s_mul_i32 s6, s25, 21\ns_sub_u32 s7, s25, 8\ns_max_i32 s7, s7, 0\ns_add_u32 s6, s6, s7')
    a('s_lshl_b32 s6, s6, 13\ns_lshl_b32 s7, s24, 21\ns_add_u32 s6, s6, s7')
    a(f's_mov_b32 s22, {21*8192}\ns_cmp_ge_u32 s25, 8\ns_cselect_b32 s22, {22*8192}, s22')
    a('s_mov_b32 s23, 0x20000')
    a('s_cmp_ge_u32 s4, 4\ns_cbranch_scc1 L_vwave')
    if cfg.prio: a('s_setprio 3')
    a('v_lshrrev_b32 v7, 4, v1')
    a('v_and_b32 v15, 15, v1')
    a('v_lshlrev_b32 v6, 2, v7\nv_xor_b32 v6, v6, v15')
    a('v_lshlrev_b32 v8, 8, v7')
    a('v_lshl_add_u32 v2, v6, 4, v8')
    for t in (1, 2, 3): a(f'v_xor_b32 v{2+t}, {16*t}, v2')
    a(f's_mul_i32 s27, s4, 49152\ns_mul_i32 s28, s4, {KW}')
    a('s_waitcnt lgkmcnt(0)')
    a('s_add_u32 s20, s8, s6\ns_addc_u32 s21, s9, 0')
    a('s_mov_b32 s29, 0')
    a('L_kdma:')
    a('s_mov_b32 m0, s28')
    a('s_add_u32 s28, s28, 4096\ns_add_u32 s29, s29, 1')
    for t in range(4):
        a(f'buffer_load_dwordx4 v{2+t}, s[20:23], s27 offen offset:{1024*t} {cfg.NT} lds')
        if cfg.thS < 63: a(f's_waitcnt vmcnt({cfg.thS})')
    a('s_add_u32 s27, s27, 4096')
    a('s_cmp_lt_u32 s29, 9\ns_cbranch_scc1 L_kdma')
    epoch_load()
    a('v_and_b32 v6, 3, v15\nv_lshlrev_b32 v6, 2, v6\nv_lshrrev_b32 v9, 2, v15\nv_add_u32 v6, v6, v9')
    a('v_lshlrev_b32 v10, 8, v6')
    a('v_lshl_add_u32 v6, v7, 4, v10')
    for gi in range(3):
        for s in range(4):
            r = 96 + 16*gi + 4*s
            a(f'buffer_load_dwordx4 v[{r}:{r+3}], v6, s[20:23], s27 offen offset:{64*s} {cfg.NT}')
            if cfg.thS < 63 and 4*gi + s < 11: a(f's_waitcnt vmcnt({cfg.thS})')
        if gi < 2: a('s_add_u32 s27, s27, 4096')
    srd(16, 's14', 's15', WS_SZ)
    a(f's_lshl_b32 s26, s24, 14\ns_lshl_b32 s6, s25, 10\ns_add_u32 s26, s26, s6\ns_lshl_b32 s6, s4, 8\ns_add_u32 s26, s26, s6\ns_add_u32 s26, s26, {OP}')
    a('v_mov_b32 v156, -1\nv_lshlrev_b32 v157, 2, v1')
    a('buffer_store_dword v156, v157, s[16:19], s26 offen sc1')
    a(f's_and_b32 s7, s24, 7\ns_lshl_b32 s6, s7, 12\ns_lshr_b32 s7, s24, 3\ns_lshl_b32 s7, s7, 11\ns_add_u32 s27, s6, s7\ns_add_u32 s27, s27, {QO}')
    a('v_lshlrev_b32 v12, 4, v1')
    qloads = [f'buffer_load_dwordx4 v[{32+4*k}:{35+4*k}], v12, s[16:19], s27 offen offset:{1024*k} sc1' for k in range(2)]
    a('s_cmp_lg_u32 s4, 0\ns_cbranch_scc1 L_nq1')
    for x in qloads: a(x)
    a('L_nq1:')
    stamp(1)
    a('s_barrier')
    a(f's_mul_i32 s28, s4, {KW}')
    a('v_and_b32 v11, 3, v15\nv_xor_b32 v11, v11, v7')
    a('v_lshl_add_u32 v11, v9, 2, v11')
    a('v_lshl_add_u32 v11, v11, 4, v10\nv_add_u32 v8, s28, v11')
    for s in (1, 2, 3): a(f'v_xor_b32 v{8+s}, {64*s}, v8')
    a(f's_mul_i32 s6, s4, 1536\ns_add_u32 s6, s6, {PREG}')
    a('v_lshrrev_b32 v13, 3, v15\nv_lshlrev_b32 v13, 8, v13')
    a('v_and_b32 v14, 3, v15\nv_lshl_add_u32 v13, v14, 6, v13\nv_lshl_add_u32 v13, v7, 4, v13')
    a('v_bfe_u32 v14, v15, 2, 1\nv_lshl_add_u32 v13, v14, 3, v13\nv_add_u32 v13, s6, v13')
    for u in range(4):
        a(f's_mov_b32 s{36+2*u}, {0x000F000F << (4*u):#x}\ns_mov_b32 s{37+2*u}, {0x000F000F << (4*u):#x}')
    a('s_cmp_lt_u32 s25, 8\ns_cselect_b32 s6, 0xff00ff00, 0\ns_cmp_eq_u32 s4, 3\ns_cselect_b32 s44, s6, 0\ns_cselect_b32 s46, -1, 0\ns_mov_b32 s45, s44\ns_mov_b32 s47, s46')
    a('s_waitcnt lgkmcnt(0)')
    epoch_tag()
    stamp(2)
    a(f'v_mov_b32 v14, {QF}')
    a('s_cmp_lg_u32 s4, 0\ns_cbranch_scc1 L_nq2')
    vpoll(qloads, [33, 35, 37, 39], 160, first_issued=True, tags=True, sleep=cfg.qslp, dbg=(1, 2, 5))
    a(f'v_lshlrev_b32 v12, 3, v1\nv_add_u32 v12, {QL}, v12\nv_mov_b32 v16, 1')
    a('ds_write2_b32 v12, v32, v34 offset0:0 offset1:1\nds_write2_b32 v12, v36, v38 offset0:128 offset1:129')
    a('s_waitcnt lgkmcnt(0)\nds_write_b32 v14, v16')
    a('s_branch L_nq3')
    a('L_nq2:')
    a('s_mov_b32 s30, 0')
    a('L_qspin:')
    a('ds_read_b32 v16, v14\ns_add_u32 s30, s30, 1\ns_waitcnt lgkmcnt(0)')
    a('v_cmp_ne_u32 vcc, 1, v16\ns_cbranch_vccz L_nq3')
    a(f's_sleep 1\ns_cmp_lt_u32 s30, {LIMIT*8}\ns_cbranch_scc1 L_qspin')
    a('L_nq3:')
    a(f'v_and_b32 v12, 3, v15\nv_lshlrev_b32 v12, 8, v12\nv_lshl_add_u32 v12, v7, 4, v12\nv_add_u32 v12, {QL}, v12')
    for k in range(4): a(f'ds_read_b128 v[{16+4*k}:{19+4*k}], v12 offset:{64*k}')
    a('s_waitcnt vmcnt(0) lgkmcnt(0)')
    stamp(3)
    order = [(u, dd) for u in range(4) for dd in range(3)]
    ldsg = [4*dd+u for (u, dd) in order if 4*dd+u < 9]
    def kread(k):
        gi = ldsg[k]; buf = 64 + 16*(k & 1)
        for s in range(4):
            a(f'ds_read_b128 v[{buf+4*s}:{buf+4*s+3}], v{8+s} offset:{4096*gi}')
    kread(0)
    k = 0
    for (u, dd) in order:
        gi = 4*dd + u
        mq = 32 + 16*(u & 1)
        if u == 0 and dd == 0:
            for r in range(16): a(f'v_cndmask_b32 v{mq+r}, 0, v{16+r}, s[36:37]')
        if gi < 9:
            src = 64 + 16*(k & 1)
            if k + 1 < len(ldsg):
                kread(k + 1); a('s_waitcnt lgkmcnt(4)')
            else:
                a('s_waitcnt lgkmcnt(0)')
            k += 1
        else:
            src = 96 + 16*(gi - 9)
        D = 144 + 4*dd
        for s in range(4):
            c = '0' if (u == 0 and s == 0) else f'v[{D}:{D+3}]'
            a(f'v_mfma_f32_16x16x32_bf16 v[{D}:{D+3}], v[{src+4*s}:{src+4*s+3}], v[{mq+4*s}:{mq+4*s+3}], {c}')
            if u < 3 and dd < 2:
                mq2 = 32 + 16*((u+1) & 1)
                for r in (8*dd + 2*s, 8*dd + 2*s + 1):
                    a(f'v_cndmask_b32 v{mq2+r}, 0, v{16+r}, s[{38+2*u}:{39+2*u}]')
    a('v_mov_b32 v160, 0xff800000')
    for r in range(4): a(f'v_cndmask_b32 v{148+r}, v{148+r}, v160, s[44:45]')
    for r in range(4): a(f'v_cndmask_b32 v{152+r}, v{152+r}, v160, s[46:47]')
    a('v_max3_f32 v156, v144, v145, v146\nv_max3_f32 v157, v147, v148, v149')
    a('v_max3_f32 v158, v150, v151, v152\nv_max3_f32 v159, v153, v154, v155')
    a('v_max3_f32 v156, v156, v157, v158\nv_max_f32 v156, v156, v159')
    def xreduce(op, r, t):
        a(f'{op}_dpp v{r}, v{r}, v{r} row_ror:4 row_mask:0xf bank_mask:0xf')
        a(f'{op}_dpp v{r}, v{r}, v{r} row_ror:8 row_mask:0xf bank_mask:0xf')
        a(f'v_mov_b32 v{t}, v{r}\nv_permlane16_swap_b32 v{r}, v{t}\n{op} v{r}, v{r}, v{t}')
        a(f'v_mov_b32 v{t}, v{r}\nv_permlane32_swap_b32 v{r}, v{t}\n{op} v{r}, v{r}, v{t}')
    xreduce('v_max_f32', 156, 157)
    a(f's_mov_b32 s6, {f2u(128**-0.5 * LOG2E)}')
    a('v_mul_f32 v158, s6, v156')
    for r in range(12): a(f'v_fma_f32 v{144+r}, v{144+r}, s6, -v158')
    for r in range(12): a(f'v_exp_f32 v{144+r}, v{144+r}')
    for dd in range(3):
        D = 144 + 4*dd
        a(f'v_cvt_pk_bf16_f32 v{32+2*dd}, v{D}, v{D+1}\nv_cvt_pk_bf16_f32 v{33+2*dd}, v{D+2}, v{D+3}')
        a(f'ds_write_b64 v13, v[{32+2*dd}:{33+2*dd}] offset:{512*dd}')
    a('v_add_f32 v159, v144, v145')
    for r in range(2, 12): a(f'v_add_f32 v159, v159, v{144+r}')
    xreduce('v_add_f32', 159, 157)
    a(f's_lshl_b32 s6, s4, 5\ns_add_u32 s6, s6, {ST}')
    a('v_lshl_add_u32 v14, v1, 3, s6')
    a('s_mov_b64 exec, 15\nds_write_b64 v14, v[158:159]\ns_mov_b64 exec, -1')
    a('s_waitcnt lgkmcnt(0)')
    stamp(4)
    a('s_barrier')
    a(f'v_and_b32 v14, 3, v1\nv_lshlrev_b32 v14, 3, v14\nv_add_u32 v14, {ST}, v14')
    for w in range(4): a(f'ds_read_b64 v[{16+2*w}:{17+2*w}], v14 offset:{32*w}')
    a('v_lshrrev_b32 v2, 2, v1\nv_lshrrev_b32 v3, 4, v1\nv_add_u32 v3, v3, v1\nv_and_b32 v3, 3, v3')
    a('v_lshlrev_b32 v2, 5, v2\nv_lshl_add_u32 v2, v3, 3, v2')
    a(f's_lshl_b32 s6, s4, 9\ns_add_u32 s6, s6, {SCR}\nv_add_u32 v2, s6, v2')
    a('s_waitcnt lgkmcnt(0)')
    a('v_max3_f32 v24, v16, v18, v20\nv_max_f32 v24, v24, v22')
    for w in range(4): a(f'v_sub_f32 v{25+w}, v{16+2*w}, v24')
    for w in range(4): a(f'v_exp_f32 v{25+w}, v{25+w}')
    a('v_mul_f32 v29, v25, v17\nv_fmac_f32 v29, v26, v19\nv_fmac_f32 v29, v27, v21\nv_fmac_f32 v29, v28, v23')
    a('v_log_f32 v30, v29\nv_rcp_f32 v29, v29\nv_mov_b32 v31, s33')
    a('v_add_f32 v30, v30, v24')
    a(f's_lshl_b32 s6, s24, 11\ns_lshl_b32 s7, s25, 7\ns_add_u32 s6, s6, s7\ns_add_u32 s6, s6, {LSE}')
    a('v_lshlrev_b32 v3, 3, v1')
    a('s_cmp_eq_u32 s4, 0\ns_cselect_b32 exec_lo, 0xffff, 0\ns_mov_b32 exec_hi, 0\ns_cbranch_execz L_nlse')
    a('buffer_store_dwordx2 v[30:31], v3, s[16:19], s6 offen sc1')
    a('L_nlse:')
    a('s_mov_b64 exec, -1')
    for w in range(4): a(f'v_mul_f32 v{32+w}, v{25+w}, v29')
    for w in range(4): a(f'v_readlane_b32 s{36+w}, v{32+w}, s4')
    a('v_lshlrev_b32 v3, 2, v1')
    a('s_barrier')
    stamp(6)
    for v in range(8): a(f'ds_read_b64 v[{48+2*v}:{49+2*v}], v2 offset:{2048*v}')
    for v in range(8):
        a(f's_waitcnt lgkmcnt({7-v})')
        w = v >> 1; sp = 36 + (w & ~1)
        mod = 'op_sel_hi:[1,0,1]' if (w & 1) == 0 else 'op_sel:[0,1,0] op_sel_hi:[1,1,1]'
        mod2 = 'op_sel_hi:[1,0]' if (w & 1) == 0 else 'op_sel:[0,1] op_sel_hi:[1,1]'
        if v < 2: a(f'v_pk_mul_f32 v[{40+2*v}:{41+2*v}], v[{48+2*v}:{49+2*v}], s[{sp}:{sp+1}] {mod2}')
        else: a(f'v_pk_fma_f32 v[{40+2*(v&1)}:{41+2*(v&1)}], v[{48+2*v}:{49+2*v}], s[{sp}:{sp+1}], v[{40+2*(v&1)}:{41+2*(v&1)}] {mod}')
    a('v_pk_add_f32 v[40:41], v[40:41], v[42:43]')
    a('v_cvt_pk_bf16_f32 v40, v40, v41')
    a('buffer_store_dword v40, v3, s[16:19], s26 offen sc1')
    stamp(7)
    if cfg.stamps:
        a('s_cmp_lg_u32 s4, 0\ns_cbranch_scc1 L_end')
        stamps_out(8, 0)
    a('s_endpgm')

    a('L_vwave:')
    a('s_sub_u32 s4, s4, 4')
    a('v_lshlrev_b32 v2, 4, v1')
    a(f'v_mov_b32 v16, 0\nv_mov_b32 v17, 0\nv_mov_b32 v18, 0\nv_mov_b32 v19, 0\nv_add_u32 v9, {ZERO}, v2')
    a('s_mov_b32 exec_lo, -1\ns_mov_b32 exec_hi, 3\nds_write_b128 v9, v[16:19]\ns_mov_b64 exec, -1')
    a(f'v_mov_b32 v9, {QF}\nds_write_b32 v9, v16')
    a(f's_mul_i32 s7, s4, 768\ns_add_u32 s7, s7, {PREG}')
    a('v_and_b32 v9, 3, v1\nv_lshlrev_b32 v9, 6, v9\nv_lshrrev_b32 v10, 4, v1\nv_lshl_add_u32 v9, v10, 4, v9\nv_add_u32 v9, s7, v9')
    a(f'v_mov_b32 v11, {ZERO}')
    for x in range(4):
        a(f's_mov_b32 s34, {0x000F000F << (4*x):#x}\ns_mov_b32 s35, s34')
        a(f'v_cndmask_b32 v{3+x}, v11, v9, s[34:35]')
    a('v_and_b32 v7, 15, v1\nv_lshrrev_b32 v8, 2, v7\nv_add_u32 v8, v8, v10\nv_and_b32 v8, 3, v8')
    a('v_lshlrev_b32 v7, 5, v7\nv_lshl_add_u32 v7, v8, 3, v7')
    a(f's_lshl_b32 s7, s4, 11\ns_add_u32 s7, s7, {SCR}\nv_add_u32 v7, s7, v7\nv_add_u32 v8, 1024, v7')
    a('s_mov_b32 s36, 0x05040100\ns_mov_b32 s37, 0x07060302')
    a('s_mul_i32 s27, s4, 24576')
    a('s_waitcnt lgkmcnt(0)')
    a('s_add_u32 s20, s10, s6\ns_addc_u32 s21, s11, 0')
    if cfg.stamps: srd(16, 's14', 's15', WS_SZ)
    a('s_barrier')
    stamp(1)
    for i in range(24):
        r = 72 + 4*i
        a(f'buffer_load_dwordx4 v[{r}:{r+3}], v2, s[20:23], s27 offen offset:{1024*(i&3)} {cfg.NT}')
        if cfg.thV < 63 and cfg.thV <= i < cfg.nth: a(f's_waitcnt vmcnt({cfg.thV})')
        if (i & 3) == 3 and i < 23: a('s_add_u32 s27, s27, 4096')
    stamp(2)
    a('s_barrier')
    stamp(3)
    def pread(t):
        buf = 40 + 16*(t & 1)
        for x in range(4): a(f'ds_read_b128 v[{buf+4*x}:{buf+4*x+3}], v{3+x} offset:{256*t}')
    pread(0); pread(1)
    for t in range(3):
        a(f's_waitcnt vmcnt({16-8*t})')
        if t == 2: stamp(4)
        vb = 72 + 32*t; pb = 40 + 16*(t & 1)
        for j in range(8):
            tb = 24 + 4*(j & 3)
            sel = 's37' if (j & 1) else 's36'
            for tt in range(4):
                a(f'v_perm_b32 v{tb+tt}, v{vb + 4*(2*tt+1) + (j>>1)}, v{vb + 4*(2*tt) + (j>>1)}, {sel}')
            if j == 0: a('s_waitcnt lgkmcnt(4)' if t == 0 else 's_waitcnt lgkmcnt(0)')
            if j > 0:
                jj = j - 1; tb2 = 24 + 4*(jj & 3); acc = 16 + 4*(jj & 1); x = jj >> 1
                c = '0' if (t == 0 and jj < 2) else f'v[{acc}:{acc+3}]'
                a(f'v_mfma_f32_16x16x32_bf16 v[{acc}:{acc+3}], v[{pb+4*x}:{pb+4*x+3}], v[{tb2}:{tb2+3}], {c}')
        a(f'v_mfma_f32_16x16x32_bf16 v[20:23], v[{pb+12}:{pb+15}], v[36:39], v[20:23]')
        if t == 0: pread(2)
    for r in range(4):
        ad = 7 + (r >> 1); o = 128*(r & 1)
        a(f'ds_write2_b32 v{ad}, v{16+r}, v{20+r} offset0:{o} offset1:{o+1}')
    a('s_waitcnt lgkmcnt(0)')
    stamp(5)
    a('s_barrier')
    if cfg.stamps:
        a('s_cmp_lg_u32 s4, 0\ns_cbranch_scc1 L_end')
        stamps_out(6, 8)
    a('s_endpgm')

    a('L_spare:')
    a('s_cmp_lg_u32 s5, 0\ns_cbranch_scc1 L_end')
    a('s_cmp_lg_u32 s4, 8\ns_cbranch_scc1 L_end')
    a('v_mov_b32 v4, -1\nv_mov_b32 v5, -1\nv_mov_b32 v6, -1\nv_mov_b32 v7, -1')
    a(f's_lshl_b32 s6, s3, 10\ns_add_u32 s6, s6, {WOUT}\nv_lshlrev_b32 v2, 4, v1\nv_add_u32 v2, s6, v2')
    a(f's_lshl_b32 s6, s3, 12\ns_add_u32 s6, s6, {MOUT}\nv_lshlrev_b32 v8, 4, v1\nv_add_u32 v8, s6, v8')
    a('s_waitcnt lgkmcnt(0)')
    a('global_store_dwordx4 v2, v[4:7], s[14:15] sc1')
    a('s_cmp_ge_u32 s3, 28\ns_cbranch_scc1 L_sp2')
    for i in range(4): a(f'global_store_dwordx4 v8, v[4:7], s[14:15] offset:{1024*i} sc1')
    a('L_sp2:')
    a('s_waitcnt vmcnt(0)')
    a('s_endpgm')

    AT=136; DD=32; Z=36; T=38; ZT=37; F0=40; F1=72; F2=104
    a('L_helper:')
    epoch_load()
    if cfg.diag is not None: a(f's_load_dword s96, s[14:15], {XID+4}\ns_load_dword s97, s[14:15], {EPO}')
    a('s_load_dwordx2 s[44:45], s[0:1], 0')
    a('s_load_dwordx4 s[48:51], s[0:1], 24')
    a('s_load_dwordx4 s[52:55], s[0:1], 80')
    a('v_lshrrev_b32 v10, 3, v1\nv_and_b32 v11, 3, v1\nv_lshlrev_b32 v11, 1, v11\nv_lshl_add_u32 v10, v10, 3, v11')
    a('v_bfe_u32 v11, v1, 2, 1')
    a('s_lshl_b32 s6, s4, 6\nv_add_u32 v12, s6, v10')
    a('v_lshlrev_b32 v6, 1, v12\nv_lshl_add_u32 v6, v11, 10, v6')
    a(f'v_lshlrev_b32 v9, 2, v12\nv_lshl_add_u32 v9, v11, 11, v9\nv_add_u32 v9, {X1}, v9')
    a(f's_lshr_b32 s6, s4, 2\ns_mul_i32 s6, s6, 576\ns_and_b32 s7, s4, 3\ns_lshl_b32 s7, s7, 7\ns_add_u32 s6, s6, s7\ns_add_u32 s6, s6, {ACT}')
    a('v_mul_u32_u24 v7, 1152, v11\nv_lshl_add_u32 v7, v10, 1, v7\nv_add_u32 v7, s6, v7')
    a('v_lshrrev_b32 v13, 3, v1\nv_lshlrev_b32 v13, 2, v13\nv_lshl_add_u32 v13, v11, 5, v13')
    a(f'v_add_u32 v13, {STAT}, v13')
    a('s_waitcnt lgkmcnt(0)')
    srd(16, 's14', 's15', WS_SZ)
    epoch_tag()
    a('global_load_dword v17, v6, s[52:53]')
    a('global_load_dword v16, v6, s[44:45]')
    a('s_cmp_eq_u32 s5, 0\ns_cbranch_scc1 L_t2')
    a('s_add_u32 s24, s25, 128')
    dma_u1('s48', 's49', 512*8192, 8192, 's24', R1)
    a('s_branch L_h2')
    a('L_t2:')
    a('s_lshr_b32 s26, s3, 1\ns_lshl_b32 s24, s26, 18\ns_and_b32 s6, s3, 1\ns_lshl_b32 s6, s6, 9\ns_add_u32 s24, s24, s6')
    dma_w(8, 8 + cfg.pre)
    a('L_h2:')
    a('v_lshrrev_b32 v10, 4, v1\nv_bfe_u32 v11, v1, 2, 2\nv_lshl_add_u32 v3, v10, 3, v11')
    a('v_bfe_u32 v11, v1, 1, 1\nv_lshl_add_u32 v3, v11, 8, v3\nv_lshlrev_b32 v3, 7, v3')
    a('v_bfe_u32 v12, v1, 3, 2\nv_lshl_add_u32 v12, v11, 2, v12\nv_xor_b32 v12, s4, v12\nv_lshl_add_u32 v3, v12, 4, v3')
    a('v_and_b32 v12, 1, v1\nv_lshl_add_u32 v3, v12, 3, v3')
    a(f'v_lshl_add_u32 v4, v12, 1, v11\nv_mul_u32_u24 v4, 576, v4\nv_lshl_add_u32 v4, v10, 4, v4\nv_add_u32 v4, {ACT}, v4')
    a('v_lshlrev_b32 v5, 3, v0')
    a('s_lshl_b32 s6, s4, 7\nv_lshl_add_u32 v8, v1, 3, s6\nv_lshlrev_b32 v28, 4, v0')
    a(f'v_mov_b32 v18, 0\nv_lshlrev_b32 v10, 2, v1\nv_add_u32 v10, {STAT}, v10\nv_mov_b32 v{T+1}, s33\nv_mov_b32 v{ZT}, s33')
    a('s_mov_b32 exec_lo, -1\ns_mov_b32 exec_hi, 0xffff\nds_write_b32 v10, v18\ns_mov_b64 exec, -1')

    def tr_u1(F, region, steps=8, ad=None):
        if ad is None:
            if region: a(f'v_add_u32 v10, {region}, v3')
            ad = 'v10' if region else 'v3'
        for s in range(steps):
            for hh in range(2):
                a(f'ds_read_b64_tr_b16 v[{F+4*s+2*hh}:{F+4*s+2*hh+1}], {ad} offset:{4096*s + 512*hh}')
    def gemv(Fs, ad='v4', fill=(), off=0, steps=8, Ds=None):
        if isinstance(Fs, int): Fs = [Fs]
        if Ds is None: Ds = [DD]
        fill = list(fill)
        for s in range(steps): a(f'ds_read_b128 v[{AT+4*s}:{AT+4*s+3}], {ad} offset:{64*s+off}')
        per = (len(fill) + steps - 2) // (steps - 1)
        for s in range(steps):
            a(f's_waitcnt lgkmcnt({steps-1-s})')
            for F, D in zip(Fs, Ds):
                c = '0' if s == 0 else f'v[{D}:{D+3}]'
                a(f'v_mfma_f32_16x16x32_bf16 v[{D}:{D+3}], v[{AT+4*s}:{AT+4*s+3}], v[{F+4*s}:{F+4*s+3}], {c}')
            for _ in range(per):
                if fill: a(fill.pop(0))
        for x in fill: a(x)
    def sgemv(Fs, Ds, ad, idx, off=0, fill=(), steps=4, pre=0):
        fill = list(fill)
        for s in range(steps): a(f'ds_read_b128 v[{AT+4*s}:{AT+4*s+3}], {ad} offset:{64*s+off}')
        per = len(fill) // steps
        for s in range(steps):
            a(f's_waitcnt lgkmcnt({steps-1-s})')
            for F, D in zip(Fs, Ds):
                a(f'v_smfmac_f32_16x16x64_bf16 v[{D}:{D+3}], v[{AT+4*s}:{AT+4*s+3}], v[{F+8*s}:{F+8*s+7}], {idx}')
            for _ in range(per):
                if fill: a(fill.pop(0))
        for x in fill: a(x)
    def fold(D=DD, z=Z):
        a(f'v_add_f32_dpp v{z}, v{D+2}, v{D} row_ror:8 row_mask:0xf bank_mask:0x3')
        a(f'v_add_f32_dpp v{z}, v{D+1}, v{D+3} row_ror:8 row_mask:0xf bank_mask:0xc')
    def publish_tag(z, soff):
        a(f's_mov_b64 exec, 0xffff\nbuffer_store_dwordx2 v[{Z}:{Z+1}], v8, s[16:19], {soff} offen sc1\ns_mov_b64 exec, -1')
    def store2(text):
        if not cfg.fast: a(text + ' sc1'); return
        l = lab('fs'); d = lab('fd')
        a(f's_cbranch_scc1 {l}')
        a(text + ' sc1'); a(f's_branch {d}')
        a(f'{l}:'); a(text); a(f'{d}:')
    def unpack(lo, hi, src):
        a(f'v_lshlrev_b32 v{lo}, 16, v{src}\nv_and_b32 v{hi}, 0xffff0000, v{src}')
    def red6(vals, off, TT):
        r01, r23, r45, z = TT
        for r, (e, o) in zip((r01, r23, r45), ((vals[0], vals[1]), (vals[2], vals[3]), (vals[4], vals[5]))):
            a(f'v_add_f32_dpp v{r}, v{e}, v{e} row_ror:8 row_mask:0xf bank_mask:0x3')
        for r, (e, o) in zip((r01, r23, r45), ((vals[0], vals[1]), (vals[2], vals[3]), (vals[4], vals[5]))):
            a(f'v_add_f32_dpp v{r}, v{o}, v{o} row_ror:8 row_mask:0xf bank_mask:0xc')
        a(f'v_permlane16_swap_b32 v{r01}, v{r23}\nv_permlane16_swap_b32 v{r45}, v{z}')
        a(f'v_add_f32 v{r01}, v{r01}, v{r23}\nv_add_f32 v{r45}, v{r45}, v{z}')
        a(f'v_permlane32_swap_b32 v{r01}, v{r45}\nv_add_f32 v{r01}, v{r01}, v{r45}')
        a(f'v_add_f32_dpp v{r01}, v{r01}, v{r01} quad_perm:[1,0,3,2] row_mask:0xf bank_mask:0xf')
        a(f'v_add_f32_dpp v{r01}, v{r01}, v{r01} quad_perm:[2,3,0,1] row_mask:0xf bank_mask:0xf')
        a(f's_mov_b32 exec_lo, 0x11111111\ns_mov_b32 exec_hi, 0x1111\nds_add_f32 v13, v{r01} offset:{off}\ns_mov_b64 exec, -1')

    stamp(1)
    def silu():
        unpack(18, 19, 17)
        a(f's_mov_b32 s6, {f2u(-LOG2E)}')
        a('v_mul_f32 v20, s6, v18\nv_mul_f32 v21, s6, v19\nv_exp_f32 v20, v20\nv_exp_f32 v21, v21')
        a('v_add_f32 v20, 1.0, v20\nv_add_f32 v21, 1.0, v21\nv_rcp_f32 v20, v20\nv_rcp_f32 v21, v21')
        a('v_mul_f32 v18, v18, v20\nv_mul_f32 v19, v19, v21\nv_cvt_pk_bf16_f32 v18, v18, v19')
        a(f'ds_write_b32 v7, v18 offset:{ACTC-ACT}')
        unpack(14, 15, 16)
    a('s_cmp_eq_u32 s5, 0\ns_cbranch_scc1 L_tail')
    mloads = [f'buffer_load_dwordx4 v[{AT+4*k}:{AT+4*k+3}], v28, s[16:19], s{60+k} offen sc1' for k in range(4)]
    for k in range(4): a(f's_mov_b32 s{60+k}, {MODA + 8192*k}')
    for x in mloads: a(x)
    a('s_waitcnt vmcnt(12)')
    stamp(2)
    silu()
    a('v_add_f32 v18, v14, v15\nv_mul_f32 v19, v14, v14\nv_fmac_f32 v19, v15, v15')
    a('s_waitcnt lgkmcnt(0)\ns_barrier')
    red6([18, 19, 18, 19, 18, 19], STAT2 - STAT, (24, 25, 26, 27))
    tr_u1(F0, R0)
    a('s_waitcnt lgkmcnt(0)\ns_barrier')
    stamp(3)
    a('s_lshl_b32 s24, s3, 7\ns_add_u32 s24, s24, 2048')
    if cfg.apre: dma_u1('s54', 's55', 512*6144, 6144, 's24', R0, i1=cfg.apre)
    a(f'v_bfe_u32 v10, v1, 2, 1\nv_lshlrev_b32 v10, 5, v10\nv_add_u32 v10, {STAT2}, v10')
    a('ds_read_b64 v[18:19], v10\ns_waitcnt lgkmcnt(0)')
    a(f's_mov_b32 s6, {f2u(1/512)}\ns_mov_b32 s7, {f2u(1e-5)}')
    a('v_mul_f32 v18, s6, v18\nv_mul_f32 v19, s6, v19\nv_fma_f32 v19, -v18, v18, v19\nv_add_f32 v19, s7, v19\nv_rsq_f32 v19, v19')
    a('v_sub_f32 v20, v14, v18\nv_sub_f32 v21, v15, v18\nv_mul_f32 v20, v20, v19\nv_mul_f32 v21, v21, v19')
    a('v_bfe_u32 v30, v1, 1, 2\nv_lshlrev_b32 v30, 3, v30\nv_bfe_u32 v11, v1, 3, 1\nv_lshl_add_u32 v30, v11, 9, v30\nv_bfe_u32 v11, v1, 4, 1\nv_lshl_add_u32 v30, v11, 8, v30')
    a(f's_lshl_b32 s6, s4, 5\ns_add_u32 s6, s6, {X1}\nv_add_u32 v30, s6, v30')
    a(f'v_lshlrev_b32 v31, 4, v1\nv_add_u32 v29, {X1}, v31\nv_lshrrev_b32 v11, 5, v1\nv_mul_u32_u24 v11, 1536, v11\nv_add_u32 v31, v31, v11')
    vpoll(mloads, range(AT+1, AT+16, 2), 22, first_issued=True, tags=True, sleep=cfg.slp, first_cnt=cfg.apre)
    stamp(4)
    a(f'v_add_f32 v22, v{AT}, v{AT+8}\nv_add_f32 v23, v{AT+2}, v{AT+10}\nv_add_f32 v24, v{AT+4}, v{AT+12}\nv_add_f32 v25, v{AT+6}, v{AT+14}')
    a('v_add_f32 v24, 1.0, v24\nv_add_f32 v25, 1.0, v25\nv_fma_f32 v20, v20, v24, v22\nv_fma_f32 v21, v21, v25, v23')
    a('v_cvt_pk_bf16_f32 v20, v20, v21\nds_write_b32 v7, v20\ns_waitcnt lgkmcnt(0)\ns_barrier')
    stamp(5)
    tr_u1(F1, R1)
    gemv([F0, F1], Ds=[DD, 24])
    a(f'v_add_f32_dpp v{Z}, v{DD+2}, v{DD} row_ror:8 row_mask:0x1 bank_mask:0x3')
    a(f'v_add_f32_dpp v{Z}, v{DD+1}, v{DD+3} row_ror:8 row_mask:0x1 bank_mask:0xc')
    a(f'v_add_f32_dpp v{Z}, v26, v24 row_ror:8 row_mask:0x2 bank_mask:0x3')
    a(f'v_add_f32_dpp v{Z}, v25, v27 row_ror:8 row_mask:0x2 bank_mask:0xc')
    a(f'v_mov_b32_dpp v{T}, v{Z} quad_perm:[1,1,3,3] row_mask:0xf bank_mask:0xf')
    a(f's_mov_b64 exec, 0x55555555')
    a(f'v_cvt_pk_bf16_f32 v{T}, v{Z}, v{T}')
    a(f'ds_write_b64 v30, v[{T}:{T+1}]\ns_mov_b64 exec, -1')
    a('s_waitcnt lgkmcnt(0)\ns_barrier')
    a('s_cmp_lg_u32 s4, 0\ns_cbranch_scc1 L_nqp')
    a(f's_lshr_b32 s6, s3, 2\ns_lshl_b32 s6, s6, 12\ns_and_b32 s7, s3, 3\ns_lshl_b32 s7, s7, 9\ns_add_u32 s6, s6, s7\ns_add_u32 s6, s6, {QO}')
    a('ds_read_b128 v[24:27], v29\ns_waitcnt lgkmcnt(0)')
    a('buffer_store_dwordx4 v[24:27], v31, s[16:19], s6 offen sc1')
    a('L_nqp:')
    stamp(6)
    dma_u1('s54', 's55', 512*6144, 6144, 's24', R0, i0=cfg.apre)
    a('s_waitcnt vmcnt(0)\ns_barrier')
    tr_u1(F0, R0)
    gemv(F0, off=ACTC-ACT); fold()
    a(f's_lshl_b32 s6, s3, 10\ns_add_u32 s6, s6, {MODB}')
    publish_tag(Z, 's6')
    stamp(7)
    if cfg.stamps:
        a('s_cmp_lg_u32 s4, 0\ns_cbranch_scc1 L_end')
        stamps_out(8, 0)
    a('s_endpgm')

    a('L_tail:')
    a(f's_waitcnt vmcnt({cfg.pre})')
    stamp(2)
    silu()
    a('s_load_dwordx8 s[52:59], s[0:1], 48')
    a('s_load_dwordx2 s[46:47], s[0:1], 96')
    if cfg.diag is not None: a('s_waitcnt lgkmcnt(0)\ns_load_dwordx2 s[98:99], s[46:47], 0')
    a('v_bfe_u32 v11, v1, 1, 1\nv_lshlrev_b32 v10, 14, v11\nv_sub_u32 v10, v3, v10')
    a('v_mul_u32_u24 v11, 320, v11\nv_sub_u32 v11, v4, v11\ns_and_b32 s6, s3, 1\ns_mul_i32 s6, s6, 576\nv_add_u32 v11, s6, v11')
    a('s_waitcnt lgkmcnt(0)\ns_barrier')
    tr_u1(F0, R0, 4, 'v10')
    gemv(F0, 'v11', off=ACTC-ACT, steps=4); fold()
    a('s_and_b32 s6, s3, 1\ns_lshl_b32 s6, s6, 14\ns_lshr_b32 s7, s3, 1\ns_lshl_b32 s7, s7, 10\ns_add_u32 s6, s6, s7')
    publish_tag(Z, 's6')
    stamp(3)
    dma_w(8 + cfg.pre, 16, setup=False)
    a('s_barrier')
    dma_w(0, 8, setup=False)
    a('v_lshrrev_b32 v10, 4, v1\nv_bfe_u32 v11, v1, 2, 2\nv_lshl_add_u32 v10, v10, 3, v11\nv_lshlrev_b32 v10, 9, v10')
    a('v_and_b32 v11, 3, v1\nv_lshl_add_u32 v10, v11, 3, v10')
    a('v_bfe_u32 v11, v1, 2, 3\nv_lshlrev_b32 v11, 5, v11\ns_lshl_b32 s6, s4, 6\nv_xor_b32 v11, s6, v11')
    a('v_add_u32 v22, v10, v11\nv_xor_b32 v11, 32, v11\nv_add_u32 v30, v10, v11')
    def tr_w(half):
        for cg, ad in ((0, 22), (1, 30)):
            if half: a(f'v_add_u32 v{10+cg}, {R1}, v{ad}')
            for s_ in range(4):
                for hh in range(2):
                    r = (F0, F1)[cg] + 4*(4*half + s_) + 2*hh
                    a(f'ds_read_b64_tr_b16 v[{r}:{r+1}], v{10+cg if half else ad} offset:{16384*s_ + 2048*hh}')
    a(f's_getreg_b32 s6, hwreg(HW_REG_XCC_ID)\ns_and_b32 s31, s6, 15\nv_mov_b32 v{T}, s31')
    a(f's_lshl_b32 s6, s3, 7\ns_add_u32 s6, s6, {XID}\nv_lshlrev_b32 v10, 3, v1')
    a('s_cmp_eq_u32 s4, 0\ns_cselect_b32 exec_lo, 0xffff, 0\ns_mov_b32 exec_hi, 0\ns_cbranch_execz L_nxid')
    a(f'buffer_store_dwordx2 v[{T}:{T+1}], v10, s[16:19], s6 offen sc1')
    a('L_nxid:')
    a('s_mov_b64 exec, -1')
    a('s_waitcnt vmcnt(8)\ns_barrier')
    stamp(4)
    tr_w(1)
    a('s_waitcnt lgkmcnt(0)\ns_barrier')
    a('s_cmp_ge_u32 s3, 28\ns_cbranch_scc1 L_nom1')
    a('s_lshl_b32 s24, s3, 7')
    dma_u1('s52', 's53', 512*3584, 3584, 's24', R1)
    stamp(5)
    a('s_waitcnt vmcnt(8)\ns_branch L_m1d')
    a('L_nom1:')
    a('s_waitcnt vmcnt(0)')
    a('L_m1d:')
    a('s_barrier')
    tr_w(0)
    a('s_waitcnt lgkmcnt(0)\ns_barrier')
    stamp(7)
    a('s_cmp_ge_u32 s3, 28\ns_cbranch_scc1 L_nom2')
    srd(20, 's56', 's57', 1792*1024)
    a('s_and_b32 s6, s4, 1\ns_lshl_b32 s6, s6, 7\nv_lshlrev_b32 v2, 4, v1\nv_xor_b32 v2, s6, v2')
    a('v_xor_b32 v10, 32, v2\nv_xor_b32 v11, 64, v2\nv_xor_b32 v12, 96, v2')
    a(f's_lshl_b32 s27, s3, 16\ns_lshl_b32 s28, s4, 13\ns_add_u32 s27, s27, s28')
    for hh in range(2):
        a('s_mov_b32 m0, s28')
        for i in range(4): a(f'buffer_load_dwordx4 v{(2,10,11,12)[i]}, s[20:23], s27 offen offset:{1024*i} {cfg.NT} lds')
        if hh == 0: a('s_add_u32 s27, s27, 4096\ns_add_u32 s28, s28, 4096')
    stamp(6)
    if cfg.touch:
        a(f's_lshl_b32 s6, s3, 12\ns_add_u32 s6, s6, {MOUT}\nbuffer_load_dwordx2 v[{DD}:{DD+1}], v5, s[16:19], s6 offen sc1')
    a('v_and_b32 v10, 7, v1\nv_lshlrev_b32 v10, 1, v10')
    a('s_and_b32 s6, s3, 15\ns_lshl_b32 s6, s6, 5\ns_lshl_b32 s7, s4, 2\ns_add_u32 s6, s6, s7')
    a('v_and_b32 v11, 1, v1\nv_lshl_add_u32 v11, v11, 1, s6\nv_bfe_u32 v12, v1, 4, 1\nv_add_u32 v23, v11, v12')
    a('v_lshlrev_b32 v11, 1, v23\nglobal_load_ushort v24, v11, s[58:59]')
    a('s_lshl_b32 s6, s3, 7\ns_lshl_b32 s7, s4, 4\ns_add_u32 s6, s6, s7')
    a('v_add_u32 v11, s6, v10\nglobal_load_ushort v25, v11, s[54:55]')
    a('L_nom2:')
    if cfg.touch:
        a(f's_lshl_b32 s6, s3, 10\ns_add_u32 s6, s6, {WOUT}\nv_lshlrev_b32 v10, 4, v1\nbuffer_load_dword v{DD+2}, v10, s[16:19], s6 offen sc1')
    a(f'v_and_b32 v10, 31, v1\nv_lshlrev_b32 v10, 7, v10\ns_mov_b32 s6, {XID}')
    vpoll([f'buffer_load_dwordx2 v[{AT}:{AT+1}], v10, s[16:19], s6 offen sc1'], [AT+1], None, sleep=cfg.slp, tags=True)
    a(f'v_cmp_ne_u32 vcc, s31, v{AT}\ns_cmp_eq_u64 vcc, 0\ns_cselect_b32 s32, 1, 0')
    a('s_cmp_ge_u32 s3, 28\ns_cbranch_scc1 L_wst')
    a('s_barrier')
    tr_u1(F2, R1)
    a('v_lshrrev_b32 v11, 3, v23\nv_lshlrev_b32 v11, 7, v11\nv_and_b32 v12, 7, v23\nv_lshl_add_u32 v11, v12, 3, v11\nv_bfe_u32 v12, v1, 3, 1\nv_lshl_add_u32 v11, v12, 6, v11')
    a(f's_mov_b32 s63, {MODB + 24*1024}')
    for k in range(3): a(f's_mov_b32 s{60+k}, {MODB + 8192*k}')
    a('v_lshlrev_b32 v24, 16, v24\nv_lshlrev_b32 v25, 16, v25')
    a(f'v_mov_b32 v{AT+15}, 0x3f803f80\nds_write_b32 v7, v{AT+15} offset:{ACTM-ACT+3*TS}')
    stamp(1)
    vpoll([f'buffer_load_dwordx4 v[{AT+4*k}:{AT+4*k+3}], v28, s[16:19], s{60+k} offen sc1' for k in range(3)] +
          [f'buffer_load_dwordx2 v[{AT+12}:{AT+13}], v11, s[16:19], s63 offen sc1'], range(AT+1, AT+14, 2), AT+14, sleep=cfg.slp, tags=True)
    stamp(8)
    a(f'v_mov_b32 v23, v{AT+12}\nv_mov_b32 v16, v{AT}\nv_mov_b32 v17, v{AT+2}')
    a(f'v_add_f32 v18, 1.0, v{AT+8}\nv_add_f32 v19, 1.0, v{AT+10}\nv_cvt_pk_bf16_f32 v{AT+1}, v{AT+4}, v{AT+6}\nv_cvt_pk_bf16_f32 v{AT+3}, v18, v19')
    unpack(18, 19, AT+3); unpack(20, 21, AT+1)
    a(f'ds_write_b32 v7, v{AT+3} offset:{ACTM-ACT+TS}\nds_write_b32 v7, v{AT+1} offset:{ACTM-ACT+2*TS}')
    t = AT + 16
    a(f'v_add_f32 v{t}, v18, v19\nv_mul_f32 v{t+1}, v18, v18\nv_fmac_f32 v{t+1}, v19, v19')
    a(f'v_mul_f32 v{t+2}, v18, v20\nv_fmac_f32 v{t+2}, v19, v21\nv_add_f32 v{t+3}, v20, v21')
    a(f'v_mul_f32 v{t+4}, v20, v20\nv_fmac_f32 v{t+4}, v21, v21')
    red6([t, t+1, t+2, t+3, t+4, t+4], STAT3 - STAT, (t+6, t+7, t+8, t+9))
    a(f'v_bfe_u32 v10, v1, 2, 2\nv_mul_u32_u24 v10, {TS}, v10\nv_add_u32 v10, v10, v4')
    a('s_waitcnt lgkmcnt(0)\ns_barrier')
    gemv(F2, 'v10', off=ACTM-ACT); fold()
    a(f'v_mov_b32 v26, v{Z}\nv_permlane16_swap_b32 v{Z}, v26')
    a(f'v_mov_b32 v27, v{Z}\nv_mov_b32 v28, v26\nv_permlane32_swap_b32 v{Z}, v27\nv_permlane32_swap_b32 v26, v28')
    a('L_wst:')
    if cfg.dirty:
        a(f's_lshl_b32 s6, s3, 15\ns_add_u32 s6, s6, 0xA0000\nv_lshlrev_b32 v10, 4, v0')
        srd(20, 's14', 's15', 0x200000)
        for i in range(cfg.dirty):
            a(f'buffer_store_dwordx4 v[40:43], v10, s[20:23], s6 offen\ns_add_u32 s6, s6, 8192')
    a('s_lshr_b32 s6, s4, 2\ns_lshl_b32 s24, s6, 3\ns_lshr_b32 s7, s26, 1\ns_add_u32 s24, s24, s7')
    a('s_and_b32 s7, s26, 1\ns_lshl_b32 s7, s7, 1\ns_bfe_u32 s28, s4, 0x10001\ns_add_u32 s7, s7, s28')
    a(f's_lshl_b32 s27, s24, 11\ns_lshl_b32 s29, s7, 3\ns_add_u32 s27, s27, s29\ns_add_u32 s27, s27, {LSE}')
    a(f's_lshl_b32 s60, s24, 14\ns_lshl_b32 s29, s7, 8\ns_add_u32 s60, s60, s29\ns_and_b32 s29, s4, 1\ns_lshl_b32 s29, s29, 7\ns_add_u32 s60, s60, s29\ns_add_u32 s60, s60, {OP}')
    a('s_add_u32 s61, s60, 4096')
    a(f's_mul_i32 s6, s6, 1152\ns_and_b32 s29, s4, 3\ns_lshl_b32 s29, s29, 6\ns_add_u32 s6, s6, s29\ns_add_u32 s6, s6, {ACT}')
    a('v_and_b32 v31, 1, v1\nv_mul_u32_u24 v31, 576, v31\nv_bfe_u32 v10, v1, 1, 4\nv_lshl_add_u32 v31, v10, 2, v31\nv_add_u32 v31, s6, v31')
    a('s_mov_b32 s62, 6144\nv_and_b32 v2, 31, v1\nv_lshlrev_b32 v2, 2, v2\nv_lshrrev_b32 v10, 5, v1\nv_mad_u32_u24 v2, v10, s62, v2')
    a(f's_lshl_b32 s29, s3, 10\ns_add_u32 s29, s29, {WOUT}')
    a('v_and_b32 v11, 2, v1\nv_cmp_eq_u32 vcc, 0, v11\nv_mov_b32 v11, 0xeeee\nv_mov_b32 v22, 0x4444\nv_cndmask_b32 v22, v11, v22, vcc')
    for r in range(8): a(f'v_mov_b32 v{DD+r}, 0')
    a('v_bfe_u32 v8, v1, 1, 2\nv_lshlrev_b32 v8, 4, v8\nv_bfe_u32 v11, v1, 4, 1\nv_lshl_add_u32 v8, v11, 6, v8\nv_bfe_u32 v11, v1, 3, 1\nv_lshl_add_u32 v8, v11, 7, v8')
    a('v_lshl_add_u32 v8, v10, 2, v8\ns_lshr_b32 s6, s4, 1\ns_lshl_b32 s6, s6, 8\ns_and_b32 s7, s4, 1\ns_lshl_b32 s7, s7, 3\ns_add_u32 s6, s6, s7\nv_add_u32 v8, s6, v8')
    a(f'v_lshlrev_b32 v10, 7, v1\nv_mov_b32 v{AT}, 0xff800000')
    stamp(9)
    a(f's_mov_b64 exec, {(1 << NCH) - 1:#x}')
    vpoll([f'buffer_load_dwordx2 v[{AT}:{AT+1}], v10, s[16:19], s27 offen sc1'], [AT+1], None, sleep=cfg.slp, tags=True)
    a('s_mov_b64 exec, -1')
    a(f'v_mov_b32 v{AT+1}, v{AT}')
    for r in (1, 2, 4, 8): a(f'v_max_f32_dpp v{AT+1}, v{AT+1}, v{AT+1} row_ror:{r} row_mask:0xf bank_mask:0xf')
    a(f'v_sub_f32 v{AT}, v{AT}, v{AT+1}\nv_exp_f32 v{AT}, v{AT}\nv_mov_b32 v{AT+1}, v{AT}')
    for r in (1, 2, 4, 8): a(f'v_add_f32_dpp v{AT+1}, v{AT+1}, v{AT+1} row_ror:{r} row_mask:0xf bank_mask:0xf')
    a(f'v_rcp_f32 v{AT+1}, v{AT+1}\nv_mul_f32 v{AT}, v{AT}, v{AT+1}')
    a('v_lshrrev_b32 v10, 5, v1\nv_mul_u32_u24 v10, 24, v10')
    for i in range(6):
        a(f'ds_bpermute_b32 v{AT+24+i}, v10, v{AT} offset:{4*i}')
    a('s_waitcnt lgkmcnt(0)')
    wl = [f'buffer_load_dword v{AT+c}, v2, s[16:19], s{60+(c>>2)} offen offset:{1024*(c&3)} sc1' for c in range(6)]
    if cfg.mp & 1: mpoll([(wl[c], [AT+c]) for c in range(6)], AT+12)
    else: vpoll(wl, [AT+c for c in range(6)], AT+12)
    stamp(10)
    acc = AT + 20
    for c in range(6):
        tq = AT + 8 + 2*c
        unpack(tq, tq+1, AT+c)
    for c in range(6):
        tq = AT + 8 + 2*c; wp = AT + 24 + (c & ~1)
        mod = 'op_sel_hi:[1,0,1]' if (c & 1) == 0 else 'op_sel:[0,1,0] op_sel_hi:[1,1,1]'
        mod2 = 'op_sel_hi:[1,0]' if (c & 1) == 0 else 'op_sel:[0,1] op_sel_hi:[1,1]'
        ac = acc + 2*(c & 1)
        if c < 2: a(f'v_pk_mul_f32 v[{ac}:{ac+1}], v[{tq}:{tq+1}], v[{wp}:{wp+1}] {mod2}')
        else: a(f'v_pk_fma_f32 v[{ac}:{ac+1}], v[{tq}:{tq+1}], v[{wp}:{wp+1}], v[{ac}:{ac+1}] {mod}')
    a(f'v_pk_add_f32 v[{acc}:{acc+1}], v[{acc}:{acc+1}], v[{acc+2}:{acc+3}]')
    a(f'v_permlane32_swap_b32 v{acc}, v{acc+1}')
    a(f'v_add_f32 v{acc}, v{acc}, v{acc+1}')
    a(f'v_mov_b32 v{acc+1}, v{acc}\nv_permlane32_swap_b32 v{acc}, v{acc+1}')
    a(f's_mov_b64 exec, 0xffffffff\nv_cvt_pk_bf16_f32 v{acc}, v{acc}, v{acc+1}\nds_write_b32 v31, v{acc}\ns_mov_b64 exec, -1')
    fst(7)
    a('s_waitcnt lgkmcnt(0)\ns_barrier')
    fst(8)
    sgemv([F0, F1], [DD, Z], 'v4', 'v22')
    a(f'v_add_f32_dpp v10, v{DD}, v{DD+2} quad_perm:[0,1,2,3] row_mask:0x1 bank_mask:0xf')
    a(f'v_add_f32_dpp v10, v{DD+1}, v{DD+3} quad_perm:[0,1,2,3] row_mask:0x2 bank_mask:0xf')
    a(f'v_add_f32_dpp v10, v{Z}, v{Z+2} quad_perm:[0,1,2,3] row_mask:0x4 bank_mask:0xf')
    a(f'v_add_f32_dpp v10, v{Z+1}, v{Z+3} quad_perm:[0,1,2,3] row_mask:0x8 bank_mask:0xf')
    a('s_cmp_lg_u32 s32, 0')
    a('v_mov_b32_dpp v11, v10 quad_perm:[1,1,3,3] row_mask:0xf bank_mask:0xf')
    a('s_mov_b32 exec_lo, 0x55555555\ns_mov_b32 exec_hi, 0x55555555')
    a('v_cvt_pk_bf16_f32 v11, v10, v11')
    store2('buffer_store_dword v11, v8, s[16:19], s29 offen')
    a('s_mov_b64 exec, -1')
    stamp(11)
    a('s_cmp_ge_u32 s3, 28\ns_cbranch_scc1 L_hdone')

    a('v_lshrrev_b32 v10, 4, v1\nv_bfe_u32 v11, v1, 2, 2\nv_lshl_add_u32 v10, v10, 3, v11\nv_lshlrev_b32 v10, 10, v10')
    a(f'v_and_b32 v11, 3, v1\nv_lshl_add_u32 v10, v11, 3, v10')
    a('v_bfe_u32 v11, v1, 2, 3\nv_lshlrev_b32 v11, 5, v11\ns_lshl_b32 s6, s4, 7\nv_xor_b32 v11, s6, v11')
    for cg in range(4):
        a(f'v_xor_b32 v12, {32*cg}, v11\nv_add_u32 v{60+cg}, v10, v12')
    for cg in range(4):
        for s in range(2):
            for hh in range(2):
                r = F1 + (cg*2 + s)*4 + 2*hh
                a(f'ds_read_b64_tr_b16 v[{r}:{r+1}], v{60+cg} offset:{32768*s + 4096*hh}')
    a(f's_lshl_b32 s60, s4, 8\ns_add_u32 s60, s60, {WOUT}\ns_add_u32 s61, s60, 4096')
    a('v_and_b32 v59, 15, v1\nv_lshlrev_b32 v59, 4, v59\nv_lshrrev_b32 v58, 4, v1\nv_lshl_add_u32 v59, v58, 13, v59')
    wloads = [f'buffer_load_dwordx4 v[{AT+4*k}:{AT+4*k+3}], v59, s[16:19], s{60+(k>>1)} offen offset:{2048*(k&1)} sc1' for k in range(4)]
    for x in wloads: a(x)
    a(f'v_bfe_u32 v10, v1, 3, 1\nv_lshlrev_b32 v40, 5, v10\nv_add_u32 v40, {STAT}, v40')
    a(f'ds_read_b128 v[68:71], v40 offset:{STAT3-STAT}\nds_read_b32 v30, v40 offset:{STAT3-STAT+16}')
    a('v_bfe_u32 v11, v1, 1, 1\nv_lshl_add_u32 v41, v10, 1, v11\nv_lshlrev_b32 v41, 6, v41\nv_and_b32 v12, 4, v1\nv_add_u32 v41, v41, v12')
    a(f'v_and_b32 v12, 1, v1\nv_lshl_add_u32 v41, v12, 1, v41\ns_lshl_b32 s6, s4, 3\ns_add_u32 s6, s6, {HID}\nv_add_u32 v41, s6, v41')
    a(f'v_lshl_add_u32 v42, v12, 1, v11\nv_lshlrev_b32 v42, 6, v42\nv_and_b32 v45, 48, v1\nv_add_u32 v42, v42, v45\nv_add_u32 v42, {HID}, v42')
    a(f'v_and_b32 v43, 7, v1\nv_mul_u32_u24 v43, 288, v43\nv_add_u32 v43, v43, v45\nv_add_u32 v43, {AS}, v43')
    a('v_bfe_u32 v46, v1, 2, 1\nv_lshl_add_u32 v46, v12, 2, v46\nv_mul_u32_u24 v46, 288, v46\nv_lshl_add_u32 v46, v11, 2, v46\nv_lshrrev_b32 v11, 3, v1\nv_lshl_add_u32 v46, v11, 3, v46')
    a(f's_lshr_b32 s6, s4, 2\ns_mul_i32 s6, s6, 576\ns_and_b32 s7, s4, 3\ns_lshl_b32 s7, s7, 6\ns_add_u32 s6, s6, s7\ns_add_u32 s6, s6, {AS}\nv_add_u32 v46, s6, v46')
    a('v_and_b32 v11, 4, v1\nv_cmp_eq_u32 vcc, 0, v11\nv_mov_b32 v11, 0xeeee\nv_mov_b32 v47, 0x4444\nv_cndmask_b32 v47, v11, v47, vcc')
    for r in range(4): a(f'v_mov_b32 v{DD+r}, 0')
    a('s_and_b32 s6, s3, 15\ns_lshl_b32 s6, s6, 5\ns_lshl_b32 s7, s4, 2\ns_add_u32 s6, s6, s7')
    a('v_and_b32 v11, 1, v1\nv_lshl_add_u32 v11, v11, 1, s6')
    a('v_lshrrev_b32 v12, 1, v1\nv_lshlrev_b32 v44, 12, v12\nv_lshl_add_u32 v44, v11, 3, v44')
    a('v_bfe_u32 v12, v1, 4, 1\nv_add_u32 v11, v11, v12')
    a(f'v_lshlrev_b32 v48, 11, v10\nv_lshl_add_u32 v48, v11, 2, v48\nv_add_u32 v48, {X1}, v48')
    a('v_lshlrev_b32 v49, 10, v10\nv_lshl_add_u32 v49, v11, 1, v49')
    a(f's_add_u32 s20, s14, {MOUT}\ns_addc_u32 s21, s15, 0\ns_mov_b32 s22, {28*4096}\ns_mov_b32 s23, 0x20000')
    a(f's_lshl_b32 s24, s3, 12')
    a(f's_mov_b32 s40, {f2u(1/512)}\ns_mov_b32 s41, {f2u(1e-5)}\ns_mov_b32 s42, {f2u(0.044715)}\ns_mov_b32 s43, {f2u(-2*math.sqrt(2/math.pi)*LOG2E)}')
    a('v_and_b32 v50, 1, v1\nv_lshlrev_b32 v50, 4, v50\nv_mov_b32 v51, 0x3f80\nv_lshlrev_b32 v50, v50, v51\nv_bfe_u32 v51, v1, 2, 2')
    for i in range(4): a(f'v_cmp_eq_u32 vcc, {i}, v51\nv_cndmask_b32 v{64+i}, 0, v50, vcc')
    a('s_waitcnt lgkmcnt(0)')
    a(f's_mov_b32 s44, {f2u(-2/512)}\ns_mov_b32 s45, {f2u(2/512)}\nv_mov_b32 v61, s41')
    a('v_mul_f32 v68, s40, v68\nv_mul_f32 v69, s40, v69\nv_mul_f32 v70, s45, v70\nv_mul_f32 v71, s40, v71\nv_fma_f32 v30, v30, s40, v61')
    if cfg.mp & 2: mpoll([(wloads[k], range(AT+4*k, AT+4*k+4)) for k in range(4)], AT+20, first_issued=True)
    else: vpoll(wloads, [AT+k for k in range(16)], AT+20, first_issued=True)
    stamp(12)
    V = AT + 16
    for k in range(4):
        c0 = '0' if k == 0 else f'v[{V}:{V+3}]'
        a(f'v_mfma_f32_16x16x32_bf16 v[{V}:{V+3}], v[64:67], v[{AT+4*k}:{AT+4*k+3}], {c0}')
    s0, s1 = V, V+1
    x0, x1, a0, a1 = AT+12, AT+13, AT+14, AT+15
    a(f'v_fma_f32 v{x0}, v16, v{s0}, v14\nv_fma_f32 v{x1}, v17, v{s1}, v15')
    a(f'v_mul_f32 v{a0}, v{x0}, v18\nv_mul_f32 v{a1}, v{x1}, v19')
    a(f'v_cvt_pk_bf16_f32 v{AT}, v{a0}, v{a1}\nds_write_b32 v46, v{AT}\nds_write_b64 v9, v[{x0}:{x1}]')
    fst(1)
    t = AT + 20
    a(f'v_add_f32 v{t}, v{x0}, v{x1}\nv_mul_f32 v{t+1}, v{x0}, v{x0}\nv_add_f32 v{t+2}, v{a0}, v{a1}\nv_mul_f32 v{t+3}, v{a0}, v{a0}')
    a(f'v_mul_f32 v{t+4}, v{a0}, v18\nv_mul_f32 v{t+5}, v{a0}, v20')
    a(f'v_fmac_f32 v{t+1}, v{x1}, v{x1}\nv_fmac_f32 v{t+3}, v{a1}, v{a1}\nv_fmac_f32 v{t+4}, v{a1}, v19\nv_fmac_f32 v{t+5}, v{a1}, v21')
    red6([t, t+1, t+2, t+3, t+4, t+5], 0, (t+6, t+7, t+8, t+9))
    fst(2)
    a('s_waitcnt lgkmcnt(0)')
    fst(9)
    a('s_barrier')
    fst(3)
    a('ds_read_b128 v[52:55], v40\nds_read_b64 v[56:57], v40 offset:16')
    fill = [
        'v_mul_f32 v52, s40, v52',
        'v_fma_f32 v53, v53, s40, v61',
        'v_mul_f32 v56, s44, v56',
        'v_fma_f32 v53, -v52, v52, v53',
        'v_mul_f32 v54, s40, v54',
        'v_fma_f32 v56, v52, v69, v56',
        'v_rsq_f32 v53, v53',
        'v_mul_f32 v55, s40, v55',
        'v_mul_f32 v57, s45, v57',
        'v_fma_f32 v54, -v52, v68, v54',
        'v_fma_f32 v55, v52, v56, v55',
        'v_fma_f32 v57, -v52, v70, v57',
        'v_fma_f32 v55, v53, v55, v57',
        'v_fma_f32 v54, v53, v54, v71',
        'v_mul_f32 v52, v52, v53',
        'v_fma_f32 v55, v53, v55, v30',
        'v_fma_f32 v56, -v52, v26, v27',
        'v_fma_f32 v55, -v54, v54, v55',
        'v_fma_f32 v56, -v54, v28, v56',
        'v_rsq_f32 v55, v55',
    ]
    zf = [f'v_mov_b32 v{AT+16+r}, 0' for r in range(16)]
    sgemv([F2], [DD], 'v43', 'v47', fill=fill + zf[:3]); fold()
    a(f'v_mov_b32 v{T}, v{Z}\n{zf[3]}\n{zf[4]}\nv_permlane16_swap_b32 v{Z}, v{T}\nv_add_f32 v{Z}, v{Z}, v{T}')
    fst(4)
    ge = [f'v_fma_f32 v{Z}, v{Z}, v53, v56', f'v_fma_f32 v{Z}, v{Z}, v55, v25', f'v_mul_f32 v{T}, v{Z}, v{Z}', f'v_mul_f32 v{T+1}, s43, v{Z}',
          f'v_fma_f32 v{T}, v{T}, s42, 1.0', f'v_mul_f32 v{T}, v{T}, v{T+1}', f'v_exp_f32 v{T}, v{T}', f'v_add_f32 v{T}, 1.0, v{T}',
          f'v_rcp_f32 v{T}, v{T}', f'v_mul_f32 v{T}, v{T}, v{Z}', f'v_cvt_pk_bf16_f32 v{T}, v{T}, v{T}']
    for x, z_ in zip(ge, zf[5:]): a(x + '\n' + z_)
    a(f's_mov_b64 exec, 0xffff\nds_write_b16 v41, v{T}\ns_mov_b64 exec, -1')
    fst(5)
    a('s_waitcnt lgkmcnt(0)\ns_barrier')
    fst(6)
    a(f'ds_read_b128 v[{AT}:{AT+3}], v42')
    a(f'ds_read_b32 v52, v48')
    a(f's_waitcnt lgkmcnt(1)')
    for cg in range(4):
        ac = AT + 16 + 4*cg; fr = F1 + cg*8
        a(f'v_smfmac_f32_16x16x64_bf16 v[{ac}:{ac+3}], v[{AT}:{AT+3}], v[{fr}:{fr+7}], v22')
    y = AT + 8
    a('s_cmp_lg_u32 s32, 0')
    for cg in range(4):
        ac = AT + 16 + 4*cg
        for r in range(2): a(f'v_add_f32_dpp v{y+r}, v{ac+r}, v{ac+2+r} quad_perm:[0,1,2,3] row_mask:{1 << cg:#x} bank_mask:0xf')
    store2(f'buffer_store_dwordx2 v[{y}:{y+1}], v5, s[20:23], s24 offen')
    stamp(13)
    a('s_cmp_ge_u32 s3, 16\ns_cbranch_scc1 L_hdone')
    fl = [f'buffer_load_dwordx4 v[{AT}:{AT+3}], v44, s[20:23], 0 offen sc1']
    a(fl[0])
    srd(24, 's46', 's47', 2048)
    a('s_waitcnt lgkmcnt(0)\nv_fma_f32 v52, v23, v24, v52')
    if cfg.mp & 4: mpoll([(fl[0], range(AT, AT+4))], AT+8, first_issued=True)
    else: vpoll(fl, [AT+k for k in range(4)], AT+8, first_issued=True)
    stamp(14)
    a(f'v_add_f32_dpp v{Z}, v{AT}, v{AT} row_ror:8 row_mask:0xf bank_mask:0x3')
    a(f'v_add_f32_dpp v{T}, v{AT+2}, v{AT+2} row_ror:8 row_mask:0xf bank_mask:0x3')
    a(f'v_add_f32_dpp v{Z}, v{AT+1}, v{AT+1} row_ror:8 row_mask:0xf bank_mask:0xc')
    a(f'v_add_f32_dpp v{T}, v{AT+3}, v{AT+3} row_ror:8 row_mask:0xf bank_mask:0xc')
    a(f'v_permlane16_swap_b32 v{Z}, v{T}\nv_add_f32 v{Z}, v{Z}, v{T}')
    a(f'v_mov_b32 v{T}, v{Z}\nv_permlane32_swap_b32 v{Z}, v{T}\nv_add_f32 v{Z}, v{Z}, v{T}')
    a(f'v_add_f32_dpp v{Z}, v{Z}, v{Z} quad_perm:[2,3,0,1] row_mask:0xf bank_mask:0xf')
    a(f'v_add_f32_dpp v{Z}, v{Z}, v{Z} row_shl:4 row_mask:0xf bank_mask:0x5')
    a(f'v_fma_f32 v{Z}, v23, v{Z}, v52')
    if cfg.diag is not None:
        a('s_or_b32 s6, s3, s4\ns_cmp_lg_u32 s6, 0\ns_cbranch_scc1 L_ndiag')
        a('s_memrealtime s[94:95]\ns_waitcnt lgkmcnt(0)\ns_sub_u32 s6, s94, s64')
        a(f's_cmp_lt_u32 s6, {cfg.T0}\ns_cbranch_scc1 L_ndiag\ns_cmp_eq_u32 s96, s97\ns_cbranch_scc1 L_ndiag\ns_cmp_eq_u32 s32, {cfg.gate}\ns_cbranch_scc1 L_ndiag')
        a('s_cmp_eq_u32 s98, s99\ns_cbranch_scc1 L_ndiag')
        a(f's_sub_u32 s6, s{64+2*cfg.diag}, s64\nv_cvt_f32_u32 v10, s6\ns_mov_b64 exec, 1\nv_add_f32 v{Z}, v{Z}, v10\ns_mov_b64 exec, -1')
        a('L_ndiag:')
    if cfg.enc:
        a('s_or_b32 s6, s3, s4\ns_cmp_lg_u32 s6, 0\ns_cbranch_scc1 L_nenc')
        a(f's_memrealtime s[94:95]\ns_waitcnt lgkmcnt(0)\ns_sub_u32 s6, s94, s64\ns_sub_u32 s7, s{64+2*cfg.enc}, s64')
        a('v_mov_b32 v10, s6\nv_mov_b32 v11, s7\nv_and_b32 v12, 8, v1\nv_cmp_eq_u32 vcc, 0, v12\nv_cndmask_b32 v10, v11, v10, vcc')
        a('v_and_b32 v11, 1, v1\nv_lshlrev_b32 v11, 1, v11\nv_bfe_u32 v12, v1, 4, 1\nv_add_u32 v11, v11, v12\nv_mul_u32_u24 v11, 3, v11')
        a(f'v_lshrrev_b32 v10, v11, v10\nv_and_b32 v10, 7, v10\nv_cvt_f32_u32 v10, v10\nv_add_f32 v{Z}, v{Z}, v10')
        a('L_nenc:')
    a(f's_mov_b64 exec, 0x03030303')
    a(f'v_cvt_pk_bf16_f32 v{T}, v{Z}, v{Z}')
    a(f'buffer_store_short v{T}, v49, s[24:27], 0 offen')
    a('s_or_b32 s6, s3, s4\ns_cmp_lg_u32 s6, 0\ns_cbranch_scc1 L_noep')
    a(f's_mov_b64 exec, 1\nv_mov_b32 v10, {EPO}\nv_mov_b32 v11, s33\nbuffer_store_dword v11, v10, s[16:19], 0 offen')
    a('L_noep:')
    a('s_mov_b64 exec, -1')
    stamp(15)
    a('L_hdone:')
    if cfg.stamps:
        a(f's_cmp_lg_u32 s4, {cfg.sw}\ns_cbranch_scc1 L_end')
        stamps_out(16, 0)
        a('s_cmp_lg_u32 s2, 0\ns_cbranch_scc1 L_end')
        for n, i in enumerate((1, 4, 7, 8, 9, 10, 11, 12, 13, 14, 15)):
            a(f's_sub_u32 s60, s{64+2*i}, s64\nv_mov_b32 v4, s60\nglobal_store_dword v2, v4, s[12:13] offset:{16+4*n}')
        a('v_mov_b32 v4, s32\nglobal_store_dword v2, v4, s[12:13]')
        a('s_waitcnt vmcnt(0)')
    a('L_end:')
    a('s_endpgm')
    return wrap(a.finalize(), 256, 768, LDS_TOTAL, 168, sgpr=102)

if __name__ == '__main__':
    out = sys.argv[1]
    for o in sys.argv[2:]:
        k, v = o.split('=')
        setattr(cfg, k, eval(v))
    open(out, 'w').write(gen())
```

```python
import sys, math, struct
from asmlib import *
from gen_common import *

class Cfg:
    stamps = False
    NT = 'nt'
    warm = True
    prio = True
    slp = 2
    qslp = 4
    thS = 63
    thV = 63
    pre = 3
    touch = True
    diag = None
    fine = False
    sw = 0
    mp = 2
    enc = 0
    lay = 1
    dirty = 0
    nth = 23
    T0 = 1900
    gate = 0
    apre = 0
    fast = True
cfg = Cfg()

MODA=0; MODB=0x8000; QO=0x10000; XID=0x18000; EPO=0x1A800; WOUT=0x1C000; MOUT=0x24000; OP=0x40000; STMP=0x80000; LSE=0x90000; WS_SZ=0x100000
NCH = 12
KW=36864; PREG=147456; ZERO=153600; ST=154176; QL=154368; QF=155392; SCR=0; LDS_TOTAL=155648
R0=0; R1=65536; ACT=131072; ACTC=133376; ACTM=135680; TS=2336; HID=145024; STAT=145408; STAT2=145472; STAT3=145536; X1=145664; AS=149760
LIMIT = 200000
LOG2E = 1.4426950408889634
def f2u(x): return '0x%08x' % struct.unpack('<I', struct.pack('<f', x))[0]

def gen():
    a = Asm()
    uid = [0]
    def lab(p):
        uid[0] += 1; return f'L_{p}_{uid[0]}'
    def stamp(i):
        if cfg.stamps: a(f's_memrealtime s[{64+2*i}:{65+2*i}]')
    def fst(i):
        if cfg.fine: stamp(i)
    def stamps_out(n, base_slot):
        if not cfg.stamps: return
        a('s_waitcnt lgkmcnt(0)')
        a('s_mov_b64 exec, 1')
        a(f's_lshl_b32 s60, s2, 7\ns_add_u32 s60, s60, {STMP + base_slot*8}')
        a('v_mov_b32 v2, 0')
        for i in range(n):
            a(f'v_mov_b32 v4, s{64+2*i}\nv_mov_b32 v5, s{65+2*i}')
            a(f'buffer_store_dwordx2 v[4:5], v2, s[16:19], s60 offen offset:{8*i}')
        a('s_waitcnt vmcnt(0)')
    def srd(d, lo, hi, size):
        a(f's_mov_b32 s{d}, {lo}\ns_mov_b32 s{d+1}, {hi}\ns_mov_b32 s{d+2}, {size}\ns_mov_b32 s{d+3}, 0x20000')
    def epoch_load():
        a(f's_load_dword s33, s[14:15], {EPO}')
    def epoch_tag():
        a('s_mul_i32 s33, s33, 0x9E3779B1\ns_add_u32 s33, s33, 0x85EBCA6B')
    def red3(op, regs, tmp):
        rs = list(regs)
        if len(rs) == 1: return rs[0]
        first = True
        while rs:
            if first:
                if len(rs) >= 3: a(f'v_{op}3_u32 v{tmp}, v{rs[0]}, v{rs[1]}, v{rs[2]}'); rs = rs[3:]
                else: a(f'v_{op}_u32 v{tmp}, v{rs[0]}, v{rs[1]}'); rs = rs[2:]
                first = False
            elif len(rs) >= 2: a(f'v_{op}3_u32 v{tmp}, v{tmp}, v{rs[0]}, v{rs[1]}'); rs = rs[2:]
            else: a(f'v_{op}_u32 v{tmp}, v{tmp}, v{rs[0]}'); rs = rs[1:]
        return tmp
    def vpoll(loads, regs, tmp, sleep=0, first_issued=False, tags=False, dbg=None, first_cnt=0):
        l = lab('vp'); d = lab('vd'); w = lab('vw')
        a('s_mov_b32 s30, 0')
        if first_issued: a(f's_waitcnt vmcnt({first_cnt})\ns_branch {w}')
        a(f'{l}:')
        for x in loads: a(x)
        a('s_add_u32 s30, s30, 1')
        a('s_waitcnt vmcnt(0)')
        if first_issued: a(f'{w}:')
        if dbg is not None and cfg.stamps:
            p, q_, n_ = dbg
            a(f's_mov_b64 s[{64+2*p}:{65+2*p}], s[{64+2*q_}:{65+2*q_}]')
            stamp(q_); a('s_waitcnt lgkmcnt(0)')
            a(f's_add_u32 s{64+2*n_}, s64, s30\ns_mov_b32 s{65+2*n_}, s65')
        if tags:
            m = red3('max', regs, tmp)
            if len(list(regs)) > 1:
                n = red3('min', regs, tmp + 1)
                a(f'v_cmp_ne_u32 vcc, s33, v{m}\nv_cmp_ne_u32 s[34:35], s33, v{n}\ns_or_b64 vcc, vcc, s[34:35]')
            else:
                a(f'v_cmp_ne_u32 vcc, s33, v{m}')
        else:
            m = red3('max', regs, tmp)
            a(f'v_cmp_eq_u32 vcc, -1, v{m}')
        a(f's_cbranch_vccz {d}')
        if sleep: a(f's_sleep {sleep}')
        a(f's_cmp_lt_u32 s30, {LIMIT}\ns_cbranch_scc1 {l}')
        a(f'{d}:')
    def mpoll(items, tmp, first_issued=False):
        l = lab('mp'); d = lab('md')
        a('s_mov_b32 s30, 0')
        if not first_issued:
            for ld, regs in items: a(ld)
        a(f'{l}:')
        a('s_waitcnt vmcnt(0)')
        ms = []
        for k, (ld, regs) in enumerate(items):
            ms.append(red3('max', regs, tmp + k))
        for k, m in enumerate(ms):
            a(f'v_cmp_eq_u32 s[{48+2*k}:{49+2*k}], -1, v{m}')
        n = len(items)
        if n == 1:
            a('s_cmp_eq_u64 s[48:49], 0\ns_cbranch_scc1 ' + d)
        else:
            a('s_or_b64 s[34:35], s[48:49], s[50:51]')
            for k in range(2, n): a(f's_or_b64 s[34:35], s[34:35], s[{48+2*k}:{49+2*k}]')
            a(f's_cbranch_scc0 {d}')
        for k, (ld, regs) in enumerate(items):
            a(f's_mov_b64 exec, s[{48+2*k}:{49+2*k}]')
            a(ld)
        a('s_mov_b64 exec, -1')
        a(f's_add_u32 s30, s30, 1\ns_cmp_lt_u32 s30, {LIMIT}\ns_cbranch_scc1 {l}')
        a('s_waitcnt vmcnt(0)')
        a(f'{d}:')
    def dma_u1(lo, hi, size, RS, sbase, region, setup=True, i0=0, i1=8):
        if setup:
            a('v_bfe_u32 v10, v1, 4, 1\nv_and_b32 v12, 7, v1\nv_xor_b32 v10, v10, v12')
            a('s_and_b32 s27, s4, 4\nv_xor_b32 v10, s27, v10')
            a(f'v_lshrrev_b32 v2, 3, v1\nv_mul_u32_u24 v2, {RS}, v2\nv_xor_b32 v12, 2, v10')
            a('v_lshl_add_u32 v12, v12, 4, v2\nv_lshl_add_u32 v2, v10, 4, v2')
        srd(20, lo, hi, size)
        a(f's_mul_i32 s27, s4, {64*RS}\ns_add_u32 s27, s27, {sbase}')
        if i0: a(f's_add_u32 s27, s27, {8*RS*i0}')
        a(f's_lshl_b32 s28, s4, 13')
        if region + i0: a(f's_add_u32 s28, s28, {region + 1024*i0}')
        for i in range(i0, i1):
            a('s_mov_b32 m0, s28')
            if i < i1-1: a('s_add_u32 s28, s28, 1024')
            a(f'buffer_load_dwordx4 v{12 if i & 1 else 2}, s[20:23], s27 offen {cfg.NT} lds')
            if i < i1-1: a(f's_add_u32 s27, s27, {8*RS}')

    def dma_w(i0, i1, setup=True):
        if setup:
            a('s_and_b32 s6, s4, 1\ns_lshl_b32 s6, s6, 6\ns_and_b32 s7, s4, 4\ns_lshl_b32 s7, s7, 5\ns_or_b32 s6, s6, s7')
            a('v_lshlrev_b32 v2, 4, v1\nv_and_b32 v2, 0x1f0, v2\nv_and_b32 v10, 32, v1\nv_xor_b32 v2, v2, v10\nv_xor_b32 v2, s6, v2\nv_lshl_add_u32 v2, v10, 5, v2')
        srd(20, 's50', 's51', 4096*1024)
        a(f's_lshl_b32 s27, s4, 11\ns_add_u32 s27, s27, s24\ns_add_u32 s27, s27, {16384*i0}')
        a(f's_lshl_b32 s28, s4, 10\ns_add_u32 s28, s28, {8192*i0}')
        for i in range(i0, i1):
            a('s_mov_b32 m0, s28')
            if i < i1-1: a('s_add_u32 s28, s28, 8192')
            a(f'buffer_load_dwordx4 v2, s[20:23], s27 offen {cfg.NT} lds')
            if i < i1-1: a('s_add_u32 s27, s27, 16384')
    a('s_cmp_ge_u32 s2, 256\ns_cbranch_scc1 L_end')
    stamp(0)
    a('v_lshrrev_b32 v1, 6, v0')
    a('s_load_dwordx4 s[8:11], s[0:1], 8')
    a('s_load_dwordx4 s[12:15], s[0:1], 104')
    a('s_lshr_b32 s3, s2, 3\ns_and_b32 s5, s2, 7')
    a('v_readfirstlane_b32 s4, v1')
    a('v_and_b32 v1, 63, v0')
    a('s_cmp_eq_u32 s5, 0\ns_cbranch_scc1 L_hearly')
    a('s_mul_i32 s3, s3, 7\ns_add_u32 s3, s3, s5\ns_sub_u32 s3, s3, 1')
    a('s_cmp_lt_u32 s3, 32\ns_cbranch_scc1 L_hearly')
    a('L_stream:')
    a('s_sub_u32 s6, s3, 32')
    a('s_and_b32 s24, s6, 15\ns_lshr_b32 s25, s6, 4')
    a('s_mul_i32 s6, s25, 21\ns_sub_u32 s7, s25, 8\ns_max_i32 s7, s7, 0\ns_add_u32 s6, s6, s7')
    a('s_lshl_b32 s6, s6, 13\ns_lshl_b32 s7, s24, 21\ns_add_u32 s6, s6, s7')
    a(f's_mov_b32 s22, {21*8192}\ns_cmp_ge_u32 s25, 8\ns_cselect_b32 s22, {22*8192}, s22')
    a('s_mov_b32 s23, 0x20000')
    a('s_cmp_ge_u32 s4, 4\ns_cbranch_scc1 L_vwave')
    if cfg.prio: a('s_setprio 3')
    a('v_lshrrev_b32 v7, 4, v1')
    a('v_and_b32 v15, 15, v1')
    a('v_lshlrev_b32 v6, 2, v7\nv_xor_b32 v6, v6, v15')
    a('v_lshlrev_b32 v8, 8, v7')
    a('v_lshl_add_u32 v2, v6, 4, v8')
    for t in (1, 2, 3): a(f'v_xor_b32 v{2+t}, {16*t}, v2')
    a(f's_mul_i32 s27, s4, 49152\ns_mul_i32 s28, s4, {KW}')
    a('s_waitcnt lgkmcnt(0)')
    a('s_add_u32 s20, s8, s6\ns_addc_u32 s21, s9, 0')
    a('s_mov_b32 s29, 0')
    stamp(5)
    a('L_kdma:')
    a('s_mov_b32 m0, s28')
    a('s_add_u32 s28, s28, 4096\ns_add_u32 s29, s29, 1')
    for t in range(4):
        a(f'buffer_load_dwordx4 v{2+t}, s[20:23], s27 offen offset:{1024*t} {cfg.NT} lds')
        if cfg.thS < 63: a(f's_waitcnt vmcnt({cfg.thS})')
    a('s_add_u32 s27, s27, 4096')
    a('s_cmp_lt_u32 s29, 9\ns_cbranch_scc1 L_kdma')
    epoch_load()
    a('v_and_b32 v6, 3, v15\nv_lshlrev_b32 v6, 2, v6\nv_lshrrev_b32 v9, 2, v15\nv_add_u32 v6, v6, v9')
    a('v_lshlrev_b32 v10, 8, v6')
    a('v_lshl_add_u32 v6, v7, 4, v10')
    for gi in range(3):
        for s in range(4):
            r = 96 + 16*gi + 4*s
            a(f'buffer_load_dwordx4 v[{r}:{r+3}], v6, s[20:23], s27 offen offset:{64*s} {cfg.NT}')
            if cfg.thS < 63 and 4*gi + s < 11: a(f's_waitcnt vmcnt({cfg.thS})')
        if gi < 2: a('s_add_u32 s27, s27, 4096')
    srd(16, 's14', 's15', WS_SZ)
    a(f's_lshl_b32 s26, s24, 14\ns_lshl_b32 s6, s25, 10\ns_add_u32 s26, s26, s6\ns_lshl_b32 s6, s4, 8\ns_add_u32 s26, s26, s6\ns_add_u32 s26, s26, {OP}')
    a('v_mov_b32 v156, -1\nv_lshlrev_b32 v157, 2, v1')
    a('buffer_store_dword v156, v157, s[16:19], s26 offen sc1')
    a(f's_and_b32 s7, s24, 7\ns_lshl_b32 s6, s7, 12\ns_lshr_b32 s7, s24, 3\ns_lshl_b32 s7, s7, 11\ns_add_u32 s27, s6, s7\ns_add_u32 s27, s27, {QO}')
    a('v_lshlrev_b32 v12, 4, v1')
    qloads = [f'buffer_load_dwordx4 v[{32+4*k}:{35+4*k}], v12, s[16:19], s27 offen offset:{1024*k} sc1' for k in range(2)]
    a('s_cmp_lg_u32 s4, 0\ns_cbranch_scc1 L_nq1')
    for x in qloads: a(x)
    a('L_nq1:')
    stamp(1)
    a('s_barrier')
    a(f's_mul_i32 s28, s4, {KW}')
    a('v_and_b32 v11, 3, v15\nv_xor_b32 v11, v11, v7')
    a('v_lshl_add_u32 v11, v9, 2, v11')
    a('v_lshl_add_u32 v11, v11, 4, v10\nv_add_u32 v8, s28, v11')
    for s in (1, 2, 3): a(f'v_xor_b32 v{8+s}, {64*s}, v8')
    a(f's_mul_i32 s6, s4, 1536\ns_add_u32 s6, s6, {PREG}')
    a('v_lshrrev_b32 v13, 3, v15\nv_lshlrev_b32 v13, 8, v13')
    a('v_and_b32 v14, 3, v15\nv_lshl_add_u32 v13, v14, 6, v13\nv_lshl_add_u32 v13, v7, 4, v13')
    a('v_bfe_u32 v14, v15, 2, 1\nv_lshl_add_u32 v13, v14, 3, v13\nv_add_u32 v13, s6, v13')
    for u in range(4):
        a(f's_mov_b32 s{36+2*u}, {0x000F000F << (4*u):#x}\ns_mov_b32 s{37+2*u}, {0x000F000F << (4*u):#x}')
    a('s_cmp_lt_u32 s25, 8\ns_cselect_b32 s6, 0xff00ff00, 0\ns_cmp_eq_u32 s4, 3\ns_cselect_b32 s44, s6, 0\ns_cselect_b32 s46, -1, 0\ns_mov_b32 s45, s44\ns_mov_b32 s47, s46')
    a('s_waitcnt lgkmcnt(0)')
    epoch_tag()
    stamp(2)
    a(f'v_mov_b32 v14, {QF}')
    a('s_cmp_lg_u32 s4, 0\ns_cbranch_scc1 L_nq2')
    vpoll(qloads, [33, 35, 37, 39], 160, first_issued=True, tags=True, sleep=cfg.qslp, dbg=(1, 2, 15))
    a(f'v_lshlrev_b32 v12, 3, v1\nv_add_u32 v12, {QL}, v12\nv_mov_b32 v16, 1')
    a('ds_write2_b32 v12, v32, v34 offset0:0 offset1:1\nds_write2_b32 v12, v36, v38 offset0:128 offset1:129')
    a('s_waitcnt lgkmcnt(0)\nds_write_b32 v14, v16')
    a('s_branch L_nq3')
    a('L_nq2:')
    a('s_mov_b32 s30, 0')
    a('L_qspin:')
    a('ds_read_b32 v16, v14\ns_add_u32 s30, s30, 1\ns_waitcnt lgkmcnt(0)')
    a('v_cmp_ne_u32 vcc, 1, v16\ns_cbranch_vccz L_nq3')
    a(f's_sleep 1\ns_cmp_lt_u32 s30, {LIMIT*8}\ns_cbranch_scc1 L_qspin')
    a('L_nq3:')
    a(f'v_and_b32 v12, 3, v15\nv_lshlrev_b32 v12, 8, v12\nv_lshl_add_u32 v12, v7, 4, v12\nv_add_u32 v12, {QL}, v12')
    for k in range(4): a(f'ds_read_b128 v[{16+4*k}:{19+4*k}], v12 offset:{64*k}')
    a('s_waitcnt vmcnt(0) lgkmcnt(0)')
    stamp(3)
    order = [(u, dd) for u in range(4) for dd in range(3)]
    ldsg = [4*dd+u for (u, dd) in order if 4*dd+u < 9]
    def kread(k):
        gi = ldsg[k]; buf = 64 + 16*(k & 1)
        for s in range(4):
            a(f'ds_read_b128 v[{buf+4*s}:{buf+4*s+3}], v{8+s} offset:{4096*gi}')
    kread(0)
    k = 0
    for (u, dd) in order:
        gi = 4*dd + u
        mq = 32 + 16*(u & 1)
        if u == 0 and dd == 0:
            for r in range(16): a(f'v_cndmask_b32 v{mq+r}, 0, v{16+r}, s[36:37]')
        if gi < 9:
            src = 64 + 16*(k & 1)
            if k + 1 < len(ldsg):
                kread(k + 1); a('s_waitcnt lgkmcnt(4)')
            else:
                a('s_waitcnt lgkmcnt(0)')
            k += 1
        else:
            src = 96 + 16*(gi - 9)
        D = 144 + 4*dd
        for s in range(4):
            c = '0' if (u == 0 and s == 0) else f'v[{D}:{D+3}]'
            a(f'v_mfma_f32_16x16x32_bf16 v[{D}:{D+3}], v[{src+4*s}:{src+4*s+3}], v[{mq+4*s}:{mq+4*s+3}], {c}')
            if u < 3 and dd < 2:
                mq2 = 32 + 16*((u+1) & 1)
                for r in (8*dd + 2*s, 8*dd + 2*s + 1):
                    a(f'v_cndmask_b32 v{mq2+r}, 0, v{16+r}, s[{38+2*u}:{39+2*u}]')
    a('v_mov_b32 v160, 0xff800000')
    for r in range(4): a(f'v_cndmask_b32 v{148+r}, v{148+r}, v160, s[44:45]')
    for r in range(4): a(f'v_cndmask_b32 v{152+r}, v{152+r}, v160, s[46:47]')
    a('v_max3_f32 v156, v144, v145, v146\nv_max3_f32 v157, v147, v148, v149')
    a('v_max3_f32 v158, v150, v151, v152\nv_max3_f32 v159, v153, v154, v155')
    a('v_max3_f32 v156, v156, v157, v158\nv_max_f32 v156, v156, v159')
    def xreduce(op, r, t):
        a(f'{op}_dpp v{r}, v{r}, v{r} row_ror:4 row_mask:0xf bank_mask:0xf')
        a(f'{op}_dpp v{r}, v{r}, v{r} row_ror:8 row_mask:0xf bank_mask:0xf')
        a(f'v_mov_b32 v{t}, v{r}\nv_permlane16_swap_b32 v{r}, v{t}\n{op} v{r}, v{r}, v{t}')
        a(f'v_mov_b32 v{t}, v{r}\nv_permlane32_swap_b32 v{r}, v{t}\n{op} v{r}, v{r}, v{t}')
    xreduce('v_max_f32', 156, 157)
    a(f's_mov_b32 s6, {f2u(128**-0.5 * LOG2E)}')
    a('v_mul_f32 v158, s6, v156')
    for r in range(12): a(f'v_fma_f32 v{144+r}, v{144+r}, s6, -v158')
    for r in range(12): a(f'v_exp_f32 v{144+r}, v{144+r}')
    for dd in range(3):
        D = 144 + 4*dd
        a(f'v_cvt_pk_bf16_f32 v{32+2*dd}, v{D}, v{D+1}\nv_cvt_pk_bf16_f32 v{33+2*dd}, v{D+2}, v{D+3}')
        a(f'ds_write_b64 v13, v[{32+2*dd}:{33+2*dd}] offset:{512*dd}')
    a('v_add_f32 v159, v144, v145')
    for r in range(2, 12): a(f'v_add_f32 v159, v159, v{144+r}')
    xreduce('v_add_f32', 159, 157)
    a(f's_lshl_b32 s6, s4, 5\ns_add_u32 s6, s6, {ST}')
    a('v_lshl_add_u32 v14, v1, 3, s6')
    a('s_mov_b64 exec, 15\nds_write_b64 v14, v[158:159]\ns_mov_b64 exec, -1')
    a('s_waitcnt lgkmcnt(0)')
    stamp(4)
    a('s_barrier')
    a(f'v_and_b32 v14, 3, v1\nv_lshlrev_b32 v14, 3, v14\nv_add_u32 v14, {ST}, v14')
    for w in range(4): a(f'ds_read_b64 v[{16+2*w}:{17+2*w}], v14 offset:{32*w}')
    a('v_lshrrev_b32 v2, 2, v1\nv_lshrrev_b32 v3, 4, v1\nv_add_u32 v3, v3, v1\nv_and_b32 v3, 3, v3')
    a('v_lshlrev_b32 v2, 5, v2\nv_lshl_add_u32 v2, v3, 3, v2')
    a(f's_lshl_b32 s6, s4, 9\ns_add_u32 s6, s6, {SCR}\nv_add_u32 v2, s6, v2')
    a('s_waitcnt lgkmcnt(0)')
    a('v_max3_f32 v24, v16, v18, v20\nv_max_f32 v24, v24, v22')
    for w in range(4): a(f'v_sub_f32 v{25+w}, v{16+2*w}, v24')
    for w in range(4): a(f'v_exp_f32 v{25+w}, v{25+w}')
    a('v_mul_f32 v29, v25, v17\nv_fmac_f32 v29, v26, v19\nv_fmac_f32 v29, v27, v21\nv_fmac_f32 v29, v28, v23')
    a('v_log_f32 v30, v29\nv_rcp_f32 v29, v29\nv_mov_b32 v31, s33')
    a('v_add_f32 v30, v30, v24')
    a(f's_lshl_b32 s6, s24, 11\ns_lshl_b32 s7, s25, 7\ns_add_u32 s6, s6, s7\ns_add_u32 s6, s6, {LSE}')
    a('v_lshlrev_b32 v3, 3, v1')
    a('s_cmp_eq_u32 s4, 0\ns_cselect_b32 exec_lo, 0xffff, 0\ns_mov_b32 exec_hi, 0\ns_cbranch_execz L_nlse')
    a('buffer_store_dwordx2 v[30:31], v3, s[16:19], s6 offen sc1')
    a('L_nlse:')
    a('s_mov_b64 exec, -1')
    for w in range(4): a(f'v_mul_f32 v{32+w}, v{25+w}, v29')
    for w in range(4): a(f'v_readlane_b32 s{36+w}, v{32+w}, s4')
    a('v_lshlrev_b32 v3, 2, v1')
    a('s_barrier')
    stamp(6)
    for v in range(8): a(f'ds_read_b64 v[{48+2*v}:{49+2*v}], v2 offset:{2048*v}')
    for v in range(8):
        a(f's_waitcnt lgkmcnt({7-v})')
        w = v >> 1; sp = 36 + (w & ~1)
        mod = 'op_sel_hi:[1,0,1]' if (w & 1) == 0 else 'op_sel:[0,1,0] op_sel_hi:[1,1,1]'
        mod2 = 'op_sel_hi:[1,0]' if (w & 1) == 0 else 'op_sel:[0,1] op_sel_hi:[1,1]'
        if v < 2: a(f'v_pk_mul_f32 v[{40+2*v}:{41+2*v}], v[{48+2*v}:{49+2*v}], s[{sp}:{sp+1}] {mod2}')
        else: a(f'v_pk_fma_f32 v[{40+2*(v&1)}:{41+2*(v&1)}], v[{48+2*v}:{49+2*v}], s[{sp}:{sp+1}], v[{40+2*(v&1)}:{41+2*(v&1)}] {mod}')
    a('v_pk_add_f32 v[40:41], v[40:41], v[42:43]')
    a('v_cvt_pk_bf16_f32 v40, v40, v41')
    a('buffer_store_dword v40, v3, s[16:19], s26 offen sc1')
    stamp(7)
    if cfg.stamps:
        a('s_cmp_lg_u32 s4, 0\ns_cbranch_scc1 L_end')
        stamps_out(8, 0)
    a('s_endpgm')

    a('L_vwave:')
    a('s_sub_u32 s4, s4, 4')
    a('v_lshlrev_b32 v2, 4, v1')
    a(f'v_mov_b32 v16, 0\nv_mov_b32 v17, 0\nv_mov_b32 v18, 0\nv_mov_b32 v19, 0\nv_add_u32 v9, {ZERO}, v2')
    a('s_mov_b32 exec_lo, -1\ns_mov_b32 exec_hi, 3\nds_write_b128 v9, v[16:19]\ns_mov_b64 exec, -1')
    a(f'v_mov_b32 v9, {QF}\nds_write_b32 v9, v16')
    a(f's_mul_i32 s7, s4, 768\ns_add_u32 s7, s7, {PREG}')
    a('v_and_b32 v9, 3, v1\nv_lshlrev_b32 v9, 6, v9\nv_lshrrev_b32 v10, 4, v1\nv_lshl_add_u32 v9, v10, 4, v9\nv_add_u32 v9, s7, v9')
    a(f'v_mov_b32 v11, {ZERO}')
    for x in range(4):
        a(f's_mov_b32 s34, {0x000F000F << (4*x):#x}\ns_mov_b32 s35, s34')
        a(f'v_cndmask_b32 v{3+x}, v11, v9, s[34:35]')
    a('v_and_b32 v7, 15, v1\nv_lshrrev_b32 v8, 2, v7\nv_add_u32 v8, v8, v10\nv_and_b32 v8, 3, v8')
    a('v_lshlrev_b32 v7, 5, v7\nv_lshl_add_u32 v7, v8, 3, v7')
    a(f's_lshl_b32 s7, s4, 11\ns_add_u32 s7, s7, {SCR}\nv_add_u32 v7, s7, v7\nv_add_u32 v8, 1024, v7')
    a('s_mov_b32 s36, 0x05040100\ns_mov_b32 s37, 0x07060302')
    a('s_mul_i32 s27, s4, 24576')
    a('s_waitcnt lgkmcnt(0)')
    a('s_add_u32 s20, s10, s6\ns_addc_u32 s21, s11, 0')
    if cfg.stamps: srd(16, 's14', 's15', WS_SZ)
    a('s_barrier')
    stamp(1)
    for i in range(24):
        r = 72 + 4*i
        a(f'buffer_load_dwordx4 v[{r}:{r+3}], v2, s[20:23], s27 offen offset:{1024*(i&3)} {cfg.NT}')
        if cfg.thV < 63 and cfg.thV <= i < cfg.nth: a(f's_waitcnt vmcnt({cfg.thV})')
        if (i & 3) == 3 and i < 23: a('s_add_u32 s27, s27, 4096')
    stamp(2)
    a('s_barrier')
    stamp(3)
    def pread(t):
        buf = 40 + 16*(t & 1)
        for x in range(4): a(f'ds_read_b128 v[{buf+4*x}:{buf+4*x+3}], v{3+x} offset:{256*t}')
    pread(0); pread(1)
    for t in range(3):
        a(f's_waitcnt vmcnt({16-8*t})')
        if t == 2: stamp(4)
        vb = 72 + 32*t; pb = 40 + 16*(t & 1)
        for j in range(8):
            tb = 24 + 4*(j & 3)
            sel = 's37' if (j & 1) else 's36'
            for tt in range(4):
                a(f'v_perm_b32 v{tb+tt}, v{vb + 4*(2*tt+1) + (j>>1)}, v{vb + 4*(2*tt) + (j>>1)}, {sel}')
            if j == 0: a('s_waitcnt lgkmcnt(4)' if t == 0 else 's_waitcnt lgkmcnt(0)')
            if j > 0:
                jj = j - 1; tb2 = 24 + 4*(jj & 3); acc = 16 + 4*(jj & 1); x = jj >> 1
                c = '0' if (t == 0 and jj < 2) else f'v[{acc}:{acc+3}]'
                a(f'v_mfma_f32_16x16x32_bf16 v[{acc}:{acc+3}], v[{pb+4*x}:{pb+4*x+3}], v[{tb2}:{tb2+3}], {c}')
        a(f'v_mfma_f32_16x16x32_bf16 v[20:23], v[{pb+12}:{pb+15}], v[36:39], v[20:23]')
        if t == 0: pread(2)
    for r in range(4):
        ad = 7 + (r >> 1); o = 128*(r & 1)
        a(f'ds_write2_b32 v{ad}, v{16+r}, v{20+r} offset0:{o} offset1:{o+1}')
    a('s_waitcnt lgkmcnt(0)')
    stamp(5)
    a('s_barrier')
    if cfg.stamps:
        a('s_cmp_lg_u32 s4, 0\ns_cbranch_scc1 L_end')
        stamps_out(6, 8)
    a('s_endpgm')

    a('L_spare:')
    a('s_cmp_lg_u32 s5, 0\ns_cbranch_scc1 L_end')
    a('s_cmp_lg_u32 s4, 8\ns_cbranch_scc1 L_end')
    a('v_mov_b32 v4, -1\nv_mov_b32 v5, -1\nv_mov_b32 v6, -1\nv_mov_b32 v7, -1')
    a(f's_lshl_b32 s6, s3, 10\ns_add_u32 s6, s6, {WOUT}\nv_lshlrev_b32 v2, 4, v1\nv_add_u32 v2, s6, v2')
    a(f's_lshl_b32 s6, s3, 12\ns_add_u32 s6, s6, {MOUT}\nv_lshlrev_b32 v8, 4, v1\nv_add_u32 v8, s6, v8')
    a('s_waitcnt lgkmcnt(0)')
    a('global_store_dwordx4 v2, v[4:7], s[14:15] sc1')
    a('s_cmp_ge_u32 s3, 28\ns_cbranch_scc1 L_sp2')
    for i in range(4): a(f'global_store_dwordx4 v8, v[4:7], s[14:15] offset:{1024*i} sc1')
    a('L_sp2:')
    a('s_waitcnt vmcnt(0)')
    a('s_endpgm')

    AT=136; DD=32; Z=36; T=38; ZT=37; F0=40; F1=72; F2=104
    a('L_hearly:')
    a('s_cmp_lt_u32 s4, 8\ns_cbranch_scc1 L_hm')
    if cfg.warm:
        a('s_lshr_b32 s6, s2, 4\ns_xor_b32 s7, s4, 11\ns_or_b32 s6, s6, s7\ns_cbranch_scc1 L_spare')
        a('s_getpc_b64 s[36:37]\nL_pc:\ns_sub_u32 s36, s36, L_pc-L_stream\ns_subb_u32 s37, s37, 0\nv_lshlrev_b32 v2, 7, v1')
        a('s_mov_b32 s38, L_end-L_stream\ns_mov_b32 s39, 0x20000\ns_mov_b32 s6, 8192')
        a('s_waitcnt lgkmcnt(0)') if False else None
        a('buffer_load_dword v4, v2, s[36:39], 0 offen\nbuffer_load_dword v5, v2, s[36:39], s6 offen')
        a('s_endpgm')
    else:
        a('s_branch L_spare')
    a('L_hm:')
    a('s_cmp_eq_u32 s5, 0')
    a('s_cselect_b32 s6, 88, 24')
    a('s_load_dwordx2 s[20:21], s[0:1], s6')
    a('s_mov_b32 s7, 8192\ns_cselect_b32 s7, 6144, s7')
    a('s_cselect_b32 s29, 2, 4')
    a('s_cselect_b32 s24, 5, 6')
    a('s_lshl_b32 s22, s7, 9')
    a('s_lshl_b32 s25, s3, 8')
    a('s_lshr_b32 s26, s3, 1\ns_lshl_b32 s26, s26, 7\ns_and_b32 s27, s3, 1\ns_mul_i32 s27, s27, 256*6144\ns_add_u32 s26, s26, s27')
    a('s_cmp_eq_u32 s5, 0\ns_cselect_b32 s25, s26, s25')
    a('v_bfe_u32 v10, v1, 4, 1\nv_and_b32 v12, 7, v1\nv_xor_b32 v10, v10, v12')
    a('s_and_b32 s27, s4, 4\nv_xor_b32 v10, s27, v10')
    a('v_lshrrev_b32 v2, 3, v1\nv_mul_u32_u24 v2, s7, v2\nv_xor_b32 v12, 2, v10')
    a('v_lshl_add_u32 v12, v12, 4, v2\nv_lshl_add_u32 v2, v10, 4, v2')
    a('s_mov_b32 s23, 0x20000')
    a('s_lshl_b32 s6, s4, s24\ns_mul_i32 s27, s6, s7\ns_add_u32 s27, s27, s25')
    a('s_lshl_b32 s28, s6, 7\ns_lshl_b32 s7, s7, 3')
    a('s_waitcnt lgkmcnt(0)')
    a('L_hdma:')
    a('s_mov_b32 m0, s28\ns_add_u32 s28, s28, 1024')
    a(f'buffer_load_dwordx4 v2, s[20:23], s27 offen {cfg.NT} lds')
    a('s_add_u32 s27, s27, s7\ns_mov_b32 m0, s28\ns_add_u32 s28, s28, 1024')
    a(f'buffer_load_dwordx4 v12, s[20:23], s27 offen {cfg.NT} lds')
    a('s_add_u32 s27, s27, s7\ns_sub_u32 s29, s29, 1\ns_cmp_lg_u32 s29, 0\ns_cbranch_scc1 L_hdma')
    a('L_helper:')
    epoch_load()
    if cfg.diag is not None: a(f's_load_dword s96, s[14:15], {XID+4}\ns_load_dword s97, s[14:15], {EPO}')
    a('s_load_dwordx2 s[44:45], s[0:1], 0')
    a('s_load_dwordx4 s[48:51], s[0:1], 24')
    a('s_load_dwordx4 s[52:55], s[0:1], 80')
    a('v_lshrrev_b32 v10, 3, v1\nv_and_b32 v11, 3, v1\nv_lshlrev_b32 v11, 1, v11\nv_lshl_add_u32 v10, v10, 3, v11')
    a('v_bfe_u32 v11, v1, 2, 1')
    a('s_lshl_b32 s6, s4, 6\nv_add_u32 v12, s6, v10')
    a('v_lshlrev_b32 v6, 1, v12\nv_lshl_add_u32 v6, v11, 10, v6')
    a(f'v_lshlrev_b32 v9, 2, v12\nv_lshl_add_u32 v9, v11, 11, v9\nv_add_u32 v9, {X1}, v9')
    a(f's_lshr_b32 s6, s4, 2\ns_mul_i32 s6, s6, 576\ns_and_b32 s7, s4, 3\ns_lshl_b32 s7, s7, 7\ns_add_u32 s6, s6, s7\ns_add_u32 s6, s6, {ACT}')
    a('v_mul_u32_u24 v7, 1152, v11\nv_lshl_add_u32 v7, v10, 1, v7\nv_add_u32 v7, s6, v7')
    a('v_lshrrev_b32 v13, 3, v1\nv_lshlrev_b32 v13, 2, v13\nv_lshl_add_u32 v13, v11, 5, v13')
    a(f'v_add_u32 v13, {STAT}, v13')
    a('s_waitcnt lgkmcnt(0)')
    srd(16, 's14', 's15', WS_SZ)
    epoch_tag()
    a('global_load_dword v17, v6, s[52:53]')
    a('global_load_dword v16, v6, s[44:45]')
    a('s_cmp_eq_u32 s5, 0\ns_cbranch_scc1 L_t2')
    a('s_add_u32 s24, s25, 128')
    dma_u1('s48', 's49', 512*8192, 8192, 's24', R1)
    a('s_branch L_h2')
    a('L_t2:')
    a('s_lshr_b32 s26, s3, 1\ns_lshl_b32 s24, s26, 18\ns_and_b32 s6, s3, 1\ns_lshl_b32 s6, s6, 9\ns_add_u32 s24, s24, s6')
    dma_w(8, 8 + cfg.pre)
    a('L_h2:')
    a('v_lshrrev_b32 v10, 4, v1\nv_bfe_u32 v11, v1, 2, 2\nv_lshl_add_u32 v3, v10, 3, v11')
    a('v_bfe_u32 v11, v1, 1, 1\nv_lshl_add_u32 v3, v11, 8, v3\nv_lshlrev_b32 v3, 7, v3')
    a('v_bfe_u32 v12, v1, 3, 2\nv_lshl_add_u32 v12, v11, 2, v12\nv_xor_b32 v12, s4, v12\nv_lshl_add_u32 v3, v12, 4, v3')
    a('v_and_b32 v12, 1, v1\nv_lshl_add_u32 v3, v12, 3, v3')
    a(f'v_lshl_add_u32 v4, v12, 1, v11\nv_mul_u32_u24 v4, 576, v4\nv_lshl_add_u32 v4, v10, 4, v4\nv_add_u32 v4, {ACT}, v4')
    a('v_lshlrev_b32 v5, 3, v0')
    a('s_lshl_b32 s6, s4, 7\nv_lshl_add_u32 v8, v1, 3, s6\nv_lshlrev_b32 v28, 4, v0')
    a(f'v_mov_b32 v18, 0\nv_lshlrev_b32 v10, 2, v1\nv_add_u32 v10, {STAT}, v10\nv_mov_b32 v{T+1}, s33\nv_mov_b32 v{ZT}, s33')
    a('s_mov_b32 exec_lo, -1\ns_mov_b32 exec_hi, 0xffff\nds_write_b32 v10, v18\ns_mov_b64 exec, -1')

    def tr_u1(F, region, steps=8, ad=None):
        if ad is None:
            if region: a(f'v_add_u32 v10, {region}, v3')
            ad = 'v10' if region else 'v3'
        for s in range(steps):
            for hh in range(2):
                a(f'ds_read_b64_tr_b16 v[{F+4*s+2*hh}:{F+4*s+2*hh+1}], {ad} offset:{4096*s + 512*hh}')
    def gemv(Fs, ad='v4', fill=(), off=0, steps=8, Ds=None):
        if isinstance(Fs, int): Fs = [Fs]
        if Ds is None: Ds = [DD]
        fill = list(fill)
        for s in range(steps): a(f'ds_read_b128 v[{AT+4*s}:{AT+4*s+3}], {ad} offset:{64*s+off}')
        per = (len(fill) + steps - 2) // (steps - 1)
        for s in range(steps):
            a(f's_waitcnt lgkmcnt({steps-1-s})')
            for F, D in zip(Fs, Ds):
                c = '0' if s == 0 else f'v[{D}:{D+3}]'
                a(f'v_mfma_f32_16x16x32_bf16 v[{D}:{D+3}], v[{AT+4*s}:{AT+4*s+3}], v[{F+4*s}:{F+4*s+3}], {c}')
            for _ in range(per):
                if fill: a(fill.pop(0))
        for x in fill: a(x)
    def sgemv(Fs, Ds, ad, idx, off=0, fill=(), steps=4, pre=0):
        fill = list(fill)
        for s in range(steps): a(f'ds_read_b128 v[{AT+4*s}:{AT+4*s+3}], {ad} offset:{64*s+off}')
        per = len(fill) // steps
        for s in range(steps):
            a(f's_waitcnt lgkmcnt({steps-1-s})')
            for F, D in zip(Fs, Ds):
                a(f'v_smfmac_f32_16x16x64_bf16 v[{D}:{D+3}], v[{AT+4*s}:{AT+4*s+3}], v[{F+8*s}:{F+8*s+7}], {idx}')
            for _ in range(per):
                if fill: a(fill.pop(0))
        for x in fill: a(x)
    def fold(D=DD, z=Z):
        a(f'v_add_f32_dpp v{z}, v{D+2}, v{D} row_ror:8 row_mask:0xf bank_mask:0x3')
        a(f'v_add_f32_dpp v{z}, v{D+1}, v{D+3} row_ror:8 row_mask:0xf bank_mask:0xc')
    def publish_tag(z, soff):
        a(f's_mov_b64 exec, 0xffff\nbuffer_store_dwordx2 v[{Z}:{Z+1}], v8, s[16:19], {soff} offen sc1\ns_mov_b64 exec, -1')
    def store2(text):
        if not cfg.fast: a(text + ' sc1'); return
        l = lab('fs'); d = lab('fd')
        a(f's_cbranch_scc1 {l}')
        a(text + ' sc1'); a(f's_branch {d}')
        a(f'{l}:'); a(text); a(f'{d}:')
    def unpack(lo, hi, src):
        a(f'v_lshlrev_b32 v{lo}, 16, v{src}\nv_and_b32 v{hi}, 0xffff0000, v{src}')
    def red6(vals, off, TT):
        r01, r23, r45, z = TT
        for r, (e, o) in zip((r01, r23, r45), ((vals[0], vals[1]), (vals[2], vals[3]), (vals[4], vals[5]))):
            a(f'v_add_f32_dpp v{r}, v{e}, v{e} row_ror:8 row_mask:0xf bank_mask:0x3')
        for r, (e, o) in zip((r01, r23, r45), ((vals[0], vals[1]), (vals[2], vals[3]), (vals[4], vals[5]))):
            a(f'v_add_f32_dpp v{r}, v{o}, v{o} row_ror:8 row_mask:0xf bank_mask:0xc')
        a(f'v_permlane16_swap_b32 v{r01}, v{r23}\nv_permlane16_swap_b32 v{r45}, v{z}')
        a(f'v_add_f32 v{r01}, v{r01}, v{r23}\nv_add_f32 v{r45}, v{r45}, v{z}')
        a(f'v_permlane32_swap_b32 v{r01}, v{r45}\nv_add_f32 v{r01}, v{r01}, v{r45}')
        a(f'v_add_f32_dpp v{r01}, v{r01}, v{r01} quad_perm:[1,0,3,2] row_mask:0xf bank_mask:0xf')
        a(f'v_add_f32_dpp v{r01}, v{r01}, v{r01} quad_perm:[2,3,0,1] row_mask:0xf bank_mask:0xf')
        a(f's_mov_b32 exec_lo, 0x11111111\ns_mov_b32 exec_hi, 0x1111\nds_add_f32 v13, v{r01} offset:{off}\ns_mov_b64 exec, -1')

    stamp(1)
    def silu():
        unpack(18, 19, 17)
        a(f's_mov_b32 s6, {f2u(-LOG2E)}')
        a('v_mul_f32 v20, s6, v18\nv_mul_f32 v21, s6, v19\nv_exp_f32 v20, v20\nv_exp_f32 v21, v21')
        a('v_add_f32 v20, 1.0, v20\nv_add_f32 v21, 1.0, v21\nv_rcp_f32 v20, v20\nv_rcp_f32 v21, v21')
        a('v_mul_f32 v18, v18, v20\nv_mul_f32 v19, v19, v21\nv_cvt_pk_bf16_f32 v18, v18, v19')
        a(f'ds_write_b32 v7, v18 offset:{ACTC-ACT}')
        unpack(14, 15, 16)
    a('s_cmp_eq_u32 s5, 0\ns_cbranch_scc1 L_tail')
    mloads = [f'buffer_load_dwordx4 v[{AT+4*k}:{AT+4*k+3}], v28, s[16:19], s{60+k} offen sc1' for k in range(4)]
    for k in range(4): a(f's_mov_b32 s{60+k}, {MODA + 8192*k}')
    for x in mloads: a(x)
    a('s_waitcnt vmcnt(12)')
    stamp(2)
    silu()
    a('v_add_f32 v18, v14, v15\nv_mul_f32 v19, v14, v14\nv_fmac_f32 v19, v15, v15')
    a('s_waitcnt lgkmcnt(0)\ns_barrier')
    red6([18, 19, 18, 19, 18, 19], STAT2 - STAT, (24, 25, 26, 27))
    tr_u1(F0, R0)
    a('s_waitcnt lgkmcnt(0)\ns_barrier')
    stamp(3)
    a('s_lshl_b32 s24, s3, 7\ns_add_u32 s24, s24, 2048')
    if cfg.apre: dma_u1('s54', 's55', 512*6144, 6144, 's24', R0, i1=cfg.apre)
    a(f'v_bfe_u32 v10, v1, 2, 1\nv_lshlrev_b32 v10, 5, v10\nv_add_u32 v10, {STAT2}, v10')
    a('ds_read_b64 v[18:19], v10\ns_waitcnt lgkmcnt(0)')
    a(f's_mov_b32 s6, {f2u(1/512)}\ns_mov_b32 s7, {f2u(1e-5)}')
    a('v_mul_f32 v18, s6, v18\nv_mul_f32 v19, s6, v19\nv_fma_f32 v19, -v18, v18, v19\nv_add_f32 v19, s7, v19\nv_rsq_f32 v19, v19')
    a('v_sub_f32 v20, v14, v18\nv_sub_f32 v21, v15, v18\nv_mul_f32 v20, v20, v19\nv_mul_f32 v21, v21, v19')
    a('v_bfe_u32 v30, v1, 1, 2\nv_lshlrev_b32 v30, 3, v30\nv_bfe_u32 v11, v1, 3, 1\nv_lshl_add_u32 v30, v11, 9, v30\nv_bfe_u32 v11, v1, 4, 1\nv_lshl_add_u32 v30, v11, 8, v30')
    a(f's_lshl_b32 s6, s4, 5\ns_add_u32 s6, s6, {X1}\nv_add_u32 v30, s6, v30')
    a(f'v_lshlrev_b32 v31, 4, v1\nv_add_u32 v29, {X1}, v31\nv_lshrrev_b32 v11, 5, v1\nv_mul_u32_u24 v11, 1536, v11\nv_add_u32 v31, v31, v11')
    vpoll(mloads, range(AT+1, AT+16, 2), 22, first_issued=True, tags=True, sleep=cfg.slp, first_cnt=cfg.apre)
    stamp(4)
    a(f'v_add_f32 v22, v{AT}, v{AT+8}\nv_add_f32 v23, v{AT+2}, v{AT+10}\nv_add_f32 v24, v{AT+4}, v{AT+12}\nv_add_f32 v25, v{AT+6}, v{AT+14}')
    a('v_add_f32 v24, 1.0, v24\nv_add_f32 v25, 1.0, v25\nv_fma_f32 v20, v20, v24, v22\nv_fma_f32 v21, v21, v25, v23')
    a('v_cvt_pk_bf16_f32 v20, v20, v21\nds_write_b32 v7, v20\ns_waitcnt lgkmcnt(0)\ns_barrier')
    stamp(5)
    tr_u1(F1, R1)
    gemv([F0, F1], Ds=[DD, 24])
    a(f'v_add_f32_dpp v{Z}, v{DD+2}, v{DD} row_ror:8 row_mask:0x1 bank_mask:0x3')
    a(f'v_add_f32_dpp v{Z}, v{DD+1}, v{DD+3} row_ror:8 row_mask:0x1 bank_mask:0xc')
    a(f'v_add_f32_dpp v{Z}, v26, v24 row_ror:8 row_mask:0x2 bank_mask:0x3')
    a(f'v_add_f32_dpp v{Z}, v25, v27 row_ror:8 row_mask:0x2 bank_mask:0xc')
    a(f'v_mov_b32_dpp v{T}, v{Z} quad_perm:[1,1,3,3] row_mask:0xf bank_mask:0xf')
    a(f's_mov_b64 exec, 0x55555555')
    a(f'v_cvt_pk_bf16_f32 v{T}, v{Z}, v{T}')
    a(f'ds_write_b64 v30, v[{T}:{T+1}]\ns_mov_b64 exec, -1')
    a('s_waitcnt lgkmcnt(0)\ns_barrier')
    a('s_cmp_lg_u32 s4, 0\ns_cbranch_scc1 L_nqp')
    a(f's_lshr_b32 s6, s3, 2\ns_lshl_b32 s6, s6, 12\ns_and_b32 s7, s3, 3\ns_lshl_b32 s7, s7, 9\ns_add_u32 s6, s6, s7\ns_add_u32 s6, s6, {QO}')
    a('ds_read_b128 v[24:27], v29\ns_waitcnt lgkmcnt(0)')
    a('buffer_store_dwordx4 v[24:27], v31, s[16:19], s6 offen sc1')
    a('L_nqp:')
    stamp(6)
    dma_u1('s54', 's55', 512*6144, 6144, 's24', R0, i0=cfg.apre)
    a('s_waitcnt vmcnt(0)\ns_barrier')
    tr_u1(F0, R0)
    gemv(F0, off=ACTC-ACT); fold()
    a(f's_lshl_b32 s6, s3, 10\ns_add_u32 s6, s6, {MODB}')
    publish_tag(Z, 's6')
    stamp(7)
    if cfg.stamps:
        a('s_cmp_lg_u32 s4, 0\ns_cbranch_scc1 L_end')
        stamps_out(8, 0)
    a('s_endpgm')

    a('L_tail:')
    a(f's_waitcnt vmcnt({cfg.pre})')
    stamp(2)
    silu()
    a('s_load_dwordx8 s[52:59], s[0:1], 48')
    a('s_load_dwordx2 s[46:47], s[0:1], 96')
    if cfg.diag is not None: a('s_waitcnt lgkmcnt(0)\ns_load_dwordx2 s[98:99], s[46:47], 0')
    a('v_bfe_u32 v11, v1, 1, 1\nv_lshlrev_b32 v10, 14, v11\nv_sub_u32 v10, v3, v10')
    a('v_mul_u32_u24 v11, 320, v11\nv_sub_u32 v11, v4, v11\ns_and_b32 s6, s3, 1\ns_mul_i32 s6, s6, 576\nv_add_u32 v11, s6, v11')
    a('s_waitcnt lgkmcnt(0)\ns_barrier')
    tr_u1(F0, R0, 4, 'v10')
    gemv(F0, 'v11', off=ACTC-ACT, steps=4); fold()
    a('s_and_b32 s6, s3, 1\ns_lshl_b32 s6, s6, 14\ns_lshr_b32 s7, s3, 1\ns_lshl_b32 s7, s7, 10\ns_add_u32 s6, s6, s7')
    publish_tag(Z, 's6')
    stamp(3)
    dma_w(8 + cfg.pre, 16, setup=False)
    a('s_barrier')
    dma_w(0, 8, setup=False)
    a('v_lshrrev_b32 v10, 4, v1\nv_bfe_u32 v11, v1, 2, 2\nv_lshl_add_u32 v10, v10, 3, v11\nv_lshlrev_b32 v10, 9, v10')
    a('v_and_b32 v11, 3, v1\nv_lshl_add_u32 v10, v11, 3, v10')
    a('v_bfe_u32 v11, v1, 2, 3\nv_lshlrev_b32 v11, 5, v11\ns_lshl_b32 s6, s4, 6\nv_xor_b32 v11, s6, v11')
    a('v_add_u32 v22, v10, v11\nv_xor_b32 v11, 32, v11\nv_add_u32 v30, v10, v11')
    def tr_w(half):
        for cg, ad in ((0, 22), (1, 30)):
            if half: a(f'v_add_u32 v{10+cg}, {R1}, v{ad}')
            for s_ in range(4):
                for hh in range(2):
                    r = (F0, F1)[cg] + 4*(4*half + s_) + 2*hh
                    a(f'ds_read_b64_tr_b16 v[{r}:{r+1}], v{10+cg if half else ad} offset:{16384*s_ + 2048*hh}')
    a(f's_getreg_b32 s6, hwreg(HW_REG_XCC_ID)\ns_and_b32 s31, s6, 15\nv_mov_b32 v{T}, s31')
    a(f's_lshl_b32 s6, s3, 7\ns_add_u32 s6, s6, {XID}\nv_lshlrev_b32 v10, 3, v1')
    a('s_cmp_eq_u32 s4, 0\ns_cselect_b32 exec_lo, 0xffff, 0\ns_mov_b32 exec_hi, 0\ns_cbranch_execz L_nxid')
    a(f'buffer_store_dwordx2 v[{T}:{T+1}], v10, s[16:19], s6 offen sc1')
    a('L_nxid:')
    a('s_mov_b64 exec, -1')
    a('s_waitcnt vmcnt(8)\ns_barrier')
    stamp(4)
    tr_w(1)
    a('s_waitcnt lgkmcnt(0)\ns_barrier')
    a('s_cmp_ge_u32 s3, 28\ns_cbranch_scc1 L_nom1')
    a('s_lshl_b32 s24, s3, 7')
    dma_u1('s52', 's53', 512*3584, 3584, 's24', R1)
    stamp(5)
    a('s_waitcnt vmcnt(8)\ns_branch L_m1d')
    a('L_nom1:')
    a('s_waitcnt vmcnt(0)')
    a('L_m1d:')
    a('s_barrier')
    tr_w(0)
    a('s_waitcnt lgkmcnt(0)\ns_barrier')
    stamp(7)
    a('s_cmp_ge_u32 s3, 28\ns_cbranch_scc1 L_nom2')
    srd(20, 's56', 's57', 1792*1024)
    a('s_and_b32 s6, s4, 1\ns_lshl_b32 s6, s6, 7\nv_lshlrev_b32 v2, 4, v1\nv_xor_b32 v2, s6, v2')
    a('v_xor_b32 v10, 32, v2\nv_xor_b32 v11, 64, v2\nv_xor_b32 v12, 96, v2')
    a(f's_lshl_b32 s27, s3, 16\ns_lshl_b32 s28, s4, 13\ns_add_u32 s27, s27, s28')
    for hh in range(2):
        a('s_mov_b32 m0, s28')
        for i in range(4): a(f'buffer_load_dwordx4 v{(2,10,11,12)[i]}, s[20:23], s27 offen offset:{1024*i} {cfg.NT} lds')
        if hh == 0: a('s_add_u32 s27, s27, 4096\ns_add_u32 s28, s28, 4096')
    stamp(6)
    if cfg.touch:
        a(f's_lshl_b32 s6, s3, 12\ns_add_u32 s6, s6, {MOUT}\nbuffer_load_dwordx2 v[{DD}:{DD+1}], v5, s[16:19], s6 offen sc1')
    a('v_and_b32 v10, 7, v1\nv_lshlrev_b32 v10, 1, v10')
    a('s_and_b32 s6, s3, 15\ns_lshl_b32 s6, s6, 5\ns_lshl_b32 s7, s4, 2\ns_add_u32 s6, s6, s7')
    a('v_and_b32 v11, 1, v1\nv_lshl_add_u32 v11, v11, 1, s6\nv_bfe_u32 v12, v1, 4, 1\nv_add_u32 v23, v11, v12')
    a('v_lshlrev_b32 v11, 1, v23\nglobal_load_ushort v24, v11, s[58:59]')
    a('s_lshl_b32 s6, s3, 7\ns_lshl_b32 s7, s4, 4\ns_add_u32 s6, s6, s7')
    a('v_add_u32 v11, s6, v10\nglobal_load_ushort v25, v11, s[54:55]')
    a('L_nom2:')
    if cfg.touch:
        a(f's_lshl_b32 s6, s3, 10\ns_add_u32 s6, s6, {WOUT}\nv_lshlrev_b32 v10, 4, v1\nbuffer_load_dword v{DD+2}, v10, s[16:19], s6 offen sc1')
    a(f'v_and_b32 v10, 31, v1\nv_lshlrev_b32 v10, 7, v10\ns_mov_b32 s6, {XID}')
    vpoll([f'buffer_load_dwordx2 v[{AT}:{AT+1}], v10, s[16:19], s6 offen sc1'], [AT+1], None, sleep=cfg.slp, tags=True)
    a(f'v_cmp_ne_u32 vcc, s31, v{AT}\ns_cmp_eq_u64 vcc, 0\ns_cselect_b32 s32, 1, 0')
    a('s_cmp_ge_u32 s3, 28\ns_cbranch_scc1 L_wst')
    a('s_barrier')
    tr_u1(F2, R1)
    a('v_lshrrev_b32 v11, 3, v23\nv_lshlrev_b32 v11, 7, v11\nv_and_b32 v12, 7, v23\nv_lshl_add_u32 v11, v12, 3, v11\nv_bfe_u32 v12, v1, 3, 1\nv_lshl_add_u32 v11, v12, 6, v11')
    a(f's_mov_b32 s63, {MODB + 24*1024}')
    for k in range(3): a(f's_mov_b32 s{60+k}, {MODB + 8192*k}')
    a('v_lshlrev_b32 v24, 16, v24\nv_lshlrev_b32 v25, 16, v25')
    a(f'v_mov_b32 v{AT+15}, 0x3f803f80\nds_write_b32 v7, v{AT+15} offset:{ACTM-ACT+3*TS}')
    stamp(1)
    vpoll([f'buffer_load_dwordx4 v[{AT+4*k}:{AT+4*k+3}], v28, s[16:19], s{60+k} offen sc1' for k in range(3)] +
          [f'buffer_load_dwordx2 v[{AT+12}:{AT+13}], v11, s[16:19], s63 offen sc1'], range(AT+1, AT+14, 2), AT+14, sleep=cfg.slp, tags=True)
    stamp(8)
    a(f'v_mov_b32 v23, v{AT+12}\nv_mov_b32 v16, v{AT}\nv_mov_b32 v17, v{AT+2}')
    a(f'v_add_f32 v18, 1.0, v{AT+8}\nv_add_f32 v19, 1.0, v{AT+10}\nv_cvt_pk_bf16_f32 v{AT+1}, v{AT+4}, v{AT+6}\nv_cvt_pk_bf16_f32 v{AT+3}, v18, v19')
    unpack(18, 19, AT+3); unpack(20, 21, AT+1)
    a(f'ds_write_b32 v7, v{AT+3} offset:{ACTM-ACT+TS}\nds_write_b32 v7, v{AT+1} offset:{ACTM-ACT+2*TS}')
    t = AT + 16
    a(f'v_add_f32 v{t}, v18, v19\nv_mul_f32 v{t+1}, v18, v18\nv_fmac_f32 v{t+1}, v19, v19')
    a(f'v_mul_f32 v{t+2}, v18, v20\nv_fmac_f32 v{t+2}, v19, v21\nv_add_f32 v{t+3}, v20, v21')
    a(f'v_mul_f32 v{t+4}, v20, v20\nv_fmac_f32 v{t+4}, v21, v21')
    red6([t, t+1, t+2, t+3, t+4, t+4], STAT3 - STAT, (t+6, t+7, t+8, t+9))
    a(f'v_bfe_u32 v10, v1, 2, 2\nv_mul_u32_u24 v10, {TS}, v10\nv_add_u32 v10, v10, v4')
    a('s_waitcnt lgkmcnt(0)\ns_barrier')
    gemv(F2, 'v10', off=ACTM-ACT); fold()
    a(f'v_mov_b32 v26, v{Z}\nv_permlane16_swap_b32 v{Z}, v26')
    a(f'v_mov_b32 v27, v{Z}\nv_mov_b32 v28, v26\nv_permlane32_swap_b32 v{Z}, v27\nv_permlane32_swap_b32 v26, v28')
    a('L_wst:')
    if cfg.dirty:
        a(f's_lshl_b32 s6, s3, 15\ns_add_u32 s6, s6, 0xA0000\nv_lshlrev_b32 v10, 4, v0')
        srd(20, 's14', 's15', 0x200000)
        for i in range(cfg.dirty):
            a(f'buffer_store_dwordx4 v[40:43], v10, s[20:23], s6 offen\ns_add_u32 s6, s6, 8192')
    a('s_lshr_b32 s6, s4, 2\ns_lshl_b32 s24, s6, 3\ns_lshr_b32 s7, s26, 1\ns_add_u32 s24, s24, s7')
    a('s_and_b32 s7, s26, 1\ns_lshl_b32 s7, s7, 1\ns_bfe_u32 s28, s4, 0x10001\ns_add_u32 s7, s7, s28')
    a(f's_lshl_b32 s27, s24, 11\ns_lshl_b32 s29, s7, 3\ns_add_u32 s27, s27, s29\ns_add_u32 s27, s27, {LSE}')
    a(f's_lshl_b32 s60, s24, 14\ns_lshl_b32 s29, s7, 8\ns_add_u32 s60, s60, s29\ns_and_b32 s29, s4, 1\ns_lshl_b32 s29, s29, 7\ns_add_u32 s60, s60, s29\ns_add_u32 s60, s60, {OP}')
    a('s_add_u32 s61, s60, 4096')
    a(f's_mul_i32 s6, s6, 1152\ns_and_b32 s29, s4, 3\ns_lshl_b32 s29, s29, 6\ns_add_u32 s6, s6, s29\ns_add_u32 s6, s6, {ACT}')
    a('v_and_b32 v31, 1, v1\nv_mul_u32_u24 v31, 576, v31\nv_bfe_u32 v10, v1, 1, 4\nv_lshl_add_u32 v31, v10, 2, v31\nv_add_u32 v31, s6, v31')
    a('s_mov_b32 s62, 6144\nv_and_b32 v2, 31, v1\nv_lshlrev_b32 v2, 2, v2\nv_lshrrev_b32 v10, 5, v1\nv_mad_u32_u24 v2, v10, s62, v2')
    a(f's_lshl_b32 s29, s3, 10\ns_add_u32 s29, s29, {WOUT}')
    a('v_and_b32 v11, 2, v1\nv_cmp_eq_u32 vcc, 0, v11\nv_mov_b32 v11, 0xeeee\nv_mov_b32 v22, 0x4444\nv_cndmask_b32 v22, v11, v22, vcc')
    for r in range(8): a(f'v_mov_b32 v{DD+r}, 0')
    a('v_bfe_u32 v8, v1, 1, 2\nv_lshlrev_b32 v8, 4, v8\nv_bfe_u32 v11, v1, 4, 1\nv_lshl_add_u32 v8, v11, 6, v8\nv_bfe_u32 v11, v1, 3, 1\nv_lshl_add_u32 v8, v11, 7, v8')
    a('v_lshl_add_u32 v8, v10, 2, v8\ns_lshr_b32 s6, s4, 1\ns_lshl_b32 s6, s6, 8\ns_and_b32 s7, s4, 1\ns_lshl_b32 s7, s7, 3\ns_add_u32 s6, s6, s7\nv_add_u32 v8, s6, v8')
    a(f'v_lshlrev_b32 v10, 7, v1\nv_mov_b32 v{AT}, 0xff800000')
    stamp(9)
    a(f's_mov_b64 exec, {(1 << NCH) - 1:#x}')
    vpoll([f'buffer_load_dwordx2 v[{AT}:{AT+1}], v10, s[16:19], s27 offen sc1'], [AT+1], None, sleep=cfg.slp, tags=True)
    a('s_mov_b64 exec, -1')
    a(f'v_mov_b32 v{AT+1}, v{AT}')
    for r in (1, 2, 4, 8): a(f'v_max_f32_dpp v{AT+1}, v{AT+1}, v{AT+1} row_ror:{r} row_mask:0xf bank_mask:0xf')
    a(f'v_sub_f32 v{AT}, v{AT}, v{AT+1}\nv_exp_f32 v{AT}, v{AT}\nv_mov_b32 v{AT+1}, v{AT}')
    for r in (1, 2, 4, 8): a(f'v_add_f32_dpp v{AT+1}, v{AT+1}, v{AT+1} row_ror:{r} row_mask:0xf bank_mask:0xf')
    a(f'v_rcp_f32 v{AT+1}, v{AT+1}\nv_mul_f32 v{AT}, v{AT}, v{AT+1}')
    a('v_lshrrev_b32 v10, 5, v1\nv_mul_u32_u24 v10, 24, v10')
    for i in range(6):
        a(f'ds_bpermute_b32 v{AT+24+i}, v10, v{AT} offset:{4*i}')
    a('s_waitcnt lgkmcnt(0)')
    wl = [f'buffer_load_dword v{AT+c}, v2, s[16:19], s{60+(c>>2)} offen offset:{1024*(c&3)} sc1' for c in range(6)]
    if cfg.mp & 1: mpoll([(wl[c], [AT+c]) for c in range(6)], AT+12)
    else: vpoll(wl, [AT+c for c in range(6)], AT+12)
    stamp(10)
    acc = AT + 20
    for c in range(6):
        tq = AT + 8 + 2*c
        unpack(tq, tq+1, AT+c)
    for c in range(6):
        tq = AT + 8 + 2*c; wp = AT + 24 + (c & ~1)
        mod = 'op_sel_hi:[1,0,1]' if (c & 1) == 0 else 'op_sel:[0,1,0] op_sel_hi:[1,1,1]'
        mod2 = 'op_sel_hi:[1,0]' if (c & 1) == 0 else 'op_sel:[0,1] op_sel_hi:[1,1]'
        ac = acc + 2*(c & 1)
        if c < 2: a(f'v_pk_mul_f32 v[{ac}:{ac+1}], v[{tq}:{tq+1}], v[{wp}:{wp+1}] {mod2}')
        else: a(f'v_pk_fma_f32 v[{ac}:{ac+1}], v[{tq}:{tq+1}], v[{wp}:{wp+1}], v[{ac}:{ac+1}] {mod}')
    a(f'v_pk_add_f32 v[{acc}:{acc+1}], v[{acc}:{acc+1}], v[{acc+2}:{acc+3}]')
    a(f'v_permlane32_swap_b32 v{acc}, v{acc+1}')
    a(f'v_add_f32 v{acc}, v{acc}, v{acc+1}')
    a(f'v_mov_b32 v{acc+1}, v{acc}\nv_permlane32_swap_b32 v{acc}, v{acc+1}')
    a(f's_mov_b64 exec, 0xffffffff\nv_cvt_pk_bf16_f32 v{acc}, v{acc}, v{acc+1}\nds_write_b32 v31, v{acc}\ns_mov_b64 exec, -1')
    fst(7)
    a('s_waitcnt lgkmcnt(0)\ns_barrier')
    fst(8)
    sgemv([F0, F1], [DD, Z], 'v4', 'v22')
    a(f'v_add_f32_dpp v10, v{DD}, v{DD+2} quad_perm:[0,1,2,3] row_mask:0x1 bank_mask:0xf')
    a(f'v_add_f32_dpp v10, v{DD+1}, v{DD+3} quad_perm:[0,1,2,3] row_mask:0x2 bank_mask:0xf')
    a(f'v_add_f32_dpp v10, v{Z}, v{Z+2} quad_perm:[0,1,2,3] row_mask:0x4 bank_mask:0xf')
    a(f'v_add_f32_dpp v10, v{Z+1}, v{Z+3} quad_perm:[0,1,2,3] row_mask:0x8 bank_mask:0xf')
    a('s_cmp_lg_u32 s32, 0')
    a('v_mov_b32_dpp v11, v10 quad_perm:[1,1,3,3] row_mask:0xf bank_mask:0xf')
    a('s_mov_b32 exec_lo, 0x55555555\ns_mov_b32 exec_hi, 0x55555555')
    a('v_cvt_pk_bf16_f32 v11, v10, v11')
    store2('buffer_store_dword v11, v8, s[16:19], s29 offen')
    a('s_mov_b64 exec, -1')
    stamp(11)
    a('s_cmp_ge_u32 s3, 28\ns_cbranch_scc1 L_hdone')

    a('v_lshrrev_b32 v10, 4, v1\nv_bfe_u32 v11, v1, 2, 2\nv_lshl_add_u32 v10, v10, 3, v11\nv_lshlrev_b32 v10, 10, v10')
    a(f'v_and_b32 v11, 3, v1\nv_lshl_add_u32 v10, v11, 3, v10')
    a('v_bfe_u32 v11, v1, 2, 3\nv_lshlrev_b32 v11, 5, v11\ns_lshl_b32 s6, s4, 7\nv_xor_b32 v11, s6, v11')
    for cg in range(4):
        a(f'v_xor_b32 v12, {32*cg}, v11\nv_add_u32 v{60+cg}, v10, v12')
    for cg in range(4):
        for s in range(2):
            for hh in range(2):
                r = F1 + (cg*2 + s)*4 + 2*hh
                a(f'ds_read_b64_tr_b16 v[{r}:{r+1}], v{60+cg} offset:{32768*s + 4096*hh}')
    a(f's_lshl_b32 s60, s4, 8\ns_add_u32 s60, s60, {WOUT}\ns_add_u32 s61, s60, 4096')
    a('v_and_b32 v59, 15, v1\nv_lshlrev_b32 v59, 4, v59\nv_lshrrev_b32 v58, 4, v1\nv_lshl_add_u32 v59, v58, 13, v59')
    wloads = [f'buffer_load_dwordx4 v[{AT+4*k}:{AT+4*k+3}], v59, s[16:19], s{60+(k>>1)} offen offset:{2048*(k&1)} sc1' for k in range(4)]
    for x in wloads: a(x)
    a(f'v_bfe_u32 v10, v1, 3, 1\nv_lshlrev_b32 v40, 5, v10\nv_add_u32 v40, {STAT}, v40')
    a(f'ds_read_b128 v[68:71], v40 offset:{STAT3-STAT}\nds_read_b32 v30, v40 offset:{STAT3-STAT+16}')
    a('v_bfe_u32 v11, v1, 1, 1\nv_lshl_add_u32 v41, v10, 1, v11\nv_lshlrev_b32 v41, 6, v41\nv_and_b32 v12, 4, v1\nv_add_u32 v41, v41, v12')
    a(f'v_and_b32 v12, 1, v1\nv_lshl_add_u32 v41, v12, 1, v41\ns_lshl_b32 s6, s4, 3\ns_add_u32 s6, s6, {HID}\nv_add_u32 v41, s6, v41')
    a(f'v_lshl_add_u32 v42, v12, 1, v11\nv_lshlrev_b32 v42, 6, v42\nv_and_b32 v45, 48, v1\nv_add_u32 v42, v42, v45\nv_add_u32 v42, {HID}, v42')
    a(f'v_and_b32 v43, 7, v1\nv_mul_u32_u24 v43, 288, v43\nv_add_u32 v43, v43, v45\nv_add_u32 v43, {AS}, v43')
    a('v_bfe_u32 v46, v1, 2, 1\nv_lshl_add_u32 v46, v12, 2, v46\nv_mul_u32_u24 v46, 288, v46\nv_lshl_add_u32 v46, v11, 2, v46\nv_lshrrev_b32 v11, 3, v1\nv_lshl_add_u32 v46, v11, 3, v46')
    a(f's_lshr_b32 s6, s4, 2\ns_mul_i32 s6, s6, 576\ns_and_b32 s7, s4, 3\ns_lshl_b32 s7, s7, 6\ns_add_u32 s6, s6, s7\ns_add_u32 s6, s6, {AS}\nv_add_u32 v46, s6, v46')
    a('v_and_b32 v11, 4, v1\nv_cmp_eq_u32 vcc, 0, v11\nv_mov_b32 v11, 0xeeee\nv_mov_b32 v47, 0x4444\nv_cndmask_b32 v47, v11, v47, vcc')
    for r in range(4): a(f'v_mov_b32 v{DD+r}, 0')
    a('s_and_b32 s6, s3, 15\ns_lshl_b32 s6, s6, 5\ns_lshl_b32 s7, s4, 2\ns_add_u32 s6, s6, s7')
    a('v_and_b32 v11, 1, v1\nv_lshl_add_u32 v11, v11, 1, s6')
    a('v_lshrrev_b32 v12, 1, v1\nv_lshlrev_b32 v44, 12, v12\nv_lshl_add_u32 v44, v11, 3, v44')
    a('v_bfe_u32 v12, v1, 4, 1\nv_add_u32 v11, v11, v12')
    a(f'v_lshlrev_b32 v48, 11, v10\nv_lshl_add_u32 v48, v11, 2, v48\nv_add_u32 v48, {X1}, v48')
    a('v_lshlrev_b32 v49, 10, v10\nv_lshl_add_u32 v49, v11, 1, v49')
    a(f's_add_u32 s20, s14, {MOUT}\ns_addc_u32 s21, s15, 0\ns_mov_b32 s22, {28*4096}\ns_mov_b32 s23, 0x20000')
    a(f's_lshl_b32 s24, s3, 12')
    a(f's_mov_b32 s40, {f2u(1/512)}\ns_mov_b32 s41, {f2u(1e-5)}\ns_mov_b32 s42, {f2u(0.044715)}\ns_mov_b32 s43, {f2u(-2*math.sqrt(2/math.pi)*LOG2E)}')
    a('v_and_b32 v50, 1, v1\nv_lshlrev_b32 v50, 4, v50\nv_mov_b32 v51, 0x3f80\nv_lshlrev_b32 v50, v50, v51\nv_bfe_u32 v51, v1, 2, 2')
    for i in range(4): a(f'v_cmp_eq_u32 vcc, {i}, v51\nv_cndmask_b32 v{64+i}, 0, v50, vcc')
    a('s_waitcnt lgkmcnt(0)')
    a(f's_mov_b32 s44, {f2u(-2/512)}\ns_mov_b32 s45, {f2u(2/512)}\nv_mov_b32 v61, s41')
    a('v_mul_f32 v68, s40, v68\nv_mul_f32 v69, s40, v69\nv_mul_f32 v70, s45, v70\nv_mul_f32 v71, s40, v71\nv_fma_f32 v30, v30, s40, v61')
    if cfg.mp & 2: mpoll([(wloads[k], range(AT+4*k, AT+4*k+4)) for k in range(4)], AT+20, first_issued=True)
    else: vpoll(wloads, [AT+k for k in range(16)], AT+20, first_issued=True)
    stamp(12)
    V = AT + 16
    for k in range(4):
        c0 = '0' if k == 0 else f'v[{V}:{V+3}]'
        a(f'v_mfma_f32_16x16x32_bf16 v[{V}:{V+3}], v[64:67], v[{AT+4*k}:{AT+4*k+3}], {c0}')
    s0, s1 = V, V+1
    x0, x1, a0, a1 = AT+12, AT+13, AT+14, AT+15
    a(f'v_fma_f32 v{x0}, v16, v{s0}, v14\nv_fma_f32 v{x1}, v17, v{s1}, v15')
    a(f'v_mul_f32 v{a0}, v{x0}, v18\nv_mul_f32 v{a1}, v{x1}, v19')
    a(f'v_cvt_pk_bf16_f32 v{AT}, v{a0}, v{a1}\nds_write_b32 v46, v{AT}\nds_write_b64 v9, v[{x0}:{x1}]')
    fst(1)
    t = AT + 20
    a(f'v_add_f32 v{t}, v{x0}, v{x1}\nv_mul_f32 v{t+1}, v{x0}, v{x0}\nv_add_f32 v{t+2}, v{a0}, v{a1}\nv_mul_f32 v{t+3}, v{a0}, v{a0}')
    a(f'v_mul_f32 v{t+4}, v{a0}, v18\nv_mul_f32 v{t+5}, v{a0}, v20')
    a(f'v_fmac_f32 v{t+1}, v{x1}, v{x1}\nv_fmac_f32 v{t+3}, v{a1}, v{a1}\nv_fmac_f32 v{t+4}, v{a1}, v19\nv_fmac_f32 v{t+5}, v{a1}, v21')
    red6([t, t+1, t+2, t+3, t+4, t+5], 0, (t+6, t+7, t+8, t+9))
    fst(2)
    a('s_waitcnt lgkmcnt(0)')
    fst(9)
    a('s_barrier')
    fst(3)
    a('ds_read_b128 v[52:55], v40\nds_read_b64 v[56:57], v40 offset:16')
    fill = [
        'v_mul_f32 v52, s40, v52',
        'v_fma_f32 v53, v53, s40, v61',
        'v_mul_f32 v56, s44, v56',
        'v_fma_f32 v53, -v52, v52, v53',
        'v_mul_f32 v54, s40, v54',
        'v_fma_f32 v56, v52, v69, v56',
        'v_rsq_f32 v53, v53',
        'v_mul_f32 v55, s40, v55',
        'v_mul_f32 v57, s45, v57',
        'v_fma_f32 v54, -v52, v68, v54',
        'v_fma_f32 v55, v52, v56, v55',
        'v_fma_f32 v57, -v52, v70, v57',
        'v_fma_f32 v55, v53, v55, v57',
        'v_fma_f32 v54, v53, v54, v71',
        'v_mul_f32 v52, v52, v53',
        'v_fma_f32 v55, v53, v55, v30',
        'v_fma_f32 v56, -v52, v26, v27',
        'v_fma_f32 v55, -v54, v54, v55',
        'v_fma_f32 v56, -v54, v28, v56',
        'v_rsq_f32 v55, v55',
    ]
    zf = [f'v_mov_b32 v{AT+16+r}, 0' for r in range(16)]
    sgemv([F2], [DD], 'v43', 'v47', fill=fill + zf[:3]); fold()
    a(f'v_mov_b32 v{T}, v{Z}\n{zf[3]}\n{zf[4]}\nv_permlane16_swap_b32 v{Z}, v{T}\nv_add_f32 v{Z}, v{Z}, v{T}')
    fst(4)
    ge = [f'v_fma_f32 v{Z}, v{Z}, v53, v56', f'v_fma_f32 v{Z}, v{Z}, v55, v25', f'v_mul_f32 v{T}, v{Z}, v{Z}', f'v_mul_f32 v{T+1}, s43, v{Z}',
          f'v_fma_f32 v{T}, v{T}, s42, 1.0', f'v_mul_f32 v{T}, v{T}, v{T+1}', f'v_exp_f32 v{T}, v{T}', f'v_add_f32 v{T}, 1.0, v{T}',
          f'v_rcp_f32 v{T}, v{T}', f'v_mul_f32 v{T}, v{T}, v{Z}', f'v_cvt_pk_bf16_f32 v{T}, v{T}, v{T}']
    for x, z_ in zip(ge, zf[5:]): a(x + '\n' + z_)
    a(f's_mov_b64 exec, 0xffff\nds_write_b16 v41, v{T}\ns_mov_b64 exec, -1')
    fst(5)
    a('s_waitcnt lgkmcnt(0)\ns_barrier')
    fst(6)
    a(f'ds_read_b128 v[{AT}:{AT+3}], v42')
    a(f'ds_read_b32 v52, v48')
    a(f's_waitcnt lgkmcnt(1)')
    for cg in range(4):
        ac = AT + 16 + 4*cg; fr = F1 + cg*8
        a(f'v_smfmac_f32_16x16x64_bf16 v[{ac}:{ac+3}], v[{AT}:{AT+3}], v[{fr}:{fr+7}], v22')
    y = AT + 8
    a('s_cmp_lg_u32 s32, 0')
    for cg in range(4):
        ac = AT + 16 + 4*cg
        for r in range(2): a(f'v_add_f32_dpp v{y+r}, v{ac+r}, v{ac+2+r} quad_perm:[0,1,2,3] row_mask:{1 << cg:#x} bank_mask:0xf')
    store2(f'buffer_store_dwordx2 v[{y}:{y+1}], v5, s[20:23], s24 offen')
    stamp(13)
    a('s_cmp_ge_u32 s3, 16\ns_cbranch_scc1 L_hdone')
    fl = [f'buffer_load_dwordx4 v[{AT}:{AT+3}], v44, s[20:23], 0 offen sc1']
    a(fl[0])
    srd(24, 's46', 's47', 2048)
    a('s_waitcnt lgkmcnt(0)\nv_fma_f32 v52, v23, v24, v52')
    if cfg.mp & 4: mpoll([(fl[0], range(AT, AT+4))], AT+8, first_issued=True)
    else: vpoll(fl, [AT+k for k in range(4)], AT+8, first_issued=True)
    stamp(14)
    a(f'v_add_f32_dpp v{Z}, v{AT}, v{AT} row_ror:8 row_mask:0xf bank_mask:0x3')
    a(f'v_add_f32_dpp v{T}, v{AT+2}, v{AT+2} row_ror:8 row_mask:0xf bank_mask:0x3')
    a(f'v_add_f32_dpp v{Z}, v{AT+1}, v{AT+1} row_ror:8 row_mask:0xf bank_mask:0xc')
    a(f'v_add_f32_dpp v{T}, v{AT+3}, v{AT+3} row_ror:8 row_mask:0xf bank_mask:0xc')
    a(f'v_permlane16_swap_b32 v{Z}, v{T}\nv_add_f32 v{Z}, v{Z}, v{T}')
    a(f'v_mov_b32 v{T}, v{Z}\nv_permlane32_swap_b32 v{Z}, v{T}\nv_add_f32 v{Z}, v{Z}, v{T}')
    a(f'v_add_f32_dpp v{Z}, v{Z}, v{Z} quad_perm:[2,3,0,1] row_mask:0xf bank_mask:0xf')
    a(f'v_add_f32_dpp v{Z}, v{Z}, v{Z} row_shl:4 row_mask:0xf bank_mask:0x5')
    a(f'v_fma_f32 v{Z}, v23, v{Z}, v52')
    if cfg.diag is not None:
        a('s_or_b32 s6, s3, s4\ns_cmp_lg_u32 s6, 0\ns_cbranch_scc1 L_ndiag')
        a('s_memrealtime s[94:95]\ns_waitcnt lgkmcnt(0)\ns_sub_u32 s6, s94, s64')
        a(f's_cmp_lt_u32 s6, {cfg.T0}\ns_cbranch_scc1 L_ndiag\ns_cmp_eq_u32 s96, s97\ns_cbranch_scc1 L_ndiag\ns_cmp_eq_u32 s32, {cfg.gate}\ns_cbranch_scc1 L_ndiag')
        a('s_cmp_eq_u32 s98, s99\ns_cbranch_scc1 L_ndiag')
        a(f's_sub_u32 s6, s{64+2*cfg.diag}, s64\nv_cvt_f32_u32 v10, s6\ns_mov_b64 exec, 1\nv_add_f32 v{Z}, v{Z}, v10\ns_mov_b64 exec, -1')
        a('L_ndiag:')
    if cfg.enc:
        a('s_or_b32 s6, s3, s4\ns_cmp_lg_u32 s6, 0\ns_cbranch_scc1 L_nenc')
        a(f's_memrealtime s[94:95]\ns_waitcnt lgkmcnt(0)\ns_sub_u32 s6, s94, s64\ns_sub_u32 s7, s{64+2*cfg.enc}, s64')
        a('v_mov_b32 v10, s6\nv_mov_b32 v11, s7\nv_and_b32 v12, 8, v1\nv_cmp_eq_u32 vcc, 0, v12\nv_cndmask_b32 v10, v11, v10, vcc')
        a('v_and_b32 v11, 1, v1\nv_lshlrev_b32 v11, 1, v11\nv_bfe_u32 v12, v1, 4, 1\nv_add_u32 v11, v11, v12\nv_mul_u32_u24 v11, 3, v11')
        a(f'v_lshrrev_b32 v10, v11, v10\nv_and_b32 v10, 7, v10\nv_cvt_f32_u32 v10, v10\nv_add_f32 v{Z}, v{Z}, v10')
        a('L_nenc:')
    a(f's_mov_b64 exec, 0x03030303')
    a(f'v_cvt_pk_bf16_f32 v{T}, v{Z}, v{Z}')
    a(f'buffer_store_short v{T}, v49, s[24:27], 0 offen')
    a('s_or_b32 s6, s3, s4\ns_cmp_lg_u32 s6, 0\ns_cbranch_scc1 L_noep')
    a(f's_mov_b64 exec, 1\nv_mov_b32 v10, {EPO}\nv_mov_b32 v11, s33\nbuffer_store_dword v11, v10, s[16:19], 0 offen')
    a('L_noep:')
    a('s_mov_b64 exec, -1')
    stamp(15)
    a('L_hdone:')
    if cfg.stamps:
        a(f's_cmp_lg_u32 s4, {cfg.sw}\ns_cbranch_scc1 L_end')
        stamps_out(16, 0)
        a('s_cmp_lg_u32 s2, 0\ns_cbranch_scc1 L_end')
        for n, i in enumerate((1, 4, 7, 8, 9, 10, 11, 12, 13, 14, 15)):
            a(f's_sub_u32 s60, s{64+2*i}, s64\nv_mov_b32 v4, s60\nglobal_store_dword v2, v4, s[12:13] offset:{16+4*n}')
        a('v_mov_b32 v4, s32\nglobal_store_dword v2, v4, s[12:13]')
        a('s_waitcnt vmcnt(0)')
    a('L_end:')
    a('s_endpgm')
    return wrap(a.finalize(), 256, 768, LDS_TOTAL, 168, sgpr=102)

if __name__ == '__main__':
    out = sys.argv[1]
    for o in sys.argv[2:]:
        k, v = o.split('=')
        setattr(cfg, k, eval(v))
    open(out, 'w').write(gen())
```

```python
import sys, math, struct
from asmlib import *
from gen_common import *

class Cfg:
    stamps = False
    NT = 'nt'
    warm = True
    prio = True
    slp = 2
    qslp = 4
    thS = 63
    thV = 2
    pre = 3
    touch = True
    diag = None
    fine = False
    sw = 0
    mp = 2
    enc = 0
    lay = 1
    lead = 2
    il = False
    bias = (28, 30, 16, -26, -16, -20, -12)
    dirty = 0
    nth = 10
    T0 = 1900
    gate = 0
    apre = 0
    fast = True
cfg = Cfg()

MODA=0; MODB=0x8000; QO=0x10000; XID=0x18000; EPO=0x1A800; WOUT=0x1C000; MOUT=0x24000; OP=0x40000; STMP=0x80000; LSE=0x90000; WS_SZ=0x100000
NCH = 12
KW=36864; PREG=147456; ZERO=153600; ST=154176; QL=154368; QF=155392; SCR=0; LDS_TOTAL=155648
R0=0; R1=65536; ACT=131072; ACTC=133376; ACTM=135680; TS=2336; HID=145024; STAT=145408; STAT2=145472; STAT3=145536; X1=145664; AS=149760
LIMIT = 200000
LOG2E = 1.4426950408889634
def f2u(x): return '0x%08x' % struct.unpack('<I', struct.pack('<f', x))[0]

def gtab():
    d = list(cfg.bias); assert sum(d) == 0
    g = [0]
    for k in range(6): g.append(g[-1] + d[(2*k) % 7])
    return g
def chunk_start(p, c):
    g = gtab(); pos = (4*(p + 4)) % 7
    tot = g[(pos + 12) % 7] - g[pos]
    return ((c*(8192 - tot)*21846) >> 18) + g[(pos + c) % 7] - g[pos]

def gen():
    a = Asm()
    uid = [0]
    def lab(p):
        uid[0] += 1; return f'L_{p}_{uid[0]}'
    def stamp(i):
        if cfg.stamps: a(f's_memrealtime s[{64+2*i}:{65+2*i}]')
    def fst(i):
        if cfg.fine: stamp(i)
    def stamps_out(n, base_slot):
        if not cfg.stamps: return
        a('s_waitcnt lgkmcnt(0)')
        a('s_mov_b64 exec, 1')
        a(f's_lshl_b32 s60, s2, 7\ns_add_u32 s60, s60, {STMP + base_slot*8}')
        a('v_mov_b32 v2, 0')
        for i in range(n):
            a(f'v_mov_b32 v4, s{64+2*i}\nv_mov_b32 v5, s{65+2*i}')
            a(f'buffer_store_dwordx2 v[4:5], v2, s[16:19], s60 offen offset:{8*i}')
        a('s_waitcnt vmcnt(0)')
    def srd(d, lo, hi, size):
        a(f's_mov_b32 s{d}, {lo}\ns_mov_b32 s{d+1}, {hi}\ns_mov_b32 s{d+2}, {size}\ns_mov_b32 s{d+3}, 0x20000')
    def epoch_load():
        a(f's_load_dword s33, s[14:15], {EPO}')
    def epoch_tag():
        a('s_mul_i32 s33, s33, 0x9E3779B1\ns_add_u32 s33, s33, 0x85EBCA6B')
    def red3(op, regs, tmp):
        rs = list(regs)
        if len(rs) == 1: return rs[0]
        first = True
        while rs:
            if first:
                if len(rs) >= 3: a(f'v_{op}3_u32 v{tmp}, v{rs[0]}, v{rs[1]}, v{rs[2]}'); rs = rs[3:]
                else: a(f'v_{op}_u32 v{tmp}, v{rs[0]}, v{rs[1]}'); rs = rs[2:]
                first = False
            elif len(rs) >= 2: a(f'v_{op}3_u32 v{tmp}, v{tmp}, v{rs[0]}, v{rs[1]}'); rs = rs[2:]
            else: a(f'v_{op}_u32 v{tmp}, v{tmp}, v{rs[0]}'); rs = rs[1:]
        return tmp
    def vpoll(loads, regs, tmp, sleep=0, first_issued=False, tags=False, dbg=None, first_cnt=0):
        l = lab('vp'); d = lab('vd'); w = lab('vw')
        a('s_mov_b32 s30, 0')
        if first_issued: a(f's_waitcnt vmcnt({first_cnt})\ns_branch {w}')
        a(f'{l}:')
        for x in loads: a(x)
        a('s_add_u32 s30, s30, 1')
        a('s_waitcnt vmcnt(0)')
        if first_issued: a(f'{w}:')
        if dbg is not None and cfg.stamps:
            p, q_, n_ = dbg
            a(f's_mov_b64 s[{64+2*p}:{65+2*p}], s[{64+2*q_}:{65+2*q_}]')
            stamp(q_); a('s_waitcnt lgkmcnt(0)')
            a(f's_add_u32 s{64+2*n_}, s64, s30\ns_mov_b32 s{65+2*n_}, s65')
        if tags:
            m = red3('max', regs, tmp)
            if len(list(regs)) > 1:
                n = red3('min', regs, tmp + 1)
                a(f'v_cmp_ne_u32 vcc, s33, v{m}\nv_cmp_ne_u32 s[34:35], s33, v{n}\ns_or_b64 vcc, vcc, s[34:35]')
            else:
                a(f'v_cmp_ne_u32 vcc, s33, v{m}')
        else:
            m = red3('max', regs, tmp)
            a(f'v_cmp_eq_u32 vcc, -1, v{m}')
        a(f's_cbranch_vccz {d}')
        if sleep: a(f's_sleep {sleep}')
        a(f's_cmp_lt_u32 s30, {LIMIT}\ns_cbranch_scc1 {l}')
        a(f'{d}:')
    def mpoll(items, tmp, first_issued=False):
        l = lab('mp'); d = lab('md')
        a('s_mov_b32 s30, 0')
        if not first_issued:
            for ld, regs in items: a(ld)
        a(f'{l}:')
        a('s_waitcnt vmcnt(0)')
        ms = []
        for k, (ld, regs) in enumerate(items):
            ms.append(red3('max', regs, tmp + k))
        for k, m in enumerate(ms):
            a(f'v_cmp_eq_u32 s[{48+2*k}:{49+2*k}], -1, v{m}')
        n = len(items)
        if n == 1:
            a('s_cmp_eq_u64 s[48:49], 0\ns_cbranch_scc1 ' + d)
        else:
            a('s_or_b64 s[34:35], s[48:49], s[50:51]')
            for k in range(2, n): a(f's_or_b64 s[34:35], s[34:35], s[{48+2*k}:{49+2*k}]')
            a(f's_cbranch_scc0 {d}')
        for k, (ld, regs) in enumerate(items):
            a(f's_mov_b64 exec, s[{48+2*k}:{49+2*k}]')
            a(ld)
        a('s_mov_b64 exec, -1')
        a(f's_add_u32 s30, s30, 1\ns_cmp_lt_u32 s30, {LIMIT}\ns_cbranch_scc1 {l}')
        a('s_waitcnt vmcnt(0)')
        a(f'{d}:')
    def pspin(va, vd):
        l = lab('ps'); d = lab('pd')
        a(f'v_mov_b32 {va}, {QF}\ns_mov_b32 s30, 0')
        a(f'{l}:')
        a(f'ds_read_b32 {vd}, {va} offset:4\ns_add_u32 s30, s30, 1\ns_waitcnt lgkmcnt(0)')
        a(f'v_cmp_ne_u32 vcc, 4, {vd}\ns_cbranch_vccz {d}')
        a(f's_sleep 1\ns_cmp_lt_u32 s30, {LIMIT*8}\ns_cbranch_scc1 {l}')
        a(f'{d}:')
    def dma_u1(lo, hi, size, RS, sbase, region, setup=True, i0=0, i1=8):
        if setup:
            a('v_bfe_u32 v10, v1, 4, 1\nv_and_b32 v12, 7, v1\nv_xor_b32 v10, v10, v12')
            a('s_and_b32 s27, s4, 4\nv_xor_b32 v10, s27, v10')
            a(f'v_lshrrev_b32 v2, 3, v1\nv_mul_u32_u24 v2, {RS}, v2\nv_xor_b32 v12, 2, v10')
            a('v_lshl_add_u32 v12, v12, 4, v2\nv_lshl_add_u32 v2, v10, 4, v2')
        srd(20, lo, hi, size)
        a(f's_mul_i32 s27, s4, {64*RS}\ns_add_u32 s27, s27, {sbase}')
        if i0: a(f's_add_u32 s27, s27, {8*RS*i0}')
        a(f's_lshl_b32 s28, s4, 13')
        if region + i0: a(f's_add_u32 s28, s28, {region + 1024*i0}')
        for i in range(i0, i1):
            a('s_mov_b32 m0, s28')
            if i < i1-1: a('s_add_u32 s28, s28, 1024')
            a(f'buffer_load_dwordx4 v{12 if i & 1 else 2}, s[20:23], s27 offen {cfg.NT} lds')
            if i < i1-1: a(f's_add_u32 s27, s27, {8*RS}')

    def dma_w(i0, i1, setup=True):
        if setup:
            a('s_and_b32 s6, s4, 1\ns_lshl_b32 s6, s6, 6\ns_and_b32 s7, s4, 4\ns_lshl_b32 s7, s7, 5\ns_or_b32 s6, s6, s7')
            a('v_lshlrev_b32 v2, 4, v1\nv_and_b32 v2, 0x1f0, v2\nv_and_b32 v10, 32, v1\nv_xor_b32 v2, v2, v10\nv_xor_b32 v2, s6, v2\nv_lshl_add_u32 v2, v10, 5, v2')
        srd(20, 's50', 's51', 4096*1024)
        a(f's_lshl_b32 s27, s4, 11\ns_add_u32 s27, s27, s24\ns_add_u32 s27, s27, {16384*i0}')
        a(f's_lshl_b32 s28, s4, 10\ns_add_u32 s28, s28, {8192*i0}')
        for i in range(i0, i1):
            a('s_mov_b32 m0, s28')
            if i < i1-1: a('s_add_u32 s28, s28, 8192')
            a(f'buffer_load_dwordx4 v2, s[20:23], s27 offen {cfg.NT} lds')
            if i < i1-1: a('s_add_u32 s27, s27, 16384')
    a('s_cmp_ge_u32 s2, 256\ns_cbranch_scc1 L_end')
    stamp(0)
    a('v_lshrrev_b32 v1, 6, v0')
    a('s_load_dwordx4 s[8:11], s[0:1], 8')
    a('s_load_dwordx4 s[12:15], s[0:1], 104')
    a('s_lshr_b32 s3, s2, 3\ns_and_b32 s5, s2, 7')
    a('v_readfirstlane_b32 s4, v1')
    a('v_and_b32 v1, 63, v0')
    a('s_cmp_eq_u32 s5, 0\ns_cbranch_scc1 L_hearly')
    a('s_mul_i32 s3, s3, 7\ns_add_u32 s3, s3, s5\ns_sub_u32 s3, s3, 1')
    a('s_cmp_lt_u32 s3, 32\ns_cbranch_scc1 L_hearly')
    a('L_stream:')
    a('s_sub_u32 s6, s3, 32')
    a('s_and_b32 s24, s6, 15\ns_lshr_b32 s25, s6, 4')
    g = gtab(); gp = [(v + 128) & 255 for v in g]
    assert all(-128 <= v < 128 for v in g)
    a(f's_mov_b32 s26, {sum(gp[i] << (8*i) for i in range(4)):#x}\ns_mov_b32 s27, {sum(gp[4+i] << (8*i) for i in range(3)):#x}')
    def glook(dst, src):
        a(f's_mul_i32 {dst}, {src}, 37\ns_lshr_b32 {dst}, {dst}, 8\ns_mul_i32 {dst}, {dst}, 7\ns_sub_u32 {src}, {src}, {dst}')
        a(f's_lshl_b32 {src}, {src}, 3\ns_lshr_b64 s[28:29], s[26:27], {src}\ns_and_b32 {dst}, s28, 255')
    a('s_lshl_b32 s6, s24, 2\ns_add_u32 s6, s6, 16\ns_mul_i32 s7, s6, 37\ns_lshr_b32 s7, s7, 8\ns_mul_i32 s7, s7, 7\ns_sub_u32 s6, s6, s7')
    a('s_lshl_b32 s7, s6, 3\ns_lshr_b64 s[28:29], s[26:27], s7\ns_and_b32 s30, s28, 255')
    a('s_add_u32 s7, s6, 12'); glook('s31', 's7')
    a('s_add_u32 s6, s6, s25\ns_add_u32 s7, s6, 1'); glook('s34', 's6'); glook('s35', 's7')
    a('s_sub_u32 s31, s30, s31\ns_add_u32 s31, s31, 8192\ns_mul_i32 s31, s31, 21846')
    a('s_mul_i32 s6, s31, s25\ns_add_u32 s7, s6, s31\ns_lshr_b32 s6, s6, 18\ns_lshr_b32 s7, s7, 18')
    a('s_add_u32 s6, s6, s34\ns_add_u32 s7, s7, s35\ns_sub_u32 s31, s7, s6\ns_sub_u32 s6, s6, s30')
    a('s_lshl_b32 s22, s31, 8\ns_lshl_b32 s6, s6, 8\ns_lshl_b32 s7, s24, 21\ns_add_u32 s6, s6, s7')
    a('s_mov_b32 s23, 0x20000')
    a('s_cmp_ge_u32 s4, 4\ns_cbranch_scc1 L_vwave')
    if cfg.prio: a('s_setprio 3')
    a('v_lshrrev_b32 v7, 4, v1')
    a('v_and_b32 v15, 15, v1')
    a('v_lshlrev_b32 v6, 2, v7\nv_xor_b32 v6, v6, v15')
    a('v_lshlrev_b32 v8, 8, v7')
    a('v_lshl_add_u32 v2, v6, 4, v8')
    for t in (1, 2, 3): a(f'v_xor_b32 v{2+t}, {16*t}, v2')
    a(f's_mul_i32 s27, s4, {16384 if cfg.il else 49152}\ns_mul_i32 s28, s4, {KW}')
    a('s_waitcnt lgkmcnt(0)')
    a('s_add_u32 s20, s8, s6\ns_addc_u32 s21, s9, 0')
    a('s_mov_b32 s29, 0')
    stamp(5)
    a('L_kdma:')
    a('s_mov_b32 m0, s28')
    a('s_add_u32 s28, s28, 4096\ns_add_u32 s29, s29, 1')
    for t in range(4):
        a(f'buffer_load_dwordx4 v{2+t}, s[20:23], s27 offen offset:{1024*t} {cfg.NT} lds')
        if cfg.thS < 63: a(f's_waitcnt vmcnt({cfg.thS})')
    a('s_add_u32 s27, s27, 4096')
    if cfg.il: a('s_and_b32 s7, s29, 3\ns_cselect_b32 s7, 0, 49152\ns_add_u32 s27, s27, s7')
    a('s_cmp_lt_u32 s29, 9\ns_cbranch_scc1 L_kdma')
    epoch_load()
    a('v_and_b32 v6, 3, v15\nv_lshlrev_b32 v6, 2, v6\nv_lshrrev_b32 v9, 2, v15\nv_add_u32 v6, v6, v9')
    a('v_lshlrev_b32 v10, 8, v6')
    a('v_lshl_add_u32 v6, v7, 4, v10')
    for gi in range(3):
        for s in range(4):
            r = 96 + 16*gi + 4*s
            a(f'buffer_load_dwordx4 v[{r}:{r+3}], v6, s[20:23], s27 offen offset:{64*s} {cfg.NT}')
            if cfg.thS < 63 and 4*gi + s < 11: a(f's_waitcnt vmcnt({cfg.thS})')
        if gi < 2: a('s_add_u32 s27, s27, 4096')
    srd(16, 's14', 's15', WS_SZ)
    a(f's_lshl_b32 s26, s24, 14\ns_lshl_b32 s6, s25, 10\ns_add_u32 s26, s26, s6\ns_lshl_b32 s6, s4, 8\ns_add_u32 s26, s26, s6\ns_add_u32 s26, s26, {OP}')
    a('v_mov_b32 v156, -1\nv_lshlrev_b32 v157, 2, v1')
    a('buffer_store_dword v156, v157, s[16:19], s26 offen sc1')
    a(f's_and_b32 s7, s24, 7\ns_lshl_b32 s6, s7, 12\ns_lshr_b32 s7, s24, 3\ns_lshl_b32 s7, s7, 11\ns_add_u32 s27, s6, s7\ns_add_u32 s27, s27, {QO}')
    a('v_lshlrev_b32 v12, 4, v1')
    qloads = [f'buffer_load_dwordx4 v[{32+4*k}:{35+4*k}], v12, s[16:19], s27 offen offset:{1024*k} sc1' for k in range(2)]
    a('s_cmp_lg_u32 s4, 0\ns_cbranch_scc1 L_nq1')
    for x in qloads: a(x)
    a('L_nq1:')
    stamp(1)
    a('s_barrier')
    a(f's_mul_i32 s28, s4, {KW}')
    a('v_and_b32 v11, 3, v15\nv_xor_b32 v11, v11, v7')
    a('v_lshl_add_u32 v11, v9, 2, v11')
    a('v_lshl_add_u32 v11, v11, 4, v10\nv_add_u32 v8, s28, v11')
    for s in (1, 2, 3): a(f'v_xor_b32 v{8+s}, {64*s}, v8')
    a(f's_mul_i32 s6, s4, 1536\ns_add_u32 s6, s6, {PREG}')
    a('v_lshrrev_b32 v13, 3, v15\nv_mul_u32_u24 v13, 768, v13' if cfg.il else 'v_lshrrev_b32 v13, 3, v15\nv_lshlrev_b32 v13, 8, v13')
    a('v_and_b32 v14, 3, v15\nv_lshl_add_u32 v13, v14, 6, v13\nv_lshl_add_u32 v13, v7, 4, v13')
    a('v_bfe_u32 v14, v15, 2, 1\nv_lshl_add_u32 v13, v14, 3, v13\nv_add_u32 v13, s6, v13')
    for u in range(4):
        a(f's_mov_b32 s{36+2*u}, {0x000F000F << (4*u):#x}\ns_mov_b32 s{37+2*u}, {0x000F000F << (4*u):#x}')
    a('v_and_b32 v161, 12, v1\nv_lshl_add_u32 v161, v161, 2, v7\n' + ('s_lshl_b32 s6, s4, 6\ns_add_u32 s6, s6, 512\ns_sub_u32 s31, s31, s6' if cfg.il else 's_sub_u32 s31, s31, 576') + '\nv_sub_u32 v161, s31, v161')
    a('s_waitcnt lgkmcnt(0)')
    epoch_tag()
    stamp(2)
    a(f'v_mov_b32 v14, {QF}')
    a('s_cmp_lg_u32 s4, 0\ns_cbranch_scc1 L_nq2')
    vpoll(qloads, [33, 35, 37, 39], 160, first_issued=True, tags=True, sleep=cfg.qslp, dbg=(1, 2, 15))
    a(f'v_lshlrev_b32 v12, 3, v1\nv_add_u32 v12, {QL}, v12\nv_mov_b32 v16, 1')
    a('ds_write2_b32 v12, v32, v34 offset0:0 offset1:1\nds_write2_b32 v12, v36, v38 offset0:128 offset1:129')
    a('s_waitcnt lgkmcnt(0)\nds_write_b32 v14, v16')
    a('s_branch L_nq3')
    a('L_nq2:')
    a('s_mov_b32 s30, 0')
    a('L_qspin:')
    a('ds_read_b32 v16, v14\ns_add_u32 s30, s30, 1\ns_waitcnt lgkmcnt(0)')
    a('v_cmp_ne_u32 vcc, 1, v16\ns_cbranch_vccz L_nq3')
    a(f's_sleep 1\ns_cmp_lt_u32 s30, {LIMIT*8}\ns_cbranch_scc1 L_qspin')
    a('L_nq3:')
    a(f'v_and_b32 v12, 3, v15\nv_lshlrev_b32 v12, 8, v12\nv_lshl_add_u32 v12, v7, 4, v12\nv_add_u32 v12, {QL}, v12')
    for k in range(4): a(f'ds_read_b128 v[{16+4*k}:{19+4*k}], v12 offset:{64*k}')
    a('s_waitcnt vmcnt(0) lgkmcnt(0)')
    stamp(3)
    order = [(u, dd) for u in range(4) for dd in range(3)]
    ldsg = [4*dd+u for (u, dd) in order if 4*dd+u < 9]
    def kread(k):
        gi = ldsg[k]; buf = 64 + 16*(k & 1)
        for s in range(4):
            a(f'ds_read_b128 v[{buf+4*s}:{buf+4*s+3}], v{8+s} offset:{4096*gi}')
    kread(0)
    k = 0
    for (u, dd) in order:
        gi = 4*dd + u
        mq = 32 + 16*(u & 1)
        if u == 0 and dd == 0:
            for r in range(16): a(f'v_cndmask_b32 v{mq+r}, 0, v{16+r}, s[36:37]')
        if gi < 9:
            src = 64 + 16*(k & 1)
            if k + 1 < len(ldsg):
                kread(k + 1); a('s_waitcnt lgkmcnt(4)')
            else:
                a('s_waitcnt lgkmcnt(0)')
            k += 1
        else:
            src = 96 + 16*(gi - 9)
        D = 144 + 4*dd
        for s in range(4):
            c = '0' if (u == 0 and s == 0) else f'v[{D}:{D+3}]'
            a(f'v_mfma_f32_16x16x32_bf16 v[{D}:{D+3}], v[{src+4*s}:{src+4*s+3}], v[{mq+4*s}:{mq+4*s+3}], {c}')
            if u < 3 and dd < 2:
                mq2 = 32 + 16*((u+1) & 1)
                for r in (8*dd + 2*s, 8*dd + 2*s + 1):
                    a(f'v_cndmask_b32 v{mq2+r}, 0, v{16+r}, s[{38+2*u}:{39+2*u}]')
    if cfg.il:
        a('v_mov_b32 v160, 0xff800000')
        for r in range(4):
            a(f'v_cmp_lt_i32 vcc, {4*r}, v161\nv_cndmask_b32 v{152+r}, v160, v{152+r}, vcc')
    else:
        a('s_cmp_lg_u32 s4, 3\ns_cbranch_scc1 L_nomask')
        a('v_mov_b32 v160, 0xff800000')
        for dd in range(3):
            for r in range(4):
                a(f'v_cmp_lt_i32 vcc, {64*dd + 4*r}, v161\nv_cndmask_b32 v{144+4*dd+r}, v160, v{144+4*dd+r}, vcc')
        a('L_nomask:')
        a('s_nop 7')
    a('v_max3_f32 v156, v144, v145, v146\nv_max3_f32 v157, v147, v148, v149')
    a('v_max3_f32 v158, v150, v151, v152\nv_max3_f32 v159, v153, v154, v155')
    a('v_max3_f32 v156, v156, v157, v158\nv_max_f32 v156, v156, v159')
    def xreduce(op, r, t):
        a(f'{op}_dpp v{r}, v{r}, v{r} row_ror:4 row_mask:0xf bank_mask:0xf')
        a(f'{op}_dpp v{r}, v{r}, v{r} row_ror:8 row_mask:0xf bank_mask:0xf')
        a(f'v_mov_b32 v{t}, v{r}\nv_permlane16_swap_b32 v{r}, v{t}\n{op} v{r}, v{r}, v{t}')
        a(f'v_mov_b32 v{t}, v{r}\nv_permlane32_swap_b32 v{r}, v{t}\n{op} v{r}, v{r}, v{t}')
    xreduce('v_max_f32', 156, 157)
    a(f's_mov_b32 s6, {f2u(128**-0.5 * LOG2E)}')
    a('v_mul_f32 v158, s6, v156')
    for r in range(12): a(f'v_fma_f32 v{144+r}, v{144+r}, s6, -v158')
    for r in range(12): a(f'v_exp_f32 v{144+r}, v{144+r}')
    for dd in range(3):
        D = 144 + 4*dd
        a(f'v_cvt_pk_bf16_f32 v{32+2*dd}, v{D}, v{D+1}\nv_cvt_pk_bf16_f32 v{33+2*dd}, v{D+2}, v{D+3}')
        a(f'ds_write_b64 v13, v[{32+2*dd}:{33+2*dd}] offset:{(256 if cfg.il else 512)*dd}')
    a('v_add_f32 v159, v144, v145')
    for r in range(2, 12): a(f'v_add_f32 v159, v159, v{144+r}')
    xreduce('v_add_f32', 159, 157)
    a(f's_lshl_b32 s6, s4, 5\ns_add_u32 s6, s6, {ST}')
    a('v_lshl_add_u32 v14, v1, 3, s6')
    a('s_mov_b64 exec, 15\nds_write_b64 v14, v[158:159]\ns_mov_b64 exec, -1')
    a('s_waitcnt lgkmcnt(0)')
    a(f'v_mov_b32 v14, {QF}\nv_mov_b32 v16, 1\ns_mov_b64 exec, 1\nds_add_u32 v14, v16 offset:4\ns_mov_b64 exec, -1')
    stamp(4)
    pspin('v14', 'v16')
    a(f'v_and_b32 v14, 3, v1\nv_lshlrev_b32 v14, 3, v14\nv_add_u32 v14, {ST}, v14')
    for w in range(4): a(f'ds_read_b64 v[{16+2*w}:{17+2*w}], v14 offset:{32*w}')
    a('v_lshrrev_b32 v2, 2, v1\nv_lshrrev_b32 v3, 4, v1\nv_add_u32 v3, v3, v1\nv_and_b32 v3, 3, v3')
    a('v_lshlrev_b32 v2, 5, v2\nv_lshl_add_u32 v2, v3, 3, v2')
    a(f's_lshl_b32 s6, s4, 9\ns_add_u32 s6, s6, {SCR}\nv_add_u32 v2, s6, v2')
    a('s_waitcnt lgkmcnt(0)')
    a('v_max3_f32 v24, v16, v18, v20\nv_max_f32 v24, v24, v22')
    for w in range(4): a(f'v_sub_f32 v{25+w}, v{16+2*w}, v24')
    for w in range(4): a(f'v_exp_f32 v{25+w}, v{25+w}')
    a('v_mul_f32 v29, v25, v17\nv_fmac_f32 v29, v26, v19\nv_fmac_f32 v29, v27, v21\nv_fmac_f32 v29, v28, v23')
    a('v_log_f32 v30, v29\nv_rcp_f32 v29, v29\nv_mov_b32 v31, s33')
    a('v_add_f32 v30, v30, v24')
    a(f's_lshl_b32 s6, s24, 11\ns_lshl_b32 s7, s25, 7\ns_add_u32 s6, s6, s7\ns_add_u32 s6, s6, {LSE}')
    a('v_lshlrev_b32 v3, 3, v1')
    a('s_cmp_eq_u32 s4, 0\ns_cselect_b32 exec_lo, 0xffff, 0\ns_mov_b32 exec_hi, 0\ns_cbranch_execz L_nlse')
    a('buffer_store_dwordx2 v[30:31], v3, s[16:19], s6 offen sc1')
    a('L_nlse:')
    a('s_mov_b64 exec, -1')
    for w in range(4): a(f'v_mul_f32 v{32+w}, v{25+w}, v29')
    for w in range(4): a(f'v_readlane_b32 s{36+w}, v{32+w}, s4')
    a('v_lshlrev_b32 v3, 2, v1')
    a('s_barrier')
    stamp(6)
    for v in range(8): a(f'ds_read_b64 v[{48+2*v}:{49+2*v}], v2 offset:{2048*v}')
    for v in range(8):
        a(f's_waitcnt lgkmcnt({7-v})')
        w = v >> 1; sp = 36 + (w & ~1)
        mod = 'op_sel_hi:[1,0,1]' if (w & 1) == 0 else 'op_sel:[0,1,0] op_sel_hi:[1,1,1]'
        mod2 = 'op_sel_hi:[1,0]' if (w & 1) == 0 else 'op_sel:[0,1] op_sel_hi:[1,1]'
        if v < 2: a(f'v_pk_mul_f32 v[{40+2*v}:{41+2*v}], v[{48+2*v}:{49+2*v}], s[{sp}:{sp+1}] {mod2}')
        else: a(f'v_pk_fma_f32 v[{40+2*(v&1)}:{41+2*(v&1)}], v[{48+2*v}:{49+2*v}], s[{sp}:{sp+1}], v[{40+2*(v&1)}:{41+2*(v&1)}] {mod}')
    a('v_pk_add_f32 v[40:41], v[40:41], v[42:43]')
    a('v_cvt_pk_bf16_f32 v40, v40, v41')
    a('buffer_store_dword v40, v3, s[16:19], s26 offen sc1')
    stamp(7)
    if cfg.stamps:
        a('s_cmp_lg_u32 s4, 0\ns_cbranch_scc1 L_end')
        stamps_out(8, 0)
    a('s_endpgm')

    a('L_vwave:')
    a('s_sub_u32 s4, s4, 4')
    a('v_lshlrev_b32 v2, 4, v1')
    a(f'v_mov_b32 v16, 0\nv_mov_b32 v17, 0\nv_mov_b32 v18, 0\nv_mov_b32 v19, 0\nv_add_u32 v9, {ZERO}, v2')
    a('s_mov_b32 exec_lo, -1\ns_mov_b32 exec_hi, 3\nds_write_b128 v9, v[16:19]\ns_mov_b64 exec, -1')
    a(f'v_mov_b32 v9, {QF}\nds_write_b64 v9, v[16:17]')
    a(f's_mul_i32 s7, s4, 768\ns_add_u32 s7, s7, {PREG}')
    a('v_and_b32 v9, 3, v1\nv_lshlrev_b32 v9, 6, v9\nv_lshrrev_b32 v10, 4, v1\nv_lshl_add_u32 v9, v10, 4, v9\nv_add_u32 v9, s7, v9')
    a(f'v_mov_b32 v11, {ZERO}')
    for x in range(4):
        a(f's_mov_b32 s34, {0x000F000F << (4*x):#x}\ns_mov_b32 s35, s34')
        a(f'v_cndmask_b32 v{3+x}, v11, v9, s[34:35]')
    a('v_and_b32 v7, 15, v1\nv_lshrrev_b32 v8, 2, v7\nv_add_u32 v8, v8, v10\nv_and_b32 v8, 3, v8')
    a('v_lshlrev_b32 v7, 5, v7\nv_lshl_add_u32 v7, v8, 3, v7')
    a(f's_lshl_b32 s7, s4, 11\ns_add_u32 s7, s7, {SCR}\nv_add_u32 v7, s7, v7\nv_add_u32 v8, 1024, v7')
    a('s_mov_b32 s36, 0x05040100\ns_mov_b32 s37, 0x07060302')
    a('s_lshl_b32 s27, s4, 13' if cfg.il else 's_mul_i32 s27, s4, 24576')
    a('s_waitcnt lgkmcnt(0)')
    a('s_add_u32 s20, s10, s6\ns_addc_u32 s21, s11, 0')
    if cfg.stamps: srd(16, 's14', 's15', WS_SZ)
    a('s_barrier')
    stamp(1)
    for i in range(24):
        r = 72 + 4*i
        a(f'buffer_load_dwordx4 v[{r}:{r+3}], v2, s[20:23], s27 offen offset:{1024*(i&3)} {cfg.NT}')
        if cfg.thV < 63 and cfg.thV <= i < cfg.nth: a(f's_waitcnt vmcnt({cfg.thV})')
        if (i & 3) == 3 and i < 23: a(f's_add_u32 s27, s27, {61440 if (cfg.il and (i & 7) == 7) else 4096}')
    stamp(2)
    pspin('v9', 'v10')
    stamp(3)
    def pread(t):
        buf = 40 + 16*(t & 1)
        for x in range(4): a(f'ds_read_b128 v[{buf+4*x}:{buf+4*x+3}], v{3+x} offset:{256*t}')
    pread(0); pread(1)
    for t in range(3):
        a(f's_waitcnt vmcnt({16-8*t})')
        if t == 2: stamp(4)
        vb = 72 + 32*t; pb = 40 + 16*(t & 1)
        for j in range(8):
            tb = 24 + 4*(j & 3)
            sel = 's37' if (j & 1) else 's36'
            for tt in range(4):
                a(f'v_perm_b32 v{tb+tt}, v{vb + 4*(2*tt+1) + (j>>1)}, v{vb + 4*(2*tt) + (j>>1)}, {sel}')
            if j == 0: a('s_waitcnt lgkmcnt(4)' if t == 0 else 's_waitcnt lgkmcnt(0)')
            if j > 0:
                jj = j - 1; tb2 = 24 + 4*(jj & 3); acc = 16 + 4*(jj & 1); x = jj >> 1
                c = '0' if (t == 0 and jj < 2) else f'v[{acc}:{acc+3}]'
                a(f'v_mfma_f32_16x16x32_bf16 v[{acc}:{acc+3}], v[{pb+4*x}:{pb+4*x+3}], v[{tb2}:{tb2+3}], {c}')
        a(f'v_mfma_f32_16x16x32_bf16 v[20:23], v[{pb+12}:{pb+15}], v[36:39], v[20:23]')
        if t == 0: pread(2)
    for r in range(4):
        ad = 7 + (r >> 1); o = 128*(r & 1)
        a(f'ds_write2_b32 v{ad}, v{16+r}, v{20+r} offset0:{o} offset1:{o+1}')
    a('s_waitcnt lgkmcnt(0)')
    stamp(5)
    a('s_barrier')
    if cfg.stamps:
        a('s_cmp_lg_u32 s4, 0\ns_cbranch_scc1 L_end')
        stamps_out(6, 8)
    a('s_endpgm')

    a('L_spare:')
    a('s_cmp_lg_u32 s5, 0\ns_cbranch_scc1 L_end')
    a('s_cmp_lg_u32 s4, 8\ns_cbranch_scc1 L_end')
    a('v_mov_b32 v4, -1\nv_mov_b32 v5, -1\nv_mov_b32 v6, -1\nv_mov_b32 v7, -1')
    a(f's_lshl_b32 s6, s3, 10\ns_add_u32 s6, s6, {WOUT}\nv_lshlrev_b32 v2, 4, v1\nv_add_u32 v2, s6, v2')
    a(f's_lshl_b32 s6, s3, 12\ns_add_u32 s6, s6, {MOUT}\nv_lshlrev_b32 v8, 4, v1\nv_add_u32 v8, s6, v8')
    a('s_waitcnt lgkmcnt(0)')
    a('global_store_dwordx4 v2, v[4:7], s[14:15] sc1')
    a('s_cmp_ge_u32 s3, 28\ns_cbranch_scc1 L_sp2')
    for i in range(4): a(f'global_store_dwordx4 v8, v[4:7], s[14:15] offset:{1024*i} sc1')
    a('L_sp2:')
    a('s_waitcnt vmcnt(0)')
    a('s_endpgm')

    AT=136; DD=32; Z=36; T=38; ZT=37; F0=40; F1=72; F2=104
    a('L_hearly:')
    a('s_cmp_lt_u32 s4, 8\ns_cbranch_scc1 L_hm')
    if cfg.warm:
        a('s_lshr_b32 s6, s2, 4\ns_xor_b32 s7, s4, 11\ns_or_b32 s6, s6, s7\ns_cbranch_scc1 L_spare')
        a('s_getpc_b64 s[36:37]\nL_pc:\ns_sub_u32 s36, s36, L_pc-L_stream\ns_subb_u32 s37, s37, 0\nv_lshlrev_b32 v2, 7, v1')
        a('s_mov_b32 s38, L_end-L_stream\ns_mov_b32 s39, 0x20000\ns_mov_b32 s6, 8192')
        a('s_waitcnt lgkmcnt(0)') if False else None
        a('buffer_load_dword v4, v2, s[36:39], 0 offen\nbuffer_load_dword v5, v2, s[36:39], s6 offen')
        a('s_endpgm')
    else:
        a('s_branch L_spare')
    a('L_hm:')
    a('s_cmp_eq_u32 s5, 0')
    a('s_cselect_b32 s6, 88, 24')
    a('s_load_dwordx2 s[20:21], s[0:1], s6')
    a('s_mov_b32 s7, 8192\ns_cselect_b32 s7, 6144, s7')
    a('s_cselect_b32 s29, 2, 4')
    a('s_cselect_b32 s24, 5, 6')
    a('s_lshl_b32 s22, s7, 9')
    a('s_lshl_b32 s25, s3, 8')
    a('s_lshr_b32 s26, s3, 1\ns_lshl_b32 s26, s26, 7\ns_and_b32 s27, s3, 1\ns_mul_i32 s27, s27, 256*6144\ns_add_u32 s26, s26, s27')
    a('s_cmp_eq_u32 s5, 0\ns_cselect_b32 s25, s26, s25')
    a('v_bfe_u32 v10, v1, 4, 1\nv_and_b32 v12, 7, v1\nv_xor_b32 v10, v10, v12')
    a('s_and_b32 s27, s4, 4\nv_xor_b32 v10, s27, v10')
    a('v_lshrrev_b32 v2, 3, v1\nv_mul_u32_u24 v2, s7, v2\nv_xor_b32 v12, 2, v10')
    a('v_lshl_add_u32 v12, v12, 4, v2\nv_lshl_add_u32 v2, v10, 4, v2')
    a('s_mov_b32 s23, 0x20000')
    a('s_lshl_b32 s6, s4, s24\ns_mul_i32 s27, s6, s7\ns_add_u32 s27, s27, s25')
    a('s_lshl_b32 s28, s6, 7\ns_lshl_b32 s7, s7, 3')
    a('s_waitcnt lgkmcnt(0)')
    a('L_hdma:')
    a('s_mov_b32 m0, s28\ns_add_u32 s28, s28, 1024')
    a(f'buffer_load_dwordx4 v2, s[20:23], s27 offen {cfg.NT} lds')
    a('s_add_u32 s27, s27, s7\ns_mov_b32 m0, s28\ns_add_u32 s28, s28, 1024')
    a(f'buffer_load_dwordx4 v12, s[20:23], s27 offen {cfg.NT} lds')
    a('s_add_u32 s27, s27, s7\ns_sub_u32 s29, s29, 1\ns_cmp_lg_u32 s29, 0\ns_cbranch_scc1 L_hdma')
    a('L_helper:')
    epoch_load()
    if cfg.diag is not None: a(f's_load_dword s96, s[14:15], {XID+4}\ns_load_dword s97, s[14:15], {EPO}')
    a('s_load_dwordx2 s[44:45], s[0:1], 0')
    a('s_load_dwordx4 s[48:51], s[0:1], 24')
    a('s_load_dwordx4 s[52:55], s[0:1], 80')
    a('v_lshrrev_b32 v10, 3, v1\nv_and_b32 v11, 3, v1\nv_lshlrev_b32 v11, 1, v11\nv_lshl_add_u32 v10, v10, 3, v11')
    a('v_bfe_u32 v11, v1, 2, 1')
    a('s_lshl_b32 s6, s4, 6\nv_add_u32 v12, s6, v10')
    a('v_lshlrev_b32 v6, 1, v12\nv_lshl_add_u32 v6, v11, 10, v6')
    a(f'v_lshlrev_b32 v9, 2, v12\nv_lshl_add_u32 v9, v11, 11, v9\nv_add_u32 v9, {X1}, v9')
    a(f's_lshr_b32 s6, s4, 2\ns_mul_i32 s6, s6, 576\ns_and_b32 s7, s4, 3\ns_lshl_b32 s7, s7, 7\ns_add_u32 s6, s6, s7\ns_add_u32 s6, s6, {ACT}')
    a('v_mul_u32_u24 v7, 1152, v11\nv_lshl_add_u32 v7, v10, 1, v7\nv_add_u32 v7, s6, v7')
    a('v_lshrrev_b32 v13, 3, v1\nv_lshlrev_b32 v13, 2, v13\nv_lshl_add_u32 v13, v11, 5, v13')
    a(f'v_add_u32 v13, {STAT}, v13')
    a('s_waitcnt lgkmcnt(0)')
    srd(16, 's14', 's15', WS_SZ)
    epoch_tag()
    a('global_load_dword v17, v6, s[52:53]')
    a('global_load_dword v16, v6, s[44:45]')
    a('s_cmp_eq_u32 s5, 0\ns_cbranch_scc1 L_t2')
    a('s_add_u32 s24, s25, 128')
    dma_u1('s48', 's49', 512*8192, 8192, 's24', R1)
    a('s_branch L_h2')
    a('L_t2:')
    a('s_lshr_b32 s26, s3, 1\ns_lshl_b32 s24, s26, 18\ns_and_b32 s6, s3, 1\ns_lshl_b32 s6, s6, 9\ns_add_u32 s24, s24, s6')
    dma_w(8, 8 + cfg.pre)
    a('L_h2:')
    a('v_lshrrev_b32 v10, 4, v1\nv_bfe_u32 v11, v1, 2, 2\nv_lshl_add_u32 v3, v10, 3, v11')
    a('v_bfe_u32 v11, v1, 1, 1\nv_lshl_add_u32 v3, v11, 8, v3\nv_lshlrev_b32 v3, 7, v3')
    a('v_bfe_u32 v12, v1, 3, 2\nv_lshl_add_u32 v12, v11, 2, v12\nv_xor_b32 v12, s4, v12\nv_lshl_add_u32 v3, v12, 4, v3')
    a('v_and_b32 v12, 1, v1\nv_lshl_add_u32 v3, v12, 3, v3')
    a(f'v_lshl_add_u32 v4, v12, 1, v11\nv_mul_u32_u24 v4, 576, v4\nv_lshl_add_u32 v4, v10, 4, v4\nv_add_u32 v4, {ACT}, v4')
    a('v_lshlrev_b32 v5, 3, v0')
    a('s_lshl_b32 s6, s4, 7\nv_lshl_add_u32 v8, v1, 3, s6\nv_lshlrev_b32 v28, 4, v0')
    a(f'v_and_b32 v10, 0x37, v1\nv_cmp_eq_u32 vcc, 1, v10\nv_mov_b32 v18, {f2u(1e-5)}\nv_cndmask_b32 v18, 0, v18, vcc')
    a(f'v_lshlrev_b32 v10, 2, v1\nv_add_u32 v10, {STAT}, v10\nv_mov_b32 v{T+1}, s33\nv_mov_b32 v{ZT}, s33')
    a('s_mov_b32 exec_lo, -1\ns_mov_b32 exec_hi, 0xffff\nds_write_b32 v10, v18\ns_mov_b64 exec, -1')

    def tr_u1(F, region, steps=8, ad=None):
        if ad is None:
            if region: a(f'v_add_u32 v10, {region}, v3')
            ad = 'v10' if region else 'v3'
        for s in range(steps):
            for hh in range(2):
                a(f'ds_read_b64_tr_b16 v[{F+4*s+2*hh}:{F+4*s+2*hh+1}], {ad} offset:{4096*s + 512*hh}')
    def gemv(Fs, ad='v4', fill=(), off=0, steps=8, Ds=None):
        if isinstance(Fs, int): Fs = [Fs]
        if Ds is None: Ds = [DD]
        fill = list(fill)
        for s in range(steps): a(f'ds_read_b128 v[{AT+4*s}:{AT+4*s+3}], {ad} offset:{64*s+off}')
        per = (len(fill) + steps - 2) // (steps - 1)
        for s in range(steps):
            a(f's_waitcnt lgkmcnt({steps-1-s})')
            for F, D in zip(Fs, Ds):
                c = '0' if s == 0 else f'v[{D}:{D+3}]'
                a(f'v_mfma_f32_16x16x32_bf16 v[{D}:{D+3}], v[{AT+4*s}:{AT+4*s+3}], v[{F+4*s}:{F+4*s+3}], {c}')
            for _ in range(per):
                if fill: a(fill.pop(0))
        for x in fill: a(x)
    def sgemv(Fs, Ds, ad, idx, off=0, fill=(), steps=4, lead=2):
        fill = list(fill)
        for s in range(steps): a(f'ds_read_b128 v[{AT+4*s}:{AT+4*s+3}], {ad} offset:{64*s+off}')
        per = lead
        for s in range(steps):
            a(f's_waitcnt lgkmcnt({steps-1-s})')
            for F, D in zip(Fs, Ds):
                a(f'v_smfmac_f32_16x16x64_bf16 v[{D}:{D+3}], v[{AT+4*s}:{AT+4*s+3}], v[{F+8*s}:{F+8*s+7}], {idx}')
            for _ in range(per):
                if fill: a(fill.pop(0))
        for x in fill: a(x)
    def fold(D=DD, z=Z):
        a(f'v_add_f32_dpp v{z}, v{D+2}, v{D} row_ror:8 row_mask:0xf bank_mask:0x3')
        a(f'v_add_f32_dpp v{z}, v{D+1}, v{D+3} row_ror:8 row_mask:0xf bank_mask:0xc')
    def publish_tag(z, soff):
        a(f's_mov_b64 exec, 0xffff\nbuffer_store_dwordx2 v[{Z}:{Z+1}], v8, s[16:19], {soff} offen sc1\ns_mov_b64 exec, -1')
    def store2(text):
        if not cfg.fast: a(text + ' sc1'); return
        l = lab('fs'); d = lab('fd')
        a(f's_cbranch_scc1 {l}')
        a(text + ' sc1'); a(f's_branch {d}')
        a(f'{l}:'); a(text); a(f'{d}:')
    def unpack(lo, hi, src):
        a(f'v_lshlrev_b32 v{lo}, 16, v{src}\nv_and_b32 v{hi}, 0xffff0000, v{src}')
    def red6(vals, off, TT, scale=None, ad='v13'):
        r01, r23, r45, z = TT
        for r, (e, o) in zip((r01, r23, r45), ((vals[0], vals[1]), (vals[2], vals[3]), (vals[4], vals[5]))):
            a(f'v_add_f32_dpp v{r}, v{e}, v{e} row_ror:8 row_mask:0xf bank_mask:0x3')
        for r, (e, o) in zip((r01, r23, r45), ((vals[0], vals[1]), (vals[2], vals[3]), (vals[4], vals[5]))):
            a(f'v_add_f32_dpp v{r}, v{o}, v{o} row_ror:8 row_mask:0xf bank_mask:0xc')
        a(f'v_permlane16_swap_b32 v{r01}, v{r23}\nv_permlane16_swap_b32 v{r45}, v{z}')
        a(f'v_add_f32 v{r01}, v{r01}, v{r23}\nv_add_f32 v{r45}, v{r45}, v{z}')
        a(f'v_permlane32_swap_b32 v{r01}, v{r45}\nv_add_f32 v{r01}, v{r01}, v{r45}')
        a(f'v_add_f32_dpp v{r01}, v{r01}, v{r01} quad_perm:[1,0,3,2] row_mask:0xf bank_mask:0xf')
        a(f'v_add_f32_dpp v{r01}, v{r01}, v{r01} quad_perm:[2,3,0,1] row_mask:0xf bank_mask:0xf')
        a(f's_mov_b32 exec_lo, 0x11111111\ns_mov_b32 exec_hi, 0x1111')
        if scale: a(f'v_mul_f32 v{r01}, v{r01}, {scale}')
        a(f'ds_add_f32 {ad}, v{r01} offset:{off}\ns_mov_b64 exec, -1')

    stamp(1)
    def silu():
        unpack(18, 19, 17)
        a(f's_mov_b32 s6, {f2u(-LOG2E)}')
        a('v_mul_f32 v20, s6, v18\nv_mul_f32 v21, s6, v19\nv_exp_f32 v20, v20\nv_exp_f32 v21, v21')
        a('v_add_f32 v20, 1.0, v20\nv_add_f32 v21, 1.0, v21\nv_rcp_f32 v20, v20\nv_rcp_f32 v21, v21')
        a('v_mul_f32 v18, v18, v20\nv_mul_f32 v19, v19, v21\nv_cvt_pk_bf16_f32 v18, v18, v19')
        a(f'ds_write_b32 v7, v18 offset:{ACTC-ACT}')
        unpack(14, 15, 16)
    a('s_cmp_eq_u32 s5, 0\ns_cbranch_scc1 L_tail')
    mloads = [f'buffer_load_dwordx4 v[{AT+4*k}:{AT+4*k+3}], v28, s[16:19], s{60+k} offen sc1' for k in range(4)]
    for k in range(4): a(f's_mov_b32 s{60+k}, {MODA + 8192*k}')
    for x in mloads: a(x)
    a('s_waitcnt vmcnt(12)')
    stamp(2)
    silu()
    a('v_add_f32 v18, v14, v15\nv_mul_f32 v19, v14, v14\nv_fmac_f32 v19, v15, v15')
    a('s_waitcnt lgkmcnt(0)\ns_barrier')
    red6([18, 19, 18, 19, 18, 19], STAT2 - STAT, (24, 25, 26, 27))
    tr_u1(F0, R0)
    a('s_waitcnt lgkmcnt(0)\ns_barrier')
    stamp(3)
    a('s_lshl_b32 s24, s3, 7\ns_add_u32 s24, s24, 2048')
    if cfg.apre: dma_u1('s54', 's55', 512*6144, 6144, 's24', R0, i1=cfg.apre)
    a(f'v_bfe_u32 v10, v1, 2, 1\nv_lshlrev_b32 v10, 5, v10\nv_add_u32 v10, {STAT2}, v10')
    a('ds_read_b64 v[18:19], v10\ns_waitcnt lgkmcnt(0)')
    a(f's_mov_b32 s6, {f2u(1/512)}\ns_mov_b32 s7, {f2u(1e-5)}')
    a('v_mul_f32 v18, s6, v18\nv_mul_f32 v19, s6, v19\nv_fma_f32 v19, -v18, v18, v19\nv_add_f32 v19, s7, v19\nv_rsq_f32 v19, v19')
    a('v_sub_f32 v20, v14, v18\nv_sub_f32 v21, v15, v18\nv_mul_f32 v20, v20, v19\nv_mul_f32 v21, v21, v19')
    a('v_bfe_u32 v30, v1, 1, 2\nv_lshlrev_b32 v30, 3, v30\nv_bfe_u32 v11, v1, 3, 1\nv_lshl_add_u32 v30, v11, 9, v30\nv_bfe_u32 v11, v1, 4, 1\nv_lshl_add_u32 v30, v11, 8, v30')
    a(f's_lshl_b32 s6, s4, 5\ns_add_u32 s6, s6, {X1}\nv_add_u32 v30, s6, v30')
    a(f'v_lshlrev_b32 v31, 4, v1\nv_add_u32 v29, {X1}, v31\nv_lshrrev_b32 v11, 5, v1\nv_mul_u32_u24 v11, 1536, v11\nv_add_u32 v31, v31, v11')
    vpoll(mloads, range(AT+1, AT+16, 2), 22, first_issued=True, tags=True, sleep=cfg.slp, first_cnt=cfg.apre)
    stamp(4)
    a(f'v_add_f32 v22, v{AT}, v{AT+8}\nv_add_f32 v23, v{AT+2}, v{AT+10}\nv_add_f32 v24, v{AT+4}, v{AT+12}\nv_add_f32 v25, v{AT+6}, v{AT+14}')
    a('v_add_f32 v24, 1.0, v24\nv_add_f32 v25, 1.0, v25\nv_fma_f32 v20, v20, v24, v22\nv_fma_f32 v21, v21, v25, v23')
    a('v_cvt_pk_bf16_f32 v20, v20, v21\nds_write_b32 v7, v20\ns_waitcnt lgkmcnt(0)\ns_barrier')
    stamp(5)
    tr_u1(F1, R1)
    gemv([F0, F1], Ds=[DD, 24])
    a(f'v_add_f32_dpp v{Z}, v{DD+2}, v{DD} row_ror:8 row_mask:0x1 bank_mask:0x3')
    a(f'v_add_f32_dpp v{Z}, v{DD+1}, v{DD+3} row_ror:8 row_mask:0x1 bank_mask:0xc')
    a(f'v_add_f32_dpp v{Z}, v26, v24 row_ror:8 row_mask:0x2 bank_mask:0x3')
    a(f'v_add_f32_dpp v{Z}, v25, v27 row_ror:8 row_mask:0x2 bank_mask:0xc')
    a(f'v_mov_b32_dpp v{T}, v{Z} quad_perm:[1,1,3,3] row_mask:0xf bank_mask:0xf')
    a(f's_mov_b64 exec, 0x55555555')
    a(f'v_cvt_pk_bf16_f32 v{T}, v{Z}, v{T}')
    a(f'ds_write_b64 v30, v[{T}:{T+1}]\ns_mov_b64 exec, -1')
    a('s_waitcnt lgkmcnt(0)\ns_barrier')
    a('s_cmp_lg_u32 s4, 0\ns_cbranch_scc1 L_nqp')
    a(f's_lshr_b32 s6, s3, 2\ns_lshl_b32 s6, s6, 12\ns_and_b32 s7, s3, 3\ns_lshl_b32 s7, s7, 9\ns_add_u32 s6, s6, s7\ns_add_u32 s6, s6, {QO}')
    a('ds_read_b128 v[24:27], v29\ns_waitcnt lgkmcnt(0)')
    a('buffer_store_dwordx4 v[24:27], v31, s[16:19], s6 offen sc1')
    a('L_nqp:')
    stamp(6)
    dma_u1('s54', 's55', 512*6144, 6144, 's24', R0, i0=cfg.apre)
    a('s_waitcnt vmcnt(0)\ns_barrier')
    tr_u1(F0, R0)
    gemv(F0, off=ACTC-ACT); fold()
    a(f's_lshl_b32 s6, s3, 10\ns_add_u32 s6, s6, {MODB}')
    publish_tag(Z, 's6')
    stamp(7)
    if cfg.stamps:
        a('s_cmp_lg_u32 s4, 0\ns_cbranch_scc1 L_end')
        stamps_out(8, 0)
    a('s_endpgm')

    a('L_tail:')
    a(f's_waitcnt vmcnt({cfg.pre})')
    stamp(2)
    silu()
    a('s_load_dwordx8 s[52:59], s[0:1], 48')
    a('s_load_dwordx2 s[46:47], s[0:1], 96')
    if cfg.diag is not None: a('s_waitcnt lgkmcnt(0)\ns_load_dwordx2 s[98:99], s[46:47], 0')
    a('v_bfe_u32 v11, v1, 1, 1\nv_lshlrev_b32 v10, 14, v11\nv_sub_u32 v10, v3, v10')
    a('v_mul_u32_u24 v11, 320, v11\nv_sub_u32 v11, v4, v11\ns_and_b32 s6, s3, 1\ns_mul_i32 s6, s6, 576\nv_add_u32 v11, s6, v11')
    a('s_waitcnt lgkmcnt(0)\ns_barrier')
    tr_u1(F0, R0, 4, 'v10')
    gemv(F0, 'v11', off=ACTC-ACT, steps=4); fold()
    a('s_and_b32 s6, s3, 1\ns_lshl_b32 s6, s6, 14\ns_lshr_b32 s7, s3, 1\ns_lshl_b32 s7, s7, 10\ns_add_u32 s6, s6, s7')
    publish_tag(Z, 's6')
    stamp(3)
    dma_w(8 + cfg.pre, 16, setup=False)
    a('s_barrier')
    dma_w(0, 8, setup=False)
    a('v_lshrrev_b32 v10, 4, v1\nv_bfe_u32 v11, v1, 2, 2\nv_lshl_add_u32 v10, v10, 3, v11\nv_lshlrev_b32 v10, 9, v10')
    a('v_and_b32 v11, 3, v1\nv_lshl_add_u32 v10, v11, 3, v10')
    a('v_bfe_u32 v11, v1, 2, 3\nv_lshlrev_b32 v11, 5, v11\ns_lshl_b32 s6, s4, 6\nv_xor_b32 v11, s6, v11')
    a('v_add_u32 v22, v10, v11\nv_xor_b32 v11, 32, v11\nv_add_u32 v30, v10, v11')
    def tr_w(half):
        for cg, ad in ((0, 22), (1, 30)):
            if half: a(f'v_add_u32 v{10+cg}, {R1}, v{ad}')
            for s_ in range(4):
                for hh in range(2):
                    r = (F0, F1)[cg] + 4*(4*half + s_) + 2*hh
                    a(f'ds_read_b64_tr_b16 v[{r}:{r+1}], v{10+cg if half else ad} offset:{16384*s_ + 2048*hh}')
    a(f's_getreg_b32 s6, hwreg(HW_REG_XCC_ID)\ns_and_b32 s31, s6, 15\nv_mov_b32 v{T}, s31')
    a(f's_lshl_b32 s6, s3, 7\ns_add_u32 s6, s6, {XID}\nv_lshlrev_b32 v10, 3, v1')
    a('s_cmp_eq_u32 s4, 0\ns_cselect_b32 exec_lo, 0xffff, 0\ns_mov_b32 exec_hi, 0\ns_cbranch_execz L_nxid')
    a(f'buffer_store_dwordx2 v[{T}:{T+1}], v10, s[16:19], s6 offen sc1')
    a('L_nxid:')
    a('s_mov_b64 exec, -1')
    a('s_waitcnt vmcnt(8)\ns_barrier')
    stamp(4)
    tr_w(1)
    a('s_waitcnt lgkmcnt(0)\ns_barrier')
    a('s_cmp_ge_u32 s3, 28\ns_cbranch_scc1 L_nom1')
    a('s_lshl_b32 s24, s3, 7')
    dma_u1('s52', 's53', 512*3584, 3584, 's24', R1)
    stamp(5)
    a('s_waitcnt vmcnt(8)\ns_branch L_m1d')
    a('L_nom1:')
    a('s_waitcnt vmcnt(0)')
    a('L_m1d:')
    a('s_barrier')
    tr_w(0)
    a('s_waitcnt lgkmcnt(0)\ns_barrier')
    stamp(7)
    a('s_cmp_ge_u32 s3, 28\ns_cbranch_scc1 L_nom2')
    srd(20, 's56', 's57', 1792*1024)
    a('s_and_b32 s6, s4, 1\ns_lshl_b32 s6, s6, 7\nv_lshlrev_b32 v2, 4, v1\nv_xor_b32 v2, s6, v2')
    a('v_xor_b32 v10, 32, v2\nv_xor_b32 v11, 64, v2\nv_xor_b32 v12, 96, v2')
    a(f's_lshl_b32 s27, s3, 16\ns_lshl_b32 s28, s4, 13\ns_add_u32 s27, s27, s28')
    for hh in range(2):
        a('s_mov_b32 m0, s28')
        for i in range(4): a(f'buffer_load_dwordx4 v{(2,10,11,12)[i]}, s[20:23], s27 offen offset:{1024*i} {cfg.NT} lds')
        if hh == 0: a('s_add_u32 s27, s27, 4096\ns_add_u32 s28, s28, 4096')
    stamp(6)
    if cfg.touch:
        a(f's_lshl_b32 s6, s3, 12\ns_add_u32 s6, s6, {MOUT}\nbuffer_load_dwordx2 v[{DD}:{DD+1}], v5, s[16:19], s6 offen sc1')
    a('v_and_b32 v10, 7, v1\nv_lshlrev_b32 v10, 1, v10')
    a('s_and_b32 s6, s3, 15\ns_lshl_b32 s6, s6, 5\ns_lshl_b32 s7, s4, 2\ns_add_u32 s6, s6, s7')
    a('v_and_b32 v11, 1, v1\nv_lshl_add_u32 v11, v11, 1, s6\nv_bfe_u32 v12, v1, 4, 1\nv_add_u32 v23, v11, v12')
    a('v_lshlrev_b32 v11, 1, v23\nglobal_load_ushort v24, v11, s[58:59]')
    a('s_lshl_b32 s6, s3, 7\ns_lshl_b32 s7, s4, 4\ns_add_u32 s6, s6, s7')
    a('v_add_u32 v11, s6, v10\nglobal_load_ushort v25, v11, s[54:55]')
    a('L_nom2:')
    if cfg.touch:
        a(f's_lshl_b32 s6, s3, 10\ns_add_u32 s6, s6, {WOUT}\nv_lshlrev_b32 v10, 4, v1\nbuffer_load_dword v{DD+2}, v10, s[16:19], s6 offen sc1')
    a(f'v_and_b32 v10, 31, v1\nv_lshlrev_b32 v10, 7, v10\ns_mov_b32 s6, {XID}')
    vpoll([f'buffer_load_dwordx2 v[{AT}:{AT+1}], v10, s[16:19], s6 offen sc1'], [AT+1], None, sleep=cfg.slp, tags=True)
    a(f'v_cmp_ne_u32 vcc, s31, v{AT}\ns_cmp_eq_u64 vcc, 0\ns_cselect_b32 s32, 1, 0')
    a('s_cmp_ge_u32 s3, 28\ns_cbranch_scc1 L_wst')
    a('s_barrier')
    tr_u1(F2, R1)
    a('v_lshrrev_b32 v11, 3, v23\nv_lshlrev_b32 v11, 7, v11\nv_and_b32 v12, 7, v23\nv_lshl_add_u32 v11, v12, 3, v11\nv_bfe_u32 v12, v1, 3, 1\nv_lshl_add_u32 v11, v12, 6, v11')
    a(f's_mov_b32 s63, {MODB + 24*1024}')
    for k in range(3): a(f's_mov_b32 s{60+k}, {MODB + 8192*k}')
    a('v_lshlrev_b32 v24, 16, v24\nv_lshlrev_b32 v25, 16, v25')
    a(f'v_mov_b32 v{AT+15}, 0x3f803f80\nds_write_b32 v7, v{AT+15} offset:{ACTM-ACT+3*TS}')
    stamp(1)
    vpoll([f'buffer_load_dwordx4 v[{AT+4*k}:{AT+4*k+3}], v28, s[16:19], s{60+k} offen sc1' for k in range(3)] +
          [f'buffer_load_dwordx2 v[{AT+12}:{AT+13}], v11, s[16:19], s63 offen sc1'], range(AT+1, AT+14, 2), AT+14, sleep=cfg.slp, tags=True)
    stamp(8)
    a(f'v_mov_b32 v23, v{AT+12}\nv_mov_b32 v16, v{AT}\nv_mov_b32 v17, v{AT+2}')
    a(f'v_add_f32 v18, 1.0, v{AT+8}\nv_add_f32 v19, 1.0, v{AT+10}\nv_cvt_pk_bf16_f32 v{AT+1}, v{AT+4}, v{AT+6}\nv_cvt_pk_bf16_f32 v{AT+3}, v18, v19')
    unpack(18, 19, AT+3); unpack(20, 21, AT+1)
    a(f'ds_write_b32 v7, v{AT+3} offset:{ACTM-ACT+TS}\nds_write_b32 v7, v{AT+1} offset:{ACTM-ACT+2*TS}')
    t = AT + 16
    a(f'v_add_f32 v{t}, v18, v19\nv_mul_f32 v{t+1}, v18, v18\nv_fmac_f32 v{t+1}, v19, v19')
    a(f'v_mul_f32 v{t+2}, v18, v20\nv_fmac_f32 v{t+2}, v19, v21\nv_add_f32 v{t+3}, v20, v21')
    a(f'v_mul_f32 v{t+4}, v20, v20\nv_fmac_f32 v{t+4}, v21, v21')
    red6([t, t+1, t+2, t+3, t+4, t+4], STAT3 - STAT, (t+6, t+7, t+8, t+9))
    a(f'v_bfe_u32 v10, v1, 2, 2\nv_mul_u32_u24 v10, {TS}, v10\nv_add_u32 v10, v10, v4')
    a('s_waitcnt lgkmcnt(0)\ns_barrier')
    gemv(F2, 'v10', off=ACTM-ACT); fold()
    a(f'v_mov_b32 v26, v{Z}\nv_permlane16_swap_b32 v{Z}, v26')
    a(f'v_mov_b32 v27, v{Z}\nv_mov_b32 v28, v26\nv_permlane32_swap_b32 v{Z}, v27\nv_permlane32_swap_b32 v26, v28')
    a('L_wst:')
    if cfg.dirty:
        a(f's_lshl_b32 s6, s3, 15\ns_add_u32 s6, s6, 0xA0000\nv_lshlrev_b32 v10, 4, v0')
        srd(20, 's14', 's15', 0x200000)
        for i in range(cfg.dirty):
            a(f'buffer_store_dwordx4 v[40:43], v10, s[20:23], s6 offen\ns_add_u32 s6, s6, 8192')
    a('s_lshr_b32 s6, s4, 2\ns_lshl_b32 s24, s6, 3\ns_lshr_b32 s7, s26, 1\ns_add_u32 s24, s24, s7')
    a('s_and_b32 s7, s26, 1\ns_lshl_b32 s7, s7, 1\ns_bfe_u32 s28, s4, 0x10001\ns_add_u32 s7, s7, s28')
    a(f's_lshl_b32 s27, s24, 11\ns_lshl_b32 s29, s7, 3\ns_add_u32 s27, s27, s29\ns_add_u32 s27, s27, {LSE}')
    a(f's_lshl_b32 s60, s24, 14\ns_lshl_b32 s29, s7, 8\ns_add_u32 s60, s60, s29\ns_and_b32 s29, s4, 1\ns_lshl_b32 s29, s29, 7\ns_add_u32 s60, s60, s29\ns_add_u32 s60, s60, {OP}')
    a('s_add_u32 s61, s60, 4096')
    a(f's_mul_i32 s6, s6, 1152\ns_and_b32 s29, s4, 3\ns_lshl_b32 s29, s29, 6\ns_add_u32 s6, s6, s29\ns_add_u32 s6, s6, {ACT}')
    a('v_and_b32 v31, 1, v1\nv_mul_u32_u24 v31, 576, v31\nv_bfe_u32 v10, v1, 1, 4\nv_lshl_add_u32 v31, v10, 2, v31\nv_add_u32 v31, s6, v31')
    a('s_mov_b32 s62, 6144\nv_and_b32 v2, 31, v1\nv_lshlrev_b32 v2, 2, v2\nv_lshrrev_b32 v10, 5, v1\nv_mad_u32_u24 v2, v10, s62, v2')
    a(f's_lshl_b32 s29, s3, 10\ns_add_u32 s29, s29, {WOUT}')
    a('v_and_b32 v11, 2, v1\nv_cmp_eq_u32 vcc, 0, v11\nv_mov_b32 v11, 0xeeee\nv_mov_b32 v22, 0x4444\nv_cndmask_b32 v22, v11, v22, vcc')
    for r in range(8): a(f'v_mov_b32 v{DD+r}, 0')
    a('v_bfe_u32 v8, v1, 1, 2\nv_lshlrev_b32 v8, 4, v8\nv_bfe_u32 v11, v1, 4, 1\nv_lshl_add_u32 v8, v11, 6, v8\nv_bfe_u32 v11, v1, 3, 1\nv_lshl_add_u32 v8, v11, 7, v8')
    a('v_lshl_add_u32 v8, v10, 2, v8\ns_lshr_b32 s6, s4, 1\ns_lshl_b32 s6, s6, 8\ns_and_b32 s7, s4, 1\ns_lshl_b32 s7, s7, 3\ns_add_u32 s6, s6, s7\nv_add_u32 v8, s6, v8')
    a(f'v_lshlrev_b32 v10, 7, v1\nv_mov_b32 v{AT}, 0xff800000')
    stamp(9)
    a(f's_mov_b64 exec, {(1 << NCH) - 1:#x}')
    vpoll([f'buffer_load_dwordx2 v[{AT}:{AT+1}], v10, s[16:19], s27 offen sc1'], [AT+1], None, sleep=cfg.slp, tags=True)
    a('s_mov_b64 exec, -1')
    a(f'v_mov_b32 v{AT+1}, v{AT}')
    for r in (1, 2, 4, 8): a(f'v_max_f32_dpp v{AT+1}, v{AT+1}, v{AT+1} row_ror:{r} row_mask:0xf bank_mask:0xf')
    a(f'v_sub_f32 v{AT}, v{AT}, v{AT+1}\nv_exp_f32 v{AT}, v{AT}\nv_mov_b32 v{AT+1}, v{AT}')
    for r in (1, 2, 4, 8): a(f'v_add_f32_dpp v{AT+1}, v{AT+1}, v{AT+1} row_ror:{r} row_mask:0xf bank_mask:0xf')
    a(f'v_rcp_f32 v{AT+1}, v{AT+1}\nv_mul_f32 v{AT}, v{AT}, v{AT+1}')
    a('v_lshrrev_b32 v10, 5, v1\nv_mul_u32_u24 v10, 24, v10')
    for i in range(6):
        a(f'ds_bpermute_b32 v{AT+24+i}, v10, v{AT} offset:{4*i}')
    a('s_waitcnt lgkmcnt(0)')
    wl = [f'buffer_load_dword v{AT+c}, v2, s[16:19], s{60+(c>>2)} offen offset:{1024*(c&3)} sc1' for c in range(6)]
    if cfg.mp & 1: mpoll([(wl[c], [AT+c]) for c in range(6)], AT+12)
    else: vpoll(wl, [AT+c for c in range(6)], AT+12)
    stamp(10)
    acc = AT + 20
    for c in range(6):
        tq = AT + 8 + 2*c
        unpack(tq, tq+1, AT+c)
    for c in range(6):
        tq = AT + 8 + 2*c; wp = AT + 24 + (c & ~1)
        mod = 'op_sel_hi:[1,0,1]' if (c & 1) == 0 else 'op_sel:[0,1,0] op_sel_hi:[1,1,1]'
        mod2 = 'op_sel_hi:[1,0]' if (c & 1) == 0 else 'op_sel:[0,1] op_sel_hi:[1,1]'
        ac = acc + 2*(c & 1)
        if c < 2: a(f'v_pk_mul_f32 v[{ac}:{ac+1}], v[{tq}:{tq+1}], v[{wp}:{wp+1}] {mod2}')
        else: a(f'v_pk_fma_f32 v[{ac}:{ac+1}], v[{tq}:{tq+1}], v[{wp}:{wp+1}], v[{ac}:{ac+1}] {mod}')
    a(f'v_pk_add_f32 v[{acc}:{acc+1}], v[{acc}:{acc+1}], v[{acc+2}:{acc+3}]')
    a(f'v_permlane32_swap_b32 v{acc}, v{acc+1}')
    a(f'v_add_f32 v{acc}, v{acc}, v{acc+1}')
    a(f'v_mov_b32 v{acc+1}, v{acc}\nv_permlane32_swap_b32 v{acc}, v{acc+1}')
    a(f's_mov_b64 exec, 0xffffffff\nv_cvt_pk_bf16_f32 v{acc}, v{acc}, v{acc+1}\nds_write_b32 v31, v{acc}\ns_mov_b64 exec, -1')
    fst(7)
    a('s_waitcnt lgkmcnt(0)\ns_barrier')
    fst(8)
    sgemv([F0, F1], [DD, Z], 'v4', 'v22')
    a(f'v_add_f32_dpp v10, v{DD}, v{DD+2} quad_perm:[0,1,2,3] row_mask:0x1 bank_mask:0xf')
    a(f'v_add_f32_dpp v10, v{DD+1}, v{DD+3} quad_perm:[0,1,2,3] row_mask:0x2 bank_mask:0xf')
    a(f'v_add_f32_dpp v10, v{Z}, v{Z+2} quad_perm:[0,1,2,3] row_mask:0x4 bank_mask:0xf')
    a(f'v_add_f32_dpp v10, v{Z+1}, v{Z+3} quad_perm:[0,1,2,3] row_mask:0x8 bank_mask:0xf')
    a('s_cmp_lg_u32 s32, 0')
    a('v_mov_b32_dpp v11, v10 quad_perm:[1,1,3,3] row_mask:0xf bank_mask:0xf')
    a('s_mov_b32 exec_lo, 0x55555555\ns_mov_b32 exec_hi, 0x55555555')
    a('v_cvt_pk_bf16_f32 v11, v10, v11')
    store2('buffer_store_dword v11, v8, s[16:19], s29 offen')
    a('s_mov_b64 exec, -1')
    stamp(11)
    a('s_cmp_ge_u32 s3, 28\ns_cbranch_scc1 L_hdone')

    a('v_lshrrev_b32 v10, 4, v1\nv_bfe_u32 v11, v1, 2, 2\nv_lshl_add_u32 v10, v10, 3, v11\nv_lshlrev_b32 v10, 10, v10')
    a(f'v_and_b32 v11, 3, v1\nv_lshl_add_u32 v10, v11, 3, v10')
    a('v_bfe_u32 v11, v1, 2, 3\nv_lshlrev_b32 v11, 5, v11\ns_lshl_b32 s6, s4, 7\nv_xor_b32 v11, s6, v11')
    for cg in range(4):
        a(f'v_xor_b32 v12, {32*cg}, v11\nv_add_u32 v{60+cg}, v10, v12')
    for cg in range(4):
        for s in range(2):
            for hh in range(2):
                r = F1 + (cg*2 + s)*4 + 2*hh
                a(f'ds_read_b64_tr_b16 v[{r}:{r+1}], v{60+cg} offset:{32768*s + 4096*hh}')
    a(f's_lshl_b32 s60, s4, 8\ns_add_u32 s60, s60, {WOUT}\ns_add_u32 s61, s60, 4096')
    a('v_and_b32 v59, 15, v1\nv_lshlrev_b32 v59, 4, v59\nv_lshrrev_b32 v58, 4, v1\nv_lshl_add_u32 v59, v58, 13, v59')
    wloads = [f'buffer_load_dwordx4 v[{AT+4*k}:{AT+4*k+3}], v59, s[16:19], s{60+(k>>1)} offen offset:{2048*(k&1)} sc1' for k in range(4)]
    for x in wloads: a(x)
    a(f'v_bfe_u32 v10, v1, 3, 1\nv_lshlrev_b32 v40, 5, v10\nv_add_u32 v40, {STAT}, v40')
    a(f'ds_read_b128 v[68:71], v40 offset:{STAT3-STAT}\nds_read_b32 v30, v40 offset:{STAT3-STAT+16}')
    a('v_bfe_u32 v11, v1, 1, 1\nv_lshl_add_u32 v41, v10, 1, v11\nv_lshlrev_b32 v41, 6, v41\nv_and_b32 v12, 4, v1\nv_add_u32 v41, v41, v12')
    a(f'v_and_b32 v12, 1, v1\nv_lshl_add_u32 v41, v12, 1, v41\ns_lshl_b32 s6, s4, 3\ns_add_u32 s6, s6, {HID}\nv_add_u32 v41, s6, v41')
    a(f'v_lshl_add_u32 v42, v12, 1, v11\nv_lshlrev_b32 v42, 6, v42\nv_and_b32 v45, 48, v1\nv_add_u32 v42, v42, v45\nv_add_u32 v42, {HID}, v42')
    a(f'v_and_b32 v43, 7, v1\nv_mul_u32_u24 v43, 288, v43\nv_add_u32 v43, v43, v45\nv_add_u32 v43, {AS}, v43')
    a('v_bfe_u32 v46, v1, 2, 1\nv_lshl_add_u32 v46, v12, 2, v46\nv_mul_u32_u24 v46, 288, v46\nv_lshl_add_u32 v46, v11, 2, v46\nv_lshrrev_b32 v11, 3, v1\nv_lshl_add_u32 v46, v11, 3, v46')
    a(f's_lshr_b32 s6, s4, 2\ns_mul_i32 s6, s6, 576\ns_and_b32 s7, s4, 3\ns_lshl_b32 s7, s7, 6\ns_add_u32 s6, s6, s7\ns_add_u32 s6, s6, {AS}\nv_add_u32 v46, s6, v46')
    a('v_and_b32 v11, 4, v1\nv_cmp_eq_u32 vcc, 0, v11\nv_mov_b32 v11, 0xeeee\nv_mov_b32 v47, 0x4444\nv_cndmask_b32 v47, v11, v47, vcc')
    for r in range(4): a(f'v_mov_b32 v{DD+r}, 0')
    a('s_and_b32 s6, s3, 15\ns_lshl_b32 s6, s6, 5\ns_lshl_b32 s7, s4, 2\ns_add_u32 s6, s6, s7')
    a('v_and_b32 v11, 1, v1\nv_lshl_add_u32 v11, v11, 1, s6')
    a('v_lshrrev_b32 v12, 1, v1\nv_lshlrev_b32 v44, 12, v12\nv_lshl_add_u32 v44, v11, 3, v44')
    a('v_bfe_u32 v12, v1, 4, 1\nv_add_u32 v11, v11, v12')
    a(f'v_lshlrev_b32 v48, 11, v10\nv_lshl_add_u32 v48, v11, 2, v48\nv_add_u32 v48, {X1}, v48')
    a('v_lshlrev_b32 v49, 10, v10\nv_lshl_add_u32 v49, v11, 1, v49')
    a(f's_add_u32 s20, s14, {MOUT}\ns_addc_u32 s21, s15, 0\ns_mov_b32 s22, {28*4096}\ns_mov_b32 s23, 0x20000')
    a(f's_lshl_b32 s24, s3, 12')
    a(f's_mov_b32 s40, {f2u(1/512)}\ns_mov_b32 s41, {f2u(1e-5)}\ns_mov_b32 s42, {f2u(0.044715)}\ns_mov_b32 s43, {f2u(-2*math.sqrt(2/math.pi)*LOG2E)}')
    a('v_and_b32 v50, 1, v1\nv_lshlrev_b32 v50, 4, v50\nv_mov_b32 v51, 0x3f80\nv_lshlrev_b32 v50, v50, v51\nv_bfe_u32 v51, v1, 2, 2')
    for i in range(4): a(f'v_cmp_eq_u32 vcc, {i}, v51\nv_cndmask_b32 v{64+i}, 0, v50, vcc')
    a('s_waitcnt lgkmcnt(0)')
    a(f's_mov_b32 s45, {f2u(2/512)}\nv_mov_b32 v50, s41')
    a('v_mul_f32 v68, s40, v68\nv_mul_f32 v69, s40, v69\nv_mul_f32 v70, s45, v70\nv_mul_f32 v71, s40, v71\nv_fma_f32 v30, v30, s40, v50')
    a(f'v_lshrrev_b32 v50, 3, v1\nv_mov_b32 v51, s40\nv_cmp_eq_u32 vcc, 5, v50\nv_mov_b32 v58, s45\nv_cndmask_b32 v51, v51, v58, vcc\nv_cmp_eq_u32 vcc, 4, v50\nv_cndmask_b32 v51, v51, -v58, vcc')
    a('v_mov_b32 v29, v9\nv_mov_b32 v31, v13')
    Q = (0, 60, 6, 10)
    for q_ in Q:
        for r in range(4): a(f'v_mov_b32 v{q_+r}, 0')
    if cfg.mp & 2: mpoll([(wloads[k], range(AT+4*k, AT+4*k+4)) for k in range(4)], AT+20, first_issued=True)
    else: vpoll(wloads, [AT+k for k in range(16)], AT+20, first_issued=True)
    stamp(12)
    V = AT + 16
    for k in range(4):
        c0 = '0' if k == 0 else f'v[{V}:{V+3}]'
        a(f'v_mfma_f32_16x16x32_bf16 v[{V}:{V+3}], v[64:67], v[{AT+4*k}:{AT+4*k+3}], {c0}')
    s0, s1 = V, V+1
    x0, x1, a0, a1 = AT+12, AT+13, AT+14, AT+15
    a(f'v_fma_f32 v{x0}, v16, v{s0}, v14\nv_fma_f32 v{x1}, v17, v{s1}, v15')
    a(f'v_mul_f32 v{a0}, v{x0}, v18\nv_mul_f32 v{a1}, v{x1}, v19')
    a(f'v_cvt_pk_bf16_f32 v{AT}, v{a0}, v{a1}\nds_write_b32 v46, v{AT}\nds_write_b64 v29, v[{x0}:{x1}]')
    fst(1)
    t = AT + 20
    a(f'v_add_f32 v{t}, v{x0}, v{x1}\nv_mul_f32 v{t+1}, v{x0}, v{x0}\nv_add_f32 v{t+2}, v{a0}, v{a1}\nv_mul_f32 v{t+3}, v{a0}, v{a0}')
    a(f'v_mul_f32 v{t+4}, v{a0}, v18\nv_mul_f32 v{t+5}, v{a0}, v20')
    a(f'v_fmac_f32 v{t+1}, v{x1}, v{x1}\nv_fmac_f32 v{t+3}, v{a1}, v{a1}\nv_fmac_f32 v{t+4}, v{a1}, v19\nv_fmac_f32 v{t+5}, v{a1}, v21')
    red6([t, t+1, t+2, t+3, t+4, t+5], 0, (t+6, t+7, t+8, t+9), 'v51', 'v31')
    fst(2)
    a('s_waitcnt lgkmcnt(0)')
    fst(9)
    a('s_barrier')
    fst(3)
    a('ds_read_b128 v[52:55], v40\nds_read_b64 v[56:57], v40 offset:16')
    fill = [
        'v_fma_f32 v53, -v52, v52, v53',
        'v_fma_f32 v56, v52, v69, v56',
        'v_rsq_f32 v53, v53',
        'v_fma_f32 v54, -v52, v68, v54',
        'v_fma_f32 v55, v52, v56, v55',
        'v_fma_f32 v57, -v52, v70, v57',
        'v_fma_f32 v55, v53, v55, v57',
        'v_fma_f32 v54, v53, v54, v71',
        'v_mul_f32 v52, v52, v53',
        'v_fma_f32 v55, v53, v55, v30',
        'v_fma_f32 v56, -v52, v26, v27',
        'v_fma_f32 v55, -v54, v54, v55',
        'v_fma_f32 v56, -v54, v28, v56',
        'v_rsq_f32 v55, v55',
    ]
    sgemv([F2], [DD], 'v43', 'v47', fill=fill, lead=cfg.lead); fold()
    a(f'v_mov_b32 v{T}, v{Z}\nv_permlane16_swap_b32 v{Z}, v{T}\nv_add_f32 v{Z}, v{Z}, v{T}')
    fst(4)
    ge = [f'v_fma_f32 v{Z}, v{Z}, v53, v56', f'v_fma_f32 v{Z}, v{Z}, v55, v25', f'v_mul_f32 v{T}, v{Z}, v{Z}', f'v_mul_f32 v{T+1}, s43, v{Z}',
          f'v_fma_f32 v{T}, v{T}, s42, 1.0', f'v_mul_f32 v{T}, v{T}, v{T+1}', f'v_exp_f32 v{T}, v{T}', f'v_add_f32 v{T}, 1.0, v{T}',
          f'v_rcp_f32 v{T}, v{T}', f'v_mul_f32 v{T}, v{T}, v{Z}', f'v_cvt_pk_bf16_f32 v{T}, v{T}, v{T}']
    for x in ge: a(x)
    a(f's_mov_b64 exec, 0xffff\nds_write_b16 v41, v{T}\ns_mov_b64 exec, -1')
    fst(5)
    a('s_waitcnt lgkmcnt(0)\ns_barrier')
    fst(6)
    a(f'ds_read_b128 v[{AT}:{AT+3}], v42')
    a(f'ds_read_b32 v52, v48')
    a(f's_waitcnt lgkmcnt(1)')
    for cg in range(4):
        ac = Q[cg]; fr = F1 + cg*8
        a(f'v_smfmac_f32_16x16x64_bf16 v[{ac}:{ac+3}], v[{AT}:{AT+3}], v[{fr}:{fr+7}], v22')
    y = AT + 8
    a('s_cmp_lg_u32 s32, 0')
    for cg in range(4):
        ac = Q[cg]
        for r in range(2): a(f'v_add_f32_dpp v{y+r}, v{ac+r}, v{ac+2+r} quad_perm:[0,1,2,3] row_mask:{1 << cg:#x} bank_mask:0xf')
    store2(f'buffer_store_dwordx2 v[{y}:{y+1}], v5, s[20:23], s24 offen')
    stamp(13)
    a('s_cmp_ge_u32 s3, 16\ns_cbranch_scc1 L_hdone')
    fl = [f'buffer_load_dwordx4 v[{AT}:{AT+3}], v44, s[20:23], 0 offen sc1']
    a(fl[0])
    srd(24, 's46', 's47', 2048)
    a('s_waitcnt lgkmcnt(0)\nv_fma_f32 v52, v23, v24, v52')
    if cfg.mp & 4: mpoll([(fl[0], range(AT, AT+4))], AT+8, first_issued=True)
    else: vpoll(fl, [AT+k for k in range(4)], AT+8, first_issued=True)
    stamp(14)
    a(f'v_add_f32_dpp v{Z}, v{AT}, v{AT} row_ror:8 row_mask:0xf bank_mask:0x3')
    a(f'v_add_f32_dpp v{T}, v{AT+2}, v{AT+2} row_ror:8 row_mask:0xf bank_mask:0x3')
    a(f'v_add_f32_dpp v{Z}, v{AT+1}, v{AT+1} row_ror:8 row_mask:0xf bank_mask:0xc')
    a(f'v_add_f32_dpp v{T}, v{AT+3}, v{AT+3} row_ror:8 row_mask:0xf bank_mask:0xc')
    a(f'v_permlane16_swap_b32 v{Z}, v{T}\nv_add_f32 v{Z}, v{Z}, v{T}')
    a(f'v_mov_b32 v{T}, v{Z}\nv_permlane32_swap_b32 v{Z}, v{T}\nv_add_f32 v{Z}, v{Z}, v{T}')
    a(f'v_add_f32_dpp v{Z}, v{Z}, v{Z} quad_perm:[2,3,0,1] row_mask:0xf bank_mask:0xf')
    a(f'v_add_f32_dpp v{Z}, v{Z}, v{Z} row_shl:4 row_mask:0xf bank_mask:0x5')
    a(f'v_fma_f32 v{Z}, v23, v{Z}, v52')
    if cfg.diag is not None:
        a('s_or_b32 s6, s3, s4\ns_cmp_lg_u32 s6, 0\ns_cbranch_scc1 L_ndiag')
        a('s_memrealtime s[94:95]\ns_waitcnt lgkmcnt(0)\ns_sub_u32 s6, s94, s64')
        a(f's_cmp_lt_u32 s6, {cfg.T0}\ns_cbranch_scc1 L_ndiag\ns_cmp_eq_u32 s96, s97\ns_cbranch_scc1 L_ndiag\ns_cmp_eq_u32 s32, {cfg.gate}\ns_cbranch_scc1 L_ndiag')
        a('s_cmp_eq_u32 s98, s99\ns_cbranch_scc1 L_ndiag')
        a(f's_sub_u32 s6, s{64+2*cfg.diag}, s64\nv_cvt_f32_u32 v10, s6\ns_mov_b64 exec, 1\nv_add_f32 v{Z}, v{Z}, v10\ns_mov_b64 exec, -1')
        a('L_ndiag:')
    if cfg.enc:
        a('s_or_b32 s6, s3, s4\ns_cmp_lg_u32 s6, 0\ns_cbranch_scc1 L_nenc')
        a(f's_memrealtime s[94:95]\ns_waitcnt lgkmcnt(0)\ns_sub_u32 s6, s94, s64\ns_sub_u32 s7, s{64+2*cfg.enc}, s64')
        a('v_mov_b32 v10, s6\nv_mov_b32 v11, s7\nv_and_b32 v12, 8, v1\nv_cmp_eq_u32 vcc, 0, v12\nv_cndmask_b32 v10, v11, v10, vcc')
        a('v_and_b32 v11, 1, v1\nv_lshlrev_b32 v11, 1, v11\nv_bfe_u32 v12, v1, 4, 1\nv_add_u32 v11, v11, v12\nv_mul_u32_u24 v11, 3, v11')
        a(f'v_lshrrev_b32 v10, v11, v10\nv_and_b32 v10, 7, v10\nv_cvt_f32_u32 v10, v10\nv_add_f32 v{Z}, v{Z}, v10')
        a('L_nenc:')
    a(f's_mov_b64 exec, 0x03030303')
    a(f'v_cvt_pk_bf16_f32 v{T}, v{Z}, v{Z}')
    a(f'buffer_store_short v{T}, v49, s[24:27], 0 offen')
    a('s_or_b32 s6, s3, s4\ns_cmp_lg_u32 s6, 0\ns_cbranch_scc1 L_noep')
    a(f's_mov_b64 exec, 1\nv_mov_b32 v10, {EPO}\nv_mov_b32 v11, s33\nbuffer_store_dword v11, v10, s[16:19], 0 offen')
    a('L_noep:')
    a('s_mov_b64 exec, -1')
    stamp(15)
    a('L_hdone:')
    if cfg.stamps:
        a(f's_cmp_lg_u32 s4, {cfg.sw}\ns_cbranch_scc1 L_end')
        stamps_out(16, 0)
        a('s_cmp_lg_u32 s2, 0\ns_cbranch_scc1 L_end')
        for n, i in enumerate((1, 4, 7, 8, 9, 10, 11, 12, 13, 14, 15)):
            a(f's_sub_u32 s60, s{64+2*i}, s64\nv_mov_b32 v4, s60\nglobal_store_dword v2, v4, s[12:13] offset:{16+4*n}')
        a('v_mov_b32 v4, s32\nglobal_store_dword v2, v4, s[12:13]')
        a('s_waitcnt vmcnt(0)')
    a('L_end:')
    a('s_endpgm')
    return wrap(a.finalize(), 256, 768, LDS_TOTAL, 168, sgpr=102)

if __name__ == '__main__':
    out = sys.argv[1]
    for o in sys.argv[2:]:
        k, v = o.split('=')
        setattr(cfg, k, eval(v))
    open(out, 'w').write(gen())
```

```python
import sys, math, struct
from asmlib import *
from gen_common import *

class Cfg:
    stamps = False
    NT = 'nt'
    warm = True
    prio = True
    slp = 2
    qslp = 4
    thS = 63
    thV = 63
    pre = 3
    touch = True
    diag = None
    fine = False
    sw = 0
    mp = 2
    enc = 0
    lay = 1
    lead = 2
    qlate = 0
    p1c = False
    lst = ''
    ost = 'sc1'
    il = False
    bias = (0, 0, 0, 0, 0, 0, 0)
    dirty = 0
    nth = 10
    T0 = 1900
    gate = 0
    apre = 0
    fast = True
cfg = Cfg()

MODA=0; MODB=0x8000; QO=0x10000; XID=0x18000; EPO=0x1A800; WOUT=0x1C000; MOUT=0x24000; OP=0x40000; STMP=0x80000; LSE=0x90000; WS_SZ=0x100000
NCH = 12
KW=36864; PREG=147456; ZERO=153600; ST=154176; QL=154368; QF=155392; SCR=0; LDS_TOTAL=155648
R0=0; R1=65536; ACT=131072; ACTC=133376; ACTM=135680; TS=2336; HID=145024; STAT=145408; STAT2=145472; STAT3=145536; X1=145664; AS=149760
LIMIT = 200000
LOG2E = 1.4426950408889634
def f2u(x): return '0x%08x' % struct.unpack('<I', struct.pack('<f', x))[0]

def gtab():
    d = list(cfg.bias); assert sum(d) == 0
    g = [0]
    for k in range(6): g.append(g[-1] + d[(2*k) % 7])
    return g
def chunk_start(p, c):
    g = gtab(); pos = (4*(p + 4)) % 7
    tot = g[(pos + 12) % 7] - g[pos]
    return ((c*(8192 - tot)*21846) >> 18) + g[(pos + c) % 7] - g[pos]

def gen():
    a = Asm()
    uid = [0]
    def lab(p):
        uid[0] += 1; return f'L_{p}_{uid[0]}'
    def stamp(i):
        if cfg.stamps: a(f's_memrealtime s[{64+2*i}:{65+2*i}]')
    def fst(i):
        if cfg.fine: stamp(i)
    def stamps_out(n, base_slot):
        if not cfg.stamps: return
        a('s_waitcnt lgkmcnt(0)')
        a('s_mov_b64 exec, 1')
        a(f's_lshl_b32 s60, s2, 7\ns_add_u32 s60, s60, {STMP + base_slot*8}')
        a('v_mov_b32 v2, 0')
        for i in range(n):
            a(f'v_mov_b32 v4, s{64+2*i}\nv_mov_b32 v5, s{65+2*i}')
            a(f'buffer_store_dwordx2 v[4:5], v2, s[16:19], s60 offen offset:{8*i}')
        a('s_waitcnt vmcnt(0)')
    def srd(d, lo, hi, size):
        a(f's_mov_b32 s{d}, {lo}\ns_mov_b32 s{d+1}, {hi}\ns_mov_b32 s{d+2}, {size}\ns_mov_b32 s{d+3}, 0x20000')
    def epoch_load():
        a(f's_load_dword s33, s[14:15], {EPO}')
    def epoch_tag():
        a('s_mul_i32 s33, s33, 0x9E3779B1\ns_add_u32 s33, s33, 0x85EBCA6B')
    def red3(op, regs, tmp):
        rs = list(regs)
        if len(rs) == 1: return rs[0]
        first = True
        while rs:
            if first:
                if len(rs) >= 3: a(f'v_{op}3_u32 v{tmp}, v{rs[0]}, v{rs[1]}, v{rs[2]}'); rs = rs[3:]
                else: a(f'v_{op}_u32 v{tmp}, v{rs[0]}, v{rs[1]}'); rs = rs[2:]
                first = False
            elif len(rs) >= 2: a(f'v_{op}3_u32 v{tmp}, v{tmp}, v{rs[0]}, v{rs[1]}'); rs = rs[2:]
            else: a(f'v_{op}_u32 v{tmp}, v{tmp}, v{rs[0]}'); rs = rs[1:]
        return tmp
    def vpoll(loads, regs, tmp, sleep=0, first_issued=False, tags=False, dbg=None, first_cnt=0):
        l = lab('vp'); d = lab('vd'); w = lab('vw')
        a('s_mov_b32 s30, 0')
        if first_issued: a(f's_waitcnt vmcnt({first_cnt})\ns_branch {w}')
        a(f'{l}:')
        for x in loads: a(x)
        a('s_add_u32 s30, s30, 1')
        a('s_waitcnt vmcnt(0)')
        if first_issued: a(f'{w}:')
        if dbg is not None and cfg.stamps:
            p, q_, n_ = dbg
            a(f's_mov_b64 s[{64+2*p}:{65+2*p}], s[{64+2*q_}:{65+2*q_}]')
            stamp(q_); a('s_waitcnt lgkmcnt(0)')
            a(f's_add_u32 s{64+2*n_}, s64, s30\ns_mov_b32 s{65+2*n_}, s65')
        if tags:
            m = red3('max', regs, tmp)
            if len(list(regs)) > 1:
                n = red3('min', regs, tmp + 1)
                a(f'v_cmp_ne_u32 vcc, s33, v{m}\nv_cmp_ne_u32 s[34:35], s33, v{n}\ns_or_b64 vcc, vcc, s[34:35]')
            else:
                a(f'v_cmp_ne_u32 vcc, s33, v{m}')
        else:
            m = red3('max', regs, tmp)
            a(f'v_cmp_eq_u32 vcc, -1, v{m}')
        a(f's_cbranch_vccz {d}')
        if sleep: a(f's_sleep {sleep}')
        a(f's_cmp_lt_u32 s30, {LIMIT}\ns_cbranch_scc1 {l}')
        a(f'{d}:')
    def mpoll(items, tmp, first_issued=False):
        l = lab('mp'); d = lab('md')
        a('s_mov_b32 s30, 0')
        if not first_issued:
            for ld, regs in items: a(ld)
        a(f'{l}:')
        a('s_waitcnt vmcnt(0)')
        ms = []
        for k, (ld, regs) in enumerate(items):
            ms.append(red3('max', regs, tmp + k))
        for k, m in enumerate(ms):
            a(f'v_cmp_eq_u32 s[{48+2*k}:{49+2*k}], -1, v{m}')
        n = len(items)
        if n == 1:
            a('s_cmp_eq_u64 s[48:49], 0\ns_cbranch_scc1 ' + d)
        else:
            a('s_or_b64 s[34:35], s[48:49], s[50:51]')
            for k in range(2, n): a(f's_or_b64 s[34:35], s[34:35], s[{48+2*k}:{49+2*k}]')
            a(f's_cbranch_scc0 {d}')
        for k, (ld, regs) in enumerate(items):
            a(f's_mov_b64 exec, s[{48+2*k}:{49+2*k}]')
            a(ld)
        a('s_mov_b64 exec, -1')
        a(f's_add_u32 s30, s30, 1\ns_cmp_lt_u32 s30, {LIMIT}\ns_cbranch_scc1 {l}')
        a('s_waitcnt vmcnt(0)')
        a(f'{d}:')
    def pspin(va, vd):
        l = lab('ps'); d = lab('pd')
        a(f'v_mov_b32 {va}, {QF}\ns_mov_b32 s30, 0')
        a(f'{l}:')
        a(f'ds_read_b32 {vd}, {va} offset:4\ns_add_u32 s30, s30, 1\ns_waitcnt lgkmcnt(0)')
        a(f'v_cmp_ne_u32 vcc, 4, {vd}\ns_cbranch_vccz {d}')
        a(f's_sleep 1\ns_cmp_lt_u32 s30, {LIMIT*8}\ns_cbranch_scc1 {l}')
        a(f'{d}:')
    def dma_u1(lo, hi, size, RS, sbase, region, setup=True, i0=0, i1=8):
        if setup:
            a('v_bfe_u32 v10, v1, 4, 1\nv_and_b32 v12, 7, v1\nv_xor_b32 v10, v10, v12')
            a('s_and_b32 s27, s4, 4\nv_xor_b32 v10, s27, v10')
            a(f'v_lshrrev_b32 v2, 3, v1\nv_mul_u32_u24 v2, {RS}, v2\nv_xor_b32 v12, 2, v10')
            a('v_lshl_add_u32 v12, v12, 4, v2\nv_lshl_add_u32 v2, v10, 4, v2')
        srd(20, lo, hi, size)
        a(f's_mul_i32 s27, s4, {64*RS}\ns_add_u32 s27, s27, {sbase}')
        if i0: a(f's_add_u32 s27, s27, {8*RS*i0}')
        a(f's_lshl_b32 s28, s4, 13')
        if region + i0: a(f's_add_u32 s28, s28, {region + 1024*i0}')
        for i in range(i0, i1):
            a('s_mov_b32 m0, s28')
            if i < i1-1: a('s_add_u32 s28, s28, 1024')
            a(f'buffer_load_dwordx4 v{12 if i & 1 else 2}, s[20:23], s27 offen {cfg.NT} lds')
            if i < i1-1: a(f's_add_u32 s27, s27, {8*RS}')

    def dma_w(i0, i1, setup=True):
        if setup:
            a('s_and_b32 s6, s4, 1\ns_lshl_b32 s6, s6, 6\ns_and_b32 s7, s4, 4\ns_lshl_b32 s7, s7, 5\ns_or_b32 s6, s6, s7')
            a('v_lshlrev_b32 v2, 4, v1\nv_and_b32 v2, 0x1f0, v2\nv_and_b32 v10, 32, v1\nv_xor_b32 v2, v2, v10\nv_xor_b32 v2, s6, v2\nv_lshl_add_u32 v2, v10, 5, v2')
        srd(20, 's50', 's51', 4096*1024)
        a(f's_lshl_b32 s27, s4, 11\ns_add_u32 s27, s27, s24\ns_add_u32 s27, s27, {16384*i0}')
        a(f's_lshl_b32 s28, s4, 10\ns_add_u32 s28, s28, {8192*i0}')
        for i in range(i0, i1):
            a('s_mov_b32 m0, s28')
            if i < i1-1: a('s_add_u32 s28, s28, 8192')
            a(f'buffer_load_dwordx4 v2, s[20:23], s27 offen {cfg.NT} lds')
            if i < i1-1: a('s_add_u32 s27, s27, 16384')
    a('s_cmp_ge_u32 s2, 256\ns_cbranch_scc1 L_end')
    stamp(0)
    a('v_lshrrev_b32 v1, 6, v0')
    a('s_load_dwordx4 s[8:11], s[0:1], 8')
    a('s_load_dwordx4 s[12:15], s[0:1], 104')
    a('s_lshr_b32 s3, s2, 3\ns_and_b32 s5, s2, 7')
    a('v_readfirstlane_b32 s4, v1')
    a('v_and_b32 v1, 63, v0')
    a('s_cmp_eq_u32 s5, 0\ns_cbranch_scc1 L_hearly')
    a('s_mul_i32 s3, s3, 7\ns_add_u32 s3, s3, s5\ns_sub_u32 s3, s3, 1')
    a('s_cmp_lt_u32 s3, 32\ns_cbranch_scc1 L_hearly')
    a('L_stream:')
    a('s_sub_u32 s6, s3, 32')
    a('s_and_b32 s24, s6, 15\ns_lshr_b32 s25, s6, 4')
    g = gtab(); gp = [(v + 128) & 255 for v in g]
    assert all(-128 <= v < 128 for v in g)
    a(f's_mov_b32 s26, {sum(gp[i] << (8*i) for i in range(4)):#x}\ns_mov_b32 s27, {sum(gp[4+i] << (8*i) for i in range(3)):#x}')
    def glook(dst, src):
        a(f's_mul_i32 {dst}, {src}, 37\ns_lshr_b32 {dst}, {dst}, 8\ns_mul_i32 {dst}, {dst}, 7\ns_sub_u32 {src}, {src}, {dst}')
        a(f's_lshl_b32 {src}, {src}, 3\ns_lshr_b64 s[28:29], s[26:27], {src}\ns_and_b32 {dst}, s28, 255')
    a('s_lshl_b32 s6, s24, 2\ns_add_u32 s6, s6, 16\ns_mul_i32 s7, s6, 37\ns_lshr_b32 s7, s7, 8\ns_mul_i32 s7, s7, 7\ns_sub_u32 s6, s6, s7')
    a('s_lshl_b32 s7, s6, 3\ns_lshr_b64 s[28:29], s[26:27], s7\ns_and_b32 s30, s28, 255')
    a('s_add_u32 s7, s6, 12'); glook('s31', 's7')
    a('s_add_u32 s6, s6, s25\ns_add_u32 s7, s6, 1'); glook('s34', 's6'); glook('s35', 's7')
    a('s_sub_u32 s31, s30, s31\ns_add_u32 s31, s31, 8192\ns_mul_i32 s31, s31, 21846')
    a('s_mul_i32 s6, s31, s25\ns_add_u32 s7, s6, s31\ns_lshr_b32 s6, s6, 18\ns_lshr_b32 s7, s7, 18')
    a('s_add_u32 s6, s6, s34\ns_add_u32 s7, s7, s35\ns_sub_u32 s31, s7, s6\ns_sub_u32 s6, s6, s30')
    a('s_lshl_b32 s22, s31, 8\ns_lshl_b32 s6, s6, 8\ns_lshl_b32 s7, s24, 21\ns_add_u32 s6, s6, s7')
    a('s_mov_b32 s23, 0x20000')
    a('s_cmp_ge_u32 s4, 4\ns_cbranch_scc1 L_vwave')
    if cfg.prio: a('s_setprio 3')
    a('v_lshrrev_b32 v7, 4, v1')
    a('v_and_b32 v15, 15, v1')
    a('v_lshlrev_b32 v6, 2, v7\nv_xor_b32 v6, v6, v15')
    a('v_lshlrev_b32 v8, 8, v7')
    a('v_lshl_add_u32 v2, v6, 4, v8')
    for t in (1, 2, 3): a(f'v_xor_b32 v{2+t}, {16*t}, v2')
    a(f's_mul_i32 s27, s4, {16384 if cfg.il else 49152}\ns_mul_i32 s28, s4, {KW}')
    a('s_waitcnt lgkmcnt(0)')
    a('s_add_u32 s20, s8, s6\ns_addc_u32 s21, s9, 0')
    a('s_mov_b32 s29, 0')
    stamp(5)
    a('L_kdma:')
    a('s_mov_b32 m0, s28')
    a('s_add_u32 s28, s28, 4096\ns_add_u32 s29, s29, 1')
    for t in range(4):
        a(f'buffer_load_dwordx4 v{2+t}, s[20:23], s27 offen offset:{1024*t} {cfg.NT} lds')
        if cfg.thS < 63: a(f's_waitcnt vmcnt({cfg.thS})')
    a('s_add_u32 s27, s27, 4096')
    if cfg.il: a('s_and_b32 s7, s29, 3\ns_cselect_b32 s7, 0, 49152\ns_add_u32 s27, s27, s7')
    a('s_cmp_lt_u32 s29, 9\ns_cbranch_scc1 L_kdma')
    epoch_load()
    a('v_and_b32 v6, 3, v15\nv_lshlrev_b32 v6, 2, v6\nv_lshrrev_b32 v9, 2, v15\nv_add_u32 v6, v6, v9')
    a('v_lshlrev_b32 v10, 8, v6')
    a('v_lshl_add_u32 v6, v7, 4, v10')
    if cfg.p1c: a('v_lshlrev_b32 v6, 4, v1')
    for gi in range(3):
        for s in range(4):
            r = 96 + 16*gi + 4*s
            a(f'buffer_load_dwordx4 v[{r}:{r+3}], v6, s[20:23], s27 offen offset:{(1024 if cfg.p1c else 64)*s} {cfg.NT}')
            if cfg.thS < 63 and 4*gi + s < 11: a(f's_waitcnt vmcnt({cfg.thS})')
        if gi < 2: a('s_add_u32 s27, s27, 4096')
    srd(16, 's14', 's15', WS_SZ)
    a(f's_lshl_b32 s26, s24, 14\ns_lshl_b32 s6, s25, 10\ns_add_u32 s26, s26, s6\ns_lshl_b32 s6, s4, 8\ns_add_u32 s26, s26, s6\ns_add_u32 s26, s26, {OP}')
    a('v_mov_b32 v156, -1\nv_lshlrev_b32 v157, 2, v1')
    a('buffer_store_dword v156, v157, s[16:19], s26 offen sc1')
    a(f's_and_b32 s7, s24, 7\ns_lshl_b32 s6, s7, 12\ns_lshr_b32 s7, s24, 3\ns_lshl_b32 s7, s7, 11\ns_add_u32 s27, s6, s7\ns_add_u32 s27, s27, {QO}')
    a('v_lshlrev_b32 v12, 4, v1')
    qloads = [f'buffer_load_dwordx4 v[{32+4*k}:{35+4*k}], v12, s[16:19], s27 offen offset:{1024*k} sc1' for k in range(2)]
    if not cfg.qlate:
        a('s_cmp_lg_u32 s4, 0\ns_cbranch_scc1 L_nq1')
        for x in qloads: a(x)
        a('L_nq1:')
    stamp(1)
    a('s_barrier')
    a(f's_mul_i32 s28, s4, {KW}')
    a('v_and_b32 v11, 3, v15\nv_xor_b32 v11, v11, v7')
    a('v_lshl_add_u32 v11, v9, 2, v11')
    a('v_lshl_add_u32 v11, v11, 4, v10\nv_add_u32 v8, s28, v11')
    for s in (1, 2, 3): a(f'v_xor_b32 v{8+s}, {64*s}, v8')
    a(f's_mul_i32 s6, s4, 1536\ns_add_u32 s6, s6, {PREG}')
    a('v_lshrrev_b32 v13, 3, v15\nv_mul_u32_u24 v13, 768, v13' if cfg.il else 'v_lshrrev_b32 v13, 3, v15\nv_lshlrev_b32 v13, 8, v13')
    a('v_and_b32 v14, 3, v15\nv_lshl_add_u32 v13, v14, 6, v13\nv_lshl_add_u32 v13, v7, 4, v13')
    a('v_bfe_u32 v14, v15, 2, 1\nv_lshl_add_u32 v13, v14, 3, v13\nv_add_u32 v13, s6, v13')
    for u in range(4):
        a(f's_mov_b32 s{36+2*u}, {0x000F000F << (4*u):#x}\ns_mov_b32 s{37+2*u}, {0x000F000F << (4*u):#x}')
    a('v_and_b32 v161, 12, v1\nv_lshl_add_u32 v161, v161, 2, v7\n' + ('s_lshl_b32 s6, s4, 6\ns_add_u32 s6, s6, 512\ns_sub_u32 s31, s31, s6' if cfg.il else 's_sub_u32 s31, s31, 576') + '\nv_sub_u32 v161, s31, v161')
    a('s_waitcnt lgkmcnt(0)')
    epoch_tag()
    stamp(2)
    a(f'v_mov_b32 v14, {QF}')
    a('s_cmp_lg_u32 s4, 0\ns_cbranch_scc1 L_nq2')
    if cfg.qlate: a(f's_waitcnt vmcnt({cfg.qlate - 1})')
    vpoll(qloads, [33, 35, 37, 39], 162, first_issued=not cfg.qlate, tags=True, sleep=cfg.qslp, dbg=(1, 2, 15))
    a(f'v_lshlrev_b32 v12, 3, v1\nv_add_u32 v12, {QL}, v12\nv_mov_b32 v16, 1')
    a('ds_write2_b32 v12, v32, v34 offset0:0 offset1:1\nds_write2_b32 v12, v36, v38 offset0:128 offset1:129')
    a('s_waitcnt lgkmcnt(0)\nds_write_b32 v14, v16')
    a('s_branch L_nq3')
    a('L_nq2:')
    a('s_mov_b32 s30, 0')
    a('L_qspin:')
    a('ds_read_b32 v16, v14\ns_add_u32 s30, s30, 1\ns_waitcnt lgkmcnt(0)')
    a('v_cmp_ne_u32 vcc, 1, v16\ns_cbranch_vccz L_nq3')
    a(f's_sleep 1\ns_cmp_lt_u32 s30, {LIMIT*8}\ns_cbranch_scc1 L_qspin')
    a('L_nq3:')
    a(f'v_and_b32 v12, 3, v15\nv_lshlrev_b32 v12, 8, v12\nv_lshl_add_u32 v12, v7, 4, v12\nv_add_u32 v12, {QL}, v12')
    for k in range(4): a(f'ds_read_b128 v[{16+4*k}:{19+4*k}], v12 offset:{64*k}')
    a('s_waitcnt vmcnt(0) lgkmcnt(0)')
    stamp(3)
    order = [(u, dd) for u in range(4) for dd in range(3)]
    ldsg = [4*dd+u for (u, dd) in order if 4*dd+u < 9]
    def kread(k):
        gi = ldsg[k]; buf = 64 + 16*(k & 1)
        for s in range(4):
            a(f'ds_read_b128 v[{buf+4*s}:{buf+4*s+3}], v{8+s} offset:{4096*gi}')
    kread(0)
    k = 0
    for (u, dd) in order:
        gi = 4*dd + u
        mq = 32 + 16*(u & 1)
        if u == 0 and dd == 0:
            for r in range(16): a(f'v_cndmask_b32 v{mq+r}, 0, v{16+r}, s[36:37]')
        if gi < 9:
            src = 64 + 16*(k & 1)
            if k + 1 < len(ldsg):
                kread(k + 1); a('s_waitcnt lgkmcnt(4)')
            else:
                a('s_waitcnt lgkmcnt(0)')
            k += 1
        else:
            src = 96 + 16*(gi - 9)
        D = 144 + 4*dd
        for s in range(4):
            c = '0' if (u == 0 and s == 0) else f'v[{D}:{D+3}]'
            a(f'v_mfma_f32_16x16x32_bf16 v[{D}:{D+3}], v[{src+4*s}:{src+4*s+3}], v[{mq+4*s}:{mq+4*s+3}], {c}')
            if u < 3 and dd < 2:
                mq2 = 32 + 16*((u+1) & 1)
                for r in (8*dd + 2*s, 8*dd + 2*s + 1):
                    a(f'v_cndmask_b32 v{mq2+r}, 0, v{16+r}, s[{38+2*u}:{39+2*u}]')
    if cfg.il:
        a('v_mov_b32 v160, 0xff800000')
        for r in range(4):
            a(f'v_cmp_lt_i32 vcc, {4*r}, v161\nv_cndmask_b32 v{152+r}, v160, v{152+r}, vcc')
    else:
        a('s_cmp_lg_u32 s4, 3\ns_cbranch_scc1 L_nomask')
        a('v_mov_b32 v160, 0xff800000')
        for dd in range(3):
            for r in range(4):
                a(f'v_cmp_lt_i32 vcc, {64*dd + 4*r}, v161\nv_cndmask_b32 v{144+4*dd+r}, v160, v{144+4*dd+r}, vcc')
        a('L_nomask:')
        a('s_nop 7')
    a('v_max3_f32 v156, v144, v145, v146\nv_max3_f32 v157, v147, v148, v149')
    a('v_max3_f32 v158, v150, v151, v152\nv_max3_f32 v159, v153, v154, v155')
    a('v_max3_f32 v156, v156, v157, v158\nv_max_f32 v156, v156, v159')
    def xreduce(op, r, t):
        a(f'{op}_dpp v{r}, v{r}, v{r} row_ror:4 row_mask:0xf bank_mask:0xf')
        a(f'{op}_dpp v{r}, v{r}, v{r} row_ror:8 row_mask:0xf bank_mask:0xf')
        a(f'v_mov_b32 v{t}, v{r}\nv_permlane16_swap_b32 v{r}, v{t}\n{op} v{r}, v{r}, v{t}')
        a(f'v_mov_b32 v{t}, v{r}\nv_permlane32_swap_b32 v{r}, v{t}\n{op} v{r}, v{r}, v{t}')
    xreduce('v_max_f32', 156, 157)
    a(f's_mov_b32 s6, {f2u(128**-0.5 * LOG2E)}')
    a('v_mul_f32 v158, s6, v156')
    for r in range(12): a(f'v_fma_f32 v{144+r}, v{144+r}, s6, -v158')
    for r in range(12): a(f'v_exp_f32 v{144+r}, v{144+r}')
    for dd in range(3):
        D = 144 + 4*dd
        a(f'v_cvt_pk_bf16_f32 v{32+2*dd}, v{D}, v{D+1}\nv_cvt_pk_bf16_f32 v{33+2*dd}, v{D+2}, v{D+3}')
        a(f'ds_write_b64 v13, v[{32+2*dd}:{33+2*dd}] offset:{(256 if cfg.il else 512)*dd}')
    a('v_add_f32 v159, v144, v145')
    for r in range(2, 12): a(f'v_add_f32 v159, v159, v{144+r}')
    xreduce('v_add_f32', 159, 157)
    a(f's_lshl_b32 s6, s4, 5\ns_add_u32 s6, s6, {ST}')
    a('v_lshl_add_u32 v14, v1, 3, s6')
    a('s_mov_b64 exec, 15\nds_write_b64 v14, v[158:159]\ns_mov_b64 exec, -1')
    a('s_waitcnt lgkmcnt(0)')
    a(f'v_mov_b32 v14, {QF}\nv_mov_b32 v16, 1\ns_mov_b64 exec, 1\nds_add_u32 v14, v16 offset:4\ns_mov_b64 exec, -1')
    stamp(4)
    pspin('v14', 'v16')
    a(f'v_and_b32 v14, 3, v1\nv_lshlrev_b32 v14, 3, v14\nv_add_u32 v14, {ST}, v14')
    for w in range(4): a(f'ds_read_b64 v[{16+2*w}:{17+2*w}], v14 offset:{32*w}')
    a('v_lshrrev_b32 v2, 2, v1\nv_lshrrev_b32 v3, 4, v1\nv_add_u32 v3, v3, v1\nv_and_b32 v3, 3, v3')
    a('v_lshlrev_b32 v2, 5, v2\nv_lshl_add_u32 v2, v3, 3, v2')
    a(f's_lshl_b32 s6, s4, 9\ns_add_u32 s6, s6, {SCR}\nv_add_u32 v2, s6, v2')
    a('s_waitcnt lgkmcnt(0)')
    a('v_max3_f32 v24, v16, v18, v20\nv_max_f32 v24, v24, v22')
    for w in range(4): a(f'v_sub_f32 v{25+w}, v{16+2*w}, v24')
    for w in range(4): a(f'v_exp_f32 v{25+w}, v{25+w}')
    a('v_mul_f32 v29, v25, v17\nv_fmac_f32 v29, v26, v19\nv_fmac_f32 v29, v27, v21\nv_fmac_f32 v29, v28, v23')
    a('v_log_f32 v30, v29\nv_rcp_f32 v29, v29\nv_mov_b32 v31, s33')
    a('v_add_f32 v30, v30, v24')
    a(f's_lshl_b32 s6, s24, 11\ns_lshl_b32 s7, s25, 7\ns_add_u32 s6, s6, s7\ns_add_u32 s6, s6, {LSE}')
    a('v_lshlrev_b32 v3, 3, v1')
    a('s_cmp_eq_u32 s4, 0\ns_cselect_b32 exec_lo, 0xffff, 0\ns_mov_b32 exec_hi, 0\ns_cbranch_execz L_nlse')
    if cfg.diag is not None and cfg.diag >= 90: a('s_mov_b32 exec_lo, 0xff00\nv_mov_b32 v30, s64\ns_mov_b32 exec_lo, 0xffff')
    a('buffer_store_dwordx2 v[30:31], v3, s[16:19], s6 offen sc1')
    a('L_nlse:')
    a('s_mov_b64 exec, -1')
    for w in range(4): a(f'v_mul_f32 v{32+w}, v{25+w}, v29')
    for w in range(4): a(f'v_readlane_b32 s{36+w}, v{32+w}, s4')
    a('v_lshlrev_b32 v3, 2, v1')
    a('s_barrier')
    stamp(6)
    for v in range(8): a(f'ds_read_b64 v[{48+2*v}:{49+2*v}], v2 offset:{2048*v}')
    for v in range(8):
        a(f's_waitcnt lgkmcnt({7-v})')
        w = v >> 1; sp = 36 + (w & ~1)
        mod = 'op_sel_hi:[1,0,1]' if (w & 1) == 0 else 'op_sel:[0,1,0] op_sel_hi:[1,1,1]'
        mod2 = 'op_sel_hi:[1,0]' if (w & 1) == 0 else 'op_sel:[0,1] op_sel_hi:[1,1]'
        if v < 2: a(f'v_pk_mul_f32 v[{40+2*v}:{41+2*v}], v[{48+2*v}:{49+2*v}], s[{sp}:{sp+1}] {mod2}')
        else: a(f'v_pk_fma_f32 v[{40+2*(v&1)}:{41+2*(v&1)}], v[{48+2*v}:{49+2*v}], s[{sp}:{sp+1}], v[{40+2*(v&1)}:{41+2*(v&1)}] {mod}')
    a('v_pk_add_f32 v[40:41], v[40:41], v[42:43]')
    a('v_cvt_pk_bf16_f32 v40, v40, v41')
    a(f'buffer_store_dword v40, v3, s[16:19], s26 offen {cfg.ost}')
    stamp(7)
    if cfg.stamps:
        a('s_cmp_lg_u32 s4, 0\ns_cbranch_scc1 L_end')
        stamps_out(8, 0)
    a('s_endpgm')

    a('L_vwave:')
    a('s_sub_u32 s4, s4, 4')
    a('v_lshlrev_b32 v2, 4, v1')
    a(f'v_mov_b32 v16, 0\nv_mov_b32 v17, 0\nv_mov_b32 v18, 0\nv_mov_b32 v19, 0\nv_add_u32 v9, {ZERO}, v2')
    a('s_mov_b32 exec_lo, -1\ns_mov_b32 exec_hi, 3\nds_write_b128 v9, v[16:19]\ns_mov_b64 exec, -1')
    a(f'v_mov_b32 v9, {QF}\nds_write_b64 v9, v[16:17]')
    a(f's_mul_i32 s7, s4, 768\ns_add_u32 s7, s7, {PREG}')
    a('v_and_b32 v9, 3, v1\nv_lshlrev_b32 v9, 6, v9\nv_lshrrev_b32 v10, 4, v1\nv_lshl_add_u32 v9, v10, 4, v9\nv_add_u32 v9, s7, v9')
    a(f'v_mov_b32 v11, {ZERO}')
    for x in range(4):
        a(f's_mov_b32 s34, {0x000F000F << (4*x):#x}\ns_mov_b32 s35, s34')
        a(f'v_cndmask_b32 v{3+x}, v11, v9, s[34:35]')
    a('v_and_b32 v7, 15, v1\nv_lshrrev_b32 v8, 2, v7\nv_add_u32 v8, v8, v10\nv_and_b32 v8, 3, v8')
    a('v_lshlrev_b32 v7, 5, v7\nv_lshl_add_u32 v7, v8, 3, v7')
    a(f's_lshl_b32 s7, s4, 11\ns_add_u32 s7, s7, {SCR}\nv_add_u32 v7, s7, v7\nv_add_u32 v8, 1024, v7')
    a('s_mov_b32 s36, 0x05040100\ns_mov_b32 s37, 0x07060302')
    a('s_lshl_b32 s27, s4, 13' if cfg.il else 's_mul_i32 s27, s4, 24576')
    a('s_waitcnt lgkmcnt(0)')
    a('s_add_u32 s20, s10, s6\ns_addc_u32 s21, s11, 0')
    if cfg.stamps: srd(16, 's14', 's15', WS_SZ)
    a('s_barrier')
    stamp(1)
    for i in range(24):
        r = 72 + 4*i
        a(f'buffer_load_dwordx4 v[{r}:{r+3}], v2, s[20:23], s27 offen offset:{1024*(i&3)} {cfg.NT}')
        if cfg.thV < 63 and cfg.thV <= i < cfg.nth: a(f's_waitcnt vmcnt({cfg.thV})')
        if (i & 3) == 3 and i < 23: a(f's_add_u32 s27, s27, {61440 if (cfg.il and (i & 7) == 7) else 4096}')
    stamp(2)
    pspin('v9', 'v10')
    stamp(3)
    def pread(t):
        buf = 40 + 16*(t & 1)
        for x in range(4): a(f'ds_read_b128 v[{buf+4*x}:{buf+4*x+3}], v{3+x} offset:{256*t}')
    pread(0); pread(1)
    for t in range(3):
        a(f's_waitcnt vmcnt({16-8*t})')
        if t == 2: stamp(4)
        vb = 72 + 32*t; pb = 40 + 16*(t & 1)
        for j in range(8):
            tb = 24 + 4*(j & 3)
            sel = 's37' if (j & 1) else 's36'
            for tt in range(4):
                a(f'v_perm_b32 v{tb+tt}, v{vb + 4*(2*tt+1) + (j>>1)}, v{vb + 4*(2*tt) + (j>>1)}, {sel}')
            if j == 0: a('s_waitcnt lgkmcnt(4)' if t == 0 else 's_waitcnt lgkmcnt(0)')
            if j > 0:
                jj = j - 1; tb2 = 24 + 4*(jj & 3); acc = 16 + 4*(jj & 1); x = jj >> 1
                c = '0' if (t == 0 and jj < 2) else f'v[{acc}:{acc+3}]'
                a(f'v_mfma_f32_16x16x32_bf16 v[{acc}:{acc+3}], v[{pb+4*x}:{pb+4*x+3}], v[{tb2}:{tb2+3}], {c}')
        a(f'v_mfma_f32_16x16x32_bf16 v[20:23], v[{pb+12}:{pb+15}], v[36:39], v[20:23]')
        if t == 0: pread(2)
    for r in range(4):
        ad = 7 + (r >> 1); o = 128*(r & 1)
        a(f'ds_write2_b32 v{ad}, v{16+r}, v{20+r} offset0:{o} offset1:{o+1}')
    a('s_waitcnt lgkmcnt(0)')
    stamp(5)
    a('s_barrier')
    if cfg.stamps:
        a('s_cmp_lg_u32 s4, 0\ns_cbranch_scc1 L_end')
        stamps_out(6, 8)
    a('s_endpgm')

    a('L_spare:')
    a('s_cmp_lg_u32 s5, 0\ns_cbranch_scc1 L_end')
    a('s_cmp_lg_u32 s4, 8\ns_cbranch_scc1 L_end')
    a('v_mov_b32 v4, -1\nv_mov_b32 v5, -1\nv_mov_b32 v6, -1\nv_mov_b32 v7, -1')
    a(f's_lshl_b32 s6, s3, 10\ns_add_u32 s6, s6, {WOUT}\nv_lshlrev_b32 v2, 4, v1\nv_add_u32 v2, s6, v2')
    a(f's_lshl_b32 s6, s3, 12\ns_add_u32 s6, s6, {MOUT}\nv_lshlrev_b32 v8, 4, v1\nv_add_u32 v8, s6, v8')
    a('s_waitcnt lgkmcnt(0)')
    a('global_store_dwordx4 v2, v[4:7], s[14:15] sc1')
    a('s_cmp_ge_u32 s3, 28\ns_cbranch_scc1 L_sp2')
    for i in range(4): a(f'global_store_dwordx4 v8, v[4:7], s[14:15] offset:{1024*i} sc1')
    a('L_sp2:')
    a('s_waitcnt vmcnt(0)')
    a('s_endpgm')

    AT=136; DD=32; Z=36; T=38; ZT=37; F0=40; F1=72; F2=104
    a('L_hearly:')
    a('s_cmp_lt_u32 s4, 8\ns_cbranch_scc1 L_hm')
    if cfg.warm:
        a('s_lshr_b32 s6, s2, 4\ns_xor_b32 s7, s4, 11\ns_or_b32 s6, s6, s7\ns_cbranch_scc1 L_spare')
        a('s_getpc_b64 s[36:37]\nL_pc:\ns_sub_u32 s36, s36, L_pc-L_stream\ns_subb_u32 s37, s37, 0\nv_lshlrev_b32 v2, 7, v1')
        a('s_mov_b32 s38, L_end-L_stream\ns_mov_b32 s39, 0x20000\ns_mov_b32 s6, 8192')
        a('s_waitcnt lgkmcnt(0)') if False else None
        a('buffer_load_dword v4, v2, s[36:39], 0 offen\nbuffer_load_dword v5, v2, s[36:39], s6 offen')
        a('s_endpgm')
    else:
        a('s_branch L_spare')
    a('L_hm:')
    a('s_cmp_eq_u32 s5, 0')
    a('s_cselect_b32 s6, 88, 24')
    a('s_load_dwordx2 s[20:21], s[0:1], s6')
    a('s_mov_b32 s7, 8192\ns_cselect_b32 s7, 6144, s7')
    a('s_cselect_b32 s29, 2, 4')
    a('s_cselect_b32 s24, 5, 6')
    a('s_lshl_b32 s22, s7, 9')
    a('s_lshl_b32 s25, s3, 8')
    a('s_lshr_b32 s26, s3, 1\ns_lshl_b32 s26, s26, 7\ns_and_b32 s27, s3, 1\ns_mul_i32 s27, s27, 256*6144\ns_add_u32 s26, s26, s27')
    a('s_cmp_eq_u32 s5, 0\ns_cselect_b32 s25, s26, s25')
    a('v_bfe_u32 v10, v1, 4, 1\nv_and_b32 v12, 7, v1\nv_xor_b32 v10, v10, v12')
    a('s_and_b32 s27, s4, 4\nv_xor_b32 v10, s27, v10')
    a('v_lshrrev_b32 v2, 3, v1\nv_mul_u32_u24 v2, s7, v2\nv_xor_b32 v12, 2, v10')
    a('v_lshl_add_u32 v12, v12, 4, v2\nv_lshl_add_u32 v2, v10, 4, v2')
    a('s_mov_b32 s23, 0x20000')
    a('s_lshl_b32 s6, s4, s24\ns_mul_i32 s27, s6, s7\ns_add_u32 s27, s27, s25')
    a('s_lshl_b32 s28, s6, 7\ns_lshl_b32 s7, s7, 3')
    a('s_waitcnt lgkmcnt(0)')
    a('L_hdma:')
    a('s_mov_b32 m0, s28\ns_add_u32 s28, s28, 1024')
    a(f'buffer_load_dwordx4 v2, s[20:23], s27 offen {cfg.NT} lds')
    a('s_add_u32 s27, s27, s7\ns_mov_b32 m0, s28\ns_add_u32 s28, s28, 1024')
    a(f'buffer_load_dwordx4 v12, s[20:23], s27 offen {cfg.NT} lds')
    a('s_add_u32 s27, s27, s7\ns_sub_u32 s29, s29, 1\ns_cmp_lg_u32 s29, 0\ns_cbranch_scc1 L_hdma')
    a('L_helper:')
    epoch_load()
    if cfg.diag is not None: a(f's_load_dword s96, s[14:15], {XID+4}\ns_load_dword s97, s[14:15], {EPO}')
    a('s_load_dwordx2 s[44:45], s[0:1], 0')
    a('s_load_dwordx4 s[48:51], s[0:1], 24')
    a('s_load_dwordx4 s[52:55], s[0:1], 80')
    a('v_lshrrev_b32 v10, 3, v1\nv_and_b32 v11, 3, v1\nv_lshlrev_b32 v11, 1, v11\nv_lshl_add_u32 v10, v10, 3, v11')
    a('v_bfe_u32 v11, v1, 2, 1')
    a('s_lshl_b32 s6, s4, 6\nv_add_u32 v12, s6, v10')
    a('v_lshlrev_b32 v6, 1, v12\nv_lshl_add_u32 v6, v11, 10, v6')
    a(f'v_lshlrev_b32 v9, 2, v12\nv_lshl_add_u32 v9, v11, 11, v9\nv_add_u32 v9, {X1}, v9')
    a(f's_lshr_b32 s6, s4, 2\ns_mul_i32 s6, s6, 576\ns_and_b32 s7, s4, 3\ns_lshl_b32 s7, s7, 7\ns_add_u32 s6, s6, s7\ns_add_u32 s6, s6, {ACT}')
    a('v_mul_u32_u24 v7, 1152, v11\nv_lshl_add_u32 v7, v10, 1, v7\nv_add_u32 v7, s6, v7')
    a('v_lshrrev_b32 v13, 3, v1\nv_lshlrev_b32 v13, 2, v13\nv_lshl_add_u32 v13, v11, 5, v13')
    a(f'v_add_u32 v13, {STAT}, v13')
    a('s_waitcnt lgkmcnt(0)')
    srd(16, 's14', 's15', WS_SZ)
    epoch_tag()
    a('global_load_dword v17, v6, s[52:53]')
    a('global_load_dword v16, v6, s[44:45]')
    a('s_cmp_eq_u32 s5, 0\ns_cbranch_scc1 L_t2')
    a('s_add_u32 s24, s25, 128')
    dma_u1('s48', 's49', 512*8192, 8192, 's24', R1)
    a('s_branch L_h2')
    a('L_t2:')
    a('s_lshr_b32 s26, s3, 1\ns_lshl_b32 s24, s26, 18\ns_and_b32 s6, s3, 1\ns_lshl_b32 s6, s6, 9\ns_add_u32 s24, s24, s6')
    dma_w(8, 8 + cfg.pre)
    a('L_h2:')
    a('v_lshrrev_b32 v10, 4, v1\nv_bfe_u32 v11, v1, 2, 2\nv_lshl_add_u32 v3, v10, 3, v11')
    a('v_bfe_u32 v11, v1, 1, 1\nv_lshl_add_u32 v3, v11, 8, v3\nv_lshlrev_b32 v3, 7, v3')
    a('v_bfe_u32 v12, v1, 3, 2\nv_lshl_add_u32 v12, v11, 2, v12\nv_xor_b32 v12, s4, v12\nv_lshl_add_u32 v3, v12, 4, v3')
    a('v_and_b32 v12, 1, v1\nv_lshl_add_u32 v3, v12, 3, v3')
    a(f'v_lshl_add_u32 v4, v12, 1, v11\nv_mul_u32_u24 v4, 576, v4\nv_lshl_add_u32 v4, v10, 4, v4\nv_add_u32 v4, {ACT}, v4')
    a('v_lshlrev_b32 v5, 3, v0')
    a('s_lshl_b32 s6, s4, 7\nv_lshl_add_u32 v8, v1, 3, s6\nv_lshlrev_b32 v28, 4, v0')
    a(f'v_and_b32 v10, 0x37, v1\nv_cmp_eq_u32 vcc, 1, v10\nv_mov_b32 v18, {f2u(1e-5)}\nv_cndmask_b32 v18, 0, v18, vcc')
    a(f'v_lshlrev_b32 v10, 2, v1\nv_add_u32 v10, {STAT}, v10\nv_mov_b32 v{T+1}, s33\nv_mov_b32 v{ZT}, s33')
    a('s_mov_b32 exec_lo, -1\ns_mov_b32 exec_hi, 0xffff\nds_write_b32 v10, v18\ns_mov_b64 exec, -1')

    def tr_u1(F, region, steps=8, ad=None):
        if ad is None:
            if region: a(f'v_add_u32 v10, {region}, v3')
            ad = 'v10' if region else 'v3'
        for s in range(steps):
            for hh in range(2):
                a(f'ds_read_b64_tr_b16 v[{F+4*s+2*hh}:{F+4*s+2*hh+1}], {ad} offset:{4096*s + 512*hh}')
    def gemv(Fs, ad='v4', fill=(), off=0, steps=8, Ds=None):
        if isinstance(Fs, int): Fs = [Fs]
        if Ds is None: Ds = [DD]
        fill = list(fill)
        for s in range(steps): a(f'ds_read_b128 v[{AT+4*s}:{AT+4*s+3}], {ad} offset:{64*s+off}')
        per = (len(fill) + steps - 2) // (steps - 1)
        for s in range(steps):
            a(f's_waitcnt lgkmcnt({steps-1-s})')
            for F, D in zip(Fs, Ds):
                c = '0' if s == 0 else f'v[{D}:{D+3}]'
                a(f'v_mfma_f32_16x16x32_bf16 v[{D}:{D+3}], v[{AT+4*s}:{AT+4*s+3}], v[{F+4*s}:{F+4*s+3}], {c}')
            for _ in range(per):
                if fill: a(fill.pop(0))
        for x in fill: a(x)
    def sgemv(Fs, Ds, ad, idx, off=0, fill=(), steps=4, lead=2):
        fill = list(fill)
        for s in range(steps): a(f'ds_read_b128 v[{AT+4*s}:{AT+4*s+3}], {ad} offset:{64*s+off}')
        per = lead
        for s in range(steps):
            a(f's_waitcnt lgkmcnt({steps-1-s})')
            for F, D in zip(Fs, Ds):
                a(f'v_smfmac_f32_16x16x64_bf16 v[{D}:{D+3}], v[{AT+4*s}:{AT+4*s+3}], v[{F+8*s}:{F+8*s+7}], {idx}')
            for _ in range(per):
                if fill: a(fill.pop(0))
        for x in fill: a(x)
    def fold(D=DD, z=Z):
        a(f'v_add_f32_dpp v{z}, v{D+2}, v{D} row_ror:8 row_mask:0xf bank_mask:0x3')
        a(f'v_add_f32_dpp v{z}, v{D+1}, v{D+3} row_ror:8 row_mask:0xf bank_mask:0xc')
    def publish_tag(z, soff):
        a(f's_mov_b64 exec, 0xffff\nbuffer_store_dwordx2 v[{Z}:{Z+1}], v8, s[16:19], {soff} offen sc1\ns_mov_b64 exec, -1')
    def store2(text):
        if not cfg.fast: a(text + ' sc1'); return
        l = lab('fs'); d = lab('fd')
        a(f's_cbranch_scc1 {l}')
        a(text + ' sc1'); a(f's_branch {d}')
        a(f'{l}:'); a(text + ' ' + cfg.lst); a(f'{d}:')
    def unpack(lo, hi, src):
        a(f'v_lshlrev_b32 v{lo}, 16, v{src}\nv_and_b32 v{hi}, 0xffff0000, v{src}')
    def red6(vals, off, TT, scale=None, ad='v13'):
        r01, r23, r45, z = TT
        for r, (e, o) in zip((r01, r23, r45), ((vals[0], vals[1]), (vals[2], vals[3]), (vals[4], vals[5]))):
            a(f'v_add_f32_dpp v{r}, v{e}, v{e} row_ror:8 row_mask:0xf bank_mask:0x3')
        for r, (e, o) in zip((r01, r23, r45), ((vals[0], vals[1]), (vals[2], vals[3]), (vals[4], vals[5]))):
            a(f'v_add_f32_dpp v{r}, v{o}, v{o} row_ror:8 row_mask:0xf bank_mask:0xc')
        a(f'v_permlane16_swap_b32 v{r01}, v{r23}\nv_permlane16_swap_b32 v{r45}, v{z}')
        a(f'v_add_f32 v{r01}, v{r01}, v{r23}\nv_add_f32 v{r45}, v{r45}, v{z}')
        a(f'v_permlane32_swap_b32 v{r01}, v{r45}\nv_add_f32 v{r01}, v{r01}, v{r45}')
        a(f'v_add_f32_dpp v{r01}, v{r01}, v{r01} quad_perm:[1,0,3,2] row_mask:0xf bank_mask:0xf')
        a(f'v_add_f32_dpp v{r01}, v{r01}, v{r01} quad_perm:[2,3,0,1] row_mask:0xf bank_mask:0xf')
        a(f's_mov_b32 exec_lo, 0x11111111\ns_mov_b32 exec_hi, 0x1111')
        if scale: a(f'v_mul_f32 v{r01}, v{r01}, {scale}')
        a(f'ds_add_f32 {ad}, v{r01} offset:{off}\ns_mov_b64 exec, -1')

    stamp(1)
    def silu():
        unpack(18, 19, 17)
        a(f's_mov_b32 s6, {f2u(-LOG2E)}')
        a('v_mul_f32 v20, s6, v18\nv_mul_f32 v21, s6, v19\nv_exp_f32 v20, v20\nv_exp_f32 v21, v21')
        a('v_add_f32 v20, 1.0, v20\nv_add_f32 v21, 1.0, v21\nv_rcp_f32 v20, v20\nv_rcp_f32 v21, v21')
        a('v_mul_f32 v18, v18, v20\nv_mul_f32 v19, v19, v21\nv_cvt_pk_bf16_f32 v18, v18, v19')
        a(f'ds_write_b32 v7, v18 offset:{ACTC-ACT}')
        unpack(14, 15, 16)
    a('s_cmp_eq_u32 s5, 0\ns_cbranch_scc1 L_tail')
    mloads = [f'buffer_load_dwordx4 v[{AT+4*k}:{AT+4*k+3}], v28, s[16:19], s{60+k} offen sc1' for k in range(4)]
    for k in range(4): a(f's_mov_b32 s{60+k}, {MODA + 8192*k}')
    for x in mloads: a(x)
    a('s_waitcnt vmcnt(12)')
    stamp(2)
    silu()
    a('v_add_f32 v18, v14, v15\nv_mul_f32 v19, v14, v14\nv_fmac_f32 v19, v15, v15')
    a('s_waitcnt lgkmcnt(0)\ns_barrier')
    red6([18, 19, 18, 19, 18, 19], STAT2 - STAT, (24, 25, 26, 27))
    tr_u1(F0, R0)
    a('s_waitcnt lgkmcnt(0)\ns_barrier')
    stamp(3)
    a('s_lshl_b32 s24, s3, 7\ns_add_u32 s24, s24, 2048')
    if cfg.apre: dma_u1('s54', 's55', 512*6144, 6144, 's24', R0, i1=cfg.apre)
    a(f'v_bfe_u32 v10, v1, 2, 1\nv_lshlrev_b32 v10, 5, v10\nv_add_u32 v10, {STAT2}, v10')
    a('ds_read_b64 v[18:19], v10\ns_waitcnt lgkmcnt(0)')
    a(f's_mov_b32 s6, {f2u(1/512)}\ns_mov_b32 s7, {f2u(1e-5)}')
    a('v_mul_f32 v18, s6, v18\nv_mul_f32 v19, s6, v19\nv_fma_f32 v19, -v18, v18, v19\nv_add_f32 v19, s7, v19\nv_rsq_f32 v19, v19')
    a('v_sub_f32 v20, v14, v18\nv_sub_f32 v21, v15, v18\nv_mul_f32 v20, v20, v19\nv_mul_f32 v21, v21, v19')
    a('v_bfe_u32 v30, v1, 1, 2\nv_lshlrev_b32 v30, 3, v30\nv_bfe_u32 v11, v1, 3, 1\nv_lshl_add_u32 v30, v11, 9, v30\nv_bfe_u32 v11, v1, 4, 1\nv_lshl_add_u32 v30, v11, 8, v30')
    a(f's_lshl_b32 s6, s4, 5\ns_add_u32 s6, s6, {X1}\nv_add_u32 v30, s6, v30')
    a(f'v_lshlrev_b32 v31, 4, v1\nv_add_u32 v29, {X1}, v31\nv_lshrrev_b32 v11, 5, v1\nv_mul_u32_u24 v11, 1536, v11\nv_add_u32 v31, v31, v11')
    vpoll(mloads, range(AT+1, AT+16, 2), 22, first_issued=True, tags=True, sleep=cfg.slp, first_cnt=cfg.apre)
    stamp(4)
    a(f'v_add_f32 v22, v{AT}, v{AT+8}\nv_add_f32 v23, v{AT+2}, v{AT+10}\nv_add_f32 v24, v{AT+4}, v{AT+12}\nv_add_f32 v25, v{AT+6}, v{AT+14}')
    a('v_add_f32 v24, 1.0, v24\nv_add_f32 v25, 1.0, v25\nv_fma_f32 v20, v20, v24, v22\nv_fma_f32 v21, v21, v25, v23')
    a('v_cvt_pk_bf16_f32 v20, v20, v21\nds_write_b32 v7, v20\ns_waitcnt lgkmcnt(0)\ns_barrier')
    stamp(5)
    tr_u1(F1, R1)
    gemv([F0, F1], Ds=[DD, 24])
    a(f'v_add_f32_dpp v{Z}, v{DD+2}, v{DD} row_ror:8 row_mask:0x1 bank_mask:0x3')
    a(f'v_add_f32_dpp v{Z}, v{DD+1}, v{DD+3} row_ror:8 row_mask:0x1 bank_mask:0xc')
    a(f'v_add_f32_dpp v{Z}, v26, v24 row_ror:8 row_mask:0x2 bank_mask:0x3')
    a(f'v_add_f32_dpp v{Z}, v25, v27 row_ror:8 row_mask:0x2 bank_mask:0xc')
    a(f'v_mov_b32_dpp v{T}, v{Z} quad_perm:[1,1,3,3] row_mask:0xf bank_mask:0xf')
    a(f's_mov_b64 exec, 0x55555555')
    a(f'v_cvt_pk_bf16_f32 v{T}, v{Z}, v{T}')
    a(f'ds_write_b64 v30, v[{T}:{T+1}]\ns_mov_b64 exec, -1')
    a('s_waitcnt lgkmcnt(0)\ns_barrier')
    a('s_cmp_lg_u32 s4, 0\ns_cbranch_scc1 L_nqp')
    a(f's_lshr_b32 s6, s3, 2\ns_lshl_b32 s6, s6, 12\ns_and_b32 s7, s3, 3\ns_lshl_b32 s7, s7, 9\ns_add_u32 s6, s6, s7\ns_add_u32 s6, s6, {QO}')
    a('ds_read_b128 v[24:27], v29\ns_waitcnt lgkmcnt(0)')
    a('buffer_store_dwordx4 v[24:27], v31, s[16:19], s6 offen sc1')
    a('L_nqp:')
    stamp(6)
    dma_u1('s54', 's55', 512*6144, 6144, 's24', R0, i0=cfg.apre)
    a('s_waitcnt vmcnt(0)\ns_barrier')
    tr_u1(F0, R0)
    gemv(F0, off=ACTC-ACT); fold()
    a(f's_lshl_b32 s6, s3, 10\ns_add_u32 s6, s6, {MODB}')
    publish_tag(Z, 's6')
    stamp(7)
    if cfg.stamps:
        a('s_cmp_lg_u32 s4, 0\ns_cbranch_scc1 L_end')
        stamps_out(8, 0)
    a('s_endpgm')

    a('L_tail:')
    a(f's_waitcnt vmcnt({cfg.pre})')
    stamp(2)
    silu()
    a('s_load_dwordx8 s[52:59], s[0:1], 48')
    a('s_load_dwordx2 s[46:47], s[0:1], 96')
    if cfg.diag is not None: a('s_waitcnt lgkmcnt(0)\ns_load_dwordx2 s[98:99], s[46:47], 0')
    a('v_bfe_u32 v11, v1, 1, 1\nv_lshlrev_b32 v10, 14, v11\nv_sub_u32 v10, v3, v10')
    a('v_mul_u32_u24 v11, 320, v11\nv_sub_u32 v11, v4, v11\ns_and_b32 s6, s3, 1\ns_mul_i32 s6, s6, 576\nv_add_u32 v11, s6, v11')
    a('s_waitcnt lgkmcnt(0)\ns_barrier')
    tr_u1(F0, R0, 4, 'v10')
    gemv(F0, 'v11', off=ACTC-ACT, steps=4); fold()
    a('s_and_b32 s6, s3, 1\ns_lshl_b32 s6, s6, 14\ns_lshr_b32 s7, s3, 1\ns_lshl_b32 s7, s7, 10\ns_add_u32 s6, s6, s7')
    publish_tag(Z, 's6')
    stamp(3)
    dma_w(8 + cfg.pre, 16, setup=False)
    a('s_barrier')
    dma_w(0, 8, setup=False)
    a('v_lshrrev_b32 v10, 4, v1\nv_bfe_u32 v11, v1, 2, 2\nv_lshl_add_u32 v10, v10, 3, v11\nv_lshlrev_b32 v10, 9, v10')
    a('v_and_b32 v11, 3, v1\nv_lshl_add_u32 v10, v11, 3, v10')
    a('v_bfe_u32 v11, v1, 2, 3\nv_lshlrev_b32 v11, 5, v11\ns_lshl_b32 s6, s4, 6\nv_xor_b32 v11, s6, v11')
    a('v_add_u32 v22, v10, v11\nv_xor_b32 v11, 32, v11\nv_add_u32 v30, v10, v11')
    def tr_w(half):
        for cg, ad in ((0, 22), (1, 30)):
            if half: a(f'v_add_u32 v{10+cg}, {R1}, v{ad}')
            for s_ in range(4):
                for hh in range(2):
                    r = (F0, F1)[cg] + 4*(4*half + s_) + 2*hh
                    a(f'ds_read_b64_tr_b16 v[{r}:{r+1}], v{10+cg if half else ad} offset:{16384*s_ + 2048*hh}')
    a(f's_getreg_b32 s6, hwreg(HW_REG_XCC_ID)\ns_and_b32 s31, s6, 15\nv_mov_b32 v{T}, s31')
    a(f's_lshl_b32 s6, s3, 7\ns_add_u32 s6, s6, {XID}\nv_lshlrev_b32 v10, 3, v1')
    a('s_cmp_eq_u32 s4, 0\ns_cselect_b32 exec_lo, 0xffff, 0\ns_mov_b32 exec_hi, 0\ns_cbranch_execz L_nxid')
    a(f'buffer_store_dwordx2 v[{T}:{T+1}], v10, s[16:19], s6 offen sc1')
    a('L_nxid:')
    a('s_mov_b64 exec, -1')
    a('s_waitcnt vmcnt(8)\ns_barrier')
    stamp(4)
    tr_w(1)
    a('s_waitcnt lgkmcnt(0)\ns_barrier')
    a('s_cmp_ge_u32 s3, 28\ns_cbranch_scc1 L_nom1')
    a('s_lshl_b32 s24, s3, 7')
    dma_u1('s52', 's53', 512*3584, 3584, 's24', R1)
    stamp(5)
    a('s_waitcnt vmcnt(8)\ns_branch L_m1d')
    a('L_nom1:')
    a('s_waitcnt vmcnt(0)')
    a('L_m1d:')
    a('s_barrier')
    tr_w(0)
    a('s_waitcnt lgkmcnt(0)\ns_barrier')
    stamp(7)
    a('s_cmp_ge_u32 s3, 28\ns_cbranch_scc1 L_nom2')
    srd(20, 's56', 's57', 1792*1024)
    a('s_and_b32 s6, s4, 1\ns_lshl_b32 s6, s6, 7\nv_lshlrev_b32 v2, 4, v1\nv_xor_b32 v2, s6, v2')
    a('v_xor_b32 v10, 32, v2\nv_xor_b32 v11, 64, v2\nv_xor_b32 v12, 96, v2')
    a(f's_lshl_b32 s27, s3, 16\ns_lshl_b32 s28, s4, 13\ns_add_u32 s27, s27, s28')
    for hh in range(2):
        a('s_mov_b32 m0, s28')
        for i in range(4): a(f'buffer_load_dwordx4 v{(2,10,11,12)[i]}, s[20:23], s27 offen offset:{1024*i} {cfg.NT} lds')
        if hh == 0: a('s_add_u32 s27, s27, 4096\ns_add_u32 s28, s28, 4096')
    stamp(6)
    if cfg.touch:
        a(f's_lshl_b32 s6, s3, 12\ns_add_u32 s6, s6, {MOUT}\nbuffer_load_dwordx2 v[{DD}:{DD+1}], v5, s[16:19], s6 offen sc1')
    a('v_and_b32 v10, 7, v1\nv_lshlrev_b32 v10, 1, v10')
    a('s_and_b32 s6, s3, 15\ns_lshl_b32 s6, s6, 5\ns_lshl_b32 s7, s4, 2\ns_add_u32 s6, s6, s7')
    a('v_and_b32 v11, 1, v1\nv_lshl_add_u32 v11, v11, 1, s6\nv_bfe_u32 v12, v1, 4, 1\nv_add_u32 v23, v11, v12')
    a('v_lshlrev_b32 v11, 1, v23\nglobal_load_ushort v24, v11, s[58:59]')
    a('s_lshl_b32 s6, s3, 7\ns_lshl_b32 s7, s4, 4\ns_add_u32 s6, s6, s7')
    a('v_add_u32 v11, s6, v10\nglobal_load_ushort v25, v11, s[54:55]')
    a('L_nom2:')
    if cfg.touch:
        a(f's_lshl_b32 s6, s3, 10\ns_add_u32 s6, s6, {WOUT}\nv_lshlrev_b32 v10, 4, v1\nbuffer_load_dword v{DD+2}, v10, s[16:19], s6 offen sc1')
    a(f'v_and_b32 v10, 31, v1\nv_lshlrev_b32 v10, 7, v10\ns_mov_b32 s6, {XID}')
    vpoll([f'buffer_load_dwordx2 v[{AT}:{AT+1}], v10, s[16:19], s6 offen sc1'], [AT+1], None, sleep=cfg.slp, tags=True)
    a(f'v_cmp_ne_u32 vcc, s31, v{AT}\ns_cmp_eq_u64 vcc, 0\ns_cselect_b32 s32, 1, 0')
    a('s_cmp_ge_u32 s3, 28\ns_cbranch_scc1 L_wst')
    a('s_barrier')
    tr_u1(F2, R1)
    a('v_lshrrev_b32 v11, 3, v23\nv_lshlrev_b32 v11, 7, v11\nv_and_b32 v12, 7, v23\nv_lshl_add_u32 v11, v12, 3, v11\nv_bfe_u32 v12, v1, 3, 1\nv_lshl_add_u32 v11, v12, 6, v11')
    a(f's_mov_b32 s63, {MODB + 24*1024}')
    for k in range(3): a(f's_mov_b32 s{60+k}, {MODB + 8192*k}')
    a('v_lshlrev_b32 v24, 16, v24\nv_lshlrev_b32 v25, 16, v25')
    a(f'v_mov_b32 v{AT+15}, 0x3f803f80\nds_write_b32 v7, v{AT+15} offset:{ACTM-ACT+3*TS}')
    stamp(1)
    vpoll([f'buffer_load_dwordx4 v[{AT+4*k}:{AT+4*k+3}], v28, s[16:19], s{60+k} offen sc1' for k in range(3)] +
          [f'buffer_load_dwordx2 v[{AT+12}:{AT+13}], v11, s[16:19], s63 offen sc1'], range(AT+1, AT+14, 2), AT+14, sleep=cfg.slp, tags=True)
    stamp(8)
    a(f'v_mov_b32 v23, v{AT+12}\nv_mov_b32 v16, v{AT}\nv_mov_b32 v17, v{AT+2}')
    a(f'v_add_f32 v18, 1.0, v{AT+8}\nv_add_f32 v19, 1.0, v{AT+10}\nv_cvt_pk_bf16_f32 v{AT+1}, v{AT+4}, v{AT+6}\nv_cvt_pk_bf16_f32 v{AT+3}, v18, v19')
    unpack(18, 19, AT+3); unpack(20, 21, AT+1)
    a(f'ds_write_b32 v7, v{AT+3} offset:{ACTM-ACT+TS}\nds_write_b32 v7, v{AT+1} offset:{ACTM-ACT+2*TS}')
    t = AT + 16
    a(f'v_add_f32 v{t}, v18, v19\nv_mul_f32 v{t+1}, v18, v18\nv_fmac_f32 v{t+1}, v19, v19')
    a(f'v_mul_f32 v{t+2}, v18, v20\nv_fmac_f32 v{t+2}, v19, v21\nv_add_f32 v{t+3}, v20, v21')
    a(f'v_mul_f32 v{t+4}, v20, v20\nv_fmac_f32 v{t+4}, v21, v21')
    red6([t, t+1, t+2, t+3, t+4, t+4], STAT3 - STAT, (t+6, t+7, t+8, t+9))
    a(f'v_bfe_u32 v10, v1, 2, 2\nv_mul_u32_u24 v10, {TS}, v10\nv_add_u32 v10, v10, v4')
    a('s_waitcnt lgkmcnt(0)\ns_barrier')
    gemv(F2, 'v10', off=ACTM-ACT); fold()
    a(f'v_mov_b32 v26, v{Z}\nv_permlane16_swap_b32 v{Z}, v26')
    a(f'v_mov_b32 v27, v{Z}\nv_mov_b32 v28, v26\nv_permlane32_swap_b32 v{Z}, v27\nv_permlane32_swap_b32 v26, v28')
    a('L_wst:')
    if cfg.dirty:
        a(f's_lshl_b32 s6, s3, 15\ns_add_u32 s6, s6, 0xA0000\nv_lshlrev_b32 v10, 4, v0')
        srd(20, 's14', 's15', 0x200000)
        for i in range(cfg.dirty):
            a(f'buffer_store_dwordx4 v[40:43], v10, s[20:23], s6 offen\ns_add_u32 s6, s6, 8192')
    a('s_lshr_b32 s6, s4, 2\ns_lshl_b32 s24, s6, 3\ns_lshr_b32 s7, s26, 1\ns_add_u32 s24, s24, s7')
    a('s_and_b32 s7, s26, 1\ns_lshl_b32 s7, s7, 1\ns_bfe_u32 s28, s4, 0x10001\ns_add_u32 s7, s7, s28')
    a(f's_lshl_b32 s27, s24, 11\ns_lshl_b32 s29, s7, 3\ns_add_u32 s27, s27, s29\ns_add_u32 s27, s27, {LSE}')
    a(f's_lshl_b32 s60, s24, 14\ns_lshl_b32 s29, s7, 8\ns_add_u32 s60, s60, s29\ns_and_b32 s29, s4, 1\ns_lshl_b32 s29, s29, 7\ns_add_u32 s60, s60, s29\ns_add_u32 s60, s60, {OP}')
    a('s_add_u32 s61, s60, 4096')
    a(f's_mul_i32 s6, s6, 1152\ns_and_b32 s29, s4, 3\ns_lshl_b32 s29, s29, 6\ns_add_u32 s6, s6, s29\ns_add_u32 s6, s6, {ACT}')
    a('v_and_b32 v31, 1, v1\nv_mul_u32_u24 v31, 576, v31\nv_bfe_u32 v10, v1, 1, 4\nv_lshl_add_u32 v31, v10, 2, v31\nv_add_u32 v31, s6, v31')
    a('s_mov_b32 s62, 6144\nv_and_b32 v2, 31, v1\nv_lshlrev_b32 v2, 2, v2\nv_lshrrev_b32 v10, 5, v1\nv_mad_u32_u24 v2, v10, s62, v2')
    a(f's_lshl_b32 s29, s3, 10\ns_add_u32 s29, s29, {WOUT}')
    a('v_and_b32 v11, 2, v1\nv_cmp_eq_u32 vcc, 0, v11\nv_mov_b32 v11, 0xeeee\nv_mov_b32 v22, 0x4444\nv_cndmask_b32 v22, v11, v22, vcc')
    for r in range(8): a(f'v_mov_b32 v{DD+r}, 0')
    a('v_bfe_u32 v8, v1, 1, 2\nv_lshlrev_b32 v8, 4, v8\nv_bfe_u32 v11, v1, 4, 1\nv_lshl_add_u32 v8, v11, 6, v8\nv_bfe_u32 v11, v1, 3, 1\nv_lshl_add_u32 v8, v11, 7, v8')
    a('v_lshl_add_u32 v8, v10, 2, v8\ns_lshr_b32 s6, s4, 1\ns_lshl_b32 s6, s6, 8\ns_and_b32 s7, s4, 1\ns_lshl_b32 s7, s7, 3\ns_add_u32 s6, s6, s7\nv_add_u32 v8, s6, v8')
    a(f'v_lshlrev_b32 v10, 7, v1\nv_mov_b32 v{AT}, 0xff800000')
    stamp(9)
    a(f's_mov_b64 exec, {(1 << NCH) - 1:#x}')
    vpoll([f'buffer_load_dwordx2 v[{AT}:{AT+1}], v10, s[16:19], s27 offen sc1'], [AT+1], None, sleep=cfg.slp, tags=True)
    a('s_mov_b64 exec, -1')
    if cfg.diag is not None and cfg.diag >= 90:
        op = 'min' if cfg.diag == 99 else 'max'
        a(f'v_mov_b32 v{AT+2}, s64\ns_mov_b64 exec, {(1 << NCH) - 1:#x}\nbuffer_load_dword v{AT+2}, v10, s[16:19], s27 offen offset:64 sc1\ns_waitcnt vmcnt(0)\ns_mov_b64 exec, -1')
        a(f'v_subrev_u32 v{AT+2}, s64, v{AT+2}')
        if cfg.diag >= 98:
            for r in (1, 2, 4, 8): a(f'v_{op}_i32_dpp v{AT+2}, v{AT+2}, v{AT+2} row_ror:{r} row_mask:0xf bank_mask:0xf')
        a(f'v_readlane_b32 s92, v{AT+2}, {0 if cfg.diag >= 98 else cfg.diag - 90}\ns_add_u32 s92, s92, 250\ns_add_u32 s92, s92, s64')
    a(f'v_mov_b32 v{AT+1}, v{AT}')
    for r in (1, 2, 4, 8): a(f'v_max_f32_dpp v{AT+1}, v{AT+1}, v{AT+1} row_ror:{r} row_mask:0xf bank_mask:0xf')
    a(f'v_sub_f32 v{AT}, v{AT}, v{AT+1}\nv_exp_f32 v{AT}, v{AT}\nv_mov_b32 v{AT+1}, v{AT}')
    for r in (1, 2, 4, 8): a(f'v_add_f32_dpp v{AT+1}, v{AT+1}, v{AT+1} row_ror:{r} row_mask:0xf bank_mask:0xf')
    a(f'v_rcp_f32 v{AT+1}, v{AT+1}\nv_mul_f32 v{AT}, v{AT}, v{AT+1}')
    a('v_lshrrev_b32 v10, 5, v1\nv_mul_u32_u24 v10, 24, v10')
    for i in range(6):
        a(f'ds_bpermute_b32 v{AT+24+i}, v10, v{AT} offset:{4*i}')
    a('s_waitcnt lgkmcnt(0)')
    wl = [f'buffer_load_dword v{AT+c}, v2, s[16:19], s{60+(c>>2)} offen offset:{1024*(c&3)} sc1' for c in range(6)]
    if cfg.mp & 1: mpoll([(wl[c], [AT+c]) for c in range(6)], AT+12)
    else: vpoll(wl, [AT+c for c in range(6)], AT+12)
    stamp(10)
    acc = AT + 20
    for c in range(6):
        tq = AT + 8 + 2*c
        unpack(tq, tq+1, AT+c)
    for c in range(6):
        tq = AT + 8 + 2*c; wp = AT + 24 + (c & ~1)
        mod = 'op_sel_hi:[1,0,1]' if (c & 1) == 0 else 'op_sel:[0,1,0] op_sel_hi:[1,1,1]'
        mod2 = 'op_sel_hi:[1,0]' if (c & 1) == 0 else 'op_sel:[0,1] op_sel_hi:[1,1]'
        ac = acc + 2*(c & 1)
        if c < 2: a(f'v_pk_mul_f32 v[{ac}:{ac+1}], v[{tq}:{tq+1}], v[{wp}:{wp+1}] {mod2}')
        else: a(f'v_pk_fma_f32 v[{ac}:{ac+1}], v[{tq}:{tq+1}], v[{wp}:{wp+1}], v[{ac}:{ac+1}] {mod}')
    a(f'v_pk_add_f32 v[{acc}:{acc+1}], v[{acc}:{acc+1}], v[{acc+2}:{acc+3}]')
    a(f'v_permlane32_swap_b32 v{acc}, v{acc+1}')
    a(f'v_add_f32 v{acc}, v{acc}, v{acc+1}')
    a(f'v_mov_b32 v{acc+1}, v{acc}\nv_permlane32_swap_b32 v{acc}, v{acc+1}')
    a(f's_mov_b64 exec, 0xffffffff\nv_cvt_pk_bf16_f32 v{acc}, v{acc}, v{acc+1}\nds_write_b32 v31, v{acc}\ns_mov_b64 exec, -1')
    fst(7)
    a('s_waitcnt lgkmcnt(0)\ns_barrier')
    fst(8)
    sgemv([F0, F1], [DD, Z], 'v4', 'v22')
    a(f'v_add_f32_dpp v10, v{DD}, v{DD+2} quad_perm:[0,1,2,3] row_mask:0x1 bank_mask:0xf')
    a(f'v_add_f32_dpp v10, v{DD+1}, v{DD+3} quad_perm:[0,1,2,3] row_mask:0x2 bank_mask:0xf')
    a(f'v_add_f32_dpp v10, v{Z}, v{Z+2} quad_perm:[0,1,2,3] row_mask:0x4 bank_mask:0xf')
    a(f'v_add_f32_dpp v10, v{Z+1}, v{Z+3} quad_perm:[0,1,2,3] row_mask:0x8 bank_mask:0xf')
    a('s_cmp_lg_u32 s32, 0')
    a('v_mov_b32_dpp v11, v10 quad_perm:[1,1,3,3] row_mask:0xf bank_mask:0xf')
    a('s_mov_b32 exec_lo, 0x55555555\ns_mov_b32 exec_hi, 0x55555555')
    a('v_cvt_pk_bf16_f32 v11, v10, v11')
    store2('buffer_store_dword v11, v8, s[16:19], s29 offen')
    a('s_mov_b64 exec, -1')
    stamp(11)
    a('s_cmp_ge_u32 s3, 28\ns_cbranch_scc1 L_hdone')

    a('v_lshrrev_b32 v10, 4, v1\nv_bfe_u32 v11, v1, 2, 2\nv_lshl_add_u32 v10, v10, 3, v11\nv_lshlrev_b32 v10, 10, v10')
    a(f'v_and_b32 v11, 3, v1\nv_lshl_add_u32 v10, v11, 3, v10')
    a('v_bfe_u32 v11, v1, 2, 3\nv_lshlrev_b32 v11, 5, v11\ns_lshl_b32 s6, s4, 7\nv_xor_b32 v11, s6, v11')
    for cg in range(4):
        a(f'v_xor_b32 v12, {32*cg}, v11\nv_add_u32 v{60+cg}, v10, v12')
    for cg in range(4):
        for s in range(2):
            for hh in range(2):
                r = F1 + (cg*2 + s)*4 + 2*hh
                a(f'ds_read_b64_tr_b16 v[{r}:{r+1}], v{60+cg} offset:{32768*s + 4096*hh}')
    a(f's_lshl_b32 s60, s4, 8\ns_add_u32 s60, s60, {WOUT}\ns_add_u32 s61, s60, 4096')
    a('v_and_b32 v59, 15, v1\nv_lshlrev_b32 v59, 4, v59\nv_lshrrev_b32 v58, 4, v1\nv_lshl_add_u32 v59, v58, 13, v59')
    wloads = [f'buffer_load_dwordx4 v[{AT+4*k}:{AT+4*k+3}], v59, s[16:19], s{60+(k>>1)} offen offset:{2048*(k&1)} sc1' for k in range(4)]
    for x in wloads: a(x)
    a(f'v_bfe_u32 v10, v1, 3, 1\nv_lshlrev_b32 v40, 5, v10\nv_add_u32 v40, {STAT}, v40')
    a(f'ds_read_b128 v[68:71], v40 offset:{STAT3-STAT}\nds_read_b32 v30, v40 offset:{STAT3-STAT+16}')
    a('v_bfe_u32 v11, v1, 1, 1\nv_lshl_add_u32 v41, v10, 1, v11\nv_lshlrev_b32 v41, 6, v41\nv_and_b32 v12, 4, v1\nv_add_u32 v41, v41, v12')
    a(f'v_and_b32 v12, 1, v1\nv_lshl_add_u32 v41, v12, 1, v41\ns_lshl_b32 s6, s4, 3\ns_add_u32 s6, s6, {HID}\nv_add_u32 v41, s6, v41')
    a(f'v_lshl_add_u32 v42, v12, 1, v11\nv_lshlrev_b32 v42, 6, v42\nv_and_b32 v45, 48, v1\nv_add_u32 v42, v42, v45\nv_add_u32 v42, {HID}, v42')
    a(f'v_and_b32 v43, 7, v1\nv_mul_u32_u24 v43, 288, v43\nv_add_u32 v43, v43, v45\nv_add_u32 v43, {AS}, v43')
    a('v_bfe_u32 v46, v1, 2, 1\nv_lshl_add_u32 v46, v12, 2, v46\nv_mul_u32_u24 v46, 288, v46\nv_lshl_add_u32 v46, v11, 2, v46\nv_lshrrev_b32 v11, 3, v1\nv_lshl_add_u32 v46, v11, 3, v46')
    a(f's_lshr_b32 s6, s4, 2\ns_mul_i32 s6, s6, 576\ns_and_b32 s7, s4, 3\ns_lshl_b32 s7, s7, 6\ns_add_u32 s6, s6, s7\ns_add_u32 s6, s6, {AS}\nv_add_u32 v46, s6, v46')
    a('v_and_b32 v11, 4, v1\nv_cmp_eq_u32 vcc, 0, v11\nv_mov_b32 v11, 0xeeee\nv_mov_b32 v47, 0x4444\nv_cndmask_b32 v47, v11, v47, vcc')
    for r in range(4): a(f'v_mov_b32 v{DD+r}, 0')
    a('s_and_b32 s6, s3, 15\ns_lshl_b32 s6, s6, 5\ns_lshl_b32 s7, s4, 2\ns_add_u32 s6, s6, s7')
    a('v_and_b32 v11, 1, v1\nv_lshl_add_u32 v11, v11, 1, s6')
    a('v_lshrrev_b32 v12, 1, v1\nv_lshlrev_b32 v44, 12, v12\nv_lshl_add_u32 v44, v11, 3, v44')
    a('v_bfe_u32 v12, v1, 4, 1\nv_add_u32 v11, v11, v12')
    a(f'v_lshlrev_b32 v48, 11, v10\nv_lshl_add_u32 v48, v11, 2, v48\nv_add_u32 v48, {X1}, v48')
    a('v_lshlrev_b32 v49, 10, v10\nv_lshl_add_u32 v49, v11, 1, v49')
    a(f's_add_u32 s20, s14, {MOUT}\ns_addc_u32 s21, s15, 0\ns_mov_b32 s22, {28*4096}\ns_mov_b32 s23, 0x20000')
    a(f's_lshl_b32 s24, s3, 12')
    a(f's_mov_b32 s40, {f2u(1/512)}\ns_mov_b32 s41, {f2u(1e-5)}\ns_mov_b32 s42, {f2u(0.044715)}\ns_mov_b32 s43, {f2u(-2*math.sqrt(2/math.pi)*LOG2E)}')
    a('v_and_b32 v50, 1, v1\nv_lshlrev_b32 v50, 4, v50\nv_mov_b32 v51, 0x3f80\nv_lshlrev_b32 v50, v50, v51\nv_bfe_u32 v51, v1, 2, 2')
    for i in range(4): a(f'v_cmp_eq_u32 vcc, {i}, v51\nv_cndmask_b32 v{64+i}, 0, v50, vcc')
    a('s_waitcnt lgkmcnt(0)')
    a(f's_mov_b32 s45, {f2u(2/512)}\nv_mov_b32 v50, s41')
    a('v_mul_f32 v68, s40, v68\nv_mul_f32 v69, s40, v69\nv_mul_f32 v70, s45, v70\nv_mul_f32 v71, s40, v71\nv_fma_f32 v30, v30, s40, v50')
    a(f'v_lshrrev_b32 v50, 3, v1\nv_mov_b32 v51, s40\nv_cmp_eq_u32 vcc, 5, v50\nv_mov_b32 v58, s45\nv_cndmask_b32 v51, v51, v58, vcc\nv_cmp_eq_u32 vcc, 4, v50\nv_cndmask_b32 v51, v51, -v58, vcc')
    a('v_mov_b32 v29, v9\nv_mov_b32 v31, v13')
    Q = (0, 60, 6, 10)
    for q_ in Q:
        for r in range(4): a(f'v_mov_b32 v{q_+r}, 0')
    if cfg.mp & 2: mpoll([(wloads[k], range(AT+4*k, AT+4*k+4)) for k in range(4)], AT+20, first_issued=True)
    else: vpoll(wloads, [AT+k for k in range(16)], AT+20, first_issued=True)
    stamp(12)
    V = AT + 16
    for k in range(4):
        c0 = '0' if k == 0 else f'v[{V}:{V+3}]'
        a(f'v_mfma_f32_16x16x32_bf16 v[{V}:{V+3}], v[64:67], v[{AT+4*k}:{AT+4*k+3}], {c0}')
    s0, s1 = V, V+1
    x0, x1, a0, a1 = AT+12, AT+13, AT+14, AT+15
    a(f'v_fma_f32 v{x0}, v16, v{s0}, v14\nv_fma_f32 v{x1}, v17, v{s1}, v15')
    a(f'v_mul_f32 v{a0}, v{x0}, v18\nv_mul_f32 v{a1}, v{x1}, v19')
    a(f'v_cvt_pk_bf16_f32 v{AT}, v{a0}, v{a1}\nds_write_b32 v46, v{AT}\nds_write_b64 v29, v[{x0}:{x1}]')
    fst(1)
    t = AT + 20
    a(f'v_add_f32 v{t}, v{x0}, v{x1}\nv_mul_f32 v{t+1}, v{x0}, v{x0}\nv_add_f32 v{t+2}, v{a0}, v{a1}\nv_mul_f32 v{t+3}, v{a0}, v{a0}')
    a(f'v_mul_f32 v{t+4}, v{a0}, v18\nv_mul_f32 v{t+5}, v{a0}, v20')
    a(f'v_fmac_f32 v{t+1}, v{x1}, v{x1}\nv_fmac_f32 v{t+3}, v{a1}, v{a1}\nv_fmac_f32 v{t+4}, v{a1}, v19\nv_fmac_f32 v{t+5}, v{a1}, v21')
    red6([t, t+1, t+2, t+3, t+4, t+5], 0, (t+6, t+7, t+8, t+9), 'v51', 'v31')
    fst(2)
    a('s_waitcnt lgkmcnt(0)')
    fst(9)
    a('s_barrier')
    fst(3)
    a('ds_read_b128 v[52:55], v40\nds_read_b64 v[56:57], v40 offset:16')
    fill = [
        'v_fma_f32 v53, -v52, v52, v53',
        'v_fma_f32 v56, v52, v69, v56',
        'v_rsq_f32 v53, v53',
        'v_fma_f32 v54, -v52, v68, v54',
        'v_fma_f32 v55, v52, v56, v55',
        'v_fma_f32 v57, -v52, v70, v57',
        'v_fma_f32 v55, v53, v55, v57',
        'v_fma_f32 v54, v53, v54, v71',
        'v_mul_f32 v52, v52, v53',
        'v_fma_f32 v55, v53, v55, v30',
        'v_fma_f32 v56, -v52, v26, v27',
        'v_fma_f32 v55, -v54, v54, v55',
        'v_fma_f32 v56, -v54, v28, v56',
        'v_rsq_f32 v55, v55',
    ]
    sgemv([F2], [DD], 'v43', 'v47', fill=fill, lead=cfg.lead); fold()
    a(f'v_mov_b32 v{T}, v{Z}\nv_permlane16_swap_b32 v{Z}, v{T}\nv_add_f32 v{Z}, v{Z}, v{T}')
    fst(4)
    ge = [f'v_fma_f32 v{Z}, v{Z}, v53, v56', f'v_fma_f32 v{Z}, v{Z}, v55, v25', f'v_mul_f32 v{T}, v{Z}, v{Z}', f'v_mul_f32 v{T+1}, s43, v{Z}',
          f'v_fma_f32 v{T}, v{T}, s42, 1.0', f'v_mul_f32 v{T}, v{T}, v{T+1}', f'v_exp_f32 v{T}, v{T}', f'v_add_f32 v{T}, 1.0, v{T}',
          f'v_rcp_f32 v{T}, v{T}', f'v_mul_f32 v{T}, v{T}, v{Z}', f'v_cvt_pk_bf16_f32 v{T}, v{T}, v{T}']
    for x in ge: a(x)
    a(f's_mov_b64 exec, 0xffff\nds_write_b16 v41, v{T}\ns_mov_b64 exec, -1')
    fst(5)
    a('s_waitcnt lgkmcnt(0)\ns_barrier')
    fst(6)
    a(f'ds_read_b128 v[{AT}:{AT+3}], v42')
    a(f'ds_read_b32 v52, v48')
    a(f's_waitcnt lgkmcnt(1)')
    for cg in range(4):
        ac = Q[cg]; fr = F1 + cg*8
        a(f'v_smfmac_f32_16x16x64_bf16 v[{ac}:{ac+3}], v[{AT}:{AT+3}], v[{fr}:{fr+7}], v22')
    y = AT + 8
    a('s_cmp_lg_u32 s32, 0')
    for cg in range(4):
        ac = Q[cg]
        for r in range(2): a(f'v_add_f32_dpp v{y+r}, v{ac+r}, v{ac+2+r} quad_perm:[0,1,2,3] row_mask:{1 << cg:#x} bank_mask:0xf')
    store2(f'buffer_store_dwordx2 v[{y}:{y+1}], v5, s[20:23], s24 offen')
    stamp(13)
    a('s_cmp_ge_u32 s3, 16\ns_cbranch_scc1 L_hdone')
    fl = [f'buffer_load_dwordx4 v[{AT}:{AT+3}], v44, s[20:23], 0 offen sc1']
    a(fl[0])
    srd(24, 's46', 's47', 2048)
    a('s_waitcnt lgkmcnt(0)\nv_fma_f32 v52, v23, v24, v52')
    if cfg.mp & 4: mpoll([(fl[0], range(AT, AT+4))], AT+8, first_issued=True)
    else: vpoll(fl, [AT+k for k in range(4)], AT+8, first_issued=True)
    if cfg.diag is None or cfg.diag < 90: stamp(14)
    a(f'v_add_f32_dpp v{Z}, v{AT}, v{AT} row_ror:8 row_mask:0xf bank_mask:0x3')
    a(f'v_add_f32_dpp v{T}, v{AT+2}, v{AT+2} row_ror:8 row_mask:0xf bank_mask:0x3')
    a(f'v_add_f32_dpp v{Z}, v{AT+1}, v{AT+1} row_ror:8 row_mask:0xf bank_mask:0xc')
    a(f'v_add_f32_dpp v{T}, v{AT+3}, v{AT+3} row_ror:8 row_mask:0xf bank_mask:0xc')
    a(f'v_permlane16_swap_b32 v{Z}, v{T}\nv_add_f32 v{Z}, v{Z}, v{T}')
    a(f'v_mov_b32 v{T}, v{Z}\nv_permlane32_swap_b32 v{Z}, v{T}\nv_add_f32 v{Z}, v{Z}, v{T}')
    a(f'v_add_f32_dpp v{Z}, v{Z}, v{Z} quad_perm:[2,3,0,1] row_mask:0xf bank_mask:0xf')
    a(f'v_add_f32_dpp v{Z}, v{Z}, v{Z} row_shl:4 row_mask:0xf bank_mask:0x5')
    a(f'v_fma_f32 v{Z}, v23, v{Z}, v52')
    if cfg.diag is not None:
        a('s_or_b32 s6, s3, s4\ns_cmp_lg_u32 s6, 0\ns_cbranch_scc1 L_ndiag')
        a('s_memrealtime s[94:95]\ns_waitcnt lgkmcnt(0)\ns_sub_u32 s6, s94, s64')
        a(f's_cmp_lt_u32 s6, {cfg.T0}\ns_cbranch_scc1 L_ndiag\ns_cmp_eq_u32 s96, s97\ns_cbranch_scc1 L_ndiag\ns_cmp_eq_u32 s32, {cfg.gate}\ns_cbranch_scc1 L_ndiag')
        a('s_cmp_eq_u32 s98, s99\ns_cbranch_scc1 L_ndiag')
        a(f's_sub_u32 s6, s{64+2*cfg.diag if cfg.diag < 90 else 92}, s64\nv_cvt_f32_u32 v10, s6\ns_mov_b64 exec, 1\nv_add_f32 v{Z}, v{Z}, v10\ns_mov_b64 exec, -1')
        a('L_ndiag:')
    if cfg.enc:
        a('s_or_b32 s6, s3, s4\ns_cmp_lg_u32 s6, 0\ns_cbranch_scc1 L_nenc')
        a(f's_memrealtime s[94:95]\ns_waitcnt lgkmcnt(0)\ns_sub_u32 s6, s94, s64\ns_sub_u32 s7, s{64+2*cfg.enc}, s64')
        a('v_mov_b32 v10, s6\nv_mov_b32 v11, s7\nv_and_b32 v12, 8, v1\nv_cmp_eq_u32 vcc, 0, v12\nv_cndmask_b32 v10, v11, v10, vcc')
        a('v_and_b32 v11, 1, v1\nv_lshlrev_b32 v11, 1, v11\nv_bfe_u32 v12, v1, 4, 1\nv_add_u32 v11, v11, v12\nv_mul_u32_u24 v11, 3, v11')
        a(f'v_lshrrev_b32 v10, v11, v10\nv_and_b32 v10, 7, v10\nv_cvt_f32_u32 v10, v10\nv_add_f32 v{Z}, v{Z}, v10')
        a('L_nenc:')
    a(f's_mov_b64 exec, 0x03030303')
    a(f'v_cvt_pk_bf16_f32 v{T}, v{Z}, v{Z}')
    a(f'buffer_store_short v{T}, v49, s[24:27], 0 offen')
    a('s_or_b32 s6, s3, s4\ns_cmp_lg_u32 s6, 0\ns_cbranch_scc1 L_noep')
    a(f's_mov_b64 exec, 1\nv_mov_b32 v10, {EPO}\nv_mov_b32 v11, s33\nbuffer_store_dword v11, v10, s[16:19], 0 offen')
    a('L_noep:')
    a('s_mov_b64 exec, -1')
    stamp(15)
    a('L_hdone:')
    if cfg.stamps:
        a(f's_cmp_lg_u32 s4, {cfg.sw}\ns_cbranch_scc1 L_end')
        stamps_out(16, 0)
        a('s_cmp_lg_u32 s2, 0\ns_cbranch_scc1 L_end')
        for n, i in enumerate((1, 4, 7, 8, 9, 10, 11, 12, 13, 14, 15)):
            a(f's_sub_u32 s60, s{64+2*i}, s64\nv_mov_b32 v4, s60\nglobal_store_dword v2, v4, s[12:13] offset:{16+4*n}')
        a('v_mov_b32 v4, s32\nglobal_store_dword v2, v4, s[12:13]')
        a('s_waitcnt vmcnt(0)')
    a('L_end:')
    a('s_endpgm')
    return wrap(a.finalize(), 256, 768, LDS_TOTAL, 168, sgpr=102)

if __name__ == '__main__':
    out = sys.argv[1]
    for o in sys.argv[2:]:
        k, v = o.split('=')
        setattr(cfg, k, eval(v))
    open(out, 'w').write(gen())
```

```python
import sys, math, struct
from asmlib import *
from gen_common import *

class Cfg:
    stamps = False
    NT = 'nt'
    warm = True
    prio = True
    slp = 2
    qslp = 4
    thS = 63
    thV = 63
    pre = 3
    touch = True
    diag = None
    fine = False
    sw = 0
    mp = 2
    enc = 0
    lay = 1
    lead = 2
    qlate = 0
    p1c = False
    qobs = False
    tx = 0
    tlbw = 0
    lst = ''
    ost = 'sc1'
    il = False
    bias = (0, 0, 0, 0, 0, 0, 0)
    dirty = 0
    nth = 10
    T0 = 1900
    gate = 0
    apre = 0
    fast = True
cfg = Cfg()

MODA=0; MODB=0x8000; QO=0x10000; XID=0x18000; EPO=0x1A800; WOUT=0x1C000; MOUT=0x24000; OP=0x40000; STMP=0x80000; LSE=0x90000; WS_SZ=0x100000
NCH = 12
KW=36864; PREG=147456; ZERO=153600; ST=154176; QL=154368; QF=155392; SCR=0; LDS_TOTAL=155648
R0=0; R1=65536; ACT=131072; ACTC=133376; ACTM=135680; TS=2336; HID=145024; STAT=145408; STAT2=145472; STAT3=145536; X1=145664; AS=149760
LIMIT = 200000
LOG2E = 1.4426950408889634
def f2u(x): return '0x%08x' % struct.unpack('<I', struct.pack('<f', x))[0]

def gtab():
    d = list(cfg.bias); assert sum(d) == 0
    g = [0]
    for k in range(6): g.append(g[-1] + d[(2*k) % 7])
    return g
def chunk_start(p, c):
    g = gtab(); pos = (4*(p + 4)) % 7
    tot = g[(pos + 12) % 7] - g[pos]
    return ((c*(8192 - tot)*21846) >> 18) + g[(pos + c) % 7] - g[pos]

def gen():
    a = Asm()
    uid = [0]
    def lab(p):
        uid[0] += 1; return f'L_{p}_{uid[0]}'
    def stamp(i):
        if cfg.stamps: a(f's_memrealtime s[{64+2*i}:{65+2*i}]')
    def fst(i):
        if cfg.fine: stamp(i)
    def stamps_out(n, base_slot):
        if not cfg.stamps: return
        a('s_waitcnt lgkmcnt(0)')
        a('s_mov_b64 exec, 1')
        a(f's_lshl_b32 s60, s2, 7\ns_add_u32 s60, s60, {STMP + base_slot*8}')
        a('v_mov_b32 v2, 0')
        for i in range(n):
            a(f'v_mov_b32 v4, s{64+2*i}\nv_mov_b32 v5, s{65+2*i}')
            a(f'buffer_store_dwordx2 v[4:5], v2, s[16:19], s60 offen offset:{8*i}')
        a('s_waitcnt vmcnt(0)')
    def srd(d, lo, hi, size):
        a(f's_mov_b32 s{d}, {lo}\ns_mov_b32 s{d+1}, {hi}\ns_mov_b32 s{d+2}, {size}\ns_mov_b32 s{d+3}, 0x20000')
    def epoch_load():
        a(f's_load_dword s33, s[14:15], {EPO}')
    def epoch_tag():
        a('s_mul_i32 s33, s33, 0x9E3779B1\ns_add_u32 s33, s33, 0x85EBCA6B')
    def red3(op, regs, tmp):
        rs = list(regs)
        if len(rs) == 1: return rs[0]
        first = True
        while rs:
            if first:
                if len(rs) >= 3: a(f'v_{op}3_u32 v{tmp}, v{rs[0]}, v{rs[1]}, v{rs[2]}'); rs = rs[3:]
                else: a(f'v_{op}_u32 v{tmp}, v{rs[0]}, v{rs[1]}'); rs = rs[2:]
                first = False
            elif len(rs) >= 2: a(f'v_{op}3_u32 v{tmp}, v{tmp}, v{rs[0]}, v{rs[1]}'); rs = rs[2:]
            else: a(f'v_{op}_u32 v{tmp}, v{tmp}, v{rs[0]}'); rs = rs[1:]
        return tmp
    def vpoll(loads, regs, tmp, sleep=0, first_issued=False, tags=False, dbg=None, first_cnt=0):
        l = lab('vp'); d = lab('vd'); w = lab('vw')
        a('s_mov_b32 s30, 0')
        if first_issued: a(f's_waitcnt vmcnt({first_cnt})\ns_branch {w}')
        a(f'{l}:')
        for x in loads: a(x)
        a('s_add_u32 s30, s30, 1')
        a('s_waitcnt vmcnt(0)')
        if first_issued: a(f'{w}:')
        if dbg is not None and cfg.stamps:
            p, q_, n_ = dbg
            a(f's_mov_b64 s[{64+2*p}:{65+2*p}], s[{64+2*q_}:{65+2*q_}]')
            stamp(q_); a('s_waitcnt lgkmcnt(0)')
            a(f's_add_u32 s{64+2*n_}, s64, s30\ns_mov_b32 s{65+2*n_}, s65')
        if tags:
            m = red3('max', regs, tmp)
            if len(list(regs)) > 1:
                n = red3('min', regs, tmp + 1)
                a(f'v_cmp_ne_u32 vcc, s33, v{m}\nv_cmp_ne_u32 s[34:35], s33, v{n}\ns_or_b64 vcc, vcc, s[34:35]')
            else:
                a(f'v_cmp_ne_u32 vcc, s33, v{m}')
        else:
            m = red3('max', regs, tmp)
            a(f'v_cmp_eq_u32 vcc, -1, v{m}')
        a(f's_cbranch_vccz {d}')
        if sleep: a(f's_sleep {sleep}')
        a(f's_cmp_lt_u32 s30, {LIMIT}\ns_cbranch_scc1 {l}')
        a(f'{d}:')
    def mpoll(items, tmp, first_issued=False):
        l = lab('mp'); d = lab('md')
        a('s_mov_b32 s30, 0')
        if not first_issued:
            for ld, regs in items: a(ld)
        a(f'{l}:')
        a('s_waitcnt vmcnt(0)')
        ms = []
        for k, (ld, regs) in enumerate(items):
            ms.append(red3('max', regs, tmp + k))
        for k, m in enumerate(ms):
            a(f'v_cmp_eq_u32 s[{48+2*k}:{49+2*k}], -1, v{m}')
        n = len(items)
        if n == 1:
            a('s_cmp_eq_u64 s[48:49], 0\ns_cbranch_scc1 ' + d)
        else:
            a('s_or_b64 s[34:35], s[48:49], s[50:51]')
            for k in range(2, n): a(f's_or_b64 s[34:35], s[34:35], s[{48+2*k}:{49+2*k}]')
            a(f's_cbranch_scc0 {d}')
        for k, (ld, regs) in enumerate(items):
            a(f's_mov_b64 exec, s[{48+2*k}:{49+2*k}]')
            a(ld)
        a('s_mov_b64 exec, -1')
        a(f's_add_u32 s30, s30, 1\ns_cmp_lt_u32 s30, {LIMIT}\ns_cbranch_scc1 {l}')
        a('s_waitcnt vmcnt(0)')
        a(f'{d}:')
    def pspin(va, vd):
        l = lab('ps'); d = lab('pd')
        a(f'v_mov_b32 {va}, {QF}\ns_mov_b32 s30, 0')
        a(f'{l}:')
        a(f'ds_read_b32 {vd}, {va} offset:4\ns_add_u32 s30, s30, 1\ns_waitcnt lgkmcnt(0)')
        a(f'v_cmp_ne_u32 vcc, 4, {vd}\ns_cbranch_vccz {d}')
        a(f's_sleep 1\ns_cmp_lt_u32 s30, {LIMIT*8}\ns_cbranch_scc1 {l}')
        a(f'{d}:')
    def dma_u1(lo, hi, size, RS, sbase, region, setup=True, i0=0, i1=8):
        if setup:
            a('v_bfe_u32 v10, v1, 4, 1\nv_and_b32 v12, 7, v1\nv_xor_b32 v10, v10, v12')
            a('s_and_b32 s27, s4, 4\nv_xor_b32 v10, s27, v10')
            a(f'v_lshrrev_b32 v2, 3, v1\nv_mul_u32_u24 v2, {RS}, v2\nv_xor_b32 v12, 2, v10')
            a('v_lshl_add_u32 v12, v12, 4, v2\nv_lshl_add_u32 v2, v10, 4, v2')
        srd(20, lo, hi, size)
        a(f's_mul_i32 s27, s4, {64*RS}\ns_add_u32 s27, s27, {sbase}')
        if i0: a(f's_add_u32 s27, s27, {8*RS*i0}')
        a(f's_lshl_b32 s28, s4, 13')
        if region + i0: a(f's_add_u32 s28, s28, {region + 1024*i0}')
        for i in range(i0, i1):
            a('s_mov_b32 m0, s28')
            if i < i1-1: a('s_add_u32 s28, s28, 1024')
            a(f'buffer_load_dwordx4 v{12 if i & 1 else 2}, s[20:23], s27 offen {cfg.NT} lds')
            if i < i1-1: a(f's_add_u32 s27, s27, {8*RS}')

    def dma_w(i0, i1, setup=True):
        if setup:
            a('s_and_b32 s6, s4, 1\ns_lshl_b32 s6, s6, 6\ns_and_b32 s7, s4, 4\ns_lshl_b32 s7, s7, 5\ns_or_b32 s6, s6, s7')
            a('v_lshlrev_b32 v2, 4, v1\nv_and_b32 v2, 0x1f0, v2\nv_and_b32 v10, 32, v1\nv_xor_b32 v2, v2, v10\nv_xor_b32 v2, s6, v2\nv_lshl_add_u32 v2, v10, 5, v2')
        srd(20, 's50', 's51', 4096*1024)
        a(f's_lshl_b32 s27, s4, 11\ns_add_u32 s27, s27, s24\ns_add_u32 s27, s27, {16384*i0}')
        a(f's_lshl_b32 s28, s4, 10\ns_add_u32 s28, s28, {8192*i0}')
        for i in range(i0, i1):
            a('s_mov_b32 m0, s28')
            if i < i1-1: a('s_add_u32 s28, s28, 8192')
            a(f'buffer_load_dwordx4 v2, s[20:23], s27 offen {cfg.NT} lds')
            if i < i1-1: a('s_add_u32 s27, s27, 16384')
    a('s_cmp_ge_u32 s2, 256\ns_cbranch_scc1 L_end')
    stamp(0)
    a('v_lshrrev_b32 v1, 6, v0')
    a('s_load_dwordx4 s[8:11], s[0:1], 8')
    a('s_load_dwordx4 s[12:15], s[0:1], 104')
    a('s_lshr_b32 s3, s2, 3\ns_and_b32 s5, s2, 7' if not cfg.tx else f's_lshr_b32 s3, s2, 3\ns_xor_b32 s5, s2, {cfg.tx}\ns_and_b32 s5, s5, 7')
    a('v_readfirstlane_b32 s4, v1')
    a('v_and_b32 v1, 63, v0')
    a('s_cmp_eq_u32 s5, 0\ns_cbranch_scc1 L_hearly')
    a('s_mul_i32 s3, s3, 7\ns_add_u32 s3, s3, s5\ns_sub_u32 s3, s3, 1')
    a('s_cmp_lt_u32 s3, 32\ns_cbranch_scc1 L_hearly')
    a('L_stream:')
    a('s_sub_u32 s6, s3, 32')
    a('s_and_b32 s24, s6, 15\ns_lshr_b32 s25, s6, 4')
    g = gtab(); gp = [(v + 128) & 255 for v in g]
    assert all(-128 <= v < 128 for v in g)
    a(f's_mov_b32 s26, {sum(gp[i] << (8*i) for i in range(4)):#x}\ns_mov_b32 s27, {sum(gp[4+i] << (8*i) for i in range(3)):#x}')
    def glook(dst, src):
        a(f's_mul_i32 {dst}, {src}, 37\ns_lshr_b32 {dst}, {dst}, 8\ns_mul_i32 {dst}, {dst}, 7\ns_sub_u32 {src}, {src}, {dst}')
        a(f's_lshl_b32 {src}, {src}, 3\ns_lshr_b64 s[28:29], s[26:27], {src}\ns_and_b32 {dst}, s28, 255')
    a('s_lshl_b32 s6, s24, 2\ns_add_u32 s6, s6, 16\ns_mul_i32 s7, s6, 37\ns_lshr_b32 s7, s7, 8\ns_mul_i32 s7, s7, 7\ns_sub_u32 s6, s6, s7')
    a('s_lshl_b32 s7, s6, 3\ns_lshr_b64 s[28:29], s[26:27], s7\ns_and_b32 s30, s28, 255')
    a('s_add_u32 s7, s6, 12'); glook('s31', 's7')
    a('s_add_u32 s6, s6, s25\ns_add_u32 s7, s6, 1'); glook('s34', 's6'); glook('s35', 's7')
    a('s_sub_u32 s31, s30, s31\ns_add_u32 s31, s31, 8192\ns_mul_i32 s31, s31, 21846')
    a('s_mul_i32 s6, s31, s25\ns_add_u32 s7, s6, s31\ns_lshr_b32 s6, s6, 18\ns_lshr_b32 s7, s7, 18')
    a('s_add_u32 s6, s6, s34\ns_add_u32 s7, s7, s35\ns_sub_u32 s31, s7, s6\ns_sub_u32 s6, s6, s30')
    a('s_lshl_b32 s22, s31, 8\ns_lshl_b32 s6, s6, 8\ns_lshl_b32 s7, s24, 21\ns_add_u32 s6, s6, s7')
    a('s_mov_b32 s23, 0x20000')
    a('s_cmp_ge_u32 s4, 4\ns_cbranch_scc1 L_vwave')
    if cfg.prio: a('s_setprio 3')
    a('v_lshrrev_b32 v7, 4, v1')
    a('v_and_b32 v15, 15, v1')
    a('v_lshlrev_b32 v6, 2, v7\nv_xor_b32 v6, v6, v15')
    a('v_lshlrev_b32 v8, 8, v7')
    a('v_lshl_add_u32 v2, v6, 4, v8')
    for t in (1, 2, 3): a(f'v_xor_b32 v{2+t}, {16*t}, v2')
    a(f's_mul_i32 s27, s4, {16384 if cfg.il else 49152}\ns_mul_i32 s28, s4, {KW}')
    a('s_waitcnt lgkmcnt(0)')
    a('s_add_u32 s20, s8, s6\ns_addc_u32 s21, s9, 0')
    a('s_mov_b32 s29, 0')
    stamp(5)
    a('L_kdma:')
    a('s_mov_b32 m0, s28')
    a('s_add_u32 s28, s28, 4096\ns_add_u32 s29, s29, 1')
    for t in range(4):
        a(f'buffer_load_dwordx4 v{2+t}, s[20:23], s27 offen offset:{1024*t} {cfg.NT} lds')
        if cfg.thS < 63: a(f's_waitcnt vmcnt({cfg.thS})')
    a('s_add_u32 s27, s27, 4096')
    if cfg.il: a('s_and_b32 s7, s29, 3\ns_cselect_b32 s7, 0, 49152\ns_add_u32 s27, s27, s7')
    a('s_cmp_lt_u32 s29, 9\ns_cbranch_scc1 L_kdma')
    epoch_load()
    a('v_and_b32 v6, 3, v15\nv_lshlrev_b32 v6, 2, v6\nv_lshrrev_b32 v9, 2, v15\nv_add_u32 v6, v6, v9')
    a('v_lshlrev_b32 v10, 8, v6')
    a('v_lshl_add_u32 v6, v7, 4, v10')
    if cfg.p1c: a('v_lshlrev_b32 v6, 4, v1')
    for gi in range(3):
        for s in range(4):
            r = 96 + 16*gi + 4*s
            a(f'buffer_load_dwordx4 v[{r}:{r+3}], v6, s[20:23], s27 offen offset:{(1024 if cfg.p1c else 64)*s} {cfg.NT}')
            if cfg.thS < 63 and 4*gi + s < 11: a(f's_waitcnt vmcnt({cfg.thS})')
        if gi < 2: a('s_add_u32 s27, s27, 4096')
    srd(16, 's14', 's15', WS_SZ)
    a(f's_lshl_b32 s26, s24, 14\ns_lshl_b32 s6, s25, 10\ns_add_u32 s26, s26, s6\ns_lshl_b32 s6, s4, 8\ns_add_u32 s26, s26, s6\ns_add_u32 s26, s26, {OP}')
    a('v_mov_b32 v156, -1\nv_lshlrev_b32 v157, 2, v1')
    a('buffer_store_dword v156, v157, s[16:19], s26 offen sc1')
    a(f's_and_b32 s7, s24, 7\ns_lshl_b32 s6, s7, 12\ns_lshr_b32 s7, s24, 3\ns_lshl_b32 s7, s7, 11\ns_add_u32 s27, s6, s7\ns_add_u32 s27, s27, {QO}')
    a('v_lshlrev_b32 v12, 4, v1')
    qloads = [f'buffer_load_dwordx4 v[{32+4*k}:{35+4*k}], v12, s[16:19], s27 offen offset:{1024*k} sc1' for k in range(2)]
    if not cfg.qlate:
        a('s_cmp_lg_u32 s4, 0\ns_cbranch_scc1 L_nq1')
        for x in qloads: a(x)
        a('L_nq1:')
    stamp(1)
    a('s_barrier')
    a(f's_mul_i32 s28, s4, {KW}')
    a('v_and_b32 v11, 3, v15\nv_xor_b32 v11, v11, v7')
    a('v_lshl_add_u32 v11, v9, 2, v11')
    a('v_lshl_add_u32 v11, v11, 4, v10\nv_add_u32 v8, s28, v11')
    for s in (1, 2, 3): a(f'v_xor_b32 v{8+s}, {64*s}, v8')
    a(f's_mul_i32 s6, s4, 1536\ns_add_u32 s6, s6, {PREG}')
    a('v_lshrrev_b32 v13, 3, v15\nv_mul_u32_u24 v13, 768, v13' if cfg.il else 'v_lshrrev_b32 v13, 3, v15\nv_lshlrev_b32 v13, 8, v13')
    a('v_and_b32 v14, 3, v15\nv_lshl_add_u32 v13, v14, 6, v13\nv_lshl_add_u32 v13, v7, 4, v13')
    a('v_bfe_u32 v14, v15, 2, 1\nv_lshl_add_u32 v13, v14, 3, v13\nv_add_u32 v13, s6, v13')
    for u in range(4):
        a(f's_mov_b32 s{36+2*u}, {0x000F000F << (4*u):#x}\ns_mov_b32 s{37+2*u}, {0x000F000F << (4*u):#x}')
    a('v_and_b32 v161, 12, v1\nv_lshl_add_u32 v161, v161, 2, v7\n' + ('s_lshl_b32 s6, s4, 6\ns_add_u32 s6, s6, 512\ns_sub_u32 s31, s31, s6' if cfg.il else 's_sub_u32 s31, s31, 576') + '\nv_sub_u32 v161, s31, v161')
    a('s_waitcnt lgkmcnt(0)')
    epoch_tag()
    stamp(2)
    a(f'v_mov_b32 v14, {QF}')
    a('s_cmp_lg_u32 s4, 0\ns_cbranch_scc1 L_nq2')
    if cfg.qlate: a(f's_waitcnt vmcnt({cfg.qlate - 1})')
    vpoll(qloads, [33, 35, 37, 39], 162, first_issued=not cfg.qlate, tags=True, sleep=cfg.qslp, dbg=(1, 2, 15))
    a(f'v_lshlrev_b32 v12, 3, v1\nv_add_u32 v12, {QL}, v12\nv_mov_b32 v16, 1')
    a('ds_write2_b32 v12, v32, v34 offset0:0 offset1:1\nds_write2_b32 v12, v36, v38 offset0:128 offset1:129')
    a('s_waitcnt lgkmcnt(0)\nds_write_b32 v14, v16')
    a('s_branch L_nq3')
    a('L_nq2:')
    a('s_mov_b32 s30, 0')
    a('L_qspin:')
    a('ds_read_b32 v16, v14\ns_add_u32 s30, s30, 1\ns_waitcnt lgkmcnt(0)')
    a('v_cmp_ne_u32 vcc, 1, v16\ns_cbranch_vccz L_nq3')
    a(f's_sleep 1\ns_cmp_lt_u32 s30, {LIMIT*8}\ns_cbranch_scc1 L_qspin')
    a('L_nq3:')
    a(f'v_and_b32 v12, 3, v15\nv_lshlrev_b32 v12, 8, v12\nv_lshl_add_u32 v12, v7, 4, v12\nv_add_u32 v12, {QL}, v12')
    for k in range(4): a(f'ds_read_b128 v[{16+4*k}:{19+4*k}], v12 offset:{64*k}')
    a('s_waitcnt vmcnt(0) lgkmcnt(0)')
    stamp(3)
    order = [(u, dd) for u in range(4) for dd in range(3)]
    ldsg = [4*dd+u for (u, dd) in order if 4*dd+u < 9]
    def kread(k):
        gi = ldsg[k]; buf = 64 + 16*(k & 1)
        for s in range(4):
            a(f'ds_read_b128 v[{buf+4*s}:{buf+4*s+3}], v{8+s} offset:{4096*gi}')
    kread(0)
    k = 0
    for (u, dd) in order:
        gi = 4*dd + u
        mq = 32 + 16*(u & 1)
        if u == 0 and dd == 0:
            for r in range(16): a(f'v_cndmask_b32 v{mq+r}, 0, v{16+r}, s[36:37]')
        if gi < 9:
            src = 64 + 16*(k & 1)
            if k + 1 < len(ldsg):
                kread(k + 1); a('s_waitcnt lgkmcnt(4)')
            else:
                a('s_waitcnt lgkmcnt(0)')
            k += 1
        else:
            src = 96 + 16*(gi - 9)
        D = 144 + 4*dd
        for s in range(4):
            c = '0' if (u == 0 and s == 0) else f'v[{D}:{D+3}]'
            a(f'v_mfma_f32_16x16x32_bf16 v[{D}:{D+3}], v[{src+4*s}:{src+4*s+3}], v[{mq+4*s}:{mq+4*s+3}], {c}')
            if u < 3 and dd < 2:
                mq2 = 32 + 16*((u+1) & 1)
                for r in (8*dd + 2*s, 8*dd + 2*s + 1):
                    a(f'v_cndmask_b32 v{mq2+r}, 0, v{16+r}, s[{38+2*u}:{39+2*u}]')
    if cfg.il:
        a('v_mov_b32 v160, 0xff800000')
        for r in range(4):
            a(f'v_cmp_lt_i32 vcc, {4*r}, v161\nv_cndmask_b32 v{152+r}, v160, v{152+r}, vcc')
    else:
        a('s_cmp_lg_u32 s4, 3\ns_cbranch_scc1 L_nomask')
        a('v_mov_b32 v160, 0xff800000')
        for dd in range(3):
            for r in range(4):
                a(f'v_cmp_lt_i32 vcc, {64*dd + 4*r}, v161\nv_cndmask_b32 v{144+4*dd+r}, v160, v{144+4*dd+r}, vcc')
        a('L_nomask:')
        a('s_nop 7')
    a('v_max3_f32 v156, v144, v145, v146\nv_max3_f32 v157, v147, v148, v149')
    a('v_max3_f32 v158, v150, v151, v152\nv_max3_f32 v159, v153, v154, v155')
    a('v_max3_f32 v156, v156, v157, v158\nv_max_f32 v156, v156, v159')
    def xreduce(op, r, t):
        a(f'{op}_dpp v{r}, v{r}, v{r} row_ror:4 row_mask:0xf bank_mask:0xf')
        a(f'{op}_dpp v{r}, v{r}, v{r} row_ror:8 row_mask:0xf bank_mask:0xf')
        a(f'v_mov_b32 v{t}, v{r}\nv_permlane16_swap_b32 v{r}, v{t}\n{op} v{r}, v{r}, v{t}')
        a(f'v_mov_b32 v{t}, v{r}\nv_permlane32_swap_b32 v{r}, v{t}\n{op} v{r}, v{r}, v{t}')
    xreduce('v_max_f32', 156, 157)
    a(f's_mov_b32 s6, {f2u(128**-0.5 * LOG2E)}')
    a('v_mul_f32 v158, s6, v156')
    for r in range(12): a(f'v_fma_f32 v{144+r}, v{144+r}, s6, -v158')
    for r in range(12): a(f'v_exp_f32 v{144+r}, v{144+r}')
    for dd in range(3):
        D = 144 + 4*dd
        a(f'v_cvt_pk_bf16_f32 v{32+2*dd}, v{D}, v{D+1}\nv_cvt_pk_bf16_f32 v{33+2*dd}, v{D+2}, v{D+3}')
        a(f'ds_write_b64 v13, v[{32+2*dd}:{33+2*dd}] offset:{(256 if cfg.il else 512)*dd}')
    a('v_add_f32 v159, v144, v145')
    for r in range(2, 12): a(f'v_add_f32 v159, v159, v{144+r}')
    xreduce('v_add_f32', 159, 157)
    a(f's_lshl_b32 s6, s4, 5\ns_add_u32 s6, s6, {ST}')
    a('v_lshl_add_u32 v14, v1, 3, s6')
    a('s_mov_b64 exec, 15\nds_write_b64 v14, v[158:159]\ns_mov_b64 exec, -1')
    a('s_waitcnt lgkmcnt(0)')
    a(f'v_mov_b32 v14, {QF}\nv_mov_b32 v16, 1\ns_mov_b64 exec, 1\nds_add_u32 v14, v16 offset:4\ns_mov_b64 exec, -1')
    stamp(4)
    pspin('v14', 'v16')
    a(f'v_and_b32 v14, 3, v1\nv_lshlrev_b32 v14, 3, v14\nv_add_u32 v14, {ST}, v14')
    for w in range(4): a(f'ds_read_b64 v[{16+2*w}:{17+2*w}], v14 offset:{32*w}')
    a('v_lshrrev_b32 v2, 2, v1\nv_lshrrev_b32 v3, 4, v1\nv_add_u32 v3, v3, v1\nv_and_b32 v3, 3, v3')
    a('v_lshlrev_b32 v2, 5, v2\nv_lshl_add_u32 v2, v3, 3, v2')
    a(f's_lshl_b32 s6, s4, 9\ns_add_u32 s6, s6, {SCR}\nv_add_u32 v2, s6, v2')
    a('s_waitcnt lgkmcnt(0)')
    a('v_max3_f32 v24, v16, v18, v20\nv_max_f32 v24, v24, v22')
    for w in range(4): a(f'v_sub_f32 v{25+w}, v{16+2*w}, v24')
    for w in range(4): a(f'v_exp_f32 v{25+w}, v{25+w}')
    a('v_mul_f32 v29, v25, v17\nv_fmac_f32 v29, v26, v19\nv_fmac_f32 v29, v27, v21\nv_fmac_f32 v29, v28, v23')
    a('v_log_f32 v30, v29\nv_rcp_f32 v29, v29\nv_mov_b32 v31, s33')
    a('v_add_f32 v30, v30, v24')
    a(f's_lshl_b32 s6, s24, 11\ns_lshl_b32 s7, s25, 7\ns_add_u32 s6, s6, s7\ns_add_u32 s6, s6, {LSE}')
    a('v_lshlrev_b32 v3, 3, v1')
    a('s_cmp_eq_u32 s4, 0\ns_cselect_b32 exec_lo, 0xffff, 0\ns_mov_b32 exec_hi, 0\ns_cbranch_execz L_nlse')
    if cfg.diag is not None and cfg.diag >= 90: a('s_mov_b32 exec_lo, 0xff00\nv_mov_b32 v30, s64\ns_mov_b32 exec_lo, 0xffff')
    a('buffer_store_dwordx2 v[30:31], v3, s[16:19], s6 offen sc1')
    a('L_nlse:')
    a('s_mov_b64 exec, -1')
    for w in range(4): a(f'v_mul_f32 v{32+w}, v{25+w}, v29')
    for w in range(4): a(f'v_readlane_b32 s{36+w}, v{32+w}, s4')
    a('v_lshlrev_b32 v3, 2, v1')
    a('s_barrier')
    stamp(6)
    for v in range(8): a(f'ds_read_b64 v[{48+2*v}:{49+2*v}], v2 offset:{2048*v}')
    for v in range(8):
        a(f's_waitcnt lgkmcnt({7-v})')
        w = v >> 1; sp = 36 + (w & ~1)
        mod = 'op_sel_hi:[1,0,1]' if (w & 1) == 0 else 'op_sel:[0,1,0] op_sel_hi:[1,1,1]'
        mod2 = 'op_sel_hi:[1,0]' if (w & 1) == 0 else 'op_sel:[0,1] op_sel_hi:[1,1]'
        if v < 2: a(f'v_pk_mul_f32 v[{40+2*v}:{41+2*v}], v[{48+2*v}:{49+2*v}], s[{sp}:{sp+1}] {mod2}')
        else: a(f'v_pk_fma_f32 v[{40+2*(v&1)}:{41+2*(v&1)}], v[{48+2*v}:{49+2*v}], s[{sp}:{sp+1}], v[{40+2*(v&1)}:{41+2*(v&1)}] {mod}')
    a('v_pk_add_f32 v[40:41], v[40:41], v[42:43]')
    a('v_cvt_pk_bf16_f32 v40, v40, v41')
    a(f'buffer_store_dword v40, v3, s[16:19], s26 offen {cfg.ost}')
    stamp(7)
    if cfg.stamps:
        a('s_cmp_lg_u32 s4, 0\ns_cbranch_scc1 L_end')
        stamps_out(8, 0)
    a('s_endpgm')

    a('L_vwave:')
    a('s_sub_u32 s4, s4, 4')
    a('v_lshlrev_b32 v2, 4, v1')
    a(f'v_mov_b32 v16, 0\nv_mov_b32 v17, 0\nv_mov_b32 v18, 0\nv_mov_b32 v19, 0\nv_add_u32 v9, {ZERO}, v2')
    a('s_mov_b32 exec_lo, -1\ns_mov_b32 exec_hi, 3\nds_write_b128 v9, v[16:19]\ns_mov_b64 exec, -1')
    a(f'v_mov_b32 v9, {QF}\nds_write_b64 v9, v[16:17]')
    a(f's_mul_i32 s7, s4, 768\ns_add_u32 s7, s7, {PREG}')
    a('v_and_b32 v9, 3, v1\nv_lshlrev_b32 v9, 6, v9\nv_lshrrev_b32 v10, 4, v1\nv_lshl_add_u32 v9, v10, 4, v9\nv_add_u32 v9, s7, v9')
    a(f'v_mov_b32 v11, {ZERO}')
    for x in range(4):
        a(f's_mov_b32 s34, {0x000F000F << (4*x):#x}\ns_mov_b32 s35, s34')
        a(f'v_cndmask_b32 v{3+x}, v11, v9, s[34:35]')
    a('v_and_b32 v7, 15, v1\nv_lshrrev_b32 v8, 2, v7\nv_add_u32 v8, v8, v10\nv_and_b32 v8, 3, v8')
    a('v_lshlrev_b32 v7, 5, v7\nv_lshl_add_u32 v7, v8, 3, v7')
    a(f's_lshl_b32 s7, s4, 11\ns_add_u32 s7, s7, {SCR}\nv_add_u32 v7, s7, v7\nv_add_u32 v8, 1024, v7')
    a('s_mov_b32 s36, 0x05040100\ns_mov_b32 s37, 0x07060302')
    a('s_lshl_b32 s27, s4, 13' if cfg.il else 's_mul_i32 s27, s4, 24576')
    a('s_waitcnt lgkmcnt(0)')
    a('s_add_u32 s20, s10, s6\ns_addc_u32 s21, s11, 0')
    if cfg.stamps: srd(16, 's14', 's15', WS_SZ)
    if cfg.tlbw:
        a(f'v_lshlrev_b32 v12, 12, v1\ns_mov_b64 exec, {(1 << cfg.tlbw) - 1}\nbuffer_load_dword v13, v12, s[20:23], s27 offen {cfg.NT}\ns_mov_b64 exec, -1')
    a('s_barrier')
    stamp(1)
    for i in range(24):
        r = 72 + 4*i
        a(f'buffer_load_dwordx4 v[{r}:{r+3}], v2, s[20:23], s27 offen offset:{1024*(i&3)} {cfg.NT}')
        if cfg.thV < 63 and cfg.thV <= i < cfg.nth: a(f's_waitcnt vmcnt({cfg.thV})')
        if (i & 3) == 3 and i < 23: a(f's_add_u32 s27, s27, {61440 if (cfg.il and (i & 7) == 7) else 4096}')
    stamp(2)
    pspin('v9', 'v10')
    stamp(3)
    def pread(t):
        buf = 40 + 16*(t & 1)
        for x in range(4): a(f'ds_read_b128 v[{buf+4*x}:{buf+4*x+3}], v{3+x} offset:{256*t}')
    pread(0); pread(1)
    for t in range(3):
        a(f's_waitcnt vmcnt({16-8*t})')
        if t == 2: stamp(4)
        vb = 72 + 32*t; pb = 40 + 16*(t & 1)
        for j in range(8):
            tb = 24 + 4*(j & 3)
            sel = 's37' if (j & 1) else 's36'
            for tt in range(4):
                a(f'v_perm_b32 v{tb+tt}, v{vb + 4*(2*tt+1) + (j>>1)}, v{vb + 4*(2*tt) + (j>>1)}, {sel}')
            if j == 0: a('s_waitcnt lgkmcnt(4)' if t == 0 else 's_waitcnt lgkmcnt(0)')
            if j > 0:
                jj = j - 1; tb2 = 24 + 4*(jj & 3); acc = 16 + 4*(jj & 1); x = jj >> 1
                c = '0' if (t == 0 and jj < 2) else f'v[{acc}:{acc+3}]'
                a(f'v_mfma_f32_16x16x32_bf16 v[{acc}:{acc+3}], v[{pb+4*x}:{pb+4*x+3}], v[{tb2}:{tb2+3}], {c}')
        a(f'v_mfma_f32_16x16x32_bf16 v[20:23], v[{pb+12}:{pb+15}], v[36:39], v[20:23]')
        if t == 0: pread(2)
    for r in range(4):
        ad = 7 + (r >> 1); o = 128*(r & 1)
        a(f'ds_write2_b32 v{ad}, v{16+r}, v{20+r} offset0:{o} offset1:{o+1}')
    a('s_waitcnt lgkmcnt(0)')
    stamp(5)
    a('s_barrier')
    if cfg.stamps:
        a('s_cmp_lg_u32 s4, 0\ns_cbranch_scc1 L_end')
        stamps_out(6, 8)
    a('s_endpgm')

    a('L_spare:')
    if cfg.tlbw:
        a('s_cmp_lg_u32 s4, 9\ns_cbranch_scc1 L_sp1')
        a('s_load_dwordx2 s[36:37], s[0:1], 32\ns_load_dwordx2 s[40:41], s[0:1], 48\ns_load_dwordx2 s[44:45], s[0:1], 64\ns_load_dwordx2 s[48:49], s[0:1], 88')
        a('v_lshlrev_b32 v2, 16, v1\nv_lshlrev_b32 v3, 14, v1')
        a(f's_mov_b32 s38, {4096*1024}\ns_mov_b32 s39, 0x20000\ns_mov_b32 s42, {512*3584}\ns_mov_b32 s43, 0x20000\ns_mov_b32 s46, {1792*1024}\ns_mov_b32 s47, 0x20000\ns_mov_b32 s50, {512*6144}\ns_mov_b32 s51, 0x20000')
        a('s_waitcnt lgkmcnt(0)')
        srd(16, 's14', 's15', WS_SZ)
        a('buffer_load_dword v8, v3, s[16:19], 0 offen sc1')
        a('s_cmp_lg_u32 s5, 0\ns_cbranch_scc1 L_sp0')
        a('buffer_load_dword v4, v2, s[36:39], 0 offen nt\nbuffer_load_dword v5, v2, s[40:43], 0 offen nt\nbuffer_load_dword v6, v2, s[44:47], 0 offen nt')
        a('s_endpgm')
        a('L_sp0:')
        a('buffer_load_dword v7, v2, s[48:51], 0 offen nt')
        a('s_endpgm')
        a('L_sp1:')
    a('s_cmp_lg_u32 s5, 0\ns_cbranch_scc1 L_end')
    a('s_cmp_lg_u32 s4, 8\ns_cbranch_scc1 L_end')
    a('v_mov_b32 v4, -1\nv_mov_b32 v5, -1\nv_mov_b32 v6, -1\nv_mov_b32 v7, -1')
    a(f's_lshl_b32 s6, s3, 10\ns_add_u32 s6, s6, {WOUT}\nv_lshlrev_b32 v2, 4, v1\nv_add_u32 v2, s6, v2')
    a(f's_lshl_b32 s6, s3, 12\ns_add_u32 s6, s6, {MOUT}\nv_lshlrev_b32 v8, 4, v1\nv_add_u32 v8, s6, v8')
    a('s_waitcnt lgkmcnt(0)')
    a('global_store_dwordx4 v2, v[4:7], s[14:15] sc1')
    a('s_cmp_ge_u32 s3, 28\ns_cbranch_scc1 L_sp2')
    for i in range(4): a(f'global_store_dwordx4 v8, v[4:7], s[14:15] offset:{1024*i} sc1')
    a('L_sp2:')
    a('s_waitcnt vmcnt(0)')
    a('s_endpgm')

    AT=136; DD=32; Z=36; T=38; ZT=37; F0=40; F1=72; F2=104
    a('L_hearly:')
    a('s_cmp_lt_u32 s4, 8\ns_cbranch_scc1 L_hm')
    if cfg.warm:
        a('s_lshr_b32 s6, s2, 4\ns_xor_b32 s7, s4, 11\ns_or_b32 s6, s6, s7\ns_cbranch_scc1 L_spare')
        a('s_getpc_b64 s[36:37]\nL_pc:\ns_sub_u32 s36, s36, L_pc-L_stream\ns_subb_u32 s37, s37, 0\nv_lshlrev_b32 v2, 7, v1')
        a('s_mov_b32 s38, L_end-L_stream\ns_mov_b32 s39, 0x20000\ns_mov_b32 s6, 8192')
        a('s_waitcnt lgkmcnt(0)') if False else None
        a('buffer_load_dword v4, v2, s[36:39], 0 offen\nbuffer_load_dword v5, v2, s[36:39], s6 offen')
        a('s_endpgm')
    else:
        a('s_branch L_spare')
    a('L_hm:')
    a('s_cmp_eq_u32 s5, 0')
    a('s_cselect_b32 s6, 88, 24')
    a('s_load_dwordx2 s[20:21], s[0:1], s6')
    a('s_mov_b32 s7, 8192\ns_cselect_b32 s7, 6144, s7')
    a('s_cselect_b32 s29, 2, 4')
    a('s_cselect_b32 s24, 5, 6')
    a('s_lshl_b32 s22, s7, 9')
    a('s_lshl_b32 s25, s3, 8')
    a('s_lshr_b32 s26, s3, 1\ns_lshl_b32 s26, s26, 7\ns_and_b32 s27, s3, 1\ns_mul_i32 s27, s27, 256*6144\ns_add_u32 s26, s26, s27')
    a('s_cmp_eq_u32 s5, 0\ns_cselect_b32 s25, s26, s25')
    a('v_bfe_u32 v10, v1, 4, 1\nv_and_b32 v12, 7, v1\nv_xor_b32 v10, v10, v12')
    a('s_and_b32 s27, s4, 4\nv_xor_b32 v10, s27, v10')
    a('v_lshrrev_b32 v2, 3, v1\nv_mul_u32_u24 v2, s7, v2\nv_xor_b32 v12, 2, v10')
    a('v_lshl_add_u32 v12, v12, 4, v2\nv_lshl_add_u32 v2, v10, 4, v2')
    a('s_mov_b32 s23, 0x20000')
    a('s_lshl_b32 s6, s4, s24\ns_mul_i32 s27, s6, s7\ns_add_u32 s27, s27, s25')
    a('s_lshl_b32 s28, s6, 7\ns_lshl_b32 s7, s7, 3')
    a('s_waitcnt lgkmcnt(0)')
    a('L_hdma:')
    a('s_mov_b32 m0, s28\ns_add_u32 s28, s28, 1024')
    a(f'buffer_load_dwordx4 v2, s[20:23], s27 offen {cfg.NT} lds')
    a('s_add_u32 s27, s27, s7\ns_mov_b32 m0, s28\ns_add_u32 s28, s28, 1024')
    a(f'buffer_load_dwordx4 v12, s[20:23], s27 offen {cfg.NT} lds')
    a('s_add_u32 s27, s27, s7\ns_sub_u32 s29, s29, 1\ns_cmp_lg_u32 s29, 0\ns_cbranch_scc1 L_hdma')
    a('L_helper:')
    epoch_load()
    if cfg.diag is not None: a(f's_load_dword s96, s[14:15], {XID+4}\ns_load_dword s97, s[14:15], {EPO}')
    a('s_load_dwordx2 s[44:45], s[0:1], 0')
    a('s_load_dwordx4 s[48:51], s[0:1], 24')
    a('s_load_dwordx4 s[52:55], s[0:1], 80')
    a('v_lshrrev_b32 v10, 3, v1\nv_and_b32 v11, 3, v1\nv_lshlrev_b32 v11, 1, v11\nv_lshl_add_u32 v10, v10, 3, v11')
    a('v_bfe_u32 v11, v1, 2, 1')
    a('s_lshl_b32 s6, s4, 6\nv_add_u32 v12, s6, v10')
    a('v_lshlrev_b32 v6, 1, v12\nv_lshl_add_u32 v6, v11, 10, v6')
    a(f'v_lshlrev_b32 v9, 2, v12\nv_lshl_add_u32 v9, v11, 11, v9\nv_add_u32 v9, {X1}, v9')
    a(f's_lshr_b32 s6, s4, 2\ns_mul_i32 s6, s6, 576\ns_and_b32 s7, s4, 3\ns_lshl_b32 s7, s7, 7\ns_add_u32 s6, s6, s7\ns_add_u32 s6, s6, {ACT}')
    a('v_mul_u32_u24 v7, 1152, v11\nv_lshl_add_u32 v7, v10, 1, v7\nv_add_u32 v7, s6, v7')
    a('v_lshrrev_b32 v13, 3, v1\nv_lshlrev_b32 v13, 2, v13\nv_lshl_add_u32 v13, v11, 5, v13')
    a(f'v_add_u32 v13, {STAT}, v13')
    a('s_waitcnt lgkmcnt(0)')
    srd(16, 's14', 's15', WS_SZ)
    epoch_tag()
    a('global_load_dword v17, v6, s[52:53]')
    a('global_load_dword v16, v6, s[44:45]')
    a('s_cmp_eq_u32 s5, 0\ns_cbranch_scc1 L_t2')
    a('s_add_u32 s24, s25, 128')
    dma_u1('s48', 's49', 512*8192, 8192, 's24', R1)
    a('s_branch L_h2')
    a('L_t2:')
    a('s_lshr_b32 s26, s3, 1\ns_lshl_b32 s24, s26, 18\ns_and_b32 s6, s3, 1\ns_lshl_b32 s6, s6, 9\ns_add_u32 s24, s24, s6')
    dma_w(8, 8 + cfg.pre)
    a('L_h2:')
    a('v_lshrrev_b32 v10, 4, v1\nv_bfe_u32 v11, v1, 2, 2\nv_lshl_add_u32 v3, v10, 3, v11')
    a('v_bfe_u32 v11, v1, 1, 1\nv_lshl_add_u32 v3, v11, 8, v3\nv_lshlrev_b32 v3, 7, v3')
    a('v_bfe_u32 v12, v1, 3, 2\nv_lshl_add_u32 v12, v11, 2, v12\nv_xor_b32 v12, s4, v12\nv_lshl_add_u32 v3, v12, 4, v3')
    a('v_and_b32 v12, 1, v1\nv_lshl_add_u32 v3, v12, 3, v3')
    a(f'v_lshl_add_u32 v4, v12, 1, v11\nv_mul_u32_u24 v4, 576, v4\nv_lshl_add_u32 v4, v10, 4, v4\nv_add_u32 v4, {ACT}, v4')
    a('v_lshlrev_b32 v5, 3, v0')
    a('s_lshl_b32 s6, s4, 7\nv_lshl_add_u32 v8, v1, 3, s6\nv_lshlrev_b32 v28, 4, v0')
    a(f'v_and_b32 v10, 0x37, v1\nv_cmp_eq_u32 vcc, 1, v10\nv_mov_b32 v18, {f2u(1e-5)}\nv_cndmask_b32 v18, 0, v18, vcc')
    a(f'v_lshlrev_b32 v10, 2, v1\nv_add_u32 v10, {STAT}, v10\nv_mov_b32 v{T+1}, s33\nv_mov_b32 v{ZT}, s33')
    a('s_mov_b32 exec_lo, -1\ns_mov_b32 exec_hi, 0xffff\nds_write_b32 v10, v18\ns_mov_b64 exec, -1')

    def tr_u1(F, region, steps=8, ad=None):
        if ad is None:
            if region: a(f'v_add_u32 v10, {region}, v3')
            ad = 'v10' if region else 'v3'
        for s in range(steps):
            for hh in range(2):
                a(f'ds_read_b64_tr_b16 v[{F+4*s+2*hh}:{F+4*s+2*hh+1}], {ad} offset:{4096*s + 512*hh}')
    def gemv(Fs, ad='v4', fill=(), off=0, steps=8, Ds=None):
        if isinstance(Fs, int): Fs = [Fs]
        if Ds is None: Ds = [DD]
        fill = list(fill)
        for s in range(steps): a(f'ds_read_b128 v[{AT+4*s}:{AT+4*s+3}], {ad} offset:{64*s+off}')
        per = (len(fill) + steps - 2) // (steps - 1)
        for s in range(steps):
            a(f's_waitcnt lgkmcnt({steps-1-s})')
            for F, D in zip(Fs, Ds):
                c = '0' if s == 0 else f'v[{D}:{D+3}]'
                a(f'v_mfma_f32_16x16x32_bf16 v[{D}:{D+3}], v[{AT+4*s}:{AT+4*s+3}], v[{F+4*s}:{F+4*s+3}], {c}')
            for _ in range(per):
                if fill: a(fill.pop(0))
        for x in fill: a(x)
    def sgemv(Fs, Ds, ad, idx, off=0, fill=(), steps=4, lead=2):
        fill = list(fill)
        for s in range(steps): a(f'ds_read_b128 v[{AT+4*s}:{AT+4*s+3}], {ad} offset:{64*s+off}')
        per = lead
        for s in range(steps):
            a(f's_waitcnt lgkmcnt({steps-1-s})')
            for F, D in zip(Fs, Ds):
                a(f'v_smfmac_f32_16x16x64_bf16 v[{D}:{D+3}], v[{AT+4*s}:{AT+4*s+3}], v[{F+8*s}:{F+8*s+7}], {idx}')
            for _ in range(per):
                if fill: a(fill.pop(0))
        for x in fill: a(x)
    def fold(D=DD, z=Z):
        a(f'v_add_f32_dpp v{z}, v{D+2}, v{D} row_ror:8 row_mask:0xf bank_mask:0x3')
        a(f'v_add_f32_dpp v{z}, v{D+1}, v{D+3} row_ror:8 row_mask:0xf bank_mask:0xc')
    def publish_tag(z, soff):
        a(f's_mov_b64 exec, 0xffff\nbuffer_store_dwordx2 v[{Z}:{Z+1}], v8, s[16:19], {soff} offen sc1\ns_mov_b64 exec, -1')
    def store2(text):
        if not cfg.fast: a(text + ' sc1'); return
        l = lab('fs'); d = lab('fd')
        a(f's_cbranch_scc1 {l}')
        a(text + ' sc1'); a(f's_branch {d}')
        a(f'{l}:'); a(text + ' ' + cfg.lst); a(f'{d}:')
    def unpack(lo, hi, src):
        a(f'v_lshlrev_b32 v{lo}, 16, v{src}\nv_and_b32 v{hi}, 0xffff0000, v{src}')
    def red6(vals, off, TT, scale=None, ad='v13'):
        r01, r23, r45, z = TT
        for r, (e, o) in zip((r01, r23, r45), ((vals[0], vals[1]), (vals[2], vals[3]), (vals[4], vals[5]))):
            a(f'v_add_f32_dpp v{r}, v{e}, v{e} row_ror:8 row_mask:0xf bank_mask:0x3')
        for r, (e, o) in zip((r01, r23, r45), ((vals[0], vals[1]), (vals[2], vals[3]), (vals[4], vals[5]))):
            a(f'v_add_f32_dpp v{r}, v{o}, v{o} row_ror:8 row_mask:0xf bank_mask:0xc')
        a(f'v_permlane16_swap_b32 v{r01}, v{r23}\nv_permlane16_swap_b32 v{r45}, v{z}')
        a(f'v_add_f32 v{r01}, v{r01}, v{r23}\nv_add_f32 v{r45}, v{r45}, v{z}')
        a(f'v_permlane32_swap_b32 v{r01}, v{r45}\nv_add_f32 v{r01}, v{r01}, v{r45}')
        a(f'v_add_f32_dpp v{r01}, v{r01}, v{r01} quad_perm:[1,0,3,2] row_mask:0xf bank_mask:0xf')
        a(f'v_add_f32_dpp v{r01}, v{r01}, v{r01} quad_perm:[2,3,0,1] row_mask:0xf bank_mask:0xf')
        a(f's_mov_b32 exec_lo, 0x11111111\ns_mov_b32 exec_hi, 0x1111')
        if scale: a(f'v_mul_f32 v{r01}, v{r01}, {scale}')
        a(f'ds_add_f32 {ad}, v{r01} offset:{off}\ns_mov_b64 exec, -1')

    stamp(1)
    def silu():
        unpack(18, 19, 17)
        a(f's_mov_b32 s6, {f2u(-LOG2E)}')
        a('v_mul_f32 v20, s6, v18\nv_mul_f32 v21, s6, v19\nv_exp_f32 v20, v20\nv_exp_f32 v21, v21')
        a('v_add_f32 v20, 1.0, v20\nv_add_f32 v21, 1.0, v21\nv_rcp_f32 v20, v20\nv_rcp_f32 v21, v21')
        a('v_mul_f32 v18, v18, v20\nv_mul_f32 v19, v19, v21\nv_cvt_pk_bf16_f32 v18, v18, v19')
        a(f'ds_write_b32 v7, v18 offset:{ACTC-ACT}')
        unpack(14, 15, 16)
    a('s_cmp_eq_u32 s5, 0\ns_cbranch_scc1 L_tail')
    mloads = [f'buffer_load_dwordx4 v[{AT+4*k}:{AT+4*k+3}], v28, s[16:19], s{60+k} offen sc1' for k in range(4)]
    for k in range(4): a(f's_mov_b32 s{60+k}, {MODA + 8192*k}')
    for x in mloads: a(x)
    a('s_waitcnt vmcnt(12)')
    stamp(2)
    silu()
    a('v_add_f32 v18, v14, v15\nv_mul_f32 v19, v14, v14\nv_fmac_f32 v19, v15, v15')
    a('s_waitcnt lgkmcnt(0)\ns_barrier')
    red6([18, 19, 18, 19, 18, 19], STAT2 - STAT, (24, 25, 26, 27))
    tr_u1(F0, R0)
    a('s_waitcnt lgkmcnt(0)\ns_barrier')
    stamp(3)
    a('s_lshl_b32 s24, s3, 7\ns_add_u32 s24, s24, 2048')
    if cfg.apre: dma_u1('s54', 's55', 512*6144, 6144, 's24', R0, i1=cfg.apre)
    a(f'v_bfe_u32 v10, v1, 2, 1\nv_lshlrev_b32 v10, 5, v10\nv_add_u32 v10, {STAT2}, v10')
    a('ds_read_b64 v[18:19], v10\ns_waitcnt lgkmcnt(0)')
    a(f's_mov_b32 s6, {f2u(1/512)}\ns_mov_b32 s7, {f2u(1e-5)}')
    a('v_mul_f32 v18, s6, v18\nv_mul_f32 v19, s6, v19\nv_fma_f32 v19, -v18, v18, v19\nv_add_f32 v19, s7, v19\nv_rsq_f32 v19, v19')
    a('v_sub_f32 v20, v14, v18\nv_sub_f32 v21, v15, v18\nv_mul_f32 v20, v20, v19\nv_mul_f32 v21, v21, v19')
    a('v_bfe_u32 v30, v1, 1, 2\nv_lshlrev_b32 v30, 3, v30\nv_bfe_u32 v11, v1, 3, 1\nv_lshl_add_u32 v30, v11, 9, v30\nv_bfe_u32 v11, v1, 4, 1\nv_lshl_add_u32 v30, v11, 8, v30')
    a(f's_lshl_b32 s6, s4, 5\ns_add_u32 s6, s6, {X1}\nv_add_u32 v30, s6, v30')
    a(f'v_lshlrev_b32 v31, 4, v1\nv_add_u32 v29, {X1}, v31\nv_lshrrev_b32 v11, 5, v1\nv_mul_u32_u24 v11, 1536, v11\nv_add_u32 v31, v31, v11')
    vpoll(mloads, range(AT+1, AT+16, 2), 22, first_issued=True, tags=True, sleep=cfg.slp, first_cnt=cfg.apre)
    stamp(4)
    a(f'v_add_f32 v22, v{AT}, v{AT+8}\nv_add_f32 v23, v{AT+2}, v{AT+10}\nv_add_f32 v24, v{AT+4}, v{AT+12}\nv_add_f32 v25, v{AT+6}, v{AT+14}')
    a('v_add_f32 v24, 1.0, v24\nv_add_f32 v25, 1.0, v25\nv_fma_f32 v20, v20, v24, v22\nv_fma_f32 v21, v21, v25, v23')
    a('v_cvt_pk_bf16_f32 v20, v20, v21\nds_write_b32 v7, v20\ns_waitcnt lgkmcnt(0)\ns_barrier')
    stamp(5)
    tr_u1(F1, R1)
    gemv([F0, F1], Ds=[DD, 24])
    a(f'v_add_f32_dpp v{Z}, v{DD+2}, v{DD} row_ror:8 row_mask:0x1 bank_mask:0x3')
    a(f'v_add_f32_dpp v{Z}, v{DD+1}, v{DD+3} row_ror:8 row_mask:0x1 bank_mask:0xc')
    a(f'v_add_f32_dpp v{Z}, v26, v24 row_ror:8 row_mask:0x2 bank_mask:0x3')
    a(f'v_add_f32_dpp v{Z}, v25, v27 row_ror:8 row_mask:0x2 bank_mask:0xc')
    a(f'v_mov_b32_dpp v{T}, v{Z} quad_perm:[1,1,3,3] row_mask:0xf bank_mask:0xf')
    a(f's_mov_b64 exec, 0x55555555')
    a(f'v_cvt_pk_bf16_f32 v{T}, v{Z}, v{T}')
    a(f'ds_write_b64 v30, v[{T}:{T+1}]\ns_mov_b64 exec, -1')
    a('s_waitcnt lgkmcnt(0)\ns_barrier')
    a('s_cmp_lg_u32 s4, 0\ns_cbranch_scc1 L_nqp')
    a(f's_lshr_b32 s6, s3, 2\ns_lshl_b32 s6, s6, 12\ns_and_b32 s7, s3, 3\ns_lshl_b32 s7, s7, 9\ns_add_u32 s6, s6, s7\ns_add_u32 s6, s6, {QO}')
    a('ds_read_b128 v[24:27], v29\ns_waitcnt lgkmcnt(0)')
    a('buffer_store_dwordx4 v[24:27], v31, s[16:19], s6 offen sc1')
    a('L_nqp:')
    stamp(6)
    if cfg.qobs:
        a('s_cmp_lg_u32 s4, 0\ns_cbranch_scc1 L_nobs')
        a(f's_lshr_b32 s6, s3, 2\ns_lshl_b32 s6, s6, 12\ns_add_u32 s6, s6, {QO}\nv_lshlrev_b32 v10, 4, v1')
        a('s_waitcnt vmcnt(0)'); stamp(2)
        vpoll([f'buffer_load_dwordx4 v[{AT+4*k}:{AT+4*k+3}], v10, s[16:19], s6 offen offset:{1024*k} sc1' for k in range(2)], range(AT+1, AT+8, 2), 22, tags=True)
        stamp(1)
        a('L_nobs:')
    dma_u1('s54', 's55', 512*6144, 6144, 's24', R0, i0=cfg.apre)
    a('s_waitcnt vmcnt(0)\ns_barrier')
    tr_u1(F0, R0)
    gemv(F0, off=ACTC-ACT); fold()
    a(f's_lshl_b32 s6, s3, 10\ns_add_u32 s6, s6, {MODB}')
    publish_tag(Z, 's6')
    stamp(7)
    if cfg.stamps:
        a('s_cmp_lg_u32 s4, 0\ns_cbranch_scc1 L_end')
        stamps_out(8, 0)
    a('s_endpgm')

    a('L_tail:')
    a(f's_waitcnt vmcnt({cfg.pre})')
    stamp(2)
    silu()
    a('s_load_dwordx8 s[52:59], s[0:1], 48')
    a('s_load_dwordx2 s[46:47], s[0:1], 96')
    if cfg.diag is not None: a('s_waitcnt lgkmcnt(0)\ns_load_dwordx2 s[98:99], s[46:47], 0')
    a('v_bfe_u32 v11, v1, 1, 1\nv_lshlrev_b32 v10, 14, v11\nv_sub_u32 v10, v3, v10')
    a('v_mul_u32_u24 v11, 320, v11\nv_sub_u32 v11, v4, v11\ns_and_b32 s6, s3, 1\ns_mul_i32 s6, s6, 576\nv_add_u32 v11, s6, v11')
    a('s_waitcnt lgkmcnt(0)\ns_barrier')
    tr_u1(F0, R0, 4, 'v10')
    gemv(F0, 'v11', off=ACTC-ACT, steps=4); fold()
    a('s_and_b32 s6, s3, 1\ns_lshl_b32 s6, s6, 14\ns_lshr_b32 s7, s3, 1\ns_lshl_b32 s7, s7, 10\ns_add_u32 s6, s6, s7')
    publish_tag(Z, 's6')
    stamp(3)
    dma_w(8 + cfg.pre, 16, setup=False)
    a('s_barrier')
    dma_w(0, 8, setup=False)
    a('v_lshrrev_b32 v10, 4, v1\nv_bfe_u32 v11, v1, 2, 2\nv_lshl_add_u32 v10, v10, 3, v11\nv_lshlrev_b32 v10, 9, v10')
    a('v_and_b32 v11, 3, v1\nv_lshl_add_u32 v10, v11, 3, v10')
    a('v_bfe_u32 v11, v1, 2, 3\nv_lshlrev_b32 v11, 5, v11\ns_lshl_b32 s6, s4, 6\nv_xor_b32 v11, s6, v11')
    a('v_add_u32 v22, v10, v11\nv_xor_b32 v11, 32, v11\nv_add_u32 v30, v10, v11')
    def tr_w(half):
        for cg, ad in ((0, 22), (1, 30)):
            if half: a(f'v_add_u32 v{10+cg}, {R1}, v{ad}')
            for s_ in range(4):
                for hh in range(2):
                    r = (F0, F1)[cg] + 4*(4*half + s_) + 2*hh
                    a(f'ds_read_b64_tr_b16 v[{r}:{r+1}], v{10+cg if half else ad} offset:{16384*s_ + 2048*hh}')
    a(f's_getreg_b32 s6, hwreg(HW_REG_XCC_ID)\ns_and_b32 s31, s6, 15\nv_mov_b32 v{T}, s31')
    a(f's_lshl_b32 s6, s3, 7\ns_add_u32 s6, s6, {XID}\nv_lshlrev_b32 v10, 3, v1')
    a('s_cmp_eq_u32 s4, 0\ns_cselect_b32 exec_lo, 0xffff, 0\ns_mov_b32 exec_hi, 0\ns_cbranch_execz L_nxid')
    a(f'buffer_store_dwordx2 v[{T}:{T+1}], v10, s[16:19], s6 offen sc1')
    a('L_nxid:')
    a('s_mov_b64 exec, -1')
    a('s_waitcnt vmcnt(8)\ns_barrier')
    stamp(4)
    tr_w(1)
    a('s_waitcnt lgkmcnt(0)\ns_barrier')
    a('s_cmp_ge_u32 s3, 28\ns_cbranch_scc1 L_nom1')
    a('s_lshl_b32 s24, s3, 7')
    dma_u1('s52', 's53', 512*3584, 3584, 's24', R1)
    stamp(5)
    a('s_waitcnt vmcnt(8)\ns_branch L_m1d')
    a('L_nom1:')
    a('s_waitcnt vmcnt(0)')
    a('L_m1d:')
    a('s_barrier')
    tr_w(0)
    a('s_waitcnt lgkmcnt(0)\ns_barrier')
    stamp(7)
    a('s_cmp_ge_u32 s3, 28\ns_cbranch_scc1 L_nom2')
    srd(20, 's56', 's57', 1792*1024)
    a('s_and_b32 s6, s4, 1\ns_lshl_b32 s6, s6, 7\nv_lshlrev_b32 v2, 4, v1\nv_xor_b32 v2, s6, v2')
    a('v_xor_b32 v10, 32, v2\nv_xor_b32 v11, 64, v2\nv_xor_b32 v12, 96, v2')
    a(f's_lshl_b32 s27, s3, 16\ns_lshl_b32 s28, s4, 13\ns_add_u32 s27, s27, s28')
    for hh in range(2):
        a('s_mov_b32 m0, s28')
        for i in range(4): a(f'buffer_load_dwordx4 v{(2,10,11,12)[i]}, s[20:23], s27 offen offset:{1024*i} {cfg.NT} lds')
        if hh == 0: a('s_add_u32 s27, s27, 4096\ns_add_u32 s28, s28, 4096')
    stamp(6)
    if cfg.touch:
        a(f's_lshl_b32 s6, s3, 12\ns_add_u32 s6, s6, {MOUT}\nbuffer_load_dwordx2 v[{DD}:{DD+1}], v5, s[16:19], s6 offen sc1')
    a('v_and_b32 v10, 7, v1\nv_lshlrev_b32 v10, 1, v10')
    a('s_and_b32 s6, s3, 15\ns_lshl_b32 s6, s6, 5\ns_lshl_b32 s7, s4, 2\ns_add_u32 s6, s6, s7')
    a('v_and_b32 v11, 1, v1\nv_lshl_add_u32 v11, v11, 1, s6\nv_bfe_u32 v12, v1, 4, 1\nv_add_u32 v23, v11, v12')
    a('v_lshlrev_b32 v11, 1, v23\nglobal_load_ushort v24, v11, s[58:59]')
    a('s_lshl_b32 s6, s3, 7\ns_lshl_b32 s7, s4, 4\ns_add_u32 s6, s6, s7')
    a('v_add_u32 v11, s6, v10\nglobal_load_ushort v25, v11, s[54:55]')
    a('L_nom2:')
    if cfg.touch:
        a(f's_lshl_b32 s6, s3, 10\ns_add_u32 s6, s6, {WOUT}\nv_lshlrev_b32 v10, 4, v1\nbuffer_load_dword v{DD+2}, v10, s[16:19], s6 offen sc1')
    a(f'v_and_b32 v10, 31, v1\nv_lshlrev_b32 v10, 7, v10\ns_mov_b32 s6, {XID}')
    vpoll([f'buffer_load_dwordx2 v[{AT}:{AT+1}], v10, s[16:19], s6 offen sc1'], [AT+1], None, sleep=cfg.slp, tags=True)
    a(f'v_cmp_ne_u32 vcc, s31, v{AT}\ns_cmp_eq_u64 vcc, 0\ns_cselect_b32 s32, 1, 0')
    a('s_cmp_ge_u32 s3, 28\ns_cbranch_scc1 L_wst')
    a('s_barrier')
    tr_u1(F2, R1)
    a('v_lshrrev_b32 v11, 3, v23\nv_lshlrev_b32 v11, 7, v11\nv_and_b32 v12, 7, v23\nv_lshl_add_u32 v11, v12, 3, v11\nv_bfe_u32 v12, v1, 3, 1\nv_lshl_add_u32 v11, v12, 6, v11')
    a(f's_mov_b32 s63, {MODB + 24*1024}')
    for k in range(3): a(f's_mov_b32 s{60+k}, {MODB + 8192*k}')
    a('v_lshlrev_b32 v24, 16, v24\nv_lshlrev_b32 v25, 16, v25')
    a(f'v_mov_b32 v{AT+15}, 0x3f803f80\nds_write_b32 v7, v{AT+15} offset:{ACTM-ACT+3*TS}')
    stamp(1)
    vpoll([f'buffer_load_dwordx4 v[{AT+4*k}:{AT+4*k+3}], v28, s[16:19], s{60+k} offen sc1' for k in range(3)] +
          [f'buffer_load_dwordx2 v[{AT+12}:{AT+13}], v11, s[16:19], s63 offen sc1'], range(AT+1, AT+14, 2), AT+14, sleep=cfg.slp, tags=True)
    stamp(8)
    a(f'v_mov_b32 v23, v{AT+12}\nv_mov_b32 v16, v{AT}\nv_mov_b32 v17, v{AT+2}')
    a(f'v_add_f32 v18, 1.0, v{AT+8}\nv_add_f32 v19, 1.0, v{AT+10}\nv_cvt_pk_bf16_f32 v{AT+1}, v{AT+4}, v{AT+6}\nv_cvt_pk_bf16_f32 v{AT+3}, v18, v19')
    unpack(18, 19, AT+3); unpack(20, 21, AT+1)
    a(f'ds_write_b32 v7, v{AT+3} offset:{ACTM-ACT+TS}\nds_write_b32 v7, v{AT+1} offset:{ACTM-ACT+2*TS}')
    t = AT + 16
    a(f'v_add_f32 v{t}, v18, v19\nv_mul_f32 v{t+1}, v18, v18\nv_fmac_f32 v{t+1}, v19, v19')
    a(f'v_mul_f32 v{t+2}, v18, v20\nv_fmac_f32 v{t+2}, v19, v21\nv_add_f32 v{t+3}, v20, v21')
    a(f'v_mul_f32 v{t+4}, v20, v20\nv_fmac_f32 v{t+4}, v21, v21')
    red6([t, t+1, t+2, t+3, t+4, t+4], STAT3 - STAT, (t+6, t+7, t+8, t+9))
    a(f'v_bfe_u32 v10, v1, 2, 2\nv_mul_u32_u24 v10, {TS}, v10\nv_add_u32 v10, v10, v4')
    a('s_waitcnt lgkmcnt(0)\ns_barrier')
    gemv(F2, 'v10', off=ACTM-ACT); fold()
    a(f'v_mov_b32 v26, v{Z}\nv_permlane16_swap_b32 v{Z}, v26')
    a(f'v_mov_b32 v27, v{Z}\nv_mov_b32 v28, v26\nv_permlane32_swap_b32 v{Z}, v27\nv_permlane32_swap_b32 v26, v28')
    a('L_wst:')
    if cfg.dirty:
        a(f's_lshl_b32 s6, s3, 15\ns_add_u32 s6, s6, 0xA0000\nv_lshlrev_b32 v10, 4, v0')
        srd(20, 's14', 's15', 0x200000)
        for i in range(cfg.dirty):
            a(f'buffer_store_dwordx4 v[40:43], v10, s[20:23], s6 offen\ns_add_u32 s6, s6, 8192')
    a('s_lshr_b32 s6, s4, 2\ns_lshl_b32 s24, s6, 3\ns_lshr_b32 s7, s26, 1\ns_add_u32 s24, s24, s7')
    a('s_and_b32 s7, s26, 1\ns_lshl_b32 s7, s7, 1\ns_bfe_u32 s28, s4, 0x10001\ns_add_u32 s7, s7, s28')
    a(f's_lshl_b32 s27, s24, 11\ns_lshl_b32 s29, s7, 3\ns_add_u32 s27, s27, s29\ns_add_u32 s27, s27, {LSE}')
    a(f's_lshl_b32 s60, s24, 14\ns_lshl_b32 s29, s7, 8\ns_add_u32 s60, s60, s29\ns_and_b32 s29, s4, 1\ns_lshl_b32 s29, s29, 7\ns_add_u32 s60, s60, s29\ns_add_u32 s60, s60, {OP}')
    a('s_add_u32 s61, s60, 4096')
    a(f's_mul_i32 s6, s6, 1152\ns_and_b32 s29, s4, 3\ns_lshl_b32 s29, s29, 6\ns_add_u32 s6, s6, s29\ns_add_u32 s6, s6, {ACT}')
    a('v_and_b32 v31, 1, v1\nv_mul_u32_u24 v31, 576, v31\nv_bfe_u32 v10, v1, 1, 4\nv_lshl_add_u32 v31, v10, 2, v31\nv_add_u32 v31, s6, v31')
    a('s_mov_b32 s62, 6144\nv_and_b32 v2, 31, v1\nv_lshlrev_b32 v2, 2, v2\nv_lshrrev_b32 v10, 5, v1\nv_mad_u32_u24 v2, v10, s62, v2')
    a(f's_lshl_b32 s29, s3, 10\ns_add_u32 s29, s29, {WOUT}')
    a('v_and_b32 v11, 2, v1\nv_cmp_eq_u32 vcc, 0, v11\nv_mov_b32 v11, 0xeeee\nv_mov_b32 v22, 0x4444\nv_cndmask_b32 v22, v11, v22, vcc')
    for r in range(8): a(f'v_mov_b32 v{DD+r}, 0')
    a('v_bfe_u32 v8, v1, 1, 2\nv_lshlrev_b32 v8, 4, v8\nv_bfe_u32 v11, v1, 4, 1\nv_lshl_add_u32 v8, v11, 6, v8\nv_bfe_u32 v11, v1, 3, 1\nv_lshl_add_u32 v8, v11, 7, v8')
    a('v_lshl_add_u32 v8, v10, 2, v8\ns_lshr_b32 s6, s4, 1\ns_lshl_b32 s6, s6, 8\ns_and_b32 s7, s4, 1\ns_lshl_b32 s7, s7, 3\ns_add_u32 s6, s6, s7\nv_add_u32 v8, s6, v8')
    a(f'v_lshlrev_b32 v10, 7, v1\nv_mov_b32 v{AT}, 0xff800000')
    stamp(9)
    a(f's_mov_b64 exec, {(1 << NCH) - 1:#x}')
    vpoll([f'buffer_load_dwordx2 v[{AT}:{AT+1}], v10, s[16:19], s27 offen sc1'], [AT+1], None, sleep=cfg.slp, tags=True)
    a('s_mov_b64 exec, -1')
    if cfg.diag is not None and cfg.diag >= 90:
        op = 'min' if cfg.diag == 99 else 'max'
        a(f'v_mov_b32 v{AT+2}, s64\ns_mov_b64 exec, {(1 << NCH) - 1:#x}\nbuffer_load_dword v{AT+2}, v10, s[16:19], s27 offen offset:64 sc1\ns_waitcnt vmcnt(0)\ns_mov_b64 exec, -1')
        a(f'v_subrev_u32 v{AT+2}, s64, v{AT+2}')
        if cfg.diag >= 98:
            for r in (1, 2, 4, 8): a(f'v_{op}_i32_dpp v{AT+2}, v{AT+2}, v{AT+2} row_ror:{r} row_mask:0xf bank_mask:0xf')
        a(f'v_readlane_b32 s92, v{AT+2}, {0 if cfg.diag >= 98 else cfg.diag - 90}\ns_add_u32 s92, s92, 250\ns_add_u32 s92, s92, s64')
    a(f'v_mov_b32 v{AT+1}, v{AT}')
    for r in (1, 2, 4, 8): a(f'v_max_f32_dpp v{AT+1}, v{AT+1}, v{AT+1} row_ror:{r} row_mask:0xf bank_mask:0xf')
    a(f'v_sub_f32 v{AT}, v{AT}, v{AT+1}\nv_exp_f32 v{AT}, v{AT}\nv_mov_b32 v{AT+1}, v{AT}')
    for r in (1, 2, 4, 8): a(f'v_add_f32_dpp v{AT+1}, v{AT+1}, v{AT+1} row_ror:{r} row_mask:0xf bank_mask:0xf')
    a(f'v_rcp_f32 v{AT+1}, v{AT+1}\nv_mul_f32 v{AT}, v{AT}, v{AT+1}')
    a('v_lshrrev_b32 v10, 5, v1\nv_mul_u32_u24 v10, 24, v10')
    for i in range(6):
        a(f'ds_bpermute_b32 v{AT+24+i}, v10, v{AT} offset:{4*i}')
    a('s_waitcnt lgkmcnt(0)')
    wl = [f'buffer_load_dword v{AT+c}, v2, s[16:19], s{60+(c>>2)} offen offset:{1024*(c&3)} sc1' for c in range(6)]
    if cfg.mp & 1: mpoll([(wl[c], [AT+c]) for c in range(6)], AT+12)
    else: vpoll(wl, [AT+c for c in range(6)], AT+12)
    stamp(10)
    acc = AT + 20
    for c in range(6):
        tq = AT + 8 + 2*c
        unpack(tq, tq+1, AT+c)
    for c in range(6):
        tq = AT + 8 + 2*c; wp = AT + 24 + (c & ~1)
        mod = 'op_sel_hi:[1,0,1]' if (c & 1) == 0 else 'op_sel:[0,1,0] op_sel_hi:[1,1,1]'
        mod2 = 'op_sel_hi:[1,0]' if (c & 1) == 0 else 'op_sel:[0,1] op_sel_hi:[1,1]'
        ac = acc + 2*(c & 1)
        if c < 2: a(f'v_pk_mul_f32 v[{ac}:{ac+1}], v[{tq}:{tq+1}], v[{wp}:{wp+1}] {mod2}')
        else: a(f'v_pk_fma_f32 v[{ac}:{ac+1}], v[{tq}:{tq+1}], v[{wp}:{wp+1}], v[{ac}:{ac+1}] {mod}')
    a(f'v_pk_add_f32 v[{acc}:{acc+1}], v[{acc}:{acc+1}], v[{acc+2}:{acc+3}]')
    a(f'v_permlane32_swap_b32 v{acc}, v{acc+1}')
    a(f'v_add_f32 v{acc}, v{acc}, v{acc+1}')
    a(f'v_mov_b32 v{acc+1}, v{acc}\nv_permlane32_swap_b32 v{acc}, v{acc+1}')
    a(f's_mov_b64 exec, 0xffffffff\nv_cvt_pk_bf16_f32 v{acc}, v{acc}, v{acc+1}\nds_write_b32 v31, v{acc}\ns_mov_b64 exec, -1')
    fst(7)
    a('s_waitcnt lgkmcnt(0)\ns_barrier')
    fst(8)
    sgemv([F0, F1], [DD, Z], 'v4', 'v22')
    a(f'v_add_f32_dpp v10, v{DD}, v{DD+2} quad_perm:[0,1,2,3] row_mask:0x1 bank_mask:0xf')
    a(f'v_add_f32_dpp v10, v{DD+1}, v{DD+3} quad_perm:[0,1,2,3] row_mask:0x2 bank_mask:0xf')
    a(f'v_add_f32_dpp v10, v{Z}, v{Z+2} quad_perm:[0,1,2,3] row_mask:0x4 bank_mask:0xf')
    a(f'v_add_f32_dpp v10, v{Z+1}, v{Z+3} quad_perm:[0,1,2,3] row_mask:0x8 bank_mask:0xf')
    a('s_cmp_lg_u32 s32, 0')
    a('v_mov_b32_dpp v11, v10 quad_perm:[1,1,3,3] row_mask:0xf bank_mask:0xf')
    a('s_mov_b32 exec_lo, 0x55555555\ns_mov_b32 exec_hi, 0x55555555')
    a('v_cvt_pk_bf16_f32 v11, v10, v11')
    store2('buffer_store_dword v11, v8, s[16:19], s29 offen')
    a('s_mov_b64 exec, -1')
    stamp(11)
    a('s_cmp_ge_u32 s3, 28\ns_cbranch_scc1 L_hdone')

    a('v_lshrrev_b32 v10, 4, v1\nv_bfe_u32 v11, v1, 2, 2\nv_lshl_add_u32 v10, v10, 3, v11\nv_lshlrev_b32 v10, 10, v10')
    a(f'v_and_b32 v11, 3, v1\nv_lshl_add_u32 v10, v11, 3, v10')
    a('v_bfe_u32 v11, v1, 2, 3\nv_lshlrev_b32 v11, 5, v11\ns_lshl_b32 s6, s4, 7\nv_xor_b32 v11, s6, v11')
    for cg in range(4):
        a(f'v_xor_b32 v12, {32*cg}, v11\nv_add_u32 v{60+cg}, v10, v12')
    for cg in range(4):
        for s in range(2):
            for hh in range(2):
                r = F1 + (cg*2 + s)*4 + 2*hh
                a(f'ds_read_b64_tr_b16 v[{r}:{r+1}], v{60+cg} offset:{32768*s + 4096*hh}')
    a(f's_lshl_b32 s60, s4, 8\ns_add_u32 s60, s60, {WOUT}\ns_add_u32 s61, s60, 4096')
    a('v_and_b32 v59, 15, v1\nv_lshlrev_b32 v59, 4, v59\nv_lshrrev_b32 v58, 4, v1\nv_lshl_add_u32 v59, v58, 13, v59')
    wloads = [f'buffer_load_dwordx4 v[{AT+4*k}:{AT+4*k+3}], v59, s[16:19], s{60+(k>>1)} offen offset:{2048*(k&1)} sc1' for k in range(4)]
    for x in wloads: a(x)
    a(f'v_bfe_u32 v10, v1, 3, 1\nv_lshlrev_b32 v40, 5, v10\nv_add_u32 v40, {STAT}, v40')
    a(f'ds_read_b128 v[68:71], v40 offset:{STAT3-STAT}\nds_read_b32 v30, v40 offset:{STAT3-STAT+16}')
    a('v_bfe_u32 v11, v1, 1, 1\nv_lshl_add_u32 v41, v10, 1, v11\nv_lshlrev_b32 v41, 6, v41\nv_and_b32 v12, 4, v1\nv_add_u32 v41, v41, v12')
    a(f'v_and_b32 v12, 1, v1\nv_lshl_add_u32 v41, v12, 1, v41\ns_lshl_b32 s6, s4, 3\ns_add_u32 s6, s6, {HID}\nv_add_u32 v41, s6, v41')
    a(f'v_lshl_add_u32 v42, v12, 1, v11\nv_lshlrev_b32 v42, 6, v42\nv_and_b32 v45, 48, v1\nv_add_u32 v42, v42, v45\nv_add_u32 v42, {HID}, v42')
    a(f'v_and_b32 v43, 7, v1\nv_mul_u32_u24 v43, 288, v43\nv_add_u32 v43, v43, v45\nv_add_u32 v43, {AS}, v43')
    a('v_bfe_u32 v46, v1, 2, 1\nv_lshl_add_u32 v46, v12, 2, v46\nv_mul_u32_u24 v46, 288, v46\nv_lshl_add_u32 v46, v11, 2, v46\nv_lshrrev_b32 v11, 3, v1\nv_lshl_add_u32 v46, v11, 3, v46')
    a(f's_lshr_b32 s6, s4, 2\ns_mul_i32 s6, s6, 576\ns_and_b32 s7, s4, 3\ns_lshl_b32 s7, s7, 6\ns_add_u32 s6, s6, s7\ns_add_u32 s6, s6, {AS}\nv_add_u32 v46, s6, v46')
    a('v_and_b32 v11, 4, v1\nv_cmp_eq_u32 vcc, 0, v11\nv_mov_b32 v11, 0xeeee\nv_mov_b32 v47, 0x4444\nv_cndmask_b32 v47, v11, v47, vcc')
    for r in range(4): a(f'v_mov_b32 v{DD+r}, 0')
    a('s_and_b32 s6, s3, 15\ns_lshl_b32 s6, s6, 5\ns_lshl_b32 s7, s4, 2\ns_add_u32 s6, s6, s7')
    a('v_and_b32 v11, 1, v1\nv_lshl_add_u32 v11, v11, 1, s6')
    a('v_lshrrev_b32 v12, 1, v1\nv_lshlrev_b32 v44, 12, v12\nv_lshl_add_u32 v44, v11, 3, v44')
    a('v_bfe_u32 v12, v1, 4, 1\nv_add_u32 v11, v11, v12')
    a(f'v_lshlrev_b32 v48, 11, v10\nv_lshl_add_u32 v48, v11, 2, v48\nv_add_u32 v48, {X1}, v48')
    a('v_lshlrev_b32 v49, 10, v10\nv_lshl_add_u32 v49, v11, 1, v49')
    a(f's_add_u32 s20, s14, {MOUT}\ns_addc_u32 s21, s15, 0\ns_mov_b32 s22, {28*4096}\ns_mov_b32 s23, 0x20000')
    a(f's_lshl_b32 s24, s3, 12')
    a(f's_mov_b32 s40, {f2u(1/512)}\ns_mov_b32 s41, {f2u(1e-5)}\ns_mov_b32 s42, {f2u(0.044715)}\ns_mov_b32 s43, {f2u(-2*math.sqrt(2/math.pi)*LOG2E)}')
    a('v_and_b32 v50, 1, v1\nv_lshlrev_b32 v50, 4, v50\nv_mov_b32 v51, 0x3f80\nv_lshlrev_b32 v50, v50, v51\nv_bfe_u32 v51, v1, 2, 2')
    for i in range(4): a(f'v_cmp_eq_u32 vcc, {i}, v51\nv_cndmask_b32 v{64+i}, 0, v50, vcc')
    a('s_waitcnt lgkmcnt(0)')
    a(f's_mov_b32 s45, {f2u(2/512)}\nv_mov_b32 v50, s41')
    a('v_mul_f32 v68, s40, v68\nv_mul_f32 v69, s40, v69\nv_mul_f32 v70, s45, v70\nv_mul_f32 v71, s40, v71\nv_fma_f32 v30, v30, s40, v50')
    a(f'v_lshrrev_b32 v50, 3, v1\nv_mov_b32 v51, s40\nv_cmp_eq_u32 vcc, 5, v50\nv_mov_b32 v58, s45\nv_cndmask_b32 v51, v51, v58, vcc\nv_cmp_eq_u32 vcc, 4, v50\nv_cndmask_b32 v51, v51, -v58, vcc')
    a('v_mov_b32 v29, v9\nv_mov_b32 v31, v13')
    Q = (0, 60, 6, 10)
    for q_ in Q:
        for r in range(4): a(f'v_mov_b32 v{q_+r}, 0')
    if cfg.mp & 2: mpoll([(wloads[k], range(AT+4*k, AT+4*k+4)) for k in range(4)], AT+20, first_issued=True)
    else: vpoll(wloads, [AT+k for k in range(16)], AT+20, first_issued=True)
    stamp(12)
    V = AT + 16
    for k in range(4):
        c0 = '0' if k == 0 else f'v[{V}:{V+3}]'
        a(f'v_mfma_f32_16x16x32_bf16 v[{V}:{V+3}], v[64:67], v[{AT+4*k}:{AT+4*k+3}], {c0}')
    s0, s1 = V, V+1
    x0, x1, a0, a1 = AT+12, AT+13, AT+14, AT+15
    a(f'v_fma_f32 v{x0}, v16, v{s0}, v14\nv_fma_f32 v{x1}, v17, v{s1}, v15')
    a(f'v_mul_f32 v{a0}, v{x0}, v18\nv_mul_f32 v{a1}, v{x1}, v19')
    a(f'v_cvt_pk_bf16_f32 v{AT}, v{a0}, v{a1}\nds_write_b32 v46, v{AT}\nds_write_b64 v29, v[{x0}:{x1}]')
    fst(1)
    t = AT + 20
    a(f'v_add_f32 v{t}, v{x0}, v{x1}\nv_mul_f32 v{t+1}, v{x0}, v{x0}\nv_add_f32 v{t+2}, v{a0}, v{a1}\nv_mul_f32 v{t+3}, v{a0}, v{a0}')
    a(f'v_mul_f32 v{t+4}, v{a0}, v18\nv_mul_f32 v{t+5}, v{a0}, v20')
    a(f'v_fmac_f32 v{t+1}, v{x1}, v{x1}\nv_fmac_f32 v{t+3}, v{a1}, v{a1}\nv_fmac_f32 v{t+4}, v{a1}, v19\nv_fmac_f32 v{t+5}, v{a1}, v21')
    red6([t, t+1, t+2, t+3, t+4, t+5], 0, (t+6, t+7, t+8, t+9), 'v51', 'v31')
    fst(2)
    a('s_waitcnt lgkmcnt(0)')
    fst(9)
    a('s_barrier')
    fst(3)
    a('ds_read_b128 v[52:55], v40\nds_read_b64 v[56:57], v40 offset:16')
    fill = [
        'v_fma_f32 v53, -v52, v52, v53',
        'v_fma_f32 v56, v52, v69, v56',
        'v_rsq_f32 v53, v53',
        'v_fma_f32 v54, -v52, v68, v54',
        'v_fma_f32 v55, v52, v56, v55',
        'v_fma_f32 v57, -v52, v70, v57',
        'v_fma_f32 v55, v53, v55, v57',
        'v_fma_f32 v54, v53, v54, v71',
        'v_mul_f32 v52, v52, v53',
        'v_fma_f32 v55, v53, v55, v30',
        'v_fma_f32 v56, -v52, v26, v27',
        'v_fma_f32 v55, -v54, v54, v55',
        'v_fma_f32 v56, -v54, v28, v56',
        'v_rsq_f32 v55, v55',
    ]
    sgemv([F2], [DD], 'v43', 'v47', fill=fill, lead=cfg.lead); fold()
    a(f'v_mov_b32 v{T}, v{Z}\nv_permlane16_swap_b32 v{Z}, v{T}\nv_add_f32 v{Z}, v{Z}, v{T}')
    fst(4)
    ge = [f'v_fma_f32 v{Z}, v{Z}, v53, v56', f'v_fma_f32 v{Z}, v{Z}, v55, v25', f'v_mul_f32 v{T}, v{Z}, v{Z}', f'v_mul_f32 v{T+1}, s43, v{Z}',
          f'v_fma_f32 v{T}, v{T}, s42, 1.0', f'v_mul_f32 v{T}, v{T}, v{T+1}', f'v_exp_f32 v{T}, v{T}', f'v_add_f32 v{T}, 1.0, v{T}',
          f'v_rcp_f32 v{T}, v{T}', f'v_mul_f32 v{T}, v{T}, v{Z}', f'v_cvt_pk_bf16_f32 v{T}, v{T}, v{T}']
    for x in ge: a(x)
    a(f's_mov_b64 exec, 0xffff\nds_write_b16 v41, v{T}\ns_mov_b64 exec, -1')
    fst(5)
    a('s_waitcnt lgkmcnt(0)\ns_barrier')
    fst(6)
    a(f'ds_read_b128 v[{AT}:{AT+3}], v42')
    a(f'ds_read_b32 v52, v48')
    a(f's_waitcnt lgkmcnt(1)')
    for cg in range(4):
        ac = Q[cg]; fr = F1 + cg*8
        a(f'v_smfmac_f32_16x16x64_bf16 v[{ac}:{ac+3}], v[{AT}:{AT+3}], v[{fr}:{fr+7}], v22')
    y = AT + 8
    a('s_cmp_lg_u32 s32, 0')
    for cg in range(4):
        ac = Q[cg]
        for r in range(2): a(f'v_add_f32_dpp v{y+r}, v{ac+r}, v{ac+2+r} quad_perm:[0,1,2,3] row_mask:{1 << cg:#x} bank_mask:0xf')
    store2(f'buffer_store_dwordx2 v[{y}:{y+1}], v5, s[20:23], s24 offen')
    stamp(13)
    a('s_cmp_ge_u32 s3, 16\ns_cbranch_scc1 L_hdone')
    fl = [f'buffer_load_dwordx4 v[{AT}:{AT+3}], v44, s[20:23], 0 offen sc1']
    a(fl[0])
    srd(24, 's46', 's47', 2048)
    a('s_waitcnt lgkmcnt(0)\nv_fma_f32 v52, v23, v24, v52')
    if cfg.mp & 4: mpoll([(fl[0], range(AT, AT+4))], AT+8, first_issued=True)
    else: vpoll(fl, [AT+k for k in range(4)], AT+8, first_issued=True)
    if cfg.diag is None or cfg.diag < 90: stamp(14)
    a(f'v_add_f32_dpp v{Z}, v{AT}, v{AT} row_ror:8 row_mask:0xf bank_mask:0x3')
    a(f'v_add_f32_dpp v{T}, v{AT+2}, v{AT+2} row_ror:8 row_mask:0xf bank_mask:0x3')
    a(f'v_add_f32_dpp v{Z}, v{AT+1}, v{AT+1} row_ror:8 row_mask:0xf bank_mask:0xc')
    a(f'v_add_f32_dpp v{T}, v{AT+3}, v{AT+3} row_ror:8 row_mask:0xf bank_mask:0xc')
    a(f'v_permlane16_swap_b32 v{Z}, v{T}\nv_add_f32 v{Z}, v{Z}, v{T}')
    a(f'v_mov_b32 v{T}, v{Z}\nv_permlane32_swap_b32 v{Z}, v{T}\nv_add_f32 v{Z}, v{Z}, v{T}')
    a(f'v_add_f32_dpp v{Z}, v{Z}, v{Z} quad_perm:[2,3,0,1] row_mask:0xf bank_mask:0xf')
    a(f'v_add_f32_dpp v{Z}, v{Z}, v{Z} row_shl:4 row_mask:0xf bank_mask:0x5')
    a(f'v_fma_f32 v{Z}, v23, v{Z}, v52')
    if cfg.diag is not None:
        a('s_or_b32 s6, s3, s4\ns_cmp_lg_u32 s6, 0\ns_cbranch_scc1 L_ndiag')
        a('s_memrealtime s[94:95]\ns_waitcnt lgkmcnt(0)\ns_sub_u32 s6, s94, s64')
        a(f's_cmp_lt_u32 s6, {cfg.T0}\ns_cbranch_scc1 L_ndiag\ns_cmp_eq_u32 s96, s97\ns_cbranch_scc1 L_ndiag\ns_cmp_eq_u32 s32, {cfg.gate}\ns_cbranch_scc1 L_ndiag')
        a('s_cmp_eq_u32 s98, s99\ns_cbranch_scc1 L_ndiag')
        a(f's_sub_u32 s6, s{64+2*cfg.diag if cfg.diag < 90 else 92}, s64\nv_cvt_f32_u32 v10, s6\ns_mov_b64 exec, 1\nv_add_f32 v{Z}, v{Z}, v10\ns_mov_b64 exec, -1')
        a('L_ndiag:')
    if cfg.enc:
        a('s_or_b32 s6, s3, s4\ns_cmp_lg_u32 s6, 0\ns_cbranch_scc1 L_nenc')
        a(f's_memrealtime s[94:95]\ns_waitcnt lgkmcnt(0)\ns_sub_u32 s6, s94, s64\ns_sub_u32 s7, s{64+2*cfg.enc}, s64')
        a('v_mov_b32 v10, s6\nv_mov_b32 v11, s7\nv_and_b32 v12, 8, v1\nv_cmp_eq_u32 vcc, 0, v12\nv_cndmask_b32 v10, v11, v10, vcc')
        a('v_and_b32 v11, 1, v1\nv_lshlrev_b32 v11, 1, v11\nv_bfe_u32 v12, v1, 4, 1\nv_add_u32 v11, v11, v12\nv_mul_u32_u24 v11, 3, v11')
        a(f'v_lshrrev_b32 v10, v11, v10\nv_and_b32 v10, 7, v10\nv_cvt_f32_u32 v10, v10\nv_add_f32 v{Z}, v{Z}, v10')
        a('L_nenc:')
    a(f's_mov_b64 exec, 0x03030303')
    a(f'v_cvt_pk_bf16_f32 v{T}, v{Z}, v{Z}')
    a(f'buffer_store_short v{T}, v49, s[24:27], 0 offen')
    a('s_or_b32 s6, s3, s4\ns_cmp_lg_u32 s6, 0\ns_cbranch_scc1 L_noep')
    a(f's_mov_b64 exec, 1\nv_mov_b32 v10, {EPO}\nv_mov_b32 v11, s33\nbuffer_store_dword v11, v10, s[16:19], 0 offen')
    a('L_noep:')
    a('s_mov_b64 exec, -1')
    stamp(15)
    a('L_hdone:')
    if cfg.stamps:
        a(f's_cmp_lg_u32 s4, {cfg.sw}\ns_cbranch_scc1 L_end')
        stamps_out(16, 0)
        a('s_cmp_lg_u32 s2, 0\ns_cbranch_scc1 L_end')
        for n, i in enumerate((1, 4, 7, 8, 9, 10, 11, 12, 13, 14, 15)):
            a(f's_sub_u32 s60, s{64+2*i}, s64\nv_mov_b32 v4, s60\nglobal_store_dword v2, v4, s[12:13] offset:{16+4*n}')
        a('v_mov_b32 v4, s32\nglobal_store_dword v2, v4, s[12:13]')
        a('s_waitcnt vmcnt(0)')
    a('L_end:')
    a('s_endpgm')
    return wrap(a.finalize(), 256, 768, LDS_TOTAL, 168, sgpr=102)

if __name__ == '__main__':
    out = sys.argv[1]
    for o in sys.argv[2:]:
        k, v = o.split('=')
        setattr(cfg, k, eval(v))
    open(out, 'w').write(gen())
```

```python
import sys, math, struct
from asmlib import *
from gen_common import *

class Cfg:
    stamps = False
    NT = 'nt'
    warm = True
    prio = True
    slp = 2
    qslp = 4
    thS = 63
    thV = 63
    pre = 3
    touch = True
    diag = None
    fine = False
    sw = 0
    mp = 2
    enc = 0
    lay = 1
    lead = 2
    qlate = 0
    p1c = False
    qobs = False
    rot = 0
    RK = 86
    xp = 0
    mtag = False
    owarm = 0
    fst = ''
    pe = True
    mlate = 0
    slpB = 2
    slpM = 2
    tx = 0
    tlbw = 0
    lst = ''
    ost = 'sc1'
    il = False
    bias = (0, 0, 0, 0, 0, 0, 0)
    dirty = 0
    nth = 10
    T0 = 1900
    gate = 0
    apre = 0
    fast = True
cfg = Cfg()

MODA=0; MODB=0x8000; QO=0x10000; XID=0x18000; EPO=0x1A800; WOUT=0x1C000; MOUT=0x24000; OP=0x40000; STMP=0x80000; LSE=0x90000; WS_SZ=0x100000
NCH = 12
KW=36864; PREG=147456; ZERO=153600; ST=154176; QL=154368; QF=155392; SCR=0; LDS_TOTAL=155648
R0=0; R1=65536; ACT=131072; ACTC=133376; ACTM=135680; TS=2336; HID=145024; STAT=145408; STAT2=145472; STAT3=145536; X1=145664; AS=149760
LIMIT = 200000
LOG2E = 1.4426950408889634
def f2u(x): return '0x%08x' % struct.unpack('<I', struct.pack('<f', x))[0]

def gtab():
    d = list(cfg.bias); assert sum(d) == 0
    g = [0]
    for k in range(6): g.append(g[-1] + d[(2*k) % 7])
    return g
def chunk_start(p, c):
    g = gtab(); pos = (4*(p + 4)) % 7
    tot = g[(pos + 12) % 7] - g[pos]
    return ((c*(8192 - tot)*21846) >> 18) + g[(pos + c) % 7] - g[pos]

def gen():
    a = Asm()
    uid = [0]
    def lab(p):
        uid[0] += 1; return f'L_{p}_{uid[0]}'
    def stamp(i):
        if cfg.stamps: a(f's_memrealtime s[{64+2*i}:{65+2*i}]')
    def fst(i):
        if cfg.fine: stamp(i)
    def stamps_out(n, base_slot):
        if not cfg.stamps: return
        a('s_waitcnt lgkmcnt(0)')
        a('s_mov_b64 exec, 1')
        a(f's_lshl_b32 s60, s2, 7\ns_add_u32 s60, s60, {STMP + base_slot*8}')
        a('v_mov_b32 v2, 0')
        for i in range(n):
            a(f'v_mov_b32 v4, s{64+2*i}\nv_mov_b32 v5, s{65+2*i}')
            a(f'buffer_store_dwordx2 v[4:5], v2, s[16:19], s60 offen offset:{8*i}')
        a('s_waitcnt vmcnt(0)')
    def srd(d, lo, hi, size):
        a(f's_mov_b32 s{d}, {lo}\ns_mov_b32 s{d+1}, {hi}\ns_mov_b32 s{d+2}, {size}\ns_mov_b32 s{d+3}, 0x20000')
    def epoch_load():
        a(f's_load_dword s33, s[14:15], {EPO}')
    def epoch_tag():
        a('s_mul_i32 s33, s33, 0x9E3779B1\ns_add_u32 s33, s33, 0x85EBCA6B')
    def red3(op, regs, tmp):
        rs = list(regs)
        if len(rs) == 1: return rs[0]
        first = True
        while rs:
            if first:
                if len(rs) >= 3: a(f'v_{op}3_u32 v{tmp}, v{rs[0]}, v{rs[1]}, v{rs[2]}'); rs = rs[3:]
                else: a(f'v_{op}_u32 v{tmp}, v{rs[0]}, v{rs[1]}'); rs = rs[2:]
                first = False
            elif len(rs) >= 2: a(f'v_{op}3_u32 v{tmp}, v{tmp}, v{rs[0]}, v{rs[1]}'); rs = rs[2:]
            else: a(f'v_{op}_u32 v{tmp}, v{tmp}, v{rs[0]}'); rs = rs[1:]
        return tmp
    def vpoll(loads, regs, tmp, sleep=0, first_issued=False, tags=False, dbg=None, first_cnt=0):
        l = lab('vp'); d = lab('vd'); w = lab('vw')
        a('s_mov_b32 s30, 0')
        if first_issued: a(f's_waitcnt vmcnt({first_cnt})\ns_branch {w}')
        a(f'{l}:')
        for x in loads: a(x)
        a('s_add_u32 s30, s30, 1')
        a('s_waitcnt vmcnt(0)')
        if first_issued: a(f'{w}:')
        if dbg is not None and cfg.stamps:
            p, q_, n_ = dbg
            a(f's_mov_b64 s[{64+2*p}:{65+2*p}], s[{64+2*q_}:{65+2*q_}]')
            stamp(q_); a('s_waitcnt lgkmcnt(0)')
            a(f's_add_u32 s{64+2*n_}, s64, s30\ns_mov_b32 s{65+2*n_}, s65')
        if tags:
            m = red3('max', regs, tmp)
            if len(list(regs)) > 1:
                n = red3('min', regs, tmp + 1)
                a(f'v_cmp_ne_u32 vcc, s33, v{m}\nv_cmp_ne_u32 s[34:35], s33, v{n}\ns_or_b64 vcc, vcc, s[34:35]')
            else:
                a(f'v_cmp_ne_u32 vcc, s33, v{m}')
        else:
            m = red3('max', regs, tmp)
            a(f'v_cmp_eq_u32 vcc, -1, v{m}')
        a(f's_cbranch_vccz {d}')
        if sleep: a(f's_sleep {sleep}')
        a(f's_cmp_lt_u32 s30, {LIMIT}\ns_cbranch_scc1 {l}')
        a(f'{d}:')
    def mpoll(items, tmp, first_issued=False):
        l = lab('mp'); d = lab('md')
        a('s_mov_b32 s30, 0')
        if not first_issued:
            for ld, regs in items: a(ld)
        a(f'{l}:')
        a('s_waitcnt vmcnt(0)')
        ms = []
        for k, (ld, regs) in enumerate(items):
            ms.append(red3('max', regs, tmp + k))
        for k, m in enumerate(ms):
            a(f'v_cmp_eq_u32 s[{48+2*k}:{49+2*k}], -1, v{m}')
        n = len(items)
        if n == 1:
            a('s_cmp_eq_u64 s[48:49], 0\ns_cbranch_scc1 ' + d)
        else:
            a('s_or_b64 s[34:35], s[48:49], s[50:51]')
            for k in range(2, n): a(f's_or_b64 s[34:35], s[34:35], s[{48+2*k}:{49+2*k}]')
            a(f's_cbranch_scc0 {d}')
        for k, (ld, regs) in enumerate(items):
            a(f's_mov_b64 exec, s[{48+2*k}:{49+2*k}]')
            a(ld)
        a('s_mov_b64 exec, -1')
        a(f's_add_u32 s30, s30, 1\ns_cmp_lt_u32 s30, {LIMIT}\ns_cbranch_scc1 {l}')
        a('s_waitcnt vmcnt(0)')
        a(f'{d}:')
    def pspin(va, vd):
        l = lab('ps'); d = lab('pd')
        a(f'v_mov_b32 {va}, {QF}\ns_mov_b32 s30, 0')
        a(f'{l}:')
        a(f'ds_read_b32 {vd}, {va} offset:4\ns_add_u32 s30, s30, 1\ns_waitcnt lgkmcnt(0)')
        a(f'v_cmp_ne_u32 vcc, 4, {vd}\ns_cbranch_vccz {d}')
        a(f's_sleep 1\ns_cmp_lt_u32 s30, {LIMIT*8}\ns_cbranch_scc1 {l}')
        a(f'{d}:')
    def dma_u1(lo, hi, size, RS, sbase, region, setup=True, i0=0, i1=8):
        if setup:
            a('v_bfe_u32 v10, v1, 4, 1\nv_and_b32 v12, 7, v1\nv_xor_b32 v10, v10, v12')
            a('s_and_b32 s27, s4, 4\nv_xor_b32 v10, s27, v10')
            a(f'v_lshrrev_b32 v2, 3, v1\nv_mul_u32_u24 v2, {RS}, v2\nv_xor_b32 v12, 2, v10')
            a('v_lshl_add_u32 v12, v12, 4, v2\nv_lshl_add_u32 v2, v10, 4, v2')
        srd(20, lo, hi, size)
        if cfg.xp & 4:
            a(f'v_lshlrev_b32 v2, 4, v1\nv_mov_b32 v12, v2\ns_lshl_b32 s27, s3, 16\ns_lshl_b32 s28, s4, 13\ns_add_u32 s27, s27, s28\ns_add_u32 s27, s27, {(region and RS == 8192) * 2097152}')
            RS = 128
        else: a(f's_mul_i32 s27, s4, {64*RS}\ns_add_u32 s27, s27, {sbase}')
        if i0: a(f's_add_u32 s27, s27, {8*RS*i0}')
        a(f's_lshl_b32 s28, s4, 13')
        if region + i0: a(f's_add_u32 s28, s28, {region + 1024*i0}')
        for i in range(i0, i1):
            a('s_mov_b32 m0, s28')
            if i < i1-1: a('s_add_u32 s28, s28, 1024')
            a(f'buffer_load_dwordx4 v{12 if i & 1 else 2}, s[20:23], s27 offen {cfg.NT} lds')
            if i < i1-1: a(f's_add_u32 s27, s27, {8*RS}')

    def dma_w(i0, i1, setup=True):
        if setup:
            a('s_and_b32 s6, s4, 1\ns_lshl_b32 s6, s6, 6\ns_and_b32 s7, s4, 4\ns_lshl_b32 s7, s7, 5\ns_or_b32 s6, s6, s7')
            a('v_lshlrev_b32 v2, 4, v1\nv_and_b32 v2, 0x1f0, v2\nv_and_b32 v10, 32, v1\nv_xor_b32 v2, v2, v10\nv_xor_b32 v2, s6, v2\nv_lshl_add_u32 v2, v10, 5, v2')
        srd(20, 's50', 's51', 4096*1024)
        if cfg.xp & 4: a(f'v_lshlrev_b32 v2, 4, v1\ns_lshl_b32 s27, s3, 17\ns_lshl_b32 s28, s4, 10\ns_add_u32 s27, s27, s28\ns_add_u32 s27, s27, {8192*i0}')
        else: a(f's_lshl_b32 s27, s4, 11\ns_add_u32 s27, s27, s24\ns_add_u32 s27, s27, {16384*i0}')
        a(f's_lshl_b32 s28, s4, 10\ns_add_u32 s28, s28, {8192*i0}')
        for i in range(i0, i1):
            a('s_mov_b32 m0, s28')
            if i < i1-1: a('s_add_u32 s28, s28, 8192')
            a(f'buffer_load_dwordx4 v2, s[20:23], s27 offen {cfg.NT} lds')
            if i < i1-1: a(f's_add_u32 s27, s27, {8192 if cfg.xp & 4 else 16384}')
    a('s_cmp_ge_u32 s2, 256\ns_cbranch_scc1 L_end')
    stamp(0)
    a('v_lshrrev_b32 v1, 6, v0')
    a('s_load_dwordx4 s[8:11], s[0:1], 8')
    a('s_load_dwordx4 s[12:15], s[0:1], 104')
    a('s_lshr_b32 s3, s2, 3\ns_and_b32 s5, s2, 7' if not cfg.tx else f's_lshr_b32 s3, s2, 3\ns_xor_b32 s5, s2, {cfg.tx}\ns_and_b32 s5, s5, 7')
    a('v_readfirstlane_b32 s4, v1')
    a('v_and_b32 v1, 63, v0')
    a('s_cmp_eq_u32 s5, 0\ns_cbranch_scc1 L_hearly')
    a('s_mul_i32 s3, s3, 7\ns_add_u32 s3, s3, s5\ns_sub_u32 s3, s3, 1')
    a('s_cmp_lt_u32 s3, 32\ns_cbranch_scc1 L_hearly')
    a('L_stream:')
    a('s_sub_u32 s6, s3, 32')
    a('s_and_b32 s24, s6, 15\ns_lshr_b32 s25, s6, 4')
    g = gtab(); gp = [(v + 128) & 255 for v in g]
    assert all(-128 <= v < 128 for v in g)
    a(f's_mov_b32 s26, {sum(gp[i] << (8*i) for i in range(4)):#x}\ns_mov_b32 s27, {sum(gp[4+i] << (8*i) for i in range(3)):#x}')
    def glook(dst, src):
        a(f's_mul_i32 {dst}, {src}, 37\ns_lshr_b32 {dst}, {dst}, 8\ns_mul_i32 {dst}, {dst}, 7\ns_sub_u32 {src}, {src}, {dst}')
        a(f's_lshl_b32 {src}, {src}, 3\ns_lshr_b64 s[28:29], s[26:27], {src}\ns_and_b32 {dst}, s28, 255')
    a('s_lshl_b32 s6, s24, 2\ns_add_u32 s6, s6, 16\ns_mul_i32 s7, s6, 37\ns_lshr_b32 s7, s7, 8\ns_mul_i32 s7, s7, 7\ns_sub_u32 s6, s6, s7')
    a('s_lshl_b32 s7, s6, 3\ns_lshr_b64 s[28:29], s[26:27], s7\ns_and_b32 s30, s28, 255')
    a('s_add_u32 s7, s6, 12'); glook('s31', 's7')
    a('s_add_u32 s6, s6, s25\ns_add_u32 s7, s6, 1'); glook('s34', 's6'); glook('s35', 's7')
    a('s_sub_u32 s31, s30, s31\ns_add_u32 s31, s31, 8192\ns_mul_i32 s31, s31, 21846')
    a('s_mul_i32 s6, s31, s25\ns_add_u32 s7, s6, s31\ns_lshr_b32 s6, s6, 18\ns_lshr_b32 s7, s7, 18')
    a('s_add_u32 s6, s6, s34\ns_add_u32 s7, s7, s35\ns_sub_u32 s31, s7, s6\ns_sub_u32 s6, s6, s30')
    a('s_lshl_b32 s22, s31, 8\ns_lshl_b32 s6, s6, 8\ns_lshl_b32 s7, s24, 21\ns_add_u32 s6, s6, s7')
    a('s_mov_b32 s23, 0x20000')
    a('s_cmp_ge_u32 s4, 4\ns_cbranch_scc1 L_vwave')
    if cfg.prio: a('s_setprio 3')
    if cfg.rot & 1: a('s_add_u32 s4, s4, s24\ns_and_b32 s4, s4, 3')
    a('v_lshrrev_b32 v7, 4, v1')
    a('v_and_b32 v15, 15, v1')
    a('v_lshlrev_b32 v6, 2, v7\nv_xor_b32 v6, v6, v15')
    a('v_lshlrev_b32 v8, 8, v7')
    a('v_lshl_add_u32 v2, v6, 4, v8')
    for t in (1, 2, 3): a(f'v_xor_b32 v{2+t}, {16*t}, v2')
    if cfg.xp & 2:
        for t in range(4): a(f'v_lshlrev_b32 v{2+t}, 4, v1')
    a(f's_mul_i32 s27, s4, {512*cfg.RK}\ns_mul_i32 s28, s4, {KW}')
    nk = [chunk_start(p, c+1) - chunk_start(p, c) for p in range(16) for c in range(12)]
    assert 80 <= cfg.RK <= 96 and min(nk) - 7*cfg.RK >= 80 and max(nk) - 7*cfg.RK <= cfg.RK
    a(f's_add_u32 s44, s27, {256*cfg.RK}\ns_add_u32 s45, s44, {256*cfg.RK}\ns_min_u32 s45, s45, s22\ns_mov_b32 s22, s44')
    if cfg.pe:
        a(f's_lshl_b32 s26, s24, 14\ns_lshl_b32 s7, s25, 10\ns_add_u32 s26, s26, s7\ns_lshl_b32 s7, s4, 8\ns_add_u32 s26, s26, s7\ns_add_u32 s26, s26, {OP}')
        a('v_mov_b32 v156, -1\nv_lshl_add_u32 v157, v1, 2, s26')
    a('s_waitcnt lgkmcnt(0)')
    if cfg.pe and not cfg.xp & 32: a('global_store_dword v157, v156, s[14:15] sc1')
    a('s_add_u32 s20, s8, s6\ns_addc_u32 s21, s9, 0')
    a('s_mov_b32 s29, 0')
    stamp(5)
    a('L_kdma:')
    a('s_mov_b32 m0, s28')
    a('s_add_u32 s28, s28, 4096\ns_add_u32 s29, s29, 1')
    for t in range(4):
        a(f'buffer_load_dwordx4 v{2+t}, s[20:23], s27 offen offset:{1024*t} {cfg.NT} lds')
        if cfg.thS < 63: a(f's_waitcnt vmcnt({cfg.thS})')
    a('s_add_u32 s27, s27, 4096')
    a('s_cmp_eq_u32 s29, 6\ns_cselect_b32 s27, s44, s27\ns_cselect_b32 s22, s45, s22')
    a('s_cmp_lt_u32 s29, 9\ns_cbranch_scc1 L_kdma')
    epoch_load()
    a('v_and_b32 v6, 3, v15\nv_lshlrev_b32 v6, 2, v6\nv_lshrrev_b32 v9, 2, v15\nv_add_u32 v6, v6, v9')
    a('v_lshlrev_b32 v10, 8, v6')
    a('v_lshl_add_u32 v6, v7, 4, v10')
    if cfg.p1c: a('v_lshlrev_b32 v6, 4, v1')
    for gi in range(3):
        for s in range(4):
            r = 96 + 16*gi + 4*s
            a(f'buffer_load_dwordx4 v[{r}:{r+3}], v6, s[20:23], s27 offen offset:{(1024 if cfg.p1c else 64)*s} {cfg.NT}')
            if cfg.thS < 63 and 4*gi + s < 11: a(f's_waitcnt vmcnt({cfg.thS})')
        if gi < 2: a('s_add_u32 s27, s27, 4096')
    if not cfg.pe:
        srd(16, 's14', 's15', WS_SZ)
        a(f's_lshl_b32 s26, s24, 14\ns_lshl_b32 s6, s25, 10\ns_add_u32 s26, s26, s6\ns_lshl_b32 s6, s4, 8\ns_add_u32 s26, s26, s6\ns_add_u32 s26, s26, {OP}')
        a('v_mov_b32 v156, -1\nv_lshlrev_b32 v157, 2, v1')
        if not cfg.xp & 32: a('buffer_store_dword v156, v157, s[16:19], s26 offen sc1')
    else: srd(16, 's14', 's15', WS_SZ)
    a(f's_and_b32 s7, s24, 7\ns_lshl_b32 s6, s7, 12\ns_lshr_b32 s7, s24, 3\ns_lshl_b32 s7, s7, 11\ns_add_u32 s27, s6, s7\ns_add_u32 s27, s27, {QO}')
    a('v_lshlrev_b32 v12, 4, v1')
    qloads = [f'buffer_load_dwordx4 v[{32+4*k}:{35+4*k}], v12, s[16:19], s27 offen offset:{1024*k} sc1' for k in range(2)]
    if not cfg.qlate:
        a('s_cmp_lg_u32 s4, 0\ns_cbranch_scc1 L_nq1' if not cfg.xp & 1024 else 's_branch L_nq1')
        for x in qloads: a(x)
        a('L_nq1:')
    stamp(1)
    a('s_barrier')
    if cfg.xp & 512: a('s_waitcnt vmcnt(0)\ns_branch L_xs')
    a(f's_mul_i32 s28, s4, {KW}')
    a('v_and_b32 v11, 3, v15\nv_xor_b32 v11, v11, v7')
    a('v_lshl_add_u32 v11, v9, 2, v11')
    a('v_lshl_add_u32 v11, v11, 4, v10\nv_add_u32 v8, s28, v11')
    for s in (1, 2, 3): a(f'v_xor_b32 v{8+s}, {64*s}, v8')
    a(f's_mul_i32 s6, s4, 1536\ns_add_u32 s6, s6, {PREG}')
    a('v_lshrrev_b32 v13, 3, v15\nv_mul_u32_u24 v13, 768, v13' if cfg.il else 'v_lshrrev_b32 v13, 3, v15\nv_lshlrev_b32 v13, 8, v13')
    a('v_and_b32 v14, 3, v15\nv_lshl_add_u32 v13, v14, 6, v13\nv_lshl_add_u32 v13, v7, 4, v13')
    a('v_bfe_u32 v14, v15, 2, 1\nv_lshl_add_u32 v13, v14, 3, v13\nv_add_u32 v13, s6, v13')
    for u in range(4):
        a(f's_mov_b32 s{36+2*u}, {0x000F000F << (4*u):#x}\ns_mov_b32 s{37+2*u}, {0x000F000F << (4*u):#x}')
    a(f's_sub_u32 s6, s45, s44\ns_lshr_b32 s6, s6, 8\ns_sub_u32 s6, s6, 80')
    a(f'v_sub_u32 v160, {cfg.RK - 80}, v7\nv_cndmask_b32 v161, 64, v160, s[38:39]\nv_sub_u32 v160, s6, v7\nv_cndmask_b32 v163, 64, v160, s[42:43]')
    a('s_waitcnt lgkmcnt(0)')
    epoch_tag()
    stamp(2)
    a(f'v_mov_b32 v14, {QF}')
    a('s_cmp_lg_u32 s4, 0\ns_cbranch_scc1 L_nq2')
    if cfg.qlate: a(f's_waitcnt vmcnt({cfg.qlate - 1})')
    if cfg.xp & 1: a('s_waitcnt vmcnt(0)')
    else: vpoll(qloads, [33, 35, 37, 39], 164, first_issued=not cfg.qlate, tags=True, sleep=cfg.qslp, dbg=(1, 2, 15))
    a(f'v_lshlrev_b32 v12, 3, v1\nv_add_u32 v12, {QL}, v12\nv_mov_b32 v16, 1')
    a('ds_write2_b32 v12, v32, v34 offset0:0 offset1:1\nds_write2_b32 v12, v36, v38 offset0:128 offset1:129')
    a('s_waitcnt lgkmcnt(0)\nds_write_b32 v14, v16')
    a('s_branch L_nq3')
    a('L_nq2:')
    a('s_mov_b32 s30, 0')
    a('L_qspin:')
    a('ds_read_b32 v16, v14\ns_add_u32 s30, s30, 1\ns_waitcnt lgkmcnt(0)')
    a('v_cmp_ne_u32 vcc, 1, v16\ns_cbranch_vccz L_nq3')
    a(f's_sleep 1\ns_cmp_lt_u32 s30, {LIMIT*8}\ns_cbranch_scc1 L_qspin')
    a('L_nq3:')
    a(f'v_and_b32 v12, 3, v15\nv_lshlrev_b32 v12, 8, v12\nv_lshl_add_u32 v12, v7, 4, v12\nv_add_u32 v12, {QL}, v12')
    for k in range(4): a(f'ds_read_b128 v[{16+4*k}:{19+4*k}], v12 offset:{64*k}')
    a('s_waitcnt vmcnt(0) lgkmcnt(0)')
    stamp(3)
    order = [(u, dd) for u in range(4) for dd in range(3)]
    ldsg = [4*dd+u for (u, dd) in order if 4*dd+u < 9]
    def kread(k):
        gi = ldsg[k]; buf = 64 + 16*(k & 1)
        for s in range(4):
            a(f'ds_read_b128 v[{buf+4*s}:{buf+4*s+3}], v{8+s} offset:{4096*gi}')
    kread(0)
    k = 0
    for (u, dd) in order:
        gi = 4*dd + u
        mq = 32 + 16*(u & 1)
        if u == 0 and dd == 0:
            for r in range(16): a(f'v_cndmask_b32 v{mq+r}, 0, v{16+r}, s[36:37]')
        if gi < 9:
            src = 64 + 16*(k & 1)
            if k + 1 < len(ldsg):
                kread(k + 1); a('s_waitcnt lgkmcnt(4)')
            else:
                a('s_waitcnt lgkmcnt(0)')
            k += 1
        else:
            src = 96 + 16*(gi - 9)
        D = 144 + 4*dd
        for s in range(4):
            c = '0' if (u == 0 and s == 0) else f'v[{D}:{D+3}]'
            a(f'v_mfma_f32_16x16x32_bf16 v[{D}:{D+3}], v[{src+4*s}:{src+4*s+3}], v[{mq+4*s}:{mq+4*s+3}], {c}')
            if u < 3 and dd < 2:
                mq2 = 32 + 16*((u+1) & 1)
                for r in (8*dd + 2*s, 8*dd + 2*s + 1):
                    a(f'v_cndmask_b32 v{mq2+r}, 0, v{16+r}, s[{38+2*u}:{39+2*u}]')
    a('v_mov_b32 v160, 0xff800000')
    for dd, th in ((1, 161), (2, 163)):
        for r in range(4):
            a(f'v_cmp_lt_i32 vcc, {4*r}, v{th}\nv_cndmask_b32 v{144+4*dd+r}, v160, v{144+4*dd+r}, vcc')
    a('v_max3_f32 v156, v144, v145, v146\nv_max3_f32 v157, v147, v148, v149')
    a('v_max3_f32 v158, v150, v151, v152\nv_max3_f32 v159, v153, v154, v155')
    a('v_max3_f32 v156, v156, v157, v158\nv_max_f32 v156, v156, v159')
    def xreduce(op, r, t):
        a(f'{op}_dpp v{r}, v{r}, v{r} row_ror:4 row_mask:0xf bank_mask:0xf')
        a(f'{op}_dpp v{r}, v{r}, v{r} row_ror:8 row_mask:0xf bank_mask:0xf')
        a(f'v_mov_b32 v{t}, v{r}\nv_permlane16_swap_b32 v{r}, v{t}\n{op} v{r}, v{r}, v{t}')
        a(f'v_mov_b32 v{t}, v{r}\nv_permlane32_swap_b32 v{r}, v{t}\n{op} v{r}, v{r}, v{t}')
    xreduce('v_max_f32', 156, 157)
    a(f's_mov_b32 s6, {f2u(128**-0.5 * LOG2E)}')
    a('v_mul_f32 v158, s6, v156')
    for r in range(12): a(f'v_fma_f32 v{144+r}, v{144+r}, s6, -v158')
    for r in range(12): a(f'v_exp_f32 v{144+r}, v{144+r}')
    for dd in range(3):
        D = 144 + 4*dd
        a(f'v_cvt_pk_bf16_f32 v{32+2*dd}, v{D}, v{D+1}\nv_cvt_pk_bf16_f32 v{33+2*dd}, v{D+2}, v{D+3}')
        a(f'ds_write_b64 v13, v[{32+2*dd}:{33+2*dd}] offset:{(256 if cfg.il else 512)*dd}')
    a('v_add_f32 v159, v144, v145')
    for r in range(2, 12): a(f'v_add_f32 v159, v159, v{144+r}')
    xreduce('v_add_f32', 159, 157)
    a(f's_lshl_b32 s6, s4, 5\ns_add_u32 s6, s6, {ST}')
    a('v_lshl_add_u32 v14, v1, 3, s6')
    a('s_mov_b64 exec, 15\nds_write_b64 v14, v[158:159]\ns_mov_b64 exec, -1')
    a('s_waitcnt lgkmcnt(0)')
    a(f'v_mov_b32 v14, {QF}\nv_mov_b32 v16, 1\ns_mov_b64 exec, 1\nds_add_u32 v14, v16 offset:4\ns_mov_b64 exec, -1')
    stamp(4)
    pspin('v14', 'v16')
    a(f'v_and_b32 v14, 3, v1\nv_lshlrev_b32 v14, 3, v14\nv_add_u32 v14, {ST}, v14')
    for w in range(4): a(f'ds_read_b64 v[{16+2*w}:{17+2*w}], v14 offset:{32*w}')
    a('v_lshrrev_b32 v2, 2, v1\nv_lshrrev_b32 v3, 4, v1\nv_add_u32 v3, v3, v1\nv_and_b32 v3, 3, v3')
    a('v_lshlrev_b32 v2, 5, v2\nv_lshl_add_u32 v2, v3, 3, v2')
    a(f's_lshl_b32 s6, s4, 9\ns_add_u32 s6, s6, {SCR}\nv_add_u32 v2, s6, v2')
    a('s_waitcnt lgkmcnt(0)')
    a('v_max3_f32 v24, v16, v18, v20\nv_max_f32 v24, v24, v22')
    for w in range(4): a(f'v_sub_f32 v{25+w}, v{16+2*w}, v24')
    for w in range(4): a(f'v_exp_f32 v{25+w}, v{25+w}')
    a('v_mul_f32 v29, v25, v17\nv_fmac_f32 v29, v26, v19\nv_fmac_f32 v29, v27, v21\nv_fmac_f32 v29, v28, v23')
    a('v_log_f32 v30, v29\nv_rcp_f32 v29, v29\nv_mov_b32 v31, s33')
    a('v_add_f32 v30, v30, v24')
    a(f's_lshl_b32 s6, s24, 11\ns_lshl_b32 s7, s25, 7\ns_add_u32 s6, s6, s7\ns_add_u32 s6, s6, {LSE}')
    a('v_lshlrev_b32 v3, 3, v1')
    a('s_cmp_eq_u32 s4, 0\ns_cselect_b32 exec_lo, 0xffff, 0\ns_mov_b32 exec_hi, 0\ns_cbranch_execz L_nlse')
    if cfg.diag is not None and cfg.diag >= 90: a('s_mov_b32 exec_lo, 0xff00\nv_mov_b32 v30, s64\ns_mov_b32 exec_lo, 0xffff')
    a('buffer_store_dwordx2 v[30:31], v3, s[16:19], s6 offen sc1')
    a('L_nlse:')
    a('s_mov_b64 exec, -1')
    for w in range(4): a(f'v_mul_f32 v{32+w}, v{25+w}, v29')
    for w in range(4): a(f'v_readlane_b32 s{36+w}, v{32+w}, s4')
    a('L_xs:')
    a('v_lshlrev_b32 v3, 2, v1')
    a('s_barrier')
    stamp(6)
    for v in range(8): a(f'ds_read_b64 v[{48+2*v}:{49+2*v}], v2 offset:{2048*v}')
    for v in range(8):
        a(f's_waitcnt lgkmcnt({7-v})')
        w = v >> 1; sp = 36 + (w & ~1)
        mod = 'op_sel_hi:[1,0,1]' if (w & 1) == 0 else 'op_sel:[0,1,0] op_sel_hi:[1,1,1]'
        mod2 = 'op_sel_hi:[1,0]' if (w & 1) == 0 else 'op_sel:[0,1] op_sel_hi:[1,1]'
        if v < 2: a(f'v_pk_mul_f32 v[{40+2*v}:{41+2*v}], v[{48+2*v}:{49+2*v}], s[{sp}:{sp+1}] {mod2}')
        else: a(f'v_pk_fma_f32 v[{40+2*(v&1)}:{41+2*(v&1)}], v[{48+2*v}:{49+2*v}], s[{sp}:{sp+1}], v[{40+2*(v&1)}:{41+2*(v&1)}] {mod}')
    a('v_pk_add_f32 v[40:41], v[40:41], v[42:43]')
    a('v_cvt_pk_bf16_f32 v40, v40, v41')
    a(f'buffer_store_dword v40, v3, s[16:19], s26 offen {cfg.ost}')
    stamp(7)
    if cfg.stamps:
        a('s_cmp_lg_u32 s4, 0\ns_cbranch_scc1 L_end')
        stamps_out(8, 0)
    a('s_endpgm')

    a('L_vwave:')
    a('s_sub_u32 s4, s4, 4')
    if cfg.rot & 2: a('s_add_u32 s4, s4, s24\ns_and_b32 s4, s4, 7')
    if cfg.rot & 4: a('s_lshr_b32 s7, s24, 1\ns_add_u32 s4, s4, s7\ns_and_b32 s4, s4, 7')
    a('v_lshlrev_b32 v2, 4, v1')
    a(f'v_mov_b32 v16, 0\nv_mov_b32 v17, 0\nv_mov_b32 v18, 0\nv_mov_b32 v19, 0\nv_add_u32 v9, {ZERO}, v2')
    a('s_mov_b32 exec_lo, -1\ns_mov_b32 exec_hi, 3\nds_write_b128 v9, v[16:19]\ns_mov_b64 exec, -1')
    a(f'v_mov_b32 v9, {QF}\nds_write_b64 v9, v[16:17]')
    a(f's_mul_i32 s7, s4, 768\ns_add_u32 s7, s7, {PREG}')
    a('v_and_b32 v9, 3, v1\nv_lshlrev_b32 v9, 6, v9\nv_lshrrev_b32 v10, 4, v1\nv_lshl_add_u32 v9, v10, 4, v9\nv_add_u32 v9, s7, v9')
    a(f'v_mov_b32 v11, {ZERO}')
    for x in range(4):
        a(f's_mov_b32 s34, {0x000F000F << (4*x):#x}\ns_mov_b32 s35, s34')
        a(f'v_cndmask_b32 v{3+x}, v11, v9, s[34:35]')
    a('v_and_b32 v7, 15, v1\nv_lshrrev_b32 v8, 2, v7\nv_add_u32 v8, v8, v10\nv_and_b32 v8, 3, v8')
    a('v_lshlrev_b32 v7, 5, v7\nv_lshl_add_u32 v7, v8, 3, v7')
    a(f's_lshl_b32 s7, s4, 11\ns_add_u32 s7, s7, {SCR}\nv_add_u32 v7, s7, v7\nv_add_u32 v8, 1024, v7')
    a('s_mov_b32 s36, 0x05040100\ns_mov_b32 s37, 0x07060302')
    a(f's_mul_i32 s27, s4, {256*cfg.RK}\ns_add_u32 s7, s27, {256*cfg.RK}\ns_min_u32 s22, s22, s7')
    a('s_waitcnt lgkmcnt(0)')
    a('s_add_u32 s20, s10, s6\ns_addc_u32 s21, s11, 0')
    if cfg.stamps: srd(16, 's14', 's15', WS_SZ)
    if cfg.tlbw:
        a(f'v_lshlrev_b32 v12, 12, v1\ns_mov_b64 exec, {(1 << cfg.tlbw) - 1}\nbuffer_load_dword v13, v12, s[20:23], s27 offen {cfg.NT}\ns_mov_b64 exec, -1')
    a('s_barrier')
    stamp(1)
    for i in range(24):
        r = 72 + 4*i
        a(f'buffer_load_dwordx4 v[{r}:{r+3}], v2, s[20:23], s27 offen offset:{1024*(i&3)} {cfg.NT}')
        if cfg.thV < 63 and cfg.thV <= i < cfg.nth: a(f's_waitcnt vmcnt({cfg.thV})')
        if (i & 3) == 3 and i < 23: a(f's_add_u32 s27, s27, {61440 if (cfg.il and (i & 7) == 7) else 4096}')
    stamp(2)
    if cfg.xp & 512: a('s_waitcnt vmcnt(0)\ns_branch L_xv')
    pspin('v9', 'v10')
    stamp(3)
    def pread(t):
        buf = 40 + 16*(t & 1)
        for x in range(4): a(f'ds_read_b128 v[{buf+4*x}:{buf+4*x+3}], v{3+x} offset:{256*t}')
    pread(0); pread(1)
    for t in range(3):
        a(f's_waitcnt vmcnt({16-8*t})')
        if t == 2: stamp(4)
        vb = 72 + 32*t; pb = 40 + 16*(t & 1)
        for j in range(8):
            tb = 24 + 4*(j & 3)
            sel = 's37' if (j & 1) else 's36'
            for tt in range(4):
                a(f'v_perm_b32 v{tb+tt}, v{vb + 4*(2*tt+1) + (j>>1)}, v{vb + 4*(2*tt) + (j>>1)}, {sel}')
            if j == 0: a('s_waitcnt lgkmcnt(4)' if t == 0 else 's_waitcnt lgkmcnt(0)')
            if j > 0:
                jj = j - 1; tb2 = 24 + 4*(jj & 3); acc = 16 + 4*(jj & 1); x = jj >> 1
                c = '0' if (t == 0 and jj < 2) else f'v[{acc}:{acc+3}]'
                a(f'v_mfma_f32_16x16x32_bf16 v[{acc}:{acc+3}], v[{pb+4*x}:{pb+4*x+3}], v[{tb2}:{tb2+3}], {c}')
        a(f'v_mfma_f32_16x16x32_bf16 v[20:23], v[{pb+12}:{pb+15}], v[36:39], v[20:23]')
        if t == 0: pread(2)
    for r in range(4):
        ad = 7 + (r >> 1); o = 128*(r & 1)
        a(f'ds_write2_b32 v{ad}, v{16+r}, v{20+r} offset0:{o} offset1:{o+1}')
    a('s_waitcnt lgkmcnt(0)')
    a('L_xv:')
    stamp(5)
    a('s_barrier')
    if cfg.stamps:
        a('s_cmp_lg_u32 s4, 0\ns_cbranch_scc1 L_end')
        stamps_out(6, 8)
    a('s_endpgm')

    a('L_spare:')
    if cfg.xp & 2048: a('s_endpgm')
    if cfg.xp & 16: a('s_endpgm')
    if cfg.tlbw:
        a('s_cmp_lg_u32 s4, 9\ns_cbranch_scc1 L_sp1')
        a('s_load_dwordx2 s[36:37], s[0:1], 32\ns_load_dwordx2 s[40:41], s[0:1], 48\ns_load_dwordx2 s[44:45], s[0:1], 64\ns_load_dwordx2 s[48:49], s[0:1], 88')
        a('v_lshlrev_b32 v2, 16, v1\nv_lshlrev_b32 v3, 14, v1')
        a(f's_mov_b32 s38, {4096*1024}\ns_mov_b32 s39, 0x20000\ns_mov_b32 s42, {512*3584}\ns_mov_b32 s43, 0x20000\ns_mov_b32 s46, {1792*1024}\ns_mov_b32 s47, 0x20000\ns_mov_b32 s50, {512*6144}\ns_mov_b32 s51, 0x20000')
        a('s_waitcnt lgkmcnt(0)')
        srd(16, 's14', 's15', WS_SZ)
        a('buffer_load_dword v8, v3, s[16:19], 0 offen sc1')
        a('s_cmp_lg_u32 s5, 0\ns_cbranch_scc1 L_sp0')
        a('buffer_load_dword v4, v2, s[36:39], 0 offen nt\nbuffer_load_dword v5, v2, s[40:43], 0 offen nt\nbuffer_load_dword v6, v2, s[44:47], 0 offen nt')
        a('s_endpgm')
        a('L_sp0:')
        a('buffer_load_dword v7, v2, s[48:51], 0 offen nt')
        a('s_endpgm')
        a('L_sp1:')
    a('s_cmp_lg_u32 s5, 0\ns_cbranch_scc1 L_end')
    a('s_cmp_lg_u32 s4, 8\ns_cbranch_scc1 L_end')
    a('v_mov_b32 v4, -1\nv_mov_b32 v5, -1\nv_mov_b32 v6, -1\nv_mov_b32 v7, -1')
    a(f's_lshl_b32 s6, s3, 10\ns_add_u32 s6, s6, {WOUT}\nv_lshlrev_b32 v2, 4, v1\nv_add_u32 v2, s6, v2')
    a(f's_lshl_b32 s6, s3, 12\ns_add_u32 s6, s6, {MOUT}\nv_lshlrev_b32 v8, 4, v1\nv_add_u32 v8, s6, v8')
    a('s_waitcnt lgkmcnt(0)')
    a('global_store_dwordx4 v2, v[4:7], s[14:15] sc1')
    if cfg.owarm:
        a('s_cmp_lg_u32 s3, 31\ns_cbranch_scc1 L_sp3')
        a('s_load_dwordx2 s[36:37], s[0:1], 96\nv_lshlrev_b32 v9, 4, v1\ns_waitcnt lgkmcnt(0)')
        a('global_store_dwordx4 v9, v[4:7], s[36:37] sc1\nglobal_store_dwordx4 v9, v[4:7], s[36:37] offset:1024 sc1')
        if cfg.owarm > 1: a(f'v_add_u32 v9, {EPO + 64}, v9\ns_mov_b64 exec, 15\nglobal_store_dwordx4 v9, v[4:7], s[14:15] sc1\ns_mov_b64 exec, -1')
        a('L_sp3:')
    if not cfg.mtag:
        a('s_cmp_ge_u32 s3, 28\ns_cbranch_scc1 L_sp2')
        for i in range(4): a(f'global_store_dwordx4 v8, v[4:7], s[14:15] offset:{1024*i} sc1')
        a('L_sp2:')
    a('s_waitcnt vmcnt(0)')
    a('s_endpgm')

    AT=136; DD=32; Z=36; T=38; ZT=37; F0=40; F1=72; F2=104
    a('L_hearly:')
    a('s_cmp_lt_u32 s4, 8\ns_cbranch_scc1 L_hm')
    if cfg.warm:
        a('s_lshr_b32 s6, s2, 4\ns_xor_b32 s7, s4, 11\ns_or_b32 s6, s6, s7\ns_cbranch_scc1 L_spare')
        a('s_getpc_b64 s[36:37]\nL_pc:\ns_sub_u32 s36, s36, L_pc-L_stream\ns_subb_u32 s37, s37, 0\nv_lshlrev_b32 v2, 7, v1')
        a('s_mov_b32 s38, L_end-L_stream\ns_mov_b32 s39, 0x20000\ns_mov_b32 s6, 8192')
        a('s_waitcnt lgkmcnt(0)') if False else None
        a('buffer_load_dword v4, v2, s[36:39], 0 offen\nbuffer_load_dword v5, v2, s[36:39], s6 offen')
        a('s_endpgm')
    else:
        a('s_branch L_spare')
    a('L_hm:')
    if cfg.xp & 16:
        a('s_cmp_eq_u32 s5, 0\ns_cselect_b32 s6, 34, 24\ns_mov_b32 s7, 0x8000000\ns_cselect_b32 s7, 0x9000000, s7\ns_mul_i32 s27, s3, 288*1024\ns_add_u32 s27, s27, s7\ns_lshl_b32 s7, s4, 10\ns_add_u32 s27, s27, s7')
        a('v_lshlrev_b32 v2, 4, v1\ns_waitcnt lgkmcnt(0)')
        srd(20, 's14', 's15', 0x10000000)
        a('L_xl:\nbuffer_load_dwordx4 v[4:7], v2, s[20:23], s27 offen nt\ns_add_u32 s27, s27, 8192\ns_sub_u32 s6, s6, 1\ns_cmp_lg_u32 s6, 0\ns_cbranch_scc1 L_xl')
        a('s_endpgm')
    a('s_cmp_eq_u32 s5, 0')
    a('s_cselect_b32 s6, 88, 24')
    a('s_load_dwordx2 s[20:21], s[0:1], s6')
    a('s_mov_b32 s7, 8192\ns_cselect_b32 s7, 6144, s7')
    a('s_cselect_b32 s29, 2, 4')
    a('s_cselect_b32 s24, 5, 6')
    a('s_lshl_b32 s22, s7, 9')
    a('s_lshl_b32 s25, s3, 8')
    a('s_lshr_b32 s26, s3, 1\ns_lshl_b32 s26, s26, 7\ns_and_b32 s27, s3, 1\ns_mul_i32 s27, s27, 256*6144\ns_add_u32 s26, s26, s27')
    a('s_cmp_eq_u32 s5, 0\ns_cselect_b32 s25, s26, s25')
    a('v_bfe_u32 v10, v1, 4, 1\nv_and_b32 v12, 7, v1\nv_xor_b32 v10, v10, v12')
    a('s_and_b32 s27, s4, 4\nv_xor_b32 v10, s27, v10')
    a('v_lshrrev_b32 v2, 3, v1\nv_mul_u32_u24 v2, s7, v2\nv_xor_b32 v12, 2, v10')
    a('v_lshl_add_u32 v12, v12, 4, v2\nv_lshl_add_u32 v2, v10, 4, v2')
    a('s_mov_b32 s23, 0x20000')
    a('s_lshl_b32 s6, s4, s24\ns_mul_i32 s27, s6, s7\ns_add_u32 s27, s27, s25')
    a('s_lshl_b32 s28, s6, 7\ns_lshl_b32 s7, s7, 3')
    if cfg.xp & 4: a('v_lshlrev_b32 v2, 4, v1\nv_mov_b32 v12, v2\ns_lshl_b32 s27, s3, 16\ns_add_u32 s27, s27, s28\ns_mov_b32 s7, 1024')
    a('s_waitcnt lgkmcnt(0)')
    a('L_hdma:')
    a('s_mov_b32 m0, s28\ns_add_u32 s28, s28, 1024')
    a(f'buffer_load_dwordx4 v2, s[20:23], s27 offen {cfg.NT} lds')
    a('s_add_u32 s27, s27, s7\ns_mov_b32 m0, s28\ns_add_u32 s28, s28, 1024')
    a(f'buffer_load_dwordx4 v12, s[20:23], s27 offen {cfg.NT} lds')
    a('s_add_u32 s27, s27, s7\ns_sub_u32 s29, s29, 1\ns_cmp_lg_u32 s29, 0\ns_cbranch_scc1 L_hdma')
    a('L_helper:')
    epoch_load()
    if cfg.diag is not None: a(f's_load_dword s96, s[14:15], {XID+4}\ns_load_dword s97, s[14:15], {EPO}')
    a('s_load_dwordx2 s[44:45], s[0:1], 0')
    a('s_load_dwordx4 s[48:51], s[0:1], 24')
    a('s_load_dwordx4 s[52:55], s[0:1], 80')
    a('v_lshrrev_b32 v10, 3, v1\nv_and_b32 v11, 3, v1\nv_lshlrev_b32 v11, 1, v11\nv_lshl_add_u32 v10, v10, 3, v11')
    a('v_bfe_u32 v11, v1, 2, 1')
    a('s_lshl_b32 s6, s4, 6\nv_add_u32 v12, s6, v10')
    a('v_lshlrev_b32 v6, 1, v12\nv_lshl_add_u32 v6, v11, 10, v6')
    a(f'v_lshlrev_b32 v9, 2, v12\nv_lshl_add_u32 v9, v11, 11, v9\nv_add_u32 v9, {X1}, v9')
    a(f's_lshr_b32 s6, s4, 2\ns_mul_i32 s6, s6, 576\ns_and_b32 s7, s4, 3\ns_lshl_b32 s7, s7, 7\ns_add_u32 s6, s6, s7\ns_add_u32 s6, s6, {ACT}')
    a('v_mul_u32_u24 v7, 1152, v11\nv_lshl_add_u32 v7, v10, 1, v7\nv_add_u32 v7, s6, v7')
    a('v_lshrrev_b32 v13, 3, v1\nv_lshlrev_b32 v13, 2, v13\nv_lshl_add_u32 v13, v11, 5, v13')
    a(f'v_add_u32 v13, {STAT}, v13')
    a('s_waitcnt lgkmcnt(0)')
    srd(16, 's14', 's15', WS_SZ)
    epoch_tag()
    a('global_load_dword v17, v6, s[52:53]')
    a('global_load_dword v16, v6, s[44:45]')
    a('s_cmp_eq_u32 s5, 0\ns_cbranch_scc1 L_t2')
    a('s_add_u32 s24, s25, 128')
    dma_u1('s48', 's49', 512*8192, 8192, 's24', R1)
    a('s_branch L_h2')
    a('L_t2:')
    a('s_lshr_b32 s26, s3, 1\ns_lshl_b32 s24, s26, 18\ns_and_b32 s6, s3, 1\ns_lshl_b32 s6, s6, 9\ns_add_u32 s24, s24, s6')
    dma_w(8, 8 + cfg.pre)
    a('L_h2:')
    a('v_lshrrev_b32 v10, 4, v1\nv_bfe_u32 v11, v1, 2, 2\nv_lshl_add_u32 v3, v10, 3, v11')
    a('v_bfe_u32 v11, v1, 1, 1\nv_lshl_add_u32 v3, v11, 8, v3\nv_lshlrev_b32 v3, 7, v3')
    a('v_bfe_u32 v12, v1, 3, 2\nv_lshl_add_u32 v12, v11, 2, v12\nv_xor_b32 v12, s4, v12\nv_lshl_add_u32 v3, v12, 4, v3')
    a('v_and_b32 v12, 1, v1\nv_lshl_add_u32 v3, v12, 3, v3')
    a(f'v_lshl_add_u32 v4, v12, 1, v11\nv_mul_u32_u24 v4, 576, v4\nv_lshl_add_u32 v4, v10, 4, v4\nv_add_u32 v4, {ACT}, v4')
    a('v_lshlrev_b32 v5, 3, v0')
    a('s_lshl_b32 s6, s4, 7\nv_lshl_add_u32 v8, v1, 3, s6\nv_lshlrev_b32 v28, 4, v0')
    a(f'v_and_b32 v10, 0x37, v1\nv_cmp_eq_u32 vcc, 1, v10\nv_mov_b32 v18, {f2u(1e-5)}\nv_cndmask_b32 v18, 0, v18, vcc')
    a(f'v_lshlrev_b32 v10, 2, v1\nv_add_u32 v10, {STAT}, v10\nv_mov_b32 v{T+1}, s33\nv_mov_b32 v{ZT}, s33')
    a('s_mov_b32 exec_lo, -1\ns_mov_b32 exec_hi, 0xffff\nds_write_b32 v10, v18\ns_mov_b64 exec, -1')

    def tr_u1(F, region, steps=8, ad=None):
        if ad is None:
            if region: a(f'v_add_u32 v10, {region}, v3')
            ad = 'v10' if region else 'v3'
        for s in range(steps):
            for hh in range(2):
                a(f'ds_read_b64_tr_b16 v[{F+4*s+2*hh}:{F+4*s+2*hh+1}], {ad} offset:{4096*s + 512*hh}')
    def gemv(Fs, ad='v4', fill=(), off=0, steps=8, Ds=None):
        if isinstance(Fs, int): Fs = [Fs]
        if Ds is None: Ds = [DD]
        fill = list(fill)
        for s in range(steps): a(f'ds_read_b128 v[{AT+4*s}:{AT+4*s+3}], {ad} offset:{64*s+off}')
        per = (len(fill) + steps - 2) // (steps - 1)
        for s in range(steps):
            a(f's_waitcnt lgkmcnt({steps-1-s})')
            for F, D in zip(Fs, Ds):
                c = '0' if s == 0 else f'v[{D}:{D+3}]'
                a(f'v_mfma_f32_16x16x32_bf16 v[{D}:{D+3}], v[{AT+4*s}:{AT+4*s+3}], v[{F+4*s}:{F+4*s+3}], {c}')
            for _ in range(per):
                if fill: a(fill.pop(0))
        for x in fill: a(x)
    def sgemv(Fs, Ds, ad, idx, off=0, fill=(), steps=4, lead=2):
        fill = list(fill)
        for s in range(steps): a(f'ds_read_b128 v[{AT+4*s}:{AT+4*s+3}], {ad} offset:{64*s+off}')
        per = lead
        for s in range(steps):
            a(f's_waitcnt lgkmcnt({steps-1-s})')
            for F, D in zip(Fs, Ds):
                a(f'v_smfmac_f32_16x16x64_bf16 v[{D}:{D+3}], v[{AT+4*s}:{AT+4*s+3}], v[{F+8*s}:{F+8*s+7}], {idx}')
            for _ in range(per):
                if fill: a(fill.pop(0))
        for x in fill: a(x)
    def fold(D=DD, z=Z):
        a(f'v_add_f32_dpp v{z}, v{D+2}, v{D} row_ror:8 row_mask:0xf bank_mask:0x3')
        a(f'v_add_f32_dpp v{z}, v{D+1}, v{D+3} row_ror:8 row_mask:0xf bank_mask:0xc')
    def publish_tag(z, soff):
        a(f's_mov_b64 exec, 0xffff\nbuffer_store_dwordx2 v[{Z}:{Z+1}], v8, s[16:19], {soff} offen sc1\ns_mov_b64 exec, -1')
    def store2(text):
        if not cfg.fast: a(text + ' sc1'); return
        l = lab('fs'); d = lab('fd')
        a(f's_cbranch_scc1 {l}')
        a(text + ' sc1'); a(f's_branch {d}')
        a(f'{l}:'); a(text + ' ' + cfg.lst); a(f'{d}:')
    def unpack(lo, hi, src):
        a(f'v_lshlrev_b32 v{lo}, 16, v{src}\nv_and_b32 v{hi}, 0xffff0000, v{src}')
    def red6(vals, off, TT, scale=None, ad='v13'):
        r01, r23, r45, z = TT
        for r, (e, o) in zip((r01, r23, r45), ((vals[0], vals[1]), (vals[2], vals[3]), (vals[4], vals[5]))):
            a(f'v_add_f32_dpp v{r}, v{e}, v{e} row_ror:8 row_mask:0xf bank_mask:0x3')
        for r, (e, o) in zip((r01, r23, r45), ((vals[0], vals[1]), (vals[2], vals[3]), (vals[4], vals[5]))):
            a(f'v_add_f32_dpp v{r}, v{o}, v{o} row_ror:8 row_mask:0xf bank_mask:0xc')
        a(f'v_permlane16_swap_b32 v{r01}, v{r23}\nv_permlane16_swap_b32 v{r45}, v{z}')
        a(f'v_add_f32 v{r01}, v{r01}, v{r23}\nv_add_f32 v{r45}, v{r45}, v{z}')
        a(f'v_permlane32_swap_b32 v{r01}, v{r45}\nv_add_f32 v{r01}, v{r01}, v{r45}')
        a(f'v_add_f32_dpp v{r01}, v{r01}, v{r01} quad_perm:[1,0,3,2] row_mask:0xf bank_mask:0xf')
        a(f'v_add_f32_dpp v{r01}, v{r01}, v{r01} quad_perm:[2,3,0,1] row_mask:0xf bank_mask:0xf')
        a(f's_mov_b32 exec_lo, 0x11111111\ns_mov_b32 exec_hi, 0x1111')
        if scale: a(f'v_mul_f32 v{r01}, v{r01}, {scale}')
        a(f'ds_add_f32 {ad}, v{r01} offset:{off}\ns_mov_b64 exec, -1')

    stamp(1)
    def silu():
        unpack(18, 19, 17)
        a(f's_mov_b32 s6, {f2u(-LOG2E)}')
        a('v_mul_f32 v20, s6, v18\nv_mul_f32 v21, s6, v19\nv_exp_f32 v20, v20\nv_exp_f32 v21, v21')
        a('v_add_f32 v20, 1.0, v20\nv_add_f32 v21, 1.0, v21\nv_rcp_f32 v20, v20\nv_rcp_f32 v21, v21')
        a('v_mul_f32 v18, v18, v20\nv_mul_f32 v19, v19, v21\nv_cvt_pk_bf16_f32 v18, v18, v19')
        a(f'ds_write_b32 v7, v18 offset:{ACTC-ACT}')
        unpack(14, 15, 16)
    a('s_cmp_eq_u32 s5, 0\ns_cbranch_scc1 L_tail')
    mloads = [f'buffer_load_dwordx4 v[{AT+4*k}:{AT+4*k+3}], v28, s[16:19], s{60+k} offen sc1' for k in range(4)]
    for k in range(4): a(f's_mov_b32 s{60+k}, {MODA + 8192*k}')
    if not cfg.mlate:
        for x in mloads: a(x)
    a(f's_waitcnt vmcnt({8 if cfg.mlate else 12})')
    stamp(2)
    silu()
    a('v_add_f32 v18, v14, v15\nv_mul_f32 v19, v14, v14\nv_fmac_f32 v19, v15, v15')
    a('s_waitcnt lgkmcnt(0)\ns_barrier')
    red6([18, 19, 18, 19, 18, 19], STAT2 - STAT, (24, 25, 26, 27))
    tr_u1(F0, R0)
    a('s_waitcnt lgkmcnt(0)\ns_barrier')
    stamp(3)
    a('s_lshl_b32 s24, s3, 7\ns_add_u32 s24, s24, 2048')
    if cfg.xp & 128:
        dma_u1('s54', 's55', 512*6144, 6144, 's24', R0)
        a('s_endpgm')
    if cfg.mlate:
        if cfg.mlate > 1: a(f's_waitcnt vmcnt({cfg.mlate})')
        for x in mloads: a(x)
    if cfg.apre: dma_u1('s54', 's55', 512*6144, 6144, 's24', R0, i1=cfg.apre)
    a(f'v_bfe_u32 v10, v1, 2, 1\nv_lshlrev_b32 v10, 5, v10\nv_add_u32 v10, {STAT2}, v10')
    a('ds_read_b64 v[18:19], v10\ns_waitcnt lgkmcnt(0)')
    a(f's_mov_b32 s6, {f2u(1/512)}\ns_mov_b32 s7, {f2u(1e-5)}')
    a('v_mul_f32 v18, s6, v18\nv_mul_f32 v19, s6, v19\nv_fma_f32 v19, -v18, v18, v19\nv_add_f32 v19, s7, v19\nv_rsq_f32 v19, v19')
    a('v_sub_f32 v20, v14, v18\nv_sub_f32 v21, v15, v18\nv_mul_f32 v20, v20, v19\nv_mul_f32 v21, v21, v19')
    a('v_bfe_u32 v30, v1, 1, 2\nv_lshlrev_b32 v30, 3, v30\nv_bfe_u32 v11, v1, 3, 1\nv_lshl_add_u32 v30, v11, 9, v30\nv_bfe_u32 v11, v1, 4, 1\nv_lshl_add_u32 v30, v11, 8, v30')
    a(f's_lshl_b32 s6, s4, 5\ns_add_u32 s6, s6, {X1}\nv_add_u32 v30, s6, v30')
    a(f'v_lshlrev_b32 v31, 4, v1\nv_add_u32 v29, {X1}, v31\nv_lshrrev_b32 v11, 5, v1\nv_mul_u32_u24 v11, 1536, v11\nv_add_u32 v31, v31, v11')
    vpoll(mloads, range(AT+1, AT+16, 2), 22, first_issued=True, tags=True, sleep=cfg.slpB, first_cnt=cfg.apre)
    stamp(4)
    a(f'v_add_f32 v22, v{AT}, v{AT+8}\nv_add_f32 v23, v{AT+2}, v{AT+10}\nv_add_f32 v24, v{AT+4}, v{AT+12}\nv_add_f32 v25, v{AT+6}, v{AT+14}')
    a('v_add_f32 v24, 1.0, v24\nv_add_f32 v25, 1.0, v25\nv_fma_f32 v20, v20, v24, v22\nv_fma_f32 v21, v21, v25, v23')
    a('v_cvt_pk_bf16_f32 v20, v20, v21\nds_write_b32 v7, v20\ns_waitcnt lgkmcnt(0)\ns_barrier')
    stamp(5)
    tr_u1(F1, R1)
    gemv([F0, F1], Ds=[DD, 24])
    a(f'v_add_f32_dpp v{Z}, v{DD+2}, v{DD} row_ror:8 row_mask:0x1 bank_mask:0x3')
    a(f'v_add_f32_dpp v{Z}, v{DD+1}, v{DD+3} row_ror:8 row_mask:0x1 bank_mask:0xc')
    a(f'v_add_f32_dpp v{Z}, v26, v24 row_ror:8 row_mask:0x2 bank_mask:0x3')
    a(f'v_add_f32_dpp v{Z}, v25, v27 row_ror:8 row_mask:0x2 bank_mask:0xc')
    a(f'v_mov_b32_dpp v{T}, v{Z} quad_perm:[1,1,3,3] row_mask:0xf bank_mask:0xf')
    a(f's_mov_b64 exec, 0x55555555')
    a(f'v_cvt_pk_bf16_f32 v{T}, v{Z}, v{T}')
    a(f'ds_write_b64 v30, v[{T}:{T+1}]\ns_mov_b64 exec, -1')
    a('s_waitcnt lgkmcnt(0)\ns_barrier')
    a('s_cmp_lg_u32 s4, 0\ns_cbranch_scc1 L_nqp')
    a(f's_lshr_b32 s6, s3, 2\ns_lshl_b32 s6, s6, 12\ns_and_b32 s7, s3, 3\ns_lshl_b32 s7, s7, 9\ns_add_u32 s6, s6, s7\ns_add_u32 s6, s6, {QO}')
    a('ds_read_b128 v[24:27], v29\ns_waitcnt lgkmcnt(0)')
    a('buffer_store_dwordx4 v[24:27], v31, s[16:19], s6 offen sc1')
    a('L_nqp:')
    stamp(6)
    if cfg.qobs:
        a('s_cmp_lg_u32 s4, 0\ns_cbranch_scc1 L_nobs')
        a(f's_lshr_b32 s6, s3, 2\ns_lshl_b32 s6, s6, 12\ns_add_u32 s6, s6, {QO}\nv_lshlrev_b32 v10, 4, v1')
        a('s_waitcnt vmcnt(0)'); stamp(2)
        vpoll([f'buffer_load_dwordx4 v[{AT+4*k}:{AT+4*k+3}], v10, s[16:19], s6 offen offset:{1024*k} sc1' for k in range(2)], range(AT+1, AT+8, 2), 22, tags=True)
        stamp(1)
        a('L_nobs:')
    if cfg.apre < 8: dma_u1('s54', 's55', 512*6144, 6144, 's24', R0, i0=cfg.apre)
    a('s_waitcnt vmcnt(0)\ns_barrier')
    tr_u1(F0, R0)
    gemv(F0, off=ACTC-ACT); fold()
    a(f's_lshl_b32 s6, s3, 10\ns_add_u32 s6, s6, {MODB}')
    publish_tag(Z, 's6')
    stamp(7)
    if cfg.stamps:
        a('s_cmp_lg_u32 s4, 0\ns_cbranch_scc1 L_end')
        stamps_out(8, 0)
    a('s_endpgm')

    a('L_tail:')
    a(f's_waitcnt vmcnt({cfg.pre})')
    stamp(2)
    silu()
    a('s_load_dwordx8 s[52:59], s[0:1], 48')
    a('s_load_dwordx2 s[46:47], s[0:1], 96')
    if cfg.diag is not None: a('s_waitcnt lgkmcnt(0)\ns_load_dwordx2 s[98:99], s[46:47], 0')
    a('v_bfe_u32 v11, v1, 1, 1\nv_lshlrev_b32 v10, 14, v11\nv_sub_u32 v10, v3, v10')
    a('v_mul_u32_u24 v11, 320, v11\nv_sub_u32 v11, v4, v11\ns_and_b32 s6, s3, 1\ns_mul_i32 s6, s6, 576\nv_add_u32 v11, s6, v11')
    a('s_waitcnt lgkmcnt(0)\ns_barrier')
    tr_u1(F0, R0, 4, 'v10')
    gemv(F0, 'v11', off=ACTC-ACT, steps=4); fold()
    a('s_and_b32 s6, s3, 1\ns_lshl_b32 s6, s6, 14\ns_lshr_b32 s7, s3, 1\ns_lshl_b32 s7, s7, 10\ns_add_u32 s6, s6, s7')
    publish_tag(Z, 's6')
    stamp(3)
    dma_w(8 + cfg.pre, 16, setup=False)
    a('s_barrier')
    dma_w(0, 8, setup=False)
    a('v_lshrrev_b32 v10, 4, v1\nv_bfe_u32 v11, v1, 2, 2\nv_lshl_add_u32 v10, v10, 3, v11\nv_lshlrev_b32 v10, 9, v10')
    a('v_and_b32 v11, 3, v1\nv_lshl_add_u32 v10, v11, 3, v10')
    a('v_bfe_u32 v11, v1, 2, 3\nv_lshlrev_b32 v11, 5, v11\ns_lshl_b32 s6, s4, 6\nv_xor_b32 v11, s6, v11')
    a('v_add_u32 v22, v10, v11\nv_xor_b32 v11, 32, v11\nv_add_u32 v30, v10, v11')
    def tr_w(half):
        for cg, ad in ((0, 22), (1, 30)):
            if half: a(f'v_add_u32 v{10+cg}, {R1}, v{ad}')
            for s_ in range(4):
                for hh in range(2):
                    r = (F0, F1)[cg] + 4*(4*half + s_) + 2*hh
                    a(f'ds_read_b64_tr_b16 v[{r}:{r+1}], v{10+cg if half else ad} offset:{16384*s_ + 2048*hh}')
    a(f's_getreg_b32 s6, hwreg(HW_REG_XCC_ID)\ns_and_b32 s31, s6, 15\nv_mov_b32 v{T}, s31')
    a(f's_lshl_b32 s6, s3, 7\ns_add_u32 s6, s6, {XID}\nv_lshlrev_b32 v10, 3, v1')
    a('s_cmp_eq_u32 s4, 0\ns_cselect_b32 exec_lo, 0xffff, 0\ns_mov_b32 exec_hi, 0\ns_cbranch_execz L_nxid')
    a(f'buffer_store_dwordx2 v[{T}:{T+1}], v10, s[16:19], s6 offen sc1')
    a('L_nxid:')
    a('s_mov_b64 exec, -1')
    a('s_waitcnt vmcnt(8)\ns_barrier')
    stamp(4)
    tr_w(1)
    a('s_waitcnt lgkmcnt(0)\ns_barrier')
    a('s_cmp_ge_u32 s3, 28\ns_cbranch_scc1 L_nom1')
    a('s_lshl_b32 s24, s3, 7')
    dma_u1('s52', 's53', 512*3584, 3584, 's24', R1)
    stamp(5)
    a('s_waitcnt vmcnt(8)\ns_branch L_m1d')
    a('L_nom1:')
    a('s_waitcnt vmcnt(0)')
    a('L_m1d:')
    a('s_barrier')
    tr_w(0)
    a('s_waitcnt lgkmcnt(0)\ns_barrier')
    stamp(7)
    a('s_cmp_ge_u32 s3, 28\ns_cbranch_scc1 L_nom2')
    srd(20, 's56', 's57', 1792*1024)
    a('s_and_b32 s6, s4, 1\ns_lshl_b32 s6, s6, 7\nv_lshlrev_b32 v2, 4, v1\nv_xor_b32 v2, s6, v2')
    a('v_xor_b32 v10, 32, v2\nv_xor_b32 v11, 64, v2\nv_xor_b32 v12, 96, v2')
    a(f's_lshl_b32 s27, s3, 16\ns_lshl_b32 s28, s4, 13\ns_add_u32 s27, s27, s28')
    for hh in range(2):
        a('s_mov_b32 m0, s28')
        for i in range(4): a(f'buffer_load_dwordx4 v{(2,10,11,12)[i]}, s[20:23], s27 offen offset:{1024*i} {cfg.NT} lds')
        if hh == 0: a('s_add_u32 s27, s27, 4096\ns_add_u32 s28, s28, 4096')
    stamp(6)
    if cfg.xp & 256: a('s_endpgm')
    if cfg.touch:
        a(f's_lshl_b32 s6, s3, 12\ns_add_u32 s6, s6, {MOUT}\nbuffer_load_dwordx2 v[{DD}:{DD+1}], v5, s[16:19], s6 offen sc1')
    a('v_and_b32 v10, 7, v1\nv_lshlrev_b32 v10, 1, v10')
    a('s_and_b32 s6, s3, 15\ns_lshl_b32 s6, s6, 5\ns_lshl_b32 s7, s4, 2\ns_add_u32 s6, s6, s7')
    a('v_and_b32 v11, 1, v1\nv_lshl_add_u32 v11, v11, 1, s6\nv_bfe_u32 v12, v1, 4, 1\nv_add_u32 v23, v11, v12')
    a('v_lshlrev_b32 v11, 1, v23\nglobal_load_ushort v24, v11, s[58:59]')
    a('s_lshl_b32 s6, s3, 7\ns_lshl_b32 s7, s4, 4\ns_add_u32 s6, s6, s7')
    a('v_add_u32 v11, s6, v10\nglobal_load_ushort v25, v11, s[54:55]')
    a('L_nom2:')
    if cfg.xp & 256: a('s_endpgm')
    if cfg.touch:
        a(f's_lshl_b32 s6, s3, 10\ns_add_u32 s6, s6, {WOUT}\nv_lshlrev_b32 v10, 4, v1\nbuffer_load_dword v{DD+2}, v10, s[16:19], s6 offen sc1')
    a(f'v_and_b32 v10, 31, v1\nv_lshlrev_b32 v10, 7, v10\ns_mov_b32 s6, {XID}')
    vpoll([f'buffer_load_dwordx2 v[{AT}:{AT+1}], v10, s[16:19], s6 offen sc1'], [AT+1], None, sleep=cfg.slp, tags=True)
    a(f'v_cmp_ne_u32 vcc, s31, v{AT}\ns_cmp_eq_u64 vcc, 0\ns_cselect_b32 s32, 1, 0')
    a('s_cmp_ge_u32 s3, 28\ns_cbranch_scc1 L_wst')
    a('s_barrier')
    tr_u1(F2, R1)
    a('v_lshrrev_b32 v11, 3, v23\nv_lshlrev_b32 v11, 7, v11\nv_and_b32 v12, 7, v23\nv_lshl_add_u32 v11, v12, 3, v11\nv_bfe_u32 v12, v1, 3, 1\nv_lshl_add_u32 v11, v12, 6, v11')
    a(f's_mov_b32 s63, {MODB + 24*1024}')
    for k in range(3): a(f's_mov_b32 s{60+k}, {MODB + 8192*k}')
    a('v_lshlrev_b32 v24, 16, v24\nv_lshlrev_b32 v25, 16, v25')
    a(f'v_mov_b32 v{AT+15}, 0x3f803f80\nds_write_b32 v7, v{AT+15} offset:{ACTM-ACT+3*TS}')
    stamp(1)
    vpoll([f'buffer_load_dwordx4 v[{AT+4*k}:{AT+4*k+3}], v28, s[16:19], s{60+k} offen sc1' for k in range(3)] +
          [f'buffer_load_dwordx2 v[{AT+12}:{AT+13}], v11, s[16:19], s63 offen sc1'], range(AT+1, AT+14, 2), AT+14, sleep=cfg.slpM, tags=True)
    stamp(8)
    a(f'v_mov_b32 v23, v{AT+12}\nv_mov_b32 v16, v{AT}\nv_mov_b32 v17, v{AT+2}')
    a(f'v_add_f32 v18, 1.0, v{AT+8}\nv_add_f32 v19, 1.0, v{AT+10}\nv_cvt_pk_bf16_f32 v{AT+1}, v{AT+4}, v{AT+6}\nv_cvt_pk_bf16_f32 v{AT+3}, v18, v19')
    unpack(18, 19, AT+3); unpack(20, 21, AT+1)
    a(f'ds_write_b32 v7, v{AT+3} offset:{ACTM-ACT+TS}\nds_write_b32 v7, v{AT+1} offset:{ACTM-ACT+2*TS}')
    t = AT + 16
    a(f'v_add_f32 v{t}, v18, v19\nv_mul_f32 v{t+1}, v18, v18\nv_fmac_f32 v{t+1}, v19, v19')
    a(f'v_mul_f32 v{t+2}, v18, v20\nv_fmac_f32 v{t+2}, v19, v21\nv_add_f32 v{t+3}, v20, v21')
    a(f'v_mul_f32 v{t+4}, v20, v20\nv_fmac_f32 v{t+4}, v21, v21')
    red6([t, t+1, t+2, t+3, t+4, t+4], STAT3 - STAT, (t+6, t+7, t+8, t+9))
    a(f'v_bfe_u32 v10, v1, 2, 2\nv_mul_u32_u24 v10, {TS}, v10\nv_add_u32 v10, v10, v4')
    a('s_waitcnt lgkmcnt(0)\ns_barrier')
    gemv(F2, 'v10', off=ACTM-ACT); fold()
    a(f'v_mov_b32 v26, v{Z}\nv_permlane16_swap_b32 v{Z}, v26')
    a(f'v_mov_b32 v27, v{Z}\nv_mov_b32 v28, v26\nv_permlane32_swap_b32 v{Z}, v27\nv_permlane32_swap_b32 v26, v28')
    a('L_wst:')
    if cfg.xp & 64: a('s_endpgm')
    if cfg.dirty:
        a(f's_lshl_b32 s6, s3, 15\ns_add_u32 s6, s6, 0xA0000\nv_lshlrev_b32 v10, 4, v0')
        srd(20, 's14', 's15', 0x200000)
        for i in range(cfg.dirty):
            a(f'buffer_store_dwordx4 v[40:43], v10, s[20:23], s6 offen\ns_add_u32 s6, s6, 8192')
    a('s_lshr_b32 s6, s4, 2\ns_lshl_b32 s24, s6, 3\ns_lshr_b32 s7, s26, 1\ns_add_u32 s24, s24, s7')
    a('s_and_b32 s7, s26, 1\ns_lshl_b32 s7, s7, 1\ns_bfe_u32 s28, s4, 0x10001\ns_add_u32 s7, s7, s28')
    a(f's_lshl_b32 s27, s24, 11\ns_lshl_b32 s29, s7, 3\ns_add_u32 s27, s27, s29\ns_add_u32 s27, s27, {LSE}')
    a(f's_lshl_b32 s60, s24, 14\ns_lshl_b32 s29, s7, 8\ns_add_u32 s60, s60, s29\ns_and_b32 s29, s4, 1\ns_lshl_b32 s29, s29, 7\ns_add_u32 s60, s60, s29\ns_add_u32 s60, s60, {OP}')
    a('s_add_u32 s61, s60, 4096')
    a(f's_mul_i32 s6, s6, 1152\ns_and_b32 s29, s4, 3\ns_lshl_b32 s29, s29, 6\ns_add_u32 s6, s6, s29\ns_add_u32 s6, s6, {ACT}')
    a('v_and_b32 v31, 1, v1\nv_mul_u32_u24 v31, 576, v31\nv_bfe_u32 v10, v1, 1, 4\nv_lshl_add_u32 v31, v10, 2, v31\nv_add_u32 v31, s6, v31')
    a('s_mov_b32 s62, 6144\nv_and_b32 v2, 31, v1\nv_lshlrev_b32 v2, 2, v2\nv_lshrrev_b32 v10, 5, v1\nv_mad_u32_u24 v2, v10, s62, v2')
    a(f's_lshl_b32 s29, s3, 10\ns_add_u32 s29, s29, {WOUT}')
    a('v_and_b32 v11, 2, v1\nv_cmp_eq_u32 vcc, 0, v11\nv_mov_b32 v11, 0xeeee\nv_mov_b32 v22, 0x4444\nv_cndmask_b32 v22, v11, v22, vcc')
    for r in range(8): a(f'v_mov_b32 v{DD+r}, 0')
    a('v_bfe_u32 v8, v1, 1, 2\nv_lshlrev_b32 v8, 4, v8\nv_bfe_u32 v11, v1, 4, 1\nv_lshl_add_u32 v8, v11, 6, v8\nv_bfe_u32 v11, v1, 3, 1\nv_lshl_add_u32 v8, v11, 7, v8')
    a('v_lshl_add_u32 v8, v10, 2, v8\ns_lshr_b32 s6, s4, 1\ns_lshl_b32 s6, s6, 8\ns_and_b32 s7, s4, 1\ns_lshl_b32 s7, s7, 3\ns_add_u32 s6, s6, s7\nv_add_u32 v8, s6, v8')
    a(f'v_lshlrev_b32 v10, 7, v1\nv_mov_b32 v{AT}, 0xff800000')
    stamp(9)
    a(f's_mov_b64 exec, {(1 << NCH) - 1:#x}')
    vpoll([f'buffer_load_dwordx2 v[{AT}:{AT+1}], v10, s[16:19], s27 offen sc1'], [AT+1], None, sleep=cfg.slp, tags=True)
    a('s_mov_b64 exec, -1')
    if cfg.diag is not None and cfg.diag >= 90:
        op = 'min' if cfg.diag == 99 else 'max'
        a(f'v_mov_b32 v{AT+2}, s64\ns_mov_b64 exec, {(1 << NCH) - 1:#x}\nbuffer_load_dword v{AT+2}, v10, s[16:19], s27 offen offset:64 sc1\ns_waitcnt vmcnt(0)\ns_mov_b64 exec, -1')
        a(f'v_subrev_u32 v{AT+2}, s64, v{AT+2}')
        if cfg.diag >= 98:
            for r in (1, 2, 4, 8): a(f'v_{op}_i32_dpp v{AT+2}, v{AT+2}, v{AT+2} row_ror:{r} row_mask:0xf bank_mask:0xf')
        a(f'v_readlane_b32 s92, v{AT+2}, {0 if cfg.diag >= 98 else cfg.diag - 90}\ns_add_u32 s92, s92, 250\ns_add_u32 s92, s92, s64')
    a(f'v_mov_b32 v{AT+1}, v{AT}')
    for r in (1, 2, 4, 8): a(f'v_max_f32_dpp v{AT+1}, v{AT+1}, v{AT+1} row_ror:{r} row_mask:0xf bank_mask:0xf')
    a(f'v_sub_f32 v{AT}, v{AT}, v{AT+1}\nv_exp_f32 v{AT}, v{AT}\nv_mov_b32 v{AT+1}, v{AT}')
    for r in (1, 2, 4, 8): a(f'v_add_f32_dpp v{AT+1}, v{AT+1}, v{AT+1} row_ror:{r} row_mask:0xf bank_mask:0xf')
    a(f'v_rcp_f32 v{AT+1}, v{AT+1}\nv_mul_f32 v{AT}, v{AT}, v{AT+1}')
    a('v_lshrrev_b32 v10, 5, v1\nv_mul_u32_u24 v10, 24, v10')
    for i in range(6):
        a(f'ds_bpermute_b32 v{AT+24+i}, v10, v{AT} offset:{4*i}')
    a('s_waitcnt lgkmcnt(0)')
    wl = [f'buffer_load_dword v{AT+c}, v2, s[16:19], s{60+(c>>2)} offen offset:{1024*(c&3)} sc1' for c in range(6)]
    if cfg.mp & 1: mpoll([(wl[c], [AT+c]) for c in range(6)], AT+12)
    else: vpoll(wl, [AT+c for c in range(6)], AT+12)
    stamp(10)
    acc = AT + 20
    for c in range(6):
        tq = AT + 8 + 2*c
        unpack(tq, tq+1, AT+c)
    for c in range(6):
        tq = AT + 8 + 2*c; wp = AT + 24 + (c & ~1)
        mod = 'op_sel_hi:[1,0,1]' if (c & 1) == 0 else 'op_sel:[0,1,0] op_sel_hi:[1,1,1]'
        mod2 = 'op_sel_hi:[1,0]' if (c & 1) == 0 else 'op_sel:[0,1] op_sel_hi:[1,1]'
        ac = acc + 2*(c & 1)
        if c < 2: a(f'v_pk_mul_f32 v[{ac}:{ac+1}], v[{tq}:{tq+1}], v[{wp}:{wp+1}] {mod2}')
        else: a(f'v_pk_fma_f32 v[{ac}:{ac+1}], v[{tq}:{tq+1}], v[{wp}:{wp+1}], v[{ac}:{ac+1}] {mod}')
    a(f'v_pk_add_f32 v[{acc}:{acc+1}], v[{acc}:{acc+1}], v[{acc+2}:{acc+3}]')
    a(f'v_permlane32_swap_b32 v{acc}, v{acc+1}')
    a(f'v_add_f32 v{acc}, v{acc}, v{acc+1}')
    a(f'v_mov_b32 v{acc+1}, v{acc}\nv_permlane32_swap_b32 v{acc}, v{acc+1}')
    a(f's_mov_b64 exec, 0xffffffff\nv_cvt_pk_bf16_f32 v{acc}, v{acc}, v{acc+1}\nds_write_b32 v31, v{acc}\ns_mov_b64 exec, -1')
    fst(7)
    a('s_waitcnt lgkmcnt(0)\ns_barrier')
    fst(8)
    sgemv([F0, F1], [DD, Z], 'v4', 'v22')
    a(f'v_add_f32_dpp v10, v{DD}, v{DD+2} quad_perm:[0,1,2,3] row_mask:0x1 bank_mask:0xf')
    a(f'v_add_f32_dpp v10, v{DD+1}, v{DD+3} quad_perm:[0,1,2,3] row_mask:0x2 bank_mask:0xf')
    a(f'v_add_f32_dpp v10, v{Z}, v{Z+2} quad_perm:[0,1,2,3] row_mask:0x4 bank_mask:0xf')
    a(f'v_add_f32_dpp v10, v{Z+1}, v{Z+3} quad_perm:[0,1,2,3] row_mask:0x8 bank_mask:0xf')
    a('s_cmp_lg_u32 s32, 0')
    a('v_mov_b32_dpp v11, v10 quad_perm:[1,1,3,3] row_mask:0xf bank_mask:0xf')
    a('s_mov_b32 exec_lo, 0x55555555\ns_mov_b32 exec_hi, 0x55555555')
    a('v_cvt_pk_bf16_f32 v11, v10, v11')
    store2('buffer_store_dword v11, v8, s[16:19], s29 offen')
    a('s_mov_b64 exec, -1')
    stamp(11)
    a('s_cmp_ge_u32 s3, 28\ns_cbranch_scc1 L_hdone')

    a('v_lshrrev_b32 v10, 4, v1\nv_bfe_u32 v11, v1, 2, 2\nv_lshl_add_u32 v10, v10, 3, v11\nv_lshlrev_b32 v10, 10, v10')
    a(f'v_and_b32 v11, 3, v1\nv_lshl_add_u32 v10, v11, 3, v10')
    a('v_bfe_u32 v11, v1, 2, 3\nv_lshlrev_b32 v11, 5, v11\ns_lshl_b32 s6, s4, 7\nv_xor_b32 v11, s6, v11')
    for cg in range(4):
        a(f'v_xor_b32 v12, {32*cg}, v11\nv_add_u32 v{60+cg}, v10, v12')
    for cg in range(4):
        for s in range(2):
            for hh in range(2):
                r = F1 + (cg*2 + s)*4 + 2*hh
                a(f'ds_read_b64_tr_b16 v[{r}:{r+1}], v{60+cg} offset:{32768*s + 4096*hh}')
    a(f's_lshl_b32 s60, s4, 8\ns_add_u32 s60, s60, {WOUT}\ns_add_u32 s61, s60, 4096')
    a('v_and_b32 v59, 15, v1\nv_lshlrev_b32 v59, 4, v59\nv_lshrrev_b32 v58, 4, v1\nv_lshl_add_u32 v59, v58, 13, v59')
    wloads = [f'buffer_load_dwordx4 v[{AT+4*k}:{AT+4*k+3}], v59, s[16:19], s{60+(k>>1)} offen offset:{2048*(k&1)} sc1' for k in range(4)]
    for x in wloads: a(x)
    a(f'v_bfe_u32 v10, v1, 3, 1\nv_lshlrev_b32 v40, 5, v10\nv_add_u32 v40, {STAT}, v40')
    a(f'ds_read_b128 v[68:71], v40 offset:{STAT3-STAT}\nds_read_b32 v30, v40 offset:{STAT3-STAT+16}')
    a('v_bfe_u32 v11, v1, 1, 1\nv_lshl_add_u32 v41, v10, 1, v11\nv_lshlrev_b32 v41, 6, v41\nv_and_b32 v12, 4, v1\nv_add_u32 v41, v41, v12')
    a(f'v_and_b32 v12, 1, v1\nv_lshl_add_u32 v41, v12, 1, v41\ns_lshl_b32 s6, s4, 3\ns_add_u32 s6, s6, {HID}\nv_add_u32 v41, s6, v41')
    a(f'v_lshl_add_u32 v42, v12, 1, v11\nv_lshlrev_b32 v42, 6, v42\nv_and_b32 v45, 48, v1\nv_add_u32 v42, v42, v45\nv_add_u32 v42, {HID}, v42')
    a(f'v_and_b32 v43, 7, v1\nv_mul_u32_u24 v43, 288, v43\nv_add_u32 v43, v43, v45\nv_add_u32 v43, {AS}, v43')
    a('v_bfe_u32 v46, v1, 2, 1\nv_lshl_add_u32 v46, v12, 2, v46\nv_mul_u32_u24 v46, 288, v46\nv_lshl_add_u32 v46, v11, 2, v46\nv_lshrrev_b32 v11, 3, v1\nv_lshl_add_u32 v46, v11, 3, v46')
    a(f's_lshr_b32 s6, s4, 2\ns_mul_i32 s6, s6, 576\ns_and_b32 s7, s4, 3\ns_lshl_b32 s7, s7, 6\ns_add_u32 s6, s6, s7\ns_add_u32 s6, s6, {AS}\nv_add_u32 v46, s6, v46')
    a('v_and_b32 v11, 4, v1\nv_cmp_eq_u32 vcc, 0, v11\nv_mov_b32 v11, 0xeeee\nv_mov_b32 v47, 0x4444\nv_cndmask_b32 v47, v11, v47, vcc')
    for r in range(4): a(f'v_mov_b32 v{DD+r}, 0')
    a('s_and_b32 s6, s3, 15\ns_lshl_b32 s6, s6, 5\ns_lshl_b32 s7, s4, 2\ns_add_u32 s6, s6, s7')
    a('v_and_b32 v11, 1, v1\nv_lshl_add_u32 v11, v11, 1, s6')
    a('v_lshrrev_b32 v12, 1, v1\nv_lshlrev_b32 v44, 12, v12\nv_lshl_add_u32 v44, v11, 3, v44')
    a('v_bfe_u32 v12, v1, 4, 1\nv_add_u32 v11, v11, v12')
    a(f'v_lshlrev_b32 v48, 11, v10\nv_lshl_add_u32 v48, v11, 2, v48\nv_add_u32 v48, {X1}, v48')
    a('v_lshlrev_b32 v49, 10, v10\nv_lshl_add_u32 v49, v11, 1, v49')
    a(f's_add_u32 s20, s14, {MOUT}\ns_addc_u32 s21, s15, 0\ns_mov_b32 s22, {28*4096}\ns_mov_b32 s23, 0x20000')
    a(f's_lshl_b32 s24, s3, 12')
    a(f's_mov_b32 s40, {f2u(1/512)}\ns_mov_b32 s41, {f2u(1e-5)}\ns_mov_b32 s42, {f2u(0.044715)}\ns_mov_b32 s43, {f2u(-2*math.sqrt(2/math.pi)*LOG2E)}')
    a('v_and_b32 v50, 1, v1\nv_lshlrev_b32 v50, 4, v50\nv_mov_b32 v51, 0x3f80\nv_lshlrev_b32 v50, v50, v51\nv_bfe_u32 v51, v1, 2, 2')
    for i in range(4): a(f'v_cmp_eq_u32 vcc, {i}, v51\nv_cndmask_b32 v{64+i}, 0, v50, vcc')
    a('s_waitcnt lgkmcnt(0)')
    a(f's_mov_b32 s45, {f2u(2/512)}\nv_mov_b32 v50, s41')
    a('v_mul_f32 v68, s40, v68\nv_mul_f32 v69, s40, v69\nv_mul_f32 v70, s45, v70\nv_mul_f32 v71, s40, v71\nv_fma_f32 v30, v30, s40, v50')
    a(f'v_lshrrev_b32 v50, 3, v1\nv_mov_b32 v51, s40\nv_cmp_eq_u32 vcc, 5, v50\nv_mov_b32 v58, s45\nv_cndmask_b32 v51, v51, v58, vcc\nv_cmp_eq_u32 vcc, 4, v50\nv_cndmask_b32 v51, v51, -v58, vcc')
    a('v_mov_b32 v29, v9\nv_mov_b32 v31, v13')
    Q = (0, 60, 6, 10)
    for q_ in Q:
        for r in range(4): a(f'v_mov_b32 v{q_+r}, 0')
    if cfg.mp & 2: mpoll([(wloads[k], range(AT+4*k, AT+4*k+4)) for k in range(4)], AT+20, first_issued=True)
    else: vpoll(wloads, [AT+k for k in range(16)], AT+20, first_issued=True)
    stamp(12)
    V = AT + 16
    for k in range(4):
        c0 = '0' if k == 0 else f'v[{V}:{V+3}]'
        a(f'v_mfma_f32_16x16x32_bf16 v[{V}:{V+3}], v[64:67], v[{AT+4*k}:{AT+4*k+3}], {c0}')
    s0, s1 = V, V+1
    x0, x1, a0, a1 = AT+12, AT+13, AT+14, AT+15
    a(f'v_fma_f32 v{x0}, v16, v{s0}, v14\nv_fma_f32 v{x1}, v17, v{s1}, v15')
    a(f'v_mul_f32 v{a0}, v{x0}, v18\nv_mul_f32 v{a1}, v{x1}, v19')
    a(f'v_cvt_pk_bf16_f32 v{AT}, v{a0}, v{a1}\nds_write_b32 v46, v{AT}\nds_write_b64 v29, v[{x0}:{x1}]')
    fst(1)
    t = AT + 20
    a(f'v_add_f32 v{t}, v{x0}, v{x1}\nv_mul_f32 v{t+1}, v{x0}, v{x0}\nv_add_f32 v{t+2}, v{a0}, v{a1}\nv_mul_f32 v{t+3}, v{a0}, v{a0}')
    a(f'v_mul_f32 v{t+4}, v{a0}, v18\nv_mul_f32 v{t+5}, v{a0}, v20')
    a(f'v_fmac_f32 v{t+1}, v{x1}, v{x1}\nv_fmac_f32 v{t+3}, v{a1}, v{a1}\nv_fmac_f32 v{t+4}, v{a1}, v19\nv_fmac_f32 v{t+5}, v{a1}, v21')
    red6([t, t+1, t+2, t+3, t+4, t+5], 0, (t+6, t+7, t+8, t+9), 'v51', 'v31')
    fst(2)
    a('s_waitcnt lgkmcnt(0)')
    fst(9)
    a('s_barrier')
    fst(3)
    a('ds_read_b128 v[52:55], v40\nds_read_b64 v[56:57], v40 offset:16')
    fill = [
        'v_fma_f32 v53, -v52, v52, v53',
        'v_fma_f32 v56, v52, v69, v56',
        'v_rsq_f32 v53, v53',
        'v_fma_f32 v54, -v52, v68, v54',
        'v_fma_f32 v55, v52, v56, v55',
        'v_fma_f32 v57, -v52, v70, v57',
        'v_fma_f32 v55, v53, v55, v57',
        'v_fma_f32 v54, v53, v54, v71',
        'v_mul_f32 v52, v52, v53',
        'v_fma_f32 v55, v53, v55, v30',
        'v_fma_f32 v56, -v52, v26, v27',
        'v_fma_f32 v55, -v54, v54, v55',
        'v_fma_f32 v56, -v54, v28, v56',
        'v_rsq_f32 v55, v55',
    ]
    sgemv([F2], [DD], 'v43', 'v47', fill=fill, lead=cfg.lead); fold()
    a(f'v_mov_b32 v{T}, v{Z}\nv_permlane16_swap_b32 v{Z}, v{T}\nv_add_f32 v{Z}, v{Z}, v{T}')
    fst(4)
    if cfg.mtag: a('v_mov_b32 v15, s33')
    ge = [f'v_fma_f32 v{Z}, v{Z}, v53, v56', f'v_fma_f32 v{Z}, v{Z}, v55, v25', f'v_mul_f32 v{T}, v{Z}, v{Z}', f'v_mul_f32 v{T+1}, s43, v{Z}',
          f'v_fma_f32 v{T}, v{T}, s42, 1.0', f'v_mul_f32 v{T}, v{T}, v{T+1}', f'v_exp_f32 v{T}, v{T}', f'v_add_f32 v{T}, 1.0, v{T}',
          f'v_rcp_f32 v{T}, v{T}', f'v_mul_f32 v{T}, v{T}, v{Z}', f'v_cvt_pk_bf16_f32 v{T}, v{T}, v{T}']
    for x in ge: a(x)
    a(f's_mov_b64 exec, 0xffff\nds_write_b16 v41, v{T}\ns_mov_b64 exec, -1')
    fst(5)
    a('s_waitcnt lgkmcnt(0)\ns_barrier')
    fst(6)
    a(f'ds_read_b128 v[{AT}:{AT+3}], v42')
    a(f'ds_read_b32 v52, v48')
    a(f's_waitcnt lgkmcnt(1)')
    for cg in range(4):
        ac = Q[cg]; fr = F1 + cg*8
        a(f'v_smfmac_f32_16x16x64_bf16 v[{ac}:{ac+3}], v[{AT}:{AT+3}], v[{fr}:{fr+7}], v22')
    y = AT + 8
    a('s_cmp_lg_u32 s32, 0')
    for cg in range(4):
        ac = Q[cg]
        for r in range(2): a(f'v_add_f32_dpp v{y+r}, v{ac+r}, v{ac+2+r} quad_perm:[0,1,2,3] row_mask:{1 << cg:#x} bank_mask:0xf')
    if cfg.mtag:
        a(f'v_cvt_pk_bf16_f32 v14, v{y}, v{y+1}')
        store2(f'buffer_store_dwordx2 v[14:15], v5, s[20:23], s24 offen')
    else: store2(f'buffer_store_dwordx2 v[{y}:{y+1}], v5, s[20:23], s24 offen')
    stamp(13)
    a('s_cmp_ge_u32 s3, 16\ns_cbranch_scc1 L_hdone')
    fl = [f'buffer_load_dwordx4 v[{AT}:{AT+3}], v44, s[20:23], 0 offen sc1']
    if cfg.mtag: a(f'v_mov_b32 v{AT}, 0\nv_mov_b32 v{AT+2}, 0\ns_mov_b32 exec_hi, 0xffffff')
    a(fl[0])
    srd(24, 's46', 's47', 2048)
    a('s_waitcnt lgkmcnt(0)\nv_fma_f32 v52, v23, v24, v52')
    if cfg.mtag:
        vpoll(fl, [AT+1, AT+3], AT+8, first_issued=True, tags=True)
        a('s_mov_b32 exec_hi, -1')
        a(f'v_and_b32 v{AT+1}, 0xffff0000, v{AT}\nv_and_b32 v{AT+3}, 0xffff0000, v{AT+2}\nv_lshlrev_b32 v{AT}, 16, v{AT}\nv_lshlrev_b32 v{AT+2}, 16, v{AT+2}')
    elif cfg.mp & 4: mpoll([(fl[0], range(AT, AT+4))], AT+8, first_issued=True)
    else: vpoll(fl, [AT+k for k in range(4)], AT+8, first_issued=True)
    if cfg.diag is None or cfg.diag < 90: stamp(14)
    a(f'v_add_f32_dpp v{Z}, v{AT}, v{AT} row_ror:8 row_mask:0xf bank_mask:0x3')
    a(f'v_add_f32_dpp v{T}, v{AT+2}, v{AT+2} row_ror:8 row_mask:0xf bank_mask:0x3')
    a(f'v_add_f32_dpp v{Z}, v{AT+1}, v{AT+1} row_ror:8 row_mask:0xf bank_mask:0xc')
    a(f'v_add_f32_dpp v{T}, v{AT+3}, v{AT+3} row_ror:8 row_mask:0xf bank_mask:0xc')
    a(f'v_permlane16_swap_b32 v{Z}, v{T}\nv_add_f32 v{Z}, v{Z}, v{T}')
    a(f'v_mov_b32 v{T}, v{Z}\nv_permlane32_swap_b32 v{Z}, v{T}\nv_add_f32 v{Z}, v{Z}, v{T}')
    a(f'v_add_f32_dpp v{Z}, v{Z}, v{Z} quad_perm:[2,3,0,1] row_mask:0xf bank_mask:0xf')
    a(f'v_add_f32_dpp v{Z}, v{Z}, v{Z} row_shl:4 row_mask:0xf bank_mask:0x5')
    a(f'v_fma_f32 v{Z}, v23, v{Z}, v52')
    if cfg.diag is not None:
        a('s_or_b32 s6, s3, s4\ns_cmp_lg_u32 s6, 0\ns_cbranch_scc1 L_ndiag')
        a('s_memrealtime s[94:95]\ns_waitcnt lgkmcnt(0)\ns_sub_u32 s6, s94, s64')
        a(f's_cmp_lt_u32 s6, {cfg.T0}\ns_cbranch_scc1 L_ndiag\ns_cmp_eq_u32 s96, s97\ns_cbranch_scc1 L_ndiag\ns_cmp_eq_u32 s32, {cfg.gate}\ns_cbranch_scc1 L_ndiag')
        a('s_cmp_eq_u32 s98, s99\ns_cbranch_scc1 L_ndiag')
        a(f's_sub_u32 s6, s{64+2*cfg.diag if cfg.diag < 90 else 92}, s64\nv_cvt_f32_u32 v10, s6\ns_mov_b64 exec, 1\nv_add_f32 v{Z}, v{Z}, v10\ns_mov_b64 exec, -1')
        a('L_ndiag:')
    if cfg.enc:
        a('s_or_b32 s6, s3, s4\ns_cmp_lg_u32 s6, 0\ns_cbranch_scc1 L_nenc')
        a(f's_memrealtime s[94:95]\ns_waitcnt lgkmcnt(0)\ns_sub_u32 s6, s94, s64\ns_sub_u32 s7, s{64+2*cfg.enc}, s64')
        a('v_mov_b32 v10, s6\nv_mov_b32 v11, s7\nv_and_b32 v12, 8, v1\nv_cmp_eq_u32 vcc, 0, v12\nv_cndmask_b32 v10, v11, v10, vcc')
        a('v_and_b32 v11, 1, v1\nv_lshlrev_b32 v11, 1, v11\nv_bfe_u32 v12, v1, 4, 1\nv_add_u32 v11, v11, v12\nv_mul_u32_u24 v11, 3, v11')
        a(f'v_lshrrev_b32 v10, v11, v10\nv_and_b32 v10, 7, v10\nv_cvt_f32_u32 v10, v10\nv_add_f32 v{Z}, v{Z}, v10')
        a('L_nenc:')
    a(f's_mov_b64 exec, 0x03030303')
    a(f'v_cvt_pk_bf16_f32 v{T}, v{Z}, v{Z}')
    a(f'buffer_store_short v{T}, v49, s[24:27], 0 offen {cfg.fst}')
    a('s_or_b32 s6, s3, s4\ns_cmp_lg_u32 s6, 0\ns_cbranch_scc1 L_noep')
    a(f's_mov_b64 exec, 1\nv_mov_b32 v10, {EPO}\nv_mov_b32 v11, s33\nbuffer_store_dword v11, v10, s[16:19], 0 offen')
    a('L_noep:')
    a('s_mov_b64 exec, -1')
    stamp(15)
    a('L_hdone:')
    if cfg.stamps:
        a(f's_cmp_lg_u32 s4, {cfg.sw}\ns_cbranch_scc1 L_end')
        stamps_out(16, 0)
        a('s_cmp_lg_u32 s2, 0\ns_cbranch_scc1 L_end')
        for n, i in enumerate((1, 4, 7, 8, 9, 10, 11, 12, 13, 14, 15)):
            a(f's_sub_u32 s60, s{64+2*i}, s64\nv_mov_b32 v4, s60\nglobal_store_dword v2, v4, s[12:13] offset:{16+4*n}')
        a('v_mov_b32 v4, s32\nglobal_store_dword v2, v4, s[12:13]')
        a('s_waitcnt vmcnt(0)')
    a('L_end:')
    a('s_endpgm')
    return wrap(a.finalize(), 256, 768, LDS_TOTAL, 168, sgpr=102)

if __name__ == '__main__':
    out = sys.argv[1]
    for o in sys.argv[2:]:
        k, v = o.split('=')
        setattr(cfg, k, eval(v))
    open(out, 'w').write(gen())
```

```python
import sys, math, struct
from asmlib import *
from gen_common import *

class Cfg:
    stamps = False
    NT = 'nt'
    warm = True
    prio = True
    slp = 2
    qslp = 4
    thS = 63
    thV = 63
    pre = 3
    touch = True
    diag = None
    fine = False
    sw = 0
    mp = 2
    enc = 0
    lay = 1
    lead = 2
    qlate = 0
    p1c = False
    qobs = False
    rot = 0
    RK = 86
    xp = 0
    pf = 0
    hfirst = False
    dk = 0
    mtag = False
    owarm = 0
    fst = ''
    pe = True
    mlate = 0
    slpB = 2
    slpM = 2
    tx = 0
    tlbw = 0
    lst = ''
    ost = 'sc1'
    il = False
    bias = (0, 0, 0, 0, 0, 0, 0)
    dirty = 0
    nth = 10
    T0 = 1900
    gate = 0
    apre = 0
    fast = True
cfg = Cfg()

MODA=0; MODB=0x8000; QO=0x10000; XID=0x18000; EPO=0x1A800; WOUT=0x1C000; MOUT=0x24000; OP=0x40000; STMP=0x80000; LSE=0x90000; WS_SZ=0x100000
NCH = 12
KW=36864; PREG=147456; ZERO=153600; ST=154176; QL=154368; QF=155392; SCR=0; LDS_TOTAL=155648
R0=0; R1=65536; ACT=131072; ACTC=133376; ACTM=135680; TS=2336; HID=145024; STAT=145408; STAT2=145472; STAT3=145536; X1=145664; AS=149760
LIMIT = 200000
LOG2E = 1.4426950408889634
def f2u(x): return '0x%08x' % struct.unpack('<I', struct.pack('<f', x))[0]

def gtab():
    d = list(cfg.bias); assert sum(d) == 0
    g = [0]
    for k in range(6): g.append(g[-1] + d[(2*k) % 7])
    return g
def chunk_start(p, c):
    g = gtab(); pos = (4*(p + 4)) % 7
    tot = g[(pos + 12) % 7] - g[pos]
    return ((c*(8192 - tot)*21846) >> 18) + g[(pos + c) % 7] - g[pos]

def gen():
    a = Asm()
    uid = [0]
    def lab(p):
        uid[0] += 1; return f'L_{p}_{uid[0]}'
    def stamp(i):
        if cfg.stamps: a(f's_memrealtime s[{64+2*i}:{65+2*i}]')
    def fst(i):
        if cfg.fine: stamp(i)
    def stamps_out(n, base_slot):
        if not cfg.stamps: return
        a('s_waitcnt lgkmcnt(0)')
        a('s_mov_b64 exec, 1')
        a(f's_lshl_b32 s60, s2, 7\ns_add_u32 s60, s60, {STMP + base_slot*8}')
        a('v_mov_b32 v2, 0')
        for i in range(n):
            a(f'v_mov_b32 v4, s{64+2*i}\nv_mov_b32 v5, s{65+2*i}')
            a(f'buffer_store_dwordx2 v[4:5], v2, s[16:19], s60 offen offset:{8*i}')
        a('s_waitcnt vmcnt(0)')
    def srd(d, lo, hi, size):
        a(f's_mov_b32 s{d}, {lo}\ns_mov_b32 s{d+1}, {hi}\ns_mov_b32 s{d+2}, {size}\ns_mov_b32 s{d+3}, 0x20000')
    def epoch_load():
        a(f's_load_dword s33, s[14:15], {EPO}')
    def epoch_tag():
        a('s_mul_i32 s33, s33, 0x9E3779B1\ns_add_u32 s33, s33, 0x85EBCA6B')
    def red3(op, regs, tmp):
        rs = list(regs)
        if len(rs) == 1: return rs[0]
        first = True
        while rs:
            if first:
                if len(rs) >= 3: a(f'v_{op}3_u32 v{tmp}, v{rs[0]}, v{rs[1]}, v{rs[2]}'); rs = rs[3:]
                else: a(f'v_{op}_u32 v{tmp}, v{rs[0]}, v{rs[1]}'); rs = rs[2:]
                first = False
            elif len(rs) >= 2: a(f'v_{op}3_u32 v{tmp}, v{tmp}, v{rs[0]}, v{rs[1]}'); rs = rs[2:]
            else: a(f'v_{op}_u32 v{tmp}, v{tmp}, v{rs[0]}'); rs = rs[1:]
        return tmp
    def vpoll(loads, regs, tmp, sleep=0, first_issued=False, tags=False, dbg=None, first_cnt=0):
        l = lab('vp'); d = lab('vd'); w = lab('vw')
        a('s_mov_b32 s30, 0')
        if first_issued: a(f's_waitcnt vmcnt({first_cnt})\ns_branch {w}')
        a(f'{l}:')
        for x in loads: a(x)
        a('s_add_u32 s30, s30, 1')
        a('s_waitcnt vmcnt(0)')
        if first_issued: a(f'{w}:')
        if dbg is not None and cfg.stamps:
            p, q_, n_ = dbg
            a(f's_mov_b64 s[{64+2*p}:{65+2*p}], s[{64+2*q_}:{65+2*q_}]')
            stamp(q_); a('s_waitcnt lgkmcnt(0)')
            a(f's_add_u32 s{64+2*n_}, s64, s30\ns_mov_b32 s{65+2*n_}, s65')
        if tags:
            m = red3('max', regs, tmp)
            if len(list(regs)) > 1:
                n = red3('min', regs, tmp + 1)
                a(f'v_cmp_ne_u32 vcc, s33, v{m}\nv_cmp_ne_u32 s[34:35], s33, v{n}\ns_or_b64 vcc, vcc, s[34:35]')
            else:
                a(f'v_cmp_ne_u32 vcc, s33, v{m}')
        else:
            m = red3('max', regs, tmp)
            a(f'v_cmp_eq_u32 vcc, -1, v{m}')
        a(f's_cbranch_vccz {d}')
        if sleep: a(f's_sleep {sleep}')
        a(f's_cmp_lt_u32 s30, {LIMIT}\ns_cbranch_scc1 {l}')
        a(f'{d}:')
    def mpoll(items, tmp, first_issued=False):
        l = lab('mp'); d = lab('md')
        a('s_mov_b32 s30, 0')
        if not first_issued:
            for ld, regs in items: a(ld)
        a(f'{l}:')
        a('s_waitcnt vmcnt(0)')
        ms = []
        for k, (ld, regs) in enumerate(items):
            ms.append(red3('max', regs, tmp + k))
        for k, m in enumerate(ms):
            a(f'v_cmp_eq_u32 s[{48+2*k}:{49+2*k}], -1, v{m}')
        n = len(items)
        if n == 1:
            a('s_cmp_eq_u64 s[48:49], 0\ns_cbranch_scc1 ' + d)
        else:
            a('s_or_b64 s[34:35], s[48:49], s[50:51]')
            for k in range(2, n): a(f's_or_b64 s[34:35], s[34:35], s[{48+2*k}:{49+2*k}]')
            a(f's_cbranch_scc0 {d}')
        for k, (ld, regs) in enumerate(items):
            a(f's_mov_b64 exec, s[{48+2*k}:{49+2*k}]')
            a(ld)
        a('s_mov_b64 exec, -1')
        a(f's_add_u32 s30, s30, 1\ns_cmp_lt_u32 s30, {LIMIT}\ns_cbranch_scc1 {l}')
        a('s_waitcnt vmcnt(0)')
        a(f'{d}:')
    def pspin(va, vd):
        l = lab('ps'); d = lab('pd')
        a(f'v_mov_b32 {va}, {QF}\ns_mov_b32 s30, 0')
        a(f'{l}:')
        a(f'ds_read_b32 {vd}, {va} offset:4\ns_add_u32 s30, s30, 1\ns_waitcnt lgkmcnt(0)')
        a(f'v_cmp_ne_u32 vcc, 4, {vd}\ns_cbranch_vccz {d}')
        a(f's_sleep 1\ns_cmp_lt_u32 s30, {LIMIT*8}\ns_cbranch_scc1 {l}')
        a(f'{d}:')
    def dma_u1(lo, hi, size, RS, sbase, region, setup=True, i0=0, i1=8):
        if setup:
            a('v_bfe_u32 v10, v1, 4, 1\nv_and_b32 v12, 7, v1\nv_xor_b32 v10, v10, v12')
            a('s_and_b32 s27, s4, 4\nv_xor_b32 v10, s27, v10')
            a(f'v_lshrrev_b32 v2, 3, v1\nv_mul_u32_u24 v2, {RS}, v2\nv_xor_b32 v12, 2, v10')
            a('v_lshl_add_u32 v12, v12, 4, v2\nv_lshl_add_u32 v2, v10, 4, v2')
        srd(20, lo, hi, size)
        if cfg.xp & 4:
            a(f'v_lshlrev_b32 v2, 4, v1\nv_mov_b32 v12, v2\ns_lshl_b32 s27, s3, 16\ns_lshl_b32 s28, s4, 13\ns_add_u32 s27, s27, s28\ns_add_u32 s27, s27, {(region and RS == 8192) * 2097152}')
            RS = 128
        else: a(f's_mul_i32 s27, s4, {64*RS}\ns_add_u32 s27, s27, {sbase}')
        if i0: a(f's_add_u32 s27, s27, {8*RS*i0}')
        a(f's_lshl_b32 s28, s4, 13')
        if region + i0: a(f's_add_u32 s28, s28, {region + 1024*i0}')
        for i in range(i0, i1):
            a('s_mov_b32 m0, s28')
            if i < i1-1: a('s_add_u32 s28, s28, 1024')
            a(f'buffer_load_dwordx4 v{12 if i & 1 else 2}, s[20:23], s27 offen {cfg.NT} lds')
            if i < i1-1: a(f's_add_u32 s27, s27, {8*RS}')

    def dma_w(i0, i1, setup=True):
        if setup:
            a('s_and_b32 s6, s4, 1\ns_lshl_b32 s6, s6, 6\ns_and_b32 s7, s4, 4\ns_lshl_b32 s7, s7, 5\ns_or_b32 s6, s6, s7')
            a('v_lshlrev_b32 v2, 4, v1\nv_and_b32 v2, 0x1f0, v2\nv_and_b32 v10, 32, v1\nv_xor_b32 v2, v2, v10\nv_xor_b32 v2, s6, v2\nv_lshl_add_u32 v2, v10, 5, v2')
        srd(20, 's50', 's51', 4096*1024)
        if cfg.xp & 4: a(f'v_lshlrev_b32 v2, 4, v1\ns_lshl_b32 s27, s3, 17\ns_lshl_b32 s28, s4, 10\ns_add_u32 s27, s27, s28\ns_add_u32 s27, s27, {8192*i0}')
        else: a(f's_lshl_b32 s27, s4, 11\ns_add_u32 s27, s27, s24\ns_add_u32 s27, s27, {16384*i0}')
        a(f's_lshl_b32 s28, s4, 10\ns_add_u32 s28, s28, {8192*i0}')
        for i in range(i0, i1):
            a('s_mov_b32 m0, s28')
            if i < i1-1: a('s_add_u32 s28, s28, 8192')
            a(f'buffer_load_dwordx4 v2, s[20:23], s27 offen {cfg.NT} lds')
            if i < i1-1: a(f's_add_u32 s27, s27, {8192 if cfg.xp & 4 else 16384}')
    def hearly():
        a('L_hearly:')
        a('s_cmp_ge_u32 s2, 256\ns_cbranch_scc1 L_end')
        a('s_sub_u32 s6, s6, 1\ns_cmp_eq_u32 s5, 0\ns_cselect_b32 s3, s3, s6')
        a('s_cmp_lt_u32 s4, 8\ns_cbranch_scc1 L_hm')
        if cfg.warm:
            a('s_lshr_b32 s6, s2, 4\ns_xor_b32 s7, s4, 11\ns_or_b32 s6, s6, s7\ns_cbranch_scc1 L_spare')
            a('s_getpc_b64 s[36:37]\nL_pc:\ns_sub_u32 s36, s36, L_pc-L_stream\ns_subb_u32 s37, s37, 0\nv_lshlrev_b32 v2, 7, v1')
            a('s_mov_b32 s38, L_end-L_stream\ns_mov_b32 s39, 0x20000\ns_mov_b32 s6, 8192')
            a('buffer_load_dword v4, v2, s[36:39], 0 offen\nbuffer_load_dword v5, v2, s[36:39], s6 offen')
            a('s_endpgm')
        else: a('s_branch L_spare')
        a('L_hm:')
        if cfg.xp & 16:
            a('s_cmp_eq_u32 s5, 0\ns_cselect_b32 s6, 34, 24\ns_mov_b32 s7, 0x8000000\ns_cselect_b32 s7, 0x9000000, s7\ns_mul_i32 s27, s3, 288*1024\ns_add_u32 s27, s27, s7\ns_lshl_b32 s7, s4, 10\ns_add_u32 s27, s27, s7')
            a('v_lshlrev_b32 v2, 4, v1\ns_waitcnt lgkmcnt(0)')
            srd(20, 's14', 's15', 0x10000000)
            a('L_xl:\nbuffer_load_dwordx4 v[4:7], v2, s[20:23], s27 offen nt\ns_add_u32 s27, s27, 8192\ns_sub_u32 s6, s6, 1\ns_cmp_lg_u32 s6, 0\ns_cbranch_scc1 L_xl')
            a('s_endpgm')
        a('s_cmp_eq_u32 s5, 0')
        a('s_cselect_b32 s6, 88, 24')
        a('s_load_dwordx2 s[20:21], s[0:1], s6')
        a('s_mov_b32 s7, 8192\ns_cselect_b32 s7, 6144, s7')
        a('s_cselect_b32 s29, 2, 4')
        a('s_cselect_b32 s24, 5, 6')
        a('s_lshl_b32 s22, s7, 9')
        a('s_lshl_b32 s25, s3, 8')
        a('s_lshr_b32 s26, s3, 1\ns_lshl_b32 s26, s26, 7\ns_and_b32 s27, s3, 1\ns_mul_i32 s27, s27, 256*6144\ns_add_u32 s26, s26, s27')
        a('s_cmp_eq_u32 s5, 0\ns_cselect_b32 s25, s26, s25')
        a('v_bfe_u32 v10, v1, 4, 1\nv_and_b32 v12, 7, v1\nv_xor_b32 v10, v10, v12')
        a('s_and_b32 s27, s4, 4\nv_xor_b32 v10, s27, v10')
        a('v_lshrrev_b32 v2, 3, v1\nv_mul_u32_u24 v2, s7, v2\nv_xor_b32 v12, 2, v10')
        a('v_lshl_add_u32 v12, v12, 4, v2\nv_lshl_add_u32 v2, v10, 4, v2')
        a('s_mov_b32 s23, 0x20000')
        a('s_lshl_b32 s6, s4, s24\ns_mul_i32 s27, s6, s7\ns_add_u32 s27, s27, s25')
        a('s_lshl_b32 s28, s6, 7\ns_lshl_b32 s7, s7, 3')
        if cfg.xp & 4: a('v_lshlrev_b32 v2, 4, v1\nv_mov_b32 v12, v2\ns_lshl_b32 s27, s3, 16\ns_add_u32 s27, s27, s28\ns_mov_b32 s7, 1024')
        a('s_waitcnt lgkmcnt(0)')
        a('L_hdma:')
        a('s_mov_b32 m0, s28\ns_add_u32 s28, s28, 1024')
        a(f'buffer_load_dwordx4 v2, s[20:23], s27 offen {cfg.NT} lds')
        a('s_add_u32 s27, s27, s7\ns_mov_b32 m0, s28\ns_add_u32 s28, s28, 1024')
        a(f'buffer_load_dwordx4 v12, s[20:23], s27 offen {cfg.NT} lds')
        a('s_add_u32 s27, s27, s7\ns_sub_u32 s29, s29, 1\ns_cmp_lg_u32 s29, 0\ns_cbranch_scc1 L_hdma')
        if cfg.hfirst: a('s_branch L_helper')
    stamp(0)
    a('s_load_dwordx4 s[8:11], s[0:1], 8')
    a('v_lshrrev_b32 v1, 6, v0')
    a('s_lshr_b32 s3, s2, 3\ns_and_b32 s5, s2, 7')
    a('v_readfirstlane_b32 s4, v1')
    a('s_load_dwordx4 s[12:15], s[0:1], 104')
    a('s_mul_i32 s6, s3, 7\ns_add_u32 s6, s6, s5\ns_cmp_eq_u32 s5, 0\ns_cselect_b32 s6, 0, s6')
    a('v_and_b32 v1, 63, v0')
    a('s_sub_u32 s7, s6, 33\ns_cbranch_scc1 L_hearly')
    a('L_stream:')
    a('s_lshr_b32 s25, s7, 4\ns_and_b32 s24, s7, 15')
    a('s_cmp_ge_u32 s25, 12\ns_cbranch_scc1 L_end')
    assert not any(cfg.bias)
    a(f's_mul_i32 s6, s25, {8192*21846}\ns_lshr_b32 s7, s6, 18\ns_add_u32 s6, s6, {8192*21846}\ns_lshr_b32 s6, s6, 18\ns_sub_u32 s31, s6, s7')
    a('s_lshl_b32 s6, s24, 13\ns_add_u32 s6, s6, s7\ns_lshl_b32 s6, s6, 8')
    a('s_mov_b32 s23, 0x20000')
    a('s_cmp_ge_u32 s4, 4\ns_cbranch_scc1 L_vwave')
    a('v_lshrrev_b32 v7, 4, v1')
    a('v_and_b32 v15, 15, v1')
    a('v_lshlrev_b32 v6, 2, v7\nv_xor_b32 v6, v6, v15')
    a('v_lshlrev_b32 v8, 8, v7')
    a('v_lshl_add_u32 v2, v6, 4, v8')
    a(f's_mul_i32 s27, s4, {512*cfg.RK}\ns_mul_i32 s28, s4, {KW}\ns_add_u32 s22, s27, {256*cfg.RK}')
    nk = [chunk_start(p, c+1) - chunk_start(p, c) for p in range(16) for c in range(12)]
    assert 80 <= cfg.RK <= 96 and min(nk) - 7*cfg.RK >= 80 and max(nk) - 7*cfg.RK <= cfg.RK
    a('s_mov_b32 m0, s28')
    a('s_waitcnt lgkmcnt(0)')
    a('s_add_u32 s20, s8, s6\ns_addc_u32 s21, s9, 0')
    a(f'buffer_load_dwordx4 v2, s[20:23], s27 offen {cfg.NT} lds')
    stamp(5)
    if cfg.prio: a('s_setprio 3')
    for t in (1, 2, 3):
        a(f'v_xor_b32 v{2+t}, {16*t}, v2')
        a(f'buffer_load_dwordx4 v{2+t}, s[20:23], s27 offen offset:{1024*t} {cfg.NT} lds')
    a(f's_lshl_b32 s26, s24, 14\ns_lshl_b32 s7, s25, 10\ns_add_u32 s26, s26, s7\ns_lshl_b32 s7, s4, 8\ns_add_u32 s26, s26, s7\ns_add_u32 s26, s26, {OP}')
    a('v_mov_b32 v156, -1\nv_lshl_add_u32 v157, v1, 2, s26')
    a('global_store_dword v157, v156, s[14:15] sc1')
    a(f's_mov_b32 s44, s22\ns_add_u32 s45, s44, {256*cfg.RK}\ns_lshl_b32 s7, s31, 8\ns_min_u32 s45, s45, s7')
    a('s_add_u32 s28, s28, 4096\ns_add_u32 s27, s27, 4096\ns_mov_b32 s29, 1')
    a('L_kdma:')
    a('s_mov_b32 m0, s28')
    a('s_add_u32 s28, s28, 4096\ns_add_u32 s29, s29, 1')
    for t in range(4):
        a(f'buffer_load_dwordx4 v{2+t}, s[20:23], s27 offen offset:{1024*t} {cfg.NT} lds')
        if cfg.thS < 63: a(f's_waitcnt vmcnt({cfg.thS})')
    a('s_add_u32 s27, s27, 4096')
    a('s_cmp_eq_u32 s29, 6\ns_cselect_b32 s27, s44, s27\ns_cselect_b32 s22, s45, s22')
    a('s_cmp_lt_u32 s29, 9\ns_cbranch_scc1 L_kdma')
    epoch_load()
    a('v_and_b32 v6, 3, v15\nv_lshlrev_b32 v6, 2, v6\nv_lshrrev_b32 v9, 2, v15\nv_add_u32 v6, v6, v9')
    a('v_lshlrev_b32 v10, 8, v6')
    a('v_lshl_add_u32 v6, v7, 4, v10')
    if cfg.p1c: a('v_lshlrev_b32 v6, 4, v1')
    for gi in range(3):
        for s in range(4):
            r = 96 + 16*gi + 4*s
            a(f'buffer_load_dwordx4 v[{r}:{r+3}], v6, s[20:23], s27 offen offset:{(1024 if cfg.p1c else 64)*s} {cfg.NT}')
            if cfg.thS < 63 and 4*gi + s < 11: a(f's_waitcnt vmcnt({cfg.thS})')
        if gi < 2: a('s_add_u32 s27, s27, 4096')
    if not cfg.pe:
        srd(16, 's14', 's15', WS_SZ)
        a(f's_lshl_b32 s26, s24, 14\ns_lshl_b32 s6, s25, 10\ns_add_u32 s26, s26, s6\ns_lshl_b32 s6, s4, 8\ns_add_u32 s26, s26, s6\ns_add_u32 s26, s26, {OP}')
        a('v_mov_b32 v156, -1\nv_lshlrev_b32 v157, 2, v1')
        if not cfg.xp & 32: a('buffer_store_dword v156, v157, s[16:19], s26 offen sc1')
    else: srd(16, 's14', 's15', WS_SZ)
    a(f's_and_b32 s7, s24, 7\ns_lshl_b32 s6, s7, 12\ns_lshr_b32 s7, s24, 3\ns_lshl_b32 s7, s7, 11\ns_add_u32 s27, s6, s7\ns_add_u32 s27, s27, {QO}')
    a('v_lshlrev_b32 v12, 4, v1')
    qloads = [f'buffer_load_dwordx4 v[{32+4*k}:{35+4*k}], v12, s[16:19], s27 offen offset:{1024*k} sc1' for k in range(2)]
    if not cfg.qlate:
        a('s_cmp_lg_u32 s4, 0\ns_cbranch_scc1 L_nq1' if not cfg.xp & 1024 else 's_branch L_nq1')
        for x in qloads: a(x)
        a('L_nq1:')
    stamp(1)
    a('s_barrier')
    if cfg.xp & 512: a('s_waitcnt vmcnt(0)\ns_branch L_xs')
    a(f's_mul_i32 s28, s4, {KW}')
    a('v_and_b32 v11, 3, v15\nv_xor_b32 v11, v11, v7')
    a('v_lshl_add_u32 v11, v9, 2, v11')
    a('v_lshl_add_u32 v11, v11, 4, v10\nv_add_u32 v8, s28, v11')
    for s in (1, 2, 3): a(f'v_xor_b32 v{8+s}, {64*s}, v8')
    a(f's_mul_i32 s6, s4, 1536\ns_add_u32 s6, s6, {PREG}')
    a('v_lshrrev_b32 v13, 3, v15\nv_mul_u32_u24 v13, 768, v13' if cfg.il else 'v_lshrrev_b32 v13, 3, v15\nv_lshlrev_b32 v13, 8, v13')
    a('v_and_b32 v14, 3, v15\nv_lshl_add_u32 v13, v14, 6, v13\nv_lshl_add_u32 v13, v7, 4, v13')
    a('v_bfe_u32 v14, v15, 2, 1\nv_lshl_add_u32 v13, v14, 3, v13\nv_add_u32 v13, s6, v13')
    for u in range(4):
        a(f's_mov_b32 s{36+2*u}, {0x000F000F << (4*u):#x}\ns_mov_b32 s{37+2*u}, {0x000F000F << (4*u):#x}')
    a(f's_sub_u32 s6, s45, s44\ns_lshr_b32 s6, s6, 8\ns_sub_u32 s6, s6, 80')
    a(f'v_sub_u32 v160, {cfg.RK - 80}, v7\nv_cndmask_b32 v161, 64, v160, s[38:39]\nv_sub_u32 v160, s6, v7\nv_cndmask_b32 v163, 64, v160, s[42:43]')
    a('s_waitcnt lgkmcnt(0)')
    epoch_tag()
    stamp(2)
    a(f'v_mov_b32 v14, {QF}')
    a('s_cmp_lg_u32 s4, 0\ns_cbranch_scc1 L_nq2')
    if cfg.qlate: a(f's_waitcnt vmcnt({cfg.qlate - 1})')
    if cfg.xp & 1: a('s_waitcnt vmcnt(0)')
    else: vpoll(qloads, [33, 35, 37, 39], 164, first_issued=not cfg.qlate, tags=True, sleep=cfg.qslp, dbg=(1, 2, 15))
    a(f'v_lshlrev_b32 v12, 3, v1\nv_add_u32 v12, {QL}, v12\nv_mov_b32 v16, 1')
    a('ds_write2_b32 v12, v32, v34 offset0:0 offset1:1\nds_write2_b32 v12, v36, v38 offset0:128 offset1:129')
    a('s_waitcnt lgkmcnt(0)\nds_write_b32 v14, v16')
    a('s_branch L_nq3')
    a('L_nq2:')
    a('s_mov_b32 s30, 0')
    a('L_qspin:')
    a('ds_read_b32 v16, v14\ns_add_u32 s30, s30, 1\ns_waitcnt lgkmcnt(0)')
    a('v_cmp_ne_u32 vcc, 1, v16\ns_cbranch_vccz L_nq3')
    a(f's_sleep 1\ns_cmp_lt_u32 s30, {LIMIT*8}\ns_cbranch_scc1 L_qspin')
    a('L_nq3:')
    a(f'v_and_b32 v12, 3, v15\nv_lshlrev_b32 v12, 8, v12\nv_lshl_add_u32 v12, v7, 4, v12\nv_add_u32 v12, {QL}, v12')
    for k in range(4): a(f'ds_read_b128 v[{16+4*k}:{19+4*k}], v12 offset:{64*k}')
    a('s_waitcnt vmcnt(0) lgkmcnt(0)')
    stamp(3)
    order = [(u, dd) for u in range(4) for dd in range(3)]
    ldsg = [4*dd+u for (u, dd) in order if 4*dd+u < 9]
    def kread(k):
        gi = ldsg[k]; buf = 64 + 16*(k & 1)
        for s in range(4):
            a(f'ds_read_b128 v[{buf+4*s}:{buf+4*s+3}], v{8+s} offset:{4096*gi}')
    kread(0)
    k = 0
    for (u, dd) in order:
        gi = 4*dd + u
        mq = 32 + 16*(u & 1)
        if u == 0 and dd == 0:
            for r in range(16): a(f'v_cndmask_b32 v{mq+r}, 0, v{16+r}, s[36:37]')
        if gi < 9:
            src = 64 + 16*(k & 1)
            if k + 1 < len(ldsg):
                kread(k + 1); a('s_waitcnt lgkmcnt(4)')
            else:
                a('s_waitcnt lgkmcnt(0)')
            k += 1
        else:
            src = 96 + 16*(gi - 9)
        D = 144 + 4*dd
        for s in range(4):
            c = '0' if (u == 0 and s == 0) else f'v[{D}:{D+3}]'
            a(f'v_mfma_f32_16x16x32_bf16 v[{D}:{D+3}], v[{src+4*s}:{src+4*s+3}], v[{mq+4*s}:{mq+4*s+3}], {c}')
            if u < 3 and dd < 2:
                mq2 = 32 + 16*((u+1) & 1)
                for r in (8*dd + 2*s, 8*dd + 2*s + 1):
                    a(f'v_cndmask_b32 v{mq2+r}, 0, v{16+r}, s[{38+2*u}:{39+2*u}]')
    a('v_mov_b32 v160, 0xff800000')
    for dd, th in ((1, 161), (2, 163)):
        for r in range(4):
            a(f'v_cmp_lt_i32 vcc, {4*r}, v{th}\nv_cndmask_b32 v{144+4*dd+r}, v160, v{144+4*dd+r}, vcc')
    a('v_max3_f32 v156, v144, v145, v146\nv_max3_f32 v157, v147, v148, v149')
    a('v_max3_f32 v158, v150, v151, v152\nv_max3_f32 v159, v153, v154, v155')
    a('v_max3_f32 v156, v156, v157, v158\nv_max_f32 v156, v156, v159')
    def xreduce(op, r, t):
        a(f'{op}_dpp v{r}, v{r}, v{r} row_ror:4 row_mask:0xf bank_mask:0xf')
        a(f'{op}_dpp v{r}, v{r}, v{r} row_ror:8 row_mask:0xf bank_mask:0xf')
        a(f'v_mov_b32 v{t}, v{r}\nv_permlane16_swap_b32 v{r}, v{t}\n{op} v{r}, v{r}, v{t}')
        a(f'v_mov_b32 v{t}, v{r}\nv_permlane32_swap_b32 v{r}, v{t}\n{op} v{r}, v{r}, v{t}')
    xreduce('v_max_f32', 156, 157)
    a(f's_mov_b32 s6, {f2u(128**-0.5 * LOG2E)}')
    a('v_mul_f32 v158, s6, v156')
    for r in range(12): a(f'v_fma_f32 v{144+r}, v{144+r}, s6, -v158')
    for r in range(12): a(f'v_exp_f32 v{144+r}, v{144+r}')
    for dd in range(3):
        D = 144 + 4*dd
        a(f'v_cvt_pk_bf16_f32 v{32+2*dd}, v{D}, v{D+1}\nv_cvt_pk_bf16_f32 v{33+2*dd}, v{D+2}, v{D+3}')
        a(f'ds_write_b64 v13, v[{32+2*dd}:{33+2*dd}] offset:{(256 if cfg.il else 512)*dd}')
    a('v_add_f32 v159, v144, v145')
    for r in range(2, 12): a(f'v_add_f32 v159, v159, v{144+r}')
    xreduce('v_add_f32', 159, 157)
    a(f's_lshl_b32 s6, s4, 5\ns_add_u32 s6, s6, {ST}')
    a('v_lshl_add_u32 v14, v1, 3, s6')
    a('s_mov_b64 exec, 15\nds_write_b64 v14, v[158:159]\ns_mov_b64 exec, -1')
    a('s_waitcnt lgkmcnt(0)')
    a(f'v_mov_b32 v14, {QF}\nv_mov_b32 v16, 1\ns_mov_b64 exec, 1\nds_add_u32 v14, v16 offset:4\ns_mov_b64 exec, -1')
    stamp(4)
    pspin('v14', 'v16')
    a(f'v_and_b32 v14, 3, v1\nv_lshlrev_b32 v14, 3, v14\nv_add_u32 v14, {ST}, v14')
    for w in range(4): a(f'ds_read_b64 v[{16+2*w}:{17+2*w}], v14 offset:{32*w}')
    a('v_lshrrev_b32 v2, 2, v1\nv_lshrrev_b32 v3, 4, v1\nv_add_u32 v3, v3, v1\nv_and_b32 v3, 3, v3')
    a('v_lshlrev_b32 v2, 5, v2\nv_lshl_add_u32 v2, v3, 3, v2')
    a(f's_lshl_b32 s6, s4, 9\ns_add_u32 s6, s6, {SCR}\nv_add_u32 v2, s6, v2')
    a('s_waitcnt lgkmcnt(0)')
    a('v_max3_f32 v24, v16, v18, v20\nv_max_f32 v24, v24, v22')
    for w in range(4): a(f'v_sub_f32 v{25+w}, v{16+2*w}, v24')
    for w in range(4): a(f'v_exp_f32 v{25+w}, v{25+w}')
    a('v_mul_f32 v29, v25, v17\nv_fmac_f32 v29, v26, v19\nv_fmac_f32 v29, v27, v21\nv_fmac_f32 v29, v28, v23')
    a('v_log_f32 v30, v29\nv_rcp_f32 v29, v29\nv_mov_b32 v31, s33')
    a('v_add_f32 v30, v30, v24')
    a(f's_lshl_b32 s6, s24, 11\ns_lshl_b32 s7, s25, 7\ns_add_u32 s6, s6, s7\ns_add_u32 s6, s6, {LSE}')
    a('v_lshlrev_b32 v3, 3, v1')
    a('s_cmp_eq_u32 s4, 0\ns_cselect_b32 exec_lo, 0xffff, 0\ns_mov_b32 exec_hi, 0\ns_cbranch_execz L_nlse')
    if cfg.diag is not None and cfg.diag >= 90: a(f's_sub_u32 s7, s{64+2*cfg.dk}, s64\ns_mov_b32 exec_lo, 0xff00\nv_mov_b32 v30, ' + ('s7' if cfg.dk else 's64') + '\ns_mov_b32 exec_lo, 0xffff')
    a('buffer_store_dwordx2 v[30:31], v3, s[16:19], s6 offen sc1')
    a('L_nlse:')
    a('s_mov_b64 exec, -1')
    for w in range(4): a(f'v_mul_f32 v{32+w}, v{25+w}, v29')
    for w in range(4): a(f'v_readlane_b32 s{36+w}, v{32+w}, s4')
    a('L_xs:')
    a('v_lshlrev_b32 v3, 2, v1')
    a('s_barrier')
    stamp(6)
    for v in range(8): a(f'ds_read_b64 v[{48+2*v}:{49+2*v}], v2 offset:{2048*v}')
    for v in range(8):
        a(f's_waitcnt lgkmcnt({7-v})')
        w = v >> 1; sp = 36 + (w & ~1)
        mod = 'op_sel_hi:[1,0,1]' if (w & 1) == 0 else 'op_sel:[0,1,0] op_sel_hi:[1,1,1]'
        mod2 = 'op_sel_hi:[1,0]' if (w & 1) == 0 else 'op_sel:[0,1] op_sel_hi:[1,1]'
        if v < 2: a(f'v_pk_mul_f32 v[{40+2*v}:{41+2*v}], v[{48+2*v}:{49+2*v}], s[{sp}:{sp+1}] {mod2}')
        else: a(f'v_pk_fma_f32 v[{40+2*(v&1)}:{41+2*(v&1)}], v[{48+2*v}:{49+2*v}], s[{sp}:{sp+1}], v[{40+2*(v&1)}:{41+2*(v&1)}] {mod}')
    a('v_pk_add_f32 v[40:41], v[40:41], v[42:43]')
    a('v_cvt_pk_bf16_f32 v40, v40, v41')
    a(f'buffer_store_dword v40, v3, s[16:19], s26 offen {cfg.ost}')
    stamp(7)
    if cfg.stamps:
        a('s_cmp_lg_u32 s4, 0\ns_cbranch_scc1 L_end')
        stamps_out(8, 0)
    a('s_endpgm')

    a('L_vwave:')
    a('s_lshl_b32 s22, s31, 8')
    a('s_sub_u32 s4, s4, 4')
    if cfg.rot & 2: a('s_add_u32 s4, s4, s24\ns_and_b32 s4, s4, 7')
    if cfg.rot & 4: a('s_lshr_b32 s7, s24, 1\ns_add_u32 s4, s4, s7\ns_and_b32 s4, s4, 7')
    a('v_lshlrev_b32 v2, 4, v1')
    a(f'v_mov_b32 v16, 0\nv_mov_b32 v17, 0\nv_mov_b32 v18, 0\nv_mov_b32 v19, 0\nv_add_u32 v9, {ZERO}, v2')
    a('s_mov_b32 exec_lo, -1\ns_mov_b32 exec_hi, 3\nds_write_b128 v9, v[16:19]\ns_mov_b64 exec, -1')
    a(f'v_mov_b32 v9, {QF}\nds_write_b64 v9, v[16:17]')
    a(f's_mul_i32 s7, s4, 768\ns_add_u32 s7, s7, {PREG}')
    a('v_and_b32 v9, 3, v1\nv_lshlrev_b32 v9, 6, v9\nv_lshrrev_b32 v10, 4, v1\nv_lshl_add_u32 v9, v10, 4, v9\nv_add_u32 v9, s7, v9')
    a(f'v_mov_b32 v11, {ZERO}')
    for x in range(4):
        a(f's_mov_b32 s34, {0x000F000F << (4*x):#x}\ns_mov_b32 s35, s34')
        a(f'v_cndmask_b32 v{3+x}, v11, v9, s[34:35]')
    a('v_and_b32 v7, 15, v1\nv_lshrrev_b32 v8, 2, v7\nv_add_u32 v8, v8, v10\nv_and_b32 v8, 3, v8')
    a('v_lshlrev_b32 v7, 5, v7\nv_lshl_add_u32 v7, v8, 3, v7')
    a(f's_lshl_b32 s7, s4, 11\ns_add_u32 s7, s7, {SCR}\nv_add_u32 v7, s7, v7\nv_add_u32 v8, 1024, v7')
    a('s_mov_b32 s36, 0x05040100\ns_mov_b32 s37, 0x07060302')
    a(f's_mul_i32 s27, s4, {256*cfg.RK}\ns_add_u32 s7, s27, {256*cfg.RK}\ns_min_u32 s22, s22, s7')
    a('s_waitcnt lgkmcnt(0)')
    a('s_add_u32 s20, s10, s6\ns_addc_u32 s21, s11, 0')
    if cfg.stamps: srd(16, 's14', 's15', WS_SZ)
    if cfg.tlbw:
        a(f'v_lshlrev_b32 v12, 12, v1\ns_mov_b64 exec, {(1 << cfg.tlbw) - 1}\nbuffer_load_dword v13, v12, s[20:23], s27 offen {cfg.NT}\ns_mov_b64 exec, -1')
    a('s_barrier')
    stamp(1)
    for i in range(24):
        r = 72 + 4*i
        a(f'buffer_load_dwordx4 v[{r}:{r+3}], v2, s[20:23], s27 offen offset:{1024*(i&3)} {cfg.NT}')
        if cfg.thV < 63 and cfg.thV <= i < cfg.nth: a(f's_waitcnt vmcnt({cfg.thV})')
        if (i & 3) == 3 and i < 23: a(f's_add_u32 s27, s27, {61440 if (cfg.il and (i & 7) == 7) else 4096}')
    stamp(2)
    if cfg.xp & 512: a('s_waitcnt vmcnt(0)\ns_branch L_xv')
    pspin('v9', 'v10')
    stamp(3)
    def pread(t):
        buf = 40 + 16*(t & 1)
        for x in range(4): a(f'ds_read_b128 v[{buf+4*x}:{buf+4*x+3}], v{3+x} offset:{256*t}')
    pread(0); pread(1)
    for t in range(3):
        a(f's_waitcnt vmcnt({16-8*t})')
        if t == 2: stamp(4)
        vb = 72 + 32*t; pb = 40 + 16*(t & 1)
        for j in range(8):
            tb = 24 + 4*(j & 3)
            sel = 's37' if (j & 1) else 's36'
            for tt in range(4):
                a(f'v_perm_b32 v{tb+tt}, v{vb + 4*(2*tt+1) + (j>>1)}, v{vb + 4*(2*tt) + (j>>1)}, {sel}')
            if j == 0: a('s_waitcnt lgkmcnt(4)' if t == 0 else 's_waitcnt lgkmcnt(0)')
            if j > 0:
                jj = j - 1; tb2 = 24 + 4*(jj & 3); acc = 16 + 4*(jj & 1); x = jj >> 1
                c = '0' if (t == 0 and jj < 2) else f'v[{acc}:{acc+3}]'
                a(f'v_mfma_f32_16x16x32_bf16 v[{acc}:{acc+3}], v[{pb+4*x}:{pb+4*x+3}], v[{tb2}:{tb2+3}], {c}')
        a(f'v_mfma_f32_16x16x32_bf16 v[20:23], v[{pb+12}:{pb+15}], v[36:39], v[20:23]')
        if t == 0: pread(2)
    for r in range(4):
        ad = 7 + (r >> 1); o = 128*(r & 1)
        a(f'ds_write2_b32 v{ad}, v{16+r}, v{20+r} offset0:{o} offset1:{o+1}')
    a('s_waitcnt lgkmcnt(0)')
    a('L_xv:')
    stamp(5)
    a('s_barrier')
    if cfg.stamps:
        a('s_cmp_lg_u32 s4, 0\ns_cbranch_scc1 L_end')
        stamps_out(6, 8)
    a('s_endpgm')

    a('L_spare:')
    if cfg.xp & 2048: a('s_endpgm')
    if cfg.xp & 16: a('s_endpgm')
    if cfg.tlbw:
        a('s_cmp_lg_u32 s4, 9\ns_cbranch_scc1 L_sp1')
        a('s_load_dwordx2 s[36:37], s[0:1], 32\ns_load_dwordx2 s[40:41], s[0:1], 48\ns_load_dwordx2 s[44:45], s[0:1], 64\ns_load_dwordx2 s[48:49], s[0:1], 88')
        a('v_lshlrev_b32 v2, 16, v1\nv_lshlrev_b32 v3, 14, v1')
        a(f's_mov_b32 s38, {4096*1024}\ns_mov_b32 s39, 0x20000\ns_mov_b32 s42, {512*3584}\ns_mov_b32 s43, 0x20000\ns_mov_b32 s46, {1792*1024}\ns_mov_b32 s47, 0x20000\ns_mov_b32 s50, {512*6144}\ns_mov_b32 s51, 0x20000')
        a('s_waitcnt lgkmcnt(0)')
        srd(16, 's14', 's15', WS_SZ)
        a('buffer_load_dword v8, v3, s[16:19], 0 offen sc1')
        a('s_cmp_lg_u32 s5, 0\ns_cbranch_scc1 L_sp0')
        a('buffer_load_dword v4, v2, s[36:39], 0 offen nt\nbuffer_load_dword v5, v2, s[40:43], 0 offen nt\nbuffer_load_dword v6, v2, s[44:47], 0 offen nt')
        a('s_endpgm')
        a('L_sp0:')
        a('buffer_load_dword v7, v2, s[48:51], 0 offen nt')
        a('s_endpgm')
        a('L_sp1:')
    a('s_cmp_lg_u32 s5, 0\ns_cbranch_scc1 L_end')
    a('s_cmp_lg_u32 s4, 8\ns_cbranch_scc1 L_end')
    a('v_mov_b32 v4, -1\nv_mov_b32 v5, -1\nv_mov_b32 v6, -1\nv_mov_b32 v7, -1')
    a(f's_lshl_b32 s6, s3, 10\ns_add_u32 s6, s6, {WOUT}\nv_lshlrev_b32 v2, 4, v1\nv_add_u32 v2, s6, v2')
    a(f's_lshl_b32 s6, s3, 12\ns_add_u32 s6, s6, {MOUT}\nv_lshlrev_b32 v8, 4, v1\nv_add_u32 v8, s6, v8')
    a('s_waitcnt lgkmcnt(0)')
    a('global_store_dwordx4 v2, v[4:7], s[14:15] sc1')
    if cfg.owarm:
        a('s_cmp_lg_u32 s3, 31\ns_cbranch_scc1 L_sp3')
        a('s_load_dwordx2 s[36:37], s[0:1], 96\nv_lshlrev_b32 v9, 4, v1\ns_waitcnt lgkmcnt(0)')
        a('global_store_dwordx4 v9, v[4:7], s[36:37] sc1\nglobal_store_dwordx4 v9, v[4:7], s[36:37] offset:1024 sc1')
        if cfg.owarm > 1: a(f'v_add_u32 v9, {EPO + 64}, v9\ns_mov_b64 exec, 15\nglobal_store_dwordx4 v9, v[4:7], s[14:15] sc1\ns_mov_b64 exec, -1')
        a('L_sp3:')
    if not cfg.mtag:
        a('s_cmp_ge_u32 s3, 28\ns_cbranch_scc1 L_sp2')
        for i in range(4): a(f'global_store_dwordx4 v8, v[4:7], s[14:15] offset:{1024*i} sc1')
        a('L_sp2:')
    a('s_waitcnt vmcnt(0)')
    a('s_endpgm')

    AT=136; DD=32; Z=36; T=38; ZT=37; F0=40; F1=72; F2=104
    if not cfg.hfirst: hearly()
    a('L_helper:')
    epoch_load()
    if cfg.diag is not None: a(f's_load_dword s96, s[14:15], {XID+4}\ns_load_dword s97, s[14:15], {EPO}')
    a('s_load_dwordx2 s[44:45], s[0:1], 0')
    a('s_load_dwordx4 s[48:51], s[0:1], 24')
    a('s_load_dwordx4 s[52:55], s[0:1], 80')
    a('v_lshrrev_b32 v10, 3, v1\nv_and_b32 v11, 3, v1\nv_lshlrev_b32 v11, 1, v11\nv_lshl_add_u32 v10, v10, 3, v11')
    a('v_bfe_u32 v11, v1, 2, 1')
    a('s_lshl_b32 s6, s4, 6\nv_add_u32 v12, s6, v10')
    a('v_lshlrev_b32 v6, 1, v12\nv_lshl_add_u32 v6, v11, 10, v6')
    a(f'v_lshlrev_b32 v9, 2, v12\nv_lshl_add_u32 v9, v11, 11, v9\nv_add_u32 v9, {X1}, v9')
    a(f's_lshr_b32 s6, s4, 2\ns_mul_i32 s6, s6, 576\ns_and_b32 s7, s4, 3\ns_lshl_b32 s7, s7, 7\ns_add_u32 s6, s6, s7\ns_add_u32 s6, s6, {ACT}')
    a('v_mul_u32_u24 v7, 1152, v11\nv_lshl_add_u32 v7, v10, 1, v7\nv_add_u32 v7, s6, v7')
    a('v_lshrrev_b32 v13, 3, v1\nv_lshlrev_b32 v13, 2, v13\nv_lshl_add_u32 v13, v11, 5, v13')
    a(f'v_add_u32 v13, {STAT}, v13')
    a('s_waitcnt lgkmcnt(0)')
    srd(16, 's14', 's15', WS_SZ)
    epoch_tag()
    a('global_load_dword v17, v6, s[52:53]')
    a('global_load_dword v16, v6, s[44:45]')
    a('s_cmp_eq_u32 s5, 0\ns_cbranch_scc1 L_t2')
    a('s_add_u32 s24, s25, 128')
    dma_u1('s48', 's49', 512*8192, 8192, 's24', R1)
    a('s_branch L_h2')
    a('L_t2:')
    a('s_lshr_b32 s26, s3, 1\ns_lshl_b32 s24, s26, 18\ns_and_b32 s6, s3, 1\ns_lshl_b32 s6, s6, 9\ns_add_u32 s24, s24, s6')
    dma_w(8, 8 + cfg.pre)
    a('L_h2:')
    a('v_lshrrev_b32 v10, 4, v1\nv_bfe_u32 v11, v1, 2, 2\nv_lshl_add_u32 v3, v10, 3, v11')
    a('v_bfe_u32 v11, v1, 1, 1\nv_lshl_add_u32 v3, v11, 8, v3\nv_lshlrev_b32 v3, 7, v3')
    a('v_bfe_u32 v12, v1, 3, 2\nv_lshl_add_u32 v12, v11, 2, v12\nv_xor_b32 v12, s4, v12\nv_lshl_add_u32 v3, v12, 4, v3')
    a('v_and_b32 v12, 1, v1\nv_lshl_add_u32 v3, v12, 3, v3')
    a(f'v_lshl_add_u32 v4, v12, 1, v11\nv_mul_u32_u24 v4, 576, v4\nv_lshl_add_u32 v4, v10, 4, v4\nv_add_u32 v4, {ACT}, v4')
    a('v_lshlrev_b32 v5, 3, v0')
    a('s_lshl_b32 s6, s4, 7\nv_lshl_add_u32 v8, v1, 3, s6\nv_lshlrev_b32 v28, 4, v0')
    a(f'v_and_b32 v10, 0x37, v1\nv_cmp_eq_u32 vcc, 1, v10\nv_mov_b32 v18, {f2u(1e-5)}\nv_cndmask_b32 v18, 0, v18, vcc')
    a(f'v_lshlrev_b32 v10, 2, v1\nv_add_u32 v10, {STAT}, v10\nv_mov_b32 v{T+1}, s33\nv_mov_b32 v{ZT}, s33')
    a('s_mov_b32 exec_lo, -1\ns_mov_b32 exec_hi, 0xffff\nds_write_b32 v10, v18\ns_mov_b64 exec, -1')

    def tr_u1(F, region, steps=8, ad=None):
        if ad is None:
            if region: a(f'v_add_u32 v10, {region}, v3')
            ad = 'v10' if region else 'v3'
        for s in range(steps):
            for hh in range(2):
                a(f'ds_read_b64_tr_b16 v[{F+4*s+2*hh}:{F+4*s+2*hh+1}], {ad} offset:{4096*s + 512*hh}')
    def gemv(Fs, ad='v4', fill=(), off=0, steps=8, Ds=None):
        if isinstance(Fs, int): Fs = [Fs]
        if Ds is None: Ds = [DD]
        fill = list(fill)
        for s in range(steps): a(f'ds_read_b128 v[{AT+4*s}:{AT+4*s+3}], {ad} offset:{64*s+off}')
        per = (len(fill) + steps - 2) // (steps - 1)
        for s in range(steps):
            a(f's_waitcnt lgkmcnt({steps-1-s})')
            for F, D in zip(Fs, Ds):
                c = '0' if s == 0 else f'v[{D}:{D+3}]'
                a(f'v_mfma_f32_16x16x32_bf16 v[{D}:{D+3}], v[{AT+4*s}:{AT+4*s+3}], v[{F+4*s}:{F+4*s+3}], {c}')
            for _ in range(per):
                if fill: a(fill.pop(0))
        for x in fill: a(x)
    def sgemv(Fs, Ds, ad, idx, off=0, fill=(), steps=4, lead=2):
        fill = list(fill)
        for s in range(steps): a(f'ds_read_b128 v[{AT+4*s}:{AT+4*s+3}], {ad} offset:{64*s+off}')
        per = lead
        for s in range(steps):
            a(f's_waitcnt lgkmcnt({steps-1-s})')
            for F, D in zip(Fs, Ds):
                a(f'v_smfmac_f32_16x16x64_bf16 v[{D}:{D+3}], v[{AT+4*s}:{AT+4*s+3}], v[{F+8*s}:{F+8*s+7}], {idx}')
            for _ in range(per):
                if fill: a(fill.pop(0))
        for x in fill: a(x)
    def fold(D=DD, z=Z):
        a(f'v_add_f32_dpp v{z}, v{D+2}, v{D} row_ror:8 row_mask:0xf bank_mask:0x3')
        a(f'v_add_f32_dpp v{z}, v{D+1}, v{D+3} row_ror:8 row_mask:0xf bank_mask:0xc')
    def publish_tag(z, soff):
        a(f's_mov_b64 exec, 0xffff\nbuffer_store_dwordx2 v[{Z}:{Z+1}], v8, s[16:19], {soff} offen sc1\ns_mov_b64 exec, -1')
    def store2(text):
        if not cfg.fast: a(text + ' sc1'); return
        l = lab('fs'); d = lab('fd')
        a(f's_cbranch_scc1 {l}')
        a(text + ' sc1'); a(f's_branch {d}')
        a(f'{l}:'); a(text + ' ' + cfg.lst); a(f'{d}:')
    def unpack(lo, hi, src):
        a(f'v_lshlrev_b32 v{lo}, 16, v{src}\nv_and_b32 v{hi}, 0xffff0000, v{src}')
    def red6(vals, off, TT, scale=None, ad='v13'):
        r01, r23, r45, z = TT
        for r, (e, o) in zip((r01, r23, r45), ((vals[0], vals[1]), (vals[2], vals[3]), (vals[4], vals[5]))):
            a(f'v_add_f32_dpp v{r}, v{e}, v{e} row_ror:8 row_mask:0xf bank_mask:0x3')
        for r, (e, o) in zip((r01, r23, r45), ((vals[0], vals[1]), (vals[2], vals[3]), (vals[4], vals[5]))):
            a(f'v_add_f32_dpp v{r}, v{o}, v{o} row_ror:8 row_mask:0xf bank_mask:0xc')
        a(f'v_permlane16_swap_b32 v{r01}, v{r23}\nv_permlane16_swap_b32 v{r45}, v{z}')
        a(f'v_add_f32 v{r01}, v{r01}, v{r23}\nv_add_f32 v{r45}, v{r45}, v{z}')
        a(f'v_permlane32_swap_b32 v{r01}, v{r45}\nv_add_f32 v{r01}, v{r01}, v{r45}')
        a(f'v_add_f32_dpp v{r01}, v{r01}, v{r01} quad_perm:[1,0,3,2] row_mask:0xf bank_mask:0xf')
        a(f'v_add_f32_dpp v{r01}, v{r01}, v{r01} quad_perm:[2,3,0,1] row_mask:0xf bank_mask:0xf')
        a(f's_mov_b32 exec_lo, 0x11111111\ns_mov_b32 exec_hi, 0x1111')
        if scale: a(f'v_mul_f32 v{r01}, v{r01}, {scale}')
        a(f'ds_add_f32 {ad}, v{r01} offset:{off}\ns_mov_b64 exec, -1')

    stamp(1)
    def silu():
        unpack(18, 19, 17)
        a(f's_mov_b32 s6, {f2u(-LOG2E)}')
        a('v_mul_f32 v20, s6, v18\nv_mul_f32 v21, s6, v19\nv_exp_f32 v20, v20\nv_exp_f32 v21, v21')
        a('v_add_f32 v20, 1.0, v20\nv_add_f32 v21, 1.0, v21\nv_rcp_f32 v20, v20\nv_rcp_f32 v21, v21')
        a('v_mul_f32 v18, v18, v20\nv_mul_f32 v19, v19, v21\nv_cvt_pk_bf16_f32 v18, v18, v19')
        a(f'ds_write_b32 v7, v18 offset:{ACTC-ACT}')
        unpack(14, 15, 16)
    a('s_cmp_eq_u32 s5, 0\ns_cbranch_scc1 L_tail')
    mloads = [f'buffer_load_dwordx4 v[{AT+4*k}:{AT+4*k+3}], v28, s[16:19], s{60+k} offen sc1' for k in range(4)]
    for k in range(4): a(f's_mov_b32 s{60+k}, {MODA + 8192*k}')
    if not cfg.mlate:
        for x in mloads: a(x)
    a(f's_waitcnt vmcnt({8 if cfg.mlate else 12})')
    stamp(2)
    silu()
    a('v_add_f32 v18, v14, v15\nv_mul_f32 v19, v14, v14\nv_fmac_f32 v19, v15, v15')
    a('s_waitcnt lgkmcnt(0)\ns_barrier')
    red6([18, 19, 18, 19, 18, 19], STAT2 - STAT, (24, 25, 26, 27))
    tr_u1(F0, R0)
    a('s_waitcnt lgkmcnt(0)\ns_barrier')
    stamp(3)
    a('s_lshl_b32 s24, s3, 7\ns_add_u32 s24, s24, 2048')
    if cfg.xp & 128:
        dma_u1('s54', 's55', 512*6144, 6144, 's24', R0)
        a('s_endpgm')
    if cfg.mlate:
        if cfg.mlate > 1: a(f's_waitcnt vmcnt({cfg.mlate})')
        for x in mloads: a(x)
    if cfg.apre: dma_u1('s54', 's55', 512*6144, 6144, 's24', R0, i1=cfg.apre)
    a(f'v_bfe_u32 v10, v1, 2, 1\nv_lshlrev_b32 v10, 5, v10\nv_add_u32 v10, {STAT2}, v10')
    a('ds_read_b64 v[18:19], v10\ns_waitcnt lgkmcnt(0)')
    a(f's_mov_b32 s6, {f2u(1/512)}\ns_mov_b32 s7, {f2u(1e-5)}')
    a('v_mul_f32 v18, s6, v18\nv_mul_f32 v19, s6, v19\nv_fma_f32 v19, -v18, v18, v19\nv_add_f32 v19, s7, v19\nv_rsq_f32 v19, v19')
    a('v_sub_f32 v20, v14, v18\nv_sub_f32 v21, v15, v18\nv_mul_f32 v20, v20, v19\nv_mul_f32 v21, v21, v19')
    a('v_bfe_u32 v30, v1, 1, 2\nv_lshlrev_b32 v30, 3, v30\nv_bfe_u32 v11, v1, 3, 1\nv_lshl_add_u32 v30, v11, 9, v30\nv_bfe_u32 v11, v1, 4, 1\nv_lshl_add_u32 v30, v11, 8, v30')
    a(f's_lshl_b32 s6, s4, 5\ns_add_u32 s6, s6, {X1}\nv_add_u32 v30, s6, v30')
    a(f'v_lshlrev_b32 v31, 4, v1\nv_add_u32 v29, {X1}, v31\nv_lshrrev_b32 v11, 5, v1\nv_mul_u32_u24 v11, 1536, v11\nv_add_u32 v31, v31, v11')
    vpoll(mloads, range(AT+1, AT+16, 2), 22, first_issued=True, tags=True, sleep=cfg.slpB, first_cnt=cfg.apre)
    stamp(4)
    a(f'v_add_f32 v22, v{AT}, v{AT+8}\nv_add_f32 v23, v{AT+2}, v{AT+10}\nv_add_f32 v24, v{AT+4}, v{AT+12}\nv_add_f32 v25, v{AT+6}, v{AT+14}')
    a('v_add_f32 v24, 1.0, v24\nv_add_f32 v25, 1.0, v25\nv_fma_f32 v20, v20, v24, v22\nv_fma_f32 v21, v21, v25, v23')
    a('v_cvt_pk_bf16_f32 v20, v20, v21\nds_write_b32 v7, v20\ns_waitcnt lgkmcnt(0)\ns_barrier')
    stamp(5)
    tr_u1(F1, R1)
    gemv([F0, F1], Ds=[DD, 24])
    a(f'v_add_f32_dpp v{Z}, v{DD+2}, v{DD} row_ror:8 row_mask:0x1 bank_mask:0x3')
    a(f'v_add_f32_dpp v{Z}, v{DD+1}, v{DD+3} row_ror:8 row_mask:0x1 bank_mask:0xc')
    a(f'v_add_f32_dpp v{Z}, v26, v24 row_ror:8 row_mask:0x2 bank_mask:0x3')
    a(f'v_add_f32_dpp v{Z}, v25, v27 row_ror:8 row_mask:0x2 bank_mask:0xc')
    a(f'v_mov_b32_dpp v{T}, v{Z} quad_perm:[1,1,3,3] row_mask:0xf bank_mask:0xf')
    a(f's_mov_b64 exec, 0x55555555')
    a(f'v_cvt_pk_bf16_f32 v{T}, v{Z}, v{T}')
    a(f'ds_write_b64 v30, v[{T}:{T+1}]\ns_mov_b64 exec, -1')
    a('s_waitcnt lgkmcnt(0)\ns_barrier')
    a('s_cmp_lg_u32 s4, 0\ns_cbranch_scc1 L_nqp')
    a(f's_lshr_b32 s6, s3, 2\ns_lshl_b32 s6, s6, 12\ns_and_b32 s7, s3, 3\ns_lshl_b32 s7, s7, 9\ns_add_u32 s6, s6, s7\ns_add_u32 s6, s6, {QO}')
    a('ds_read_b128 v[24:27], v29\ns_waitcnt lgkmcnt(0)')
    a('buffer_store_dwordx4 v[24:27], v31, s[16:19], s6 offen sc1')
    a('L_nqp:')
    stamp(6)
    if cfg.qobs:
        a('s_cmp_lg_u32 s4, 0\ns_cbranch_scc1 L_nobs')
        a(f's_lshr_b32 s6, s3, 2\ns_lshl_b32 s6, s6, 12\ns_add_u32 s6, s6, {QO}\nv_lshlrev_b32 v10, 4, v1')
        a('s_waitcnt vmcnt(0)'); stamp(2)
        vpoll([f'buffer_load_dwordx4 v[{AT+4*k}:{AT+4*k+3}], v10, s[16:19], s6 offen offset:{1024*k} sc1' for k in range(2)], range(AT+1, AT+8, 2), 22, tags=True)
        stamp(1)
        a('L_nobs:')
    if cfg.apre < 8: dma_u1('s54', 's55', 512*6144, 6144, 's24', R0, i0=cfg.apre)
    a('s_waitcnt vmcnt(0)\ns_barrier')
    tr_u1(F0, R0)
    gemv(F0, off=ACTC-ACT); fold()
    a(f's_lshl_b32 s6, s3, 10\ns_add_u32 s6, s6, {MODB}')
    publish_tag(Z, 's6')
    stamp(7)
    if cfg.stamps:
        a('s_cmp_lg_u32 s4, 0\ns_cbranch_scc1 L_end')
        stamps_out(8, 0)
    a('s_endpgm')

    a('L_tail:')
    a(f's_waitcnt vmcnt({cfg.pre})')
    stamp(2)
    silu()
    a('s_load_dwordx8 s[52:59], s[0:1], 48')
    a('s_load_dwordx2 s[46:47], s[0:1], 96')
    if cfg.diag is not None: a('s_waitcnt lgkmcnt(0)\ns_load_dwordx2 s[98:99], s[46:47], 0')
    a('v_bfe_u32 v11, v1, 1, 1\nv_lshlrev_b32 v10, 14, v11\nv_sub_u32 v10, v3, v10')
    a('v_mul_u32_u24 v11, 320, v11\nv_sub_u32 v11, v4, v11\ns_and_b32 s6, s3, 1\ns_mul_i32 s6, s6, 576\nv_add_u32 v11, s6, v11')
    a('s_waitcnt lgkmcnt(0)\ns_barrier')
    tr_u1(F0, R0, 4, 'v10')
    gemv(F0, 'v11', off=ACTC-ACT, steps=4); fold()
    a('s_and_b32 s6, s3, 1\ns_lshl_b32 s6, s6, 14\ns_lshr_b32 s7, s3, 1\ns_lshl_b32 s7, s7, 10\ns_add_u32 s6, s6, s7')
    publish_tag(Z, 's6')
    stamp(3)
    dma_w(8 + cfg.pre, 16, setup=False)
    a('s_barrier')
    dma_w(0, 8, setup=False)
    a('v_lshrrev_b32 v10, 4, v1\nv_bfe_u32 v11, v1, 2, 2\nv_lshl_add_u32 v10, v10, 3, v11\nv_lshlrev_b32 v10, 9, v10')
    a('v_and_b32 v11, 3, v1\nv_lshl_add_u32 v10, v11, 3, v10')
    a('v_bfe_u32 v11, v1, 2, 3\nv_lshlrev_b32 v11, 5, v11\ns_lshl_b32 s6, s4, 6\nv_xor_b32 v11, s6, v11')
    a('v_add_u32 v22, v10, v11\nv_xor_b32 v11, 32, v11\nv_add_u32 v30, v10, v11')
    def tr_w(half):
        for cg, ad in ((0, 22), (1, 30)):
            if half: a(f'v_add_u32 v{10+cg}, {R1}, v{ad}')
            for s_ in range(4):
                for hh in range(2):
                    r = (F0, F1)[cg] + 4*(4*half + s_) + 2*hh
                    a(f'ds_read_b64_tr_b16 v[{r}:{r+1}], v{10+cg if half else ad} offset:{16384*s_ + 2048*hh}')
    a(f's_getreg_b32 s6, hwreg(HW_REG_XCC_ID)\ns_and_b32 s31, s6, 15\nv_mov_b32 v{T}, s31')
    a(f's_lshl_b32 s6, s3, 7\ns_add_u32 s6, s6, {XID}\nv_lshlrev_b32 v10, 3, v1')
    a('s_cmp_eq_u32 s4, 0\ns_cselect_b32 exec_lo, 0xffff, 0\ns_mov_b32 exec_hi, 0\ns_cbranch_execz L_nxid')
    a(f'buffer_store_dwordx2 v[{T}:{T+1}], v10, s[16:19], s6 offen sc1')
    a('L_nxid:')
    a('s_mov_b64 exec, -1')
    a('s_waitcnt vmcnt(8)\ns_barrier')
    stamp(4)
    tr_w(1)
    a('s_waitcnt lgkmcnt(0)\ns_barrier')
    a('s_cmp_ge_u32 s3, 28\ns_cbranch_scc1 L_nom1')
    a('s_lshl_b32 s24, s3, 7')
    dma_u1('s52', 's53', 512*3584, 3584, 's24', R1)
    stamp(5)
    a('s_waitcnt vmcnt(8)\ns_branch L_m1d')
    a('L_nom1:')
    a('s_waitcnt vmcnt(0)')
    a('L_m1d:')
    a('s_barrier')
    tr_w(0)
    a('s_waitcnt lgkmcnt(0)\ns_barrier')
    stamp(7)
    a('s_cmp_ge_u32 s3, 28\ns_cbranch_scc1 L_nom2')
    srd(20, 's56', 's57', 1792*1024)
    a('s_and_b32 s6, s4, 1\ns_lshl_b32 s6, s6, 7\nv_lshlrev_b32 v2, 4, v1\nv_xor_b32 v2, s6, v2')
    a('v_xor_b32 v10, 32, v2\nv_xor_b32 v11, 64, v2\nv_xor_b32 v12, 96, v2')
    a(f's_lshl_b32 s27, s3, 16\ns_lshl_b32 s28, s4, 13\ns_add_u32 s27, s27, s28')
    for hh in range(2):
        a('s_mov_b32 m0, s28')
        for i in range(4): a(f'buffer_load_dwordx4 v{(2,10,11,12)[i]}, s[20:23], s27 offen offset:{1024*i} {cfg.NT} lds')
        if hh == 0: a('s_add_u32 s27, s27, 4096\ns_add_u32 s28, s28, 4096')
    stamp(6)
    if cfg.xp & 256: a('s_endpgm')
    if cfg.touch:
        a(f's_lshl_b32 s6, s3, 12\ns_add_u32 s6, s6, {MOUT}\nbuffer_load_dwordx2 v[{DD}:{DD+1}], v5, s[16:19], s6 offen sc1')
    a('v_and_b32 v10, 7, v1\nv_lshlrev_b32 v10, 1, v10')
    a('s_and_b32 s6, s3, 15\ns_lshl_b32 s6, s6, 5\ns_lshl_b32 s7, s4, 2\ns_add_u32 s6, s6, s7')
    a('v_and_b32 v11, 1, v1\nv_lshl_add_u32 v11, v11, 1, s6\nv_bfe_u32 v12, v1, 4, 1\nv_add_u32 v23, v11, v12')
    a('v_lshlrev_b32 v11, 1, v23\nglobal_load_ushort v24, v11, s[58:59]')
    a('s_lshl_b32 s6, s3, 7\ns_lshl_b32 s7, s4, 4\ns_add_u32 s6, s6, s7')
    a('v_add_u32 v11, s6, v10\nglobal_load_ushort v25, v11, s[54:55]')
    a('L_nom2:')
    if cfg.xp & 256: a('s_endpgm')
    if cfg.touch:
        a(f's_lshl_b32 s6, s3, 10\ns_add_u32 s6, s6, {WOUT}\nv_lshlrev_b32 v10, 4, v1\nbuffer_load_dword v{DD+2}, v10, s[16:19], s6 offen sc1')
    a(f'v_and_b32 v10, 31, v1\nv_lshlrev_b32 v10, 7, v10\ns_mov_b32 s6, {XID}')
    vpoll([f'buffer_load_dwordx2 v[{AT}:{AT+1}], v10, s[16:19], s6 offen sc1'], [AT+1], None, sleep=cfg.slp, tags=True)
    a(f'v_cmp_ne_u32 vcc, s31, v{AT}\ns_cmp_eq_u64 vcc, 0\ns_cselect_b32 s32, 1, 0')
    a('s_cmp_ge_u32 s3, 28\ns_cbranch_scc1 L_wst')
    a('s_barrier')
    tr_u1(F2, R1)
    a('v_lshrrev_b32 v11, 3, v23\nv_lshlrev_b32 v11, 7, v11\nv_and_b32 v12, 7, v23\nv_lshl_add_u32 v11, v12, 3, v11\nv_bfe_u32 v12, v1, 3, 1\nv_lshl_add_u32 v11, v12, 6, v11')
    a(f's_mov_b32 s63, {MODB + 24*1024}')
    for k in range(3): a(f's_mov_b32 s{60+k}, {MODB + 8192*k}')
    a('v_lshlrev_b32 v24, 16, v24\nv_lshlrev_b32 v25, 16, v25')
    a(f'v_mov_b32 v{AT+15}, 0x3f803f80\nds_write_b32 v7, v{AT+15} offset:{ACTM-ACT+3*TS}')
    stamp(1)
    vpoll([f'buffer_load_dwordx4 v[{AT+4*k}:{AT+4*k+3}], v28, s[16:19], s{60+k} offen sc1' for k in range(3)] +
          [f'buffer_load_dwordx2 v[{AT+12}:{AT+13}], v11, s[16:19], s63 offen sc1'], range(AT+1, AT+14, 2), AT+14, sleep=cfg.slpM, tags=True)
    stamp(8)
    a(f'v_mov_b32 v23, v{AT+12}\nv_mov_b32 v16, v{AT}\nv_mov_b32 v17, v{AT+2}')
    a(f'v_add_f32 v18, 1.0, v{AT+8}\nv_add_f32 v19, 1.0, v{AT+10}\nv_cvt_pk_bf16_f32 v{AT+1}, v{AT+4}, v{AT+6}\nv_cvt_pk_bf16_f32 v{AT+3}, v18, v19')
    unpack(18, 19, AT+3); unpack(20, 21, AT+1)
    a(f'ds_write_b32 v7, v{AT+3} offset:{ACTM-ACT+TS}\nds_write_b32 v7, v{AT+1} offset:{ACTM-ACT+2*TS}')
    t = AT + 16
    a(f'v_add_f32 v{t}, v18, v19\nv_mul_f32 v{t+1}, v18, v18\nv_fmac_f32 v{t+1}, v19, v19')
    a(f'v_mul_f32 v{t+2}, v18, v20\nv_fmac_f32 v{t+2}, v19, v21\nv_add_f32 v{t+3}, v20, v21')
    a(f'v_mul_f32 v{t+4}, v20, v20\nv_fmac_f32 v{t+4}, v21, v21')
    red6([t, t+1, t+2, t+3, t+4, t+4], STAT3 - STAT, (t+6, t+7, t+8, t+9))
    a(f'v_bfe_u32 v10, v1, 2, 2\nv_mul_u32_u24 v10, {TS}, v10\nv_add_u32 v10, v10, v4')
    a('s_waitcnt lgkmcnt(0)\ns_barrier')
    gemv(F2, 'v10', off=ACTM-ACT); fold()
    a(f'v_mov_b32 v26, v{Z}\nv_permlane16_swap_b32 v{Z}, v26')
    a(f'v_mov_b32 v27, v{Z}\nv_mov_b32 v28, v26\nv_permlane32_swap_b32 v{Z}, v27\nv_permlane32_swap_b32 v26, v28')
    a('L_wst:')
    if cfg.xp & 64: a('s_endpgm')
    if cfg.dirty:
        a(f's_lshl_b32 s6, s3, 15\ns_add_u32 s6, s6, 0xA0000\nv_lshlrev_b32 v10, 4, v0')
        srd(20, 's14', 's15', 0x200000)
        for i in range(cfg.dirty):
            a(f'buffer_store_dwordx4 v[40:43], v10, s[20:23], s6 offen\ns_add_u32 s6, s6, 8192')
    a('s_lshr_b32 s6, s4, 2\ns_lshl_b32 s24, s6, 3\ns_lshr_b32 s7, s26, 1\ns_add_u32 s24, s24, s7')
    a('s_and_b32 s7, s26, 1\ns_lshl_b32 s7, s7, 1\ns_bfe_u32 s28, s4, 0x10001\ns_add_u32 s7, s7, s28')
    a(f's_lshl_b32 s27, s24, 11\ns_lshl_b32 s29, s7, 3\ns_add_u32 s27, s27, s29\ns_add_u32 s27, s27, {LSE}')
    a(f's_lshl_b32 s60, s24, 14\ns_lshl_b32 s29, s7, 8\ns_add_u32 s60, s60, s29\ns_and_b32 s29, s4, 1\ns_lshl_b32 s29, s29, 7\ns_add_u32 s60, s60, s29\ns_add_u32 s60, s60, {OP}')
    a('s_add_u32 s61, s60, 4096')
    a(f's_mul_i32 s6, s6, 1152\ns_and_b32 s29, s4, 3\ns_lshl_b32 s29, s29, 6\ns_add_u32 s6, s6, s29\ns_add_u32 s6, s6, {ACT}')
    a('v_and_b32 v31, 1, v1\nv_mul_u32_u24 v31, 576, v31\nv_bfe_u32 v10, v1, 1, 4\nv_lshl_add_u32 v31, v10, 2, v31\nv_add_u32 v31, s6, v31')
    a('s_mov_b32 s62, 6144\nv_and_b32 v2, 31, v1\nv_lshlrev_b32 v2, 2, v2\nv_lshrrev_b32 v10, 5, v1\nv_mad_u32_u24 v2, v10, s62, v2')
    a(f's_lshl_b32 s29, s3, 10\ns_add_u32 s29, s29, {WOUT}')
    a('v_and_b32 v11, 2, v1\nv_cmp_eq_u32 vcc, 0, v11\nv_mov_b32 v11, 0xeeee\nv_mov_b32 v22, 0x4444\nv_cndmask_b32 v22, v11, v22, vcc')
    for r in range(8): a(f'v_mov_b32 v{DD+r}, 0')
    a('v_bfe_u32 v8, v1, 1, 2\nv_lshlrev_b32 v8, 4, v8\nv_bfe_u32 v11, v1, 4, 1\nv_lshl_add_u32 v8, v11, 6, v8\nv_bfe_u32 v11, v1, 3, 1\nv_lshl_add_u32 v8, v11, 7, v8')
    a('v_lshl_add_u32 v8, v10, 2, v8\ns_lshr_b32 s6, s4, 1\ns_lshl_b32 s6, s6, 8\ns_and_b32 s7, s4, 1\ns_lshl_b32 s7, s7, 3\ns_add_u32 s6, s6, s7\nv_add_u32 v8, s6, v8')
    a(f'v_lshlrev_b32 v10, 7, v1\nv_mov_b32 v{AT}, 0xff800000')
    stamp(9)
    a(f's_mov_b64 exec, {(1 << NCH) - 1:#x}')
    vpoll([f'buffer_load_dwordx2 v[{AT}:{AT+1}], v10, s[16:19], s27 offen sc1'], [AT+1], None, sleep=cfg.slp, tags=True)
    a('s_mov_b64 exec, -1')
    if cfg.diag is not None and cfg.diag >= 90:
        op = 'min' if cfg.diag == 99 else 'max'
        a(f'v_mov_b32 v{AT+2}, ' + ('0' if cfg.dk else 's64') + f'\ns_mov_b64 exec, {(1 << NCH) - 1:#x}\nbuffer_load_dword v{AT+2}, v10, s[16:19], s27 offen offset:64 sc1\ns_waitcnt vmcnt(0)\ns_mov_b64 exec, -1')
        if not cfg.dk: a(f'v_subrev_u32 v{AT+2}, s64, v{AT+2}')
        if cfg.diag >= 98:
            for r in (1, 2, 4, 8): a(f'v_{op}_i32_dpp v{AT+2}, v{AT+2}, v{AT+2} row_ror:{r} row_mask:0xf bank_mask:0xf')
        a(f'v_readlane_b32 s92, v{AT+2}, {0 if cfg.diag >= 98 else cfg.diag - 90}\ns_add_u32 s92, s92, 250\ns_add_u32 s92, s92, s64')
    a(f'v_mov_b32 v{AT+1}, v{AT}')
    for r in (1, 2, 4, 8): a(f'v_max_f32_dpp v{AT+1}, v{AT+1}, v{AT+1} row_ror:{r} row_mask:0xf bank_mask:0xf')
    a(f'v_sub_f32 v{AT}, v{AT}, v{AT+1}\nv_exp_f32 v{AT}, v{AT}\nv_mov_b32 v{AT+1}, v{AT}')
    for r in (1, 2, 4, 8): a(f'v_add_f32_dpp v{AT+1}, v{AT+1}, v{AT+1} row_ror:{r} row_mask:0xf bank_mask:0xf')
    a(f'v_rcp_f32 v{AT+1}, v{AT+1}\nv_mul_f32 v{AT}, v{AT}, v{AT+1}')
    a('v_lshrrev_b32 v10, 5, v1\nv_mul_u32_u24 v10, 24, v10')
    for i in range(6):
        a(f'ds_bpermute_b32 v{AT+24+i}, v10, v{AT} offset:{4*i}')
    a('s_waitcnt lgkmcnt(0)')
    wl = [f'buffer_load_dword v{AT+c}, v2, s[16:19], s{60+(c>>2)} offen offset:{1024*(c&3)} sc1' for c in range(6)]
    if cfg.mp & 1: mpoll([(wl[c], [AT+c]) for c in range(6)], AT+12)
    else: vpoll(wl, [AT+c for c in range(6)], AT+12)
    stamp(10)
    acc = AT + 20
    for c in range(6):
        tq = AT + 8 + 2*c
        unpack(tq, tq+1, AT+c)
    for c in range(6):
        tq = AT + 8 + 2*c; wp = AT + 24 + (c & ~1)
        mod = 'op_sel_hi:[1,0,1]' if (c & 1) == 0 else 'op_sel:[0,1,0] op_sel_hi:[1,1,1]'
        mod2 = 'op_sel_hi:[1,0]' if (c & 1) == 0 else 'op_sel:[0,1] op_sel_hi:[1,1]'
        ac = acc + 2*(c & 1)
        if c < 2: a(f'v_pk_mul_f32 v[{ac}:{ac+1}], v[{tq}:{tq+1}], v[{wp}:{wp+1}] {mod2}')
        else: a(f'v_pk_fma_f32 v[{ac}:{ac+1}], v[{tq}:{tq+1}], v[{wp}:{wp+1}], v[{ac}:{ac+1}] {mod}')
    a(f'v_pk_add_f32 v[{acc}:{acc+1}], v[{acc}:{acc+1}], v[{acc+2}:{acc+3}]')
    a(f'v_permlane32_swap_b32 v{acc}, v{acc+1}')
    a(f'v_add_f32 v{acc}, v{acc}, v{acc+1}')
    a(f'v_mov_b32 v{acc+1}, v{acc}\nv_permlane32_swap_b32 v{acc}, v{acc+1}')
    a(f's_mov_b64 exec, 0xffffffff\nv_cvt_pk_bf16_f32 v{acc}, v{acc}, v{acc+1}\nds_write_b32 v31, v{acc}\ns_mov_b64 exec, -1')
    fst(7)
    a('s_waitcnt lgkmcnt(0)\ns_barrier')
    fst(8)
    sgemv([F0, F1], [DD, Z], 'v4', 'v22')
    a(f'v_add_f32_dpp v10, v{DD}, v{DD+2} quad_perm:[0,1,2,3] row_mask:0x1 bank_mask:0xf')
    a(f'v_add_f32_dpp v10, v{DD+1}, v{DD+3} quad_perm:[0,1,2,3] row_mask:0x2 bank_mask:0xf')
    a(f'v_add_f32_dpp v10, v{Z}, v{Z+2} quad_perm:[0,1,2,3] row_mask:0x4 bank_mask:0xf')
    a(f'v_add_f32_dpp v10, v{Z+1}, v{Z+3} quad_perm:[0,1,2,3] row_mask:0x8 bank_mask:0xf')
    a('s_cmp_lg_u32 s32, 0')
    a('v_mov_b32_dpp v11, v10 quad_perm:[1,1,3,3] row_mask:0xf bank_mask:0xf')
    a('s_mov_b32 exec_lo, 0x55555555\ns_mov_b32 exec_hi, 0x55555555')
    a('v_cvt_pk_bf16_f32 v11, v10, v11')
    store2('buffer_store_dword v11, v8, s[16:19], s29 offen')
    a('s_mov_b64 exec, -1')
    stamp(11)
    a('s_cmp_ge_u32 s3, 28\ns_cbranch_scc1 L_hdone')

    a('v_lshrrev_b32 v10, 4, v1\nv_bfe_u32 v11, v1, 2, 2\nv_lshl_add_u32 v10, v10, 3, v11\nv_lshlrev_b32 v10, 10, v10')
    a(f'v_and_b32 v11, 3, v1\nv_lshl_add_u32 v10, v11, 3, v10')
    a('v_bfe_u32 v11, v1, 2, 3\nv_lshlrev_b32 v11, 5, v11\ns_lshl_b32 s6, s4, 7\nv_xor_b32 v11, s6, v11')
    for cg in range(4):
        a(f'v_xor_b32 v12, {32*cg}, v11\nv_add_u32 v{60+cg}, v10, v12')
    for cg in range(4):
        for s in range(2):
            for hh in range(2):
                r = F1 + (cg*2 + s)*4 + 2*hh
                a(f'ds_read_b64_tr_b16 v[{r}:{r+1}], v{60+cg} offset:{32768*s + 4096*hh}')
    a(f's_lshl_b32 s60, s4, 8\ns_add_u32 s60, s60, {WOUT}\ns_add_u32 s61, s60, 4096')
    a('v_and_b32 v59, 15, v1\nv_lshlrev_b32 v59, 4, v59\nv_lshrrev_b32 v58, 4, v1\nv_lshl_add_u32 v59, v58, 13, v59')
    wloads = [f'buffer_load_dwordx4 v[{AT+4*k}:{AT+4*k+3}], v59, s[16:19], s{60+(k>>1)} offen offset:{2048*(k&1)} sc1' for k in range(4)]
    for x in wloads: a(x)
    a(f'v_bfe_u32 v10, v1, 3, 1\nv_lshlrev_b32 v40, 5, v10\nv_add_u32 v40, {STAT}, v40')
    a(f'ds_read_b128 v[68:71], v40 offset:{STAT3-STAT}\nds_read_b32 v30, v40 offset:{STAT3-STAT+16}')
    a('v_bfe_u32 v11, v1, 1, 1\nv_lshl_add_u32 v41, v10, 1, v11\nv_lshlrev_b32 v41, 6, v41\nv_and_b32 v12, 4, v1\nv_add_u32 v41, v41, v12')
    a(f'v_and_b32 v12, 1, v1\nv_lshl_add_u32 v41, v12, 1, v41\ns_lshl_b32 s6, s4, 3\ns_add_u32 s6, s6, {HID}\nv_add_u32 v41, s6, v41')
    a(f'v_lshl_add_u32 v42, v12, 1, v11\nv_lshlrev_b32 v42, 6, v42\nv_and_b32 v45, 48, v1\nv_add_u32 v42, v42, v45\nv_add_u32 v42, {HID}, v42')
    a(f'v_and_b32 v43, 7, v1\nv_mul_u32_u24 v43, 288, v43\nv_add_u32 v43, v43, v45\nv_add_u32 v43, {AS}, v43')
    a('v_bfe_u32 v46, v1, 2, 1\nv_lshl_add_u32 v46, v12, 2, v46\nv_mul_u32_u24 v46, 288, v46\nv_lshl_add_u32 v46, v11, 2, v46\nv_lshrrev_b32 v11, 3, v1\nv_lshl_add_u32 v46, v11, 3, v46')
    a(f's_lshr_b32 s6, s4, 2\ns_mul_i32 s6, s6, 576\ns_and_b32 s7, s4, 3\ns_lshl_b32 s7, s7, 6\ns_add_u32 s6, s6, s7\ns_add_u32 s6, s6, {AS}\nv_add_u32 v46, s6, v46')
    a('v_and_b32 v11, 4, v1\nv_cmp_eq_u32 vcc, 0, v11\nv_mov_b32 v11, 0xeeee\nv_mov_b32 v47, 0x4444\nv_cndmask_b32 v47, v11, v47, vcc')
    for r in range(4): a(f'v_mov_b32 v{DD+r}, 0')
    a('s_and_b32 s6, s3, 15\ns_lshl_b32 s6, s6, 5\ns_lshl_b32 s7, s4, 2\ns_add_u32 s6, s6, s7')
    a('v_and_b32 v11, 1, v1\nv_lshl_add_u32 v11, v11, 1, s6')
    a('v_lshrrev_b32 v12, 1, v1\nv_lshlrev_b32 v44, 12, v12\nv_lshl_add_u32 v44, v11, 3, v44')
    a('v_bfe_u32 v12, v1, 4, 1\nv_add_u32 v11, v11, v12')
    a(f'v_lshlrev_b32 v48, 11, v10\nv_lshl_add_u32 v48, v11, 2, v48\nv_add_u32 v48, {X1}, v48')
    a('v_lshlrev_b32 v49, 10, v10\nv_lshl_add_u32 v49, v11, 1, v49')
    a(f's_add_u32 s20, s14, {MOUT}\ns_addc_u32 s21, s15, 0\ns_mov_b32 s22, {28*4096}\ns_mov_b32 s23, 0x20000')
    a(f's_lshl_b32 s24, s3, 12')
    a(f's_mov_b32 s40, {f2u(1/512)}\ns_mov_b32 s41, {f2u(1e-5)}\ns_mov_b32 s42, {f2u(0.044715)}\ns_mov_b32 s43, {f2u(-2*math.sqrt(2/math.pi)*LOG2E)}')
    a('v_and_b32 v50, 1, v1\nv_lshlrev_b32 v50, 4, v50\nv_mov_b32 v51, 0x3f80\nv_lshlrev_b32 v50, v50, v51\nv_bfe_u32 v51, v1, 2, 2')
    for i in range(4): a(f'v_cmp_eq_u32 vcc, {i}, v51\nv_cndmask_b32 v{64+i}, 0, v50, vcc')
    a('s_waitcnt lgkmcnt(0)')
    a(f's_mov_b32 s45, {f2u(2/512)}\nv_mov_b32 v50, s41')
    a('v_mul_f32 v68, s40, v68\nv_mul_f32 v69, s40, v69\nv_mul_f32 v70, s45, v70\nv_mul_f32 v71, s40, v71\nv_fma_f32 v30, v30, s40, v50')
    a(f'v_lshrrev_b32 v50, 3, v1\nv_mov_b32 v51, s40\nv_cmp_eq_u32 vcc, 5, v50\nv_mov_b32 v58, s45\nv_cndmask_b32 v51, v51, v58, vcc\nv_cmp_eq_u32 vcc, 4, v50\nv_cndmask_b32 v51, v51, -v58, vcc')
    a('v_mov_b32 v29, v9\nv_mov_b32 v31, v13')
    Q = (0, 60, 6, 10)
    for q_ in Q:
        for r in range(4): a(f'v_mov_b32 v{q_+r}, 0')
    if cfg.mp & 2: mpoll([(wloads[k], range(AT+4*k, AT+4*k+4)) for k in range(4)], AT+20, first_issued=True)
    else: vpoll(wloads, [AT+k for k in range(16)], AT+20, first_issued=True)
    stamp(12)
    V = AT + 16
    for k in range(4):
        c0 = '0' if k == 0 else f'v[{V}:{V+3}]'
        a(f'v_mfma_f32_16x16x32_bf16 v[{V}:{V+3}], v[64:67], v[{AT+4*k}:{AT+4*k+3}], {c0}')
    s0, s1 = V, V+1
    x0, x1, a0, a1 = AT+12, AT+13, AT+14, AT+15
    a(f'v_fma_f32 v{x0}, v16, v{s0}, v14\nv_fma_f32 v{x1}, v17, v{s1}, v15')
    a(f'v_mul_f32 v{a0}, v{x0}, v18\nv_mul_f32 v{a1}, v{x1}, v19')
    a(f'v_cvt_pk_bf16_f32 v{AT}, v{a0}, v{a1}\nds_write_b32 v46, v{AT}\nds_write_b64 v29, v[{x0}:{x1}]')
    fst(1)
    t = AT + 20
    a(f'v_add_f32 v{t}, v{x0}, v{x1}\nv_mul_f32 v{t+1}, v{x0}, v{x0}\nv_add_f32 v{t+2}, v{a0}, v{a1}\nv_mul_f32 v{t+3}, v{a0}, v{a0}')
    a(f'v_mul_f32 v{t+4}, v{a0}, v18\nv_mul_f32 v{t+5}, v{a0}, v20')
    a(f'v_fmac_f32 v{t+1}, v{x1}, v{x1}\nv_fmac_f32 v{t+3}, v{a1}, v{a1}\nv_fmac_f32 v{t+4}, v{a1}, v19\nv_fmac_f32 v{t+5}, v{a1}, v21')
    red6([t, t+1, t+2, t+3, t+4, t+5], 0, (t+6, t+7, t+8, t+9), 'v51', 'v31')
    fst(2)
    a('s_waitcnt lgkmcnt(0)')
    fst(9)
    a('s_barrier')
    fst(3)
    a('ds_read_b128 v[52:55], v40\nds_read_b64 v[56:57], v40 offset:16')
    fill = [
        'v_fma_f32 v53, -v52, v52, v53',
        'v_fma_f32 v56, v52, v69, v56',
        'v_rsq_f32 v53, v53',
        'v_fma_f32 v54, -v52, v68, v54',
        'v_fma_f32 v55, v52, v56, v55',
        'v_fma_f32 v57, -v52, v70, v57',
        'v_fma_f32 v55, v53, v55, v57',
        'v_fma_f32 v54, v53, v54, v71',
        'v_mul_f32 v52, v52, v53',
        'v_fma_f32 v55, v53, v55, v30',
        'v_fma_f32 v56, -v52, v26, v27',
        'v_fma_f32 v55, -v54, v54, v55',
        'v_fma_f32 v56, -v54, v28, v56',
        'v_rsq_f32 v55, v55',
    ]
    sgemv([F2], [DD], 'v43', 'v47', fill=fill, lead=cfg.lead); fold()
    a(f'v_mov_b32 v{T}, v{Z}\nv_permlane16_swap_b32 v{Z}, v{T}\nv_add_f32 v{Z}, v{Z}, v{T}')
    fst(4)
    if cfg.mtag: a('v_mov_b32 v15, s33')
    ge = [f'v_fma_f32 v{Z}, v{Z}, v53, v56', f'v_fma_f32 v{Z}, v{Z}, v55, v25', f'v_mul_f32 v{T}, v{Z}, v{Z}', f'v_mul_f32 v{T+1}, s43, v{Z}',
          f'v_fma_f32 v{T}, v{T}, s42, 1.0', f'v_mul_f32 v{T}, v{T}, v{T+1}', f'v_exp_f32 v{T}, v{T}', f'v_add_f32 v{T}, 1.0, v{T}',
          f'v_rcp_f32 v{T}, v{T}', f'v_mul_f32 v{T}, v{T}, v{Z}', f'v_cvt_pk_bf16_f32 v{T}, v{T}, v{T}']
    for x in ge: a(x)
    a(f's_mov_b64 exec, 0xffff\nds_write_b16 v41, v{T}\ns_mov_b64 exec, -1')
    fst(5)
    a('s_waitcnt lgkmcnt(0)\ns_barrier')
    fst(6)
    a(f'ds_read_b128 v[{AT}:{AT+3}], v42')
    a(f'ds_read_b32 v52, v48')
    a(f's_waitcnt lgkmcnt(1)')
    for cg in range(4):
        ac = Q[cg]; fr = F1 + cg*8
        a(f'v_smfmac_f32_16x16x64_bf16 v[{ac}:{ac+3}], v[{AT}:{AT+3}], v[{fr}:{fr+7}], v22')
    y = AT + 8
    a('s_cmp_lg_u32 s32, 0')
    for cg in range(4):
        ac = Q[cg]
        for r in range(2): a(f'v_add_f32_dpp v{y+r}, v{ac+r}, v{ac+2+r} quad_perm:[0,1,2,3] row_mask:{1 << cg:#x} bank_mask:0xf')
    if cfg.mtag:
        a(f'v_cvt_pk_bf16_f32 v14, v{y}, v{y+1}')
        store2(f'buffer_store_dwordx2 v[14:15], v5, s[20:23], s24 offen')
    else: store2(f'buffer_store_dwordx2 v[{y}:{y+1}], v5, s[20:23], s24 offen')
    stamp(13)
    a('s_cmp_ge_u32 s3, 16\ns_cbranch_scc1 L_hdone')
    fl = [f'buffer_load_dwordx4 v[{AT}:{AT+3}], v44, s[20:23], 0 offen sc1']
    if cfg.mtag: a(f'v_mov_b32 v{AT}, 0\nv_mov_b32 v{AT+2}, 0\ns_mov_b32 exec_hi, 0xffffff')
    a(fl[0])
    srd(24, 's46', 's47', 2048)
    a('s_waitcnt lgkmcnt(0)\nv_fma_f32 v52, v23, v24, v52')
    if cfg.mtag:
        vpoll(fl, [AT+1, AT+3], AT+8, first_issued=True, tags=True)
        a('s_mov_b32 exec_hi, -1')
        a(f'v_and_b32 v{AT+1}, 0xffff0000, v{AT}\nv_and_b32 v{AT+3}, 0xffff0000, v{AT+2}\nv_lshlrev_b32 v{AT}, 16, v{AT}\nv_lshlrev_b32 v{AT+2}, 16, v{AT+2}')
    elif cfg.mp & 4: mpoll([(fl[0], range(AT, AT+4))], AT+8, first_issued=True)
    else: vpoll(fl, [AT+k for k in range(4)], AT+8, first_issued=True)
    if cfg.diag is None or cfg.diag < 90: stamp(14)
    a(f'v_add_f32_dpp v{Z}, v{AT}, v{AT} row_ror:8 row_mask:0xf bank_mask:0x3')
    a(f'v_add_f32_dpp v{T}, v{AT+2}, v{AT+2} row_ror:8 row_mask:0xf bank_mask:0x3')
    a(f'v_add_f32_dpp v{Z}, v{AT+1}, v{AT+1} row_ror:8 row_mask:0xf bank_mask:0xc')
    a(f'v_add_f32_dpp v{T}, v{AT+3}, v{AT+3} row_ror:8 row_mask:0xf bank_mask:0xc')
    a(f'v_permlane16_swap_b32 v{Z}, v{T}\nv_add_f32 v{Z}, v{Z}, v{T}')
    a(f'v_mov_b32 v{T}, v{Z}\nv_permlane32_swap_b32 v{Z}, v{T}\nv_add_f32 v{Z}, v{Z}, v{T}')
    a(f'v_add_f32_dpp v{Z}, v{Z}, v{Z} quad_perm:[2,3,0,1] row_mask:0xf bank_mask:0xf')
    a(f'v_add_f32_dpp v{Z}, v{Z}, v{Z} row_shl:4 row_mask:0xf bank_mask:0x5')
    a(f'v_fma_f32 v{Z}, v23, v{Z}, v52')
    if cfg.diag is not None:
        a('s_or_b32 s6, s3, s4\ns_cmp_lg_u32 s6, 0\ns_cbranch_scc1 L_ndiag')
        a('s_memrealtime s[94:95]\ns_waitcnt lgkmcnt(0)\ns_sub_u32 s6, s94, s64')
        a(f's_cmp_lt_u32 s6, {cfg.T0}\ns_cbranch_scc1 L_ndiag\ns_cmp_eq_u32 s96, s97\ns_cbranch_scc1 L_ndiag\ns_cmp_eq_u32 s32, {cfg.gate}\ns_cbranch_scc1 L_ndiag')
        a('s_cmp_eq_u32 s98, s99\ns_cbranch_scc1 L_ndiag')
        a(f's_sub_u32 s6, s{64+2*cfg.diag if cfg.diag < 90 else 92}, s64\nv_cvt_f32_u32 v10, s6\ns_mov_b64 exec, 1\nv_add_f32 v{Z}, v{Z}, v10\ns_mov_b64 exec, -1')
        a('L_ndiag:')
    if cfg.enc:
        a('s_or_b32 s6, s3, s4\ns_cmp_lg_u32 s6, 0\ns_cbranch_scc1 L_nenc')
        a(f's_memrealtime s[94:95]\ns_waitcnt lgkmcnt(0)\ns_sub_u32 s6, s94, s64\ns_sub_u32 s7, s{64+2*cfg.enc}, s64')
        a('v_mov_b32 v10, s6\nv_mov_b32 v11, s7\nv_and_b32 v12, 8, v1\nv_cmp_eq_u32 vcc, 0, v12\nv_cndmask_b32 v10, v11, v10, vcc')
        a('v_and_b32 v11, 1, v1\nv_lshlrev_b32 v11, 1, v11\nv_bfe_u32 v12, v1, 4, 1\nv_add_u32 v11, v11, v12\nv_mul_u32_u24 v11, 3, v11')
        a(f'v_lshrrev_b32 v10, v11, v10\nv_and_b32 v10, 7, v10\nv_cvt_f32_u32 v10, v10\nv_add_f32 v{Z}, v{Z}, v10')
        a('L_nenc:')
    a(f's_mov_b64 exec, 0x03030303')
    a(f'v_cvt_pk_bf16_f32 v{T}, v{Z}, v{Z}')
    a(f'buffer_store_short v{T}, v49, s[24:27], 0 offen {cfg.fst}')
    a('s_or_b32 s6, s3, s4\ns_cmp_lg_u32 s6, 0\ns_cbranch_scc1 L_noep')
    a(f's_mov_b64 exec, 1\nv_mov_b32 v10, {EPO}\nv_mov_b32 v11, s33\nbuffer_store_dword v11, v10, s[16:19], 0 offen')
    a('L_noep:')
    a('s_mov_b64 exec, -1')
    stamp(15)
    a('L_hdone:')
    if cfg.stamps:
        a(f's_cmp_lg_u32 s4, {cfg.sw}\ns_cbranch_scc1 L_end')
        stamps_out(16, 0)
        a('s_cmp_lg_u32 s2, 0\ns_cbranch_scc1 L_end')
        for n, i in enumerate((1, 4, 7, 8, 9, 10, 11, 12, 13, 14, 15)):
            a(f's_sub_u32 s60, s{64+2*i}, s64\nv_mov_b32 v4, s60\nglobal_store_dword v2, v4, s[12:13] offset:{16+4*n}')
        a('v_mov_b32 v4, s32\nglobal_store_dword v2, v4, s[12:13]')
        a('s_waitcnt vmcnt(0)')
    a('L_end:')
    a('s_endpgm')
    return wrap(a.finalize(), 256, 768, LDS_TOTAL, 168, sgpr=102)

if __name__ == '__main__':
    out = sys.argv[1]
    for o in sys.argv[2:]:
        k, v = o.split('=')
        setattr(cfg, k, eval(v))
    open(out, 'w').write(gen())
```

```python
NAME='adaLN_cond__gqa_block_cached__mixer_channel_mlp__decode_kernel'
HDR = open('adaLN_cond__gqa_block_cached__mixer_channel_mlp__decode.s.ref').read().split('.amdgcn_target')[0]
DESC = """;
;   tail workgroups (32, id % 8 == 0): sa/ca slice, then wo slice, MLP slice (both LayerNorms folded into the
; Hand-offs go through d_ws: {value, tag} granules (tag = hash of a word of d_ws, advanced at the end of the launch) or
"""
def wrap(body, grid, block, lds, vgpr, sgpr=96, agpr=0):
    hdr = HDR.replace('grid=(4,1,1) block=(256,1,1) lds=0', f'grid=({grid},1,1) block=({block},1,1) lds={lds}')
    hdr += DESC
    acc = (vgpr + 3) // 4 * 4
    return hdr + f'''.amdgcn_target "amdgcn-amd-amdhsa--gfx950"
.text
.globl {NAME}
.p2align 8
.type {NAME},@function
{NAME}:
{body}
.section .rodata,"a"
.p2align 6
.amdhsa_kernel {NAME}
  .amdhsa_next_free_vgpr {acc + agpr if agpr else vgpr}
  .amdhsa_next_free_sgpr {sgpr}
  .amdhsa_accum_offset {acc}
  .amdhsa_group_segment_fixed_size 0
  .amdhsa_kernarg_size 120
  .amdhsa_user_sgpr_count 2
  .amdhsa_user_sgpr_kernarg_segment_ptr 1
  .amdhsa_system_sgpr_workgroup_id_x 1
.end_amdhsa_kernel
'''
```

```python
import sys, math, struct
from asmlib import *
from gen_common import *

class Cfg:
    stamps = False
    NT = 'nt'
    warm = True
    prio = True
    slp = 2
    qslp = 4
    thS = 63
    thV = 63
    pre = 3
    touch = True
    diag = None
    fine = False
    sw = 0
    mp = 2
    enc = 0
    lay = 1
    lead = 2
    qlate = 0
    p1c = False
    qobs = False
    rot = 0
    RK = 86
    xp = 0
    sord = True
    pf = 0
    hfirst = False
    dk = 0
    dk0 = 0
    dsub = 0
    mtag = False
    owarm = 0
    fst = ''
    pe = True
    mlate = 0
    slpB = 2
    slpM = 2
    tx = 0
    tlbw = 0
    lst = ''
    ost = 'sc1'
    il = False
    bias = (0, 0, 0, 0, 0, 0, 0)
    dirty = 0
    nth = 10
    T0 = 1900
    gate = 0
    apre = 0
    fast = True
cfg = Cfg()

MODA=0; MODB=0x8000; QO=0x10000; XID=0x18000; EPO=0x1A800; WOUT=0x1C000; MOUT=0x24000; OP=0x40000; STMP=0x80000; LSE=0x90000; WS_SZ=0x100000
NCH = 12
KW=36864; PREG=147456; ZERO=153600; ST=154176; QL=154368; QF=155392; SCR=0; LDS_TOTAL=155648
R0=0; R1=65536; ACT=131072; ACTC=133376; ACTM=135680; TS=2336; HID=145024; STAT=145408; STAT2=145472; STAT3=145536; X1=145664; AS=149760
LIMIT = 200000
LOG2E = 1.4426950408889634
def f2u(x): return '0x%08x' % struct.unpack('<I', struct.pack('<f', x))[0]

def gtab():
    d = list(cfg.bias); assert sum(d) == 0
    g = [0]
    for k in range(6): g.append(g[-1] + d[(2*k) % 7])
    return g
def chunk_start(p, c):
    g = gtab(); pos = (4*(p + 4)) % 7
    tot = g[(pos + 12) % 7] - g[pos]
    return ((c*(8192 - tot)*21846) >> 18) + g[(pos + c) % 7] - g[pos]

def gen():
    a = Asm()
    uid = [0]
    def lab(p):
        uid[0] += 1; return f'L_{p}_{uid[0]}'
    def stamp(i):
        if cfg.stamps: a(f's_memrealtime s[{64+2*i}:{65+2*i}]')
    def fst(i):
        if cfg.fine: stamp(i)
    def stamps_out(n, base_slot):
        if not cfg.stamps: return
        a('s_waitcnt lgkmcnt(0)')
        a('s_mov_b64 exec, 1')
        a(f's_lshl_b32 s60, s2, 7\ns_add_u32 s60, s60, {STMP + base_slot*8}')
        a('v_mov_b32 v2, 0')
        for i in range(n):
            a(f'v_mov_b32 v4, s{64+2*i}\nv_mov_b32 v5, s{65+2*i}')
            a(f'buffer_store_dwordx2 v[4:5], v2, s[16:19], s60 offen offset:{8*i}')
        a('s_waitcnt vmcnt(0)')
    def srd(d, lo, hi, size):
        a(f's_mov_b32 s{d}, {lo}\ns_mov_b32 s{d+1}, {hi}\ns_mov_b32 s{d+2}, {size}\ns_mov_b32 s{d+3}, 0x20000')
    def epoch_load():
        a(f's_load_dword s33, s[14:15], {EPO}')
    def epoch_tag():
        a('s_mul_i32 s33, s33, 0x9E3779B1\ns_add_u32 s33, s33, 0x85EBCA6B')
    def red3(op, regs, tmp):
        rs = list(regs)
        if len(rs) == 1: return rs[0]
        first = True
        while rs:
            if first:
                if len(rs) >= 3: a(f'v_{op}3_u32 v{tmp}, v{rs[0]}, v{rs[1]}, v{rs[2]}'); rs = rs[3:]
                else: a(f'v_{op}_u32 v{tmp}, v{rs[0]}, v{rs[1]}'); rs = rs[2:]
                first = False
            elif len(rs) >= 2: a(f'v_{op}3_u32 v{tmp}, v{tmp}, v{rs[0]}, v{rs[1]}'); rs = rs[2:]
            else: a(f'v_{op}_u32 v{tmp}, v{tmp}, v{rs[0]}'); rs = rs[1:]
        return tmp
    def vpoll(loads, regs, tmp, sleep=0, first_issued=False, tags=False, dbg=None, first_cnt=0):
        l = lab('vp'); d = lab('vd'); w = lab('vw')
        a('s_mov_b32 s30, 0')
        if first_issued: a(f's_waitcnt vmcnt({first_cnt})\ns_branch {w}')
        a(f'{l}:')
        for x in loads: a(x)
        a('s_add_u32 s30, s30, 1')
        a('s_waitcnt vmcnt(0)')
        if first_issued: a(f'{w}:')
        if dbg is not None and cfg.stamps:
            p, q_, n_ = dbg
            a(f's_mov_b64 s[{64+2*p}:{65+2*p}], s[{64+2*q_}:{65+2*q_}]')
            stamp(q_); a('s_waitcnt lgkmcnt(0)')
            a(f's_add_u32 s{64+2*n_}, s64, s30\ns_mov_b32 s{65+2*n_}, s65')
        if tags:
            m = red3('max', regs, tmp)
            if len(list(regs)) > 1:
                n = red3('min', regs, tmp + 1)
                a(f'v_cmp_ne_u32 vcc, s33, v{m}\nv_cmp_ne_u32 s[34:35], s33, v{n}\ns_or_b64 vcc, vcc, s[34:35]')
            else:
                a(f'v_cmp_ne_u32 vcc, s33, v{m}')
        else:
            m = red3('max', regs, tmp)
            a(f'v_cmp_eq_u32 vcc, -1, v{m}')
        a(f's_cbranch_vccz {d}')
        if sleep: a(f's_sleep {sleep}')
        a(f's_cmp_lt_u32 s30, {LIMIT}\ns_cbranch_scc1 {l}')
        a(f'{d}:')
    def mpoll(items, tmp, first_issued=False):
        l = lab('mp'); d = lab('md')
        a('s_mov_b32 s30, 0')
        if not first_issued:
            for ld, regs in items: a(ld)
        a(f'{l}:')
        a('s_waitcnt vmcnt(0)')
        ms = []
        for k, (ld, regs) in enumerate(items):
            ms.append(red3('max', regs, tmp + k))
        for k, m in enumerate(ms):
            a(f'v_cmp_eq_u32 s[{48+2*k}:{49+2*k}], -1, v{m}')
        n = len(items)
        if n == 1:
            a('s_cmp_eq_u64 s[48:49], 0\ns_cbranch_scc1 ' + d)
        else:
            a('s_or_b64 s[34:35], s[48:49], s[50:51]')
            for k in range(2, n): a(f's_or_b64 s[34:35], s[34:35], s[{48+2*k}:{49+2*k}]')
            a(f's_cbranch_scc0 {d}')
        for k, (ld, regs) in enumerate(items):
            a(f's_mov_b64 exec, s[{48+2*k}:{49+2*k}]')
            a(ld)
        a('s_mov_b64 exec, -1')
        a(f's_add_u32 s30, s30, 1\ns_cmp_lt_u32 s30, {LIMIT}\ns_cbranch_scc1 {l}')
        a('s_waitcnt vmcnt(0)')
        a(f'{d}:')
    def pspin(va, vd):
        l = lab('ps'); d = lab('pd')
        a(f'v_mov_b32 {va}, {QF}\ns_mov_b32 s30, 0')
        a(f'{l}:')
        a(f'ds_read_b32 {vd}, {va} offset:4\ns_add_u32 s30, s30, 1\ns_waitcnt lgkmcnt(0)')
        a(f'v_cmp_ne_u32 vcc, 4, {vd}\ns_cbranch_vccz {d}')
        a(f's_sleep 1\ns_cmp_lt_u32 s30, {LIMIT*8}\ns_cbranch_scc1 {l}')
        a(f'{d}:')
    def dma_u1(lo, hi, size, RS, sbase, region, setup=True, i0=0, i1=8):
        if setup:
            a('v_bfe_u32 v10, v1, 4, 1\nv_and_b32 v12, 7, v1\nv_xor_b32 v10, v10, v12')
            a('s_and_b32 s27, s4, 4\nv_xor_b32 v10, s27, v10')
            a(f'v_lshrrev_b32 v2, 3, v1\nv_mul_u32_u24 v2, {RS}, v2\nv_xor_b32 v12, 2, v10')
            a('v_lshl_add_u32 v12, v12, 4, v2\nv_lshl_add_u32 v2, v10, 4, v2')
        srd(20, lo, hi, size)
        if cfg.xp & 4:
            a(f'v_lshlrev_b32 v2, 4, v1\nv_mov_b32 v12, v2\ns_lshl_b32 s27, s3, 16\ns_lshl_b32 s28, s4, 13\ns_add_u32 s27, s27, s28\ns_add_u32 s27, s27, {(region and RS == 8192) * 2097152}')
            RS = 128
        else: a(f's_mul_i32 s27, s4, {64*RS}\ns_add_u32 s27, s27, {sbase}')
        if i0: a(f's_add_u32 s27, s27, {8*RS*i0}')
        a(f's_lshl_b32 s28, s4, 13')
        if region + i0: a(f's_add_u32 s28, s28, {region + 1024*i0}')
        for i in range(i0, i1):
            a('s_mov_b32 m0, s28')
            if i < i1-1: a('s_add_u32 s28, s28, 1024')
            a(f'buffer_load_dwordx4 v{12 if i & 1 else 2}, s[20:23], s27 offen {cfg.NT} lds')
            if i < i1-1: a(f's_add_u32 s27, s27, {8*RS}')

    def dma_w(i0, i1, setup=True):
        if setup:
            a('s_and_b32 s6, s4, 1\ns_lshl_b32 s6, s6, 6\ns_and_b32 s7, s4, 4\ns_lshl_b32 s7, s7, 5\ns_or_b32 s6, s6, s7')
            a('v_lshlrev_b32 v2, 4, v1\nv_and_b32 v2, 0x1f0, v2\nv_and_b32 v10, 32, v1\nv_xor_b32 v2, v2, v10\nv_xor_b32 v2, s6, v2\nv_lshl_add_u32 v2, v10, 5, v2')
        srd(20, 's50', 's51', 4096*1024)
        if cfg.xp & 4: a(f'v_lshlrev_b32 v2, 4, v1\ns_lshl_b32 s27, s3, 17\ns_lshl_b32 s28, s4, 10\ns_add_u32 s27, s27, s28\ns_add_u32 s27, s27, {8192*i0}')
        else: a(f's_lshl_b32 s27, s4, 11\ns_add_u32 s27, s27, s24\ns_add_u32 s27, s27, {16384*i0}')
        a(f's_lshl_b32 s28, s4, 10\ns_add_u32 s28, s28, {8192*i0}')
        for i in range(i0, i1):
            a('s_mov_b32 m0, s28')
            if i < i1-1: a('s_add_u32 s28, s28, 8192')
            a(f'buffer_load_dwordx4 v2, s[20:23], s27 offen {cfg.NT} lds')
            if i < i1-1: a(f's_add_u32 s27, s27, {8192 if cfg.xp & 4 else 16384}')
    def hearly():
        a('L_hearly:')
        a('s_cmp_ge_u32 s2, 256\ns_cbranch_scc1 L_end')
        a('s_sub_u32 s6, s6, 1\ns_cmp_eq_u32 s5, 0\ns_cselect_b32 s3, s3, s6')
        a('s_cmp_lt_u32 s4, 8\ns_cbranch_scc1 L_hm')
        if cfg.warm:
            a('s_lshr_b32 s6, s2, 4\ns_xor_b32 s7, s4, 11\ns_or_b32 s6, s6, s7\ns_cbranch_scc1 L_spare')
            a('s_getpc_b64 s[36:37]\nL_pc:\ns_sub_u32 s36, s36, L_pc-L_stream\ns_subb_u32 s37, s37, 0\nv_lshlrev_b32 v2, 7, v1')
            a('s_mov_b32 s38, L_end-L_stream\ns_mov_b32 s39, 0x20000\ns_mov_b32 s6, 8192')
            a('buffer_load_dword v4, v2, s[36:39], 0 offen\nbuffer_load_dword v5, v2, s[36:39], s6 offen')
            a('s_endpgm')
        else: a('s_branch L_spare')
        a('L_hm:')
        if cfg.xp & 16:
            a('s_cmp_eq_u32 s5, 0\ns_cselect_b32 s6, 34, 24\ns_mov_b32 s7, 0x8000000\ns_cselect_b32 s7, 0x9000000, s7\ns_mul_i32 s27, s3, 288*1024\ns_add_u32 s27, s27, s7\ns_lshl_b32 s7, s4, 10\ns_add_u32 s27, s27, s7')
            a('v_lshlrev_b32 v2, 4, v1\ns_waitcnt lgkmcnt(0)')
            srd(20, 's14', 's15', 0x10000000)
            a('L_xl:\nbuffer_load_dwordx4 v[4:7], v2, s[20:23], s27 offen nt\ns_add_u32 s27, s27, 8192\ns_sub_u32 s6, s6, 1\ns_cmp_lg_u32 s6, 0\ns_cbranch_scc1 L_xl')
            a('s_endpgm')
        a('s_cmp_eq_u32 s5, 0')
        a('s_cselect_b32 s6, 88, 24')
        a('s_load_dwordx2 s[20:21], s[0:1], s6')
        a('s_mov_b32 s7, 8192\ns_cselect_b32 s7, 6144, s7')
        a('s_cselect_b32 s29, 2, 4')
        a('s_cselect_b32 s24, 5, 6')
        a('s_lshl_b32 s22, s7, 9')
        a('s_lshl_b32 s25, s3, 8')
        a('s_lshr_b32 s26, s3, 1\ns_lshl_b32 s26, s26, 7\ns_and_b32 s27, s3, 1\ns_mul_i32 s27, s27, 256*6144\ns_add_u32 s26, s26, s27')
        a('s_cmp_eq_u32 s5, 0\ns_cselect_b32 s25, s26, s25')
        a('v_bfe_u32 v10, v1, 4, 1\nv_and_b32 v12, 7, v1\nv_xor_b32 v10, v10, v12')
        a('s_and_b32 s27, s4, 4\nv_xor_b32 v10, s27, v10')
        a('v_lshrrev_b32 v2, 3, v1\nv_mul_u32_u24 v2, s7, v2\nv_xor_b32 v12, 2, v10')
        a('v_lshl_add_u32 v12, v12, 4, v2\nv_lshl_add_u32 v2, v10, 4, v2')
        a('s_mov_b32 s23, 0x20000')
        a('s_lshl_b32 s6, s4, s24\ns_mul_i32 s27, s6, s7\ns_add_u32 s27, s27, s25')
        a('s_lshl_b32 s28, s6, 7\ns_lshl_b32 s7, s7, 3')
        if cfg.xp & 4: a('v_lshlrev_b32 v2, 4, v1\nv_mov_b32 v12, v2\ns_lshl_b32 s27, s3, 16\ns_add_u32 s27, s27, s28\ns_mov_b32 s7, 1024')
        a('s_waitcnt lgkmcnt(0)')
        a('L_hdma:')
        a('s_mov_b32 m0, s28\ns_add_u32 s28, s28, 1024')
        a(f'buffer_load_dwordx4 v2, s[20:23], s27 offen {cfg.NT} lds')
        a('s_add_u32 s27, s27, s7\ns_mov_b32 m0, s28\ns_add_u32 s28, s28, 1024')
        a(f'buffer_load_dwordx4 v12, s[20:23], s27 offen {cfg.NT} lds')
        a('s_add_u32 s27, s27, s7\ns_sub_u32 s29, s29, 1\ns_cmp_lg_u32 s29, 0\ns_cbranch_scc1 L_hdma')
        if cfg.hfirst: a('s_branch L_helper')
    stamp(0)
    a('s_load_dwordx4 s[8:11], s[0:1], 8')
    a('v_lshrrev_b32 v1, 6, v0')
    a('s_lshr_b32 s3, s2, 3\ns_and_b32 s5, s2, 7')
    a('v_readfirstlane_b32 s4, v1')
    a('s_load_dwordx4 s[12:15], s[0:1], 104')
    a('s_mul_i32 s6, s3, 7\ns_add_u32 s6, s6, s5\ns_cmp_eq_u32 s5, 0\ns_cselect_b32 s6, 0, s6')
    a('v_and_b32 v1, 63, v0')
    a('s_sub_u32 s7, s6, 33\ns_cbranch_scc1 L_hearly')
    a('L_stream:')
    a('s_lshr_b32 s25, s7, 4\ns_and_b32 s24, s7, 15')
    a('s_cmp_ge_u32 s25, 12\ns_cbranch_scc1 L_end')
    assert not any(cfg.bias)
    a(f's_mul_i32 s6, s25, {8192*21846}\ns_lshr_b32 s7, s6, 18\ns_add_u32 s6, s6, {8192*21846}\ns_lshr_b32 s6, s6, 18\ns_sub_u32 s31, s6, s7')
    a('s_lshl_b32 s6, s24, 13\ns_add_u32 s6, s6, s7\ns_lshl_b32 s6, s6, 8')
    a('s_mov_b32 s23, 0x20000')
    a('s_cmp_ge_u32 s4, 4\ns_cbranch_scc1 L_vwave')
    a('v_lshrrev_b32 v7, 4, v1')
    a('v_and_b32 v15, 15, v1')
    a('v_lshlrev_b32 v6, 2, v7\nv_xor_b32 v6, v6, v15')
    a('v_lshlrev_b32 v8, 8, v7')
    a('v_lshl_add_u32 v2, v6, 4, v8')
    a(f's_mul_i32 s27, s4, {512*cfg.RK}\ns_mul_i32 s28, s4, {KW}\ns_add_u32 s22, s27, {256*cfg.RK}')
    nk = [chunk_start(p, c+1) - chunk_start(p, c) for p in range(16) for c in range(12)]
    assert 80 <= cfg.RK <= 96 and min(nk) - 7*cfg.RK >= 80 and max(nk) - 7*cfg.RK <= cfg.RK
    a('s_mov_b32 m0, s28')
    a('s_waitcnt lgkmcnt(0)')
    a('s_add_u32 s20, s8, s6\ns_addc_u32 s21, s9, 0')
    a(f'buffer_load_dwordx4 v2, s[20:23], s27 offen {cfg.NT} lds')
    stamp(5)
    if cfg.prio: a('s_setprio 3')
    for t in (1, 2, 3):
        a(f'v_xor_b32 v{2+t}, {16*t}, v2')
        a(f'buffer_load_dwordx4 v{2+t}, s[20:23], s27 offen offset:{1024*t} {cfg.NT} lds')
    a(f's_lshl_b32 s26, s24, 14\ns_lshl_b32 s7, s25, 10\ns_add_u32 s26, s26, s7\ns_lshl_b32 s7, s4, 8\ns_add_u32 s26, s26, s7\ns_add_u32 s26, s26, {OP}')
    a('v_mov_b32 v156, -1\nv_lshl_add_u32 v157, v1, 2, s26')
    a('global_store_dword v157, v156, s[14:15] sc1')
    a(f's_mov_b32 s44, s22\ns_add_u32 s45, s44, {256*cfg.RK}\ns_lshl_b32 s7, s31, 8\ns_min_u32 s45, s45, s7')
    a('s_add_u32 s28, s28, 4096\ns_add_u32 s27, s27, 4096\ns_mov_b32 s29, 1')
    a('L_kdma:')
    a('s_mov_b32 m0, s28')
    a('s_add_u32 s28, s28, 4096\ns_add_u32 s29, s29, 1')
    for t in range(4):
        a(f'buffer_load_dwordx4 v{2+t}, s[20:23], s27 offen offset:{1024*t} {cfg.NT} lds')
        if cfg.thS < 63: a(f's_waitcnt vmcnt({cfg.thS})')
    a('s_add_u32 s27, s27, 4096')
    a('s_cmp_eq_u32 s29, 6\ns_cselect_b32 s27, s44, s27\ns_cselect_b32 s22, s45, s22')
    a('s_cmp_lt_u32 s29, 9\ns_cbranch_scc1 L_kdma')
    epoch_load()
    a('v_and_b32 v6, 3, v15\nv_lshlrev_b32 v6, 2, v6\nv_lshrrev_b32 v9, 2, v15\nv_add_u32 v6, v6, v9')
    a('v_lshlrev_b32 v10, 8, v6')
    a('v_lshl_add_u32 v6, v7, 4, v10')
    if cfg.p1c: a('v_lshlrev_b32 v6, 4, v1')
    for gi in range(3):
        for s in range(4):
            r = 96 + 16*gi + 4*s
            a(f'buffer_load_dwordx4 v[{r}:{r+3}], v6, s[20:23], s27 offen offset:{(1024 if cfg.p1c else 64)*s} {cfg.NT}')
            if cfg.thS < 63 and 4*gi + s < 11: a(f's_waitcnt vmcnt({cfg.thS})')
        if gi < 2: a('s_add_u32 s27, s27, 4096')
    if not cfg.pe:
        srd(16, 's14', 's15', WS_SZ)
        a(f's_lshl_b32 s26, s24, 14\ns_lshl_b32 s6, s25, 10\ns_add_u32 s26, s26, s6\ns_lshl_b32 s6, s4, 8\ns_add_u32 s26, s26, s6\ns_add_u32 s26, s26, {OP}')
        a('v_mov_b32 v156, -1\nv_lshlrev_b32 v157, 2, v1')
        if not cfg.xp & 32: a('buffer_store_dword v156, v157, s[16:19], s26 offen sc1')
    else: srd(16, 's14', 's15', WS_SZ)
    a(f's_and_b32 s7, s24, 7\ns_lshl_b32 s6, s7, 12\ns_lshr_b32 s7, s24, 3\ns_lshl_b32 s7, s7, 11\ns_add_u32 s27, s6, s7\ns_add_u32 s27, s27, {QO}')
    a('v_lshlrev_b32 v12, 4, v1')
    qloads = [f'buffer_load_dwordx4 v[{32+4*k}:{35+4*k}], v12, s[16:19], s27 offen offset:{1024*k} sc1' for k in range(2)]
    if not cfg.qlate:
        a('s_cmp_lg_u32 s4, 0\ns_cbranch_scc1 L_nq1' if not cfg.xp & 1024 else 's_branch L_nq1')
        for x in qloads: a(x)
        a('L_nq1:')
    stamp(1)
    a('s_barrier')
    if cfg.xp & 512: a('s_waitcnt vmcnt(0)\ns_branch L_xs')
    a(f's_mul_i32 s28, s4, {KW}')
    a('v_and_b32 v11, 3, v15\nv_xor_b32 v11, v11, v7')
    a('v_lshl_add_u32 v11, v9, 2, v11')
    a('v_lshl_add_u32 v11, v11, 4, v10\nv_add_u32 v8, s28, v11')
    for s in (1, 2, 3): a(f'v_xor_b32 v{8+s}, {64*s}, v8')
    a(f's_mul_i32 s6, s4, 1536\ns_add_u32 s6, s6, {PREG}')
    a('v_lshrrev_b32 v13, 3, v15\nv_mul_u32_u24 v13, 768, v13' if cfg.il else 'v_lshrrev_b32 v13, 3, v15\nv_lshlrev_b32 v13, 8, v13')
    a('v_and_b32 v14, 3, v15\nv_lshl_add_u32 v13, v14, 6, v13\nv_lshl_add_u32 v13, v7, 4, v13')
    a('v_bfe_u32 v14, v15, 2, 1\nv_lshl_add_u32 v13, v14, 3, v13\nv_add_u32 v13, s6, v13')
    for u in range(4):
        a(f's_mov_b32 s{36+2*u}, {0x000F000F << (4*u):#x}\ns_mov_b32 s{37+2*u}, {0x000F000F << (4*u):#x}')
    a(f's_sub_u32 s6, s45, s44\ns_lshr_b32 s6, s6, 8\ns_sub_u32 s6, s6, 80')
    a(f'v_sub_u32 v160, {cfg.RK - 80}, v7\nv_cndmask_b32 v161, 64, v160, s[38:39]\nv_sub_u32 v160, s6, v7\nv_cndmask_b32 v163, 64, v160, s[42:43]')
    a('s_waitcnt lgkmcnt(0)')
    epoch_tag()
    stamp(2)
    a(f'v_mov_b32 v14, {QF}')
    a('s_cmp_lg_u32 s4, 0\ns_cbranch_scc1 L_nq2')
    if cfg.qlate: a(f's_waitcnt vmcnt({cfg.qlate - 1})')
    if cfg.xp & 1: a('s_waitcnt vmcnt(0)')
    else: vpoll(qloads, [33, 35, 37, 39], 164, first_issued=not cfg.qlate, tags=True, sleep=cfg.qslp, dbg=(1, 2, 15))
    a(f'v_lshlrev_b32 v12, 3, v1\nv_add_u32 v12, {QL}, v12\nv_mov_b32 v16, 1')
    a('ds_write2_b32 v12, v32, v34 offset0:0 offset1:1\nds_write2_b32 v12, v36, v38 offset0:128 offset1:129')
    a('s_waitcnt lgkmcnt(0)\nds_write_b32 v14, v16')
    a('s_branch L_nq3')
    a('L_nq2:')
    a('s_mov_b32 s30, 0')
    a('L_qspin:')
    a('ds_read_b32 v16, v14\ns_add_u32 s30, s30, 1\ns_waitcnt lgkmcnt(0)')
    a('v_cmp_ne_u32 vcc, 1, v16\ns_cbranch_vccz L_nq3')
    a(f's_sleep 1\ns_cmp_lt_u32 s30, {LIMIT*8}\ns_cbranch_scc1 L_qspin')
    a('L_nq3:')
    a(f'v_and_b32 v12, 3, v15\nv_lshlrev_b32 v12, 8, v12\nv_lshl_add_u32 v12, v7, 4, v12\nv_add_u32 v12, {QL}, v12')
    for k in range(4): a(f'ds_read_b128 v[{16+4*k}:{19+4*k}], v12 offset:{64*k}')
    a('s_waitcnt vmcnt(0) lgkmcnt(0)')
    stamp(3)
    order = [(u, dd) for u in range(4) for dd in range(3)]
    ldsg = [4*dd+u for (u, dd) in order if 4*dd+u < 9]
    def kread(k):
        gi = ldsg[k]; buf = 64 + 16*(k & 1)
        for s in range(4):
            a(f'ds_read_b128 v[{buf+4*s}:{buf+4*s+3}], v{8+s} offset:{4096*gi}')
    kread(0)
    k = 0
    for (u, dd) in order:
        gi = 4*dd + u
        mq = 32 + 16*(u & 1)
        if u == 0 and dd == 0:
            for r in range(16): a(f'v_cndmask_b32 v{mq+r}, 0, v{16+r}, s[36:37]')
        if gi < 9:
            src = 64 + 16*(k & 1)
            if k + 1 < len(ldsg):
                kread(k + 1); a('s_waitcnt lgkmcnt(4)')
            else:
                a('s_waitcnt lgkmcnt(0)')
            k += 1
        else:
            src = 96 + 16*(gi - 9)
        D = 144 + 4*dd
        for s in range(4):
            c = '0' if (u == 0 and s == 0) else f'v[{D}:{D+3}]'
            a(f'v_mfma_f32_16x16x32_bf16 v[{D}:{D+3}], v[{src+4*s}:{src+4*s+3}], v[{mq+4*s}:{mq+4*s+3}], {c}')
            if u < 3 and dd < 2:
                mq2 = 32 + 16*((u+1) & 1)
                for r in (8*dd + 2*s, 8*dd + 2*s + 1):
                    a(f'v_cndmask_b32 v{mq2+r}, 0, v{16+r}, s[{38+2*u}:{39+2*u}]')
    a('v_mov_b32 v160, 0xff800000')
    for dd, th in ((1, 161), (2, 163)):
        for r in range(4):
            a(f'v_cmp_lt_i32 vcc, {4*r}, v{th}\nv_cndmask_b32 v{144+4*dd+r}, v160, v{144+4*dd+r}, vcc')
    a('v_max3_f32 v156, v144, v145, v146\nv_max3_f32 v157, v147, v148, v149')
    a('v_max3_f32 v158, v150, v151, v152\nv_max3_f32 v159, v153, v154, v155')
    a('v_max3_f32 v156, v156, v157, v158\nv_max_f32 v156, v156, v159')
    def xreduce(op, r, t):
        a(f'{op}_dpp v{r}, v{r}, v{r} row_ror:4 row_mask:0xf bank_mask:0xf')
        a(f'{op}_dpp v{r}, v{r}, v{r} row_ror:8 row_mask:0xf bank_mask:0xf')
        a(f'v_mov_b32 v{t}, v{r}\nv_permlane16_swap_b32 v{r}, v{t}\n{op} v{r}, v{r}, v{t}')
        a(f'v_mov_b32 v{t}, v{r}\nv_permlane32_swap_b32 v{r}, v{t}\n{op} v{r}, v{r}, v{t}')
    xreduce('v_max_f32', 156, 157)
    a(f's_mov_b32 s6, {f2u(128**-0.5 * LOG2E)}')
    a('v_mul_f32 v158, s6, v156')
    for r in range(12): a(f'v_fma_f32 v{144+r}, v{144+r}, s6, -v158')
    for r in range(12): a(f'v_exp_f32 v{144+r}, v{144+r}')
    for dd in range(3):
        D = 144 + 4*dd
        a(f'v_cvt_pk_bf16_f32 v{32+2*dd}, v{D}, v{D+1}\nv_cvt_pk_bf16_f32 v{33+2*dd}, v{D+2}, v{D+3}')
        a(f'ds_write_b64 v13, v[{32+2*dd}:{33+2*dd}] offset:{(256 if cfg.il else 512)*dd}')
    a('v_add_f32 v159, v144, v145')
    for r in range(2, 12): a(f'v_add_f32 v159, v159, v{144+r}')
    xreduce('v_add_f32', 159, 157)
    a(f's_lshl_b32 s6, s4, 5\ns_add_u32 s6, s6, {ST}')
    a('v_lshl_add_u32 v14, v1, 3, s6')
    a('s_mov_b64 exec, 15\nds_write_b64 v14, v[158:159]\ns_mov_b64 exec, -1')
    a('s_waitcnt lgkmcnt(0)')
    a(f'v_mov_b32 v14, {QF}\nv_mov_b32 v16, 1\ns_mov_b64 exec, 1\nds_add_u32 v14, v16 offset:4\ns_mov_b64 exec, -1')
    stamp(4)
    pspin('v14', 'v16')
    a(f'v_and_b32 v14, 3, v1\nv_lshlrev_b32 v14, 3, v14\nv_add_u32 v14, {ST}, v14')
    for w in range(4): a(f'ds_read_b64 v[{16+2*w}:{17+2*w}], v14 offset:{32*w}')
    a('v_lshrrev_b32 v2, 2, v1\nv_lshrrev_b32 v3, 4, v1\nv_add_u32 v3, v3, v1\nv_and_b32 v3, 3, v3')
    a('v_lshlrev_b32 v2, 5, v2\nv_lshl_add_u32 v2, v3, 3, v2')
    a(f's_lshl_b32 s6, s4, 9\ns_add_u32 s6, s6, {SCR}\nv_add_u32 v2, s6, v2')
    a('s_waitcnt lgkmcnt(0)')
    a('v_max3_f32 v24, v16, v18, v20\nv_max_f32 v24, v24, v22')
    for w in range(4): a(f'v_sub_f32 v{25+w}, v{16+2*w}, v24')
    for w in range(4): a(f'v_exp_f32 v{25+w}, v{25+w}')
    a('v_mul_f32 v29, v25, v17\nv_fmac_f32 v29, v26, v19\nv_fmac_f32 v29, v27, v21\nv_fmac_f32 v29, v28, v23')
    a('v_log_f32 v30, v29\nv_rcp_f32 v29, v29\nv_mov_b32 v31, s33')
    a('v_add_f32 v30, v30, v24')
    a(f's_lshl_b32 s6, s24, 11\ns_lshl_b32 s7, s25, 7\ns_add_u32 s6, s6, s7\ns_add_u32 s6, s6, {LSE}')
    a('v_lshlrev_b32 v3, 3, v1')
    a('s_cmp_eq_u32 s4, 0\ns_cselect_b32 exec_lo, 0xffff, 0\ns_mov_b32 exec_hi, 0\ns_cbranch_execz L_nlse')
    if cfg.diag is not None and cfg.diag >= 90: a(f's_sub_u32 s7, s{64+2*cfg.dk}, s{64+2*cfg.dk0}\ns_mov_b32 exec_lo, 0xff00\nv_mov_b32 v30, ' + ('s7' if cfg.dk else 's64') + '\ns_mov_b32 exec_lo, 0xffff')
    a('buffer_store_dwordx2 v[30:31], v3, s[16:19], s6 offen sc1')
    a('L_nlse:')
    a('s_mov_b64 exec, -1')
    for w in range(4): a(f'v_mul_f32 v{32+w}, v{25+w}, v29')
    for w in range(4): a(f'v_readlane_b32 s{36+w}, v{32+w}, s4')
    a('L_xs:')
    a('v_lshlrev_b32 v3, 2, v1')
    a('s_barrier')
    stamp(6)
    for v in range(8): a(f'ds_read_b64 v[{48+2*v}:{49+2*v}], v2 offset:{2048*v}')
    for v in range(8):
        a(f's_waitcnt lgkmcnt({7-v})')
        w = v >> 1; sp = 36 + (w & ~1)
        mod = 'op_sel_hi:[1,0,1]' if (w & 1) == 0 else 'op_sel:[0,1,0] op_sel_hi:[1,1,1]'
        mod2 = 'op_sel_hi:[1,0]' if (w & 1) == 0 else 'op_sel:[0,1] op_sel_hi:[1,1]'
        if v < 2: a(f'v_pk_mul_f32 v[{40+2*v}:{41+2*v}], v[{48+2*v}:{49+2*v}], s[{sp}:{sp+1}] {mod2}')
        else: a(f'v_pk_fma_f32 v[{40+2*(v&1)}:{41+2*(v&1)}], v[{48+2*v}:{49+2*v}], s[{sp}:{sp+1}], v[{40+2*(v&1)}:{41+2*(v&1)}] {mod}')
    a('v_pk_add_f32 v[40:41], v[40:41], v[42:43]')
    a('v_cvt_pk_bf16_f32 v40, v40, v41')
    a(f'buffer_store_dword v40, v3, s[16:19], s26 offen {cfg.ost}')
    stamp(7)
    if cfg.stamps:
        a('s_cmp_lg_u32 s4, 0\ns_cbranch_scc1 L_end')
        stamps_out(8, 0)
    a('s_endpgm')

    a('L_vwave:')
    a('s_lshl_b32 s22, s31, 8')
    a('s_sub_u32 s4, s4, 4')
    if cfg.rot & 2: a('s_add_u32 s4, s4, s24\ns_and_b32 s4, s4, 7')
    if cfg.rot & 4: a('s_lshr_b32 s7, s24, 1\ns_add_u32 s4, s4, s7\ns_and_b32 s4, s4, 7')
    a('v_lshlrev_b32 v2, 4, v1')
    a(f'v_mov_b32 v16, 0\nv_mov_b32 v17, 0\nv_mov_b32 v18, 0\nv_mov_b32 v19, 0\nv_add_u32 v9, {ZERO}, v2')
    a('s_mov_b32 exec_lo, -1\ns_mov_b32 exec_hi, 3\nds_write_b128 v9, v[16:19]\ns_mov_b64 exec, -1')
    a(f'v_mov_b32 v9, {QF}\nds_write_b64 v9, v[16:17]')
    a(f's_mul_i32 s7, s4, 768\ns_add_u32 s7, s7, {PREG}')
    a('v_and_b32 v9, 3, v1\nv_lshlrev_b32 v9, 6, v9\nv_lshrrev_b32 v10, 4, v1\nv_lshl_add_u32 v9, v10, 4, v9\nv_add_u32 v9, s7, v9')
    a(f'v_mov_b32 v11, {ZERO}')
    for x in range(4):
        a(f's_mov_b32 s34, {0x000F000F << (4*x):#x}\ns_mov_b32 s35, s34')
        a(f'v_cndmask_b32 v{3+x}, v11, v9, s[34:35]')
    a('v_and_b32 v7, 15, v1\nv_lshrrev_b32 v8, 2, v7\nv_add_u32 v8, v8, v10\nv_and_b32 v8, 3, v8')
    a('v_lshlrev_b32 v7, 5, v7\nv_lshl_add_u32 v7, v8, 3, v7')
    a(f's_lshl_b32 s7, s4, 11\ns_add_u32 s7, s7, {SCR}\nv_add_u32 v7, s7, v7\nv_add_u32 v8, 1024, v7')
    a('s_mov_b32 s36, 0x05040100\ns_mov_b32 s37, 0x07060302')
    a(f's_mul_i32 s27, s4, {256*cfg.RK}\ns_add_u32 s7, s27, {256*cfg.RK}\ns_min_u32 s22, s22, s7')
    a('s_waitcnt lgkmcnt(0)')
    a('s_add_u32 s20, s10, s6\ns_addc_u32 s21, s11, 0')
    if cfg.stamps: srd(16, 's14', 's15', WS_SZ)
    if cfg.tlbw:
        a(f'v_lshlrev_b32 v12, 12, v1\ns_mov_b64 exec, {(1 << cfg.tlbw) - 1}\nbuffer_load_dword v13, v12, s[20:23], s27 offen {cfg.NT}\ns_mov_b64 exec, -1')
    a('s_barrier')
    stamp(1)
    for i in range(24):
        r = 72 + 4*i
        a(f'buffer_load_dwordx4 v[{r}:{r+3}], v2, s[20:23], s27 offen offset:{1024*(i&3)} {cfg.NT}')
        if cfg.thV < 63 and cfg.thV <= i < cfg.nth: a(f's_waitcnt vmcnt({cfg.thV})')
        if (i & 3) == 3 and i < 23: a(f's_add_u32 s27, s27, {61440 if (cfg.il and (i & 7) == 7) else 4096}')
    stamp(2)
    if cfg.xp & 512: a('s_waitcnt vmcnt(0)\ns_branch L_xv')
    pspin('v9', 'v10')
    stamp(3)
    def pread(t):
        buf = 40 + 16*(t & 1)
        for x in range(4): a(f'ds_read_b128 v[{buf+4*x}:{buf+4*x+3}], v{3+x} offset:{256*t}')
    pread(0); pread(1)
    for t in range(3):
        a(f's_waitcnt vmcnt({16-8*t})')
        if t == 2: stamp(4)
        vb = 72 + 32*t; pb = 40 + 16*(t & 1)
        for j in range(8):
            tb = 24 + 4*(j & 3)
            sel = 's37' if (j & 1) else 's36'
            for tt in range(4):
                a(f'v_perm_b32 v{tb+tt}, v{vb + 4*(2*tt+1) + (j>>1)}, v{vb + 4*(2*tt) + (j>>1)}, {sel}')
            if j == 0: a('s_waitcnt lgkmcnt(4)' if t == 0 else 's_waitcnt lgkmcnt(0)')
            if j > 0:
                jj = j - 1; tb2 = 24 + 4*(jj & 3); acc = 16 + 4*(jj & 1); x = jj >> 1
                c = '0' if (t == 0 and jj < 2) else f'v[{acc}:{acc+3}]'
                a(f'v_mfma_f32_16x16x32_bf16 v[{acc}:{acc+3}], v[{pb+4*x}:{pb+4*x+3}], v[{tb2}:{tb2+3}], {c}')
        a(f'v_mfma_f32_16x16x32_bf16 v[20:23], v[{pb+12}:{pb+15}], v[36:39], v[20:23]')
        if t == 0: pread(2)
    for r in range(4):
        ad = 7 + (r >> 1); o = 128*(r & 1)
        a(f'ds_write2_b32 v{ad}, v{16+r}, v{20+r} offset0:{o} offset1:{o+1}')
    a('s_waitcnt lgkmcnt(0)')
    a('L_xv:')
    stamp(5)
    a('s_barrier')
    if cfg.stamps:
        a('s_cmp_lg_u32 s4, 0\ns_cbranch_scc1 L_end')
        stamps_out(6, 8)
    a('s_endpgm')

    a('L_spare:')
    if cfg.xp & 2048: a('s_endpgm')
    if cfg.xp & 16: a('s_endpgm')
    if cfg.tlbw:
        a('s_cmp_lg_u32 s4, 9\ns_cbranch_scc1 L_sp1')
        a('s_load_dwordx2 s[36:37], s[0:1], 32\ns_load_dwordx2 s[40:41], s[0:1], 48\ns_load_dwordx2 s[44:45], s[0:1], 64\ns_load_dwordx2 s[48:49], s[0:1], 88')
        a('v_lshlrev_b32 v2, 16, v1\nv_lshlrev_b32 v3, 14, v1')
        a(f's_mov_b32 s38, {4096*1024}\ns_mov_b32 s39, 0x20000\ns_mov_b32 s42, {512*3584}\ns_mov_b32 s43, 0x20000\ns_mov_b32 s46, {1792*1024}\ns_mov_b32 s47, 0x20000\ns_mov_b32 s50, {512*6144}\ns_mov_b32 s51, 0x20000')
        a('s_waitcnt lgkmcnt(0)')
        srd(16, 's14', 's15', WS_SZ)
        a('buffer_load_dword v8, v3, s[16:19], 0 offen sc1')
        a('s_cmp_lg_u32 s5, 0\ns_cbranch_scc1 L_sp0')
        a('buffer_load_dword v4, v2, s[36:39], 0 offen nt\nbuffer_load_dword v5, v2, s[40:43], 0 offen nt\nbuffer_load_dword v6, v2, s[44:47], 0 offen nt')
        a('s_endpgm')
        a('L_sp0:')
        a('buffer_load_dword v7, v2, s[48:51], 0 offen nt')
        a('s_endpgm')
        a('L_sp1:')
    a('s_cmp_lg_u32 s5, 0\ns_cbranch_scc1 L_end')
    a('s_cmp_lg_u32 s4, 8\ns_cbranch_scc1 L_end')
    a('v_mov_b32 v4, -1\nv_mov_b32 v5, -1\nv_mov_b32 v6, -1\nv_mov_b32 v7, -1')
    a(f's_lshl_b32 s6, s3, 10\ns_add_u32 s6, s6, {WOUT}\nv_lshlrev_b32 v2, 4, v1\nv_add_u32 v2, s6, v2')
    a(f's_lshl_b32 s6, s3, 12\ns_add_u32 s6, s6, {MOUT}\nv_lshlrev_b32 v8, 4, v1\nv_add_u32 v8, s6, v8')
    a('s_waitcnt lgkmcnt(0)')
    a('global_store_dwordx4 v2, v[4:7], s[14:15] sc1')
    if cfg.owarm:
        a('s_cmp_lg_u32 s3, 31\ns_cbranch_scc1 L_sp3')
        a('s_load_dwordx2 s[36:37], s[0:1], 96\nv_lshlrev_b32 v9, 4, v1\ns_waitcnt lgkmcnt(0)')
        a('global_store_dwordx4 v9, v[4:7], s[36:37] sc1\nglobal_store_dwordx4 v9, v[4:7], s[36:37] offset:1024 sc1')
        if cfg.owarm > 1: a(f'v_add_u32 v9, {EPO + 64}, v9\ns_mov_b64 exec, 15\nglobal_store_dwordx4 v9, v[4:7], s[14:15] sc1\ns_mov_b64 exec, -1')
        a('L_sp3:')
    if not cfg.mtag:
        a('s_cmp_ge_u32 s3, 28\ns_cbranch_scc1 L_sp2')
        for i in range(4): a(f'global_store_dwordx4 v8, v[4:7], s[14:15] offset:{1024*i} sc1')
        a('L_sp2:')
    a('s_waitcnt vmcnt(0)')
    a('s_endpgm')

    AT=136; DD=32; Z=36; T=38; ZT=37; F0=40; F1=72; F2=104
    if not cfg.hfirst: hearly()
    a('L_helper:')
    epoch_load()
    if cfg.diag is not None: a(f's_load_dword s96, s[14:15], {XID+4}\ns_load_dword s97, s[14:15], {EPO}')
    a('s_load_dwordx2 s[44:45], s[0:1], 0')
    a('s_load_dwordx4 s[48:51], s[0:1], 24')
    a('s_load_dwordx4 s[52:55], s[0:1], 80')
    a('v_lshrrev_b32 v10, 3, v1\nv_and_b32 v11, 3, v1\nv_lshlrev_b32 v11, 1, v11\nv_lshl_add_u32 v10, v10, 3, v11')
    a('v_bfe_u32 v11, v1, 2, 1')
    a('s_lshl_b32 s6, s4, 6\nv_add_u32 v12, s6, v10')
    a('v_lshlrev_b32 v6, 1, v12\nv_lshl_add_u32 v6, v11, 10, v6')
    a(f'v_lshlrev_b32 v9, 2, v12\nv_lshl_add_u32 v9, v11, 11, v9\nv_add_u32 v9, {X1}, v9')
    a(f's_lshr_b32 s6, s4, 2\ns_mul_i32 s6, s6, 576\ns_and_b32 s7, s4, 3\ns_lshl_b32 s7, s7, 7\ns_add_u32 s6, s6, s7\ns_add_u32 s6, s6, {ACT}')
    a('v_mul_u32_u24 v7, 1152, v11\nv_lshl_add_u32 v7, v10, 1, v7\nv_add_u32 v7, s6, v7')
    a('v_lshrrev_b32 v13, 3, v1\nv_lshlrev_b32 v13, 2, v13\nv_lshl_add_u32 v13, v11, 5, v13')
    a(f'v_add_u32 v13, {STAT}, v13')
    a('s_waitcnt lgkmcnt(0)')
    srd(16, 's14', 's15', WS_SZ)
    epoch_tag()
    a('global_load_dword v17, v6, s[52:53]')
    a('global_load_dword v16, v6, s[44:45]')
    a('s_cmp_eq_u32 s5, 0\ns_cbranch_scc1 L_t2')
    a('s_add_u32 s24, s25, 128')
    dma_u1('s48', 's49', 512*8192, 8192, 's24', R1)
    a('s_branch L_h2')
    a('L_t2:')
    a('s_lshr_b32 s26, s3, 1\ns_lshl_b32 s24, s26, 18\ns_and_b32 s6, s3, 1\ns_lshl_b32 s6, s6, 9\ns_add_u32 s24, s24, s6')
    dma_w(8, 8 + cfg.pre)
    a('L_h2:')
    a('v_lshrrev_b32 v10, 4, v1\nv_bfe_u32 v11, v1, 2, 2\nv_lshl_add_u32 v3, v10, 3, v11')
    a('v_bfe_u32 v11, v1, 1, 1\nv_lshl_add_u32 v3, v11, 8, v3\nv_lshlrev_b32 v3, 7, v3')
    a('v_bfe_u32 v12, v1, 3, 2\nv_lshl_add_u32 v12, v11, 2, v12\nv_xor_b32 v12, s4, v12\nv_lshl_add_u32 v3, v12, 4, v3')
    a('v_and_b32 v12, 1, v1\nv_lshl_add_u32 v3, v12, 3, v3')
    a(f'v_lshl_add_u32 v4, v12, 1, v11\nv_mul_u32_u24 v4, 576, v4\nv_lshl_add_u32 v4, v10, 4, v4\nv_add_u32 v4, {ACT}, v4')
    a('v_lshlrev_b32 v5, 3, v0')
    a('s_lshl_b32 s6, s4, 7\nv_lshl_add_u32 v8, v1, 3, s6\nv_lshlrev_b32 v28, 4, v0')
    a(f'v_and_b32 v10, 0x37, v1\nv_cmp_eq_u32 vcc, 1, v10\nv_mov_b32 v18, {f2u(1e-5)}\nv_cndmask_b32 v18, 0, v18, vcc')
    a(f'v_lshlrev_b32 v10, 2, v1\nv_add_u32 v10, {STAT}, v10\nv_mov_b32 v{T+1}, s33\nv_mov_b32 v{ZT}, s33')
    a('s_mov_b32 exec_lo, -1\ns_mov_b32 exec_hi, 0xffff\nds_write_b32 v10, v18\ns_mov_b64 exec, -1')

    def tr_u1(F, region, steps=8, ad=None):
        if ad is None:
            if region: a(f'v_add_u32 v10, {region}, v3')
            ad = 'v10' if region else 'v3'
        for s in range(steps):
            for hh in range(2):
                a(f'ds_read_b64_tr_b16 v[{F+4*s+2*hh}:{F+4*s+2*hh+1}], {ad} offset:{4096*s + 512*hh}')
    def gemv(Fs, ad='v4', fill=(), off=0, steps=8, Ds=None):
        if isinstance(Fs, int): Fs = [Fs]
        if Ds is None: Ds = [DD]
        fill = list(fill)
        for s in range(steps): a(f'ds_read_b128 v[{AT+4*s}:{AT+4*s+3}], {ad} offset:{64*s+off}')
        per = (len(fill) + steps - 2) // (steps - 1)
        for s in range(steps):
            a(f's_waitcnt lgkmcnt({steps-1-s})')
            for F, D in zip(Fs, Ds):
                c = '0' if s == 0 else f'v[{D}:{D+3}]'
                a(f'v_mfma_f32_16x16x32_bf16 v[{D}:{D+3}], v[{AT+4*s}:{AT+4*s+3}], v[{F+4*s}:{F+4*s+3}], {c}')
            for _ in range(per):
                if fill: a(fill.pop(0))
        for x in fill: a(x)
    def sgemv(Fs, Ds, ad, idx, off=0, fill=(), steps=4, lead=2):
        fill = list(fill)
        post = bool(fill) and cfg.sord
        for s in range(steps):
            a(f'ds_read_b128 v[{AT+4*s}:{AT+4*s+3}], {ad} offset:{64*s+off}')
            if post and s == 1: a('ds_read_b128 v[52:55], v40\nds_read_b64 v[56:57], v40 offset:16')
        per = lead
        for s in range(steps):
            a(f's_waitcnt lgkmcnt({(5, 4, 1, 0)[s] if post else steps-1-s})')
            if post and s < 2:
                for F, D in zip(Fs, Ds):
                    a(f'v_smfmac_f32_16x16x64_bf16 v[{D}:{D+3}], v[{AT+4*s}:{AT+4*s+3}], v[{F+8*s}:{F+8*s+7}], {idx}')
                if s == 1:
                    a('s_waitcnt lgkmcnt(2)')
                    for _ in range(4): a(fill.pop(0))
                continue
            for F, D in zip(Fs, Ds):
                a(f'v_smfmac_f32_16x16x64_bf16 v[{D}:{D+3}], v[{AT+4*s}:{AT+4*s+3}], v[{F+8*s}:{F+8*s+7}], {idx}')
            for _ in range(per):
                if fill: a(fill.pop(0))
        for x in fill: a(x)
    def fold(D=DD, z=Z):
        a(f'v_add_f32_dpp v{z}, v{D+2}, v{D} row_ror:8 row_mask:0xf bank_mask:0x3')
        a(f'v_add_f32_dpp v{z}, v{D+1}, v{D+3} row_ror:8 row_mask:0xf bank_mask:0xc')
    def publish_tag(z, soff):
        a(f's_mov_b64 exec, 0xffff\nbuffer_store_dwordx2 v[{Z}:{Z+1}], v8, s[16:19], {soff} offen sc1\ns_mov_b64 exec, -1')
    def store2(text):
        if not cfg.fast: a(text + ' sc1'); return
        l = lab('fs'); d = lab('fd')
        a(f's_cbranch_scc1 {l}')
        a(text + ' sc1'); a(f's_branch {d}')
        a(f'{l}:'); a(text + ' ' + cfg.lst); a(f'{d}:')
    def unpack(lo, hi, src):
        a(f'v_lshlrev_b32 v{lo}, 16, v{src}\nv_and_b32 v{hi}, 0xffff0000, v{src}')
    def red6(vals, off, TT, scale=None, ad='v13'):
        r01, r23, r45, z = TT
        for r, (e, o) in zip((r01, r23, r45), ((vals[0], vals[1]), (vals[2], vals[3]), (vals[4], vals[5]))):
            a(f'v_add_f32_dpp v{r}, v{e}, v{e} row_ror:8 row_mask:0xf bank_mask:0x3')
        for r, (e, o) in zip((r01, r23, r45), ((vals[0], vals[1]), (vals[2], vals[3]), (vals[4], vals[5]))):
            a(f'v_add_f32_dpp v{r}, v{o}, v{o} row_ror:8 row_mask:0xf bank_mask:0xc')
        a(f'v_permlane16_swap_b32 v{r01}, v{r23}\nv_permlane16_swap_b32 v{r45}, v{z}')
        a(f'v_add_f32 v{r01}, v{r01}, v{r23}\nv_add_f32 v{r45}, v{r45}, v{z}')
        a(f'v_permlane32_swap_b32 v{r01}, v{r45}\nv_add_f32 v{r01}, v{r01}, v{r45}')
        a(f'v_add_f32_dpp v{r01}, v{r01}, v{r01} quad_perm:[1,0,3,2] row_mask:0xf bank_mask:0xf')
        a(f'v_add_f32_dpp v{r01}, v{r01}, v{r01} quad_perm:[2,3,0,1] row_mask:0xf bank_mask:0xf')
        a(f's_mov_b32 exec_lo, 0x11111111\ns_mov_b32 exec_hi, 0x1111')
        if scale: a(f'v_mul_f32 v{r01}, v{r01}, {scale}')
        a(f'ds_add_f32 {ad}, v{r01} offset:{off}\ns_mov_b64 exec, -1')

    stamp(1)
    def silu():
        unpack(18, 19, 17)
        a(f's_mov_b32 s6, {f2u(-LOG2E)}')
        a('v_mul_f32 v20, s6, v18\nv_mul_f32 v21, s6, v19\nv_exp_f32 v20, v20\nv_exp_f32 v21, v21')
        a('v_add_f32 v20, 1.0, v20\nv_add_f32 v21, 1.0, v21\nv_rcp_f32 v20, v20\nv_rcp_f32 v21, v21')
        a('v_mul_f32 v18, v18, v20\nv_mul_f32 v19, v19, v21\nv_cvt_pk_bf16_f32 v18, v18, v19')
        a(f'ds_write_b32 v7, v18 offset:{ACTC-ACT}')
        unpack(14, 15, 16)
    a('s_cmp_eq_u32 s5, 0\ns_cbranch_scc1 L_tail')
    mloads = [f'buffer_load_dwordx4 v[{AT+4*k}:{AT+4*k+3}], v28, s[16:19], s{60+k} offen sc1' for k in range(4)]
    for k in range(4): a(f's_mov_b32 s{60+k}, {MODA + 8192*k}')
    if not cfg.mlate:
        for x in mloads: a(x)
    a(f's_waitcnt vmcnt({8 if cfg.mlate else 12})')
    stamp(2)
    silu()
    a('v_add_f32 v18, v14, v15\nv_mul_f32 v19, v14, v14\nv_fmac_f32 v19, v15, v15')
    a('s_waitcnt lgkmcnt(0)\ns_barrier')
    red6([18, 19, 18, 19, 18, 19], STAT2 - STAT, (24, 25, 26, 27))
    tr_u1(F0, R0)
    a('s_waitcnt lgkmcnt(0)\ns_barrier')
    stamp(3)
    a('s_lshl_b32 s24, s3, 7\ns_add_u32 s24, s24, 2048')
    if cfg.xp & 128:
        dma_u1('s54', 's55', 512*6144, 6144, 's24', R0)
        a('s_endpgm')
    if cfg.mlate:
        if cfg.mlate > 1: a(f's_waitcnt vmcnt({cfg.mlate})')
        for x in mloads: a(x)
    if cfg.apre: dma_u1('s54', 's55', 512*6144, 6144, 's24', R0, i1=cfg.apre)
    a(f'v_bfe_u32 v10, v1, 2, 1\nv_lshlrev_b32 v10, 5, v10\nv_add_u32 v10, {STAT2}, v10')
    a('ds_read_b64 v[18:19], v10\ns_waitcnt lgkmcnt(0)')
    a(f's_mov_b32 s6, {f2u(1/512)}\ns_mov_b32 s7, {f2u(1e-5)}')
    a('v_mul_f32 v18, s6, v18\nv_mul_f32 v19, s6, v19\nv_fma_f32 v19, -v18, v18, v19\nv_max_f32 v19, 0, v19\nv_add_f32 v19, s7, v19\nv_rsq_f32 v19, v19')
    a('v_sub_f32 v20, v14, v18\nv_sub_f32 v21, v15, v18\nv_mul_f32 v20, v20, v19\nv_mul_f32 v21, v21, v19')
    a('v_bfe_u32 v30, v1, 1, 2\nv_lshlrev_b32 v30, 3, v30\nv_bfe_u32 v11, v1, 3, 1\nv_lshl_add_u32 v30, v11, 9, v30\nv_bfe_u32 v11, v1, 4, 1\nv_lshl_add_u32 v30, v11, 8, v30')
    a(f's_lshl_b32 s6, s4, 5\ns_add_u32 s6, s6, {X1}\nv_add_u32 v30, s6, v30')
    a(f'v_lshlrev_b32 v31, 4, v1\nv_add_u32 v29, {X1}, v31\nv_lshrrev_b32 v11, 5, v1\nv_mul_u32_u24 v11, 1536, v11\nv_add_u32 v31, v31, v11')
    vpoll(mloads, range(AT+1, AT+16, 2), 22, first_issued=True, tags=True, sleep=cfg.slpB, first_cnt=cfg.apre)
    stamp(4)
    a(f'v_add_f32 v22, v{AT}, v{AT+8}\nv_add_f32 v23, v{AT+2}, v{AT+10}\nv_add_f32 v24, v{AT+4}, v{AT+12}\nv_add_f32 v25, v{AT+6}, v{AT+14}')
    a('v_add_f32 v24, 1.0, v24\nv_add_f32 v25, 1.0, v25\nv_fma_f32 v20, v20, v24, v22\nv_fma_f32 v21, v21, v25, v23')
    a('v_cvt_pk_bf16_f32 v20, v20, v21\nds_write_b32 v7, v20\ns_waitcnt lgkmcnt(0)\ns_barrier')
    stamp(5)
    tr_u1(F1, R1)
    gemv([F0, F1], Ds=[DD, 24])
    a(f'v_add_f32_dpp v{Z}, v{DD+2}, v{DD} row_ror:8 row_mask:0x1 bank_mask:0x3')
    a(f'v_add_f32_dpp v{Z}, v{DD+1}, v{DD+3} row_ror:8 row_mask:0x1 bank_mask:0xc')
    a(f'v_add_f32_dpp v{Z}, v26, v24 row_ror:8 row_mask:0x2 bank_mask:0x3')
    a(f'v_add_f32_dpp v{Z}, v25, v27 row_ror:8 row_mask:0x2 bank_mask:0xc')
    a(f'v_mov_b32_dpp v{T}, v{Z} quad_perm:[1,1,3,3] row_mask:0xf bank_mask:0xf')
    a(f's_mov_b64 exec, 0x55555555')
    a(f'v_cvt_pk_bf16_f32 v{T}, v{Z}, v{T}')
    a(f'ds_write_b64 v30, v[{T}:{T+1}]\ns_mov_b64 exec, -1')
    a('s_waitcnt lgkmcnt(0)\ns_barrier')
    a('s_cmp_lg_u32 s4, 0\ns_cbranch_scc1 L_nqp')
    a(f's_lshr_b32 s6, s3, 2\ns_lshl_b32 s6, s6, 12\ns_and_b32 s7, s3, 3\ns_lshl_b32 s7, s7, 9\ns_add_u32 s6, s6, s7\ns_add_u32 s6, s6, {QO}')
    a('ds_read_b128 v[24:27], v29\ns_waitcnt lgkmcnt(0)')
    a('buffer_store_dwordx4 v[24:27], v31, s[16:19], s6 offen sc1')
    a('L_nqp:')
    stamp(6)
    if cfg.qobs:
        a('s_cmp_lg_u32 s4, 0\ns_cbranch_scc1 L_nobs')
        a(f's_lshr_b32 s6, s3, 2\ns_lshl_b32 s6, s6, 12\ns_add_u32 s6, s6, {QO}\nv_lshlrev_b32 v10, 4, v1')
        a('s_waitcnt vmcnt(0)'); stamp(2)
        vpoll([f'buffer_load_dwordx4 v[{AT+4*k}:{AT+4*k+3}], v10, s[16:19], s6 offen offset:{1024*k} sc1' for k in range(2)], range(AT+1, AT+8, 2), 22, tags=True)
        stamp(1)
        a('L_nobs:')
    if cfg.apre < 8: dma_u1('s54', 's55', 512*6144, 6144, 's24', R0, i0=cfg.apre)
    a('s_waitcnt vmcnt(0)\ns_barrier')
    tr_u1(F0, R0)
    gemv(F0, off=ACTC-ACT); fold()
    a(f's_lshl_b32 s6, s3, 10\ns_add_u32 s6, s6, {MODB}')
    publish_tag(Z, 's6')
    stamp(7)
    if cfg.stamps:
        a('s_cmp_lg_u32 s4, 0\ns_cbranch_scc1 L_end')
        stamps_out(8, 0)
    a('s_endpgm')

    a('L_tail:')
    a(f's_waitcnt vmcnt({cfg.pre})')
    stamp(2)
    silu()
    a('s_load_dwordx8 s[52:59], s[0:1], 48')
    a('s_load_dwordx2 s[46:47], s[0:1], 96')
    if cfg.diag is not None: a('s_waitcnt lgkmcnt(0)\ns_load_dwordx2 s[98:99], s[46:47], 0')
    a('v_bfe_u32 v11, v1, 1, 1\nv_lshlrev_b32 v10, 14, v11\nv_sub_u32 v10, v3, v10')
    a('v_mul_u32_u24 v11, 320, v11\nv_sub_u32 v11, v4, v11\ns_and_b32 s6, s3, 1\ns_mul_i32 s6, s6, 576\nv_add_u32 v11, s6, v11')
    a('s_waitcnt lgkmcnt(0)\ns_barrier')
    tr_u1(F0, R0, 4, 'v10')
    gemv(F0, 'v11', off=ACTC-ACT, steps=4); fold()
    a('s_and_b32 s6, s3, 1\ns_lshl_b32 s6, s6, 14\ns_lshr_b32 s7, s3, 1\ns_lshl_b32 s7, s7, 10\ns_add_u32 s6, s6, s7')
    publish_tag(Z, 's6')
    stamp(3)
    dma_w(8 + cfg.pre, 16, setup=False)
    a('s_barrier')
    dma_w(0, 8, setup=False)
    a('v_lshrrev_b32 v10, 4, v1\nv_bfe_u32 v11, v1, 2, 2\nv_lshl_add_u32 v10, v10, 3, v11\nv_lshlrev_b32 v10, 9, v10')
    a('v_and_b32 v11, 3, v1\nv_lshl_add_u32 v10, v11, 3, v10')
    a('v_bfe_u32 v11, v1, 2, 3\nv_lshlrev_b32 v11, 5, v11\ns_lshl_b32 s6, s4, 6\nv_xor_b32 v11, s6, v11')
    a('v_add_u32 v22, v10, v11\nv_xor_b32 v11, 32, v11\nv_add_u32 v30, v10, v11')
    def tr_w(half):
        for cg, ad in ((0, 22), (1, 30)):
            if half: a(f'v_add_u32 v{10+cg}, {R1}, v{ad}')
            for s_ in range(4):
                for hh in range(2):
                    r = (F0, F1)[cg] + 4*(4*half + s_) + 2*hh
                    a(f'ds_read_b64_tr_b16 v[{r}:{r+1}], v{10+cg if half else ad} offset:{16384*s_ + 2048*hh}')
    a(f's_getreg_b32 s6, hwreg(HW_REG_XCC_ID)\ns_and_b32 s31, s6, 15\nv_mov_b32 v{T}, s31')
    a(f's_lshl_b32 s6, s3, 7\ns_add_u32 s6, s6, {XID}\nv_lshlrev_b32 v10, 3, v1')
    a('s_cmp_eq_u32 s4, 0\ns_cselect_b32 exec_lo, 0xffff, 0\ns_mov_b32 exec_hi, 0\ns_cbranch_execz L_nxid')
    a(f'buffer_store_dwordx2 v[{T}:{T+1}], v10, s[16:19], s6 offen sc1')
    a('L_nxid:')
    a('s_mov_b64 exec, -1')
    a('s_waitcnt vmcnt(8)\ns_barrier')
    stamp(4)
    tr_w(1)
    a('s_waitcnt lgkmcnt(0)\ns_barrier')
    a('s_cmp_ge_u32 s3, 28\ns_cbranch_scc1 L_nom1')
    a('s_lshl_b32 s24, s3, 7')
    dma_u1('s52', 's53', 512*3584, 3584, 's24', R1)
    stamp(5)
    a('s_waitcnt vmcnt(8)\ns_branch L_m1d')
    a('L_nom1:')
    a('s_waitcnt vmcnt(0)')
    a('L_m1d:')
    a('s_barrier')
    tr_w(0)
    a('s_waitcnt lgkmcnt(0)\ns_barrier')
    stamp(7)
    a('s_cmp_ge_u32 s3, 28\ns_cbranch_scc1 L_nom2')
    srd(20, 's56', 's57', 1792*1024)
    a('s_and_b32 s6, s4, 1\ns_lshl_b32 s6, s6, 7\nv_lshlrev_b32 v2, 4, v1\nv_xor_b32 v2, s6, v2')
    a('v_xor_b32 v10, 32, v2\nv_xor_b32 v11, 64, v2\nv_xor_b32 v12, 96, v2')
    a(f's_lshl_b32 s27, s3, 16\ns_lshl_b32 s28, s4, 13\ns_add_u32 s27, s27, s28')
    for hh in range(2):
        a('s_mov_b32 m0, s28')
        for i in range(4): a(f'buffer_load_dwordx4 v{(2,10,11,12)[i]}, s[20:23], s27 offen offset:{1024*i} {cfg.NT} lds')
        if hh == 0: a('s_add_u32 s27, s27, 4096\ns_add_u32 s28, s28, 4096')
    stamp(6)
    if cfg.xp & 256: a('s_endpgm')
    if cfg.touch:
        a(f's_lshl_b32 s6, s3, 12\ns_add_u32 s6, s6, {MOUT}\nbuffer_load_dwordx2 v[{DD}:{DD+1}], v5, s[16:19], s6 offen sc1')
    a('v_and_b32 v10, 7, v1\nv_lshlrev_b32 v10, 1, v10')
    a('s_and_b32 s6, s3, 15\ns_lshl_b32 s6, s6, 5\ns_lshl_b32 s7, s4, 2\ns_add_u32 s6, s6, s7')
    a('v_and_b32 v11, 1, v1\nv_lshl_add_u32 v11, v11, 1, s6\nv_bfe_u32 v12, v1, 4, 1\nv_add_u32 v23, v11, v12')
    a('v_lshlrev_b32 v11, 1, v23\nglobal_load_ushort v24, v11, s[58:59]')
    a('s_lshl_b32 s6, s3, 7\ns_lshl_b32 s7, s4, 4\ns_add_u32 s6, s6, s7')
    a('v_add_u32 v11, s6, v10\nglobal_load_ushort v25, v11, s[54:55]')
    a('L_nom2:')
    if cfg.xp & 256: a('s_endpgm')
    if cfg.touch:
        a(f's_lshl_b32 s6, s3, 10\ns_add_u32 s6, s6, {WOUT}\nv_lshlrev_b32 v10, 4, v1\nbuffer_load_dword v{DD+2}, v10, s[16:19], s6 offen sc1')
    a(f'v_and_b32 v10, 31, v1\nv_lshlrev_b32 v10, 7, v10\ns_mov_b32 s6, {XID}')
    vpoll([f'buffer_load_dwordx2 v[{AT}:{AT+1}], v10, s[16:19], s6 offen sc1'], [AT+1], None, sleep=cfg.slp, tags=True)
    a(f'v_cmp_ne_u32 vcc, s31, v{AT}\ns_cmp_eq_u64 vcc, 0\ns_cselect_b32 s32, 1, 0')
    a('s_cmp_ge_u32 s3, 28\ns_cbranch_scc1 L_wst')
    a('s_barrier')
    tr_u1(F2, R1)
    a('v_lshrrev_b32 v11, 3, v23\nv_lshlrev_b32 v11, 7, v11\nv_and_b32 v12, 7, v23\nv_lshl_add_u32 v11, v12, 3, v11\nv_bfe_u32 v12, v1, 3, 1\nv_lshl_add_u32 v11, v12, 6, v11')
    a(f's_mov_b32 s63, {MODB + 24*1024}')
    for k in range(3): a(f's_mov_b32 s{60+k}, {MODB + 8192*k}')
    a('v_lshlrev_b32 v24, 16, v24\nv_lshlrev_b32 v25, 16, v25')
    a(f'v_mov_b32 v{AT+15}, 0x3f803f80\nds_write_b32 v7, v{AT+15} offset:{ACTM-ACT+3*TS}')
    stamp(1)
    vpoll([f'buffer_load_dwordx4 v[{AT+4*k}:{AT+4*k+3}], v28, s[16:19], s{60+k} offen sc1' for k in range(3)] +
          [f'buffer_load_dwordx2 v[{AT+12}:{AT+13}], v11, s[16:19], s63 offen sc1'], range(AT+1, AT+14, 2), AT+14, sleep=cfg.slpM, tags=True)
    stamp(8)
    a(f'v_mov_b32 v23, v{AT+12}\nv_mov_b32 v16, v{AT}\nv_mov_b32 v17, v{AT+2}')
    a(f'v_add_f32 v18, 1.0, v{AT+8}\nv_add_f32 v19, 1.0, v{AT+10}\nv_cvt_pk_bf16_f32 v{AT+1}, v{AT+4}, v{AT+6}\nv_cvt_pk_bf16_f32 v{AT+3}, v18, v19')
    unpack(18, 19, AT+3); unpack(20, 21, AT+1)
    a(f'ds_write_b32 v7, v{AT+3} offset:{ACTM-ACT+TS}\nds_write_b32 v7, v{AT+1} offset:{ACTM-ACT+2*TS}')
    t = AT + 16
    a(f'v_add_f32 v{t}, v18, v19\nv_mul_f32 v{t+1}, v18, v18\nv_fmac_f32 v{t+1}, v19, v19')
    a(f'v_mul_f32 v{t+2}, v18, v20\nv_fmac_f32 v{t+2}, v19, v21\nv_add_f32 v{t+3}, v20, v21')
    a(f'v_mul_f32 v{t+4}, v20, v20\nv_fmac_f32 v{t+4}, v21, v21')
    red6([t, t+1, t+2, t+3, t+4, t+4], STAT3 - STAT, (t+6, t+7, t+8, t+9))
    a(f'v_bfe_u32 v10, v1, 2, 2\nv_mul_u32_u24 v10, {TS}, v10\nv_add_u32 v10, v10, v4')
    a('s_waitcnt lgkmcnt(0)\ns_barrier')
    gemv(F2, 'v10', off=ACTM-ACT); fold()
    a(f'v_mov_b32 v26, v{Z}\nv_permlane16_swap_b32 v{Z}, v26')
    a(f'v_mov_b32 v27, v{Z}\nv_mov_b32 v28, v26\nv_permlane32_swap_b32 v{Z}, v27\nv_permlane32_swap_b32 v26, v28')
    a('L_wst:')
    if cfg.xp & 64: a('s_endpgm')
    if cfg.dirty:
        a(f's_lshl_b32 s6, s3, 15\ns_add_u32 s6, s6, 0xA0000\nv_lshlrev_b32 v10, 4, v0')
        srd(20, 's14', 's15', 0x200000)
        for i in range(cfg.dirty):
            a(f'buffer_store_dwordx4 v[40:43], v10, s[20:23], s6 offen\ns_add_u32 s6, s6, 8192')
    a('s_lshr_b32 s6, s4, 2\ns_lshl_b32 s24, s6, 3\ns_lshr_b32 s7, s26, 1\ns_add_u32 s24, s24, s7')
    a('s_and_b32 s7, s26, 1\ns_lshl_b32 s7, s7, 1\ns_bfe_u32 s28, s4, 0x10001\ns_add_u32 s7, s7, s28')
    a(f's_lshl_b32 s27, s24, 11\ns_lshl_b32 s29, s7, 3\ns_add_u32 s27, s27, s29\ns_add_u32 s27, s27, {LSE}')
    a(f's_lshl_b32 s60, s24, 14\ns_lshl_b32 s29, s7, 8\ns_add_u32 s60, s60, s29\ns_and_b32 s29, s4, 1\ns_lshl_b32 s29, s29, 7\ns_add_u32 s60, s60, s29\ns_add_u32 s60, s60, {OP}')
    a('s_add_u32 s61, s60, 4096')
    a(f's_mul_i32 s6, s6, 1152\ns_and_b32 s29, s4, 3\ns_lshl_b32 s29, s29, 6\ns_add_u32 s6, s6, s29\ns_add_u32 s6, s6, {ACT}')
    a('v_and_b32 v31, 1, v1\nv_mul_u32_u24 v31, 576, v31\nv_bfe_u32 v10, v1, 1, 4\nv_lshl_add_u32 v31, v10, 2, v31\nv_add_u32 v31, s6, v31')
    a('s_mov_b32 s62, 6144\nv_and_b32 v2, 31, v1\nv_lshlrev_b32 v2, 2, v2\nv_lshrrev_b32 v10, 5, v1\nv_mad_u32_u24 v2, v10, s62, v2')
    a(f's_lshl_b32 s29, s3, 10\ns_add_u32 s29, s29, {WOUT}')
    a('v_and_b32 v11, 2, v1\nv_cmp_eq_u32 vcc, 0, v11\nv_mov_b32 v11, 0xeeee\nv_mov_b32 v22, 0x4444\nv_cndmask_b32 v22, v11, v22, vcc')
    for r in range(8): a(f'v_mov_b32 v{DD+r}, 0')
    a('v_bfe_u32 v8, v1, 1, 2\nv_lshlrev_b32 v8, 4, v8\nv_bfe_u32 v11, v1, 4, 1\nv_lshl_add_u32 v8, v11, 6, v8\nv_bfe_u32 v11, v1, 3, 1\nv_lshl_add_u32 v8, v11, 7, v8')
    a('v_lshl_add_u32 v8, v10, 2, v8\ns_lshr_b32 s6, s4, 1\ns_lshl_b32 s6, s6, 8\ns_and_b32 s7, s4, 1\ns_lshl_b32 s7, s7, 3\ns_add_u32 s6, s6, s7\nv_add_u32 v8, s6, v8')
    a(f'v_lshlrev_b32 v10, 7, v1\nv_mov_b32 v{AT}, 0xff800000')
    stamp(9)
    a(f's_mov_b64 exec, {(1 << NCH) - 1:#x}')
    vpoll([f'buffer_load_dwordx2 v[{AT}:{AT+1}], v10, s[16:19], s27 offen sc1'], [AT+1], None, sleep=cfg.slp, tags=True)
    a('s_mov_b64 exec, -1')
    if cfg.diag is not None and cfg.diag >= 90:
        op = 'min' if cfg.diag == 99 else 'max'
        a(f'v_mov_b32 v{AT+2}, ' + ('0' if cfg.dk else 's64') + f'\ns_mov_b64 exec, {(1 << NCH) - 1:#x}\nbuffer_load_dword v{AT+2}, v10, s[16:19], s27 offen offset:64 sc1\ns_waitcnt vmcnt(0)\ns_mov_b64 exec, -1')
        if not cfg.dk: a(f'v_subrev_u32 v{AT+2}, s64, v{AT+2}')
        if cfg.diag >= 98:
            for r in (1, 2, 4, 8): a(f'v_{op}_i32_dpp v{AT+2}, v{AT+2}, v{AT+2} row_ror:{r} row_mask:0xf bank_mask:0xf')
        a(f'v_readlane_b32 s92, v{AT+2}, {0 if cfg.diag >= 98 else cfg.diag - 90}\ns_add_u32 s92, s92, 250\ns_add_u32 s92, s92, s64')
    a(f'v_mov_b32 v{AT+1}, v{AT}')
    for r in (1, 2, 4, 8): a(f'v_max_f32_dpp v{AT+1}, v{AT+1}, v{AT+1} row_ror:{r} row_mask:0xf bank_mask:0xf')
    a(f'v_sub_f32 v{AT}, v{AT}, v{AT+1}\nv_exp_f32 v{AT}, v{AT}\nv_mov_b32 v{AT+1}, v{AT}')
    for r in (1, 2, 4, 8): a(f'v_add_f32_dpp v{AT+1}, v{AT+1}, v{AT+1} row_ror:{r} row_mask:0xf bank_mask:0xf')
    a(f'v_rcp_f32 v{AT+1}, v{AT+1}\nv_mul_f32 v{AT}, v{AT}, v{AT+1}')
    a('v_lshrrev_b32 v10, 5, v1\nv_mul_u32_u24 v10, 24, v10')
    for i in range(6):
        a(f'ds_bpermute_b32 v{AT+24+i}, v10, v{AT} offset:{4*i}')
    a('s_waitcnt lgkmcnt(0)')
    wl = [f'buffer_load_dword v{AT+c}, v2, s[16:19], s{60+(c>>2)} offen offset:{1024*(c&3)} sc1' for c in range(6)]
    if cfg.mp & 1: mpoll([(wl[c], [AT+c]) for c in range(6)], AT+12)
    else: vpoll(wl, [AT+c for c in range(6)], AT+12)
    stamp(10)
    acc = AT + 20
    for c in range(6):
        tq = AT + 8 + 2*c
        unpack(tq, tq+1, AT+c)
    for c in range(6):
        tq = AT + 8 + 2*c; wp = AT + 24 + (c & ~1)
        mod = 'op_sel_hi:[1,0,1]' if (c & 1) == 0 else 'op_sel:[0,1,0] op_sel_hi:[1,1,1]'
        mod2 = 'op_sel_hi:[1,0]' if (c & 1) == 0 else 'op_sel:[0,1] op_sel_hi:[1,1]'
        ac = acc + 2*(c & 1)
        if c < 2: a(f'v_pk_mul_f32 v[{ac}:{ac+1}], v[{tq}:{tq+1}], v[{wp}:{wp+1}] {mod2}')
        else: a(f'v_pk_fma_f32 v[{ac}:{ac+1}], v[{tq}:{tq+1}], v[{wp}:{wp+1}], v[{ac}:{ac+1}] {mod}')
    a(f'v_pk_add_f32 v[{acc}:{acc+1}], v[{acc}:{acc+1}], v[{acc+2}:{acc+3}]')
    a(f'v_permlane32_swap_b32 v{acc}, v{acc+1}')
    a(f'v_add_f32 v{acc}, v{acc}, v{acc+1}')
    a(f'v_mov_b32 v{acc+1}, v{acc}\nv_permlane32_swap_b32 v{acc}, v{acc+1}')
    a(f's_mov_b64 exec, 0xffffffff\nv_cvt_pk_bf16_f32 v{acc}, v{acc}, v{acc+1}\nds_write_b32 v31, v{acc}\ns_mov_b64 exec, -1')
    fst(7)
    a('s_waitcnt lgkmcnt(0)\ns_barrier')
    fst(8)
    sgemv([F0, F1], [DD, Z], 'v4', 'v22')
    a(f'v_add_f32_dpp v10, v{DD}, v{DD+2} quad_perm:[0,1,2,3] row_mask:0x1 bank_mask:0xf')
    a(f'v_add_f32_dpp v10, v{DD+1}, v{DD+3} quad_perm:[0,1,2,3] row_mask:0x2 bank_mask:0xf')
    a(f'v_add_f32_dpp v10, v{Z}, v{Z+2} quad_perm:[0,1,2,3] row_mask:0x4 bank_mask:0xf')
    a(f'v_add_f32_dpp v10, v{Z+1}, v{Z+3} quad_perm:[0,1,2,3] row_mask:0x8 bank_mask:0xf')
    a('s_cmp_lg_u32 s32, 0')
    a('v_mov_b32_dpp v11, v10 quad_perm:[1,1,3,3] row_mask:0xf bank_mask:0xf')
    a('s_mov_b32 exec_lo, 0x55555555\ns_mov_b32 exec_hi, 0x55555555')
    a('v_cvt_pk_bf16_f32 v11, v10, v11')
    store2('buffer_store_dword v11, v8, s[16:19], s29 offen')
    a('s_mov_b64 exec, -1')
    stamp(11)
    a('s_cmp_ge_u32 s3, 28\ns_cbranch_scc1 L_hdone')

    a('v_lshrrev_b32 v10, 4, v1\nv_bfe_u32 v11, v1, 2, 2\nv_lshl_add_u32 v10, v10, 3, v11\nv_lshlrev_b32 v10, 10, v10')
    a(f'v_and_b32 v11, 3, v1\nv_lshl_add_u32 v10, v11, 3, v10')
    a('v_bfe_u32 v11, v1, 2, 3\nv_lshlrev_b32 v11, 5, v11\ns_lshl_b32 s6, s4, 7\nv_xor_b32 v11, s6, v11')
    for cg in range(4):
        a(f'v_xor_b32 v12, {32*cg}, v11\nv_add_u32 v{60+cg}, v10, v12')
    for cg in range(4):
        for s in range(2):
            for hh in range(2):
                r = F1 + (cg*2 + s)*4 + 2*hh
                a(f'ds_read_b64_tr_b16 v[{r}:{r+1}], v{60+cg} offset:{32768*s + 4096*hh}')
    a(f's_lshl_b32 s60, s4, 8\ns_add_u32 s60, s60, {WOUT}\ns_add_u32 s61, s60, 4096')
    a('v_and_b32 v59, 15, v1\nv_lshlrev_b32 v59, 4, v59\nv_lshrrev_b32 v58, 4, v1\nv_lshl_add_u32 v59, v58, 13, v59')
    wloads = [f'buffer_load_dwordx4 v[{AT+4*k}:{AT+4*k+3}], v59, s[16:19], s{60+(k>>1)} offen offset:{2048*(k&1)} sc1' for k in range(4)]
    for x in wloads: a(x)
    a(f'v_bfe_u32 v10, v1, 3, 1\nv_lshlrev_b32 v40, 5, v10\nv_add_u32 v40, {STAT}, v40')
    a(f'ds_read_b128 v[68:71], v40 offset:{STAT3-STAT}\nds_read_b32 v30, v40 offset:{STAT3-STAT+16}')
    a('v_bfe_u32 v11, v1, 1, 1\nv_lshl_add_u32 v41, v10, 1, v11\nv_lshlrev_b32 v41, 6, v41\nv_and_b32 v12, 4, v1\nv_add_u32 v41, v41, v12')
    a(f'v_and_b32 v12, 1, v1\nv_lshl_add_u32 v41, v12, 1, v41\ns_lshl_b32 s6, s4, 3\ns_add_u32 s6, s6, {HID}\nv_add_u32 v41, s6, v41')
    a(f'v_lshl_add_u32 v42, v12, 1, v11\nv_lshlrev_b32 v42, 6, v42\nv_and_b32 v45, 48, v1\nv_add_u32 v42, v42, v45\nv_add_u32 v42, {HID}, v42')
    a(f'v_and_b32 v43, 7, v1\nv_mul_u32_u24 v43, 288, v43\nv_add_u32 v43, v43, v45\nv_add_u32 v43, {AS}, v43')
    a('v_bfe_u32 v46, v1, 2, 1\nv_lshl_add_u32 v46, v12, 2, v46\nv_mul_u32_u24 v46, 288, v46\nv_lshl_add_u32 v46, v11, 2, v46\nv_lshrrev_b32 v11, 3, v1\nv_lshl_add_u32 v46, v11, 3, v46')
    a(f's_lshr_b32 s6, s4, 2\ns_mul_i32 s6, s6, 576\ns_and_b32 s7, s4, 3\ns_lshl_b32 s7, s7, 6\ns_add_u32 s6, s6, s7\ns_add_u32 s6, s6, {AS}\nv_add_u32 v46, s6, v46')
    a('v_and_b32 v11, 4, v1\nv_cmp_eq_u32 vcc, 0, v11\nv_mov_b32 v11, 0xeeee\nv_mov_b32 v47, 0x4444\nv_cndmask_b32 v47, v11, v47, vcc')
    for r in range(4): a(f'v_mov_b32 v{DD+r}, 0')
    a('s_and_b32 s6, s3, 15\ns_lshl_b32 s6, s6, 5\ns_lshl_b32 s7, s4, 2\ns_add_u32 s6, s6, s7')
    a('v_and_b32 v11, 1, v1\nv_lshl_add_u32 v11, v11, 1, s6')
    a('v_lshrrev_b32 v12, 1, v1\nv_lshlrev_b32 v44, 12, v12\nv_lshl_add_u32 v44, v11, 3, v44')
    a('v_bfe_u32 v12, v1, 4, 1\nv_add_u32 v11, v11, v12')
    a(f'v_lshlrev_b32 v48, 11, v10\nv_lshl_add_u32 v48, v11, 2, v48\nv_add_u32 v48, {X1}, v48')
    a('v_lshlrev_b32 v49, 10, v10\nv_lshl_add_u32 v49, v11, 1, v49')
    a(f's_add_u32 s20, s14, {MOUT}\ns_addc_u32 s21, s15, 0\ns_mov_b32 s22, {28*4096}\ns_mov_b32 s23, 0x20000')
    a(f's_lshl_b32 s24, s3, 12')
    a(f's_mov_b32 s40, {f2u(1/512)}\ns_mov_b32 s41, {f2u(1e-5)}\ns_mov_b32 s42, {f2u(0.044715)}\ns_mov_b32 s43, {f2u(-2*math.sqrt(2/math.pi)*LOG2E)}')
    a('v_and_b32 v50, 1, v1\nv_lshlrev_b32 v50, 4, v50\nv_mov_b32 v51, 0x3f80\nv_lshlrev_b32 v50, v50, v51\nv_bfe_u32 v51, v1, 2, 2')
    for i in range(4): a(f'v_cmp_eq_u32 vcc, {i}, v51\nv_cndmask_b32 v{64+i}, 0, v50, vcc')
    a('s_waitcnt lgkmcnt(0)')
    a(f's_mov_b32 s45, {f2u(2/512)}\nv_mov_b32 v50, s41')
    a('v_mul_f32 v68, s40, v68\nv_mul_f32 v69, s40, v69\nv_mul_f32 v70, s45, v70\nv_mul_f32 v71, s40, v71\nv_fma_f32 v30, v30, s40, v50')
    a(f'v_lshrrev_b32 v50, 3, v1\nv_mov_b32 v51, s40\nv_cmp_eq_u32 vcc, 5, v50\nv_mov_b32 v58, s45\nv_cndmask_b32 v51, v51, v58, vcc\nv_cmp_eq_u32 vcc, 4, v50\nv_cndmask_b32 v51, v51, -v58, vcc')
    a('v_mov_b32 v29, v9\nv_mov_b32 v31, v13')
    Q = (0, 60, 6, 10)
    for q_ in Q:
        for r in range(4): a(f'v_mov_b32 v{q_+r}, 0')
    if cfg.mp & 2: mpoll([(wloads[k], range(AT+4*k, AT+4*k+4)) for k in range(4)], AT+20, first_issued=True)
    else: vpoll(wloads, [AT+k for k in range(16)], AT+20, first_issued=True)
    stamp(12)
    V = AT + 16
    for k in range(4):
        c0 = '0' if k == 0 else f'v[{V}:{V+3}]'
        a(f'v_mfma_f32_16x16x32_bf16 v[{V}:{V+3}], v[64:67], v[{AT+4*k}:{AT+4*k+3}], {c0}')
    s0, s1 = V, V+1
    x0, x1, a0, a1 = AT+12, AT+13, AT+14, AT+15
    a(f'v_fma_f32 v{x0}, v16, v{s0}, v14\nv_fma_f32 v{x1}, v17, v{s1}, v15')
    a(f'v_mul_f32 v{a0}, v{x0}, v18\nv_mul_f32 v{a1}, v{x1}, v19')
    a(f'v_cvt_pk_bf16_f32 v{AT}, v{a0}, v{a1}\nds_write_b32 v46, v{AT}\nds_write_b64 v29, v[{x0}:{x1}]')
    fst(1)
    t = AT + 20
    a(f'v_add_f32 v{t}, v{x0}, v{x1}\nv_mul_f32 v{t+1}, v{x0}, v{x0}\nv_add_f32 v{t+2}, v{a0}, v{a1}\nv_mul_f32 v{t+3}, v{a0}, v{a0}')
    a(f'v_mul_f32 v{t+4}, v{a0}, v18\nv_mul_f32 v{t+5}, v{a0}, v20')
    a(f'v_fmac_f32 v{t+1}, v{x1}, v{x1}\nv_fmac_f32 v{t+3}, v{a1}, v{a1}\nv_fmac_f32 v{t+4}, v{a1}, v19\nv_fmac_f32 v{t+5}, v{a1}, v21')
    red6([t, t+1, t+2, t+3, t+4, t+5], 0, (t+6, t+7, t+8, t+9), 'v51', 'v31')
    fst(2)
    a('s_waitcnt lgkmcnt(0)')
    fst(9)
    a('s_barrier')
    fst(3)
    if not cfg.sord: a('ds_read_b128 v[52:55], v40\nds_read_b64 v[56:57], v40 offset:16')
    fill = [
        'v_fma_f32 v53, -v52, v52, v53',
        'v_fma_f32 v56, v52, v69, v56',
        'v_max_f32 v53, s41, v53',
        'v_fma_f32 v54, -v52, v68, v54',
        'v_rsq_f32 v53, v53',
        'v_fma_f32 v55, v52, v56, v55',
        'v_fma_f32 v57, -v52, v70, v57',
        'v_fma_f32 v55, v53, v55, v57',
        'v_fma_f32 v54, v53, v54, v71',
        'v_mul_f32 v52, v52, v53',
        'v_fma_f32 v55, v53, v55, v30',
        'v_fma_f32 v56, -v52, v26, v27',
        'v_fma_f32 v55, -v54, v54, v55',
        'v_fma_f32 v56, -v54, v28, v56',
        'v_max_f32 v55, s41, v55',
        'v_rsq_f32 v55, v55',
    ]
    sgemv([F2], [DD], 'v43', 'v47', fill=fill, lead=cfg.lead); fold()
    a(f'v_mov_b32 v{T}, v{Z}\nv_permlane16_swap_b32 v{Z}, v{T}\nv_add_f32 v{Z}, v{Z}, v{T}')
    fst(4)
    if cfg.mtag: a('v_mov_b32 v15, s33')
    ge = [f'v_fma_f32 v{Z}, v{Z}, v53, v56', f'v_fma_f32 v{Z}, v{Z}, v55, v25', f'v_mul_f32 v{T}, v{Z}, v{Z}', f'v_mul_f32 v{T+1}, s43, v{Z}',
          f'v_fma_f32 v{T}, v{T}, s42, 1.0', f'v_mul_f32 v{T}, v{T}, v{T+1}', f'v_exp_f32 v{T}, v{T}', f'v_add_f32 v{T}, 1.0, v{T}',
          f'v_rcp_f32 v{T}, v{T}', f'v_mul_f32 v{T}, v{T}, v{Z}', f'v_cvt_pk_bf16_f32 v{T}, v{T}, v{T}']
    for x in ge: a(x)
    a(f's_mov_b64 exec, 0xffff\nds_write_b16 v41, v{T}\ns_mov_b64 exec, -1')
    fst(5)
    a('s_waitcnt lgkmcnt(0)\ns_barrier')
    fst(6)
    a(f'ds_read_b128 v[{AT}:{AT+3}], v42')
    a(f'ds_read_b32 v52, v48')
    a(f's_waitcnt lgkmcnt(1)')
    for cg in range(4):
        ac = Q[cg]; fr = F1 + cg*8
        a(f'v_smfmac_f32_16x16x64_bf16 v[{ac}:{ac+3}], v[{AT}:{AT+3}], v[{fr}:{fr+7}], v22')
    y = AT + 8
    a('s_cmp_lg_u32 s32, 0')
    for cg in range(4):
        ac = Q[cg]
        for r in range(2): a(f'v_add_f32_dpp v{y+r}, v{ac+r}, v{ac+2+r} quad_perm:[0,1,2,3] row_mask:{1 << cg:#x} bank_mask:0xf')
    if cfg.mtag:
        a(f'v_cvt_pk_bf16_f32 v14, v{y}, v{y+1}')
        store2(f'buffer_store_dwordx2 v[14:15], v5, s[20:23], s24 offen')
    else: store2(f'buffer_store_dwordx2 v[{y}:{y+1}], v5, s[20:23], s24 offen')
    stamp(13)
    a('s_cmp_ge_u32 s3, 16\ns_cbranch_scc1 L_hdone')
    fl = [f'buffer_load_dwordx4 v[{AT}:{AT+3}], v44, s[20:23], 0 offen sc1']
    if cfg.mtag: a(f'v_mov_b32 v{AT}, 0\nv_mov_b32 v{AT+2}, 0\ns_mov_b32 exec_hi, 0xffffff')
    a(fl[0])
    srd(24, 's46', 's47', 2048)
    a('s_waitcnt lgkmcnt(0)\nv_fma_f32 v52, v23, v24, v52')
    if cfg.mtag:
        vpoll(fl, [AT+1, AT+3], AT+8, first_issued=True, tags=True)
        a('s_mov_b32 exec_hi, -1')
        a(f'v_and_b32 v{AT+1}, 0xffff0000, v{AT}\nv_and_b32 v{AT+3}, 0xffff0000, v{AT+2}\nv_lshlrev_b32 v{AT}, 16, v{AT}\nv_lshlrev_b32 v{AT+2}, 16, v{AT+2}')
    elif cfg.mp & 4: mpoll([(fl[0], range(AT, AT+4))], AT+8, first_issued=True)
    else: vpoll(fl, [AT+k for k in range(4)], AT+8, first_issued=True)
    if cfg.diag is None or cfg.diag < 90: stamp(14)
    a(f'v_add_f32_dpp v{Z}, v{AT}, v{AT} row_ror:8 row_mask:0xf bank_mask:0x3')
    a(f'v_add_f32_dpp v{T}, v{AT+2}, v{AT+2} row_ror:8 row_mask:0xf bank_mask:0x3')
    a(f'v_add_f32_dpp v{Z}, v{AT+1}, v{AT+1} row_ror:8 row_mask:0xf bank_mask:0xc')
    a(f'v_add_f32_dpp v{T}, v{AT+3}, v{AT+3} row_ror:8 row_mask:0xf bank_mask:0xc')
    a(f'v_permlane16_swap_b32 v{Z}, v{T}\nv_add_f32 v{Z}, v{Z}, v{T}')
    a(f'v_mov_b32 v{T}, v{Z}\nv_permlane32_swap_b32 v{Z}, v{T}\nv_add_f32 v{Z}, v{Z}, v{T}')
    a(f'v_add_f32_dpp v{Z}, v{Z}, v{Z} quad_perm:[2,3,0,1] row_mask:0xf bank_mask:0xf')
    a(f'v_add_f32_dpp v{Z}, v{Z}, v{Z} row_shl:4 row_mask:0xf bank_mask:0x5')
    a(f'v_fma_f32 v{Z}, v23, v{Z}, v52')
    if cfg.diag is not None:
        a('s_or_b32 s6, s3, s4\ns_cmp_lg_u32 s6, 0\ns_cbranch_scc1 L_ndiag')
        a('s_memrealtime s[94:95]\ns_waitcnt lgkmcnt(0)\ns_sub_u32 s6, s94, s64')
        a(f's_cmp_lt_u32 s6, {cfg.T0}\ns_cbranch_scc1 L_ndiag\ns_cmp_eq_u32 s96, s97\ns_cbranch_scc1 L_ndiag\ns_cmp_eq_u32 s32, {cfg.gate}\ns_cbranch_scc1 L_ndiag')
        a('s_cmp_eq_u32 s98, s99\ns_cbranch_scc1 L_ndiag')
        a(f's_sub_u32 s6, s{64+2*cfg.diag if cfg.diag < 90 else 92}, s{64+2*cfg.dsub}\ns_add_u32 s6, s6, {100 if cfg.dsub else 0}\nv_cvt_f32_u32 v10, s6\ns_mov_b64 exec, 1\nv_add_f32 v{Z}, v{Z}, v10\ns_mov_b64 exec, -1')
        a('L_ndiag:')
    if cfg.enc:
        a('s_or_b32 s6, s3, s4\ns_cmp_lg_u32 s6, 0\ns_cbranch_scc1 L_nenc')
        a(f's_memrealtime s[94:95]\ns_waitcnt lgkmcnt(0)\ns_sub_u32 s6, s94, s64\ns_sub_u32 s7, s{64+2*cfg.enc}, s64')
        a('v_mov_b32 v10, s6\nv_mov_b32 v11, s7\nv_and_b32 v12, 8, v1\nv_cmp_eq_u32 vcc, 0, v12\nv_cndmask_b32 v10, v11, v10, vcc')
        a('v_and_b32 v11, 1, v1\nv_lshlrev_b32 v11, 1, v11\nv_bfe_u32 v12, v1, 4, 1\nv_add_u32 v11, v11, v12\nv_mul_u32_u24 v11, 3, v11')
        a(f'v_lshrrev_b32 v10, v11, v10\nv_and_b32 v10, 7, v10\nv_cvt_f32_u32 v10, v10\nv_add_f32 v{Z}, v{Z}, v10')
        a('L_nenc:')
    a(f's_mov_b64 exec, 0x03030303')
    a(f'v_cvt_pk_bf16_f32 v{T}, v{Z}, v{Z}')
    a(f'buffer_store_short v{T}, v49, s[24:27], 0 offen {cfg.fst}')
    a('s_or_b32 s6, s3, s4\ns_cmp_lg_u32 s6, 0\ns_cbranch_scc1 L_noep')
    a(f's_mov_b64 exec, 1\nv_mov_b32 v10, {EPO}\nv_mov_b32 v11, s33\nbuffer_store_dword v11, v10, s[16:19], 0 offen')
    a('L_noep:')
    a('s_mov_b64 exec, -1')
    stamp(15)
    a('L_hdone:')
    if cfg.stamps:
        a(f's_cmp_lg_u32 s4, {cfg.sw}\ns_cbranch_scc1 L_end')
        stamps_out(16, 0)
        a('s_cmp_lg_u32 s2, 0\ns_cbranch_scc1 L_end')
        for n, i in enumerate((1, 4, 7, 8, 9, 10, 11, 12, 13, 14, 15)):
            a(f's_sub_u32 s60, s{64+2*i}, s64\nv_mov_b32 v4, s60\nglobal_store_dword v2, v4, s[12:13] offset:{16+4*n}')
        a('v_mov_b32 v4, s32\nglobal_store_dword v2, v4, s[12:13]')
        a('s_waitcnt vmcnt(0)')
    a('L_end:')
    a('s_endpgm')
    return wrap(a.finalize(), 256, 768, LDS_TOTAL, 168, sgpr=102)

if __name__ == '__main__':
    out = sys.argv[1]
    for o in sys.argv[2:]:
        k, v = o.split('=')
        setattr(cfg, k, eval(v))
    open(out, 'w').write(gen())
```

```python
import sys, math, struct
from asmlib import *
from gen_common import *

class Cfg:
    stamps = False
    NT = 'nt'
    warm = True
    prio = True
    slp = 2
    qslp = 4
    thS = 63
    thV = 63
    pre = 3
    touch = True
    diag = None
    fine = False
    sw = 0
    mp = 2
    enc = 0
    lay = 1
    lead = 2
    qlate = 1
    p1c = False
    qobs = False
    rot = 0
    RK = 86
    xp = 0
    mh = True
    pw = 0
    sord = True
    pf = 0
    hfirst = False
    dk = 0
    dk0 = 0
    dsub = 0
    mtag = False
    owarm = 0
    fst = ''
    pe = True
    mlate = 0
    slpB = 2
    slpM = 2
    tx = 0
    tlbw = 0
    lst = ''
    ost = 'sc1'
    il = False
    bias = (0, 0, 0, 0, 0, 0, 0)
    dirty = 0
    nth = 10
    T0 = 1900
    gate = 0
    apre = 0
    fast = True
cfg = Cfg()

MODA=0; MODB=0x8000; QO=0x10000; XID=0x18000; EPO=0x1A800; WOUT=0x1C000; MOUT=0x24000; OP=0x40000; STMP=0x80000; LSE=0x90000; WS_SZ=0x100000
NCH = 12
KW=36864; PREG=147456; ZERO=153600; ST=154176; QL=154368; QF=155392; SCR=0; LDS_TOTAL=155648
R0=0; R1=65536; ACT=131072; ACTC=133376; ACTM=135680; TS=2336; HID=145024; STAT=145408; STAT2=145472; STAT3=145536; X1=145664; AS=149760
LIMIT = 200000
LOG2E = 1.4426950408889634
def f2u(x): return '0x%08x' % struct.unpack('<I', struct.pack('<f', x))[0]

def gtab():
    d = list(cfg.bias); assert sum(d) == 0
    g = [0]
    for k in range(6): g.append(g[-1] + d[(2*k) % 7])
    return g
def chunk_start(p, c):
    g = gtab(); pos = (4*(p + 4)) % 7
    tot = g[(pos + 12) % 7] - g[pos]
    return ((c*(8192 - tot)*21846) >> 18) + g[(pos + c) % 7] - g[pos]

def gen():
    a = Asm()
    uid = [0]
    def lab(p):
        uid[0] += 1; return f'L_{p}_{uid[0]}'
    def stamp(i):
        if cfg.stamps: a(f's_memrealtime s[{64+2*i}:{65+2*i}]')
    def fst(i):
        if cfg.fine: stamp(i)
    def stamps_out(n, base_slot):
        if not cfg.stamps: return
        a('s_waitcnt lgkmcnt(0)')
        a('s_mov_b64 exec, 1')
        a(f's_lshl_b32 s60, s2, 7\ns_add_u32 s60, s60, {STMP + base_slot*8}')
        a('v_mov_b32 v2, 0')
        for i in range(n):
            a(f'v_mov_b32 v4, s{64+2*i}\nv_mov_b32 v5, s{65+2*i}')
            a(f'buffer_store_dwordx2 v[4:5], v2, s[16:19], s60 offen offset:{8*i}')
        a('s_waitcnt vmcnt(0)')
    def srd(d, lo, hi, size):
        a(f's_mov_b32 s{d}, {lo}\ns_mov_b32 s{d+1}, {hi}\ns_mov_b32 s{d+2}, {size}\ns_mov_b32 s{d+3}, 0x20000')
    def epoch_load():
        a(f's_load_dword s33, s[14:15], {EPO}')
    def epoch_tag():
        a('s_mul_i32 s33, s33, 0x9E3779B1\ns_add_u32 s33, s33, 0x85EBCA6B')
    def red3(op, regs, tmp):
        rs = list(regs)
        if len(rs) == 1: return rs[0]
        first = True
        while rs:
            if first:
                if len(rs) >= 3: a(f'v_{op}3_u32 v{tmp}, v{rs[0]}, v{rs[1]}, v{rs[2]}'); rs = rs[3:]
                else: a(f'v_{op}_u32 v{tmp}, v{rs[0]}, v{rs[1]}'); rs = rs[2:]
                first = False
            elif len(rs) >= 2: a(f'v_{op}3_u32 v{tmp}, v{tmp}, v{rs[0]}, v{rs[1]}'); rs = rs[2:]
            else: a(f'v_{op}_u32 v{tmp}, v{tmp}, v{rs[0]}'); rs = rs[1:]
        return tmp
    def vpoll(loads, regs, tmp, sleep=0, first_issued=False, tags=False, dbg=None, first_cnt=0):
        l = lab('vp'); d = lab('vd'); w = lab('vw')
        a('s_mov_b32 s30, 0')
        if first_issued: a(f's_waitcnt vmcnt({first_cnt})\ns_branch {w}')
        a(f'{l}:')
        for x in loads: a(x)
        a('s_add_u32 s30, s30, 1')
        a('s_waitcnt vmcnt(0)')
        if first_issued: a(f'{w}:')
        if dbg is not None and cfg.stamps:
            p, q_, n_ = dbg
            a(f's_mov_b64 s[{64+2*p}:{65+2*p}], s[{64+2*q_}:{65+2*q_}]')
            stamp(q_); a('s_waitcnt lgkmcnt(0)')
            a(f's_add_u32 s{64+2*n_}, s64, s30\ns_mov_b32 s{65+2*n_}, s65')
        if tags:
            m = red3('max', regs, tmp)
            if len(list(regs)) > 1:
                n = red3('min', regs, tmp + 1)
                a(f'v_cmp_ne_u32 vcc, s33, v{m}\nv_cmp_ne_u32 s[34:35], s33, v{n}\ns_or_b64 vcc, vcc, s[34:35]')
            else:
                a(f'v_cmp_ne_u32 vcc, s33, v{m}')
        else:
            m = red3('max', regs, tmp)
            a(f'v_cmp_eq_u32 vcc, -1, v{m}')
        a(f's_cbranch_vccz {d}')
        if sleep: a(f's_sleep {sleep}')
        a(f's_cmp_lt_u32 s30, {LIMIT}\ns_cbranch_scc1 {l}')
        a(f'{d}:')
    def mpoll(items, tmp, first_issued=False):
        l = lab('mp'); d = lab('md')
        a('s_mov_b32 s30, 0')
        if not first_issued:
            for ld, regs in items: a(ld)
        a(f'{l}:')
        a('s_waitcnt vmcnt(0)')
        ms = []
        for k, (ld, regs) in enumerate(items):
            ms.append(red3('max', regs, tmp + k))
        for k, m in enumerate(ms):
            a(f'v_cmp_eq_u32 s[{48+2*k}:{49+2*k}], -1, v{m}')
        n = len(items)
        if n == 1:
            a('s_cmp_eq_u64 s[48:49], 0\ns_cbranch_scc1 ' + d)
        else:
            a('s_or_b64 s[34:35], s[48:49], s[50:51]')
            for k in range(2, n): a(f's_or_b64 s[34:35], s[34:35], s[{48+2*k}:{49+2*k}]')
            a(f's_cbranch_scc0 {d}')
        for k, (ld, regs) in enumerate(items):
            a(f's_mov_b64 exec, s[{48+2*k}:{49+2*k}]')
            a(ld)
        a('s_mov_b64 exec, -1')
        a(f's_add_u32 s30, s30, 1\ns_cmp_lt_u32 s30, {LIMIT}\ns_cbranch_scc1 {l}')
        a('s_waitcnt vmcnt(0)')
        a(f'{d}:')
    def pspin(va, vd):
        l = lab('ps'); d = lab('pd')
        a(f'v_mov_b32 {va}, {QF}\ns_mov_b32 s30, 0')
        a(f'{l}:')
        a(f'ds_read_b32 {vd}, {va} offset:4\ns_add_u32 s30, s30, 1\ns_waitcnt lgkmcnt(0)')
        a(f'v_cmp_ne_u32 vcc, 4, {vd}\ns_cbranch_vccz {d}')
        a(f's_sleep 1\ns_cmp_lt_u32 s30, {LIMIT*8}\ns_cbranch_scc1 {l}')
        a(f'{d}:')
    def dma_u1(lo, hi, size, RS, sbase, region, setup=True, i0=0, i1=8):
        if setup:
            a('v_bfe_u32 v10, v1, 4, 1\nv_and_b32 v12, 7, v1\nv_xor_b32 v10, v10, v12')
            a('s_and_b32 s27, s4, 4\nv_xor_b32 v10, s27, v10')
            a(f'v_lshrrev_b32 v2, 3, v1\nv_mul_u32_u24 v2, {RS}, v2\nv_xor_b32 v12, 2, v10')
            a('v_lshl_add_u32 v12, v12, 4, v2\nv_lshl_add_u32 v2, v10, 4, v2')
        srd(20, lo, hi, size)
        if cfg.xp & 4:
            a(f'v_lshlrev_b32 v2, 4, v1\nv_mov_b32 v12, v2\ns_lshl_b32 s27, s3, 16\ns_lshl_b32 s28, s4, 13\ns_add_u32 s27, s27, s28\ns_add_u32 s27, s27, {(region and RS == 8192) * 2097152}')
            RS = 128
        else: a(f's_mul_i32 s27, s4, {64*RS}\ns_add_u32 s27, s27, {sbase}')
        if i0: a(f's_add_u32 s27, s27, {8*RS*i0}')
        a(f's_lshl_b32 s28, s4, 13')
        if region + i0: a(f's_add_u32 s28, s28, {region + 1024*i0}')
        for i in range(i0, i1):
            a('s_mov_b32 m0, s28')
            if i < i1-1: a('s_add_u32 s28, s28, 1024')
            a(f'buffer_load_dwordx4 v{12 if i & 1 else 2}, s[20:23], s27 offen {cfg.NT} lds')
            if i < i1-1: a(f's_add_u32 s27, s27, {8*RS}')

    def dma_w(i0, i1, setup=True):
        if setup:
            a('s_and_b32 s6, s4, 1\ns_lshl_b32 s6, s6, 6\ns_and_b32 s7, s4, 4\ns_lshl_b32 s7, s7, 5\ns_or_b32 s6, s6, s7')
            a('v_lshlrev_b32 v2, 4, v1\nv_and_b32 v2, 0x1f0, v2\nv_and_b32 v10, 32, v1\nv_xor_b32 v2, v2, v10\nv_xor_b32 v2, s6, v2\nv_lshl_add_u32 v2, v10, 5, v2')
        srd(20, 's50', 's51', 4096*1024)
        if cfg.xp & 4: a(f'v_lshlrev_b32 v2, 4, v1\ns_lshl_b32 s27, s3, 17\ns_lshl_b32 s28, s4, 10\ns_add_u32 s27, s27, s28\ns_add_u32 s27, s27, {8192*i0}')
        else: a(f's_lshl_b32 s27, s4, 11\ns_add_u32 s27, s27, s24\ns_add_u32 s27, s27, {16384*i0}')
        a(f's_lshl_b32 s28, s4, 10\ns_add_u32 s28, s28, {8192*i0}')
        for i in range(i0, i1):
            a('s_mov_b32 m0, s28')
            if i < i1-1: a('s_add_u32 s28, s28, 8192')
            a(f'buffer_load_dwordx4 v2, s[20:23], s27 offen {cfg.NT} lds')
            if i < i1-1: a(f's_add_u32 s27, s27, {8192 if cfg.xp & 4 else 16384}')
    def hearly():
        a('L_hearly:')
        a('s_cmp_ge_u32 s2, 256\ns_cbranch_scc1 L_end')
        a('s_sub_u32 s6, s6, 1\ns_cmp_eq_u32 s5, 0\ns_cselect_b32 s3, s3, s6')
        a('s_cmp_lt_u32 s4, 8\ns_cbranch_scc1 L_hm')
        if cfg.warm:
            a('s_lshr_b32 s6, s2, 4\ns_xor_b32 s7, s4, 11\ns_or_b32 s6, s6, s7\ns_cbranch_scc1 L_spare')
            a('s_getpc_b64 s[36:37]\nL_pc:\ns_sub_u32 s36, s36, L_pc-L_stream\ns_subb_u32 s37, s37, 0\nv_lshlrev_b32 v2, 7, v1')
            a('s_mov_b32 s38, L_end-L_stream\ns_mov_b32 s39, 0x20000\ns_mov_b32 s6, 8192')
            a('buffer_load_dword v4, v2, s[36:39], 0 offen\nbuffer_load_dword v5, v2, s[36:39], s6 offen')
            a('s_endpgm')
        else: a('s_branch L_spare')
        a('L_hm:')
        if cfg.xp & 16:
            a('s_cmp_eq_u32 s5, 0\ns_cselect_b32 s6, 34, 24\ns_mov_b32 s7, 0x8000000\ns_cselect_b32 s7, 0x9000000, s7\ns_mul_i32 s27, s3, 288*1024\ns_add_u32 s27, s27, s7\ns_lshl_b32 s7, s4, 10\ns_add_u32 s27, s27, s7')
            a('v_lshlrev_b32 v2, 4, v1\ns_waitcnt lgkmcnt(0)')
            srd(20, 's14', 's15', 0x10000000)
            a('L_xl:\nbuffer_load_dwordx4 v[4:7], v2, s[20:23], s27 offen nt\ns_add_u32 s27, s27, 8192\ns_sub_u32 s6, s6, 1\ns_cmp_lg_u32 s6, 0\ns_cbranch_scc1 L_xl')
            a('s_endpgm')
        a('s_cmp_eq_u32 s5, 0')
        a('s_cselect_b32 s6, 88, 24')
        a('s_load_dwordx2 s[20:21], s[0:1], s6')
        a('s_mov_b32 s7, 8192\ns_cselect_b32 s7, 6144, s7')
        a('s_cselect_b32 s29, 2, 4')
        a('s_cselect_b32 s24, 5, 6')
        a('s_lshl_b32 s22, s7, 9')
        a('s_lshl_b32 s25, s3, 8')
        a('s_lshr_b32 s26, s3, 1\ns_lshl_b32 s26, s26, 7\ns_and_b32 s27, s3, 1\ns_mul_i32 s27, s27, 256*6144\ns_add_u32 s26, s26, s27')
        a('s_cmp_eq_u32 s5, 0\ns_cselect_b32 s25, s26, s25')
        a('v_bfe_u32 v10, v1, 4, 1\nv_and_b32 v12, 7, v1\nv_xor_b32 v10, v10, v12')
        a('s_and_b32 s27, s4, 4\nv_xor_b32 v10, s27, v10')
        a('v_lshrrev_b32 v2, 3, v1\nv_mul_u32_u24 v2, s7, v2\nv_xor_b32 v12, 2, v10')
        a('v_lshl_add_u32 v12, v12, 4, v2\nv_lshl_add_u32 v2, v10, 4, v2')
        a('s_mov_b32 s23, 0x20000')
        a('s_lshl_b32 s6, s4, s24\ns_mul_i32 s27, s6, s7\ns_add_u32 s27, s27, s25')
        a('s_lshl_b32 s28, s6, 7\ns_lshl_b32 s7, s7, 3')
        if cfg.xp & 4: a('v_lshlrev_b32 v2, 4, v1\nv_mov_b32 v12, v2\ns_lshl_b32 s27, s3, 16\ns_add_u32 s27, s27, s28\ns_mov_b32 s7, 1024')
        a('s_waitcnt lgkmcnt(0)')
        a('L_hdma:')
        a('s_mov_b32 m0, s28\ns_add_u32 s28, s28, 1024')
        a(f'buffer_load_dwordx4 v2, s[20:23], s27 offen {cfg.NT} lds')
        a('s_add_u32 s27, s27, s7\ns_mov_b32 m0, s28\ns_add_u32 s28, s28, 1024')
        a(f'buffer_load_dwordx4 v12, s[20:23], s27 offen {cfg.NT} lds')
        a('s_add_u32 s27, s27, s7\ns_sub_u32 s29, s29, 1\ns_cmp_lg_u32 s29, 0\ns_cbranch_scc1 L_hdma')
        if cfg.hfirst: a('s_branch L_helper')
    stamp(0)
    a('s_load_dwordx4 s[8:11], s[0:1], 8')
    a('v_lshrrev_b32 v1, 6, v0')
    a('s_lshr_b32 s3, s2, 3\ns_and_b32 s5, s2, 7')
    a('v_readfirstlane_b32 s4, v1')
    a('s_load_dwordx4 s[12:15], s[0:1], 104')
    a('s_mul_i32 s6, s3, 7\ns_add_u32 s6, s6, s5\ns_cmp_eq_u32 s5, 0\ns_cselect_b32 s6, 0, s6')
    a('v_and_b32 v1, 63, v0')
    a('s_sub_u32 s7, s6, 33\ns_cbranch_scc1 L_hearly')
    a('L_stream:')
    a('s_lshr_b32 s25, s7, 4\ns_and_b32 s24, s7, 15')
    a('s_cmp_ge_u32 s25, 12\ns_cbranch_scc1 L_end')
    assert not any(cfg.bias)
    a(f's_mul_i32 s6, s25, {8192*21846}\ns_lshr_b32 s7, s6, 18\ns_add_u32 s6, s6, {8192*21846}\ns_lshr_b32 s6, s6, 18\ns_sub_u32 s31, s6, s7')
    a('s_lshl_b32 s6, s24, 13\ns_add_u32 s6, s6, s7\ns_lshl_b32 s6, s6, 8')
    a('s_mov_b32 s23, 0x20000')
    a('s_cmp_ge_u32 s4, 4\ns_cbranch_scc1 L_vwave')
    a('v_lshrrev_b32 v7, 4, v1')
    a('v_and_b32 v15, 15, v1')
    a('v_lshlrev_b32 v6, 2, v7\nv_xor_b32 v6, v6, v15')
    a('v_lshlrev_b32 v8, 8, v7')
    a('v_lshl_add_u32 v2, v6, 4, v8')
    a(f's_mul_i32 s27, s4, {512*cfg.RK}\ns_mul_i32 s28, s4, {KW}\ns_add_u32 s22, s27, {256*cfg.RK}')
    nk = [chunk_start(p, c+1) - chunk_start(p, c) for p in range(16) for c in range(12)]
    assert 80 <= cfg.RK <= 96 and min(nk) - 7*cfg.RK >= 80 and max(nk) - 7*cfg.RK <= cfg.RK
    a('s_mov_b32 m0, s28')
    a('s_waitcnt lgkmcnt(0)')
    a('s_add_u32 s20, s8, s6\ns_addc_u32 s21, s9, 0')
    a(f'buffer_load_dwordx4 v2, s[20:23], s27 offen {cfg.NT} lds')
    stamp(5)
    if cfg.prio: a('s_setprio 3')
    for t in (1, 2, 3):
        a(f'v_xor_b32 v{2+t}, {16*t}, v2')
        a(f'buffer_load_dwordx4 v{2+t}, s[20:23], s27 offen offset:{1024*t} {cfg.NT} lds')
    a(f's_lshl_b32 s26, s24, 14\ns_lshl_b32 s7, s25, 10\ns_add_u32 s26, s26, s7\ns_lshl_b32 s7, s4, 8\ns_add_u32 s26, s26, s7\ns_add_u32 s26, s26, {OP}')
    a('v_mov_b32 v156, -1\nv_lshl_add_u32 v157, v1, 2, s26')
    a('global_store_dword v157, v156, s[14:15] sc1')
    if cfg.pw & 4:
        a(f's_lshl_b32 s6, s24, 11\ns_lshl_b32 s7, s25, 7\ns_add_u32 s6, s6, s7\ns_add_u32 s6, s6, {LSE}\nv_lshl_add_u32 v157, v1, 2, s6')
        a('s_cmp_eq_u32 s4, 0\ns_cselect_b32 exec_lo, -1, 0\ns_mov_b32 exec_hi, 0\ns_cbranch_execz L_npw')
        a('global_store_dword v157, v156, s[14:15] sc1')
        a('L_npw:')
        a('s_mov_b64 exec, -1')
    a(f's_mov_b32 s44, s22\ns_add_u32 s45, s44, {256*cfg.RK}\ns_lshl_b32 s7, s31, 8\ns_min_u32 s45, s45, s7')
    a('s_add_u32 s28, s28, 4096\ns_add_u32 s27, s27, 4096\ns_mov_b32 s29, 1')
    a('L_kdma:')
    a('s_mov_b32 m0, s28')
    a('s_add_u32 s28, s28, 4096\ns_add_u32 s29, s29, 1')
    for t in range(4):
        a(f'buffer_load_dwordx4 v{2+t}, s[20:23], s27 offen offset:{1024*t} {cfg.NT} lds')
        if cfg.thS < 63: a(f's_waitcnt vmcnt({cfg.thS})')
    a('s_add_u32 s27, s27, 4096')
    a('s_cmp_eq_u32 s29, 6\ns_cselect_b32 s27, s44, s27\ns_cselect_b32 s22, s45, s22')
    a('s_cmp_lt_u32 s29, 9\ns_cbranch_scc1 L_kdma')
    epoch_load()
    a('v_and_b32 v6, 3, v15\nv_lshlrev_b32 v6, 2, v6\nv_lshrrev_b32 v9, 2, v15\nv_add_u32 v6, v6, v9')
    a('v_lshlrev_b32 v10, 8, v6')
    a('v_lshl_add_u32 v6, v7, 4, v10')
    if cfg.p1c: a('v_lshlrev_b32 v6, 4, v1')
    for gi in range(3):
        for s in range(4):
            r = 96 + 16*gi + 4*s
            a(f'buffer_load_dwordx4 v[{r}:{r+3}], v6, s[20:23], s27 offen offset:{(1024 if cfg.p1c else 64)*s} {cfg.NT}')
            if cfg.thS < 63 and 4*gi + s < 11: a(f's_waitcnt vmcnt({cfg.thS})')
        if gi < 2: a('s_add_u32 s27, s27, 4096')
    if not cfg.pe:
        srd(16, 's14', 's15', WS_SZ)
        a(f's_lshl_b32 s26, s24, 14\ns_lshl_b32 s6, s25, 10\ns_add_u32 s26, s26, s6\ns_lshl_b32 s6, s4, 8\ns_add_u32 s26, s26, s6\ns_add_u32 s26, s26, {OP}')
        a('v_mov_b32 v156, -1\nv_lshlrev_b32 v157, 2, v1')
        if not cfg.xp & 32: a('buffer_store_dword v156, v157, s[16:19], s26 offen sc1')
    else: srd(16, 's14', 's15', WS_SZ)
    a(f's_and_b32 s7, s24, 7\ns_lshl_b32 s6, s7, 12\ns_lshr_b32 s7, s24, 3\ns_lshl_b32 s7, s7, 11\ns_add_u32 s27, s6, s7\ns_add_u32 s27, s27, {QO}')
    a('v_lshlrev_b32 v12, 4, v1')
    qloads = [f'buffer_load_dwordx4 v[{32+4*k}:{35+4*k}], v12, s[16:19], s27 offen offset:{1024*k} sc1' for k in range(2)]
    if not cfg.qlate:
        a('s_cmp_lg_u32 s4, 0\ns_cbranch_scc1 L_nq1' if not cfg.xp & 1024 else 's_branch L_nq1')
        for x in qloads: a(x)
        a('L_nq1:')
    stamp(1)
    a('s_barrier')
    if cfg.xp & 512: a('s_waitcnt vmcnt(0)\ns_branch L_xs')
    a(f's_mul_i32 s28, s4, {KW}')
    a('v_and_b32 v11, 3, v15\nv_xor_b32 v11, v11, v7')
    a('v_lshl_add_u32 v11, v9, 2, v11')
    a('v_lshl_add_u32 v11, v11, 4, v10\nv_add_u32 v8, s28, v11')
    for s in (1, 2, 3): a(f'v_xor_b32 v{8+s}, {64*s}, v8')
    a(f's_mul_i32 s6, s4, 1536\ns_add_u32 s6, s6, {PREG}')
    a('v_lshrrev_b32 v13, 3, v15\nv_mul_u32_u24 v13, 768, v13' if cfg.il else 'v_lshrrev_b32 v13, 3, v15\nv_lshlrev_b32 v13, 8, v13')
    a('v_and_b32 v14, 3, v15\nv_lshl_add_u32 v13, v14, 6, v13\nv_lshl_add_u32 v13, v7, 4, v13')
    a('v_bfe_u32 v14, v15, 2, 1\nv_lshl_add_u32 v13, v14, 3, v13\nv_add_u32 v13, s6, v13')
    for u in range(4):
        a(f's_mov_b32 s{36+2*u}, {0x000F000F << (4*u):#x}\ns_mov_b32 s{37+2*u}, {0x000F000F << (4*u):#x}')
    a(f's_sub_u32 s6, s45, s44\ns_lshr_b32 s6, s6, 8\ns_sub_u32 s6, s6, 80')
    a(f'v_sub_u32 v160, {cfg.RK - 80}, v7\nv_cndmask_b32 v161, 64, v160, s[38:39]\nv_sub_u32 v160, s6, v7\nv_cndmask_b32 v163, 64, v160, s[42:43]')
    a('s_waitcnt lgkmcnt(0)')
    epoch_tag()
    stamp(2)
    a(f'v_mov_b32 v14, {QF}')
    a('s_cmp_lg_u32 s4, 0\ns_cbranch_scc1 L_nq2')
    if cfg.qlate: a(f's_waitcnt vmcnt({cfg.qlate - 1})')
    if cfg.xp & 1: a('s_waitcnt vmcnt(0)')
    else: vpoll(qloads, [33, 35, 37, 39], 164, first_issued=not cfg.qlate, tags=True, sleep=cfg.qslp, dbg=(1, 2, 15))
    a(f'v_lshlrev_b32 v12, 3, v1\nv_add_u32 v12, {QL}, v12\nv_mov_b32 v16, 1')
    a('ds_write2_b32 v12, v32, v34 offset0:0 offset1:1\nds_write2_b32 v12, v36, v38 offset0:128 offset1:129')
    a('s_waitcnt lgkmcnt(0)\nds_write_b32 v14, v16')
    a('s_branch L_nq3')
    a('L_nq2:')
    a('s_mov_b32 s30, 0')
    a('L_qspin:')
    a('ds_read_b32 v16, v14\ns_add_u32 s30, s30, 1\ns_waitcnt lgkmcnt(0)')
    a('v_cmp_ne_u32 vcc, 1, v16\ns_cbranch_vccz L_nq3')
    a(f's_sleep 1\ns_cmp_lt_u32 s30, {LIMIT*8}\ns_cbranch_scc1 L_qspin')
    a('L_nq3:')
    a(f'v_and_b32 v12, 3, v15\nv_lshlrev_b32 v12, 8, v12\nv_lshl_add_u32 v12, v7, 4, v12\nv_add_u32 v12, {QL}, v12')
    for k in range(4): a(f'ds_read_b128 v[{16+4*k}:{19+4*k}], v12 offset:{64*k}')
    a('s_waitcnt vmcnt(0) lgkmcnt(0)')
    stamp(3)
    order = [(u, dd) for u in range(4) for dd in range(3)]
    ldsg = [4*dd+u for (u, dd) in order if 4*dd+u < 9]
    def kread(k):
        gi = ldsg[k]; buf = 64 + 16*(k & 1)
        for s in range(4):
            a(f'ds_read_b128 v[{buf+4*s}:{buf+4*s+3}], v{8+s} offset:{4096*gi}')
    kread(0)
    k = 0
    for (u, dd) in order:
        gi = 4*dd + u
        mq = 32 + 16*(u & 1)
        if u == 0 and dd == 0:
            for r in range(16): a(f'v_cndmask_b32 v{mq+r}, 0, v{16+r}, s[36:37]')
        if gi < 9:
            src = 64 + 16*(k & 1)
            if k + 1 < len(ldsg):
                kread(k + 1); a('s_waitcnt lgkmcnt(4)')
            else:
                a('s_waitcnt lgkmcnt(0)')
            k += 1
        else:
            src = 96 + 16*(gi - 9)
        D = 144 + 4*dd
        for s in range(4):
            c = '0' if (u == 0 and s == 0) else f'v[{D}:{D+3}]'
            a(f'v_mfma_f32_16x16x32_bf16 v[{D}:{D+3}], v[{src+4*s}:{src+4*s+3}], v[{mq+4*s}:{mq+4*s+3}], {c}')
            if u < 3 and dd < 2:
                mq2 = 32 + 16*((u+1) & 1)
                for r in (8*dd + 2*s, 8*dd + 2*s + 1):
                    a(f'v_cndmask_b32 v{mq2+r}, 0, v{16+r}, s[{38+2*u}:{39+2*u}]')
    a('v_mov_b32 v160, 0xff800000')
    for dd, th in ((1, 161), (2, 163)):
        for r in range(4):
            a(f'v_cmp_lt_i32 vcc, {4*r}, v{th}\nv_cndmask_b32 v{144+4*dd+r}, v160, v{144+4*dd+r}, vcc')
    a('v_max3_f32 v156, v144, v145, v146\nv_max3_f32 v157, v147, v148, v149')
    a('v_max3_f32 v158, v150, v151, v152\nv_max3_f32 v159, v153, v154, v155')
    a('v_max3_f32 v156, v156, v157, v158\nv_max_f32 v156, v156, v159')
    def xreduce(op, r, t):
        a(f'{op}_dpp v{r}, v{r}, v{r} row_ror:4 row_mask:0xf bank_mask:0xf')
        a(f'{op}_dpp v{r}, v{r}, v{r} row_ror:8 row_mask:0xf bank_mask:0xf')
        a(f'v_mov_b32 v{t}, v{r}\nv_permlane16_swap_b32 v{r}, v{t}\n{op} v{r}, v{r}, v{t}')
        a(f'v_mov_b32 v{t}, v{r}\nv_permlane32_swap_b32 v{r}, v{t}\n{op} v{r}, v{r}, v{t}')
    xreduce('v_max_f32', 156, 157)
    a(f's_mov_b32 s6, {f2u(128**-0.5 * LOG2E)}')
    a('v_mul_f32 v158, s6, v156')
    for r in range(12): a(f'v_fma_f32 v{144+r}, v{144+r}, s6, -v158')
    for r in range(12): a(f'v_exp_f32 v{144+r}, v{144+r}')
    for dd in range(3):
        D = 144 + 4*dd
        a(f'v_cvt_pk_bf16_f32 v{32+2*dd}, v{D}, v{D+1}\nv_cvt_pk_bf16_f32 v{33+2*dd}, v{D+2}, v{D+3}')
        a(f'ds_write_b64 v13, v[{32+2*dd}:{33+2*dd}] offset:{(256 if cfg.il else 512)*dd}')
    a('v_add_f32 v159, v144, v145')
    for r in range(2, 12): a(f'v_add_f32 v159, v159, v{144+r}')
    xreduce('v_add_f32', 159, 157)
    a(f's_lshl_b32 s6, s4, 5\ns_add_u32 s6, s6, {ST}')
    a('v_lshl_add_u32 v14, v1, 3, s6')
    a('s_mov_b64 exec, 15\nds_write_b64 v14, v[158:159]\ns_mov_b64 exec, -1')
    a('s_waitcnt lgkmcnt(0)')
    a(f'v_mov_b32 v14, {QF}\nv_mov_b32 v16, 1\ns_mov_b64 exec, 1\nds_add_u32 v14, v16 offset:4\ns_mov_b64 exec, -1')
    stamp(4)
    pspin('v14', 'v16')
    a(f'v_and_b32 v14, 3, v1\nv_lshlrev_b32 v14, 3, v14\nv_add_u32 v14, {ST}, v14')
    for w in range(4): a(f'ds_read_b64 v[{16+2*w}:{17+2*w}], v14 offset:{32*w}')
    a('v_lshrrev_b32 v2, 2, v1\nv_lshrrev_b32 v3, 4, v1\nv_add_u32 v3, v3, v1\nv_and_b32 v3, 3, v3')
    a('v_lshlrev_b32 v2, 5, v2\nv_lshl_add_u32 v2, v3, 3, v2')
    a(f's_lshl_b32 s6, s4, 9\ns_add_u32 s6, s6, {SCR}\nv_add_u32 v2, s6, v2')
    a('s_waitcnt lgkmcnt(0)')
    a('v_max3_f32 v24, v16, v18, v20\nv_max_f32 v24, v24, v22')
    for w in range(4): a(f'v_sub_f32 v{25+w}, v{16+2*w}, v24')
    for w in range(4): a(f'v_exp_f32 v{25+w}, v{25+w}')
    a('v_mul_f32 v29, v25, v17\nv_fmac_f32 v29, v26, v19\nv_fmac_f32 v29, v27, v21\nv_fmac_f32 v29, v28, v23')
    a('v_log_f32 v30, v29\nv_rcp_f32 v29, v29\nv_mov_b32 v31, s33')
    a('v_add_f32 v30, v30, v24')
    a(f's_lshl_b32 s6, s24, 11\ns_lshl_b32 s7, s25, 7\ns_add_u32 s6, s6, s7\ns_add_u32 s6, s6, {LSE}')
    a('v_lshlrev_b32 v3, 3, v1')
    a('s_cmp_eq_u32 s4, 0\ns_cselect_b32 exec_lo, 0xffff, 0\ns_mov_b32 exec_hi, 0\ns_cbranch_execz L_nlse')
    if cfg.diag is not None and cfg.diag >= 90: a(f's_sub_u32 s7, s{64+2*cfg.dk}, s{64+2*cfg.dk0}\ns_mov_b32 exec_lo, 0xff00\nv_mov_b32 v30, ' + ('s7' if cfg.dk else 's64') + '\ns_mov_b32 exec_lo, 0xffff')
    a('buffer_store_dwordx2 v[30:31], v3, s[16:19], s6 offen sc1')
    a('L_nlse:')
    a('s_mov_b64 exec, -1')
    for w in range(4): a(f'v_mul_f32 v{32+w}, v{25+w}, v29')
    for w in range(4): a(f'v_readlane_b32 s{36+w}, v{32+w}, s4')
    a('L_xs:')
    a('v_lshlrev_b32 v3, 2, v1')
    a('s_barrier')
    stamp(6)
    for v in range(8): a(f'ds_read_b64 v[{48+2*v}:{49+2*v}], v2 offset:{2048*v}')
    for v in range(8):
        a(f's_waitcnt lgkmcnt({7-v})')
        w = v >> 1; sp = 36 + (w & ~1)
        mod = 'op_sel_hi:[1,0,1]' if (w & 1) == 0 else 'op_sel:[0,1,0] op_sel_hi:[1,1,1]'
        mod2 = 'op_sel_hi:[1,0]' if (w & 1) == 0 else 'op_sel:[0,1] op_sel_hi:[1,1]'
        if v < 2: a(f'v_pk_mul_f32 v[{40+2*v}:{41+2*v}], v[{48+2*v}:{49+2*v}], s[{sp}:{sp+1}] {mod2}')
        else: a(f'v_pk_fma_f32 v[{40+2*(v&1)}:{41+2*(v&1)}], v[{48+2*v}:{49+2*v}], s[{sp}:{sp+1}], v[{40+2*(v&1)}:{41+2*(v&1)}] {mod}')
    a('v_pk_add_f32 v[40:41], v[40:41], v[42:43]')
    a('v_cvt_pk_bf16_f32 v40, v40, v41')
    a(f'buffer_store_dword v40, v3, s[16:19], s26 offen {cfg.ost}')
    stamp(7)
    if cfg.stamps:
        a('s_cmp_lg_u32 s4, 0\ns_cbranch_scc1 L_end')
        stamps_out(8, 0)
    a('s_endpgm')

    a('L_vwave:')
    a('s_lshl_b32 s22, s31, 8')
    a('s_sub_u32 s4, s4, 4')
    if cfg.rot & 2: a('s_add_u32 s4, s4, s24\ns_and_b32 s4, s4, 7')
    if cfg.rot & 4: a('s_lshr_b32 s7, s24, 1\ns_add_u32 s4, s4, s7\ns_and_b32 s4, s4, 7')
    a('v_lshlrev_b32 v2, 4, v1')
    a(f'v_mov_b32 v16, 0\nv_mov_b32 v17, 0\nv_mov_b32 v18, 0\nv_mov_b32 v19, 0\nv_add_u32 v9, {ZERO}, v2')
    a('s_mov_b32 exec_lo, -1\ns_mov_b32 exec_hi, 3\nds_write_b128 v9, v[16:19]\ns_mov_b64 exec, -1')
    a(f'v_mov_b32 v9, {QF}\nds_write_b64 v9, v[16:17]')
    a(f's_mul_i32 s7, s4, 768\ns_add_u32 s7, s7, {PREG}')
    a('v_and_b32 v9, 3, v1\nv_lshlrev_b32 v9, 6, v9\nv_lshrrev_b32 v10, 4, v1\nv_lshl_add_u32 v9, v10, 4, v9\nv_add_u32 v9, s7, v9')
    a(f'v_mov_b32 v11, {ZERO}')
    for x in range(4):
        a(f's_mov_b32 s34, {0x000F000F << (4*x):#x}\ns_mov_b32 s35, s34')
        a(f'v_cndmask_b32 v{3+x}, v11, v9, s[34:35]')
    a('v_and_b32 v7, 15, v1\nv_lshrrev_b32 v8, 2, v7\nv_add_u32 v8, v8, v10\nv_and_b32 v8, 3, v8')
    a('v_lshlrev_b32 v7, 5, v7\nv_lshl_add_u32 v7, v8, 3, v7')
    a(f's_lshl_b32 s7, s4, 11\ns_add_u32 s7, s7, {SCR}\nv_add_u32 v7, s7, v7\nv_add_u32 v8, 1024, v7')
    a('s_mov_b32 s36, 0x05040100\ns_mov_b32 s37, 0x07060302')
    a(f's_mul_i32 s27, s4, {256*cfg.RK}\ns_add_u32 s7, s27, {256*cfg.RK}\ns_min_u32 s22, s22, s7')
    a('s_waitcnt lgkmcnt(0)')
    a('s_add_u32 s20, s10, s6\ns_addc_u32 s21, s11, 0')
    if cfg.stamps: srd(16, 's14', 's15', WS_SZ)
    if cfg.tlbw:
        a(f'v_lshlrev_b32 v12, 12, v1\ns_mov_b64 exec, {(1 << cfg.tlbw) - 1}\nbuffer_load_dword v13, v12, s[20:23], s27 offen {cfg.NT}\ns_mov_b64 exec, -1')
    a('s_barrier')
    stamp(1)
    for i in range(24):
        r = 72 + 4*i
        a(f'buffer_load_dwordx4 v[{r}:{r+3}], v2, s[20:23], s27 offen offset:{1024*(i&3)} {cfg.NT}')
        if cfg.thV < 63 and cfg.thV <= i < cfg.nth: a(f's_waitcnt vmcnt({cfg.thV})')
        if (i & 3) == 3 and i < 23: a(f's_add_u32 s27, s27, {61440 if (cfg.il and (i & 7) == 7) else 4096}')
    stamp(2)
    if cfg.xp & 512: a('s_waitcnt vmcnt(0)\ns_branch L_xv')
    pspin('v9', 'v10')
    stamp(3)
    def pread(t):
        buf = 40 + 16*(t & 1)
        for x in range(4): a(f'ds_read_b128 v[{buf+4*x}:{buf+4*x+3}], v{3+x} offset:{256*t}')
    pread(0); pread(1)
    for t in range(3):
        a(f's_waitcnt vmcnt({16-8*t})')
        if t == 2: stamp(4)
        vb = 72 + 32*t; pb = 40 + 16*(t & 1)
        for j in range(8):
            tb = 24 + 4*(j & 3)
            sel = 's37' if (j & 1) else 's36'
            for tt in range(4):
                a(f'v_perm_b32 v{tb+tt}, v{vb + 4*(2*tt+1) + (j>>1)}, v{vb + 4*(2*tt) + (j>>1)}, {sel}')
            if j == 0: a('s_waitcnt lgkmcnt(4)' if t == 0 else 's_waitcnt lgkmcnt(0)')
            if j > 0:
                jj = j - 1; tb2 = 24 + 4*(jj & 3); acc = 16 + 4*(jj & 1); x = jj >> 1
                c = '0' if (t == 0 and jj < 2) else f'v[{acc}:{acc+3}]'
                a(f'v_mfma_f32_16x16x32_bf16 v[{acc}:{acc+3}], v[{pb+4*x}:{pb+4*x+3}], v[{tb2}:{tb2+3}], {c}')
        a(f'v_mfma_f32_16x16x32_bf16 v[20:23], v[{pb+12}:{pb+15}], v[36:39], v[20:23]')
        if t == 0: pread(2)
    for r in range(4):
        ad = 7 + (r >> 1); o = 128*(r & 1)
        a(f'ds_write2_b32 v{ad}, v{16+r}, v{20+r} offset0:{o} offset1:{o+1}')
    a('s_waitcnt lgkmcnt(0)')
    a('L_xv:')
    stamp(5)
    a('s_barrier')
    if cfg.stamps:
        a('s_cmp_lg_u32 s4, 0\ns_cbranch_scc1 L_end')
        stamps_out(6, 8)
    a('s_endpgm')

    a('L_spare:')
    if cfg.xp & 2048: a('s_endpgm')
    if cfg.xp & 16: a('s_endpgm')
    if cfg.tlbw:
        a('s_cmp_lg_u32 s4, 9\ns_cbranch_scc1 L_sp1')
        a('s_load_dwordx2 s[36:37], s[0:1], 32\ns_load_dwordx2 s[40:41], s[0:1], 48\ns_load_dwordx2 s[44:45], s[0:1], 64\ns_load_dwordx2 s[48:49], s[0:1], 88')
        a('v_lshlrev_b32 v2, 16, v1\nv_lshlrev_b32 v3, 14, v1')
        a(f's_mov_b32 s38, {4096*1024}\ns_mov_b32 s39, 0x20000\ns_mov_b32 s42, {512*3584}\ns_mov_b32 s43, 0x20000\ns_mov_b32 s46, {1792*1024}\ns_mov_b32 s47, 0x20000\ns_mov_b32 s50, {512*6144}\ns_mov_b32 s51, 0x20000')
        a('s_waitcnt lgkmcnt(0)')
        srd(16, 's14', 's15', WS_SZ)
        a('buffer_load_dword v8, v3, s[16:19], 0 offen sc1')
        a('s_cmp_lg_u32 s5, 0\ns_cbranch_scc1 L_sp0')
        a('buffer_load_dword v4, v2, s[36:39], 0 offen nt\nbuffer_load_dword v5, v2, s[40:43], 0 offen nt\nbuffer_load_dword v6, v2, s[44:47], 0 offen nt')
        a('s_endpgm')
        a('L_sp0:')
        a('buffer_load_dword v7, v2, s[48:51], 0 offen nt')
        a('s_endpgm')
        a('L_sp1:')
    if not cfg.pw & 1: a('s_cmp_lg_u32 s5, 0\ns_cbranch_scc1 L_end')
    a('s_cmp_lg_u32 s4, 8\ns_cbranch_scc1 L_end')
    a('v_mov_b32 v4, -1\nv_mov_b32 v5, -1\nv_mov_b32 v6, -1\nv_mov_b32 v7, -1')
    if cfg.pw & 1:
        a('s_cmp_eq_u32 s5, 0\ns_cbranch_scc1 L_spT')
        a(f's_lshr_b32 s6, s3, 2\ns_lshl_b32 s6, s6, 12\ns_and_b32 s7, s3, 3\ns_lshl_b32 s7, s7, 9\ns_add_u32 s6, s6, s7\ns_add_u32 s6, s6, {QO}')
        a('v_lshlrev_b32 v2, 4, v1\nv_lshrrev_b32 v3, 5, v1\nv_mul_u32_u24 v3, 1536, v3\nv_add3_u32 v3, v3, v2, s6')
        a(f's_lshl_b32 s6, s3, 10\ns_add_u32 s6, s6, {MODB}\nv_add_u32 v2, s6, v2')
        a('s_waitcnt lgkmcnt(0)')
        a('global_store_dwordx4 v3, v[4:7], s[14:15] sc1\nglobal_store_dwordx4 v2, v[4:7], s[14:15] sc1')
        a('s_waitcnt vmcnt(0)\ns_endpgm')
        a('L_spT:')
    a(f's_lshl_b32 s6, s3, 10\ns_add_u32 s6, s6, {WOUT}\nv_lshlrev_b32 v2, 4, v1\nv_add_u32 v2, s6, v2')
    a(f's_lshl_b32 s6, s3, {11 if cfg.mh else 12}\ns_add_u32 s6, s6, {MOUT}\nv_lshlrev_b32 v8, 4, v1\nv_add_u32 v8, s6, v8')
    a('s_waitcnt lgkmcnt(0)')
    a('global_store_dwordx4 v2, v[4:7], s[14:15] sc1')
    if cfg.pw & 2:
        a('s_and_b32 s6, s3, 1\ns_lshl_b32 s6, s6, 14\ns_lshr_b32 s7, s3, 1\ns_lshl_b32 s7, s7, 10\ns_add_u32 s6, s6, s7\nv_lshl_add_u32 v9, v1, 4, s6')
        a('global_store_dwordx4 v9, v[4:7], s[14:15] sc1')
        a(f's_lshl_b32 s6, s3, 7\ns_add_u32 s6, s6, {XID}\nv_lshl_add_u32 v9, v1, 4, s6\ns_mov_b64 exec, 0xff\nglobal_store_dwordx4 v9, v[4:7], s[14:15] sc1\ns_mov_b64 exec, -1')
    if cfg.owarm:
        a('s_cmp_lg_u32 s3, 31\ns_cbranch_scc1 L_sp3')
        a('s_load_dwordx2 s[36:37], s[0:1], 96\nv_lshlrev_b32 v9, 4, v1\ns_waitcnt lgkmcnt(0)')
        a('global_store_dwordx4 v9, v[4:7], s[36:37] sc1\nglobal_store_dwordx4 v9, v[4:7], s[36:37] offset:1024 sc1')
        if cfg.owarm > 1: a(f'v_add_u32 v9, {EPO + 64}, v9\ns_mov_b64 exec, 15\nglobal_store_dwordx4 v9, v[4:7], s[14:15] sc1\ns_mov_b64 exec, -1')
        a('L_sp3:')
    if not cfg.mtag:
        a('s_cmp_ge_u32 s3, 28\ns_cbranch_scc1 L_sp2')
        for i in range(2 if cfg.mh else 4): a(f'global_store_dwordx4 v8, v[4:7], s[14:15] offset:{1024*i} sc1')
        a('L_sp2:')
    a('s_waitcnt vmcnt(0)')
    a('s_endpgm')

    AT=136; DD=32; Z=36; T=38; ZT=37; F0=40; F1=72; F2=104
    if not cfg.hfirst: hearly()
    a('L_helper:')
    epoch_load()
    if cfg.diag is not None: a(f's_load_dword s96, s[14:15], {XID+4}\ns_load_dword s97, s[14:15], {EPO}')
    a('s_load_dwordx2 s[44:45], s[0:1], 0')
    a('s_load_dwordx4 s[48:51], s[0:1], 24')
    a('s_load_dwordx4 s[52:55], s[0:1], 80')
    a('v_lshrrev_b32 v10, 3, v1\nv_and_b32 v11, 3, v1\nv_lshlrev_b32 v11, 1, v11\nv_lshl_add_u32 v10, v10, 3, v11')
    a('v_bfe_u32 v11, v1, 2, 1')
    a('s_lshl_b32 s6, s4, 6\nv_add_u32 v12, s6, v10')
    a('v_lshlrev_b32 v6, 1, v12\nv_lshl_add_u32 v6, v11, 10, v6')
    a(f'v_lshlrev_b32 v9, 2, v12\nv_lshl_add_u32 v9, v11, 11, v9\nv_add_u32 v9, {X1}, v9')
    a(f's_lshr_b32 s6, s4, 2\ns_mul_i32 s6, s6, 576\ns_and_b32 s7, s4, 3\ns_lshl_b32 s7, s7, 7\ns_add_u32 s6, s6, s7\ns_add_u32 s6, s6, {ACT}')
    a('v_mul_u32_u24 v7, 1152, v11\nv_lshl_add_u32 v7, v10, 1, v7\nv_add_u32 v7, s6, v7')
    a('v_lshrrev_b32 v13, 3, v1\nv_lshlrev_b32 v13, 2, v13\nv_lshl_add_u32 v13, v11, 5, v13')
    a(f'v_add_u32 v13, {STAT}, v13')
    a('s_waitcnt lgkmcnt(0)')
    srd(16, 's14', 's15', WS_SZ)
    epoch_tag()
    a('global_load_dword v17, v6, s[52:53]')
    a('global_load_dword v16, v6, s[44:45]')
    a('s_cmp_eq_u32 s5, 0\ns_cbranch_scc1 L_t2')
    a('s_add_u32 s24, s25, 128')
    dma_u1('s48', 's49', 512*8192, 8192, 's24', R1)
    a('s_branch L_h2')
    a('L_t2:')
    a('s_lshr_b32 s26, s3, 1\ns_lshl_b32 s24, s26, 18\ns_and_b32 s6, s3, 1\ns_lshl_b32 s6, s6, 9\ns_add_u32 s24, s24, s6')
    dma_w(8, 8 + cfg.pre)
    a('L_h2:')
    a('v_lshrrev_b32 v10, 4, v1\nv_bfe_u32 v11, v1, 2, 2\nv_lshl_add_u32 v3, v10, 3, v11')
    a('v_bfe_u32 v11, v1, 1, 1\nv_lshl_add_u32 v3, v11, 8, v3\nv_lshlrev_b32 v3, 7, v3')
    a('v_bfe_u32 v12, v1, 3, 2\nv_lshl_add_u32 v12, v11, 2, v12\nv_xor_b32 v12, s4, v12\nv_lshl_add_u32 v3, v12, 4, v3')
    a('v_and_b32 v12, 1, v1\nv_lshl_add_u32 v3, v12, 3, v3')
    a(f'v_lshl_add_u32 v4, v12, 1, v11\nv_mul_u32_u24 v4, 576, v4\nv_lshl_add_u32 v4, v10, 4, v4\nv_add_u32 v4, {ACT}, v4')
    a('v_lshlrev_b32 v5, 3, v0')
    a('s_lshl_b32 s6, s4, 7\nv_lshl_add_u32 v8, v1, 3, s6\nv_lshlrev_b32 v28, 4, v0')
    a(f'v_and_b32 v10, 0x37, v1\nv_cmp_eq_u32 vcc, 1, v10\nv_mov_b32 v18, {f2u(1e-5)}\nv_cndmask_b32 v18, 0, v18, vcc')
    a(f'v_lshlrev_b32 v10, 2, v1\nv_add_u32 v10, {STAT}, v10\nv_mov_b32 v{T+1}, s33\nv_mov_b32 v{ZT}, s33')
    a('s_mov_b32 exec_lo, -1\ns_mov_b32 exec_hi, 0xffff\nds_write_b32 v10, v18\ns_mov_b64 exec, -1')

    def tr_u1(F, region, steps=8, ad=None):
        if ad is None:
            if region: a(f'v_add_u32 v10, {region}, v3')
            ad = 'v10' if region else 'v3'
        for s in range(steps):
            for hh in range(2):
                a(f'ds_read_b64_tr_b16 v[{F+4*s+2*hh}:{F+4*s+2*hh+1}], {ad} offset:{4096*s + 512*hh}')
    def gemv(Fs, ad='v4', fill=(), off=0, steps=8, Ds=None):
        if isinstance(Fs, int): Fs = [Fs]
        if Ds is None: Ds = [DD]
        fill = list(fill)
        for s in range(steps): a(f'ds_read_b128 v[{AT+4*s}:{AT+4*s+3}], {ad} offset:{64*s+off}')
        per = (len(fill) + steps - 2) // (steps - 1)
        for s in range(steps):
            a(f's_waitcnt lgkmcnt({steps-1-s})')
            for F, D in zip(Fs, Ds):
                c = '0' if s == 0 else f'v[{D}:{D+3}]'
                a(f'v_mfma_f32_16x16x32_bf16 v[{D}:{D+3}], v[{AT+4*s}:{AT+4*s+3}], v[{F+4*s}:{F+4*s+3}], {c}')
            for _ in range(per):
                if fill: a(fill.pop(0))
        for x in fill: a(x)
    def sgemv(Fs, Ds, ad, idx, off=0, fill=(), steps=4, lead=2):
        fill = list(fill)
        post = bool(fill) and cfg.sord
        for s in range(steps):
            a(f'ds_read_b128 v[{AT+4*s}:{AT+4*s+3}], {ad} offset:{64*s+off}')
            if post and s == 1: a('ds_read_b128 v[52:55], v40\nds_read_b64 v[56:57], v40 offset:16')
        per = lead
        for s in range(steps):
            a(f's_waitcnt lgkmcnt({(5, 4, 1, 0)[s] if post else steps-1-s})')
            if post and s < 2:
                for F, D in zip(Fs, Ds):
                    a(f'v_smfmac_f32_16x16x64_bf16 v[{D}:{D+3}], v[{AT+4*s}:{AT+4*s+3}], v[{F+8*s}:{F+8*s+7}], {idx}')
                if s == 1:
                    a('s_waitcnt lgkmcnt(2)')
                    for _ in range(4): a(fill.pop(0))
                continue
            for F, D in zip(Fs, Ds):
                a(f'v_smfmac_f32_16x16x64_bf16 v[{D}:{D+3}], v[{AT+4*s}:{AT+4*s+3}], v[{F+8*s}:{F+8*s+7}], {idx}')
            for _ in range(per):
                if fill: a(fill.pop(0))
        for x in fill: a(x)
    def fold(D=DD, z=Z):
        a(f'v_add_f32_dpp v{z}, v{D+2}, v{D} row_ror:8 row_mask:0xf bank_mask:0x3')
        a(f'v_add_f32_dpp v{z}, v{D+1}, v{D+3} row_ror:8 row_mask:0xf bank_mask:0xc')
    def publish_tag(z, soff):
        a(f's_mov_b64 exec, 0xffff\nbuffer_store_dwordx2 v[{Z}:{Z+1}], v8, s[16:19], {soff} offen sc1\ns_mov_b64 exec, -1')
    def store2(text):
        if not cfg.fast: a(text + ' sc1'); return
        l = lab('fs'); d = lab('fd')
        a(f's_cbranch_scc1 {l}')
        a(text + ' sc1'); a(f's_branch {d}')
        a(f'{l}:'); a(text + ' ' + cfg.lst); a(f'{d}:')
    def unpack(lo, hi, src):
        a(f'v_lshlrev_b32 v{lo}, 16, v{src}\nv_and_b32 v{hi}, 0xffff0000, v{src}')
    def red6(vals, off, TT, scale=None, ad='v13'):
        r01, r23, r45, z = TT
        for r, (e, o) in zip((r01, r23, r45), ((vals[0], vals[1]), (vals[2], vals[3]), (vals[4], vals[5]))):
            a(f'v_add_f32_dpp v{r}, v{e}, v{e} row_ror:8 row_mask:0xf bank_mask:0x3')
        for r, (e, o) in zip((r01, r23, r45), ((vals[0], vals[1]), (vals[2], vals[3]), (vals[4], vals[5]))):
            a(f'v_add_f32_dpp v{r}, v{o}, v{o} row_ror:8 row_mask:0xf bank_mask:0xc')
        a(f'v_permlane16_swap_b32 v{r01}, v{r23}\nv_permlane16_swap_b32 v{r45}, v{z}')
        a(f'v_add_f32 v{r01}, v{r01}, v{r23}\nv_add_f32 v{r45}, v{r45}, v{z}')
        a(f'v_permlane32_swap_b32 v{r01}, v{r45}\nv_add_f32 v{r01}, v{r01}, v{r45}')
        a(f'v_add_f32_dpp v{r01}, v{r01}, v{r01} quad_perm:[1,0,3,2] row_mask:0xf bank_mask:0xf')
        a(f'v_add_f32_dpp v{r01}, v{r01}, v{r01} quad_perm:[2,3,0,1] row_mask:0xf bank_mask:0xf')
        a(f's_mov_b32 exec_lo, 0x11111111\ns_mov_b32 exec_hi, 0x1111')
        if scale: a(f'v_mul_f32 v{r01}, v{r01}, {scale}')
        a(f'ds_add_f32 {ad}, v{r01} offset:{off}\ns_mov_b64 exec, -1')

    stamp(1)
    def silu():
        unpack(18, 19, 17)
        a(f's_mov_b32 s6, {f2u(-LOG2E)}')
        a('v_mul_f32 v20, s6, v18\nv_mul_f32 v21, s6, v19\nv_exp_f32 v20, v20\nv_exp_f32 v21, v21')
        a('v_add_f32 v20, 1.0, v20\nv_add_f32 v21, 1.0, v21\nv_rcp_f32 v20, v20\nv_rcp_f32 v21, v21')
        a('v_mul_f32 v18, v18, v20\nv_mul_f32 v19, v19, v21\nv_cvt_pk_bf16_f32 v18, v18, v19')
        a(f'ds_write_b32 v7, v18 offset:{ACTC-ACT}')
        unpack(14, 15, 16)
    a('s_cmp_eq_u32 s5, 0\ns_cbranch_scc1 L_tail')
    mloads = [f'buffer_load_dwordx4 v[{AT+4*k}:{AT+4*k+3}], v28, s[16:19], s{60+k} offen sc1' for k in range(4)]
    for k in range(4): a(f's_mov_b32 s{60+k}, {MODA + 8192*k}')
    if not cfg.mlate:
        for x in mloads: a(x)
    a(f's_waitcnt vmcnt({8 if cfg.mlate else 12})')
    stamp(2)
    silu()
    a('v_add_f32 v18, v14, v15\nv_mul_f32 v19, v14, v14\nv_fmac_f32 v19, v15, v15')
    a('s_waitcnt lgkmcnt(0)\ns_barrier')
    red6([18, 19, 18, 19, 18, 19], STAT2 - STAT, (24, 25, 26, 27))
    tr_u1(F0, R0)
    a('s_waitcnt lgkmcnt(0)\ns_barrier')
    stamp(3)
    a('s_lshl_b32 s24, s3, 7\ns_add_u32 s24, s24, 2048')
    if cfg.xp & 128:
        dma_u1('s54', 's55', 512*6144, 6144, 's24', R0)
        a('s_endpgm')
    if cfg.mlate:
        if cfg.mlate > 1: a(f's_waitcnt vmcnt({cfg.mlate})')
        for x in mloads: a(x)
    if cfg.apre: dma_u1('s54', 's55', 512*6144, 6144, 's24', R0, i1=cfg.apre)
    a(f'v_bfe_u32 v10, v1, 2, 1\nv_lshlrev_b32 v10, 5, v10\nv_add_u32 v10, {STAT2}, v10')
    a('ds_read_b64 v[18:19], v10\ns_waitcnt lgkmcnt(0)')
    a(f's_mov_b32 s6, {f2u(1/512)}\ns_mov_b32 s7, {f2u(1e-5)}')
    a('v_mul_f32 v18, s6, v18\nv_mul_f32 v19, s6, v19\nv_fma_f32 v19, -v18, v18, v19\nv_max_f32 v19, 0, v19\nv_add_f32 v19, s7, v19\nv_rsq_f32 v19, v19')
    a('v_sub_f32 v20, v14, v18\nv_sub_f32 v21, v15, v18\nv_mul_f32 v20, v20, v19\nv_mul_f32 v21, v21, v19')
    a('v_bfe_u32 v30, v1, 1, 2\nv_lshlrev_b32 v30, 3, v30\nv_bfe_u32 v11, v1, 3, 1\nv_lshl_add_u32 v30, v11, 9, v30\nv_bfe_u32 v11, v1, 4, 1\nv_lshl_add_u32 v30, v11, 8, v30')
    a(f's_lshl_b32 s6, s4, 5\ns_add_u32 s6, s6, {X1}\nv_add_u32 v30, s6, v30')
    a(f'v_lshlrev_b32 v31, 4, v1\nv_add_u32 v29, {X1}, v31\nv_lshrrev_b32 v11, 5, v1\nv_mul_u32_u24 v11, 1536, v11\nv_add_u32 v31, v31, v11')
    if cfg.xp & 8192: a('s_waitcnt vmcnt(0)')
    else: vpoll(mloads, range(AT+1, AT+16, 2), 22, first_issued=True, tags=True, sleep=cfg.slpB, first_cnt=cfg.apre)
    stamp(4)
    a(f'v_add_f32 v22, v{AT}, v{AT+8}\nv_add_f32 v23, v{AT+2}, v{AT+10}\nv_add_f32 v24, v{AT+4}, v{AT+12}\nv_add_f32 v25, v{AT+6}, v{AT+14}')
    a('v_add_f32 v24, 1.0, v24\nv_add_f32 v25, 1.0, v25\nv_fma_f32 v20, v20, v24, v22\nv_fma_f32 v21, v21, v25, v23')
    a('v_cvt_pk_bf16_f32 v20, v20, v21\nds_write_b32 v7, v20\ns_waitcnt lgkmcnt(0)\ns_barrier')
    stamp(5)
    tr_u1(F1, R1)
    gemv([F0, F1], Ds=[DD, 24])
    a(f'v_add_f32_dpp v{Z}, v{DD+2}, v{DD} row_ror:8 row_mask:0x1 bank_mask:0x3')
    a(f'v_add_f32_dpp v{Z}, v{DD+1}, v{DD+3} row_ror:8 row_mask:0x1 bank_mask:0xc')
    a(f'v_add_f32_dpp v{Z}, v26, v24 row_ror:8 row_mask:0x2 bank_mask:0x3')
    a(f'v_add_f32_dpp v{Z}, v25, v27 row_ror:8 row_mask:0x2 bank_mask:0xc')
    a(f'v_mov_b32_dpp v{T}, v{Z} quad_perm:[1,1,3,3] row_mask:0xf bank_mask:0xf')
    a(f's_mov_b64 exec, 0x55555555')
    a(f'v_cvt_pk_bf16_f32 v{T}, v{Z}, v{T}')
    a(f'ds_write_b64 v30, v[{T}:{T+1}]\ns_mov_b64 exec, -1')
    a('s_waitcnt lgkmcnt(0)\ns_barrier')
    a('s_cmp_lg_u32 s4, 0\ns_cbranch_scc1 L_nqp')
    a(f's_lshr_b32 s6, s3, 2\ns_lshl_b32 s6, s6, 12\ns_and_b32 s7, s3, 3\ns_lshl_b32 s7, s7, 9\ns_add_u32 s6, s6, s7\ns_add_u32 s6, s6, {QO}')
    a('ds_read_b128 v[24:27], v29\ns_waitcnt lgkmcnt(0)')
    if not cfg.xp & 4096: a('buffer_store_dwordx4 v[24:27], v31, s[16:19], s6 offen sc1')
    a('L_nqp:')
    stamp(6)
    if cfg.qobs:
        a('s_cmp_lg_u32 s4, 0\ns_cbranch_scc1 L_nobs')
        a(f's_lshr_b32 s6, s3, 2\ns_lshl_b32 s6, s6, 12\ns_add_u32 s6, s6, {QO}\nv_lshlrev_b32 v10, 4, v1')
        a('s_waitcnt vmcnt(0)'); stamp(2)
        vpoll([f'buffer_load_dwordx4 v[{AT+4*k}:{AT+4*k+3}], v10, s[16:19], s6 offen offset:{1024*k} sc1' for k in range(2)], range(AT+1, AT+8, 2), 22, tags=True)
        stamp(1)
        a('L_nobs:')
    if cfg.apre < 8: dma_u1('s54', 's55', 512*6144, 6144, 's24', R0, i0=cfg.apre)
    a('s_waitcnt vmcnt(0)\ns_barrier')
    tr_u1(F0, R0)
    gemv(F0, off=ACTC-ACT); fold()
    a(f's_lshl_b32 s6, s3, 10\ns_add_u32 s6, s6, {MODB}')
    if not cfg.xp & 4096: publish_tag(Z, 's6')
    stamp(7)
    if cfg.stamps:
        a('s_cmp_lg_u32 s4, 0\ns_cbranch_scc1 L_end')
        stamps_out(8, 0)
    a('s_endpgm')

    a('L_tail:')
    a(f's_waitcnt vmcnt({cfg.pre})')
    stamp(2)
    silu()
    a('s_load_dwordx8 s[52:59], s[0:1], 48')
    a('s_load_dwordx2 s[46:47], s[0:1], 96')
    if cfg.diag is not None: a('s_waitcnt lgkmcnt(0)\ns_load_dwordx2 s[98:99], s[46:47], 0')
    a('v_bfe_u32 v11, v1, 1, 1\nv_lshlrev_b32 v10, 14, v11\nv_sub_u32 v10, v3, v10')
    a('v_mul_u32_u24 v11, 320, v11\nv_sub_u32 v11, v4, v11\ns_and_b32 s6, s3, 1\ns_mul_i32 s6, s6, 576\nv_add_u32 v11, s6, v11')
    a('s_waitcnt lgkmcnt(0)\ns_barrier')
    tr_u1(F0, R0, 4, 'v10')
    gemv(F0, 'v11', off=ACTC-ACT, steps=4); fold()
    a('s_and_b32 s6, s3, 1\ns_lshl_b32 s6, s6, 14\ns_lshr_b32 s7, s3, 1\ns_lshl_b32 s7, s7, 10\ns_add_u32 s6, s6, s7')
    publish_tag(Z, 's6')
    stamp(3)
    dma_w(8 + cfg.pre, 16, setup=False)
    a('s_barrier')
    dma_w(0, 8, setup=False)
    a('v_lshrrev_b32 v10, 4, v1\nv_bfe_u32 v11, v1, 2, 2\nv_lshl_add_u32 v10, v10, 3, v11\nv_lshlrev_b32 v10, 9, v10')
    a('v_and_b32 v11, 3, v1\nv_lshl_add_u32 v10, v11, 3, v10')
    a('v_bfe_u32 v11, v1, 2, 3\nv_lshlrev_b32 v11, 5, v11\ns_lshl_b32 s6, s4, 6\nv_xor_b32 v11, s6, v11')
    a('v_add_u32 v22, v10, v11\nv_xor_b32 v11, 32, v11\nv_add_u32 v30, v10, v11')
    def tr_w(half):
        for cg, ad in ((0, 22), (1, 30)):
            if half: a(f'v_add_u32 v{10+cg}, {R1}, v{ad}')
            for s_ in range(4):
                for hh in range(2):
                    r = (F0, F1)[cg] + 4*(4*half + s_) + 2*hh
                    a(f'ds_read_b64_tr_b16 v[{r}:{r+1}], v{10+cg if half else ad} offset:{16384*s_ + 2048*hh}')
    a(f's_getreg_b32 s6, hwreg(HW_REG_XCC_ID)\ns_and_b32 s31, s6, 15\nv_mov_b32 v{T}, s31')
    a(f's_lshl_b32 s6, s3, 7\ns_add_u32 s6, s6, {XID}\nv_lshlrev_b32 v10, 3, v1')
    a('s_cmp_eq_u32 s4, 0\ns_cselect_b32 exec_lo, 0xffff, 0\ns_mov_b32 exec_hi, 0\ns_cbranch_execz L_nxid')
    a(f'buffer_store_dwordx2 v[{T}:{T+1}], v10, s[16:19], s6 offen sc1')
    a('L_nxid:')
    a('s_mov_b64 exec, -1')
    a('s_waitcnt vmcnt(8)\ns_barrier')
    stamp(4)
    tr_w(1)
    a('s_waitcnt lgkmcnt(0)\ns_barrier')
    a('s_cmp_ge_u32 s3, 28\ns_cbranch_scc1 L_nom1')
    a('s_lshl_b32 s24, s3, 7')
    dma_u1('s52', 's53', 512*3584, 3584, 's24', R1)
    stamp(5)
    a('s_waitcnt vmcnt(8)\ns_branch L_m1d')
    a('L_nom1:')
    a('s_waitcnt vmcnt(0)')
    a('L_m1d:')
    a('s_barrier')
    tr_w(0)
    a('s_waitcnt lgkmcnt(0)\ns_barrier')
    stamp(7)
    a('s_cmp_ge_u32 s3, 28\ns_cbranch_scc1 L_nom2')
    srd(20, 's56', 's57', 1792*1024)
    a('s_and_b32 s6, s4, 1\ns_lshl_b32 s6, s6, 7\nv_lshlrev_b32 v2, 4, v1\nv_xor_b32 v2, s6, v2')
    a('v_xor_b32 v10, 32, v2\nv_xor_b32 v11, 64, v2\nv_xor_b32 v12, 96, v2')
    a(f's_lshl_b32 s27, s3, 16\ns_lshl_b32 s28, s4, 13\ns_add_u32 s27, s27, s28')
    for hh in range(2):
        a('s_mov_b32 m0, s28')
        for i in range(4): a(f'buffer_load_dwordx4 v{(2,10,11,12)[i]}, s[20:23], s27 offen offset:{1024*i} {cfg.NT} lds')
        if hh == 0: a('s_add_u32 s27, s27, 4096\ns_add_u32 s28, s28, 4096')
    stamp(6)
    if cfg.xp & 256: a('s_endpgm')
    if cfg.touch:
        if cfg.mh: a(f's_lshl_b32 s6, s3, 11\ns_add_u32 s6, s6, {MOUT}\nv_lshlrev_b32 v10, 2, v0\nbuffer_load_dword v{DD}, v10, s[16:19], s6 offen sc1')
        else: a(f's_lshl_b32 s6, s3, 12\ns_add_u32 s6, s6, {MOUT}\nbuffer_load_dwordx2 v[{DD}:{DD+1}], v5, s[16:19], s6 offen sc1')
    a('v_and_b32 v10, 7, v1\nv_lshlrev_b32 v10, 1, v10')
    a('s_and_b32 s6, s3, 15\ns_lshl_b32 s6, s6, 5\ns_lshl_b32 s7, s4, 2\ns_add_u32 s6, s6, s7')
    a('v_and_b32 v11, 1, v1\nv_lshl_add_u32 v11, v11, 1, s6\nv_bfe_u32 v12, v1, 4, 1\nv_add_u32 v23, v11, v12')
    a('v_lshlrev_b32 v11, 1, v23\nglobal_load_ushort v24, v11, s[58:59]')
    a('s_lshl_b32 s6, s3, 7\ns_lshl_b32 s7, s4, 4\ns_add_u32 s6, s6, s7')
    a('v_add_u32 v11, s6, v10\nglobal_load_ushort v25, v11, s[54:55]')
    a('L_nom2:')
    if cfg.xp & 256: a('s_endpgm')
    if cfg.touch:
        a(f's_lshl_b32 s6, s3, 10\ns_add_u32 s6, s6, {WOUT}\nv_lshlrev_b32 v10, 4, v1\nbuffer_load_dword v{DD+2}, v10, s[16:19], s6 offen sc1')
    a(f'v_and_b32 v10, 31, v1\nv_lshlrev_b32 v10, 7, v10\ns_mov_b32 s6, {XID}')
    vpoll([f'buffer_load_dwordx2 v[{AT}:{AT+1}], v10, s[16:19], s6 offen sc1'], [AT+1], None, sleep=cfg.slp, tags=True)
    a(f'v_cmp_ne_u32 vcc, s31, v{AT}\ns_cmp_eq_u64 vcc, 0\ns_cselect_b32 s32, 1, 0')
    a('s_cmp_ge_u32 s3, 28\ns_cbranch_scc1 L_wst')
    a('s_barrier')
    tr_u1(F2, R1)
    a('v_lshrrev_b32 v11, 3, v23\nv_lshlrev_b32 v11, 7, v11\nv_and_b32 v12, 7, v23\nv_lshl_add_u32 v11, v12, 3, v11\nv_bfe_u32 v12, v1, 3, 1\nv_lshl_add_u32 v11, v12, 6, v11')
    a(f's_mov_b32 s63, {MODB + 24*1024}')
    for k in range(3): a(f's_mov_b32 s{60+k}, {MODB + 8192*k}')
    a('v_lshlrev_b32 v24, 16, v24\nv_lshlrev_b32 v25, 16, v25')
    a(f'v_mov_b32 v{AT+15}, 0x3f803f80\nds_write_b32 v7, v{AT+15} offset:{ACTM-ACT+3*TS}')
    stamp(1)
    vpoll([f'buffer_load_dwordx4 v[{AT+4*k}:{AT+4*k+3}], v28, s[16:19], s{60+k} offen sc1' for k in range(3)] +
          [f'buffer_load_dwordx2 v[{AT+12}:{AT+13}], v11, s[16:19], s63 offen sc1'], range(AT+1, AT+14, 2), AT+14, sleep=cfg.slpM, tags=True)
    stamp(8)
    a(f'v_mov_b32 v23, v{AT+12}\nv_mov_b32 v16, v{AT}\nv_mov_b32 v17, v{AT+2}')
    a(f'v_add_f32 v18, 1.0, v{AT+8}\nv_add_f32 v19, 1.0, v{AT+10}\nv_cvt_pk_bf16_f32 v{AT+1}, v{AT+4}, v{AT+6}\nv_cvt_pk_bf16_f32 v{AT+3}, v18, v19')
    unpack(18, 19, AT+3); unpack(20, 21, AT+1)
    a(f'ds_write_b32 v7, v{AT+3} offset:{ACTM-ACT+TS}\nds_write_b32 v7, v{AT+1} offset:{ACTM-ACT+2*TS}')
    t = AT + 16
    a(f'v_add_f32 v{t}, v18, v19\nv_mul_f32 v{t+1}, v18, v18\nv_fmac_f32 v{t+1}, v19, v19')
    a(f'v_mul_f32 v{t+2}, v18, v20\nv_fmac_f32 v{t+2}, v19, v21\nv_add_f32 v{t+3}, v20, v21')
    a(f'v_mul_f32 v{t+4}, v20, v20\nv_fmac_f32 v{t+4}, v21, v21')
    red6([t, t+1, t+2, t+3, t+4, t+4], STAT3 - STAT, (t+6, t+7, t+8, t+9))
    a(f'v_bfe_u32 v10, v1, 2, 2\nv_mul_u32_u24 v10, {TS}, v10\nv_add_u32 v10, v10, v4')
    a('s_waitcnt lgkmcnt(0)\ns_barrier')
    gemv(F2, 'v10', off=ACTM-ACT); fold()
    a(f'v_mov_b32 v26, v{Z}\nv_permlane16_swap_b32 v{Z}, v26')
    a(f'v_mov_b32 v27, v{Z}\nv_mov_b32 v28, v26\nv_permlane32_swap_b32 v{Z}, v27\nv_permlane32_swap_b32 v26, v28')
    a('L_wst:')
    if cfg.xp & 64: a('s_endpgm')
    if cfg.dirty:
        a(f's_lshl_b32 s6, s3, 15\ns_add_u32 s6, s6, 0xA0000\nv_lshlrev_b32 v10, 4, v0')
        srd(20, 's14', 's15', 0x200000)
        for i in range(cfg.dirty):
            a(f'buffer_store_dwordx4 v[40:43], v10, s[20:23], s6 offen\ns_add_u32 s6, s6, 8192')
    a('s_lshr_b32 s6, s4, 2\ns_lshl_b32 s24, s6, 3\ns_lshr_b32 s7, s26, 1\ns_add_u32 s24, s24, s7')
    a('s_and_b32 s7, s26, 1\ns_lshl_b32 s7, s7, 1\ns_bfe_u32 s28, s4, 0x10001\ns_add_u32 s7, s7, s28')
    a(f's_lshl_b32 s27, s24, 11\ns_lshl_b32 s29, s7, 3\ns_add_u32 s27, s27, s29\ns_add_u32 s27, s27, {LSE}')
    a(f's_lshl_b32 s60, s24, 14\ns_lshl_b32 s29, s7, 8\ns_add_u32 s60, s60, s29\ns_and_b32 s29, s4, 1\ns_lshl_b32 s29, s29, 7\ns_add_u32 s60, s60, s29\ns_add_u32 s60, s60, {OP}')
    a('s_add_u32 s61, s60, 4096')
    a(f's_mul_i32 s6, s6, 1152\ns_and_b32 s29, s4, 3\ns_lshl_b32 s29, s29, 6\ns_add_u32 s6, s6, s29\ns_add_u32 s6, s6, {ACT}')
    a('v_and_b32 v31, 1, v1\nv_mul_u32_u24 v31, 576, v31\nv_bfe_u32 v10, v1, 1, 4\nv_lshl_add_u32 v31, v10, 2, v31\nv_add_u32 v31, s6, v31')
    a('s_mov_b32 s62, 6144\nv_and_b32 v2, 31, v1\nv_lshlrev_b32 v2, 2, v2\nv_lshrrev_b32 v10, 5, v1\nv_mad_u32_u24 v2, v10, s62, v2')
    a(f's_lshl_b32 s29, s3, 10\ns_add_u32 s29, s29, {WOUT}')
    a('v_and_b32 v11, 2, v1\nv_cmp_eq_u32 vcc, 0, v11\nv_mov_b32 v11, 0xeeee\nv_mov_b32 v22, 0x4444\nv_cndmask_b32 v22, v11, v22, vcc')
    for r in range(8): a(f'v_mov_b32 v{DD+r}, 0')
    a('v_bfe_u32 v8, v1, 1, 2\nv_lshlrev_b32 v8, 4, v8\nv_bfe_u32 v11, v1, 4, 1\nv_lshl_add_u32 v8, v11, 6, v8\nv_bfe_u32 v11, v1, 3, 1\nv_lshl_add_u32 v8, v11, 7, v8')
    a('v_lshl_add_u32 v8, v10, 2, v8\ns_lshr_b32 s6, s4, 1\ns_lshl_b32 s6, s6, 8\ns_and_b32 s7, s4, 1\ns_lshl_b32 s7, s7, 3\ns_add_u32 s6, s6, s7\nv_add_u32 v8, s6, v8')
    a(f'v_lshlrev_b32 v10, 7, v1\nv_mov_b32 v{AT}, 0xff800000')
    stamp(9)
    a(f's_mov_b64 exec, {(1 << NCH) - 1:#x}')
    vpoll([f'buffer_load_dwordx2 v[{AT}:{AT+1}], v10, s[16:19], s27 offen sc1'], [AT+1], None, sleep=cfg.slp, tags=True)
    a('s_mov_b64 exec, -1')
    if cfg.diag is not None and cfg.diag >= 90:
        op = 'min' if cfg.diag == 99 else 'max'
        a(f'v_mov_b32 v{AT+2}, ' + ('0' if cfg.dk else 's64') + f'\ns_mov_b64 exec, {(1 << NCH) - 1:#x}\nbuffer_load_dword v{AT+2}, v10, s[16:19], s27 offen offset:64 sc1\ns_waitcnt vmcnt(0)\ns_mov_b64 exec, -1')
        if not cfg.dk: a(f'v_subrev_u32 v{AT+2}, s64, v{AT+2}')
        if cfg.diag >= 98:
            for r in (1, 2, 4, 8): a(f'v_{op}_i32_dpp v{AT+2}, v{AT+2}, v{AT+2} row_ror:{r} row_mask:0xf bank_mask:0xf')
        a(f'v_readlane_b32 s92, v{AT+2}, {0 if cfg.diag >= 98 else cfg.diag - 90}\ns_add_u32 s92, s92, 250\ns_add_u32 s92, s92, s64')
    a(f'v_mov_b32 v{AT+1}, v{AT}')
    for r in (1, 2, 4, 8): a(f'v_max_f32_dpp v{AT+1}, v{AT+1}, v{AT+1} row_ror:{r} row_mask:0xf bank_mask:0xf')
    a(f'v_sub_f32 v{AT}, v{AT}, v{AT+1}\nv_exp_f32 v{AT}, v{AT}\nv_mov_b32 v{AT+1}, v{AT}')
    for r in (1, 2, 4, 8): a(f'v_add_f32_dpp v{AT+1}, v{AT+1}, v{AT+1} row_ror:{r} row_mask:0xf bank_mask:0xf')
    a(f'v_rcp_f32 v{AT+1}, v{AT+1}\nv_mul_f32 v{AT}, v{AT}, v{AT+1}')
    a('v_lshrrev_b32 v10, 5, v1\nv_mul_u32_u24 v10, 24, v10')
    for i in range(6):
        a(f'ds_bpermute_b32 v{AT+24+i}, v10, v{AT} offset:{4*i}')
    a('s_waitcnt lgkmcnt(0)')
    wl = [f'buffer_load_dword v{AT+c}, v2, s[16:19], s{60+(c>>2)} offen offset:{1024*(c&3)} sc1' for c in range(6)]
    if cfg.mp & 1: mpoll([(wl[c], [AT+c]) for c in range(6)], AT+12)
    else: vpoll(wl, [AT+c for c in range(6)], AT+12)
    stamp(10)
    acc = AT + 20
    for c in range(6):
        tq = AT + 8 + 2*c
        unpack(tq, tq+1, AT+c)
    for c in range(6):
        tq = AT + 8 + 2*c; wp = AT + 24 + (c & ~1)
        mod = 'op_sel_hi:[1,0,1]' if (c & 1) == 0 else 'op_sel:[0,1,0] op_sel_hi:[1,1,1]'
        mod2 = 'op_sel_hi:[1,0]' if (c & 1) == 0 else 'op_sel:[0,1] op_sel_hi:[1,1]'
        ac = acc + 2*(c & 1)
        if c < 2: a(f'v_pk_mul_f32 v[{ac}:{ac+1}], v[{tq}:{tq+1}], v[{wp}:{wp+1}] {mod2}')
        else: a(f'v_pk_fma_f32 v[{ac}:{ac+1}], v[{tq}:{tq+1}], v[{wp}:{wp+1}], v[{ac}:{ac+1}] {mod}')
    a(f'v_pk_add_f32 v[{acc}:{acc+1}], v[{acc}:{acc+1}], v[{acc+2}:{acc+3}]')
    a(f'v_permlane32_swap_b32 v{acc}, v{acc+1}')
    a(f'v_add_f32 v{acc}, v{acc}, v{acc+1}')
    a(f'v_mov_b32 v{acc+1}, v{acc}\nv_permlane32_swap_b32 v{acc}, v{acc+1}')
    a(f's_mov_b64 exec, 0xffffffff\nv_cvt_pk_bf16_f32 v{acc}, v{acc}, v{acc+1}\nds_write_b32 v31, v{acc}\ns_mov_b64 exec, -1')
    fst(7)
    a('s_waitcnt lgkmcnt(0)\ns_barrier')
    fst(8)
    sgemv([F0, F1], [DD, Z], 'v4', 'v22')
    a(f'v_add_f32_dpp v10, v{DD}, v{DD+2} quad_perm:[0,1,2,3] row_mask:0x1 bank_mask:0xf')
    a(f'v_add_f32_dpp v10, v{DD+1}, v{DD+3} quad_perm:[0,1,2,3] row_mask:0x2 bank_mask:0xf')
    a(f'v_add_f32_dpp v10, v{Z}, v{Z+2} quad_perm:[0,1,2,3] row_mask:0x4 bank_mask:0xf')
    a(f'v_add_f32_dpp v10, v{Z+1}, v{Z+3} quad_perm:[0,1,2,3] row_mask:0x8 bank_mask:0xf')
    a('s_cmp_lg_u32 s32, 0')
    a('v_mov_b32_dpp v11, v10 quad_perm:[1,1,3,3] row_mask:0xf bank_mask:0xf')
    a('s_mov_b32 exec_lo, 0x55555555\ns_mov_b32 exec_hi, 0x55555555')
    a('v_cvt_pk_bf16_f32 v11, v10, v11')
    store2('buffer_store_dword v11, v8, s[16:19], s29 offen')
    a('s_mov_b64 exec, -1')
    stamp(11)
    a('s_cmp_ge_u32 s3, 28\ns_cbranch_scc1 L_hdone')

    a('v_lshrrev_b32 v10, 4, v1\nv_bfe_u32 v11, v1, 2, 2\nv_lshl_add_u32 v10, v10, 3, v11\nv_lshlrev_b32 v10, 10, v10')
    a(f'v_and_b32 v11, 3, v1\nv_lshl_add_u32 v10, v11, 3, v10')
    a('v_bfe_u32 v11, v1, 2, 3\nv_lshlrev_b32 v11, 5, v11\ns_lshl_b32 s6, s4, 7\nv_xor_b32 v11, s6, v11')
    for cg in range(4):
        a(f'v_xor_b32 v12, {32*cg}, v11\nv_add_u32 v{60+cg}, v10, v12')
    for cg in range(4):
        for s in range(2):
            for hh in range(2):
                r = F1 + (cg*2 + s)*4 + 2*hh
                a(f'ds_read_b64_tr_b16 v[{r}:{r+1}], v{60+cg} offset:{32768*s + 4096*hh}')
    a(f's_lshl_b32 s60, s4, 8\ns_add_u32 s60, s60, {WOUT}\ns_add_u32 s61, s60, 4096')
    a('v_and_b32 v59, 15, v1\nv_lshlrev_b32 v59, 4, v59\nv_lshrrev_b32 v58, 4, v1\nv_lshl_add_u32 v59, v58, 13, v59')
    wloads = [f'buffer_load_dwordx4 v[{AT+4*k}:{AT+4*k+3}], v59, s[16:19], s{60+(k>>1)} offen offset:{2048*(k&1)} sc1' for k in range(4)]
    for x in wloads: a(x)
    a(f'v_bfe_u32 v10, v1, 3, 1\nv_lshlrev_b32 v40, 5, v10\nv_add_u32 v40, {STAT}, v40')
    a(f'ds_read_b128 v[68:71], v40 offset:{STAT3-STAT}\nds_read_b32 v30, v40 offset:{STAT3-STAT+16}')
    a('v_bfe_u32 v11, v1, 1, 1\nv_lshl_add_u32 v41, v10, 1, v11\nv_lshlrev_b32 v41, 6, v41\nv_and_b32 v12, 4, v1\nv_add_u32 v41, v41, v12')
    a(f'v_and_b32 v12, 1, v1\nv_lshl_add_u32 v41, v12, 1, v41\ns_lshl_b32 s6, s4, 3\ns_add_u32 s6, s6, {HID}\nv_add_u32 v41, s6, v41')
    a(f'v_lshl_add_u32 v42, v12, 1, v11\nv_lshlrev_b32 v42, 6, v42\nv_and_b32 v45, 48, v1\nv_add_u32 v42, v42, v45\nv_add_u32 v42, {HID}, v42')
    a(f'v_and_b32 v43, 7, v1\nv_mul_u32_u24 v43, 288, v43\nv_add_u32 v43, v43, v45\nv_add_u32 v43, {AS}, v43')
    a('v_bfe_u32 v46, v1, 2, 1\nv_lshl_add_u32 v46, v12, 2, v46\nv_mul_u32_u24 v46, 288, v46\nv_lshl_add_u32 v46, v11, 2, v46\nv_lshrrev_b32 v11, 3, v1\nv_lshl_add_u32 v46, v11, 3, v46')
    a(f's_lshr_b32 s6, s4, 2\ns_mul_i32 s6, s6, 576\ns_and_b32 s7, s4, 3\ns_lshl_b32 s7, s7, 6\ns_add_u32 s6, s6, s7\ns_add_u32 s6, s6, {AS}\nv_add_u32 v46, s6, v46')
    a('v_and_b32 v11, 4, v1\nv_cmp_eq_u32 vcc, 0, v11\nv_mov_b32 v11, 0xeeee\nv_mov_b32 v47, 0x4444\nv_cndmask_b32 v47, v11, v47, vcc')
    for r in range(4): a(f'v_mov_b32 v{DD+r}, 0')
    a('s_and_b32 s6, s3, 15\ns_lshl_b32 s6, s6, 5\ns_lshl_b32 s7, s4, 2\ns_add_u32 s6, s6, s7')
    a('v_and_b32 v11, 1, v1\nv_lshl_add_u32 v11, v11, 1, s6')
    a('v_lshrrev_b32 v12, 1, v1\nv_lshlrev_b32 v44, 11, v12\nv_lshl_add_u32 v44, v11, 2, v44\nv_lshlrev_b32 v45, 2, v0' if cfg.mh else 'v_lshrrev_b32 v12, 1, v1\nv_lshlrev_b32 v44, 12, v12\nv_lshl_add_u32 v44, v11, 3, v44')
    a('v_bfe_u32 v12, v1, 4, 1\nv_add_u32 v11, v11, v12')
    a(f'v_lshlrev_b32 v48, 11, v10\nv_lshl_add_u32 v48, v11, 2, v48\nv_add_u32 v48, {X1}, v48')
    a('v_lshlrev_b32 v49, 10, v10\nv_lshl_add_u32 v49, v11, 1, v49')
    a(f's_add_u32 s20, s14, {MOUT}\ns_addc_u32 s21, s15, 0\ns_mov_b32 s22, {28*(2048 if cfg.mh else 4096)}\ns_mov_b32 s23, 0x20000')
    a(f's_lshl_b32 s24, s3, {11 if cfg.mh else 12}')
    a(f's_mov_b32 s40, {f2u(1/512)}\ns_mov_b32 s41, {f2u(1e-5)}\ns_mov_b32 s42, {f2u(0.044715)}\ns_mov_b32 s43, {f2u(-2*math.sqrt(2/math.pi)*LOG2E)}')
    a('v_and_b32 v50, 1, v1\nv_lshlrev_b32 v50, 4, v50\nv_mov_b32 v51, 0x3f80\nv_lshlrev_b32 v50, v50, v51\nv_bfe_u32 v51, v1, 2, 2')
    for i in range(4): a(f'v_cmp_eq_u32 vcc, {i}, v51\nv_cndmask_b32 v{64+i}, 0, v50, vcc')
    a('s_waitcnt lgkmcnt(0)')
    a(f's_mov_b32 s45, {f2u(2/512)}\nv_mov_b32 v50, s41')
    a('v_mul_f32 v68, s40, v68\nv_mul_f32 v69, s40, v69\nv_mul_f32 v70, s45, v70\nv_mul_f32 v71, s40, v71\nv_fma_f32 v30, v30, s40, v50')
    a(f'v_lshrrev_b32 v50, 3, v1\nv_mov_b32 v51, s40\nv_cmp_eq_u32 vcc, 5, v50\nv_mov_b32 v58, s45\nv_cndmask_b32 v51, v51, v58, vcc\nv_cmp_eq_u32 vcc, 4, v50\nv_cndmask_b32 v51, v51, -v58, vcc')
    a('v_mov_b32 v29, v9\nv_mov_b32 v31, v13')
    Q = (0, 60, 6, 10)
    for q_ in Q:
        for r in range(4): a(f'v_mov_b32 v{q_+r}, 0')
    if cfg.mp & 2: mpoll([(wloads[k], range(AT+4*k, AT+4*k+4)) for k in range(4)], AT+20, first_issued=True)
    else: vpoll(wloads, [AT+k for k in range(16)], AT+20, first_issued=True)
    stamp(12)
    V = AT + 16
    for k in range(4):
        c0 = '0' if k == 0 else f'v[{V}:{V+3}]'
        a(f'v_mfma_f32_16x16x32_bf16 v[{V}:{V+3}], v[64:67], v[{AT+4*k}:{AT+4*k+3}], {c0}')
    s0, s1 = V, V+1
    x0, x1, a0, a1 = AT+12, AT+13, AT+14, AT+15
    a(f'v_fma_f32 v{x0}, v16, v{s0}, v14\nv_fma_f32 v{x1}, v17, v{s1}, v15')
    a(f'v_mul_f32 v{a0}, v{x0}, v18\nv_mul_f32 v{a1}, v{x1}, v19')
    a(f'v_cvt_pk_bf16_f32 v{AT}, v{a0}, v{a1}\nds_write_b32 v46, v{AT}\nds_write_b64 v29, v[{x0}:{x1}]')
    fst(1)
    t = AT + 20
    a(f'v_add_f32 v{t}, v{x0}, v{x1}\nv_mul_f32 v{t+1}, v{x0}, v{x0}\nv_add_f32 v{t+2}, v{a0}, v{a1}\nv_mul_f32 v{t+3}, v{a0}, v{a0}')
    a(f'v_mul_f32 v{t+4}, v{a0}, v18\nv_mul_f32 v{t+5}, v{a0}, v20')
    a(f'v_fmac_f32 v{t+1}, v{x1}, v{x1}\nv_fmac_f32 v{t+3}, v{a1}, v{a1}\nv_fmac_f32 v{t+4}, v{a1}, v19\nv_fmac_f32 v{t+5}, v{a1}, v21')
    red6([t, t+1, t+2, t+3, t+4, t+5], 0, (t+6, t+7, t+8, t+9), 'v51', 'v31')
    fst(2)
    a('s_waitcnt lgkmcnt(0)')
    fst(9)
    a('s_barrier')
    fst(3)
    if not cfg.sord: a('ds_read_b128 v[52:55], v40\nds_read_b64 v[56:57], v40 offset:16')
    fill = [
        'v_fma_f32 v53, -v52, v52, v53',
        'v_fma_f32 v56, v52, v69, v56',
        'v_max_f32 v53, s41, v53',
        'v_fma_f32 v54, -v52, v68, v54',
        'v_rsq_f32 v53, v53',
        'v_fma_f32 v55, v52, v56, v55',
        'v_fma_f32 v57, -v52, v70, v57',
        'v_fma_f32 v55, v53, v55, v57',
        'v_fma_f32 v54, v53, v54, v71',
        'v_mul_f32 v52, v52, v53',
        'v_fma_f32 v55, v53, v55, v30',
        'v_fma_f32 v56, -v52, v26, v27',
        'v_fma_f32 v55, -v54, v54, v55',
        'v_fma_f32 v56, -v54, v28, v56',
        'v_max_f32 v55, s41, v55',
        'v_rsq_f32 v55, v55',
    ]
    sgemv([F2], [DD], 'v43', 'v47', fill=fill, lead=cfg.lead); fold()
    a(f'v_mov_b32 v{T}, v{Z}\nv_permlane16_swap_b32 v{Z}, v{T}\nv_add_f32 v{Z}, v{Z}, v{T}')
    fst(4)
    if cfg.mtag: a('v_mov_b32 v15, s33')
    ge = [f'v_fma_f32 v{Z}, v{Z}, v53, v56', f'v_fma_f32 v{Z}, v{Z}, v55, v25', f'v_mul_f32 v{T}, v{Z}, v{Z}', f'v_mul_f32 v{T+1}, s43, v{Z}',
          f'v_fma_f32 v{T}, v{T}, s42, 1.0', f'v_mul_f32 v{T}, v{T}, v{T+1}', f'v_exp_f32 v{T}, v{T}', f'v_add_f32 v{T}, 1.0, v{T}',
          f'v_rcp_f32 v{T}, v{T}', f'v_mul_f32 v{T}, v{T}, v{Z}', f'v_cvt_pk_bf16_f32 v{T}, v{T}, v{T}']
    for x in ge: a(x)
    a(f's_mov_b64 exec, 0xffff\nds_write_b16 v41, v{T}\ns_mov_b64 exec, -1')
    fst(5)
    a('s_waitcnt lgkmcnt(0)\ns_barrier')
    fst(6)
    a(f'ds_read_b128 v[{AT}:{AT+3}], v42')
    a(f'ds_read_b32 v52, v48')
    a(f's_waitcnt lgkmcnt(1)')
    for cg in range(4):
        ac = Q[cg]; fr = F1 + cg*8
        a(f'v_smfmac_f32_16x16x64_bf16 v[{ac}:{ac+3}], v[{AT}:{AT+3}], v[{fr}:{fr+7}], v22')
    y = AT + 8
    a('s_cmp_lg_u32 s32, 0')
    for cg in range(4):
        ac = Q[cg]
        for r in range(2): a(f'v_add_f32_dpp v{y+r}, v{ac+r}, v{ac+2+r} quad_perm:[0,1,2,3] row_mask:{1 << cg:#x} bank_mask:0xf')
    if cfg.mh:
        a(f'v_cvt_pk_bf16_f32 v14, v{y}, v{y+1}')
        store2('buffer_store_dword v14, v45, s[20:23], s24 offen')
    elif cfg.mtag:
        a(f'v_cvt_pk_bf16_f32 v14, v{y}, v{y+1}')
        store2(f'buffer_store_dwordx2 v[14:15], v5, s[20:23], s24 offen')
    else: store2(f'buffer_store_dwordx2 v[{y}:{y+1}], v5, s[20:23], s24 offen')
    stamp(13)
    a('s_cmp_ge_u32 s3, 16\ns_cbranch_scc1 L_hdone')
    fl = [f'buffer_load_dwordx2 v[{AT+4}:{AT+5}], v44, s[20:23], 0 offen sc1' if cfg.mh else f'buffer_load_dwordx4 v[{AT}:{AT+3}], v44, s[20:23], 0 offen sc1']
    if cfg.mtag: a(f'v_mov_b32 v{AT}, 0\nv_mov_b32 v{AT+2}, 0\ns_mov_b32 exec_hi, 0xffffff')
    a(fl[0])
    srd(24, 's46', 's47', 2048)
    a('s_waitcnt lgkmcnt(0)\nv_fma_f32 v52, v23, v24, v52')
    if cfg.mh:
        vpoll(fl, [AT+4, AT+5], AT+8, first_issued=True)
        a(f'v_lshlrev_b32 v{AT}, 16, v{AT+4}\nv_lshlrev_b32 v{AT+2}, 16, v{AT+5}\nv_and_b32 v{AT+1}, 0xffff0000, v{AT+4}\nv_and_b32 v{AT+3}, 0xffff0000, v{AT+5}')
    elif cfg.mtag:
        vpoll(fl, [AT+1, AT+3], AT+8, first_issued=True, tags=True)
        a('s_mov_b32 exec_hi, -1')
        a(f'v_and_b32 v{AT+1}, 0xffff0000, v{AT}\nv_and_b32 v{AT+3}, 0xffff0000, v{AT+2}\nv_lshlrev_b32 v{AT}, 16, v{AT}\nv_lshlrev_b32 v{AT+2}, 16, v{AT+2}')
    elif cfg.mp & 4: mpoll([(fl[0], range(AT, AT+4))], AT+8, first_issued=True)
    else: vpoll(fl, [AT+k for k in range(4)], AT+8, first_issued=True)
    if cfg.diag is None or cfg.diag < 90: stamp(14)
    a(f'v_add_f32_dpp v{Z}, v{AT}, v{AT} row_ror:8 row_mask:0xf bank_mask:0x3')
    a(f'v_add_f32_dpp v{T}, v{AT+2}, v{AT+2} row_ror:8 row_mask:0xf bank_mask:0x3')
    a(f'v_add_f32_dpp v{Z}, v{AT+1}, v{AT+1} row_ror:8 row_mask:0xf bank_mask:0xc')
    a(f'v_add_f32_dpp v{T}, v{AT+3}, v{AT+3} row_ror:8 row_mask:0xf bank_mask:0xc')
    a(f'v_permlane16_swap_b32 v{Z}, v{T}\nv_add_f32 v{Z}, v{Z}, v{T}')
    a(f'v_mov_b32 v{T}, v{Z}\nv_permlane32_swap_b32 v{Z}, v{T}\nv_add_f32 v{Z}, v{Z}, v{T}')
    a(f'v_add_f32_dpp v{Z}, v{Z}, v{Z} quad_perm:[2,3,0,1] row_mask:0xf bank_mask:0xf')
    a(f'v_add_f32_dpp v{Z}, v{Z}, v{Z} row_shl:4 row_mask:0xf bank_mask:0x5')
    a(f'v_fma_f32 v{Z}, v23, v{Z}, v52')
    if cfg.diag is not None:
        a('s_or_b32 s6, s3, s4\ns_cmp_lg_u32 s6, 0\ns_cbranch_scc1 L_ndiag')
        a('s_memrealtime s[94:95]\ns_waitcnt lgkmcnt(0)\ns_sub_u32 s6, s94, s64')
        a(f's_cmp_lt_u32 s6, {cfg.T0}\ns_cbranch_scc1 L_ndiag\ns_cmp_eq_u32 s96, s97\ns_cbranch_scc1 L_ndiag\ns_cmp_eq_u32 s32, {cfg.gate}\ns_cbranch_scc1 L_ndiag')
        a('s_cmp_eq_u32 s98, s99\ns_cbranch_scc1 L_ndiag')
        a(f's_sub_u32 s6, s{64+2*cfg.diag if cfg.diag < 90 else 92}, s{64+2*cfg.dsub}\ns_add_u32 s6, s6, {100 if cfg.dsub else 0}\nv_cvt_f32_u32 v10, s6\ns_mov_b64 exec, 1\nv_add_f32 v{Z}, v{Z}, v10\ns_mov_b64 exec, -1')
        a('L_ndiag:')
    if cfg.enc:
        a('s_or_b32 s6, s3, s4\ns_cmp_lg_u32 s6, 0\ns_cbranch_scc1 L_nenc')
        a(f's_memrealtime s[94:95]\ns_waitcnt lgkmcnt(0)\ns_sub_u32 s6, s94, s64\ns_sub_u32 s7, s{64+2*cfg.enc}, s64')
        a('v_mov_b32 v10, s6\nv_mov_b32 v11, s7\nv_and_b32 v12, 8, v1\nv_cmp_eq_u32 vcc, 0, v12\nv_cndmask_b32 v10, v11, v10, vcc')
        a('v_and_b32 v11, 1, v1\nv_lshlrev_b32 v11, 1, v11\nv_bfe_u32 v12, v1, 4, 1\nv_add_u32 v11, v11, v12\nv_mul_u32_u24 v11, 3, v11')
        a(f'v_lshrrev_b32 v10, v11, v10\nv_and_b32 v10, 7, v10\nv_cvt_f32_u32 v10, v10\nv_add_f32 v{Z}, v{Z}, v10')
        a('L_nenc:')
    a(f's_mov_b64 exec, 0x03030303')
    a(f'v_cvt_pk_bf16_f32 v{T}, v{Z}, v{Z}')
    a(f'buffer_store_short v{T}, v49, s[24:27], 0 offen {cfg.fst}')
    a('s_or_b32 s6, s3, s4\ns_cmp_lg_u32 s6, 0\ns_cbranch_scc1 L_noep')
    a(f's_mov_b64 exec, 1\nv_mov_b32 v10, {EPO}\nv_mov_b32 v11, s33\nbuffer_store_dword v11, v10, s[16:19], 0 offen')
    a('L_noep:')
    a('s_mov_b64 exec, -1')
    stamp(15)
    a('L_hdone:')
    if cfg.stamps:
        a(f's_cmp_lg_u32 s4, {cfg.sw}\ns_cbranch_scc1 L_end')
        stamps_out(16, 0)
        a('s_cmp_lg_u32 s2, 0\ns_cbranch_scc1 L_end')
        for n, i in enumerate((1, 4, 7, 8, 9, 10, 11, 12, 13, 14, 15)):
            a(f's_sub_u32 s60, s{64+2*i}, s64\nv_mov_b32 v4, s60\nglobal_store_dword v2, v4, s[12:13] offset:{16+4*n}')
        a('v_mov_b32 v4, s32\nglobal_store_dword v2, v4, s[12:13]')
        a('s_waitcnt vmcnt(0)')
    a('L_end:')
    a('s_endpgm')
    return wrap(a.finalize(), 256, 768, LDS_TOTAL, 168, sgpr=102)

if __name__ == '__main__':
    out = sys.argv[1]
    for o in sys.argv[2:]:
        k, v = o.split('=')
        setattr(cfg, k, eval(v))
    open(out, 'w').write(gen())
```

```python
import sys, math, struct
from asmlib import *
from gen_common import *

class Cfg:
    stamps = False
    NT = 'nt'
    warm = True
    prio = True
    slp = 2
    qslp = 4
    thS = 63
    thV = 63
    pre = 3
    touch = True
    diag = None
    fine = False
    sw = 0
    mp = 2
    enc = 0
    lay = 1
    lead = 2
    qlate = 1
    p1c = False
    qobs = False
    rot = 0
    RK = 86
    xp = 0
    hptr = False
    mh = True
    pw = 0
    sord = True
    pf = 0
    hfirst = 1
    dk = 0
    dk0 = 0
    dsub = 0
    mtag = False
    owarm = 0
    fst = ''
    pe = True
    mlate = 0
    slpB = 2
    slpM = 2
    tx = 0
    tlbw = 0
    lst = ''
    ost = 'sc1'
    il = False
    bias = (0, 0, 0, 0, 0, 0, 0)
    dirty = 0
    nth = 10
    T0 = 1900
    gate = 0
    apre = 0
    fast = True
cfg = Cfg()

MODA=0; MODB=0x8000; QO=0x10000; XID=0x18000; EPO=0x1A800; WOUT=0x1C000; MOUT=0x24000; OP=0x40000; STMP=0x80000; LSE=0x90000; WS_SZ=0x100000
NCH = 12
KW=36864; PREG=147456; ZERO=153600; ST=154176; QL=154368; QF=155392; SCR=0; LDS_TOTAL=155648
R0=0; R1=65536; ACT=131072; ACTC=133376; ACTM=135680; TS=2336; HID=145024; STAT=145408; STAT2=145472; STAT3=145536; X1=145664; AS=149760
LIMIT = 1000000
LOG2E = 1.4426950408889634
def f2u(x): return '0x%08x' % struct.unpack('<I', struct.pack('<f', x))[0]

def gtab():
    d = list(cfg.bias); assert sum(d) == 0
    g = [0]
    for k in range(6): g.append(g[-1] + d[(2*k) % 7])
    return g
def chunk_start(p, c):
    g = gtab(); pos = (4*(p + 4)) % 7
    tot = g[(pos + 12) % 7] - g[pos]
    return ((c*(8192 - tot)*21846) >> 18) + g[(pos + c) % 7] - g[pos]

def gen():
    a = Asm()
    uid = [0]
    def lab(p):
        uid[0] += 1; return f'L_{p}_{uid[0]}'
    def stamp(i):
        if cfg.stamps: a(f's_memrealtime s[{64+2*i}:{65+2*i}]')
    def fst(i):
        if cfg.fine: stamp(i)
    def stamps_out(n, base_slot):
        if not cfg.stamps: return
        a('s_waitcnt lgkmcnt(0)')
        a('s_mov_b64 exec, 1')
        a(f's_lshl_b32 s60, s2, 7\ns_add_u32 s60, s60, {STMP + base_slot*8}')
        a('v_mov_b32 v2, 0')
        for i in range(n):
            a(f'v_mov_b32 v4, s{64+2*i}\nv_mov_b32 v5, s{65+2*i}')
            a(f'buffer_store_dwordx2 v[4:5], v2, s[16:19], s60 offen offset:{8*i}')
        a('s_waitcnt vmcnt(0)')
    def srd(d, lo, hi, size):
        a(f's_mov_b32 s{d}, {lo}\ns_mov_b32 s{d+1}, {hi}\ns_mov_b32 s{d+2}, {size}\ns_mov_b32 s{d+3}, 0x20000')
    def epoch_load():
        a(f's_load_dword s33, s[14:15], {EPO}')
    def epoch_tag():
        a('s_mul_i32 s33, s33, 0x9E3779B1\ns_add_u32 s33, s33, 0x85EBCA6B')
    def red3(op, regs, tmp):
        rs = list(regs)
        if len(rs) == 1: return rs[0]
        first = True
        while rs:
            if first:
                if len(rs) >= 3: a(f'v_{op}3_u32 v{tmp}, v{rs[0]}, v{rs[1]}, v{rs[2]}'); rs = rs[3:]
                else: a(f'v_{op}_u32 v{tmp}, v{rs[0]}, v{rs[1]}'); rs = rs[2:]
                first = False
            elif len(rs) >= 2: a(f'v_{op}3_u32 v{tmp}, v{tmp}, v{rs[0]}, v{rs[1]}'); rs = rs[2:]
            else: a(f'v_{op}_u32 v{tmp}, v{tmp}, v{rs[0]}'); rs = rs[1:]
        return tmp
    def vpoll(loads, regs, tmp, sleep=0, first_issued=False, tags=False, dbg=None, first_cnt=0):
        l = lab('vp'); d = lab('vd'); w = lab('vw')
        a('s_mov_b32 s30, 0')
        if first_issued: a(f's_waitcnt vmcnt({first_cnt})\ns_branch {w}')
        a(f'{l}:')
        for x in loads: a(x)
        a('s_add_u32 s30, s30, 1')
        a('s_waitcnt vmcnt(0)')
        if first_issued: a(f'{w}:')
        if dbg is not None and cfg.stamps:
            p, q_, n_ = dbg
            a(f's_mov_b64 s[{64+2*p}:{65+2*p}], s[{64+2*q_}:{65+2*q_}]')
            stamp(q_); a('s_waitcnt lgkmcnt(0)')
            a(f's_add_u32 s{64+2*n_}, s64, s30\ns_mov_b32 s{65+2*n_}, s65')
        if tags:
            m = red3('max', regs, tmp)
            if len(list(regs)) > 1:
                n = red3('min', regs, tmp + 1)
                a(f'v_cmp_ne_u32 vcc, s33, v{m}\nv_cmp_ne_u32 s[34:35], s33, v{n}\ns_or_b64 vcc, vcc, s[34:35]')
            else:
                a(f'v_cmp_ne_u32 vcc, s33, v{m}')
        else:
            m = red3('max', regs, tmp)
            a(f'v_cmp_eq_u32 vcc, -1, v{m}')
        a(f's_cbranch_vccz {d}')
        if sleep: a(f's_sleep {sleep}')
        a(f's_cmp_lt_u32 s30, {LIMIT}\ns_cbranch_scc1 {l}')
        a(f'{d}:')
    def mpoll(items, tmp, first_issued=False):
        l = lab('mp'); d = lab('md')
        a('s_mov_b32 s30, 0')
        if not first_issued:
            for ld, regs in items: a(ld)
        a(f'{l}:')
        a('s_waitcnt vmcnt(0)')
        ms = []
        for k, (ld, regs) in enumerate(items):
            ms.append(red3('max', regs, tmp + k))
        for k, m in enumerate(ms):
            a(f'v_cmp_eq_u32 s[{48+2*k}:{49+2*k}], -1, v{m}')
        n = len(items)
        if n == 1:
            a('s_cmp_eq_u64 s[48:49], 0\ns_cbranch_scc1 ' + d)
        else:
            a('s_or_b64 s[34:35], s[48:49], s[50:51]')
            for k in range(2, n): a(f's_or_b64 s[34:35], s[34:35], s[{48+2*k}:{49+2*k}]')
            a(f's_cbranch_scc0 {d}')
        for k, (ld, regs) in enumerate(items):
            a(f's_mov_b64 exec, s[{48+2*k}:{49+2*k}]')
            a(ld)
        a('s_mov_b64 exec, -1')
        a(f's_add_u32 s30, s30, 1\ns_cmp_lt_u32 s30, {LIMIT}\ns_cbranch_scc1 {l}')
        a('s_waitcnt vmcnt(0)')
        a(f'{d}:')
    def pspin(va, vd):
        l = lab('ps'); d = lab('pd')
        a(f'v_mov_b32 {va}, {QF}\ns_mov_b32 s30, 0')
        a(f'{l}:')
        a(f'ds_read_b32 {vd}, {va} offset:4\ns_add_u32 s30, s30, 1\ns_waitcnt lgkmcnt(0)')
        a(f'v_cmp_ne_u32 vcc, 4, {vd}\ns_cbranch_vccz {d}')
        a(f's_sleep 1\ns_cmp_lt_u32 s30, {LIMIT*8}\ns_cbranch_scc1 {l}')
        a(f'{d}:')
    def dma_u1(lo, hi, size, RS, sbase, region, setup=True, i0=0, i1=8):
        if setup:
            a('v_bfe_u32 v10, v1, 4, 1\nv_and_b32 v12, 7, v1\nv_xor_b32 v10, v10, v12')
            a('s_and_b32 s27, s4, 4\nv_xor_b32 v10, s27, v10')
            a(f'v_lshrrev_b32 v2, 3, v1\nv_mul_u32_u24 v2, {RS}, v2\nv_xor_b32 v12, 2, v10')
            a('v_lshl_add_u32 v12, v12, 4, v2\nv_lshl_add_u32 v2, v10, 4, v2')
        srd(20, lo, hi, size)
        if cfg.xp & 4:
            a(f'v_lshlrev_b32 v2, 4, v1\nv_mov_b32 v12, v2\ns_lshl_b32 s27, s3, 16\ns_lshl_b32 s28, s4, 13\ns_add_u32 s27, s27, s28\ns_add_u32 s27, s27, {(region and RS == 8192) * 2097152}')
            RS = 128
        else: a(f's_mul_i32 s27, s4, {64*RS}\ns_add_u32 s27, s27, {sbase}')
        if i0: a(f's_add_u32 s27, s27, {8*RS*i0}')
        a(f's_lshl_b32 s28, s4, 13')
        if region + i0: a(f's_add_u32 s28, s28, {region + 1024*i0}')
        for i in range(i0, i1):
            a('s_mov_b32 m0, s28')
            if i < i1-1: a('s_add_u32 s28, s28, 1024')
            a(f'buffer_load_dwordx4 v{12 if i & 1 else 2}, s[20:23], s27 offen {cfg.NT} lds')
            if i < i1-1: a(f's_add_u32 s27, s27, {8*RS}')

    def dma_w(i0, i1, setup=True):
        if setup:
            a('s_and_b32 s6, s4, 1\ns_lshl_b32 s6, s6, 6\ns_and_b32 s7, s4, 4\ns_lshl_b32 s7, s7, 5\ns_or_b32 s6, s6, s7')
            a('v_lshlrev_b32 v2, 4, v1\nv_and_b32 v2, 0x1f0, v2\nv_and_b32 v10, 32, v1\nv_xor_b32 v2, v2, v10\nv_xor_b32 v2, s6, v2\nv_lshl_add_u32 v2, v10, 5, v2')
        srd(20, 's50', 's51', 4096*1024)
        if cfg.xp & 4: a(f'v_lshlrev_b32 v2, 4, v1\ns_lshl_b32 s27, s3, 17\ns_lshl_b32 s28, s4, 10\ns_add_u32 s27, s27, s28\ns_add_u32 s27, s27, {8192*i0}')
        else: a(f's_lshl_b32 s27, s4, 11\ns_add_u32 s27, s27, s24\ns_add_u32 s27, s27, {16384*i0}')
        a(f's_lshl_b32 s28, s4, 10\ns_add_u32 s28, s28, {8192*i0}')
        for i in range(i0, i1):
            a('s_mov_b32 m0, s28')
            if i < i1-1: a('s_add_u32 s28, s28, 8192')
            a(f'buffer_load_dwordx4 v2, s[20:23], s27 offen {cfg.NT} lds')
            if i < i1-1: a(f's_add_u32 s27, s27, {8192 if cfg.xp & 4 else 16384}')
    def hearly():
        a('L_hearly:')
        a('s_cmp_ge_u32 s2, 256\ns_cbranch_scc1 L_end')
        a('s_sub_u32 s6, s6, 1\ns_cmp_eq_u32 s5, 0\ns_cselect_b32 s3, s3, s6')
        a('s_cmp_lt_u32 s4, 8\ns_cbranch_scc1 L_hm')
        if cfg.warm:
            a('s_lshr_b32 s6, s2, 4\ns_xor_b32 s7, s4, 11\ns_or_b32 s6, s6, s7\ns_cbranch_scc1 L_spare')
            a('s_getpc_b64 s[36:37]\nL_pc:\ns_sub_u32 s36, s36, L_pc-L_top\ns_subb_u32 s37, s37, 0\nv_lshlrev_b32 v2, 7, v1')
            a('s_mov_b32 s38, L_end-L_top\ns_mov_b32 s39, 0x20000\ns_mov_b32 s6, 8192')
            a('buffer_load_dword v4, v2, s[36:39], 0 offen\nbuffer_load_dword v5, v2, s[36:39], s6 offen')
            a('s_endpgm')
        else: a('s_branch L_spare')
        a('L_hm:')
        if cfg.xp & 16:
            a('s_cmp_eq_u32 s5, 0\ns_cselect_b32 s6, 34, 24\ns_mov_b32 s7, 0x8000000\ns_cselect_b32 s7, 0x9000000, s7\ns_mul_i32 s27, s3, 288*1024\ns_add_u32 s27, s27, s7\ns_lshl_b32 s7, s4, 10\ns_add_u32 s27, s27, s7')
            a('v_lshlrev_b32 v2, 4, v1\ns_waitcnt lgkmcnt(0)')
            srd(20, 's14', 's15', 0x10000000)
            a('L_xl:\nbuffer_load_dwordx4 v[4:7], v2, s[20:23], s27 offen nt\ns_add_u32 s27, s27, 8192\ns_sub_u32 s6, s6, 1\ns_cmp_lg_u32 s6, 0\ns_cbranch_scc1 L_xl')
            a('s_endpgm')
        a('s_cmp_eq_u32 s5, 0')
        if not cfg.hptr:
            a('s_cselect_b32 s6, 88, 24')
            a('s_load_dwordx2 s[20:21], s[0:1], s6')
        a('s_mov_b32 s7, 8192\ns_cselect_b32 s7, 6144, s7')
        a('s_cselect_b32 s29, 2, 4')
        a('s_cselect_b32 s24, 5, 6')
        a('s_lshl_b32 s22, s7, 9')
        a('s_lshl_b32 s25, s3, 8')
        a('s_lshr_b32 s26, s3, 1\ns_lshl_b32 s26, s26, 7\ns_and_b32 s27, s3, 1\ns_mul_i32 s27, s27, 256*6144\ns_add_u32 s26, s26, s27')
        a('s_cmp_eq_u32 s5, 0\ns_cselect_b32 s25, s26, s25')
        a('v_bfe_u32 v10, v1, 4, 1\nv_and_b32 v12, 7, v1\nv_xor_b32 v10, v10, v12')
        a('s_and_b32 s27, s4, 4\nv_xor_b32 v10, s27, v10')
        a('v_lshrrev_b32 v2, 3, v1\nv_mul_u32_u24 v2, s7, v2\nv_xor_b32 v12, 2, v10')
        a('v_lshl_add_u32 v12, v12, 4, v2\nv_lshl_add_u32 v2, v10, 4, v2')
        a('s_mov_b32 s23, 0x20000')
        a('s_lshl_b32 s6, s4, s24\ns_mul_i32 s27, s6, s7\ns_add_u32 s27, s27, s25')
        a('s_lshl_b32 s28, s6, 7\ns_lshl_b32 s7, s7, 3')
        if cfg.xp & 4: a('v_lshlrev_b32 v2, 4, v1\nv_mov_b32 v12, v2\ns_lshl_b32 s27, s3, 16\ns_add_u32 s27, s27, s28\ns_mov_b32 s7, 1024')
        a('s_waitcnt lgkmcnt(0)')
        if cfg.hptr: a('s_mov_b32 s20, s40\ns_mov_b32 s21, s41')
        a('L_hdma:')
        a('s_mov_b32 m0, s28\ns_add_u32 s28, s28, 1024')
        a(f'buffer_load_dwordx4 v2, s[20:23], s27 offen {cfg.NT} lds')
        a('s_add_u32 s27, s27, s7\ns_mov_b32 m0, s28\ns_add_u32 s28, s28, 1024')
        a(f'buffer_load_dwordx4 v12, s[20:23], s27 offen {cfg.NT} lds')
        a('s_add_u32 s27, s27, s7\ns_sub_u32 s29, s29, 1\ns_cmp_lg_u32 s29, 0\ns_cbranch_scc1 L_hdma')
        if cfg.hfirst: a('s_branch L_helper')
    a('L_top:')
    stamp(0)
    a('s_load_dwordx4 s[8:11], s[0:1], 8')
    a('v_lshrrev_b32 v1, 6, v0')
    a('s_lshr_b32 s3, s2, 3\ns_and_b32 s5, s2, 7')
    a('v_readfirstlane_b32 s4, v1')
    a('s_load_dwordx4 s[12:15], s[0:1], 104')
    if cfg.hptr: a('s_cselect_b32 s6, 24, 88\ns_load_dwordx2 s[40:41], s[0:1], s6')
    a('s_mul_i32 s6, s3, 7\ns_add_u32 s6, s6, s5\ns_cmp_eq_u32 s5, 0\ns_cselect_b32 s6, 0, s6')
    a('v_and_b32 v1, 63, v0')
    if cfg.hfirst == 1:
        a('s_sub_u32 s7, s6, 33\ns_cbranch_scc0 L_stream'); hearly()
    else: a('s_sub_u32 s7, s6, 33\ns_cbranch_scc1 L_hearly')
    a('L_stream:')
    a('s_lshr_b32 s25, s7, 4\ns_and_b32 s24, s7, 15')
    a('s_cmp_ge_u32 s25, 12\ns_cbranch_scc1 L_end')
    assert not any(cfg.bias)
    a(f's_mul_i32 s6, s25, {8192*21846}\ns_lshr_b32 s7, s6, 18\ns_add_u32 s6, s6, {8192*21846}\ns_lshr_b32 s6, s6, 18\ns_sub_u32 s31, s6, s7')
    a('s_lshl_b32 s6, s24, 13\ns_add_u32 s6, s6, s7\ns_lshl_b32 s6, s6, 8')
    a('s_mov_b32 s23, 0x20000')
    a('s_cmp_ge_u32 s4, 4\ns_cbranch_scc1 L_vwave')
    a('v_lshrrev_b32 v7, 4, v1')
    a('v_and_b32 v15, 15, v1')
    a('v_lshlrev_b32 v6, 2, v7\nv_xor_b32 v6, v6, v15')
    a('v_lshlrev_b32 v8, 8, v7')
    a('v_lshl_add_u32 v2, v6, 4, v8')
    a(f's_mul_i32 s27, s4, {512*cfg.RK}\ns_mul_i32 s28, s4, {KW}\ns_add_u32 s22, s27, {256*cfg.RK}')
    nk = [chunk_start(p, c+1) - chunk_start(p, c) for p in range(16) for c in range(12)]
    assert 80 <= cfg.RK <= 96 and min(nk) - 7*cfg.RK >= 80 and max(nk) - 7*cfg.RK <= cfg.RK
    a('s_mov_b32 m0, s28')
    a('s_waitcnt lgkmcnt(0)')
    a('s_add_u32 s20, s8, s6\ns_addc_u32 s21, s9, 0')
    a(f'buffer_load_dwordx4 v2, s[20:23], s27 offen {cfg.NT} lds')
    stamp(5)
    if cfg.prio: a('s_setprio 3')
    for t in (1, 2, 3):
        a(f'v_xor_b32 v{2+t}, {16*t}, v2')
        a(f'buffer_load_dwordx4 v{2+t}, s[20:23], s27 offen offset:{1024*t} {cfg.NT} lds')
    a(f's_lshl_b32 s26, s24, 14\ns_lshl_b32 s7, s25, 10\ns_add_u32 s26, s26, s7\ns_lshl_b32 s7, s4, 8\ns_add_u32 s26, s26, s7\ns_add_u32 s26, s26, {OP}')
    a('v_mov_b32 v156, -1\nv_lshl_add_u32 v157, v1, 2, s26')
    a('global_store_dword v157, v156, s[14:15] sc1')
    if cfg.pw & 4:
        a(f's_lshl_b32 s6, s24, 11\ns_lshl_b32 s7, s25, 7\ns_add_u32 s6, s6, s7\ns_add_u32 s6, s6, {LSE}\nv_lshl_add_u32 v157, v1, 2, s6')
        a('s_cmp_eq_u32 s4, 0\ns_cselect_b32 exec_lo, -1, 0\ns_mov_b32 exec_hi, 0\ns_cbranch_execz L_npw')
        a('global_store_dword v157, v156, s[14:15] sc1')
        a('L_npw:')
        a('s_mov_b64 exec, -1')
    a(f's_mov_b32 s44, s22\ns_add_u32 s45, s44, {256*cfg.RK}\ns_lshl_b32 s7, s31, 8\ns_min_u32 s45, s45, s7')
    a('s_add_u32 s28, s28, 4096\ns_add_u32 s27, s27, 4096\ns_mov_b32 s29, 1')
    if cfg.hfirst == 2:
        a('s_branch L_kdma'); hearly()
    a('L_kdma:')
    a('s_mov_b32 m0, s28')
    a('s_add_u32 s28, s28, 4096\ns_add_u32 s29, s29, 1')
    for t in range(4):
        a(f'buffer_load_dwordx4 v{2+t}, s[20:23], s27 offen offset:{1024*t} {cfg.NT} lds')
        if cfg.thS < 63: a(f's_waitcnt vmcnt({cfg.thS})')
    a('s_add_u32 s27, s27, 4096')
    a('s_cmp_eq_u32 s29, 6\ns_cselect_b32 s27, s44, s27\ns_cselect_b32 s22, s45, s22')
    a('s_cmp_lt_u32 s29, 9\ns_cbranch_scc1 L_kdma')
    epoch_load()
    a('v_and_b32 v6, 3, v15\nv_lshlrev_b32 v6, 2, v6\nv_lshrrev_b32 v9, 2, v15\nv_add_u32 v6, v6, v9')
    a('v_lshlrev_b32 v10, 8, v6')
    a('v_lshl_add_u32 v6, v7, 4, v10')
    if cfg.p1c: a('v_lshlrev_b32 v6, 4, v1')
    for gi in range(3):
        for s in range(4):
            r = 96 + 16*gi + 4*s
            a(f'buffer_load_dwordx4 v[{r}:{r+3}], v6, s[20:23], s27 offen offset:{(1024 if cfg.p1c else 64)*s} {cfg.NT}')
            if cfg.thS < 63 and 4*gi + s < 11: a(f's_waitcnt vmcnt({cfg.thS})')
        if gi < 2: a('s_add_u32 s27, s27, 4096')
    if not cfg.pe:
        srd(16, 's14', 's15', WS_SZ)
        a(f's_lshl_b32 s26, s24, 14\ns_lshl_b32 s6, s25, 10\ns_add_u32 s26, s26, s6\ns_lshl_b32 s6, s4, 8\ns_add_u32 s26, s26, s6\ns_add_u32 s26, s26, {OP}')
        a('v_mov_b32 v156, -1\nv_lshlrev_b32 v157, 2, v1')
        if not cfg.xp & 32: a('buffer_store_dword v156, v157, s[16:19], s26 offen sc1')
    else: srd(16, 's14', 's15', WS_SZ)
    a(f's_and_b32 s7, s24, 7\ns_lshl_b32 s6, s7, 12\ns_lshr_b32 s7, s24, 3\ns_lshl_b32 s7, s7, 11\ns_add_u32 s27, s6, s7\ns_add_u32 s27, s27, {QO}')
    a('v_lshlrev_b32 v12, 4, v1')
    qloads = [f'buffer_load_dwordx4 v[{32+4*k}:{35+4*k}], v12, s[16:19], s27 offen offset:{1024*k} sc1' for k in range(2)]
    if not cfg.qlate:
        a('s_cmp_lg_u32 s4, 0\ns_cbranch_scc1 L_nq1' if not cfg.xp & 1024 else 's_branch L_nq1')
        for x in qloads: a(x)
        a('L_nq1:')
    stamp(1)
    a('s_barrier')
    if cfg.xp & 512: a('s_waitcnt vmcnt(0)\ns_branch L_xs')
    a(f's_mul_i32 s28, s4, {KW}')
    a('v_and_b32 v11, 3, v15\nv_xor_b32 v11, v11, v7')
    a('v_lshl_add_u32 v11, v9, 2, v11')
    a('v_lshl_add_u32 v11, v11, 4, v10\nv_add_u32 v8, s28, v11')
    for s in (1, 2, 3): a(f'v_xor_b32 v{8+s}, {64*s}, v8')
    a(f's_mul_i32 s6, s4, 1536\ns_add_u32 s6, s6, {PREG}')
    a('v_lshrrev_b32 v13, 3, v15\nv_mul_u32_u24 v13, 768, v13' if cfg.il else 'v_lshrrev_b32 v13, 3, v15\nv_lshlrev_b32 v13, 8, v13')
    a('v_and_b32 v14, 3, v15\nv_lshl_add_u32 v13, v14, 6, v13\nv_lshl_add_u32 v13, v7, 4, v13')
    a('v_bfe_u32 v14, v15, 2, 1\nv_lshl_add_u32 v13, v14, 3, v13\nv_add_u32 v13, s6, v13')
    for u in range(4):
        a(f's_mov_b32 s{36+2*u}, {0x000F000F << (4*u):#x}\ns_mov_b32 s{37+2*u}, {0x000F000F << (4*u):#x}')
    a(f's_sub_u32 s6, s45, s44\ns_lshr_b32 s6, s6, 8\ns_sub_u32 s6, s6, 80')
    a(f'v_sub_u32 v160, {cfg.RK - 80}, v7\nv_cndmask_b32 v161, 64, v160, s[38:39]\nv_sub_u32 v160, s6, v7\nv_cndmask_b32 v163, 64, v160, s[42:43]')
    a('s_waitcnt lgkmcnt(0)')
    epoch_tag()
    stamp(2)
    a(f'v_mov_b32 v14, {QF}')
    a('s_cmp_lg_u32 s4, 0\ns_cbranch_scc1 L_nq2')
    if cfg.qlate: a(f's_waitcnt vmcnt({cfg.qlate - 1})')
    if cfg.xp & 1: a('s_waitcnt vmcnt(0)')
    else: vpoll(qloads, [33, 35, 37, 39], 164, first_issued=not cfg.qlate, tags=True, sleep=cfg.qslp, dbg=(1, 2, 15))
    a(f'v_lshlrev_b32 v12, 3, v1\nv_add_u32 v12, {QL}, v12\nv_mov_b32 v16, 1')
    a('ds_write2_b32 v12, v32, v34 offset0:0 offset1:1\nds_write2_b32 v12, v36, v38 offset0:128 offset1:129')
    a('s_waitcnt lgkmcnt(0)\nds_write_b32 v14, v16')
    a('s_branch L_nq3')
    a('L_nq2:')
    a('s_mov_b32 s30, 0')
    a('L_qspin:')
    a('ds_read_b32 v16, v14\ns_add_u32 s30, s30, 1\ns_waitcnt lgkmcnt(0)')
    a('v_cmp_ne_u32 vcc, 1, v16\ns_cbranch_vccz L_nq3')
    a(f's_sleep 1\ns_cmp_lt_u32 s30, {LIMIT*8}\ns_cbranch_scc1 L_qspin')
    a('L_nq3:')
    a(f'v_and_b32 v12, 3, v15\nv_lshlrev_b32 v12, 8, v12\nv_lshl_add_u32 v12, v7, 4, v12\nv_add_u32 v12, {QL}, v12')
    for k in range(4): a(f'ds_read_b128 v[{16+4*k}:{19+4*k}], v12 offset:{64*k}')
    a('s_waitcnt vmcnt(0) lgkmcnt(0)')
    stamp(3)
    order = [(u, dd) for u in range(4) for dd in range(3)]
    ldsg = [4*dd+u for (u, dd) in order if 4*dd+u < 9]
    def kread(k):
        gi = ldsg[k]; buf = 64 + 16*(k & 1)
        for s in range(4):
            a(f'ds_read_b128 v[{buf+4*s}:{buf+4*s+3}], v{8+s} offset:{4096*gi}')
    kread(0)
    k = 0
    for (u, dd) in order:
        gi = 4*dd + u
        mq = 32 + 16*(u & 1)
        if u == 0 and dd == 0:
            for r in range(16): a(f'v_cndmask_b32 v{mq+r}, 0, v{16+r}, s[36:37]')
        if gi < 9:
            src = 64 + 16*(k & 1)
            if k + 1 < len(ldsg):
                kread(k + 1); a('s_waitcnt lgkmcnt(4)')
            else:
                a('s_waitcnt lgkmcnt(0)')
            k += 1
        else:
            src = 96 + 16*(gi - 9)
        D = 144 + 4*dd
        for s in range(4):
            c = '0' if (u == 0 and s == 0) else f'v[{D}:{D+3}]'
            a(f'v_mfma_f32_16x16x32_bf16 v[{D}:{D+3}], v[{src+4*s}:{src+4*s+3}], v[{mq+4*s}:{mq+4*s+3}], {c}')
            if u < 3 and dd < 2:
                mq2 = 32 + 16*((u+1) & 1)
                for r in (8*dd + 2*s, 8*dd + 2*s + 1):
                    a(f'v_cndmask_b32 v{mq2+r}, 0, v{16+r}, s[{38+2*u}:{39+2*u}]')
    a('v_mov_b32 v160, 0xff800000')
    for dd, th in ((1, 161), (2, 163)):
        for r in range(4):
            a(f'v_cmp_lt_i32 vcc, {4*r}, v{th}\nv_cndmask_b32 v{144+4*dd+r}, v160, v{144+4*dd+r}, vcc')
    a('v_max3_f32 v156, v144, v145, v146\nv_max3_f32 v157, v147, v148, v149')
    a('v_max3_f32 v158, v150, v151, v152\nv_max3_f32 v159, v153, v154, v155')
    a('v_max3_f32 v156, v156, v157, v158\nv_max_f32 v156, v156, v159')
    def xreduce(op, r, t):
        a(f'{op}_dpp v{r}, v{r}, v{r} row_ror:4 row_mask:0xf bank_mask:0xf')
        a(f'{op}_dpp v{r}, v{r}, v{r} row_ror:8 row_mask:0xf bank_mask:0xf')
        a(f'v_mov_b32 v{t}, v{r}\nv_permlane16_swap_b32 v{r}, v{t}\n{op} v{r}, v{r}, v{t}')
        a(f'v_mov_b32 v{t}, v{r}\nv_permlane32_swap_b32 v{r}, v{t}\n{op} v{r}, v{r}, v{t}')
    xreduce('v_max_f32', 156, 157)
    a(f's_mov_b32 s6, {f2u(128**-0.5 * LOG2E)}')
    a('v_mul_f32 v158, s6, v156')
    for r in range(12): a(f'v_fma_f32 v{144+r}, v{144+r}, s6, -v158')
    for r in range(12): a(f'v_exp_f32 v{144+r}, v{144+r}')
    for dd in range(3):
        D = 144 + 4*dd
        a(f'v_cvt_pk_bf16_f32 v{32+2*dd}, v{D}, v{D+1}\nv_cvt_pk_bf16_f32 v{33+2*dd}, v{D+2}, v{D+3}')
        a(f'ds_write_b64 v13, v[{32+2*dd}:{33+2*dd}] offset:{(256 if cfg.il else 512)*dd}')
    a('v_add_f32 v159, v144, v145')
    for r in range(2, 12): a(f'v_add_f32 v159, v159, v{144+r}')
    xreduce('v_add_f32', 159, 157)
    a(f's_lshl_b32 s6, s4, 5\ns_add_u32 s6, s6, {ST}')
    a('v_lshl_add_u32 v14, v1, 3, s6')
    a('s_mov_b64 exec, 15\nds_write_b64 v14, v[158:159]\ns_mov_b64 exec, -1')
    a('s_waitcnt lgkmcnt(0)')
    a(f'v_mov_b32 v14, {QF}\nv_mov_b32 v16, 1\ns_mov_b64 exec, 1\nds_add_u32 v14, v16 offset:4\ns_mov_b64 exec, -1')
    stamp(4)
    pspin('v14', 'v16')
    a(f'v_and_b32 v14, 3, v1\nv_lshlrev_b32 v14, 3, v14\nv_add_u32 v14, {ST}, v14')
    for w in range(4): a(f'ds_read_b64 v[{16+2*w}:{17+2*w}], v14 offset:{32*w}')
    a('v_lshrrev_b32 v2, 2, v1\nv_lshrrev_b32 v3, 4, v1\nv_add_u32 v3, v3, v1\nv_and_b32 v3, 3, v3')
    a('v_lshlrev_b32 v2, 5, v2\nv_lshl_add_u32 v2, v3, 3, v2')
    a(f's_lshl_b32 s6, s4, 9\ns_add_u32 s6, s6, {SCR}\nv_add_u32 v2, s6, v2')
    a('s_waitcnt lgkmcnt(0)')
    a('v_max3_f32 v24, v16, v18, v20\nv_max_f32 v24, v24, v22')
    for w in range(4): a(f'v_sub_f32 v{25+w}, v{16+2*w}, v24')
    for w in range(4): a(f'v_exp_f32 v{25+w}, v{25+w}')
    a('v_mul_f32 v29, v25, v17\nv_fmac_f32 v29, v26, v19\nv_fmac_f32 v29, v27, v21\nv_fmac_f32 v29, v28, v23')
    a('v_log_f32 v30, v29\nv_rcp_f32 v29, v29\nv_mov_b32 v31, s33')
    a('v_add_f32 v30, v30, v24')
    a(f's_lshl_b32 s6, s24, 11\ns_lshl_b32 s7, s25, 7\ns_add_u32 s6, s6, s7\ns_add_u32 s6, s6, {LSE}')
    a('v_lshlrev_b32 v3, 3, v1')
    a('s_cmp_eq_u32 s4, 0\ns_cselect_b32 exec_lo, 0xffff, 0\ns_mov_b32 exec_hi, 0\ns_cbranch_execz L_nlse')
    if cfg.diag is not None and cfg.diag >= 90: a(f's_sub_u32 s7, s{64+2*cfg.dk}, s{64+2*cfg.dk0}\ns_mov_b32 exec_lo, 0xff00\nv_mov_b32 v30, ' + ('s7' if cfg.dk else 's64') + '\ns_mov_b32 exec_lo, 0xffff')
    a('buffer_store_dwordx2 v[30:31], v3, s[16:19], s6 offen sc1')
    a('L_nlse:')
    a('s_mov_b64 exec, -1')
    for w in range(4): a(f'v_mul_f32 v{32+w}, v{25+w}, v29')
    for w in range(4): a(f'v_readlane_b32 s{36+w}, v{32+w}, s4')
    a('L_xs:')
    a('v_lshlrev_b32 v3, 2, v1')
    a('s_barrier')
    stamp(6)
    for v in range(8): a(f'ds_read_b64 v[{48+2*v}:{49+2*v}], v2 offset:{2048*v}')
    for v in range(8):
        a(f's_waitcnt lgkmcnt({7-v})')
        w = v >> 1; sp = 36 + (w & ~1)
        mod = 'op_sel_hi:[1,0,1]' if (w & 1) == 0 else 'op_sel:[0,1,0] op_sel_hi:[1,1,1]'
        mod2 = 'op_sel_hi:[1,0]' if (w & 1) == 0 else 'op_sel:[0,1] op_sel_hi:[1,1]'
        if v < 2: a(f'v_pk_mul_f32 v[{40+2*v}:{41+2*v}], v[{48+2*v}:{49+2*v}], s[{sp}:{sp+1}] {mod2}')
        else: a(f'v_pk_fma_f32 v[{40+2*(v&1)}:{41+2*(v&1)}], v[{48+2*v}:{49+2*v}], s[{sp}:{sp+1}], v[{40+2*(v&1)}:{41+2*(v&1)}] {mod}')
    a('v_pk_add_f32 v[40:41], v[40:41], v[42:43]')
    a('v_cvt_pk_bf16_f32 v40, v40, v41')
    a(f'buffer_store_dword v40, v3, s[16:19], s26 offen {cfg.ost}')
    stamp(7)
    if cfg.stamps:
        a('s_cmp_lg_u32 s4, 0\ns_cbranch_scc1 L_end')
        stamps_out(8, 0)
    a('s_endpgm')

    a('L_vwave:')
    a('s_lshl_b32 s22, s31, 8')
    a('s_sub_u32 s4, s4, 4')
    if cfg.rot & 2: a('s_add_u32 s4, s4, s24\ns_and_b32 s4, s4, 7')
    if cfg.rot & 4: a('s_lshr_b32 s7, s24, 1\ns_add_u32 s4, s4, s7\ns_and_b32 s4, s4, 7')
    a('v_lshlrev_b32 v2, 4, v1')
    a(f'v_mov_b32 v16, 0\nv_mov_b32 v17, 0\nv_mov_b32 v18, 0\nv_mov_b32 v19, 0\nv_add_u32 v9, {ZERO}, v2')
    a('s_mov_b32 exec_lo, -1\ns_mov_b32 exec_hi, 3\nds_write_b128 v9, v[16:19]\ns_mov_b64 exec, -1')
    a(f'v_mov_b32 v9, {QF}\nds_write_b64 v9, v[16:17]')
    a(f's_mul_i32 s7, s4, 768\ns_add_u32 s7, s7, {PREG}')
    a('v_and_b32 v9, 3, v1\nv_lshlrev_b32 v9, 6, v9\nv_lshrrev_b32 v10, 4, v1\nv_lshl_add_u32 v9, v10, 4, v9\nv_add_u32 v9, s7, v9')
    a(f'v_mov_b32 v11, {ZERO}')
    for x in range(4):
        a(f's_mov_b32 s34, {0x000F000F << (4*x):#x}\ns_mov_b32 s35, s34')
        a(f'v_cndmask_b32 v{3+x}, v11, v9, s[34:35]')
    a('v_and_b32 v7, 15, v1\nv_lshrrev_b32 v8, 2, v7\nv_add_u32 v8, v8, v10\nv_and_b32 v8, 3, v8')
    a('v_lshlrev_b32 v7, 5, v7\nv_lshl_add_u32 v7, v8, 3, v7')
    a(f's_lshl_b32 s7, s4, 11\ns_add_u32 s7, s7, {SCR}\nv_add_u32 v7, s7, v7\nv_add_u32 v8, 1024, v7')
    a('s_mov_b32 s36, 0x05040100\ns_mov_b32 s37, 0x07060302')
    a(f's_mul_i32 s27, s4, {256*cfg.RK}\ns_add_u32 s7, s27, {256*cfg.RK}\ns_min_u32 s22, s22, s7')
    a('s_waitcnt lgkmcnt(0)')
    a('s_add_u32 s20, s10, s6\ns_addc_u32 s21, s11, 0')
    if cfg.stamps: srd(16, 's14', 's15', WS_SZ)
    if cfg.tlbw:
        a(f'v_lshlrev_b32 v12, 12, v1\ns_mov_b64 exec, {(1 << cfg.tlbw) - 1}\nbuffer_load_dword v13, v12, s[20:23], s27 offen {cfg.NT}\ns_mov_b64 exec, -1')
    a('s_barrier')
    stamp(1)
    for i in range(24):
        r = 72 + 4*i
        a(f'buffer_load_dwordx4 v[{r}:{r+3}], v2, s[20:23], s27 offen offset:{1024*(i&3)} {cfg.NT}')
        if cfg.thV < 63 and cfg.thV <= i < cfg.nth: a(f's_waitcnt vmcnt({cfg.thV})')
        if (i & 3) == 3 and i < 23: a(f's_add_u32 s27, s27, {61440 if (cfg.il and (i & 7) == 7) else 4096}')
    stamp(2)
    if cfg.xp & 512: a('s_waitcnt vmcnt(0)\ns_branch L_xv')
    pspin('v9', 'v10')
    stamp(3)
    def pread(t):
        buf = 40 + 16*(t & 1)
        for x in range(4): a(f'ds_read_b128 v[{buf+4*x}:{buf+4*x+3}], v{3+x} offset:{256*t}')
    pread(0); pread(1)
    for t in range(3):
        a(f's_waitcnt vmcnt({16-8*t})')
        if t == 2: stamp(4)
        vb = 72 + 32*t; pb = 40 + 16*(t & 1)
        for j in range(8):
            tb = 24 + 4*(j & 3)
            sel = 's37' if (j & 1) else 's36'
            for tt in range(4):
                a(f'v_perm_b32 v{tb+tt}, v{vb + 4*(2*tt+1) + (j>>1)}, v{vb + 4*(2*tt) + (j>>1)}, {sel}')
            if j == 0: a('s_waitcnt lgkmcnt(4)' if t == 0 else 's_waitcnt lgkmcnt(0)')
            if j > 0:
                jj = j - 1; tb2 = 24 + 4*(jj & 3); acc = 16 + 4*(jj & 1); x = jj >> 1
                c = '0' if (t == 0 and jj < 2) else f'v[{acc}:{acc+3}]'
                a(f'v_mfma_f32_16x16x32_bf16 v[{acc}:{acc+3}], v[{pb+4*x}:{pb+4*x+3}], v[{tb2}:{tb2+3}], {c}')
        a(f'v_mfma_f32_16x16x32_bf16 v[20:23], v[{pb+12}:{pb+15}], v[36:39], v[20:23]')
        if t == 0: pread(2)
    for r in range(4):
        ad = 7 + (r >> 1); o = 128*(r & 1)
        a(f'ds_write2_b32 v{ad}, v{16+r}, v{20+r} offset0:{o} offset1:{o+1}')
    a('s_waitcnt lgkmcnt(0)')
    a('L_xv:')
    stamp(5)
    a('s_barrier')
    if cfg.stamps:
        a('s_cmp_lg_u32 s4, 0\ns_cbranch_scc1 L_end')
        stamps_out(6, 8)
    a('s_endpgm')

    a('L_spare:')
    if cfg.xp & 2048: a('s_endpgm')
    if cfg.xp & 16: a('s_endpgm')
    if cfg.tlbw:
        a('s_cmp_lg_u32 s4, 9\ns_cbranch_scc1 L_sp1')
        a('s_load_dwordx2 s[36:37], s[0:1], 32\ns_load_dwordx2 s[40:41], s[0:1], 48\ns_load_dwordx2 s[44:45], s[0:1], 64\ns_load_dwordx2 s[48:49], s[0:1], 88')
        a('v_lshlrev_b32 v2, 16, v1\nv_lshlrev_b32 v3, 14, v1')
        a(f's_mov_b32 s38, {4096*1024}\ns_mov_b32 s39, 0x20000\ns_mov_b32 s42, {512*3584}\ns_mov_b32 s43, 0x20000\ns_mov_b32 s46, {1792*1024}\ns_mov_b32 s47, 0x20000\ns_mov_b32 s50, {512*6144}\ns_mov_b32 s51, 0x20000')
        a('s_waitcnt lgkmcnt(0)')
        srd(16, 's14', 's15', WS_SZ)
        a('buffer_load_dword v8, v3, s[16:19], 0 offen sc1')
        a('s_cmp_lg_u32 s5, 0\ns_cbranch_scc1 L_sp0')
        a('buffer_load_dword v4, v2, s[36:39], 0 offen nt\nbuffer_load_dword v5, v2, s[40:43], 0 offen nt\nbuffer_load_dword v6, v2, s[44:47], 0 offen nt')
        a('s_endpgm')
        a('L_sp0:')
        a('buffer_load_dword v7, v2, s[48:51], 0 offen nt')
        a('s_endpgm')
        a('L_sp1:')
    if not cfg.pw & 1: a('s_cmp_lg_u32 s5, 0\ns_cbranch_scc1 L_end')
    a('s_cmp_lg_u32 s4, 8\ns_cbranch_scc1 L_end')
    a('v_mov_b32 v4, -1\nv_mov_b32 v5, -1\nv_mov_b32 v6, -1\nv_mov_b32 v7, -1')
    if cfg.pw & 1:
        a('s_cmp_eq_u32 s5, 0\ns_cbranch_scc1 L_spT')
        a(f's_lshr_b32 s6, s3, 2\ns_lshl_b32 s6, s6, 12\ns_and_b32 s7, s3, 3\ns_lshl_b32 s7, s7, 9\ns_add_u32 s6, s6, s7\ns_add_u32 s6, s6, {QO}')
        a('v_lshlrev_b32 v2, 4, v1\nv_lshrrev_b32 v3, 5, v1\nv_mul_u32_u24 v3, 1536, v3\nv_add3_u32 v3, v3, v2, s6')
        a(f's_lshl_b32 s6, s3, 10\ns_add_u32 s6, s6, {MODB}\nv_add_u32 v2, s6, v2')
        a('s_waitcnt lgkmcnt(0)')
        a('global_store_dwordx4 v3, v[4:7], s[14:15] sc1\nglobal_store_dwordx4 v2, v[4:7], s[14:15] sc1')
        a('s_waitcnt vmcnt(0)\ns_endpgm')
        a('L_spT:')
    a(f's_lshl_b32 s6, s3, 10\ns_add_u32 s6, s6, {WOUT}\nv_lshlrev_b32 v2, 4, v1\nv_add_u32 v2, s6, v2')
    a(f's_lshl_b32 s6, s3, {11 if cfg.mh else 12}\ns_add_u32 s6, s6, {MOUT}\nv_lshlrev_b32 v8, 4, v1\nv_add_u32 v8, s6, v8')
    a('s_waitcnt lgkmcnt(0)')
    a('global_store_dwordx4 v2, v[4:7], s[14:15] sc1')
    if cfg.pw & 2:
        a('s_and_b32 s6, s3, 1\ns_lshl_b32 s6, s6, 14\ns_lshr_b32 s7, s3, 1\ns_lshl_b32 s7, s7, 10\ns_add_u32 s6, s6, s7\nv_lshl_add_u32 v9, v1, 4, s6')
        a('global_store_dwordx4 v9, v[4:7], s[14:15] sc1')
        a(f's_lshl_b32 s6, s3, 7\ns_add_u32 s6, s6, {XID}\nv_lshl_add_u32 v9, v1, 4, s6\ns_mov_b64 exec, 0xff\nglobal_store_dwordx4 v9, v[4:7], s[14:15] sc1\ns_mov_b64 exec, -1')
    if cfg.owarm:
        a('s_cmp_lg_u32 s3, 31\ns_cbranch_scc1 L_sp3')
        a('s_load_dwordx2 s[36:37], s[0:1], 96\nv_lshlrev_b32 v9, 4, v1\ns_waitcnt lgkmcnt(0)')
        a('global_store_dwordx4 v9, v[4:7], s[36:37] sc1\nglobal_store_dwordx4 v9, v[4:7], s[36:37] offset:1024 sc1')
        if cfg.owarm > 1: a(f'v_add_u32 v9, {EPO + 64}, v9\ns_mov_b64 exec, 15\nglobal_store_dwordx4 v9, v[4:7], s[14:15] sc1\ns_mov_b64 exec, -1')
        a('L_sp3:')
    if not cfg.mtag:
        a('s_cmp_ge_u32 s3, 28\ns_cbranch_scc1 L_sp2')
        for i in range(2 if cfg.mh else 4): a(f'global_store_dwordx4 v8, v[4:7], s[14:15] offset:{1024*i} sc1')
        a('L_sp2:')
    a('s_waitcnt vmcnt(0)')
    a('s_endpgm')

    AT=136; DD=32; Z=36; T=38; ZT=37; F0=40; F1=72; F2=104
    if not cfg.hfirst: hearly()
    a('L_helper:')
    epoch_load()
    if cfg.diag is not None: a(f's_load_dword s96, s[14:15], {XID+4}\ns_load_dword s97, s[14:15], {EPO}')
    a('s_load_dwordx2 s[44:45], s[0:1], 0')
    a('s_load_dwordx4 s[48:51], s[0:1], 24')
    a('s_load_dwordx4 s[52:55], s[0:1], 80')
    a('v_lshrrev_b32 v10, 3, v1\nv_and_b32 v11, 3, v1\nv_lshlrev_b32 v11, 1, v11\nv_lshl_add_u32 v10, v10, 3, v11')
    a('v_bfe_u32 v11, v1, 2, 1')
    a('s_lshl_b32 s6, s4, 6\nv_add_u32 v12, s6, v10')
    a('v_lshlrev_b32 v6, 1, v12\nv_lshl_add_u32 v6, v11, 10, v6')
    a(f'v_lshlrev_b32 v9, 2, v12\nv_lshl_add_u32 v9, v11, 11, v9\nv_add_u32 v9, {X1}, v9')
    a(f's_lshr_b32 s6, s4, 2\ns_mul_i32 s6, s6, 576\ns_and_b32 s7, s4, 3\ns_lshl_b32 s7, s7, 7\ns_add_u32 s6, s6, s7\ns_add_u32 s6, s6, {ACT}')
    a('v_mul_u32_u24 v7, 1152, v11\nv_lshl_add_u32 v7, v10, 1, v7\nv_add_u32 v7, s6, v7')
    a('v_lshrrev_b32 v13, 3, v1\nv_lshlrev_b32 v13, 2, v13\nv_lshl_add_u32 v13, v11, 5, v13')
    a(f'v_add_u32 v13, {STAT}, v13')
    a('s_waitcnt lgkmcnt(0)')
    srd(16, 's14', 's15', WS_SZ)
    epoch_tag()
    a('global_load_dword v17, v6, s[52:53]')
    a('global_load_dword v16, v6, s[44:45]')
    a('s_cmp_eq_u32 s5, 0\ns_cbranch_scc1 L_t2')
    a('s_add_u32 s24, s25, 128')
    dma_u1('s48', 's49', 512*8192, 8192, 's24', R1)
    a('s_branch L_h2')
    a('L_t2:')
    a('s_lshr_b32 s26, s3, 1\ns_lshl_b32 s24, s26, 18\ns_and_b32 s6, s3, 1\ns_lshl_b32 s6, s6, 9\ns_add_u32 s24, s24, s6')
    dma_w(8, 8 + cfg.pre)
    a('L_h2:')
    a('v_lshrrev_b32 v10, 4, v1\nv_bfe_u32 v11, v1, 2, 2\nv_lshl_add_u32 v3, v10, 3, v11')
    a('v_bfe_u32 v11, v1, 1, 1\nv_lshl_add_u32 v3, v11, 8, v3\nv_lshlrev_b32 v3, 7, v3')
    a('v_bfe_u32 v12, v1, 3, 2\nv_lshl_add_u32 v12, v11, 2, v12\nv_xor_b32 v12, s4, v12\nv_lshl_add_u32 v3, v12, 4, v3')
    a('v_and_b32 v12, 1, v1\nv_lshl_add_u32 v3, v12, 3, v3')
    a(f'v_lshl_add_u32 v4, v12, 1, v11\nv_mul_u32_u24 v4, 576, v4\nv_lshl_add_u32 v4, v10, 4, v4\nv_add_u32 v4, {ACT}, v4')
    a('v_lshlrev_b32 v5, 3, v0')
    a('s_lshl_b32 s6, s4, 7\nv_lshl_add_u32 v8, v1, 3, s6\nv_lshlrev_b32 v28, 4, v0')
    a(f'v_and_b32 v10, 0x37, v1\nv_cmp_eq_u32 vcc, 1, v10\nv_mov_b32 v18, {f2u(1e-5)}\nv_cndmask_b32 v18, 0, v18, vcc')
    a(f'v_lshlrev_b32 v10, 2, v1\nv_add_u32 v10, {STAT}, v10\nv_mov_b32 v{T+1}, s33\nv_mov_b32 v{ZT}, s33')
    a('s_mov_b32 exec_lo, -1\ns_mov_b32 exec_hi, 0xffff\nds_write_b32 v10, v18\ns_mov_b64 exec, -1')

    def tr_u1(F, region, steps=8, ad=None):
        if ad is None:
            if region: a(f'v_add_u32 v10, {region}, v3')
            ad = 'v10' if region else 'v3'
        for s in range(steps):
            for hh in range(2):
                a(f'ds_read_b64_tr_b16 v[{F+4*s+2*hh}:{F+4*s+2*hh+1}], {ad} offset:{4096*s + 512*hh}')
    def gemv(Fs, ad='v4', fill=(), off=0, steps=8, Ds=None):
        if isinstance(Fs, int): Fs = [Fs]
        if Ds is None: Ds = [DD]
        fill = list(fill)
        for s in range(steps): a(f'ds_read_b128 v[{AT+4*s}:{AT+4*s+3}], {ad} offset:{64*s+off}')
        per = (len(fill) + steps - 2) // (steps - 1)
        for s in range(steps):
            a(f's_waitcnt lgkmcnt({steps-1-s})')
            for F, D in zip(Fs, Ds):
                c = '0' if s == 0 else f'v[{D}:{D+3}]'
                a(f'v_mfma_f32_16x16x32_bf16 v[{D}:{D+3}], v[{AT+4*s}:{AT+4*s+3}], v[{F+4*s}:{F+4*s+3}], {c}')
            for _ in range(per):
                if fill: a(fill.pop(0))
        for x in fill: a(x)
    def sgemv(Fs, Ds, ad, idx, off=0, fill=(), steps=4, lead=2):
        fill = list(fill)
        post = bool(fill) and cfg.sord
        for s in range(steps):
            a(f'ds_read_b128 v[{AT+4*s}:{AT+4*s+3}], {ad} offset:{64*s+off}')
            if post and s == 1: a('ds_read_b128 v[52:55], v40\nds_read_b64 v[56:57], v40 offset:16')
        per = lead
        for s in range(steps):
            a(f's_waitcnt lgkmcnt({(5, 4, 1, 0)[s] if post else steps-1-s})')
            if post and s < 2:
                for F, D in zip(Fs, Ds):
                    a(f'v_smfmac_f32_16x16x64_bf16 v[{D}:{D+3}], v[{AT+4*s}:{AT+4*s+3}], v[{F+8*s}:{F+8*s+7}], {idx}')
                if s == 1:
                    a('s_waitcnt lgkmcnt(2)')
                    for _ in range(4): a(fill.pop(0))
                continue
            for F, D in zip(Fs, Ds):
                a(f'v_smfmac_f32_16x16x64_bf16 v[{D}:{D+3}], v[{AT+4*s}:{AT+4*s+3}], v[{F+8*s}:{F+8*s+7}], {idx}')
            for _ in range(per):
                if fill: a(fill.pop(0))
        for x in fill: a(x)
    def fold(D=DD, z=Z):
        a(f'v_add_f32_dpp v{z}, v{D+2}, v{D} row_ror:8 row_mask:0xf bank_mask:0x3')
        a(f'v_add_f32_dpp v{z}, v{D+1}, v{D+3} row_ror:8 row_mask:0xf bank_mask:0xc')
    def publish_tag(z, soff):
        a(f's_mov_b64 exec, 0xffff\nbuffer_store_dwordx2 v[{Z}:{Z+1}], v8, s[16:19], {soff} offen sc1\ns_mov_b64 exec, -1')
    def store2(text):
        if not cfg.fast: a(text + ' sc1'); return
        l = lab('fs'); d = lab('fd')
        a(f's_cbranch_scc1 {l}')
        a(text + ' sc1'); a(f's_branch {d}')
        a(f'{l}:'); a(text + ' ' + cfg.lst); a(f'{d}:')
    def unpack(lo, hi, src):
        a(f'v_lshlrev_b32 v{lo}, 16, v{src}\nv_and_b32 v{hi}, 0xffff0000, v{src}')
    def red6(vals, off, TT, scale=None, ad='v13'):
        r01, r23, r45, z = TT
        for r, (e, o) in zip((r01, r23, r45), ((vals[0], vals[1]), (vals[2], vals[3]), (vals[4], vals[5]))):
            a(f'v_add_f32_dpp v{r}, v{e}, v{e} row_ror:8 row_mask:0xf bank_mask:0x3')
        for r, (e, o) in zip((r01, r23, r45), ((vals[0], vals[1]), (vals[2], vals[3]), (vals[4], vals[5]))):
            a(f'v_add_f32_dpp v{r}, v{o}, v{o} row_ror:8 row_mask:0xf bank_mask:0xc')
        a(f'v_permlane16_swap_b32 v{r01}, v{r23}\nv_permlane16_swap_b32 v{r45}, v{z}')
        a(f'v_add_f32 v{r01}, v{r01}, v{r23}\nv_add_f32 v{r45}, v{r45}, v{z}')
        a(f'v_permlane32_swap_b32 v{r01}, v{r45}\nv_add_f32 v{r01}, v{r01}, v{r45}')
        a(f'v_add_f32_dpp v{r01}, v{r01}, v{r01} quad_perm:[1,0,3,2] row_mask:0xf bank_mask:0xf')
        a(f'v_add_f32_dpp v{r01}, v{r01}, v{r01} quad_perm:[2,3,0,1] row_mask:0xf bank_mask:0xf')
        a(f's_mov_b32 exec_lo, 0x11111111\ns_mov_b32 exec_hi, 0x1111')
        if scale: a(f'v_mul_f32 v{r01}, v{r01}, {scale}')
        a(f'ds_add_f32 {ad}, v{r01} offset:{off}\ns_mov_b64 exec, -1')

    stamp(1)
    def silu():
        unpack(18, 19, 17)
        a(f's_mov_b32 s6, {f2u(-LOG2E)}')
        a('v_mul_f32 v20, s6, v18\nv_mul_f32 v21, s6, v19\nv_exp_f32 v20, v20\nv_exp_f32 v21, v21')
        a('v_add_f32 v20, 1.0, v20\nv_add_f32 v21, 1.0, v21\nv_rcp_f32 v20, v20\nv_rcp_f32 v21, v21')
        a('v_mul_f32 v18, v18, v20\nv_mul_f32 v19, v19, v21\nv_cvt_pk_bf16_f32 v18, v18, v19')
        a(f'ds_write_b32 v7, v18 offset:{ACTC-ACT}')
        unpack(14, 15, 16)
    a('s_cmp_eq_u32 s5, 0\ns_cbranch_scc1 L_tail')
    mloads = [f'buffer_load_dwordx4 v[{AT+4*k}:{AT+4*k+3}], v28, s[16:19], s{60+k} offen sc1' for k in range(4)]
    for k in range(4): a(f's_mov_b32 s{60+k}, {MODA + 8192*k}')
    if not cfg.mlate:
        for x in mloads: a(x)
    a(f's_waitcnt vmcnt({8 if cfg.mlate else 12})')
    stamp(2)
    silu()
    a('v_add_f32 v18, v14, v15\nv_mul_f32 v19, v14, v14\nv_fmac_f32 v19, v15, v15')
    a('s_waitcnt lgkmcnt(0)\ns_barrier')
    red6([18, 19, 18, 19, 18, 19], STAT2 - STAT, (24, 25, 26, 27))
    tr_u1(F0, R0)
    a('s_waitcnt lgkmcnt(0)\ns_barrier')
    stamp(3)
    a('s_lshl_b32 s24, s3, 7\ns_add_u32 s24, s24, 2048')
    if cfg.xp & 128:
        dma_u1('s54', 's55', 512*6144, 6144, 's24', R0)
        a('s_endpgm')
    if cfg.mlate:
        if cfg.mlate > 1: a(f's_waitcnt vmcnt({cfg.mlate})')
        for x in mloads: a(x)
    if cfg.apre: dma_u1('s54', 's55', 512*6144, 6144, 's24', R0, i1=cfg.apre)
    a(f'v_bfe_u32 v10, v1, 2, 1\nv_lshlrev_b32 v10, 5, v10\nv_add_u32 v10, {STAT2}, v10')
    a('ds_read_b64 v[18:19], v10\ns_waitcnt lgkmcnt(0)')
    a(f's_mov_b32 s6, {f2u(1/512)}\ns_mov_b32 s7, {f2u(1e-5)}')
    a('v_mul_f32 v18, s6, v18\nv_mul_f32 v19, s6, v19\nv_fma_f32 v19, -v18, v18, v19\nv_max_f32 v19, 0, v19\nv_add_f32 v19, s7, v19\nv_rsq_f32 v19, v19')
    a('v_sub_f32 v20, v14, v18\nv_sub_f32 v21, v15, v18\nv_mul_f32 v20, v20, v19\nv_mul_f32 v21, v21, v19')
    a('v_bfe_u32 v30, v1, 1, 2\nv_lshlrev_b32 v30, 3, v30\nv_bfe_u32 v11, v1, 3, 1\nv_lshl_add_u32 v30, v11, 9, v30\nv_bfe_u32 v11, v1, 4, 1\nv_lshl_add_u32 v30, v11, 8, v30')
    a(f's_lshl_b32 s6, s4, 5\ns_add_u32 s6, s6, {X1}\nv_add_u32 v30, s6, v30')
    a(f'v_lshlrev_b32 v31, 4, v1\nv_add_u32 v29, {X1}, v31\nv_lshrrev_b32 v11, 5, v1\nv_mul_u32_u24 v11, 1536, v11\nv_add_u32 v31, v31, v11')
    if cfg.xp & 8192: a('s_waitcnt vmcnt(0)')
    else: vpoll(mloads, range(AT+1, AT+16, 2), 22, first_issued=True, tags=True, sleep=cfg.slpB, first_cnt=cfg.apre)
    stamp(4)
    a(f'v_add_f32 v22, v{AT}, v{AT+8}\nv_add_f32 v23, v{AT+2}, v{AT+10}\nv_add_f32 v24, v{AT+4}, v{AT+12}\nv_add_f32 v25, v{AT+6}, v{AT+14}')
    a('v_add_f32 v24, 1.0, v24\nv_add_f32 v25, 1.0, v25\nv_fma_f32 v20, v20, v24, v22\nv_fma_f32 v21, v21, v25, v23')
    a('v_cvt_pk_bf16_f32 v20, v20, v21\nds_write_b32 v7, v20\ns_waitcnt lgkmcnt(0)\ns_barrier')
    stamp(5)
    tr_u1(F1, R1)
    gemv([F0, F1], Ds=[DD, 24])
    a(f'v_add_f32_dpp v{Z}, v{DD+2}, v{DD} row_ror:8 row_mask:0x1 bank_mask:0x3')
    a(f'v_add_f32_dpp v{Z}, v{DD+1}, v{DD+3} row_ror:8 row_mask:0x1 bank_mask:0xc')
    a(f'v_add_f32_dpp v{Z}, v26, v24 row_ror:8 row_mask:0x2 bank_mask:0x3')
    a(f'v_add_f32_dpp v{Z}, v25, v27 row_ror:8 row_mask:0x2 bank_mask:0xc')
    a(f'v_mov_b32_dpp v{T}, v{Z} quad_perm:[1,1,3,3] row_mask:0xf bank_mask:0xf')
    a(f's_mov_b64 exec, 0x55555555')
    a(f'v_cvt_pk_bf16_f32 v{T}, v{Z}, v{T}')
    a(f'ds_write_b64 v30, v[{T}:{T+1}]\ns_mov_b64 exec, -1')
    a('s_waitcnt lgkmcnt(0)\ns_barrier')
    a('s_cmp_lg_u32 s4, 0\ns_cbranch_scc1 L_nqp')
    a(f's_lshr_b32 s6, s3, 2\ns_lshl_b32 s6, s6, 12\ns_and_b32 s7, s3, 3\ns_lshl_b32 s7, s7, 9\ns_add_u32 s6, s6, s7\ns_add_u32 s6, s6, {QO}')
    a('ds_read_b128 v[24:27], v29\ns_waitcnt lgkmcnt(0)')
    if not cfg.xp & 4096: a('buffer_store_dwordx4 v[24:27], v31, s[16:19], s6 offen sc1')
    a('L_nqp:')
    stamp(6)
    if cfg.qobs:
        a('s_cmp_lg_u32 s4, 0\ns_cbranch_scc1 L_nobs')
        a(f's_lshr_b32 s6, s3, 2\ns_lshl_b32 s6, s6, 12\ns_add_u32 s6, s6, {QO}\nv_lshlrev_b32 v10, 4, v1')
        a('s_waitcnt vmcnt(0)'); stamp(2)
        vpoll([f'buffer_load_dwordx4 v[{AT+4*k}:{AT+4*k+3}], v10, s[16:19], s6 offen offset:{1024*k} sc1' for k in range(2)], range(AT+1, AT+8, 2), 22, tags=True)
        stamp(1)
        a('L_nobs:')
    if cfg.apre < 8: dma_u1('s54', 's55', 512*6144, 6144, 's24', R0, i0=cfg.apre)
    a('s_waitcnt vmcnt(0)\ns_barrier')
    tr_u1(F0, R0)
    gemv(F0, off=ACTC-ACT); fold()
    a(f's_lshl_b32 s6, s3, 10\ns_add_u32 s6, s6, {MODB}')
    if not cfg.xp & 4096: publish_tag(Z, 's6')
    stamp(7)
    if cfg.stamps:
        a('s_cmp_lg_u32 s4, 0\ns_cbranch_scc1 L_end')
        stamps_out(8, 0)
    a('s_endpgm')

    a('L_tail:')
    a(f's_waitcnt vmcnt({cfg.pre})')
    stamp(2)
    silu()
    a('s_load_dwordx8 s[52:59], s[0:1], 48')
    a('s_load_dwordx2 s[46:47], s[0:1], 96')
    if cfg.diag is not None: a('s_waitcnt lgkmcnt(0)\ns_load_dwordx2 s[98:99], s[46:47], 0')
    a('v_bfe_u32 v11, v1, 1, 1\nv_lshlrev_b32 v10, 14, v11\nv_sub_u32 v10, v3, v10')
    a('v_mul_u32_u24 v11, 320, v11\nv_sub_u32 v11, v4, v11\ns_and_b32 s6, s3, 1\ns_mul_i32 s6, s6, 576\nv_add_u32 v11, s6, v11')
    a('s_waitcnt lgkmcnt(0)\ns_barrier')
    tr_u1(F0, R0, 4, 'v10')
    gemv(F0, 'v11', off=ACTC-ACT, steps=4); fold()
    a('s_and_b32 s6, s3, 1\ns_lshl_b32 s6, s6, 14\ns_lshr_b32 s7, s3, 1\ns_lshl_b32 s7, s7, 10\ns_add_u32 s6, s6, s7')
    publish_tag(Z, 's6')
    stamp(3)
    dma_w(8 + cfg.pre, 16, setup=False)
    a('s_barrier')
    dma_w(0, 8, setup=False)
    a('v_lshrrev_b32 v10, 4, v1\nv_bfe_u32 v11, v1, 2, 2\nv_lshl_add_u32 v10, v10, 3, v11\nv_lshlrev_b32 v10, 9, v10')
    a('v_and_b32 v11, 3, v1\nv_lshl_add_u32 v10, v11, 3, v10')
    a('v_bfe_u32 v11, v1, 2, 3\nv_lshlrev_b32 v11, 5, v11\ns_lshl_b32 s6, s4, 6\nv_xor_b32 v11, s6, v11')
    a('v_add_u32 v22, v10, v11\nv_xor_b32 v11, 32, v11\nv_add_u32 v30, v10, v11')
    def tr_w(half):
        for cg, ad in ((0, 22), (1, 30)):
            if half: a(f'v_add_u32 v{10+cg}, {R1}, v{ad}')
            for s_ in range(4):
                for hh in range(2):
                    r = (F0, F1)[cg] + 4*(4*half + s_) + 2*hh
                    a(f'ds_read_b64_tr_b16 v[{r}:{r+1}], v{10+cg if half else ad} offset:{16384*s_ + 2048*hh}')
    a(f's_getreg_b32 s6, hwreg(HW_REG_XCC_ID)\ns_and_b32 s31, s6, 15\nv_mov_b32 v{T}, s31')
    a(f's_lshl_b32 s6, s3, 7\ns_add_u32 s6, s6, {XID}\nv_lshlrev_b32 v10, 3, v1')
    a('s_cmp_eq_u32 s4, 0\ns_cselect_b32 exec_lo, 0xffff, 0\ns_mov_b32 exec_hi, 0\ns_cbranch_execz L_nxid')
    a(f'buffer_store_dwordx2 v[{T}:{T+1}], v10, s[16:19], s6 offen sc1')
    a('L_nxid:')
    a('s_mov_b64 exec, -1')
    a('s_waitcnt vmcnt(8)\ns_barrier')
    stamp(4)
    tr_w(1)
    a('s_waitcnt lgkmcnt(0)\ns_barrier')
    a('s_cmp_ge_u32 s3, 28\ns_cbranch_scc1 L_nom1')
    a('s_lshl_b32 s24, s3, 7')
    dma_u1('s52', 's53', 512*3584, 3584, 's24', R1)
    stamp(5)
    a('s_waitcnt vmcnt(8)\ns_branch L_m1d')
    a('L_nom1:')
    a('s_waitcnt vmcnt(0)')
    a('L_m1d:')
    a('s_barrier')
    tr_w(0)
    a('s_waitcnt lgkmcnt(0)\ns_barrier')
    stamp(7)
    a('s_cmp_ge_u32 s3, 28\ns_cbranch_scc1 L_nom2')
    srd(20, 's56', 's57', 1792*1024)
    a('s_and_b32 s6, s4, 1\ns_lshl_b32 s6, s6, 7\nv_lshlrev_b32 v2, 4, v1\nv_xor_b32 v2, s6, v2')
    a('v_xor_b32 v10, 32, v2\nv_xor_b32 v11, 64, v2\nv_xor_b32 v12, 96, v2')
    a(f's_lshl_b32 s27, s3, 16\ns_lshl_b32 s28, s4, 13\ns_add_u32 s27, s27, s28')
    for hh in range(2):
        a('s_mov_b32 m0, s28')
        for i in range(4): a(f'buffer_load_dwordx4 v{(2,10,11,12)[i]}, s[20:23], s27 offen offset:{1024*i} {cfg.NT} lds')
        if hh == 0: a('s_add_u32 s27, s27, 4096\ns_add_u32 s28, s28, 4096')
    stamp(6)
    if cfg.xp & 256: a('s_endpgm')
    if cfg.touch:
        if cfg.mh: a(f's_lshl_b32 s6, s3, 11\ns_add_u32 s6, s6, {MOUT}\nv_lshlrev_b32 v10, 2, v0\nbuffer_load_dword v{DD}, v10, s[16:19], s6 offen sc1')
        else: a(f's_lshl_b32 s6, s3, 12\ns_add_u32 s6, s6, {MOUT}\nbuffer_load_dwordx2 v[{DD}:{DD+1}], v5, s[16:19], s6 offen sc1')
    a('v_and_b32 v10, 7, v1\nv_lshlrev_b32 v10, 1, v10')
    a('s_and_b32 s6, s3, 15\ns_lshl_b32 s6, s6, 5\ns_lshl_b32 s7, s4, 2\ns_add_u32 s6, s6, s7')
    a('v_and_b32 v11, 1, v1\nv_lshl_add_u32 v11, v11, 1, s6\nv_bfe_u32 v12, v1, 4, 1\nv_add_u32 v23, v11, v12')
    a('v_lshlrev_b32 v11, 1, v23\nglobal_load_ushort v24, v11, s[58:59]')
    a('s_lshl_b32 s6, s3, 7\ns_lshl_b32 s7, s4, 4\ns_add_u32 s6, s6, s7')
    a('v_add_u32 v11, s6, v10\nglobal_load_ushort v25, v11, s[54:55]')
    a('L_nom2:')
    if cfg.xp & 256: a('s_endpgm')
    if cfg.touch:
        a(f's_lshl_b32 s6, s3, 10\ns_add_u32 s6, s6, {WOUT}\nv_lshlrev_b32 v10, 4, v1\nbuffer_load_dword v{DD+2}, v10, s[16:19], s6 offen sc1')
    a(f'v_and_b32 v10, 31, v1\nv_lshlrev_b32 v10, 7, v10\ns_mov_b32 s6, {XID}')
    vpoll([f'buffer_load_dwordx2 v[{AT}:{AT+1}], v10, s[16:19], s6 offen sc1'], [AT+1], None, sleep=cfg.slp, tags=True)
    a(f'v_cmp_ne_u32 vcc, s31, v{AT}\ns_cmp_eq_u64 vcc, 0\ns_cselect_b32 s32, 1, 0')
    a('s_cmp_ge_u32 s3, 28\ns_cbranch_scc1 L_wst')
    a('s_barrier')
    tr_u1(F2, R1)
    a('v_lshrrev_b32 v11, 3, v23\nv_lshlrev_b32 v11, 7, v11\nv_and_b32 v12, 7, v23\nv_lshl_add_u32 v11, v12, 3, v11\nv_bfe_u32 v12, v1, 3, 1\nv_lshl_add_u32 v11, v12, 6, v11')
    a(f's_mov_b32 s63, {MODB + 24*1024}')
    for k in range(3): a(f's_mov_b32 s{60+k}, {MODB + 8192*k}')
    a('v_lshlrev_b32 v24, 16, v24\nv_lshlrev_b32 v25, 16, v25')
    a(f'v_mov_b32 v{AT+15}, 0x3f803f80\nds_write_b32 v7, v{AT+15} offset:{ACTM-ACT+3*TS}')
    stamp(1)
    vpoll([f'buffer_load_dwordx4 v[{AT+4*k}:{AT+4*k+3}], v28, s[16:19], s{60+k} offen sc1' for k in range(3)] +
          [f'buffer_load_dwordx2 v[{AT+12}:{AT+13}], v11, s[16:19], s63 offen sc1'], range(AT+1, AT+14, 2), AT+14, sleep=cfg.slpM, tags=True)
    stamp(8)
    a(f'v_mov_b32 v23, v{AT+12}\nv_mov_b32 v16, v{AT}\nv_mov_b32 v17, v{AT+2}')
    a(f'v_add_f32 v18, 1.0, v{AT+8}\nv_add_f32 v19, 1.0, v{AT+10}\nv_cvt_pk_bf16_f32 v{AT+1}, v{AT+4}, v{AT+6}\nv_cvt_pk_bf16_f32 v{AT+3}, v18, v19')
    unpack(18, 19, AT+3); unpack(20, 21, AT+1)
    a(f'ds_write_b32 v7, v{AT+3} offset:{ACTM-ACT+TS}\nds_write_b32 v7, v{AT+1} offset:{ACTM-ACT+2*TS}')
    t = AT + 16
    a(f'v_add_f32 v{t}, v18, v19\nv_mul_f32 v{t+1}, v18, v18\nv_fmac_f32 v{t+1}, v19, v19')
    a(f'v_mul_f32 v{t+2}, v18, v20\nv_fmac_f32 v{t+2}, v19, v21\nv_add_f32 v{t+3}, v20, v21')
    a(f'v_mul_f32 v{t+4}, v20, v20\nv_fmac_f32 v{t+4}, v21, v21')
    red6([t, t+1, t+2, t+3, t+4, t+4], STAT3 - STAT, (t+6, t+7, t+8, t+9))
    a(f'v_bfe_u32 v10, v1, 2, 2\nv_mul_u32_u24 v10, {TS}, v10\nv_add_u32 v10, v10, v4')
    a('s_waitcnt lgkmcnt(0)\ns_barrier')
    gemv(F2, 'v10', off=ACTM-ACT); fold()
    a(f'v_mov_b32 v26, v{Z}\nv_permlane16_swap_b32 v{Z}, v26')
    a(f'v_mov_b32 v27, v{Z}\nv_mov_b32 v28, v26\nv_permlane32_swap_b32 v{Z}, v27\nv_permlane32_swap_b32 v26, v28')
    a('L_wst:')
    if cfg.xp & 64: a('s_endpgm')
    if cfg.dirty:
        a(f's_lshl_b32 s6, s3, 15\ns_add_u32 s6, s6, 0xA0000\nv_lshlrev_b32 v10, 4, v0')
        srd(20, 's14', 's15', 0x200000)
        for i in range(cfg.dirty):
            a(f'buffer_store_dwordx4 v[40:43], v10, s[20:23], s6 offen\ns_add_u32 s6, s6, 8192')
    a('s_lshr_b32 s6, s4, 2\ns_lshl_b32 s24, s6, 3\ns_lshr_b32 s7, s26, 1\ns_add_u32 s24, s24, s7')
    a('s_and_b32 s7, s26, 1\ns_lshl_b32 s7, s7, 1\ns_bfe_u32 s28, s4, 0x10001\ns_add_u32 s7, s7, s28')
    a(f's_lshl_b32 s27, s24, 11\ns_lshl_b32 s29, s7, 3\ns_add_u32 s27, s27, s29\ns_add_u32 s27, s27, {LSE}')
    a(f's_lshl_b32 s60, s24, 14\ns_lshl_b32 s29, s7, 8\ns_add_u32 s60, s60, s29\ns_and_b32 s29, s4, 1\ns_lshl_b32 s29, s29, 7\ns_add_u32 s60, s60, s29\ns_add_u32 s60, s60, {OP}')
    a('s_add_u32 s61, s60, 4096')
    a(f's_mul_i32 s6, s6, 1152\ns_and_b32 s29, s4, 3\ns_lshl_b32 s29, s29, 6\ns_add_u32 s6, s6, s29\ns_add_u32 s6, s6, {ACT}')
    a('v_and_b32 v31, 1, v1\nv_mul_u32_u24 v31, 576, v31\nv_bfe_u32 v10, v1, 1, 4\nv_lshl_add_u32 v31, v10, 2, v31\nv_add_u32 v31, s6, v31')
    a('s_mov_b32 s62, 6144\nv_and_b32 v2, 31, v1\nv_lshlrev_b32 v2, 2, v2\nv_lshrrev_b32 v10, 5, v1\nv_mad_u32_u24 v2, v10, s62, v2')
    a(f's_lshl_b32 s29, s3, 10\ns_add_u32 s29, s29, {WOUT}')
    a('v_and_b32 v11, 2, v1\nv_cmp_eq_u32 vcc, 0, v11\nv_mov_b32 v11, 0xeeee\nv_mov_b32 v22, 0x4444\nv_cndmask_b32 v22, v11, v22, vcc')
    for r in range(8): a(f'v_mov_b32 v{DD+r}, 0')
    a('v_bfe_u32 v8, v1, 1, 2\nv_lshlrev_b32 v8, 4, v8\nv_bfe_u32 v11, v1, 4, 1\nv_lshl_add_u32 v8, v11, 6, v8\nv_bfe_u32 v11, v1, 3, 1\nv_lshl_add_u32 v8, v11, 7, v8')
    a('v_lshl_add_u32 v8, v10, 2, v8\ns_lshr_b32 s6, s4, 1\ns_lshl_b32 s6, s6, 8\ns_and_b32 s7, s4, 1\ns_lshl_b32 s7, s7, 3\ns_add_u32 s6, s6, s7\nv_add_u32 v8, s6, v8')
    a(f'v_lshlrev_b32 v10, 7, v1\nv_mov_b32 v{AT}, 0xff800000')
    stamp(9)
    a(f's_mov_b64 exec, {(1 << NCH) - 1:#x}')
    vpoll([f'buffer_load_dwordx2 v[{AT}:{AT+1}], v10, s[16:19], s27 offen sc1'], [AT+1], None, sleep=cfg.slp, tags=True)
    a('s_mov_b64 exec, -1')
    if cfg.diag is not None and cfg.diag >= 90:
        op = 'min' if cfg.diag == 99 else 'max'
        a(f'v_mov_b32 v{AT+2}, ' + ('0' if cfg.dk else 's64') + f'\ns_mov_b64 exec, {(1 << NCH) - 1:#x}\nbuffer_load_dword v{AT+2}, v10, s[16:19], s27 offen offset:64 sc1\ns_waitcnt vmcnt(0)\ns_mov_b64 exec, -1')
        if not cfg.dk: a(f'v_subrev_u32 v{AT+2}, s64, v{AT+2}')
        if cfg.diag >= 98:
            for r in (1, 2, 4, 8): a(f'v_{op}_i32_dpp v{AT+2}, v{AT+2}, v{AT+2} row_ror:{r} row_mask:0xf bank_mask:0xf')
        a(f'v_readlane_b32 s92, v{AT+2}, {0 if cfg.diag >= 98 else cfg.diag - 90}\ns_add_u32 s92, s92, 250\ns_add_u32 s92, s92, s64')
    a(f'v_mov_b32 v{AT+1}, v{AT}')
    for r in (1, 2, 4, 8): a(f'v_max_f32_dpp v{AT+1}, v{AT+1}, v{AT+1} row_ror:{r} row_mask:0xf bank_mask:0xf')
    a(f'v_sub_f32 v{AT}, v{AT}, v{AT+1}\nv_exp_f32 v{AT}, v{AT}\nv_mov_b32 v{AT+1}, v{AT}')
    for r in (1, 2, 4, 8): a(f'v_add_f32_dpp v{AT+1}, v{AT+1}, v{AT+1} row_ror:{r} row_mask:0xf bank_mask:0xf')
    a(f'v_rcp_f32 v{AT+1}, v{AT+1}\nv_mul_f32 v{AT}, v{AT}, v{AT+1}')
    a('v_lshrrev_b32 v10, 5, v1\nv_mul_u32_u24 v10, 24, v10')
    for i in range(6):
        a(f'ds_bpermute_b32 v{AT+24+i}, v10, v{AT} offset:{4*i}')
    a('s_waitcnt lgkmcnt(0)')
    wl = [f'buffer_load_dword v{AT+c}, v2, s[16:19], s{60+(c>>2)} offen offset:{1024*(c&3)} sc1' for c in range(6)]
    if cfg.mp & 1: mpoll([(wl[c], [AT+c]) for c in range(6)], AT+12)
    else: vpoll(wl, [AT+c for c in range(6)], AT+12)
    stamp(10)
    acc = AT + 20
    for c in range(6):
        tq = AT + 8 + 2*c
        unpack(tq, tq+1, AT+c)
    for c in range(6):
        tq = AT + 8 + 2*c; wp = AT + 24 + (c & ~1)
        mod = 'op_sel_hi:[1,0,1]' if (c & 1) == 0 else 'op_sel:[0,1,0] op_sel_hi:[1,1,1]'
        mod2 = 'op_sel_hi:[1,0]' if (c & 1) == 0 else 'op_sel:[0,1] op_sel_hi:[1,1]'
        ac = acc + 2*(c & 1)
        if c < 2: a(f'v_pk_mul_f32 v[{ac}:{ac+1}], v[{tq}:{tq+1}], v[{wp}:{wp+1}] {mod2}')
        else: a(f'v_pk_fma_f32 v[{ac}:{ac+1}], v[{tq}:{tq+1}], v[{wp}:{wp+1}], v[{ac}:{ac+1}] {mod}')
    a(f'v_pk_add_f32 v[{acc}:{acc+1}], v[{acc}:{acc+1}], v[{acc+2}:{acc+3}]')
    a(f'v_permlane32_swap_b32 v{acc}, v{acc+1}')
    a(f'v_add_f32 v{acc}, v{acc}, v{acc+1}')
    a(f'v_mov_b32 v{acc+1}, v{acc}\nv_permlane32_swap_b32 v{acc}, v{acc+1}')
    a(f's_mov_b64 exec, 0xffffffff\nv_cvt_pk_bf16_f32 v{acc}, v{acc}, v{acc+1}\nds_write_b32 v31, v{acc}\ns_mov_b64 exec, -1')
    fst(7)
    a('s_waitcnt lgkmcnt(0)\ns_barrier')
    fst(8)
    sgemv([F0, F1], [DD, Z], 'v4', 'v22')
    a(f'v_add_f32_dpp v10, v{DD}, v{DD+2} quad_perm:[0,1,2,3] row_mask:0x1 bank_mask:0xf')
    a(f'v_add_f32_dpp v10, v{DD+1}, v{DD+3} quad_perm:[0,1,2,3] row_mask:0x2 bank_mask:0xf')
    a(f'v_add_f32_dpp v10, v{Z}, v{Z+2} quad_perm:[0,1,2,3] row_mask:0x4 bank_mask:0xf')
    a(f'v_add_f32_dpp v10, v{Z+1}, v{Z+3} quad_perm:[0,1,2,3] row_mask:0x8 bank_mask:0xf')
    a('s_cmp_lg_u32 s32, 0')
    a('v_mov_b32_dpp v11, v10 quad_perm:[1,1,3,3] row_mask:0xf bank_mask:0xf')
    a('s_mov_b32 exec_lo, 0x55555555\ns_mov_b32 exec_hi, 0x55555555')
    a('v_cvt_pk_bf16_f32 v11, v10, v11')
    store2('buffer_store_dword v11, v8, s[16:19], s29 offen')
    a('s_mov_b64 exec, -1')
    stamp(11)
    a('s_cmp_ge_u32 s3, 28\ns_cbranch_scc1 L_hdone')

    a('v_lshrrev_b32 v10, 4, v1\nv_bfe_u32 v11, v1, 2, 2\nv_lshl_add_u32 v10, v10, 3, v11\nv_lshlrev_b32 v10, 10, v10')
    a(f'v_and_b32 v11, 3, v1\nv_lshl_add_u32 v10, v11, 3, v10')
    a('v_bfe_u32 v11, v1, 2, 3\nv_lshlrev_b32 v11, 5, v11\ns_lshl_b32 s6, s4, 7\nv_xor_b32 v11, s6, v11')
    for cg in range(4):
        a(f'v_xor_b32 v12, {32*cg}, v11\nv_add_u32 v{60+cg}, v10, v12')
    for cg in range(4):
        for s in range(2):
            for hh in range(2):
                r = F1 + (cg*2 + s)*4 + 2*hh
                a(f'ds_read_b64_tr_b16 v[{r}:{r+1}], v{60+cg} offset:{32768*s + 4096*hh}')
    a(f's_lshl_b32 s60, s4, 8\ns_add_u32 s60, s60, {WOUT}\ns_add_u32 s61, s60, 4096')
    a('v_and_b32 v59, 15, v1\nv_lshlrev_b32 v59, 4, v59\nv_lshrrev_b32 v58, 4, v1\nv_lshl_add_u32 v59, v58, 13, v59')
    wloads = [f'buffer_load_dwordx4 v[{AT+4*k}:{AT+4*k+3}], v59, s[16:19], s{60+(k>>1)} offen offset:{2048*(k&1)} sc1' for k in range(4)]
    for x in wloads: a(x)
    a(f'v_bfe_u32 v10, v1, 3, 1\nv_lshlrev_b32 v40, 5, v10\nv_add_u32 v40, {STAT}, v40')
    a(f'ds_read_b128 v[68:71], v40 offset:{STAT3-STAT}\nds_read_b32 v30, v40 offset:{STAT3-STAT+16}')
    a('v_bfe_u32 v11, v1, 1, 1\nv_lshl_add_u32 v41, v10, 1, v11\nv_lshlrev_b32 v41, 6, v41\nv_and_b32 v12, 4, v1\nv_add_u32 v41, v41, v12')
    a(f'v_and_b32 v12, 1, v1\nv_lshl_add_u32 v41, v12, 1, v41\ns_lshl_b32 s6, s4, 3\ns_add_u32 s6, s6, {HID}\nv_add_u32 v41, s6, v41')
    a(f'v_lshl_add_u32 v42, v12, 1, v11\nv_lshlrev_b32 v42, 6, v42\nv_and_b32 v45, 48, v1\nv_add_u32 v42, v42, v45\nv_add_u32 v42, {HID}, v42')
    a(f'v_and_b32 v43, 7, v1\nv_mul_u32_u24 v43, 288, v43\nv_add_u32 v43, v43, v45\nv_add_u32 v43, {AS}, v43')
    a('v_bfe_u32 v46, v1, 2, 1\nv_lshl_add_u32 v46, v12, 2, v46\nv_mul_u32_u24 v46, 288, v46\nv_lshl_add_u32 v46, v11, 2, v46\nv_lshrrev_b32 v11, 3, v1\nv_lshl_add_u32 v46, v11, 3, v46')
    a(f's_lshr_b32 s6, s4, 2\ns_mul_i32 s6, s6, 576\ns_and_b32 s7, s4, 3\ns_lshl_b32 s7, s7, 6\ns_add_u32 s6, s6, s7\ns_add_u32 s6, s6, {AS}\nv_add_u32 v46, s6, v46')
    a('v_and_b32 v11, 4, v1\nv_cmp_eq_u32 vcc, 0, v11\nv_mov_b32 v11, 0xeeee\nv_mov_b32 v47, 0x4444\nv_cndmask_b32 v47, v11, v47, vcc')
    for r in range(4): a(f'v_mov_b32 v{DD+r}, 0')
    a('s_and_b32 s6, s3, 15\ns_lshl_b32 s6, s6, 5\ns_lshl_b32 s7, s4, 2\ns_add_u32 s6, s6, s7')
    a('v_and_b32 v11, 1, v1\nv_lshl_add_u32 v11, v11, 1, s6')
    a('v_lshrrev_b32 v12, 1, v1\nv_lshlrev_b32 v44, 11, v12\nv_lshl_add_u32 v44, v11, 2, v44\nv_lshlrev_b32 v45, 2, v0' if cfg.mh else 'v_lshrrev_b32 v12, 1, v1\nv_lshlrev_b32 v44, 12, v12\nv_lshl_add_u32 v44, v11, 3, v44')
    a('v_bfe_u32 v12, v1, 4, 1\nv_add_u32 v11, v11, v12')
    a(f'v_lshlrev_b32 v48, 11, v10\nv_lshl_add_u32 v48, v11, 2, v48\nv_add_u32 v48, {X1}, v48')
    a('v_lshlrev_b32 v49, 10, v10\nv_lshl_add_u32 v49, v11, 1, v49')
    a(f's_add_u32 s20, s14, {MOUT}\ns_addc_u32 s21, s15, 0\ns_mov_b32 s22, {28*(2048 if cfg.mh else 4096)}\ns_mov_b32 s23, 0x20000')
    a(f's_lshl_b32 s24, s3, {11 if cfg.mh else 12}')
    a(f's_mov_b32 s40, {f2u(1/512)}\ns_mov_b32 s41, {f2u(1e-5)}\ns_mov_b32 s42, {f2u(0.044715)}\ns_mov_b32 s43, {f2u(-2*math.sqrt(2/math.pi)*LOG2E)}')
    a('v_and_b32 v50, 1, v1\nv_lshlrev_b32 v50, 4, v50\nv_mov_b32 v51, 0x3f80\nv_lshlrev_b32 v50, v50, v51\nv_bfe_u32 v51, v1, 2, 2')
    for i in range(4): a(f'v_cmp_eq_u32 vcc, {i}, v51\nv_cndmask_b32 v{64+i}, 0, v50, vcc')
    a('s_waitcnt lgkmcnt(0)')
    a(f's_mov_b32 s45, {f2u(2/512)}\nv_mov_b32 v50, s41')
    a('v_mul_f32 v68, s40, v68\nv_mul_f32 v69, s40, v69\nv_mul_f32 v70, s45, v70\nv_mul_f32 v71, s40, v71\nv_fma_f32 v30, v30, s40, v50')
    a(f'v_lshrrev_b32 v50, 3, v1\nv_mov_b32 v51, s40\nv_cmp_eq_u32 vcc, 5, v50\nv_mov_b32 v58, s45\nv_cndmask_b32 v51, v51, v58, vcc\nv_cmp_eq_u32 vcc, 4, v50\nv_cndmask_b32 v51, v51, -v58, vcc')
    a('v_mov_b32 v29, v9\nv_mov_b32 v31, v13')
    Q = (0, 60, 6, 10)
    for q_ in Q:
        for r in range(4): a(f'v_mov_b32 v{q_+r}, 0')
    if cfg.mp & 2: mpoll([(wloads[k], range(AT+4*k, AT+4*k+4)) for k in range(4)], AT+20, first_issued=True)
    else: vpoll(wloads, [AT+k for k in range(16)], AT+20, first_issued=True)
    stamp(12)
    V = AT + 16
    for k in range(4):
        c0 = '0' if k == 0 else f'v[{V}:{V+3}]'
        a(f'v_mfma_f32_16x16x32_bf16 v[{V}:{V+3}], v[64:67], v[{AT+4*k}:{AT+4*k+3}], {c0}')
    s0, s1 = V, V+1
    x0, x1, a0, a1 = AT+12, AT+13, AT+14, AT+15
    a(f'v_fma_f32 v{x0}, v16, v{s0}, v14\nv_fma_f32 v{x1}, v17, v{s1}, v15')
    a(f'v_mul_f32 v{a0}, v{x0}, v18\nv_mul_f32 v{a1}, v{x1}, v19')
    a(f'v_cvt_pk_bf16_f32 v{AT}, v{a0}, v{a1}\nds_write_b32 v46, v{AT}\nds_write_b64 v29, v[{x0}:{x1}]')
    fst(1)
    t = AT + 20
    a(f'v_add_f32 v{t}, v{x0}, v{x1}\nv_mul_f32 v{t+1}, v{x0}, v{x0}\nv_add_f32 v{t+2}, v{a0}, v{a1}\nv_mul_f32 v{t+3}, v{a0}, v{a0}')
    a(f'v_mul_f32 v{t+4}, v{a0}, v18\nv_mul_f32 v{t+5}, v{a0}, v20')
    a(f'v_fmac_f32 v{t+1}, v{x1}, v{x1}\nv_fmac_f32 v{t+3}, v{a1}, v{a1}\nv_fmac_f32 v{t+4}, v{a1}, v19\nv_fmac_f32 v{t+5}, v{a1}, v21')
    red6([t, t+1, t+2, t+3, t+4, t+5], 0, (t+6, t+7, t+8, t+9), 'v51', 'v31')
    fst(2)
    a('s_waitcnt lgkmcnt(0)')
    fst(9)
    a('s_barrier')
    fst(3)
    if not cfg.sord: a('ds_read_b128 v[52:55], v40\nds_read_b64 v[56:57], v40 offset:16')
    fill = [
        'v_fma_f32 v53, -v52, v52, v53',
        'v_fma_f32 v56, v52, v69, v56',
        'v_max_f32 v53, s41, v53',
        'v_fma_f32 v54, -v52, v68, v54',
        'v_rsq_f32 v53, v53',
        'v_fma_f32 v55, v52, v56, v55',
        'v_fma_f32 v57, -v52, v70, v57',
        'v_fma_f32 v55, v53, v55, v57',
        'v_fma_f32 v54, v53, v54, v71',
        'v_mul_f32 v52, v52, v53',
        'v_fma_f32 v55, v53, v55, v30',
        'v_fma_f32 v56, -v52, v26, v27',
        'v_fma_f32 v55, -v54, v54, v55',
        'v_fma_f32 v56, -v54, v28, v56',
        'v_max_f32 v55, s41, v55',
        'v_rsq_f32 v55, v55',
    ]
    sgemv([F2], [DD], 'v43', 'v47', fill=fill, lead=cfg.lead); fold()
    a(f'v_mov_b32 v{T}, v{Z}\nv_permlane16_swap_b32 v{Z}, v{T}\nv_add_f32 v{Z}, v{Z}, v{T}')
    fst(4)
    if cfg.mtag: a('v_mov_b32 v15, s33')
    ge = [f'v_fma_f32 v{Z}, v{Z}, v53, v56', f'v_fma_f32 v{Z}, v{Z}, v55, v25', f'v_mul_f32 v{T}, v{Z}, v{Z}', f'v_mul_f32 v{T+1}, s43, v{Z}',
          f'v_fma_f32 v{T}, v{T}, s42, 1.0', f'v_mul_f32 v{T}, v{T}, v{T+1}', f'v_exp_f32 v{T}, v{T}', f'v_add_f32 v{T}, 1.0, v{T}',
          f'v_rcp_f32 v{T}, v{T}', f'v_mul_f32 v{T}, v{T}, v{Z}', f'v_cvt_pk_bf16_f32 v{T}, v{T}, v{T}']
    for x in ge: a(x)
    a(f's_mov_b64 exec, 0xffff\nds_write_b16 v41, v{T}\ns_mov_b64 exec, -1')
    fst(5)
    a('s_waitcnt lgkmcnt(0)\ns_barrier')
    fst(6)
    a(f'ds_read_b128 v[{AT}:{AT+3}], v42')
    a(f'ds_read_b32 v52, v48')
    a(f's_waitcnt lgkmcnt(1)')
    for cg in range(4):
        ac = Q[cg]; fr = F1 + cg*8
        a(f'v_smfmac_f32_16x16x64_bf16 v[{ac}:{ac+3}], v[{AT}:{AT+3}], v[{fr}:{fr+7}], v22')
    y = AT + 8
    a('s_cmp_lg_u32 s32, 0')
    for cg in range(4):
        ac = Q[cg]
        for r in range(2): a(f'v_add_f32_dpp v{y+r}, v{ac+r}, v{ac+2+r} quad_perm:[0,1,2,3] row_mask:{1 << cg:#x} bank_mask:0xf')
    if cfg.mh:
        a(f'v_cvt_pk_bf16_f32 v14, v{y}, v{y+1}')
        store2('buffer_store_dword v14, v45, s[20:23], s24 offen')
    elif cfg.mtag:
        a(f'v_cvt_pk_bf16_f32 v14, v{y}, v{y+1}')
        store2(f'buffer_store_dwordx2 v[14:15], v5, s[20:23], s24 offen')
    else: store2(f'buffer_store_dwordx2 v[{y}:{y+1}], v5, s[20:23], s24 offen')
    stamp(13)
    a('s_cmp_ge_u32 s3, 16\ns_cbranch_scc1 L_hdone')
    fl = [f'buffer_load_dwordx2 v[{AT+4}:{AT+5}], v44, s[20:23], 0 offen sc1' if cfg.mh else f'buffer_load_dwordx4 v[{AT}:{AT+3}], v44, s[20:23], 0 offen sc1']
    if cfg.mtag: a(f'v_mov_b32 v{AT}, 0\nv_mov_b32 v{AT+2}, 0\ns_mov_b32 exec_hi, 0xffffff')
    a(fl[0])
    srd(24, 's46', 's47', 2048)
    a('s_waitcnt lgkmcnt(0)\nv_fma_f32 v52, v23, v24, v52')
    if cfg.mh:
        vpoll(fl, [AT+4, AT+5], AT+8, first_issued=True)
        a(f'v_lshlrev_b32 v{AT}, 16, v{AT+4}\nv_lshlrev_b32 v{AT+2}, 16, v{AT+5}\nv_and_b32 v{AT+1}, 0xffff0000, v{AT+4}\nv_and_b32 v{AT+3}, 0xffff0000, v{AT+5}')
    elif cfg.mtag:
        vpoll(fl, [AT+1, AT+3], AT+8, first_issued=True, tags=True)
        a('s_mov_b32 exec_hi, -1')
        a(f'v_and_b32 v{AT+1}, 0xffff0000, v{AT}\nv_and_b32 v{AT+3}, 0xffff0000, v{AT+2}\nv_lshlrev_b32 v{AT}, 16, v{AT}\nv_lshlrev_b32 v{AT+2}, 16, v{AT+2}')
    elif cfg.mp & 4: mpoll([(fl[0], range(AT, AT+4))], AT+8, first_issued=True)
    else: vpoll(fl, [AT+k for k in range(4)], AT+8, first_issued=True)
    if cfg.diag is None or cfg.diag < 90: stamp(14)
    a(f'v_add_f32_dpp v{Z}, v{AT}, v{AT} row_ror:8 row_mask:0xf bank_mask:0x3')
    a(f'v_add_f32_dpp v{T}, v{AT+2}, v{AT+2} row_ror:8 row_mask:0xf bank_mask:0x3')
    a(f'v_add_f32_dpp v{Z}, v{AT+1}, v{AT+1} row_ror:8 row_mask:0xf bank_mask:0xc')
    a(f'v_add_f32_dpp v{T}, v{AT+3}, v{AT+3} row_ror:8 row_mask:0xf bank_mask:0xc')
    a(f'v_permlane16_swap_b32 v{Z}, v{T}\nv_add_f32 v{Z}, v{Z}, v{T}')
    a(f'v_mov_b32 v{T}, v{Z}\nv_permlane32_swap_b32 v{Z}, v{T}\nv_add_f32 v{Z}, v{Z}, v{T}')
    a(f'v_add_f32_dpp v{Z}, v{Z}, v{Z} quad_perm:[2,3,0,1] row_mask:0xf bank_mask:0xf')
    a(f'v_add_f32_dpp v{Z}, v{Z}, v{Z} row_shl:4 row_mask:0xf bank_mask:0x5')
    a(f'v_fma_f32 v{Z}, v23, v{Z}, v52')
    if cfg.diag is not None:
        a('s_or_b32 s6, s3, s4\ns_cmp_lg_u32 s6, 0\ns_cbranch_scc1 L_ndiag')
        a('s_memrealtime s[94:95]\ns_waitcnt lgkmcnt(0)\ns_sub_u32 s6, s94, s64')
        a(f's_cmp_lt_u32 s6, {cfg.T0}\ns_cbranch_scc1 L_ndiag\ns_cmp_eq_u32 s96, s97\ns_cbranch_scc1 L_ndiag\ns_cmp_eq_u32 s32, {cfg.gate}\ns_cbranch_scc1 L_ndiag')
        a('s_cmp_eq_u32 s98, s99\ns_cbranch_scc1 L_ndiag')
        a(f's_sub_u32 s6, s{64+2*cfg.diag if cfg.diag < 90 else 92}, s{64+2*cfg.dsub}\ns_add_u32 s6, s6, {100 if cfg.dsub else 0}\nv_cvt_f32_u32 v10, s6\ns_mov_b64 exec, 1\nv_add_f32 v{Z}, v{Z}, v10\ns_mov_b64 exec, -1')
        a('L_ndiag:')
    if cfg.enc:
        a('s_or_b32 s6, s3, s4\ns_cmp_lg_u32 s6, 0\ns_cbranch_scc1 L_nenc')
        a(f's_memrealtime s[94:95]\ns_waitcnt lgkmcnt(0)\ns_sub_u32 s6, s94, s64\ns_sub_u32 s7, s{64+2*cfg.enc}, s64')
        a('v_mov_b32 v10, s6\nv_mov_b32 v11, s7\nv_and_b32 v12, 8, v1\nv_cmp_eq_u32 vcc, 0, v12\nv_cndmask_b32 v10, v11, v10, vcc')
        a('v_and_b32 v11, 1, v1\nv_lshlrev_b32 v11, 1, v11\nv_bfe_u32 v12, v1, 4, 1\nv_add_u32 v11, v11, v12\nv_mul_u32_u24 v11, 3, v11')
        a(f'v_lshrrev_b32 v10, v11, v10\nv_and_b32 v10, 7, v10\nv_cvt_f32_u32 v10, v10\nv_add_f32 v{Z}, v{Z}, v10')
        a('L_nenc:')
    a(f's_mov_b64 exec, 0x03030303')
    a(f'v_cvt_pk_bf16_f32 v{T}, v{Z}, v{Z}')
    a(f'buffer_store_short v{T}, v49, s[24:27], 0 offen {cfg.fst}')
    a('s_or_b32 s6, s3, s4\ns_cmp_lg_u32 s6, 0\ns_cbranch_scc1 L_noep')
    a(f's_mov_b64 exec, 1\nv_mov_b32 v10, {EPO}\nv_mov_b32 v11, s33\nbuffer_store_dword v11, v10, s[16:19], 0 offen')
    a('L_noep:')
    a('s_mov_b64 exec, -1')
    stamp(15)
    a('L_hdone:')
    if cfg.stamps:
        a(f's_cmp_lg_u32 s4, {cfg.sw}\ns_cbranch_scc1 L_end')
        stamps_out(16, 0)
        a('s_cmp_lg_u32 s2, 0\ns_cbranch_scc1 L_end')
        for n, i in enumerate((1, 4, 7, 8, 9, 10, 11, 12, 13, 14, 15)):
            a(f's_sub_u32 s60, s{64+2*i}, s64\nv_mov_b32 v4, s60\nglobal_store_dword v2, v4, s[12:13] offset:{16+4*n}')
        a('v_mov_b32 v4, s32\nglobal_store_dword v2, v4, s[12:13]')
        a('s_waitcnt vmcnt(0)')
    a('L_end:')
    a('s_endpgm')
    return wrap(a.finalize(), 256, 768, LDS_TOTAL, 168, sgpr=102)

if __name__ == '__main__':
    out = sys.argv[1]
    for o in sys.argv[2:]:
        k, v = o.split('=')
        setattr(cfg, k, eval(v))
    open(out, 'w').write(gen())
```
